```python
import torch

def _softmax(x, axis=-1):
    return torch.softmax(x, dim=axis)
def _gelu(x):
    return torch.nn.functional.gelu(x, approximate="tanh")
def _silu(x):
    return torch.nn.functional.silu(x)
def _sigmoid(x):
    return torch.sigmoid(x)
def _layernorm(x, axis=-1, eps=1e-5):
    m = x.mean(dim=axis, keepdim=True)
    v = x.var(dim=axis, keepdim=True, unbiased=False)
    return (x - m) / torch.sqrt(v + eps)
def _scatter_add(tgt, idx, src, axis=0):
    return tgt.clone().index_add_(axis, idx, src)
def _segment_sum(src, seg, n):
    out = torch.zeros((n,) + src.shape[1:], dtype=src.dtype)
    return out.index_add_(0, seg, src)
def _pad(x, pw):
    flat = tuple(v for pair in reversed(pw) for v in pair)
    return torch.nn.functional.pad(x, flat)

kernel_name = 'gated_mix__ssm_conv_s5__linear_attn_block__prompt'

def setup_inputs():

    _w = (lambda a: (lambda t: t.to(torch.bfloat16) if t.is_floating_point() else t)(torch.as_tensor(a)))
    def _A_setup():
        B, S, D = 1, 2048, 512
        P = D
        Lambda_re = -0.5 * (lambda _x: torch.exp(torch.as_tensor(_x)))((lambda *s: torch.randn(*s, dtype=torch.bfloat16) * 0.2)(P))
        Lambda_im = (lambda *s: torch.randn(*s, dtype=torch.bfloat16) * 0.8)(P) * 1.0
        B_re = (lambda *s: torch.randn(*s, dtype=torch.bfloat16) * 0.4)(P, D) * (D ** -0.5)
        B_im = (lambda *s: torch.randn(*s, dtype=torch.bfloat16) * 0.4)(P, D) * (D ** -0.5)
        C_re = (lambda *s: torch.randn(*s, dtype=torch.bfloat16) * 0.4)(D, P) * (P ** -0.5)
        C_im = (lambda *s: torch.randn(*s, dtype=torch.bfloat16) * 0.4)(D, P) * (P ** -0.5)
        log_dt = (lambda *s: torch.randn(*s, dtype=torch.bfloat16) * 0.2)(P) * 0.3 - 2.0
        Dskip = (lambda *s: torch.randn(*s, dtype=torch.bfloat16) * 0.05)(D)
        return {
            "x": _w((lambda *s: torch.randn(*s, dtype=torch.bfloat16) * 0.05)(B, S, D)),
            "Lambda_re": _w(Lambda_re),
            "Lambda_im": _w(Lambda_im),
            "B_re": _w(B_re),
            "B_im": _w(B_im),
            "C_re": _w(C_re),
            "C_im": _w(C_im),
            "log_dt": _w(log_dt),
            "Dskip": _w(Dskip),
        }
    _A_in = _A_setup()

    def _B_setup():
        B, S, D = 1, 2048, 512
        return {
            "x": _w((lambda *s: torch.randn(*s, dtype=torch.bfloat16) * 0.05)(B, S, D)),
            "wqkv": _w((lambda *s: torch.randn(*s, dtype=torch.bfloat16) * 0.8)(D, 3 * D)),
            "wo": _w((lambda *s: torch.randn(*s, dtype=torch.bfloat16) * 0.05)(D, D)),
        }
    _B_in = _B_setup()

    return {
        "A_x": _A_in["x"],
        "A_Lambda_re": _A_in["Lambda_re"],
        "A_Lambda_im": _A_in["Lambda_im"],
        "A_B_re": _A_in["B_re"],
        "A_B_im": _A_in["B_im"],
        "A_C_re": _A_in["C_re"],
        "A_C_im": _A_in["C_im"],
        "A_log_dt": _A_in["log_dt"],
        "A_Dskip": _A_in["Dskip"],
        "B_x": _B_in["x"],
        "B_wqkv": _B_in["wqkv"],
        "B_wo": _B_in["wo"],
        "gate_w": _w((lambda *s: torch.randn(*s, dtype=torch.bfloat16) * 0.05)(512) * 16.0),
    }

def reference(A_x, A_Lambda_re, A_Lambda_im, A_B_re, A_B_im, A_C_re, A_C_im, A_log_dt, A_Dskip, B_x, B_wqkv, B_wo, gate_w):
    def _A_ref(x, Lambda_re, Lambda_im, B_re, B_im, C_re, C_im, log_dt, Dskip):
        Bsz, L, H = x.shape
        Lam = Lambda_re + 1j * Lambda_im
        Bmat = B_re + 1j * B_im
        Cmat = C_re + 1j * C_im
        dt = torch.exp(log_dt)
        Lam_bar = torch.exp(dt * Lam)
        B_bar = ((Lam_bar - 1.0) / Lam)[:, None] * Bmat
        Bu = torch.einsum("bld,pd->blp", x + 0j, B_bar)
        h = torch.zeros_like(Bu[:, 0, :])
        hs = []
        for t in range(L):
            h = Lam_bar[None, :] * h + Bu[:, t, :]
            hs.append(h)
        hseq = torch.stack(hs, 1)
        y = 2.0 * torch.einsum("blp,dp->bld", hseq, Cmat).real + x * Dskip[None, None, :]
        return y

    def _B_ref(x, wqkv, wo):
        B, S, D = x.shape
        H = 32; Dh = D // H
        qkv = (lambda x, *d: x.permute(*d))((x @ wqkv).reshape(B, S, 3, H, Dh), 2, 0, 3, 1, 4)
        q, k, v = qkv[0], qkv[1], qkv[2]
        phi = lambda t: torch.where(t > 0, t + 1, torch.exp(t)) + 1e-6
        pq, pk = phi(q), phi(k)
        kv = torch.einsum("bhsd,bhse->bhde", pk, v)
        z = torch.einsum("bhsd->bhd", pk)
        num = torch.einsum("bhqd,bhde->bhqe", pq, kv)
        den = torch.einsum("bhqd,bhd->bhq", pq, z)[..., None] + 1e-6
        o = num / den
        return (lambda x, *d: x.permute(*d))(o, 0, 2, 1, 3).reshape(B, S, D) @ wo

    x = A_x
    g = _sigmoid((x * gate_w).sum(-1, keepdims=True))
    a = _A_ref(x, A_Lambda_re, A_Lambda_im, A_B_re, A_B_im, A_C_re, A_C_im, A_log_dt, A_Dskip)
    b = _B_ref(x, B_wqkv, B_wo)
    return g * a + (1 - g) * b
```

```python
import re

REG_RE = re.compile(r'(?<![\w.])([vas])(?:\[(\d+):(\d+)\]|(\d+))(?![\w])')

def regs_of(op):
    out = set()
    for m in REG_RE.finditer(op):
        k = m.group(1)
        if m.group(2) is not None:
            lo, hi = int(m.group(2)), int(m.group(3))
        else:
            lo = hi = int(m.group(4))
        for i in range(lo, hi + 1):
            out.add((k, i))
    if re.search(r'\bvcc\b', op): out.add(('s', 'vcc'))
    if re.search(r'\bexec\b', op): out.add(('s', 'exec'))
    if re.search(r'\bm0\b', op): out.add(('s', 'm0'))
    return out

TRANS = ('v_exp_f32', 'v_log_f32', 'v_rcp_f32', 'v_rsq_f32', 'v_sqrt_f32', 'v_sin_f32', 'v_cos_f32')

class Ins:
    __slots__ = ('text', 'op', 'defs', 'uses', 'kind', 'passes', 'srcC', 'srcAB', 'states', 'wide_store', 'ldsdma')
    def __init__(self, text):
        self.text = text
        t = text.split(';')[0].strip()
        parts = t.split(None, 1)
        self.op = parts[0]
        rest = parts[1] if len(parts) > 1 else ''
        ops = []; depth = 0; cur = ''
        for ch in rest:
            if ch == '[': depth += 1
            if ch == ']': depth -= 1
            if ch == ',' and depth == 0:
                ops.append(cur.strip()); cur = ''
            else: cur += ch
        if cur.strip(): ops.append(cur.strip())
        if ops:
            last = ops[-1]
            last = re.sub(r'\b(op_sel|op_sel_hi|neg_lo|neg_hi):\[[^\]]*\]', '', last)
            ops[-1] = last
        op = self.op
        self.defs = set(); self.uses = set(); self.passes = 0; self.srcC = set(); self.srcAB = set()
        self.states = 1; self.wide_store = False; self.ldsdma = False
        if op == 's_nop':
            self.kind = 'nop'; self.states = int(ops[0], 0) + 1
        elif op.startswith('v_mfma'):
            self.kind = 'mfma'
            self.passes = 8 if '32x32' in op else 4
            self.defs = regs_of(ops[0]); self.srcAB = regs_of(ops[1]) | regs_of(ops[2]); self.srcC = regs_of(ops[3])
            self.uses = self.srcAB | self.srcC
        elif op.startswith('v_'):
            self.kind = 'valu'
            if op.startswith('v_permlane') and 'swap' in op:
                self.defs = regs_of(ops[0]) | regs_of(ops[1]); self.uses = set(self.defs)
            elif op.startswith('v_cmp'):
                self.defs = regs_of(ops[0])
                for o in ops[1:]: self.uses |= regs_of(o)
            else:
                self.defs = regs_of(ops[0])
                for o in ops[1:]: self.uses |= regs_of(o)
                if op.startswith('v_fmac') or op.startswith('v_dot2c') or 'writelane' in op: self.uses |= self.defs
                if op.startswith('v_cndmask') and len(ops) == 3: self.uses.add(('s', 'vcc'))
        elif op.startswith('ds_'):
            self.kind = 'ds'
            if op.startswith('ds_read') or 'bpermute' in op or 'swizzle' in op:
                self.defs = regs_of(ops[0])
                for o in ops[1:]: self.uses |= regs_of(o)
            else:
                for o in ops: self.uses |= regs_of(o)
        elif op.startswith('buffer_') or op.startswith('global_'):
            self.kind = 'vmem'
            islds = bool(re.search(r'\blds\b', rest))
            self.ldsdma = islds
            if 'load' in op and not islds:
                self.defs = regs_of(ops[0])
                for o in ops[1:]: self.uses |= regs_of(o)
                if 'd16' in op: self.uses |= self.defs
            else:
                for o in ops: self.uses |= regs_of(o)
                if islds: self.uses.add(('s', 'm0'))
                if 'store' in op and ('x3' in op or 'x4' in op):
                    self.wide_store = True
                    data = ops[0] if op.startswith('buffer_') else ops[1]
                    self.srcC = regs_of(data)
        elif op.startswith('s_'):
            self.kind = 'salu'
            if op in ('s_waitcnt', 's_barrier', 's_endpgm', 's_sleep', 's_setprio') or op.startswith('s_cbranch') or op == 's_branch':
                pass
            elif op.startswith('s_cmp'):
                for o in ops: self.uses |= regs_of(o)
            else:
                self.defs = regs_of(ops[0])
                for o in ops[1:]: self.uses |= regs_of(o)
        else:
            raise ValueError("unknown instr " + text)

def vec(rs): return {r for r in rs if r[0] in 'va'}
def sca(rs): return {r for r in rs if r[0] == 's'}

def need_states(p, c):
    n = 0
    if p.kind == 'valu':
        vd = vec(p.defs); sd = sca(p.defs)
        if c.kind == 'mfma' and vd & c.uses: n = max(n, 2)
        if c.kind == 'valu':
            if c.op.startswith('v_permlane') and vd & c.uses: n = max(n, 2)
            if ('readfirstlane' in c.op or 'readlane' in c.op) and vd & c.uses: n = max(n, 1)
            if p.op.replace('_e64', '').replace('_e32', '') in TRANS and vd & c.uses: n = max(n, 1)
            if sd & c.uses: n = max(n, 4 if 'lane' in c.op else 2)
            if 'dpp' in c.text or 'row_' in c.text or 'quad_perm' in c.text:
                if vd & c.uses: n = max(n, 2)
            if 'op_sel' in p.text and not p.op.startswith('v_pk') and vd & (c.uses | c.defs): n = max(n, 1)
        if c.kind == 'vmem' and sd & c.uses: n = max(n, 5)
        if c.kind == 'salu' and sd & c.uses: n = max(n, 1)
        if c.op.startswith('s_cbranch_vcc') and ('s', 'vcc') in sd: n = max(n, 1)
    if p.kind == 'mfma':
        big = {4: 8, 8: 12}[p.passes]
        d = p.defs
        if c.kind == 'mfma':
            if d & c.srcAB: n = max(n, big)
            if d & c.srcC:
                if not (c.srcC == d and c.passes == p.passes): n = max(n, {4: 6, 8: 10}[p.passes])
            elif d & c.defs: n = max(n, {4: 6, 8: 10}[p.passes])
        elif c.kind in ('valu', 'vmem', 'ds'):
            if d & (c.uses | c.defs): n = max(n, big)
        if c.kind == 'valu' and vec(p.srcC) & c.defs: n = max(n, {4: 3, 8: 7}[p.passes])
    if p.kind == 'vmem' and p.wide_store:
        if p.srcC & c.defs: n = max(n, 2)
    if p.kind == 'salu' and ('s', 'm0') in p.defs and c.kind == 'vmem' and c.ldsdma: n = max(n, 1)
    return n

class Asm:
    def __init__(self):
        self.out = []
        self.hist = []
        self.vm = 0
        self.vm_done = 0
        self.lg = 0
        self.lg_done = 0
        self.nops = 0
        self.pend_vm = {}
        self.pend_lg = {}
    def raw(self, text): self.out.append(text)
    def label(self, name):
        self.out.append(name + ":")
    def comment(self, t): self.out.append("    ; " + t)
    def __call__(self, text):
        ins = Ins(text)
        dist = 0; need = 0
        for p in reversed(self.hist):
            k = need_states(p, ins) - dist
            if k > need: need = k
            dist += p.states
            if dist >= 20: break
        if need > 0:
            self.nops += need
            nop = Ins(f"s_nop {need-1}")
            self.hist.append(nop); self.out.append(f"    s_nop {need-1}")
        for r in (ins.uses | ins.defs):
            if r in self.pend_vm and self.pend_vm[r] > self.vm_done:
                if not (ins.kind == 'vmem' and r in ins.defs and r not in ins.uses):
                    raise RuntimeError(f"missing vm wait for {r} at: {text}")
            if r in self.pend_lg and self.pend_lg[r] > self.lg_done:
                if not (ins.kind == 'ds' and r in ins.defs and r not in ins.uses):
                    raise RuntimeError(f"missing lgkm wait for {r} at: {text}")
        self.hist.append(ins)
        if len(self.hist) > 40: self.hist = self.hist[-30:]
        self.out.append("    " + text)
        if ins.kind == 'vmem':
            self.vm += 1
            for r in ins.defs: self.pend_vm[r] = self.vm
            return self.vm
        if ins.kind == 'ds':
            self.lg += 1
            for r in ins.defs: self.pend_lg[r] = self.lg
            return self.lg
        return None
    def wait(self, vm=None, lg=None):
        parts = []
        if vm is not None and vm > self.vm_done:
            n = self.vm - vm
            assert n >= 0
            n = min(n, 63)
            parts.append(f"vmcnt({n})"); self.vm_done = self.vm - n
        if lg is not None and lg > self.lg_done:
            n = min(self.lg - lg, 15)
            parts.append(f"lgkmcnt({n})"); self.lg_done = self.lg - n
        if parts: self("s_waitcnt " + " ".join(parts))
    def wait_all(self, vm=True, lg=True, force=False):
        parts = []
        if vm and (force or self.vm > self.vm_done): parts.append("vmcnt(0)"); self.vm_done = self.vm
        if lg and (force or self.lg > self.lg_done): parts.append("lgkmcnt(0)"); self.lg_done = self.lg
        if parts: self("s_waitcnt " + " ".join(parts))
    def snapshot(self):
        return (list(self.hist), self.vm, self.vm_done, self.lg, self.lg_done, dict(self.pend_vm), dict(self.pend_lg))
    def restore(self, s):
        self.hist, self.vm, self.vm_done, self.lg, self.lg_done, self.pend_vm, self.pend_lg = list(s[0]), s[1], s[2], s[3], s[4], dict(s[5]), dict(s[6])
    def text(self): return "\n".join(self.out)

def v(i, n=1): return f"v{i}" if n == 1 else f"v[{i}:{i+n-1}]"
def a(i, n=1): return f"a{i}" if n == 1 else f"a[{i}:{i+n-1}]"
def s(i, n=1): return f"s{i}" if n == 1 else f"s[{i}:{i+n-1}]"

class Alloc:
    def __init__(self, start, limit):
        self.p = start; self.limit = limit; self.names = {}
    def __call__(self, name, n=1, align=1):
        self.p = (self.p + align - 1) // align * align
        r = self.p; self.p += n
        assert self.p <= self.limit, f"out of regs at {name}"
        self.names[name] = (r, n)
        return r
```

```python
import sys, os
sys.path.insert(0, os.path.dirname(__file__))
from asmlib import *

KNAME = "gated_mix__ssm_conv_s5__linear_attn_block__prompt_kernel"

WS_EPOCH = 0
WS_KVF   = 0x1000
WS_HF    = 0x4000
WS_OF    = 0xC000
WS_G     = 0x14000
WS_ZP    = 0x18000
WS_AGG   = 0x20000
WS_KVP   = 0x40000
WS_STAMP = 0xC0000
WS_ACT   = 0x100000
WS_SIZE  = WS_ACT + 64 * 98304
SCR = 131072
LDS_BYTES = 163840
SPIN = 1 << 17

def gen(stamps=False):
    A = Asm()
    P_X, P_LRE, P_LIM, P_BRE, P_BIM, P_CRE, P_CIM, P_LDT = 4, 6, 8, 10, 12, 14, 16, 18
    P_DSK, P_BX, P_QKV, P_WO, P_GW, P_OUT, P_DBG, P_WS = 20, 22, 24, 26, 28, 30, 32, 34
    R_X, R_W, R_WS, R_C, R_WO, R_OUT = 36, 40, 44, 48, 52, 56
    sW, sC, sJ, sK0, sRB, sNB, sTAG, sTY = 60, 61, 62, 63, 64, 65, 66, 67
    sXB, sWB, sWST, sCH, sT0, sT1, sT2, sT3 = 68, 69, 70, 71, 72, 73, 74, 75
    sMX, sMW, sCNT, sTT, sKH, sM8 = 76, 77, 78, 79, 80, 81
    sL2E = 82
    sST = 88
    vL = 0; vZ = 1; vE = 2
    t0, t1, t2, t3, t4, t5, t6, t7 = 4, 5, 6, 7, 8, 9, 10, 11
    vTAG = 12; vL16 = 13
    ACC = 16; BUF = 80; TMP = 112; TM2 = 176
    VX, VW, VN, VK1 = 208, 212, 216, 220
    RX, RN, RT = 224, 228, 232
    RW = 234
    RA, RB = 236, 240
    AD = 244
    nst = [0]
    def stamp():
        if stamps:
            A(f"s_memrealtime {s(sST + 2 * (nst[0] % 7), 2)}") if False else None
    stamp_regs = []
    def stamp(i):
        if stamps:
            A.wait_all(vm=False, lg=True)
            A(f"s_memrealtime {s(2, 2)}")
            A("s_waitcnt lgkmcnt(0)")
            A(f"s_mov_b32 {s(sST + i)}, s2")

    A("s_load_dwordx16 s[4:19], s[0:1], 0")
    A("s_load_dwordx16 s[20:35], s[0:1], 64")
    A("s_cmp_ge_u32 s2, 256")
    A("s_cbranch_scc1 L_end")
    A(f"v_lshrrev_b32 {v(t0)}, 6, v0")
    A(f"v_and_b32 {v(vL)}, 63, v0")
    A(f"v_readfirstlane_b32 {s(sW)}, {v(t0)}")
    A(f"v_mov_b32 {v(vZ)}, 0")
    A(f"s_and_b32 {s(sT0)}, s2, 7")
    A(f"s_lshr_b32 {s(sT1)}, s2, 3")
    A(f"s_and_b32 {s(sT2)}, {s(sT1)}, 7")
    A(f"s_lshr_b32 {s(sT3)}, {s(sT1)}, 3")
    A(f"s_and_b32 {s(sC)}, {s(sT0)}, 1"); A(f"s_lshl_b32 {s(sC)}, {s(sC)}, 3"); A(f"s_add_u32 {s(sC)}, {s(sC)}, {s(sT2)}")
    A(f"s_and_b32 {s(sTY)}, {s(sT3)}, 1")
    A(f"s_and_b32 {s(sJ)}, {s(sT0)}, 6"); A(f"s_lshr_b32 {s(sK0)}, {s(sT3)}, 1"); A(f"s_add_u32 {s(sJ)}, {s(sJ)}, {s(sK0)}")
    A(f"s_lshl_b32 {s(sK0)}, {s(sT3)}, 1"); A(f"s_add_u32 {s(sK0)}, {s(sK0)}, {s(sT2)}"); A(f"s_and_b32 {s(sK0)}, {s(sK0)}, 7")
    A(f"s_lshl_b32 {s(sRB)}, {s(sT0)}, 2"); A(f"s_and_b32 {s(sNB)}, {s(sT1)}, 3"); A(f"s_add_u32 {s(sRB)}, {s(sRB)}, {s(sNB)}")
    A(f"s_lshr_b32 {s(sNB)}, {s(sT1)}, 2")
    if stamps:
        A(f"s_mov_b32 {s(sST+13)}, s2")
    A(f"v_lshrrev_b32 {v(t0)}, 3, {v(vL)}")
    A(f"v_and_b32 {v(t1)}, 7, {v(vL)}")
    A(f"v_lshrrev_b32 {v(t2)}, 1, {v(t0)}")
    A(f"v_xor_b32 {v(t3)}, {v(t1)}, {v(t2)}")
    A(f"v_lshlrev_b32 {v(t3)}, 4, {v(t3)}")
    A(f"v_and_b32 {v(t2)}, 1, {v(t2)}")
    A(f"v_lshlrev_b32 {v(t2)}, 2, {v(t2)}")
    A(f"v_xor_b32 {v(t4)}, {v(t1)}, {v(t2)}")
    A(f"v_lshlrev_b32 {v(t4)}, 4, {v(t4)}")
    A(f"v_lshrrev_b32 {v(t5)}, 2, {v(t0)}")
    A(f"v_and_b32 {v(t6)}, 3, {v(t0)}")
    A(f"v_lshl_add_u32 {v(t5)}, {v(t5)}, 4, {v(t6)}")
    A(f"v_lshl_add_u32 {v(VX)}, {v(t5)}, 10, {v(t3)}")
    A(f"v_xor_b32 {v(t5)}, 64, {v(VX)}")
    A(f"v_add_u32 {v(VX+1)}, {3072}, {v(t5)}")
    A(f"v_add_u32 {v(VX+2)}, {2*3072}, {v(VX)}")
    A(f"v_add_u32 {v(VX+3)}, {3*3072}, {v(t5)}")
    A(f"v_lshl_add_u32 {v(VN)}, {v(t0)}, 10, {v(t3)}")
    A(f"v_xor_b32 {v(t5)}, 64, {v(VN)}")
    A(f"v_add_u32 {v(VN+1)}, {7168}, {v(t5)}")
    A(f"v_add_u32 {v(VN+2)}, {2*7168}, {v(VN)}")
    A(f"v_add_u32 {v(VN+3)}, {3*7168}, {v(t5)}")
    A(f"v_lshl_add_u32 {v(VK1)}, {v(t0)}, 10, {v(t4)}")
    for q in (1, 2, 3): A(f"v_add_u32 {v(VK1+q)}, {q*7168}, {v(VK1)}")
    A(f"v_mul_u32_u24 {v(t5)}, 3072, {v(t0)}")
    A(f"v_add_u32 {v(VW)}, {v(t5)}, {v(t4)}")
    for q in (1, 2, 3): A(f"v_add_u32 {v(VW+q)}, {q*(8*3072-1024)}, {v(VW)}")
    A(f"s_lshl_b32 {s(sMX)}, {s(sW)}, 12")
    A(f"s_lshl_b32 {s(sM8)}, {s(sW)}, 13")
    A(f"s_add_u32 {s(sMW)}, {s(sMX)}, 16384")
    A(f"s_lshl_b32 {s(sTT)}, {s(sC)}, 2"); A(f"s_add_u32 {s(sTT)}, {s(sTT)}, {s(sW)}")
    A(f"s_lshl_b32 {s(sXB)}, {s(sTT)}, 15")
    A(f"s_mov_b32 {s(R_X+2)}, 0x200000"); A(f"s_mov_b32 {s(R_X+3)}, 0x20000")
    A(f"s_mov_b32 {s(R_W+3)}, 0x20000")
    A(f"s_mov_b32 {s(R_WS+2)}, {WS_SIZE}"); A(f"s_mov_b32 {s(R_WS+3)}, 0x20000")
    A(f"s_mov_b32 {s(R_C+2)}, 0x80000"); A(f"s_mov_b32 {s(R_C+3)}, 0x20000")
    A(f"s_mov_b32 {s(R_WO+2)}, 0x80000"); A(f"s_mov_b32 {s(R_WO+3)}, 0x20000")
    A(f"s_mov_b32 {s(R_OUT+2)}, 0x400000"); A(f"s_mov_b32 {s(R_OUT+3)}, 0x20000")
    A(f"s_cmp_eq_u32 {s(sTY)}, 0")
    A("s_cbranch_scc0 L_attn")
    snap0 = A.snapshot()

    def common_srds():
        A("s_waitcnt lgkmcnt(0)")
        A(f"s_mov_b64 {s(R_X,2)}, {s(P_X,2)}")
        A(f"s_mov_b64 {s(R_WS,2)}, {s(P_WS,2)}")

    def late_srds():
        A(f"s_mov_b64 {s(R_WO,2)}, {s(P_WO,2)}")
        A(f"s_mov_b64 {s(R_OUT,2)}, {s(P_OUT,2)}")
        A(f"s_bitcmp1_b32 {s(sW)}, 0")
        A(f"s_cselect_b64 {s(R_C,2)}, {s(P_CIM,2)}, {s(P_CRE,2)}")

    def dma4(voff, srd, soff, m0expr):
        ops = [m0expr]
        for q in range(4):
            off = f" offset:{q*1024}" if q else ""
            ops.append(f"buffer_load_dwordx4 {v(voff+q)}, {s(srd,4)}, {s(soff)} offen{off} lds")
        return ops

    def unit_ops(i):
        slot = (i % 4) * 32768
        ops = []
        if i == 0: ops.append(f"s_mov_b32 {s(sCH)}, {s(sK0)}")
        else:
            ops.append(f"s_add_u32 {s(sCH)}, {s(sCH)}, 1"); ops.append(f"s_and_b32 {s(sCH)}, {s(sCH)}, 7")
        ops.append(f"s_lshl_b32 {s(sT0)}, {s(sCH)}, 7"); ops.append(f"s_add_u32 {s(sT0)}, {s(sT0)}, {s(sXB)}")
        ops.append(f"s_mul_i32 {s(sT1)}, {s(sCH)}, {s(sWST)}"); ops.append(f"s_add_u32 {s(sT1)}, {s(sT1)}, {s(sWB)}")
        ops += dma4(VX, R_X, sT0, f"s_add_u32 m0, {s(sMX)}, {slot}")
        ops += dma4(VW, R_W, sT1, f"s_add_u32 m0, {s(sMW)}, {slot}")
        return ops

    def unit8_ops(voff, srd, pre, slot, rowstep):
        ops = list(pre)
        ops.append(f"s_add_u32 {s(sT1)}, {s(sT0)}, {rowstep}")
        ops += dma4(voff, srd, sT0, f"s_add_u32 m0, {s(sM8)}, {slot*32768}")
        ops += dma4(voff, srd, sT1, f"s_add_u32 m0, {s(sM8)}, {slot*32768+4096}")
        return ops

    def wq_ops(u):
        pre = [f"s_add_u32 {s(sT0)}, {s(sK0)}, {s(sW)}", f"s_add_u32 {s(sT0)}, {s(sT0)}, {4*u}", f"s_and_b32 {s(sT0)}, {s(sT0)}, 7",
               f"s_mul_i32 {s(sT0)}, {s(sT0)}, {64*3072}", f"s_lshl_b32 {s(sT1)}, {s(sJ)}, 7", f"s_add_u32 {s(sT0)}, {s(sT0)}, {s(sT1)}"]
        return unit8_ops(VW, R_W, pre, u, 32 * 3072)
    def wo_ops(u, slot):
        pre = [f"s_lshl_b32 {s(sT0)}, {s(sW)}, 16", f"s_lshl_b32 {s(sT1)}, {s(sNB)}, 7", f"s_add_u32 {s(sT0)}, {s(sT0)}, {s(sT1)}"]
        if u: pre.append(f"s_add_u32 {s(sT0)}, {s(sT0)}, {256*1024}")
        return unit8_ops(VK1, R_WO, pre, slot, 32 * 1024)
    def c_ops(u):
        pre = [f"s_lshr_b32 {s(sT0)}, {s(sW)}, 1", f"s_lshl_b32 {s(sT0)}, {s(sT0)}, 7", f"s_lshl_b32 {s(sT1)}, {s(sNB)}, 16",
               f"s_add_u32 {s(sT0)}, {s(sT0)}, {s(sT1)}"]
        if u: pre.append(f"s_add_u32 {s(sT0)}, {s(sT0)}, {u*256}")
        return unit8_ops(VN, R_C, pre, u, 32 * 1024)

    def run(ops):
        tok = None
        for o in ops:
            r = A(o)
            if r is not None: tok = r
        return tok

    def read_addr_regs():
        A(f"v_and_b32 {v(t0)}, 31, {v(vL)}")
        A(f"v_lshrrev_b32 {v(t1)}, 5, {v(vL)}")
        A(f"v_bfe_u32 {v(t2)}, {v(vL)}, 1, 3")
        A(f"v_xor_b32 {v(t2)}, {v(t2)}, {v(t1)}")
        A(f"v_lshlrev_b32 {v(t2)}, 4, {v(t2)}")
        A(f"v_lshl_add_u32 {v(RN)}, {v(t0)}, 7, {v(t2)}")
        for q in (1, 2, 3): A(f"v_xor_b32 {v(RN+q)}, {q*32}, {v(RN)}")
        for q in range(4): A(f"v_add_u32 {v(RX+q)}, {s(sMX)}, {v(RN+q)}")
        A(f"v_bfe_u32 {v(t2)}, {v(vL)}, 2, 2")
        A(f"v_bfe_u32 {v(t3)}, {v(vL)}, 3, 1")
        A(f"v_bfe_u32 {v(t4)}, {v(vL)}, 4, 1")
        A(f"v_and_b32 {v(t5)}, 3, {v(vL)}")
        A(f"v_lshlrev_b32 {v(t5)}, 3, {v(t5)}")
        A(f"v_lshl_add_u32 {v(t5)}, {v(t4)}, 5, {v(t5)}")
        A(f"v_lshl_add_u32 {v(t5)}, {v(t3)}, 6, {v(t5)}")
        A(f"v_lshl_add_u32 {v(t5)}, {v(t2)}, 7, {v(t5)}")
        A(f"v_lshl_add_u32 {v(RT)}, {v(t1)}, 10, {v(t5)}")
        A(f"v_xor_b32 {v(RT+1)}, 64, {v(RT)}")
        A(f"v_lshl_add_u32 {v(RW)}, {v(t1)}, 9, {v(t5)}")
        A(f"v_lshlrev_b32 {v(vL16)}, 4, {v(vL)}")
        A(f"s_and_b32 {s(sKH)}, {s(sW)}, 1")

    def main_loop(kind, tail_units):
        def reads(i, st):
            slot = (i % 2) * 32768
            b = BUF + 16 * ((4 * i + st) % 2)
            L = [f"ds_read_b128 {a(16*i+4*st,4)}, {v(RX+st)} offset:{slot}"]
            for tl in range(4):
                if kind == 'ssm':
                    L.append(f"ds_read_b128 {v(b+4*tl,4)}, {v(RN+st)} offset:{slot+16384+tl*4096}")
                else:
                    base = slot + 16384 + (tl >> 1) * 8192 + st * 2048
                    L.append(f"ds_read_b64_tr_b16 {v(b+4*tl,2)}, {v(RT+(tl&1))} offset:{base}")
                    L.append(f"ds_read_b64_tr_b16 {v(b+4*tl+2,2)}, {v(RT+(tl&1))} offset:{base+512}")
            return L
        def mfmas(i, st):
            b = BUF + 16 * ((4 * i + st) % 2)
            L = []
            for tl in range(4):
                c = v(ACC + 16 * tl, 16)
                if i == 0 and st == 0: c = "1.0" if (kind == 'attn' and tl < 2) else "0"
                L.append(f"v_mfma_f32_32x32x16_bf16 {v(ACC+16*tl,16)}, {a(16*i+4*st,4)}, {v(b+4*tl,4)}, {c}")
            return L
        prev = None
        for i in range(8):
            if i in (2, 4, 6):
                for q in range(4): A(f"v_xor_b32 {v(RX+q)}, 0x10000, {v(RX+q)}")
                if kind == 'ssm':
                    for q in range(4): A(f"v_xor_b32 {v(RN+q)}, 0x10000, {v(RN+q)}")
                else:
                    for q in range(2): A(f"v_xor_b32 {v(RT+q)}, 0x10000, {v(RT+q)}")
            A.wait(vm=utok[i])
            A("s_barrier")
            nxt = unit_ops(i + 2) if i + 2 < 8 else tail_units[i - 6]
            nxt = list(nxt)
            per = (len(nxt) + 15) // 16
            for st in range(4):
                rd = reads(i, st)
                if prev is None:
                    tok = run(rd); prev = (i, st, tok); continue
                ms = mfmas(prev[0], prev[1])
                A.wait(lg=prev[2])
                n = (len(rd) + 3) // 4
                tok = None
                for tl in range(4):
                    A(ms[tl])
                    for r in rd[tl*n:(tl+1)*n]: tok = A(r)
                    for _ in range(per):
                        if nxt:
                            r = A(nxt.pop(0))
                prev = (i, st, tok)
            for o in nxt: A(o)
            utok.append(A.vm)
        A.wait(lg=prev[2])
        run(mfmas(prev[0], prev[1]))
        if kind == 'ssm':
            for q in range(4): A(f"v_xor_b32 {v(RN+q)}, 0x10000, {v(RN+q)}")
        else:
            for q in range(2): A(f"v_xor_b32 {v(RT+q)}, 0x10000, {v(RT+q)}")

    def get_tag(tok):
        A.wait(vm=tok)
        A(f"v_readfirstlane_b32 {s(sTAG)}, {v(vE)}")
        A(f"s_mul_i32 {s(sTAG)}, {s(sTAG)}, 0x9E3779B5")
        A(f"s_add_u32 {s(sTAG)}, {s(sTAG)}, 0x7F4A7C15")
        A(f"v_mov_b32 {v(vTAG)}, {s(sTAG)}")

    def cmul(dst, x, y, add=None):
        if add is None:
            A(f"v_pk_mul_f32 {v(dst,2)}, {v(x,2)}, {v(y,2)} op_sel_hi:[0,1]")
        else:
            A(f"v_pk_fma_f32 {v(dst,2)}, {v(x,2)}, {v(y,2)}, {v(add,2)} op_sel_hi:[0,1,1]")
        A(f"v_pk_fma_f32 {v(dst,2)}, {v(x,2)}, {v(y,2)}, {v(dst,2)} op_sel:[1,1,0] op_sel_hi:[1,0,1] neg_lo:[0,1,0]")

    def wo_to_regs(slot0):
        L = []
        for st in range(16):
            for tl in range(2):
                d = 128 + 8 * st + 4 * tl
                L.append(f"ds_read_b64_tr_b16 {a(d,2)}, {v(RW+tl)} offset:{st*2048}")
                L.append(f"ds_read_b64_tr_b16 {a(d+2,2)}, {v(RW+tl)} offset:{st*2048+1024}")
        pre = [f"s_lshl_b32 {s(sT0)}, {s(sKH)}, 15", f"s_add_u32 {s(sT0)}, {s(sT0)}, {slot0*32768}",
               f"s_lshl_b32 {s(sT1)}, {s(sKH)}, 6",
               f"v_xor_b32 {v(RW)}, {s(sT1)}, {v(RW)}", f"v_add_u32 {v(RW)}, {s(sT0)}, {v(RW)}", f"v_xor_b32 {v(RW+1)}, 64, {v(RW)}"]
        return pre, L

    def spin(name, load, check):
        A(f"s_mov_b32 {s(sCNT)}, {SPIN}")
        A.label(name)
        load()
        A.wait_all(vm=True, lg=False, force=True)
        check()
        A(f"s_sub_u32 {s(sCNT)}, {s(sCNT)}, 1")
        A(f"s_cbranch_scc1 {name}_x")
        A(f"s_cbranch_vccnz {name}")
        A.label(name + "_x")

    for q in range(4): A(f"v_mov_b32 {v(VW+q)}, {v(VN+q)}")
    A(f"s_mov_b32 {s(sWST)}, 128")
    A(f"s_lshr_b32 {s(sT0)}, {s(sW)}, 1"); A(f"s_lshl_b32 {s(sT0)}, {s(sT0)}, 15")
    A(f"s_lshl_b32 {s(sWB)}, {s(sJ)}, 16"); A(f"s_add_u32 {s(sWB)}, {s(sWB)}, {s(sT0)}")
    A(f"s_mov_b32 {s(R_W+2)}, 0x80000")
    A(f"s_lshl_b32 {s(sT0)}, {s(sJ)}, 7")
    A(f"v_lshl_add_u32 {v(t7)}, {v(vL)}, 1, {s(sT0)}")
    common_srds()
    A(f"s_bitcmp1_b32 {s(sW)}, 0")
    A(f"s_cselect_b64 {s(R_W,2)}, {s(P_BIM,2)}, {s(P_BRE,2)}")
    stamp(0)
    tokE = A(f"global_load_dword {v(vE)}, {v(vZ)}, {s(P_WS,2)} sc1")
    PR = TM2
    pLRE, pLIM, pLDT = PR, PR + 1, PR + 2
    A(f"global_load_ushort {v(pLRE)}, {v(t7)}, {s(P_LRE,2)}")
    A(f"global_load_ushort {v(pLIM)}, {v(t7)}, {s(P_LIM,2)}")
    tokP = A(f"global_load_ushort {v(pLDT)}, {v(t7)}, {s(P_LDT,2)}")
    utok = []
    run(unit_ops(0)); utok.append(A.vm)
    run(unit_ops(1)); utok.append(A.vm)
    late_srds()
    read_addr_regs()
    L1, KK, L16, L32, L128 = PR + 4, PR + 6, PR + 8, PR + 10, PR + 12
    LT, KT = PR + 14, PR + 18
    WG_ = PR + 22
    A.wait(vm=tokP)
    get_tag(tokE)
    A(f"v_lshlrev_b32 {v(pLRE)}, 16, {v(pLRE)}")
    A(f"v_lshlrev_b32 {v(pLIM)}, 16, {v(pLIM)}")
    A(f"v_lshlrev_b32 {v(pLDT)}, 16, {v(pLDT)}")
    A(f"v_xor_b32 {v(pLIM)}, 0x80000000, {v(pLIM)}")
    A(f"v_mul_f32 {v(t0)}, 0x3fb8aa3b, {v(pLDT)}")
    A(f"v_exp_f32 {v(t0)}, {v(t0)}")
    A(f"v_cvt_pk_bf16_f32 {v(t0)}, {v(t0)}, {v(t0)}")
    A(f"v_and_b32 {v(t0)}, 0xffff0000, {v(t0)}")
    A(f"v_mul_f32 {v(t1)}, {v(t0)}, {v(pLRE)}")
    A(f"v_mul_f32 {v(t2)}, {v(t0)}, {v(pLIM)}")
    A(f"v_mul_f32 {v(t1)}, 0x3fb8aa3b, {v(t1)}")
    A(f"v_exp_f32 {v(t1)}, {v(t1)}")
    A(f"v_mul_f32 {v(t2)}, 0.15915494, {v(t2)}")
    A(f"v_rndne_f32 {v(t3)}, {v(t2)}")
    A(f"v_sub_f32 {v(t2)}, {v(t2)}, {v(t3)}")
    A(f"v_cos_f32 {v(t3)}, {v(t2)}")
    A(f"v_sin_f32 {v(t4)}, {v(t2)}")
    A(f"v_mul_f32 {v(L1)}, {v(t1)}, {v(t3)}")
    A(f"v_mul_f32 {v(L1+1)}, {v(t1)}, {v(t4)}")
    A(f"v_mul_f32 {v(t0)}, {v(pLRE)}, {v(pLRE)}")
    A(f"v_fmac_f32 {v(t0)}, {v(pLIM)}, {v(pLIM)}")
    A(f"v_rcp_f32 {v(t0)}, {v(t0)}")
    A(f"v_add_f32 {v(t1)}, -1.0, {v(L1)}")
    A(f"v_add_f32 {v(t0)}, {v(t0)}, {v(t0)}")
    A(f"v_mul_f32 {v(t2)}, {v(t1)}, {v(pLRE)}")
    A(f"v_fmac_f32 {v(t2)}, {v(L1+1)}, {v(pLIM)}")
    A(f"v_mul_f32 {v(t3)}, {v(L1+1)}, {v(pLRE)}")
    A(f"v_fma_f32 {v(t3)}, -{v(t1)}, {v(pLIM)}, {v(t3)}")
    A(f"v_mul_f32 {v(KK)}, {v(t2)}, {v(t0)}")
    A(f"v_mul_f32 {v(KK+1)}, {v(t3)}, {v(t0)}")
    cmul(t0, L1, L1); cmul(t2, t0, t0); cmul(t0, t2, t2); cmul(L16, t0, t0)
    cmul(L32, L16, L16); cmul(t0, L32, L32); cmul(L128, t0, t0)
    for (src, dst) in ((L1, LT), (KK, KT)):
        for e in range(2):
            A(f"v_mov_b32 {v(dst+e)}, {v(src+e)}")
            A(f"v_mov_b32 {v(dst+2+e)}, {v(src+e)}")
        for e in range(2):
            A(f"v_permlane32_swap_b32 {v(dst+e)}, {v(dst+2+e)}")
    WS_ = t6
    WSEG = PR + 30
    cmul(t0, L128, L128); cmul(t2, t0, t0)
    A(f"v_mov_b32 {v(WG_)}, 1.0"); A(f"v_mov_b32 {v(WG_+1)}, 0")
    A(f"v_mov_b32 {v(WSEG)}, 1.0"); A(f"v_mov_b32 {v(WSEG+1)}, 0")
    for q in range(3):
        A(f"s_cmp_gt_u32 {s(sW)}, {q}")
        A("s_cselect_b64 exec, -1, 0")
        cmul(t0, WG_, t2); A(f"v_mov_b64 {v(WG_,2)}, {v(t0,2)}")
        cmul(t0, WSEG, L32); A(f"v_mov_b64 {v(WSEG,2)}, {v(t0,2)}")
    A("s_mov_b64 exec, -1")
    for q in range(1, 4): cmul(WG_ + 2 * q, WG_ + 2 * q - 2, L128)
    stamp(1)
    main_loop('ssm', [wo_ops(0, 0), wo_ops(1, 1)])
    stamp(2)
    tok_wo = A.vm
    U = TMP
    def upair(ct, k): return U + 32 * ct + 2 * k
    E0 = t0
    for k in range(16):
        for ct in range(2):
            re, im = ACC + 32 * ct + (k & ~1), ACC + 32 * ct + 16 + (k & ~1)
            b = k & 1
            A(f"v_pk_mul_f32 {v(upair(ct,k),2)}, {v(re,2)}, {v(KT+2*ct,2)} op_sel:[{b},0] op_sel_hi:[{b},1]")
            A(f"v_pk_fma_f32 {v(upair(ct,k),2)}, {v(im,2)}, {v(KT+2*ct,2)}, {v(upair(ct,k),2)} op_sel:[{b},1,0] op_sel_hi:[{b},0,1] neg_hi:[0,1,0]")
            if k == 0: continue
            src = upair(ct, 0) if k == 1 else (t0 + 2 * ct if k % 2 == 0 else t4 + 2 * ct)
            dst = t0 + 2 * ct if k % 2 == 1 else t4 + 2 * ct
            cmul(dst, src, LT + 2 * ct, upair(ct, k))
    A(f"v_permlane32_swap_b32 {v(t0)}, {v(t2)}")
    A(f"v_permlane32_swap_b32 {v(t1)}, {v(t3)}")
    EA = ACC
    A(f"v_mov_b64 {v(EA,2)}, {v(t0,2)}")
    cmul(t2, t0, L16, t2)
    A(f"v_lshlrev_b32 {v(AD)}, 3, {v(vL)}")
    A(f"s_lshl_b32 {s(sT0)}, {s(sW)}, 9")
    A(f"v_add_u32 {v(AD)}, {SCR}, {v(AD)}")
    A(f"v_add_u32 {v(AD+1)}, {s(sT0)}, {v(AD)}")
    A(f"ds_write_b64 {v(AD+1)}, {v(t2,2)}")
    A.wait_all(vm=False)
    A("s_barrier")
    EW = ACC + 2
    for q in range(4): tok = A(f"ds_read_b64 {v(EW+2*q,2)}, {v(AD)} offset:{q*512}")
    A.wait(lg=tok)
    PF = ACC + 10
    cmul(PF, EW, L32, EW + 2)
    cmul(PF + 2, PF, L32, EW + 4)
    cmul(PF + 4, PF + 2, L32, EW + 6)
    GR = ACC + 16
    A(f"v_mov_b32 {v(GR)}, {v(PF+4)}"); A(f"v_mov_b32 {v(GR+1)}, {v(vTAG)}")
    A(f"v_mov_b32 {v(GR+2)}, {v(PF+5)}"); A(f"v_mov_b32 {v(GR+3)}, {v(vTAG)}")
    A(f"s_lshl_b32 {s(sT2)}, {s(sJ)}, 4"); A(f"s_add_u32 {s(sT2)}, {s(sT2)}, {s(sC)}"); A(f"s_lshl_b32 {s(sT2)}, {s(sT2)}, 10")
    A(f"s_add_u32 {s(sT2)}, {s(sT2)}, {WS_AGG}")
    A(f"s_cmp_eq_u32 {s(sW)}, 0")
    A("s_cselect_b64 exec, -1, 0")
    A(f"buffer_store_dwordx4 {v(GR,4)}, {v(vL16)}, {s(R_WS,4)}, {s(sT2)} offen sc1")
    A("s_mov_b64 exec, -1")
    stamp(3)
    run(c_ops(2)); run(c_ops(3))
    PW = ACC + 20
    A(f"v_mov_b32 {v(PW)}, 0"); A(f"v_mov_b32 {v(PW+1)}, 0")
    for q, src in ((1, EW), (2, PF), (3, PF + 2)):
        A(f"s_cmp_eq_u32 {s(sW)}, {q}")
        A("s_cselect_b64 exec, -1, 0")
        A(f"v_mov_b64 {v(PW,2)}, {v(src,2)}")
    A("s_mov_b64 exec, -1")
    A(f"s_and_b32 {s(sT0)}, {s(sJ)}, 3")
    A(f"s_cmp_eq_u32 {s(sT0)}, 0")
    A("s_cbranch_scc0 L_nogate")
    snapg = A.snapshot()
    GD = ACC + 32
    A(f"global_load_dwordx4 {v(GD,4)}, {v(vL16)}, {s(P_GW,2)}")
    A(f"s_lshl_b32 {s(sT0)}, {s(sW)}, 11")
    A(f"s_add_u32 {s(sT0)}, {s(sT0)}, {SCR+4096}")
    A(f"v_add_u32 {v(AD+2)}, {s(sT0)}, {v(vL16)}")
    A(f"s_lshl_b32 {s(sT1)}, {s(sK0)}, 7"); A(f"s_add_u32 {s(sT0)}, {s(sT0)}, {s(sT1)}")
    A(f"v_lshrrev_b32 {v(AD+3)}, 5, {v(vL)}")
    A(f"v_lshl_add_u32 {v(AD+3)}, {v(AD+3)}, 4, {s(sT0)}")
    A.wait_all(vm=True, lg=False)
    A(f"ds_write_b128 {v(AD+2)}, {v(GD,4)}")
    A(f"ds_write_b128 {v(AD+2)}, {v(GD,4)} offset:1024")
    A.wait_all(vm=False)
    toks = []
    for st in range(8): toks.append(A(f"ds_read_b128 {v(BUF+4*st,4)}, {v(AD+3)} offset:{st*32}"))
    for st in range(32):
        A.wait(lg=toks[st])
        A(f"v_mfma_f32_32x32x16_bf16 {v(GD,16)}, {v(BUF+4*(st%8),4)}, {a(4*st,4)}, {'0' if st == 0 else v(GD,16)}")
        if st + 8 < 32: toks.append(A(f"ds_read_b128 {v(BUF+4*(st%8),4)}, {v(AD+3)} offset:{(st+8)*32}"))
    A(f"v_bfe_u32 {v(t0)}, {v(vL)}, 2, 1"); A(f"v_bfe_u32 {v(t1)}, {v(vL)}, 3, 2"); A(f"v_and_b32 {v(t2)}, 3, {v(vL)}")
    A(f"v_lshlrev_b32 {v(t2)}, 2, {v(t2)}")
    A(f"v_lshl_add_u32 {v(t2)}, {v(t1)}, 4, {v(t2)}")
    A(f"v_lshl_add_u32 {v(t2)}, {v(t0)}, 6, {v(t2)}")
    A(f"s_lshl_b32 {s(sT0)}, {s(sJ)}, 11"); A(f"s_lshl_b32 {s(sT1)}, {s(sTT)}, 7"); A(f"s_add_u32 {s(sT0)}, {s(sT0)}, {s(sT1)}")
    A(f"s_add_u32 {s(sT0)}, {s(sT0)}, {WS_G}")
    A(f"v_mul_f32 {v(t0)}, 0xbfb8aa3b, {v(GD)}")
    A(f"v_exp_f32 {v(t0)}, {v(t0)}")
    A(f"v_add_f32 {v(t0)}, 1.0, {v(t0)}")
    A(f"v_rcp_f32 {v(t0)}, {v(t0)}")
    A("s_mov_b64 exec, 0xffffffff")
    A("s_nop 0")
    A(f"buffer_store_dword {v(t0)}, {v(t2)}, {s(R_WS,4)}, {s(sT0)} offen sc1")
    A("s_mov_b64 exec, -1")
    A.label("L_nogate")
    A.restore(snapg)
    A("s_nop 7"); A("s_nop 3")
    A.wait_all(vm=True, lg=True, force=True)
    A("s_barrier")
    pre, L = wo_to_regs(0)
    run(pre); run(L)
    LB = ACC + 32
    so = [sT0, sT1, sT3, sCH]
    for q in range(4):
        A(f"s_lshl_b32 {s(so[q])}, {s(sW)}, 2"); A(f"s_add_u32 {s(so[q])}, {s(so[q])}, {q+1}")
        A(f"s_cmp_le_u32 {s(so[q])}, {s(sC)}")
        A(f"s_cselect_b32 {s(so[q])}, {s(so[q])}, 0")
        A(f"s_lshl_b32 {s(so[q])}, {s(so[q])}, 10")
        A(f"s_sub_u32 {s(so[q])}, {s(sT2)}, {s(so[q])}")
    def ld():
        for q in range(4): A(f"buffer_load_dwordx4 {v(LB+4*q,4)}, {v(vL16)}, {s(R_WS,4)}, {s(so[q])} offen sc1")
    def ck():
        A(f"v_xor_b32 {v(t0)}, {v(LB+1)}, {v(vTAG)}")
        for r in (3, 5, 7, 9, 11, 13, 15):
            A(f"v_bitop3_b32 {v(t0)}, {v(t0)}, {v(LB+r)}, {v(vTAG)} bitop3:0xf6")
        A(f"v_cmp_ne_u32 vcc, 0, {v(t0)}")
    spin("L_pagg", ld, ck)
    stamp(4)
    A(f"v_mov_b32 {v(t0)}, 0"); A(f"v_mov_b32 {v(t1)}, 0")
    for q in range(4):
        A(f"s_cmp_lg_u32 {s(so[q])}, {s(sT2)}")
        A("s_cselect_b64 exec, -1, 0")
        A(f"v_pk_fma_f32 {v(t0,2)}, {v(LB+4*q,2)}, {v(WG_+2*q,2)}, {v(t0,2)} op_sel_hi:[0,1,1]")
        A(f"v_pk_fma_f32 {v(t0,2)}, {v(LB+4*q+2,2)}, {v(WG_+2*q,2)}, {v(t0,2)} op_sel:[0,1,0] op_sel_hi:[0,0,1] neg_lo:[0,1,0]")
    A("s_mov_b64 exec, -1")
    A(f"ds_write_b64 {v(AD+1)}, {v(t0,2)} offset:2048")
    A.wait_all(vm=False)
    A("s_barrier")
    for q in range(4): tok = A(f"ds_read_b64 {v(EW+2*q,2)}, {v(AD)} offset:{2048+q*512}")
    A(f"v_and_b32 {v(t4)}, 31, {v(vL)}")
    A(f"v_lshrrev_b32 {v(t5)}, 5, {v(vL)}")
    A(f"v_bfe_u32 {v(t6)}, {v(vL)}, 1, 2")
    A(f"v_lshlrev_b32 {v(t7)}, 1, {v(t5)}")
    A(f"v_xor_b32 {v(t6)}, {v(t6)}, {v(t7)}")
    A(f"v_lshlrev_b32 {v(t6)}, 4, {v(t6)}")
    A(f"v_lshl_add_u32 {v(t6)}, {v(t4)}, 6, {v(t6)}")
    A(f"v_add_u32 {v(AD+2)}, {s(sM8)}, {v(t6)}")
    A(f"v_xor_b32 {v(AD+3)}, 16, {v(AD+2)}")
    A(f"v_bfe_u32 {v(t4)}, {v(vL)}, 2, 2")
    A(f"v_lshl_add_u32 {v(t4)}, {v(t5)}, 3, {v(t4)}")
    A(f"v_bfe_u32 {v(t6)}, {v(vL)}, 4, 1"); A(f"v_bfe_u32 {v(t7)}, {v(vL)}, 1, 1")
    A(f"v_lshl_add_u32 {v(t6)}, {v(t6)}, 1, {v(t7)}")
    A(f"v_bfe_u32 {v(t7)}, {v(vL)}, 3, 1")
    A(f"v_xor_b32 {v(t6)}, {v(t6)}, {v(t7)}")
    A(f"v_lshlrev_b32 {v(t6)}, 4, {v(t6)}")
    A(f"v_lshl_add_u32 {v(t6)}, {v(t4)}, 6, {v(t6)}")
    A(f"v_and_b32 {v(t7)}, 1, {v(vL)}")
    A(f"v_lshl_add_u32 {v(t6)}, {v(t7)}, 3, {v(t6)}")
    A(f"v_add_u32 {v(AD+4)}, {s(sM8)}, {v(t6)}")
    A(f"v_xor_b32 {v(AD+5)}, 32, {v(AD+4)}")
    A.wait(lg=tok)
    A(f"v_pk_add_f32 {v(EW,2)}, {v(EW,2)}, {v(EW+2,2)}")
    A(f"v_pk_add_f32 {v(EW+4,2)}, {v(EW+4,2)}, {v(EW+6,2)}")
    A(f"v_pk_add_f32 {v(EW,2)}, {v(EW,2)}, {v(EW+4,2)}")
    cmul(t0, EW, WSEG, PW)
    cmul(t2, t0, L16, EA)
    A(f"v_permlane32_swap_b32 {v(t0)}, {v(t2)}")
    A(f"v_permlane32_swap_b32 {v(t1)}, {v(t3)}")
    HP = ACC + 32
    for k in range(16):
        for ct in range(2):
            src = t0 + 2 * ct if k == 0 else upair(ct, k - 1)
            cmul(upair(ct, k), src, LT + 2 * ct, upair(ct, k))
        if k & 1:
            for ct in range(2):
                for cp in range(2):
                    A(f"v_cvt_pk_bf16_f32 {v(HP+8*(2*ct+cp)+k//2)}, {v(upair(ct,k-1)+cp)}, {v(upair(ct,k)+cp)}")
        if k in (7, 15):
            for m in range(4):
                A(f"ds_write_b128 {v(AD+2+k//8)}, {v(HP+8*m+4*(k//8),4)} offset:{m*2048}")
    A.wait_all(vm=False)
    HT = TMP
    toks = []
    for f in range(8):
        A(f"ds_read_b64_tr_b16 {v(HT+4*f,2)}, {v(AD+4)} offset:{f*1024}")
        toks.append(A(f"ds_read_b64_tr_b16 {v(HT+4*f+2,2)}, {v(AD+5)} offset:{f*1024+256}"))
    A(f"s_mul_i32 {s(sT0)}, {s(sTT)}, 98304"); A(f"s_lshl_b32 {s(sT1)}, {s(sJ)}, 13"); A(f"s_add_u32 {s(sT0)}, {s(sT0)}, {s(sT1)}")
    A(f"s_add_u32 {s(sT0)}, {s(sT0)}, {WS_ACT}"); A(f"s_add_u32 {s(sT1)}, {s(sT0)}, 4096")
    for f in range(8):
        A.wait(lg=toks[f])
        A(f"buffer_store_dwordx4 {v(HT+4*f,4)}, {v(vL16)}, {s(R_WS,4)}, {s(sT0 if f < 4 else sT1)} offen offset:{(f%4)*1024} sc1")
    A(f"s_lshl_b32 {s(sT0)}, {s(sTT)}, 9"); A(f"s_lshr_b32 {s(sT1)}, {s(sJ)}, 2"); A(f"s_lshl_b32 {s(sT1)}, {s(sT1)}, 8")
    A(f"s_add_u32 {s(sT0)}, {s(sT0)}, {s(sT1)}"); A(f"s_and_b32 {s(sT1)}, {s(sJ)}, 3"); A(f"s_lshl_b32 {s(sT1)}, {s(sT1)}, 2")
    A(f"s_add_u32 {s(sT0)}, {s(sT0)}, {s(sT1)}"); A(f"s_add_u32 {s(sT0)}, {s(sT0)}, {WS_HF}")
    stamp(5)
    A.wait_all(vm=True, lg=True)
    A("s_mov_b64 exec, 1")
    A(f"buffer_store_dword {v(vTAG)}, {v(vZ)}, {s(R_WS,4)}, {s(sT0)} offen sc1")
    A("s_mov_b64 exec, -1")
    stamp(6)
    A("s_barrier")
    run(c_ops(0)); run(c_ops(1))
    A("s_branch L_phase2")

    A.restore(snap0)
    A.label("L_attn")
    A(f"s_mov_b32 {s(sWST)}, {64*3072}")
    A(f"s_and_b32 {s(sT0)}, {s(sW)}, 1"); A(f"s_mul_i32 {s(sT0)}, {s(sT0)}, {32*3072}")
    A(f"s_lshr_b32 {s(sT1)}, {s(sW)}, 1"); A(f"s_lshl_b32 {s(sT1)}, {s(sT1)}, 10"); A(f"s_add_u32 {s(sT0)}, {s(sT0)}, {s(sT1)}")
    A(f"s_lshl_b32 {s(sT1)}, {s(sJ)}, 7"); A(f"s_add_u32 {s(sT0)}, {s(sT0)}, {s(sT1)}"); A(f"s_add_u32 {s(sWB)}, {s(sT0)}, 1024")
    A(f"s_mov_b32 {s(R_W+2)}, 0x180000")
    common_srds()
    A(f"s_mov_b64 {s(R_W,2)}, {s(P_QKV,2)}")
    stamp(0)
    tokE = A(f"global_load_dword {v(vE)}, {v(vZ)}, {s(P_WS,2)} sc1")
    utok = []
    run(unit_ops(0)); utok.append(A.vm)
    run(unit_ops(1)); utok.append(A.vm)
    late_srds()
    read_addr_regs()
    A(f"s_mov_b32 {s(sL2E)}, 0x3fb8aa3b"); A(f"s_mov_b32 {s(sL2E+1)}, 0x3fb8aa3b")
    A(f"s_mov_b32 {s(sL2E+4)}, 0x358637bd"); A(f"s_mov_b32 {s(sL2E+5)}, 0x358637bd")
    NL = AD + 10
    A(f"v_mov_b32 {v(NL)}, 0xbfb8aa3b"); A(f"v_mov_b32 {v(NL+1)}, 0xbfb8aa3b")
    ONES = TMP + 48
    for q in range(4): A(f"v_mov_b32 {v(ONES+q)}, 0x3f803f80")
    get_tag(tokE)
    stamp(1)
    main_loop('attn', [wq_ops(0), wq_ops(1)])
    stamp(2)
    tok_wq = A.vm
    def phi(src, dst):
        for k in range(0, 16, 2):
            tt = t0 + 2 * ((k // 2) % 4)
            A(f"v_pk_fma_f32 {v(tt,2)}, {v(src+k,2)}, {s(sL2E,2)}, {v(NL,2)}")
            A(f"v_exp_f32 {v(tt)}, {v(tt)} clamp")
            A(f"v_exp_f32 {v(tt+1)}, {v(tt+1)} clamp")
            if k >= 2:
                pp = t0 + 2 * ((k // 2 - 1) % 4)
                fin(src + k - 2, pp, dst + k // 2 - 1)
        fin(src + 14, t0 + 2 * (7 % 4), dst + 7)
    def fin(sr, pp, d):
        A(f"v_max_f32 {v(pp)}, {v(pp)}, {v(sr)}")
        A(f"v_max_f32 {v(pp+1)}, {v(pp+1)}, {v(sr+1)}")
        A(f"v_pk_add_f32 {v(pp,2)}, {v(pp,2)}, {s(sL2E+4,2)}")
        A(f"v_cvt_pk_bf16_f32 {v(d)}, {v(pp)}, {v(pp+1)}")
    PK, PV = TMP, TMP + 16
    for tl in range(2):
        phi(ACC + 16 * tl, PK + 8 * tl)
        for k in range(8): A(f"v_cvt_pk_bf16_f32 {v(PV+8*tl+k)}, {v(ACC+32+16*tl+2*k)}, {v(ACC+32+16*tl+2*k+1)}")
        for f in range(2):
            A(f"v_mfma_f32_32x32x16_bf16 {v(ACC+16*tl,16)}, {v(PK+8*tl+4*f,4)}, {v(PV+8*tl+4*f,4)}, {'0' if f == 0 else v(ACC+16*tl,16)}")
        for f in range(2):
            A(f"v_mfma_f32_32x32x16_bf16 {v(ACC+32+16*tl,16)}, {v(ONES,4)}, {v(PK+8*tl+4*f,4)}, {'0' if f == 0 else v(ACC+32+16*tl,16)}")
    A(f"s_lshl_b32 {s(sT0)}, {s(sW)}, 10"); A(f"s_add_u32 {s(sT0)}, {s(sT0)}, {SCR}")
    A(f"v_add_u32 {v(AD)}, {s(sT0)}, {v(vL16)}")
    A(f"s_add_u32 {s(sT0)}, {s(sMX)}, {SCR}")
    A(f"v_add_u32 {v(AD+1)}, {s(sT0)}, {v(vL16)}")
    A(f"s_lshl_b32 {s(sT0)}, {s(sW)}, 8"); A(f"s_add_u32 {s(sT0)}, {s(sT0)}, {SCR+16384}")
    A(f"v_lshl_add_u32 {v(AD+2)}, {v(vL)}, 2, {s(sT0)}")
    A(f"s_lshl_b32 {s(sT0)}, {s(sW)}, 6"); A(f"s_add_u32 {s(sT0)}, {s(sT0)}, {SCR+16384}")
    A(f"v_and_b32 {v(t0)}, 15, {v(vL)}")
    A(f"v_lshl_add_u32 {v(AD+3)}, {v(t0)}, 2, {s(sT0)}")
    A("s_mov_b32 exec_lo, 0xffff0000"); A("s_mov_b32 exec_hi, 0xffff0000")
    for tl in range(2):
        for q in range(4): A(f"v_mov_b64 {v(ACC+16*tl+2*q,2)}, {v(ACC+16*tl+8+2*q,2)}")
    A("s_mov_b32 exec_lo, 0"); A("s_mov_b32 exec_hi, -1")
    A(f"v_mov_b32 {v(ACC+32)}, {v(ACC+48)}")
    A("s_mov_b64 exec, -1")
    for qt in range(4):
        A(f"ds_write_b128 {v(AD)}, {v(ACC+16*(qt>>1)+4*(qt&1),4)} offset:{qt*4096}")
    A(f"ds_write_b32 {v(AD+2)}, {v(ACC+32)}")
    A.wait(vm=tok_wq)
    A.wait_all(vm=False)
    A("s_barrier")
    for q in range(4): tk = A(f"ds_read_b128 {v(ACC+4*q,4)}, {v(AD+1)} offset:{q*1024}")
    for q in range(4): tz = A(f"ds_read_b32 {v(ACC+16+q)}, {v(AD+3)} offset:{q*256}")
    A(f"s_lshl_b32 {s(sT2)}, {s(sJ)}, 2"); A(f"s_add_u32 {s(sT2)}, {s(sT2)}, {s(sW)}")
    A(f"s_lshl_b32 {s(sT3)}, {s(sT2)}, 4"); A(f"s_add_u32 {s(sT3)}, {s(sT3)}, {s(sC)}")
    A(f"s_lshl_b32 {s(sT0)}, {s(sT3)}, 10"); A(f"s_add_u32 {s(sT0)}, {s(sT0)}, {WS_KVP}")
    A(f"s_lshl_b32 {s(sT1)}, {s(sT3)}, 6"); A(f"s_add_u32 {s(sT1)}, {s(sT1)}, {WS_ZP}")
    A(f"v_lshlrev_b32 {v(AD+4)}, 2, {v(vL)}")
    A.wait(lg=tk)
    for e in (0, 2):
        A(f"v_pk_add_f32 {v(ACC+e,2)}, {v(ACC+e,2)}, {v(ACC+4+e,2)}")
        A(f"v_pk_add_f32 {v(ACC+8+e,2)}, {v(ACC+8+e,2)}, {v(ACC+12+e,2)}")
        A(f"v_pk_add_f32 {v(ACC+e,2)}, {v(ACC+e,2)}, {v(ACC+8+e,2)}")
    A(f"buffer_store_dwordx4 {v(ACC,4)}, {v(vL16)}, {s(R_WS,4)}, {s(sT0)} offen sc1")
    A.wait(lg=tz)
    A(f"v_pk_add_f32 {v(ACC+16,2)}, {v(ACC+16,2)}, {v(ACC+18,2)}")
    A(f"v_add_f32 {v(ACC+16)}, {v(ACC+16)}, {v(ACC+17)}")
    A("s_mov_b64 exec, 0xffff")
    tok_pub = A(f"buffer_store_dword {v(ACC+16)}, {v(AD+4)}, {s(R_WS,4)}, {s(sT1)} offen sc1")
    A("s_mov_b64 exec, -1")
    stamp(3)
    QA = TM2
    extra = wo_ops(0, 2) + wo_ops(1, 3)
    def qreads(ks):
        b = BUF + 8 * (ks % 4)
        L = []
        for tl in range(2):
            base = (ks // 4) * 8192 + (ks % 4) * 2048
            L.append(f"ds_read_b64_tr_b16 {v(b+4*tl,2)}, {v(RT+tl)} offset:{base}")
            L.append(f"ds_read_b64_tr_b16 {v(b+4*tl+2,2)}, {v(RT+tl)} offset:{base+512}")
        return L
    toks = [run(qreads(0)), run(qreads(1))]
    for ks in range(32):
        A.wait(lg=toks[ks])
        rd = qreads(ks + 2) if ks + 2 < 32 else []
        b = BUF + 8 * (ks % 4)
        tok = None
        for tl in range(2):
            A(f"v_mfma_f32_32x32x16_bf16 {v(QA+16*tl,16)}, {v(b+4*tl,4)}, {a(4*ks,4)}, {'1.0' if ks == 0 else v(QA+16*tl,16)}")
            for r in rd[2*tl:2*tl+2]: tok = A(r)
            if extra: A(extra.pop(0))
        toks.append(tok)
        if ks == 15:
            A(f"s_lshl_b32 {s(sCH)}, {s(sT2)}, 8"); A(f"s_lshl_b32 {s(sT3)}, {s(sC)}, 2"); A(f"s_add_u32 {s(sCH)}, {s(sCH)}, {WS_KVF}")
            A(f"s_add_u32 {s(sT3)}, {s(sT3)}, {s(sCH)}")
            A.wait(vm=tok_pub)
            A("s_mov_b64 exec, 1")
            A(f"buffer_store_dword {v(vTAG)}, {v(vZ)}, {s(R_WS,4)}, {s(sT3)} offen sc1")
            A("s_mov_b64 exec, -1")
    assert not extra
    PQ = TMP
    for tl in range(2): phi(QA + 16 * tl, PQ + 8 * tl)
    A.wait_all(vm=True, lg=True)
    A("s_barrier")
    run(c_ops(0)); run(c_ops(1))
    pre, L = wo_to_regs(2)
    run(pre); run(L)
    stamp(4)
    A(f"v_and_b32 {v(t4)}, 60, {v(AD+4)}")
    def ld(): A(f"buffer_load_dword {v(t0)}, {v(t4)}, {s(R_WS,4)}, {s(sCH)} offen sc1")
    def ck(): A(f"v_cmp_ne_u32 vcc, {v(t0)}, {v(vTAG)}")
    spin("L_pkv", ld, ck)
    stamp(5)
    A(f"s_lshl_b32 {s(sT0)}, {s(sT2)}, 14"); A(f"s_add_u32 {s(sT0)}, {s(sT0)}, {WS_KVP}")
    A(f"s_lshl_b32 {s(sT1)}, {s(sT2)}, 10"); A(f"s_add_u32 {s(sT1)}, {s(sT1)}, {WS_ZP}")
    for q in range(4): tz = A(f"buffer_load_dword {v(t0+q)}, {v(AD+4)}, {s(R_WS,4)}, {s(sT1)} offen offset:{q*256} sc1")
    toks = []
    for q in range(16):
        toks.append(A(f"buffer_load_dwordx4 {v(ACC+4*q,4)}, {v(vL16)}, {s(R_WS,4)}, {s(sT0)} offen offset:{(q%4)*1024} sc1"))
        if q % 4 == 3 and q < 15: A(f"s_add_u32 {s(sT0)}, {s(sT0)}, 4096")
    KVS, ZS = SCR + 20480, SCR + 22528
    A(f"s_lshr_b32 {s(sT0)}, {s(sW)}, 1"); A(f"s_lshl_b32 {s(sT0)}, {s(sT0)}, 10")
    A(f"s_lshl_b32 {s(sT1)}, {s(sKH)}, 3"); A(f"s_add_u32 {s(sT1)}, {s(sT1)}, {s(sT0)}"); A(f"s_add_u32 {s(sT1)}, {s(sT1)}, {KVS}")
    A(f"v_add_u32 {v(AD)}, {s(sT1)}, {v(vL16)}")
    A(f"s_lshl_b32 {s(sT1)}, {s(sKH)}, 5"); A(f"s_add_u32 {s(sT1)}, {s(sT1)}, {s(sT0)}"); A(f"s_add_u32 {s(sT1)}, {s(sT1)}, {ZS}")
    A(f"v_bfe_u32 {v(t4)}, {v(vL)}, 2, 1"); A(f"v_bfe_u32 {v(t5)}, {v(vL)}, 3, 1"); A(f"v_and_b32 {v(t6)}, 3, {v(vL)}")
    A(f"v_lshl_add_u32 {v(t6)}, {v(t6)}, 1, {s(sT1)}")
    A(f"v_lshl_add_u32 {v(t6)}, {v(t5)}, 3, {v(t6)}")
    A(f"v_lshl_add_u32 {v(AD+1)}, {v(t4)}, 4, {v(t6)}")
    A(f"v_add_u32 {v(AD+2)}, {KVS}, {v(vL16)}")
    A(f"v_mov_b32 {v(AD+3)}, {v(AD+2)}")
    A(f"v_lshrrev_b32 {v(t4)}, 5, {v(vL)}")
    A(f"v_lshlrev_b32 {v(t4)}, 4, {v(t4)}")
    A("s_mov_b32 exec_lo, 0xffff0000"); A("s_mov_b32 exec_hi, 0xffff0000")
    A(f"v_add_u32 {v(AD+2)}, {ZS}, {v(t4)}")
    A("s_mov_b32 exec_lo, 0x0000ffff"); A("s_mov_b32 exec_hi, 0x0000ffff")
    A(f"v_add_u32 {v(AD+3)}, {ZS+32}, {v(t4)}")
    A("s_mov_b64 exec, -1")
    A(f"v_bfe_u32 {v(t4)}, {v(vL)}, 2, 1"); A(f"v_bfe_u32 {v(t5)}, {v(vL)}, 3, 2"); A(f"v_and_b32 {v(t6)}, 35, {v(vL)}")
    A(f"v_lshl_add_u32 {v(t6)}, {v(t5)}, 2, {v(t6)}")
    A(f"v_lshl_add_u32 {v(t6)}, {v(t4)}, 4, {v(t6)}")
    A(f"v_lshlrev_b32 {v(AD+5)}, 4, {v(t6)}")
    A.wait(vm=tz)
    A(f"v_pk_add_f32 {v(t0,2)}, {v(t0,2)}, {v(t2,2)}")
    A(f"v_add_f32 {v(t0)}, {v(t0)}, {v(t1)}")
    A(f"v_mov_b32 {v(t1)}, {v(t0)}")
    A(f"v_permlane32_swap_b32 {v(t0)}, {v(t1)}")
    A(f"v_add_f32 {v(t0)}, {v(t0)}, {v(t1)}")
    A(f"v_mov_b32 {v(t1)}, {v(t0)}")
    A(f"v_permlane16_swap_b32 {v(t0)}, {v(t1)}")
    A(f"v_add_f32 {v(t0)}, {v(t0)}, {v(t1)}")
    A(f"v_cvt_pk_bf16_f32 {v(t0)}, {v(t0)}, {v(t0)}")
    A(f"ds_write_b16 {v(AD+1)}, {v(t0)}")
    for q in range(1, 16):
        A.wait(vm=toks[q])
        for e in (0, 2): A(f"v_pk_add_f32 {v(ACC+e,2)}, {v(ACC+e,2)}, {v(ACC+4*q+e,2)}")
    A(f"v_cvt_pk_bf16_f32 {v(t2)}, {v(ACC)}, {v(ACC+1)}")
    A(f"v_cvt_pk_bf16_f32 {v(t3)}, {v(ACC+2)}, {v(ACC+3)}")
    A(f"ds_write_b64 {v(AD)}, {v(t2,2)}")
    A.wait_all(vm=False)
    A("s_barrier")
    AF = TMP + 16
    toks = []
    for hd4 in range(4): toks.append(A(f"ds_read_b128 {v(AF+4*hd4,4)}, {v(AD+2+(hd4&1))} offset:{(hd4>>1)*1024}"))
    for hd4 in range(4):
        A.wait(lg=toks[hd4])
        A(f"v_mfma_f32_32x32x16_bf16 {v(ACC+16*hd4,16)}, {v(AF+4*hd4,4)}, {v(PQ+4*hd4,4)}, 0")
    A(f"s_mul_i32 {s(sT0)}, {s(sTT)}, 98304"); A(f"s_lshl_b32 {s(sT1)}, {s(sJ)}, 12"); A(f"s_add_u32 {s(sT0)}, {s(sT0)}, {s(sT1)}")
    A(f"s_add_u32 {s(sT0)}, {s(sT0)}, {WS_ACT+65536}")
    OP = TMP + 32
    for hd4 in range(4):
        hd = hd4 & 1
        nb_, db_ = ACC + 16 * hd4 + 8 * hd, ACC + 16 * hd4 + 8 * (1 - hd)
        A(f"v_add_f32 {v(db_)}, {s(sL2E+4)}, {v(db_)}")
        A(f"v_rcp_f32 {v(db_)}, {v(db_)}")
        for e in range(0, 8, 2): A(f"v_pk_mul_f32 {v(nb_+e,2)}, {v(nb_+e,2)}, {v(db_,2)} op_sel_hi:[1,0]")
        for e in range(0, 8, 2): A(f"v_cvt_pk_bf16_f32 {v(OP+4*hd4+e//2)}, {v(nb_+e)}, {v(nb_+e+1)}")
        tok_o = A(f"buffer_store_dwordx4 {v(OP+4*hd4,4)}, {v(AD+5)}, {s(R_WS,4)}, {s(sT0)} offen offset:{hd4*1024} sc1")
    A(f"s_lshl_b32 {s(sT2)}, {s(sTT)}, 9"); A(f"s_lshr_b32 {s(sT3)}, {s(sJ)}, 2"); A(f"s_lshl_b32 {s(sT3)}, {s(sT3)}, 8")
    A(f"s_add_u32 {s(sT2)}, {s(sT2)}, {s(sT3)}"); A(f"s_and_b32 {s(sT3)}, {s(sJ)}, 3"); A(f"s_lshl_b32 {s(sT3)}, {s(sT3)}, 2")
    A(f"s_add_u32 {s(sT2)}, {s(sT2)}, {s(sT3)}"); A(f"s_add_u32 {s(sT2)}, {s(sT2)}, {WS_OF}")
    run(c_ops(2)); run(c_ops(3))
    A.wait(vm=tok_o)
    A("s_mov_b64 exec, 1")
    A(f"buffer_store_dword {v(vTAG)}, {v(vZ)}, {s(R_WS,4)}, {s(sT2)} offen sc1")
    A("s_mov_b64 exec, -1")
    stamp(6)

    A.label("L_phase2")
    A.hist = []
    A("s_nop 1")
    sTT2 = sTT
    A(f"s_lshr_b32 {s(sT0)}, {s(sW)}, 1"); A(f"s_lshl_b32 {s(sTT2)}, {s(sRB)}, 1"); A(f"s_add_u32 {s(sTT2)}, {s(sTT2)}, {s(sT0)}")
    A(f"s_lshl_b32 {s(sT0)}, {s(sNB)}, 1"); A(f"s_add_u32 {s(sT0)}, {s(sT0)}, {s(sKH)}"); A(f"s_lshl_b32 {s(sT0)}, {s(sT0)}, 5")
    A(f"v_and_b32 {v(t0)}, 31, {v(vL)}")
    A(f"v_add_u32 {v(t0)}, {s(sT0)}, {v(t0)}")
    A(f"v_lshrrev_b32 {v(t1)}, 5, {v(vL)}")
    A(f"v_lshlrev_b32 {v(t2)}, 1, {v(t0)}")
    A(f"v_lshl_add_u32 {v(AD)}, {v(t1)}, 12, {v(t2)}")
    A(f"v_lshlrev_b32 {v(t3)}, 2, {v(t0)}")
    A(f"v_lshl_add_u32 {v(AD+1)}, {v(t1)}, 13, {v(t3)}")
    A(f"v_lshlrev_b32 {v(AD+2)}, 4, {v(t1)}")
    A(f"global_load_ushort {v(t4)}, {v(t2)}, {s(P_DSK,2)}")
    A(f"s_lshl_b32 {s(sT0)}, {s(sTT2)}, 15")
    for j in range(4):
        for i in range(4):
            tx = A(f"buffer_load_ushort {v(ACC+4*j+i)}, {v(AD)}, {s(R_X,4)}, {s(sT0)} offen offset:{i*1024}")
        if j < 3: A(f"s_add_u32 {s(sT0)}, {s(sT0)}, 8192")
    A(f"s_mul_i32 {s(sT0)}, {s(sKH)}, {65536+4096}")
    A(f"s_mul_i32 {s(sT1)}, {s(sKH)}, {65536-4096}"); A(f"s_add_u32 {s(sT1)}, {s(sT1)}, 4096")
    for q in range(4):
        A(f"v_add_u32 {v(RA+q)}, {s(sT0)}, {v(RN+q)}")
        A(f"v_add_u32 {v(RB+q)}, {s(sT1)}, {v(RN+q)}")
    A(f"s_lshl_b32 {s(sT2)}, {s(sTT2)}, 1"); A(f"s_add_u32 {s(sT2)}, {s(sT2)}, {s(sKH)}"); A(f"s_lshl_b32 {s(sT2)}, {s(sT2)}, 8")
    A(f"s_add_u32 {s(sT3)}, {s(sT2)}, {WS_HF}")
    A(f"v_and_b32 {v(AD+3)}, 3, {v(vL)}"); A(f"v_lshlrev_b32 {v(AD+3)}, 2, {v(AD+3)}")
    A.wait_all(vm=True, lg=True, force=True)
    A("s_barrier")
    A(f"v_lshlrev_b32 {v(t4)}, 16, {v(t4)}")
    for k in range(16): A(f"v_lshlrev_b32 {v(ACC+k)}, 16, {v(ACC+k)}")
    for k in range(0, 16, 2): A(f"v_pk_mul_f32 {v(ACC+k,2)}, {v(ACC+k,2)}, {v(t4,2)} op_sel_hi:[1,0]")
    def creads(ks):
        jb, m, st = ks >> 3, (ks >> 1) & 3, ks & 1
        ct, cp = m >> 1, m & 1
        b = BUF + 8 * (ks % 4)
        off = jb * 16384 + cp * 8192
        return [f"ds_read_b128 {v(b,4)}, {v(RA+2*ct+st)} offset:{off}", f"ds_read_b128 {v(b+4,4)}, {v(RB+2*ct+st)} offset:{off}"]
    ctok = [run(creads(k)) for k in range(3)]
    stamp(7)
    def ld(): A(f"buffer_load_dword {v(t0)}, {v(AD+3)}, {s(R_WS,4)}, {s(sT3)} offen sc1")
    def ck(): A(f"v_cmp_ne_u32 vcc, {v(t0)}, {v(vTAG)}")
    spin("L_ph", ld, ck)
    stamp(8)
    A(f"s_mul_i32 {s(sXB)}, {s(sTT2)}, 98304"); A(f"s_add_u32 {s(sXB)}, {s(sXB)}, {WS_ACT}")
    A(f"s_lshl_b32 {s(sT0)}, {s(sKH)}, 15"); A(f"s_add_u32 {s(sT0)}, {s(sT0)}, {s(sXB)}")
    def hload(ks):
        o = []
        if ks % 4 == 0 and ks: o.append(f"s_add_u32 {s(sT0)}, {s(sT0)}, 4096")
        o.append(f"buffer_load_dwordx4 {a(4*ks,4)}, {v(vL16)}, {s(R_WS,4)}, {s(sT0)} offen offset:{(ks%4)*1024} sc1")
        return o
    AHEAD = 14
    htok = [run(hload(k)) for k in range(AHEAD)]
    GG = TM2
    for ks in range(32):
        A.wait(vm=htok[ks], lg=ctok[ks])
        b = BUF + 8 * (ks % 4)
        A(f"v_mfma_f32_32x32x16_bf16 {v(ACC,16)}, {a(4*ks,4)}, {v(b,4)}, {v(ACC,16)}")
        if ks + AHEAD < 32: htok.append(run(hload(ks + AHEAD)))
        if ks + AHEAD == 32:
            A(f"s_lshl_b32 {s(sT0)}, {s(sKH)}, 13"); A(f"s_lshl_b32 {s(sT1)}, {s(sTT2)}, 7"); A(f"s_add_u32 {s(sT0)}, {s(sT0)}, {s(sT1)}")
            A(f"s_add_u32 {s(sT0)}, {s(sT0)}, {WS_G}")
            for j in range(4): tg = A(f"buffer_load_dwordx4 {v(GG+4*j,4)}, {v(AD+2)}, {s(R_WS,4)}, {s(sT0)} offen offset:{j*32} sc1")
        A(f"v_mfma_f32_32x32x16_bf16 {v(ACC+16,16)}, {a(4*ks,4)}, {v(b+4,4)}, {'0' if ks == 0 else v(ACC+16,16)}")
        if ks + 3 < 32: ctok.append(run(creads(ks + 3)))
    stamp(9)
    A(f"s_add_u32 {s(sT3)}, {s(sT2)}, {WS_OF}")
    spin("L_po", ld, ck)
    stamp(10)
    A(f"s_lshl_b32 {s(sT0)}, {s(sKH)}, 14"); A(f"s_add_u32 {s(sT0)}, {s(sT0)}, {s(sXB)}"); A(f"s_add_u32 {s(sT0)}, {s(sT0)}, 65536")
    otok = []
    for ks in range(16):
        if ks % 4 == 0 and ks: A(f"s_add_u32 {s(sT0)}, {s(sT0)}, 4096")
        otok.append(A(f"buffer_load_dwordx4 {v(TMP+4*ks,4)}, {v(vL16)}, {s(R_WS,4)}, {s(sT0)} offen offset:{(ks%4)*1024} sc1"))
    for tl in range(2):
        for k in range(0, 16, 2): A(f"v_pk_mul_f32 {v(ACC+16*tl+k,2)}, {v(ACC+16*tl+k,2)}, {v(GG+k,2)}")
    for k in range(0, 16, 2): A(f"v_pk_add_f32 {v(GG+k,2)}, {v(GG+k,2)}, 1.0 op_sel_hi:[1,0] neg_lo:[1,0] neg_hi:[1,0]")
    A(f"s_xor_b32 {s(sT0)}, {s(sMX)}, 4096"); A(f"s_add_u32 {s(sT0)}, {s(sT0)}, {SCR}")
    A(f"v_add_u32 {v(AD+4)}, {s(sT0)}, {v(vL16)}")
    A(f"v_xor_b32 {v(AD+5)}, 4096, {v(AD+4)}")
    for ks in range(16):
        A.wait(vm=otok[ks])
        for tl in (1, 0):
            A(f"v_mfma_f32_32x32x16_bf16 {v(ACC+32+16*tl,16)}, {v(TMP+4*ks,4)}, {a(128+8*ks+4*tl,4)}, {'0' if ks == 0 else v(ACC+32+16*tl,16)}")
    stamp(11)
    for k in range(0, 16, 2):
        A(f"v_pk_fma_f32 {v(ACC+16+k,2)}, {v(ACC+48+k,2)}, {v(GG+k,2)}, {v(ACC+16+k,2)}")
        if k % 4 == 2: A(f"ds_write_b128 {v(AD+4)}, {v(ACC+16+k-2,4)} offset:{(k//4)*1024}")
    for k in range(0, 16, 2): A(f"v_pk_fma_f32 {v(ACC+k,2)}, {v(ACC+32+k,2)}, {v(GG+k,2)}, {v(ACC+k,2)}")
    A(f"s_lshl_b32 {s(sT0)}, {s(sTT2)}, 16")
    A.wait_all(vm=False)
    A("s_barrier")
    toks = [A(f"ds_read_b128 {v(ACC+32+4*j,4)}, {v(AD+5)} offset:{j*1024}") for j in range(4)]
    for j in range(4):
        A.wait(lg=toks[j])
        for e in (0, 2): A(f"v_pk_add_f32 {v(ACC+4*j+e,2)}, {v(ACC+4*j+e,2)}, {v(ACC+32+4*j+e,2)}")
        A(f"s_add_u32 {s(sT1)}, {s(sT0)}, 4096")
        for i in range(4):
            A(f"buffer_store_dword {v(ACC+4*j+i)}, {v(AD+1)}, {s(R_OUT,4)}, {s(sT0 if i < 2 else sT1)} offen offset:{(i%2)*2048}")
        if j < 3: A(f"s_add_u32 {s(sT0)}, {s(sT0)}, 16384")
    A(f"s_lshl_b32 {s(sT0)}, {s(sNB)}, 2"); A(f"s_add_u32 {s(sT0)}, {s(sT0)}, {s(sW)}"); A(f"s_lshl_b32 {s(sT0)}, {s(sT0)}, 5"); A(f"s_add_u32 {s(sT0)}, {s(sT0)}, {s(sRB)}")
    A(f"s_cmp_eq_u32 {s(sT0)}, 31")
    A("s_cbranch_scc0 L_fin")
    A("s_mov_b64 exec, 1")
    A(f"buffer_store_dword {v(vTAG)}, {v(vZ)}, {s(R_WS,4)}, 0 offen sc1")
    A("s_mov_b64 exec, -1")
    A.label("L_fin")
    if stamps:
        A("s_waitcnt vmcnt(0)")
        stamp(12)
        A(f"s_lshl_b32 {s(sT0)}, {s(sST+13)}, 2"); A(f"s_add_u32 {s(sT0)}, {s(sT0)}, {s(sW)}"); A(f"s_lshl_b32 {s(sT0)}, {s(sT0)}, 6")
        A(f"s_add_u32 {s(sT0)}, {s(sT0)}, {WS_STAMP}")
        A(f"s_mov_b32 {s(sST+13)}, {s(sTY)}")
        for i in range(14):
            A(f"v_mov_b32 {v(t0)}, {s(sST+i)}")
            A(f"buffer_store_dword {v(t0)}, {v(vZ)}, {s(R_WS,4)}, {s(sT0)} offen offset:{4*i}")
    A.label("L_end")
    hdr = open(os.path.join(os.path.dirname(__file__), "header.txt")).read()
    src = hdr + f"; @launch grid=(256,1,1) block=(256,1,1) lds={LDS_BYTES}\n" + f""".amdgcn_target "amdgcn-amd-amdhsa--gfx950"
.text
.globl {KNAME}
.p2align 8
.type {KNAME},@function
{KNAME}:
{A.text()}
    s_endpgm
.section .rodata,"a"
.p2align 6
.amdhsa_kernel {KNAME}
  .amdhsa_next_free_vgpr 512
  .amdhsa_next_free_sgpr 102
  .amdhsa_accum_offset 256
  .amdhsa_group_segment_fixed_size 0
  .amdhsa_kernarg_size 128
  .amdhsa_user_sgpr_count 2
  .amdhsa_user_sgpr_kernarg_segment_ptr 1
  .amdhsa_system_sgpr_workgroup_id_x 1
.end_amdhsa_kernel
"""
    return src, A

if __name__ == "__main__":
    out = sys.argv[1]
    src, A = gen(stamps=len(sys.argv) > 2 and sys.argv[2] == 'stamps')
    open(out, "w").write(src)
    print("lines", len(A.out), "nops", A.nops)
```

```python
import sys, os
sys.path.insert(0, os.path.dirname(__file__))
from asmlib import *

KNAME = "gated_mix__ssm_conv_s5__linear_attn_block__prompt_kernel"

WS_EPOCH = 0
WS_KVF   = 0x1000
WS_HF    = 0x4000
WS_OF    = 0xC000
WS_G     = 0x14000
WS_ZP    = 0x18000
WS_AGG   = 0x20000
WS_KVP   = 0x40000
WS_STAMP = 0xC0000
WS_ACT   = 0x100000
WS_SIZE  = WS_ACT + 64 * 98304
SCR = 131072
LDS_BYTES = 163840
SPIN = 1 << 17

def gen(stamps=False):
    A = Asm()
    P_X, P_LRE, P_LIM, P_BRE, P_BIM, P_CRE, P_CIM, P_LDT = 4, 6, 8, 10, 12, 14, 16, 18
    P_DSK, P_BX, P_QKV, P_WO, P_GW, P_OUT, P_DBG, P_WS = 20, 22, 24, 26, 28, 30, 32, 34
    R_X, R_W, R_WS, R_C, R_WO, R_OUT = 36, 40, 44, 48, 52, 56
    sW, sC, sJ, sK0, sRB, sNB, sTAG, sTY = 60, 61, 62, 63, 64, 65, 66, 67
    sXB, sWB, sWST, sCH, sT0, sT1, sT2, sT3 = 68, 69, 70, 71, 72, 73, 74, 75
    sMX, sMW, sCNT, sTT, sKH, sM8 = 76, 77, 78, 79, 80, 81
    sL2E = 82
    sST = 88
    vL = 0; vZ = 1; vE = 2
    t0, t1, t2, t3, t4, t5, t6, t7 = 4, 5, 6, 7, 8, 9, 10, 11
    vTAG = 12; vL16 = 13
    ACC = 16; BUF = 80; TMP = 112; TM2 = 176
    VX, VW, VN, VK1 = 208, 212, 216, 220
    RX, RN, RT = 224, 228, 232
    RW = 234
    RA, RB = 236, 240
    AD = 244
    SREG = [88, 90, 92, 94, 96, 98, 22, 32, 6, 8, 10, 12, 14]
    sWG = 100
    def stamp(i):
        if stamps and (stamps is True or i in stamps):
            A(f"s_memrealtime {s(SREG[i], 2)}")

    stamp(0)
    A("s_load_dwordx16 s[4:19], s[0:1], 0")
    A("s_load_dwordx16 s[20:35], s[0:1], 64")
    A("s_cmp_ge_u32 s2, 256")
    A("s_cbranch_scc1 L_end")
    A(f"v_lshrrev_b32 {v(t0)}, 6, v0")
    A(f"v_and_b32 {v(vL)}, 63, v0")
    A(f"v_readfirstlane_b32 {s(sW)}, {v(t0)}")
    A(f"v_mov_b32 {v(vZ)}, 0")
    A(f"s_and_b32 {s(sT0)}, s2, 7")
    A(f"s_lshr_b32 {s(sT1)}, s2, 3")
    A(f"s_and_b32 {s(sT2)}, {s(sT1)}, 7")
    A(f"s_lshr_b32 {s(sT3)}, {s(sT1)}, 3")
    A(f"s_and_b32 {s(sC)}, {s(sT0)}, 1"); A(f"s_lshl_b32 {s(sC)}, {s(sC)}, 3"); A(f"s_add_u32 {s(sC)}, {s(sC)}, {s(sT2)}")
    A(f"s_and_b32 {s(sTY)}, {s(sT3)}, 1")
    A(f"s_and_b32 {s(sJ)}, {s(sT0)}, 6"); A(f"s_lshr_b32 {s(sK0)}, {s(sT3)}, 1"); A(f"s_add_u32 {s(sJ)}, {s(sJ)}, {s(sK0)}")
    A(f"s_lshl_b32 {s(sK0)}, {s(sT3)}, 1"); A(f"s_add_u32 {s(sK0)}, {s(sK0)}, {s(sT2)}"); A(f"s_and_b32 {s(sK0)}, {s(sK0)}, 7")
    A(f"s_lshl_b32 {s(sRB)}, {s(sT0)}, 2"); A(f"s_and_b32 {s(sNB)}, {s(sT1)}, 3"); A(f"s_add_u32 {s(sRB)}, {s(sRB)}, {s(sNB)}")
    A(f"s_lshr_b32 {s(sNB)}, {s(sT1)}, 2")
    if stamps:
        A(f"s_mov_b32 {s(sWG)}, s2")
    A(f"v_lshrrev_b32 {v(t0)}, 3, {v(vL)}")
    A(f"v_and_b32 {v(t1)}, 7, {v(vL)}")
    A(f"v_lshrrev_b32 {v(t2)}, 1, {v(t0)}")
    A(f"v_xor_b32 {v(t3)}, {v(t1)}, {v(t2)}")
    A(f"v_lshlrev_b32 {v(t3)}, 4, {v(t3)}")
    A(f"v_and_b32 {v(t2)}, 1, {v(t2)}")
    A(f"v_lshlrev_b32 {v(t2)}, 2, {v(t2)}")
    A(f"v_xor_b32 {v(t4)}, {v(t1)}, {v(t2)}")
    A(f"v_lshlrev_b32 {v(t4)}, 4, {v(t4)}")
    A(f"v_lshrrev_b32 {v(t5)}, 2, {v(t0)}")
    A(f"v_and_b32 {v(t6)}, 3, {v(t0)}")
    A(f"v_lshl_add_u32 {v(t5)}, {v(t5)}, 4, {v(t6)}")
    A(f"v_lshl_add_u32 {v(VX)}, {v(t5)}, 10, {v(t3)}")
    A(f"v_xor_b32 {v(t5)}, 64, {v(VX)}")
    A(f"v_add_u32 {v(VX+1)}, {3072}, {v(t5)}")
    A(f"v_add_u32 {v(VX+2)}, {2*3072}, {v(VX)}")
    A(f"v_add_u32 {v(VX+3)}, {3*3072}, {v(t5)}")
    A(f"v_lshl_add_u32 {v(VN)}, {v(t0)}, 10, {v(t3)}")
    A(f"v_xor_b32 {v(t5)}, 64, {v(VN)}")
    A(f"v_add_u32 {v(VN+1)}, {7168}, {v(t5)}")
    A(f"v_add_u32 {v(VN+2)}, {2*7168}, {v(VN)}")
    A(f"v_add_u32 {v(VN+3)}, {3*7168}, {v(t5)}")
    A(f"v_lshl_add_u32 {v(VK1)}, {v(t0)}, 10, {v(t4)}")
    for q in (1, 2, 3): A(f"v_add_u32 {v(VK1+q)}, {q*7168}, {v(VK1)}")
    A(f"v_mul_u32_u24 {v(t5)}, 3072, {v(t0)}")
    A(f"v_add_u32 {v(VW)}, {v(t5)}, {v(t4)}")
    for q in (1, 2, 3): A(f"v_add_u32 {v(VW+q)}, {q*(8*3072-1024)}, {v(VW)}")
    A(f"s_lshl_b32 {s(sMX)}, {s(sW)}, 12")
    A(f"s_lshl_b32 {s(sM8)}, {s(sW)}, 13")
    A(f"s_add_u32 {s(sMW)}, {s(sMX)}, 16384")
    A(f"s_lshl_b32 {s(sTT)}, {s(sC)}, 2"); A(f"s_add_u32 {s(sTT)}, {s(sTT)}, {s(sW)}")
    A(f"s_lshl_b32 {s(sXB)}, {s(sTT)}, 15")
    A(f"s_mov_b32 {s(R_X+2)}, 0x200000"); A(f"s_mov_b32 {s(R_X+3)}, 0x20000")
    A(f"s_mov_b32 {s(R_W+3)}, 0x20000")
    A(f"s_mov_b32 {s(R_WS+2)}, {WS_SIZE}"); A(f"s_mov_b32 {s(R_WS+3)}, 0x20000")
    A(f"s_mov_b32 {s(R_C+2)}, 0x80000"); A(f"s_mov_b32 {s(R_C+3)}, 0x20000")
    A(f"s_mov_b32 {s(R_WO+2)}, 0x80000"); A(f"s_mov_b32 {s(R_WO+3)}, 0x20000")
    A(f"s_mov_b32 {s(R_OUT+2)}, 0x400000"); A(f"s_mov_b32 {s(R_OUT+3)}, 0x20000")
    A(f"s_cmp_eq_u32 {s(sTY)}, 0")
    A("s_cbranch_scc0 L_attn")
    snap0 = A.snapshot()

    def common_srds():
        A("s_waitcnt lgkmcnt(0)")
        A(f"s_mov_b64 {s(R_X,2)}, {s(P_X,2)}")
        A(f"s_mov_b64 {s(R_WS,2)}, {s(P_WS,2)}")

    def late_srds():
        A(f"s_mov_b64 {s(R_WO,2)}, {s(P_WO,2)}")
        A(f"s_mov_b64 {s(R_OUT,2)}, {s(P_OUT,2)}")
        A(f"s_bitcmp1_b32 {s(sW)}, 0")
        A(f"s_cselect_b64 {s(R_C,2)}, {s(P_CIM,2)}, {s(P_CRE,2)}")

    def dma4(voff, srd, soff, m0expr):
        ops = [m0expr]
        for q in range(4):
            off = f" offset:{q*1024}" if q else ""
            ops.append(f"buffer_load_dwordx4 {v(voff+q)}, {s(srd,4)}, {s(soff)} offen{off} lds")
        return ops

    def unit_ops(i):
        slot = (i % 4) * 32768
        ops = []
        if i == 0: ops.append(f"s_mov_b32 {s(sCH)}, {s(sK0)}")
        else:
            ops.append(f"s_add_u32 {s(sCH)}, {s(sCH)}, 1"); ops.append(f"s_and_b32 {s(sCH)}, {s(sCH)}, 7")
        ops.append(f"s_lshl_b32 {s(sT0)}, {s(sCH)}, 7"); ops.append(f"s_add_u32 {s(sT0)}, {s(sT0)}, {s(sXB)}")
        ops.append(f"s_mul_i32 {s(sT1)}, {s(sCH)}, {s(sWST)}"); ops.append(f"s_add_u32 {s(sT1)}, {s(sT1)}, {s(sWB)}")
        ops += dma4(VX, R_X, sT0, f"s_add_u32 m0, {s(sMX)}, {slot}")
        ops += dma4(VW, R_W, sT1, f"s_add_u32 m0, {s(sMW)}, {slot}")
        return ops

    def unit8_ops(voff, srd, pre, slot, rowstep):
        ops = list(pre)
        ops.append(f"s_add_u32 {s(sT1)}, {s(sT0)}, {rowstep}")
        ops += dma4(voff, srd, sT0, f"s_add_u32 m0, {s(sM8)}, {slot*32768}")
        ops += dma4(voff, srd, sT1, f"s_add_u32 m0, {s(sM8)}, {slot*32768+4096}")
        return ops

    def wq_ops(u):
        pre = [f"s_add_u32 {s(sT0)}, {s(sK0)}, {s(sW)}", f"s_add_u32 {s(sT0)}, {s(sT0)}, {4*u}", f"s_and_b32 {s(sT0)}, {s(sT0)}, 7",
               f"s_mul_i32 {s(sT0)}, {s(sT0)}, {64*3072}", f"s_lshl_b32 {s(sT1)}, {s(sJ)}, 7", f"s_add_u32 {s(sT0)}, {s(sT0)}, {s(sT1)}"]
        return unit8_ops(VW, R_W, pre, u, 32 * 3072)
    def wo_ops(u, slot):
        pre = [f"s_lshl_b32 {s(sT0)}, {s(sW)}, 16", f"s_lshl_b32 {s(sT1)}, {s(sNB)}, 7", f"s_add_u32 {s(sT0)}, {s(sT0)}, {s(sT1)}"]
        if u: pre.append(f"s_add_u32 {s(sT0)}, {s(sT0)}, {256*1024}")
        return unit8_ops(VK1, R_WO, pre, slot, 32 * 1024)
    def c_ops(u):
        pre = [f"s_lshr_b32 {s(sT0)}, {s(sW)}, 1", f"s_lshl_b32 {s(sT0)}, {s(sT0)}, 7", f"s_lshl_b32 {s(sT1)}, {s(sNB)}, 16",
               f"s_add_u32 {s(sT0)}, {s(sT0)}, {s(sT1)}"]
        if u: pre.append(f"s_add_u32 {s(sT0)}, {s(sT0)}, {u*256}")
        return unit8_ops(VN, R_C, pre, u, 32 * 1024)

    def run(ops):
        tok = None
        for o in ops:
            r = A(o)
            if r is not None: tok = r
        return tok

    def read_addr_regs():
        A(f"v_and_b32 {v(t0)}, 31, {v(vL)}")
        A(f"v_lshrrev_b32 {v(t1)}, 5, {v(vL)}")
        A(f"v_bfe_u32 {v(t2)}, {v(vL)}, 1, 3")
        A(f"v_xor_b32 {v(t2)}, {v(t2)}, {v(t1)}")
        A(f"v_lshlrev_b32 {v(t2)}, 4, {v(t2)}")
        A(f"v_lshl_add_u32 {v(RN)}, {v(t0)}, 7, {v(t2)}")
        for q in (1, 2, 3): A(f"v_xor_b32 {v(RN+q)}, {q*32}, {v(RN)}")
        for q in range(4): A(f"v_add_u32 {v(RX+q)}, {s(sMX)}, {v(RN+q)}")
        A(f"v_bfe_u32 {v(t2)}, {v(vL)}, 2, 2")
        A(f"v_bfe_u32 {v(t3)}, {v(vL)}, 3, 1")
        A(f"v_bfe_u32 {v(t4)}, {v(vL)}, 4, 1")
        A(f"v_and_b32 {v(t5)}, 3, {v(vL)}")
        A(f"v_lshlrev_b32 {v(t5)}, 3, {v(t5)}")
        A(f"v_lshl_add_u32 {v(t5)}, {v(t4)}, 5, {v(t5)}")
        A(f"v_lshl_add_u32 {v(t5)}, {v(t3)}, 6, {v(t5)}")
        A(f"v_lshl_add_u32 {v(t5)}, {v(t2)}, 7, {v(t5)}")
        A(f"v_lshl_add_u32 {v(RT)}, {v(t1)}, 10, {v(t5)}")
        A(f"v_xor_b32 {v(RT+1)}, 64, {v(RT)}")
        A(f"v_lshl_add_u32 {v(RW)}, {v(t1)}, 9, {v(t5)}")
        A(f"v_lshlrev_b32 {v(vL16)}, 4, {v(vL)}")
        A(f"s_and_b32 {s(sKH)}, {s(sW)}, 1")

    def main_loop(kind, tail_units):
        def reads(i, st):
            slot = (i % 2) * 32768
            b = BUF + 16 * ((4 * i + st) % 2)
            L = [f"ds_read_b128 {a(16*i+4*st,4)}, {v(RX+st)} offset:{slot}"]
            for tl in range(4):
                if kind == 'ssm':
                    L.append(f"ds_read_b128 {v(b+4*tl,4)}, {v(RN+st)} offset:{slot+16384+tl*4096}")
                else:
                    base = slot + 16384 + (tl >> 1) * 8192 + st * 2048
                    L.append(f"ds_read_b64_tr_b16 {v(b+4*tl,2)}, {v(RT+(tl&1))} offset:{base}")
                    L.append(f"ds_read_b64_tr_b16 {v(b+4*tl+2,2)}, {v(RT+(tl&1))} offset:{base+512}")
            return L
        def mfmas(i, st):
            b = BUF + 16 * ((4 * i + st) % 2)
            L = []
            for tl in range(4):
                c = v(ACC + 16 * tl, 16)
                if i == 0 and st == 0: c = "1.0" if (kind == 'attn' and tl < 2) else "0"
                L.append(f"v_mfma_f32_32x32x16_bf16 {v(ACC+16*tl,16)}, {a(16*i+4*st,4)}, {v(b+4*tl,4)}, {c}")
            return L
        prev = None
        for i in range(8):
            if i in (2, 4, 6):
                for q in range(4): A(f"v_xor_b32 {v(RX+q)}, 0x10000, {v(RX+q)}")
                if kind == 'ssm':
                    for q in range(4): A(f"v_xor_b32 {v(RN+q)}, 0x10000, {v(RN+q)}")
                else:
                    for q in range(2): A(f"v_xor_b32 {v(RT+q)}, 0x10000, {v(RT+q)}")
            A.wait(vm=utok[i])
            A("s_barrier")
            nxt = unit_ops(i + 2) if i + 2 < 8 else tail_units[i - 6]
            nxt = list(nxt)
            per = (len(nxt) + 15) // 16
            for st in range(4):
                rd = reads(i, st)
                if prev is None:
                    tok = run(rd); prev = (i, st, tok); continue
                ms = mfmas(prev[0], prev[1])
                A.wait(lg=prev[2])
                n = (len(rd) + 3) // 4
                tok = None
                for tl in range(4):
                    A(ms[tl])
                    for r in rd[tl*n:(tl+1)*n]: tok = A(r)
                    for _ in range(per):
                        if nxt:
                            r = A(nxt.pop(0))
                prev = (i, st, tok)
            for o in nxt: A(o)
            utok.append(A.vm)
        A.wait(lg=prev[2])
        run(mfmas(prev[0], prev[1]))
        if kind == 'ssm':
            for q in range(4): A(f"v_xor_b32 {v(RN+q)}, 0x10000, {v(RN+q)}")
        else:
            for q in range(2): A(f"v_xor_b32 {v(RT+q)}, 0x10000, {v(RT+q)}")

    def get_tag(tok):
        A.wait(vm=tok)
        A(f"v_readfirstlane_b32 {s(sTAG)}, {v(vE)}")
        A(f"s_mul_i32 {s(sTAG)}, {s(sTAG)}, 0x9E3779B5")
        A(f"s_add_u32 {s(sTAG)}, {s(sTAG)}, 0x7F4A7C15")
        A(f"v_mov_b32 {v(vTAG)}, {s(sTAG)}")

    def cmul(dst, x, y, add=None):
        if add is None:
            A(f"v_pk_mul_f32 {v(dst,2)}, {v(x,2)}, {v(y,2)} op_sel_hi:[0,1]")
        else:
            A(f"v_pk_fma_f32 {v(dst,2)}, {v(x,2)}, {v(y,2)}, {v(add,2)} op_sel_hi:[0,1,1]")
        A(f"v_pk_fma_f32 {v(dst,2)}, {v(x,2)}, {v(y,2)}, {v(dst,2)} op_sel:[1,1,0] op_sel_hi:[1,0,1] neg_lo:[0,1,0]")

    def wo_to_regs(slot0):
        L = []
        for st in range(16):
            for tl in range(2):
                d = 128 + 8 * st + 4 * tl
                L.append(f"ds_read_b64_tr_b16 {a(d,2)}, {v(RW+tl)} offset:{st*2048}")
                L.append(f"ds_read_b64_tr_b16 {a(d+2,2)}, {v(RW+tl)} offset:{st*2048+1024}")
        pre = [f"s_lshl_b32 {s(sT0)}, {s(sKH)}, 15", f"s_add_u32 {s(sT0)}, {s(sT0)}, {slot0*32768}",
               f"s_lshl_b32 {s(sT1)}, {s(sKH)}, 6",
               f"v_xor_b32 {v(RW)}, {s(sT1)}, {v(RW)}", f"v_add_u32 {v(RW)}, {s(sT0)}, {v(RW)}", f"v_xor_b32 {v(RW+1)}, 64, {v(RW)}"]
        return pre, L

    def spin(name, load, check):
        A(f"s_mov_b32 {s(sCNT)}, {SPIN}")
        A.label(name)
        load()
        A.wait_all(vm=True, lg=False, force=True)
        check()
        A(f"s_sub_u32 {s(sCNT)}, {s(sCNT)}, 1")
        A(f"s_cbranch_scc1 {name}_x")
        A(f"s_cbranch_vccnz {name}")
        A.label(name + "_x")

    for q in range(4): A(f"v_mov_b32 {v(VW+q)}, {v(VN+q)}")
    A(f"s_mov_b32 {s(sWST)}, 128")
    A(f"s_lshr_b32 {s(sT0)}, {s(sW)}, 1"); A(f"s_lshl_b32 {s(sT0)}, {s(sT0)}, 15")
    A(f"s_lshl_b32 {s(sWB)}, {s(sJ)}, 16"); A(f"s_add_u32 {s(sWB)}, {s(sWB)}, {s(sT0)}")
    A(f"s_mov_b32 {s(R_W+2)}, 0x80000")
    A(f"s_lshl_b32 {s(sT0)}, {s(sJ)}, 7")
    A(f"v_lshl_add_u32 {v(t7)}, {v(vL)}, 1, {s(sT0)}")
    common_srds()
    A(f"s_bitcmp1_b32 {s(sW)}, 0")
    A(f"s_cselect_b64 {s(R_W,2)}, {s(P_BIM,2)}, {s(P_BRE,2)}")
    tokE = A(f"global_load_dword {v(vE)}, {v(vZ)}, {s(P_WS,2)} sc1")
    PR = TM2
    pLRE, pLIM, pLDT = PR, PR + 1, PR + 2
    A(f"global_load_ushort {v(pLRE)}, {v(t7)}, {s(P_LRE,2)}")
    A(f"global_load_ushort {v(pLIM)}, {v(t7)}, {s(P_LIM,2)}")
    tokP = A(f"global_load_ushort {v(pLDT)}, {v(t7)}, {s(P_LDT,2)}")
    utok = []
    run(unit_ops(0)); utok.append(A.vm)
    run(unit_ops(1)); utok.append(A.vm)
    late_srds()
    read_addr_regs()
    L1, KK, L16, L32, L128 = PR + 4, PR + 6, PR + 8, PR + 10, PR + 12
    LT, KT = PR + 14, PR + 18
    WG_ = PR + 22
    A.wait(vm=tokP)
    get_tag(tokE)
    A(f"v_lshlrev_b32 {v(pLRE)}, 16, {v(pLRE)}")
    A(f"v_lshlrev_b32 {v(pLIM)}, 16, {v(pLIM)}")
    A(f"v_lshlrev_b32 {v(pLDT)}, 16, {v(pLDT)}")
    A(f"v_xor_b32 {v(pLIM)}, 0x80000000, {v(pLIM)}")
    A(f"v_mul_f32 {v(t0)}, 0x3fb8aa3b, {v(pLDT)}")
    A(f"v_exp_f32 {v(t0)}, {v(t0)}")
    A(f"v_cvt_pk_bf16_f32 {v(t0)}, {v(t0)}, {v(t0)}")
    A(f"v_and_b32 {v(t0)}, 0xffff0000, {v(t0)}")
    A(f"v_mul_f32 {v(t1)}, {v(t0)}, {v(pLRE)}")
    A(f"v_mul_f32 {v(t2)}, {v(t0)}, {v(pLIM)}")
    A(f"v_mul_f32 {v(t1)}, 0x3fb8aa3b, {v(t1)}")
    A(f"v_exp_f32 {v(t1)}, {v(t1)}")
    A(f"v_mul_f32 {v(t2)}, 0.15915494, {v(t2)}")
    A(f"v_rndne_f32 {v(t3)}, {v(t2)}")
    A(f"v_sub_f32 {v(t2)}, {v(t2)}, {v(t3)}")
    A(f"v_cos_f32 {v(t3)}, {v(t2)}")
    A(f"v_sin_f32 {v(t4)}, {v(t2)}")
    A(f"v_mul_f32 {v(L1)}, {v(t1)}, {v(t3)}")
    A(f"v_mul_f32 {v(L1+1)}, {v(t1)}, {v(t4)}")
    A(f"v_mul_f32 {v(t0)}, {v(pLRE)}, {v(pLRE)}")
    A(f"v_fmac_f32 {v(t0)}, {v(pLIM)}, {v(pLIM)}")
    A(f"v_rcp_f32 {v(t0)}, {v(t0)}")
    A(f"v_add_f32 {v(t1)}, -1.0, {v(L1)}")
    A(f"v_add_f32 {v(t0)}, {v(t0)}, {v(t0)}")
    A(f"v_mul_f32 {v(t2)}, {v(t1)}, {v(pLRE)}")
    A(f"v_fmac_f32 {v(t2)}, {v(L1+1)}, {v(pLIM)}")
    A(f"v_mul_f32 {v(t3)}, {v(L1+1)}, {v(pLRE)}")
    A(f"v_fma_f32 {v(t3)}, -{v(t1)}, {v(pLIM)}, {v(t3)}")
    A(f"v_mul_f32 {v(KK)}, {v(t2)}, {v(t0)}")
    A(f"v_mul_f32 {v(KK+1)}, {v(t3)}, {v(t0)}")
    cmul(t0, L1, L1); cmul(t2, t0, t0); cmul(t0, t2, t2); cmul(L16, t0, t0)
    cmul(L32, L16, L16); cmul(t0, L32, L32); cmul(L128, t0, t0)
    for (src, dst) in ((L1, LT), (KK, KT)):
        for e in range(2):
            A(f"v_mov_b32 {v(dst+e)}, {v(src+e)}")
            A(f"v_mov_b32 {v(dst+2+e)}, {v(src+e)}")
        for e in range(2):
            A(f"v_permlane32_swap_b32 {v(dst+e)}, {v(dst+2+e)}")
    WS_ = t6
    WSEG = PR + 30
    cmul(t0, L128, L128); cmul(t2, t0, t0)
    A(f"v_mov_b32 {v(WG_)}, 1.0"); A(f"v_mov_b32 {v(WG_+1)}, 0")
    A(f"v_mov_b32 {v(WSEG)}, 1.0"); A(f"v_mov_b32 {v(WSEG+1)}, 0")
    for q in range(3):
        A(f"s_cmp_gt_u32 {s(sW)}, {q}")
        A("s_cselect_b64 exec, -1, 0")
        cmul(t0, WG_, t2); A(f"v_mov_b64 {v(WG_,2)}, {v(t0,2)}")
        cmul(t0, WSEG, L32); A(f"v_mov_b64 {v(WSEG,2)}, {v(t0,2)}")
    A("s_mov_b64 exec, -1")
    for q in range(1, 4): cmul(WG_ + 2 * q, WG_ + 2 * q - 2, L128)
    stamp(1)
    main_loop('ssm', [wo_ops(0, 0), wo_ops(1, 1)])
    stamp(2)
    tok_wo = A.vm
    U = TMP
    def upair(ct, k): return U + 32 * ct + 2 * k
    E0 = t0
    for k in range(16):
        for ct in range(2):
            re, im = ACC + 32 * ct + (k & ~1), ACC + 32 * ct + 16 + (k & ~1)
            b = k & 1
            A(f"v_pk_mul_f32 {v(upair(ct,k),2)}, {v(re,2)}, {v(KT+2*ct,2)} op_sel:[{b},0] op_sel_hi:[{b},1]")
            A(f"v_pk_fma_f32 {v(upair(ct,k),2)}, {v(im,2)}, {v(KT+2*ct,2)}, {v(upair(ct,k),2)} op_sel:[{b},1,0] op_sel_hi:[{b},0,1] neg_hi:[0,1,0]")
            if k == 0: continue
            src = upair(ct, 0) if k == 1 else (t0 + 2 * ct if k % 2 == 0 else t4 + 2 * ct)
            dst = t0 + 2 * ct if k % 2 == 1 else t4 + 2 * ct
            cmul(dst, src, LT + 2 * ct, upair(ct, k))
    A(f"v_permlane32_swap_b32 {v(t0)}, {v(t2)}")
    A(f"v_permlane32_swap_b32 {v(t1)}, {v(t3)}")
    EA = ACC
    A(f"v_mov_b64 {v(EA,2)}, {v(t0,2)}")
    cmul(t2, t0, L16, t2)
    A(f"v_lshlrev_b32 {v(AD)}, 3, {v(vL)}")
    A(f"s_lshl_b32 {s(sT0)}, {s(sW)}, 9")
    A(f"v_add_u32 {v(AD)}, {SCR}, {v(AD)}")
    A(f"v_add_u32 {v(AD+1)}, {s(sT0)}, {v(AD)}")
    A(f"ds_write_b64 {v(AD+1)}, {v(t2,2)}")
    A.wait_all(vm=False)
    A("s_barrier")
    EW = ACC + 2
    for q in range(4): tok = A(f"ds_read_b64 {v(EW+2*q,2)}, {v(AD)} offset:{q*512}")
    A.wait(lg=tok)
    PF = ACC + 10
    cmul(PF, EW, L32, EW + 2)
    cmul(PF + 2, PF, L32, EW + 4)
    cmul(PF + 4, PF + 2, L32, EW + 6)
    GR = ACC + 16
    A(f"v_mov_b32 {v(GR)}, {v(PF+4)}"); A(f"v_mov_b32 {v(GR+1)}, {v(vTAG)}")
    A(f"v_mov_b32 {v(GR+2)}, {v(PF+5)}"); A(f"v_mov_b32 {v(GR+3)}, {v(vTAG)}")
    A(f"s_lshl_b32 {s(sT2)}, {s(sJ)}, 4"); A(f"s_add_u32 {s(sT2)}, {s(sT2)}, {s(sC)}"); A(f"s_lshl_b32 {s(sT2)}, {s(sT2)}, 10")
    A(f"s_add_u32 {s(sT2)}, {s(sT2)}, {WS_AGG}")
    A(f"s_cmp_eq_u32 {s(sW)}, 0")
    A("s_cselect_b64 exec, -1, 0")
    A(f"buffer_store_dwordx4 {v(GR,4)}, {v(vL16)}, {s(R_WS,4)}, {s(sT2)} offen sc1")
    A("s_mov_b64 exec, -1")
    stamp(3)
    run(c_ops(2)); run(c_ops(3))
    PW = ACC + 20
    A(f"v_mov_b32 {v(PW)}, 0"); A(f"v_mov_b32 {v(PW+1)}, 0")
    for q, src in ((1, EW), (2, PF), (3, PF + 2)):
        A(f"s_cmp_eq_u32 {s(sW)}, {q}")
        A("s_cselect_b64 exec, -1, 0")
        A(f"v_mov_b64 {v(PW,2)}, {v(src,2)}")
    A("s_mov_b64 exec, -1")
    A(f"s_and_b32 {s(sT0)}, {s(sJ)}, 3")
    A(f"s_cmp_eq_u32 {s(sT0)}, 0")
    A("s_cbranch_scc0 L_nogate")
    snapg = A.snapshot()
    GD = ACC + 32
    A(f"global_load_dwordx4 {v(GD,4)}, {v(vL16)}, {s(P_GW,2)}")
    A(f"s_lshl_b32 {s(sT0)}, {s(sW)}, 11")
    A(f"s_add_u32 {s(sT0)}, {s(sT0)}, {SCR+4096}")
    A(f"v_add_u32 {v(AD+2)}, {s(sT0)}, {v(vL16)}")
    A(f"s_lshl_b32 {s(sT1)}, {s(sK0)}, 7"); A(f"s_add_u32 {s(sT0)}, {s(sT0)}, {s(sT1)}")
    A(f"v_lshrrev_b32 {v(AD+3)}, 5, {v(vL)}")
    A(f"v_lshl_add_u32 {v(AD+3)}, {v(AD+3)}, 4, {s(sT0)}")
    A.wait_all(vm=True, lg=False)
    A(f"ds_write_b128 {v(AD+2)}, {v(GD,4)}")
    A(f"ds_write_b128 {v(AD+2)}, {v(GD,4)} offset:1024")
    A.wait_all(vm=False)
    toks = []
    for st in range(8): toks.append(A(f"ds_read_b128 {v(BUF+4*st,4)}, {v(AD+3)} offset:{st*32}"))
    for st in range(32):
        A.wait(lg=toks[st])
        A(f"v_mfma_f32_32x32x16_bf16 {v(GD,16)}, {v(BUF+4*(st%8),4)}, {a(4*st,4)}, {'0' if st == 0 else v(GD,16)}")
        if st + 8 < 32: toks.append(A(f"ds_read_b128 {v(BUF+4*(st%8),4)}, {v(AD+3)} offset:{(st+8)*32}"))
    A(f"v_bfe_u32 {v(t0)}, {v(vL)}, 2, 1"); A(f"v_bfe_u32 {v(t1)}, {v(vL)}, 3, 2"); A(f"v_and_b32 {v(t2)}, 3, {v(vL)}")
    A(f"v_lshlrev_b32 {v(t2)}, 2, {v(t2)}")
    A(f"v_lshl_add_u32 {v(t2)}, {v(t1)}, 4, {v(t2)}")
    A(f"v_lshl_add_u32 {v(t2)}, {v(t0)}, 6, {v(t2)}")
    A(f"s_lshl_b32 {s(sT0)}, {s(sJ)}, 11"); A(f"s_lshl_b32 {s(sT1)}, {s(sTT)}, 7"); A(f"s_add_u32 {s(sT0)}, {s(sT0)}, {s(sT1)}")
    A(f"s_add_u32 {s(sT0)}, {s(sT0)}, {WS_G}")
    A(f"v_mul_f32 {v(t0)}, 0xbfb8aa3b, {v(GD)}")
    A(f"v_exp_f32 {v(t0)}, {v(t0)}")
    A(f"v_add_f32 {v(t0)}, 1.0, {v(t0)}")
    A(f"v_rcp_f32 {v(t0)}, {v(t0)}")
    A("s_mov_b64 exec, 0xffffffff")
    A("s_nop 0")
    A(f"buffer_store_dword {v(t0)}, {v(t2)}, {s(R_WS,4)}, {s(sT0)} offen sc1")
    A("s_mov_b64 exec, -1")
    A.label("L_nogate")
    A.restore(snapg)
    A("s_nop 7"); A("s_nop 3")
    A.wait_all(vm=True, lg=True, force=True)
    A("s_barrier")
    pre, L = wo_to_regs(0)
    run(pre); run(L)
    LB = ACC + 32
    so = [sT0, sT1, sT3, sCH]
    for q in range(4):
        A(f"s_lshl_b32 {s(so[q])}, {s(sW)}, 2"); A(f"s_add_u32 {s(so[q])}, {s(so[q])}, {q+1}")
        A(f"s_cmp_le_u32 {s(so[q])}, {s(sC)}")
        A(f"s_cselect_b32 {s(so[q])}, {s(so[q])}, 0")
        A(f"s_lshl_b32 {s(so[q])}, {s(so[q])}, 10")
        A(f"s_sub_u32 {s(so[q])}, {s(sT2)}, {s(so[q])}")
    def ld():
        for q in range(4): A(f"buffer_load_dwordx4 {v(LB+4*q,4)}, {v(vL16)}, {s(R_WS,4)}, {s(so[q])} offen sc1")
    def ck():
        A(f"v_xor_b32 {v(t0)}, {v(LB+1)}, {v(vTAG)}")
        for r in (3, 5, 7, 9, 11, 13, 15):
            A(f"v_bitop3_b32 {v(t0)}, {v(t0)}, {v(LB+r)}, {v(vTAG)} bitop3:0xf6")
        A(f"v_cmp_ne_u32 vcc, 0, {v(t0)}")
    spin("L_pagg", ld, ck)
    stamp(4)
    A(f"v_mov_b32 {v(t0)}, 0"); A(f"v_mov_b32 {v(t1)}, 0")
    for q in range(4):
        A(f"s_cmp_lg_u32 {s(so[q])}, {s(sT2)}")
        A("s_cselect_b64 exec, -1, 0")
        A(f"v_pk_fma_f32 {v(t0,2)}, {v(LB+4*q,2)}, {v(WG_+2*q,2)}, {v(t0,2)} op_sel_hi:[0,1,1]")
        A(f"v_pk_fma_f32 {v(t0,2)}, {v(LB+4*q+2,2)}, {v(WG_+2*q,2)}, {v(t0,2)} op_sel:[0,1,0] op_sel_hi:[0,0,1] neg_lo:[0,1,0]")
    A("s_mov_b64 exec, -1")
    A(f"ds_write_b64 {v(AD+1)}, {v(t0,2)} offset:2048")
    A.wait_all(vm=False)
    A("s_barrier")
    for q in range(4): tok = A(f"ds_read_b64 {v(EW+2*q,2)}, {v(AD)} offset:{2048+q*512}")
    A(f"v_and_b32 {v(t4)}, 31, {v(vL)}")
    A(f"v_lshrrev_b32 {v(t5)}, 5, {v(vL)}")
    A(f"v_bfe_u32 {v(t6)}, {v(vL)}, 1, 2")
    A(f"v_lshlrev_b32 {v(t7)}, 1, {v(t5)}")
    A(f"v_xor_b32 {v(t6)}, {v(t6)}, {v(t7)}")
    A(f"v_lshlrev_b32 {v(t6)}, 4, {v(t6)}")
    A(f"v_lshl_add_u32 {v(t6)}, {v(t4)}, 6, {v(t6)}")
    A(f"v_add_u32 {v(AD+2)}, {s(sM8)}, {v(t6)}")
    A(f"v_xor_b32 {v(AD+3)}, 16, {v(AD+2)}")
    A(f"v_bfe_u32 {v(t4)}, {v(vL)}, 2, 2")
    A(f"v_lshl_add_u32 {v(t4)}, {v(t5)}, 3, {v(t4)}")
    A(f"v_bfe_u32 {v(t6)}, {v(vL)}, 4, 1"); A(f"v_bfe_u32 {v(t7)}, {v(vL)}, 1, 1")
    A(f"v_lshl_add_u32 {v(t6)}, {v(t6)}, 1, {v(t7)}")
    A(f"v_bfe_u32 {v(t7)}, {v(vL)}, 3, 1")
    A(f"v_xor_b32 {v(t6)}, {v(t6)}, {v(t7)}")
    A(f"v_lshlrev_b32 {v(t6)}, 4, {v(t6)}")
    A(f"v_lshl_add_u32 {v(t6)}, {v(t4)}, 6, {v(t6)}")
    A(f"v_and_b32 {v(t7)}, 1, {v(vL)}")
    A(f"v_lshl_add_u32 {v(t6)}, {v(t7)}, 3, {v(t6)}")
    A(f"v_add_u32 {v(AD+4)}, {s(sM8)}, {v(t6)}")
    A(f"v_xor_b32 {v(AD+5)}, 32, {v(AD+4)}")
    A.wait(lg=tok)
    A(f"v_pk_add_f32 {v(EW,2)}, {v(EW,2)}, {v(EW+2,2)}")
    A(f"v_pk_add_f32 {v(EW+4,2)}, {v(EW+4,2)}, {v(EW+6,2)}")
    A(f"v_pk_add_f32 {v(EW,2)}, {v(EW,2)}, {v(EW+4,2)}")
    cmul(t0, EW, WSEG, PW)
    cmul(t2, t0, L16, EA)
    A(f"v_permlane32_swap_b32 {v(t0)}, {v(t2)}")
    A(f"v_permlane32_swap_b32 {v(t1)}, {v(t3)}")
    HP = ACC + 32
    for k in range(16):
        for ct in range(2):
            src = t0 + 2 * ct if k == 0 else upair(ct, k - 1)
            cmul(upair(ct, k), src, LT + 2 * ct, upair(ct, k))
        if k & 1:
            for ct in range(2):
                for cp in range(2):
                    A(f"v_cvt_pk_bf16_f32 {v(HP+8*(2*ct+cp)+k//2)}, {v(upair(ct,k-1)+cp)}, {v(upair(ct,k)+cp)}")
        if k in (7, 15):
            for m in range(4):
                A(f"ds_write_b128 {v(AD+2+k//8)}, {v(HP+8*m+4*(k//8),4)} offset:{m*2048}")
    A.wait_all(vm=False)
    HT = TMP
    toks = []
    for f in range(8):
        A(f"ds_read_b64_tr_b16 {v(HT+4*f,2)}, {v(AD+4)} offset:{f*1024}")
        toks.append(A(f"ds_read_b64_tr_b16 {v(HT+4*f+2,2)}, {v(AD+5)} offset:{f*1024+256}"))
    A(f"s_mul_i32 {s(sT0)}, {s(sTT)}, 98304"); A(f"s_lshl_b32 {s(sT1)}, {s(sJ)}, 13"); A(f"s_add_u32 {s(sT0)}, {s(sT0)}, {s(sT1)}")
    A(f"s_add_u32 {s(sT0)}, {s(sT0)}, {WS_ACT}"); A(f"s_add_u32 {s(sT1)}, {s(sT0)}, 4096")
    for f in range(8):
        A.wait(lg=toks[f])
        A(f"buffer_store_dwordx4 {v(HT+4*f,4)}, {v(vL16)}, {s(R_WS,4)}, {s(sT0 if f < 4 else sT1)} offen offset:{(f%4)*1024} sc1")
    A(f"s_lshl_b32 {s(sT0)}, {s(sTT)}, 9"); A(f"s_lshr_b32 {s(sT1)}, {s(sJ)}, 2"); A(f"s_lshl_b32 {s(sT1)}, {s(sT1)}, 8")
    A(f"s_add_u32 {s(sT0)}, {s(sT0)}, {s(sT1)}"); A(f"s_and_b32 {s(sT1)}, {s(sJ)}, 3"); A(f"s_lshl_b32 {s(sT1)}, {s(sT1)}, 2")
    A(f"s_add_u32 {s(sT0)}, {s(sT0)}, {s(sT1)}"); A(f"s_add_u32 {s(sT0)}, {s(sT0)}, {WS_HF}")
    stamp(5)
    A.wait_all(vm=True, lg=True)
    A("s_mov_b64 exec, 1")
    A(f"buffer_store_dword {v(vTAG)}, {v(vZ)}, {s(R_WS,4)}, {s(sT0)} offen sc1")
    A("s_mov_b64 exec, -1")
    stamp(6)
    A("s_barrier")
    run(c_ops(0)); run(c_ops(1))
    A("s_branch L_phase2")

    A.restore(snap0)
    A.label("L_attn")
    A(f"s_mov_b32 {s(sWST)}, {64*3072}")
    A(f"s_and_b32 {s(sT0)}, {s(sW)}, 1"); A(f"s_mul_i32 {s(sT0)}, {s(sT0)}, {32*3072}")
    A(f"s_lshr_b32 {s(sT1)}, {s(sW)}, 1"); A(f"s_lshl_b32 {s(sT1)}, {s(sT1)}, 10"); A(f"s_add_u32 {s(sT0)}, {s(sT0)}, {s(sT1)}")
    A(f"s_lshl_b32 {s(sT1)}, {s(sJ)}, 7"); A(f"s_add_u32 {s(sT0)}, {s(sT0)}, {s(sT1)}"); A(f"s_add_u32 {s(sWB)}, {s(sT0)}, 1024")
    A(f"s_mov_b32 {s(R_W+2)}, 0x180000")
    common_srds()
    A(f"s_mov_b64 {s(R_W,2)}, {s(P_QKV,2)}")
    tokE = A(f"global_load_dword {v(vE)}, {v(vZ)}, {s(P_WS,2)} sc1")
    utok = []
    run(unit_ops(0)); utok.append(A.vm)
    run(unit_ops(1)); utok.append(A.vm)
    late_srds()
    read_addr_regs()
    A(f"s_mov_b32 {s(sL2E)}, 0x3fb8aa3b"); A(f"s_mov_b32 {s(sL2E+1)}, 0x3fb8aa3b")
    A(f"s_mov_b32 {s(sL2E+4)}, 0x358637bd"); A(f"s_mov_b32 {s(sL2E+5)}, 0x358637bd")
    NL = AD + 10
    A(f"v_mov_b32 {v(NL)}, 0xbfb8aa3b"); A(f"v_mov_b32 {v(NL+1)}, 0xbfb8aa3b")
    ONES = TMP + 48
    for q in range(4): A(f"v_mov_b32 {v(ONES+q)}, 0x3f803f80")
    get_tag(tokE)
    stamp(1)
    main_loop('attn', [wq_ops(0), wq_ops(1)])
    stamp(2)
    tok_wq = A.vm
    def phi(src, dst):
        for k in range(0, 16, 2):
            tt = t0 + 2 * ((k // 2) % 4)
            A(f"v_pk_fma_f32 {v(tt,2)}, {v(src+k,2)}, {s(sL2E,2)}, {v(NL,2)}")
            A(f"v_exp_f32 {v(tt)}, {v(tt)} clamp")
            A(f"v_exp_f32 {v(tt+1)}, {v(tt+1)} clamp")
            if k >= 2:
                pp = t0 + 2 * ((k // 2 - 1) % 4)
                fin(src + k - 2, pp, dst + k // 2 - 1)
        fin(src + 14, t0 + 2 * (7 % 4), dst + 7)
    def fin(sr, pp, d):
        A(f"v_max_f32 {v(pp)}, {v(pp)}, {v(sr)}")
        A(f"v_max_f32 {v(pp+1)}, {v(pp+1)}, {v(sr+1)}")
        A(f"v_pk_add_f32 {v(pp,2)}, {v(pp,2)}, {s(sL2E+4,2)}")
        A(f"v_cvt_pk_bf16_f32 {v(d)}, {v(pp)}, {v(pp+1)}")
    PK, PV = TMP, TMP + 16
    for tl in range(2):
        phi(ACC + 16 * tl, PK + 8 * tl)
        for k in range(8): A(f"v_cvt_pk_bf16_f32 {v(PV+8*tl+k)}, {v(ACC+32+16*tl+2*k)}, {v(ACC+32+16*tl+2*k+1)}")
        for f in range(2):
            A(f"v_mfma_f32_32x32x16_bf16 {v(ACC+16*tl,16)}, {v(PK+8*tl+4*f,4)}, {v(PV+8*tl+4*f,4)}, {'0' if f == 0 else v(ACC+16*tl,16)}")
        for f in range(2):
            A(f"v_mfma_f32_32x32x16_bf16 {v(ACC+32+16*tl,16)}, {v(ONES,4)}, {v(PK+8*tl+4*f,4)}, {'0' if f == 0 else v(ACC+32+16*tl,16)}")
    A(f"s_lshl_b32 {s(sT0)}, {s(sW)}, 10"); A(f"s_add_u32 {s(sT0)}, {s(sT0)}, {SCR}")
    A(f"v_add_u32 {v(AD)}, {s(sT0)}, {v(vL16)}")
    A(f"s_add_u32 {s(sT0)}, {s(sMX)}, {SCR}")
    A(f"v_add_u32 {v(AD+1)}, {s(sT0)}, {v(vL16)}")
    A(f"s_lshl_b32 {s(sT0)}, {s(sW)}, 8"); A(f"s_add_u32 {s(sT0)}, {s(sT0)}, {SCR+16384}")
    A(f"v_lshl_add_u32 {v(AD+2)}, {v(vL)}, 2, {s(sT0)}")
    A(f"s_lshl_b32 {s(sT0)}, {s(sW)}, 6"); A(f"s_add_u32 {s(sT0)}, {s(sT0)}, {SCR+16384}")
    A(f"v_and_b32 {v(t0)}, 15, {v(vL)}")
    A(f"v_lshl_add_u32 {v(AD+3)}, {v(t0)}, 2, {s(sT0)}")
    A("s_mov_b32 exec_lo, 0xffff0000"); A("s_mov_b32 exec_hi, 0xffff0000")
    for tl in range(2):
        for q in range(4): A(f"v_mov_b64 {v(ACC+16*tl+2*q,2)}, {v(ACC+16*tl+8+2*q,2)}")
    A("s_mov_b32 exec_lo, 0"); A("s_mov_b32 exec_hi, -1")
    A(f"v_mov_b32 {v(ACC+32)}, {v(ACC+48)}")
    A("s_mov_b64 exec, -1")
    for qt in range(4):
        A(f"ds_write_b128 {v(AD)}, {v(ACC+16*(qt>>1)+4*(qt&1),4)} offset:{qt*4096}")
    A(f"ds_write_b32 {v(AD+2)}, {v(ACC+32)}")
    A.wait(vm=tok_wq)
    A.wait_all(vm=False)
    A("s_barrier")
    for q in range(4): tk = A(f"ds_read_b128 {v(ACC+4*q,4)}, {v(AD+1)} offset:{q*1024}")
    for q in range(4): tz = A(f"ds_read_b32 {v(ACC+16+q)}, {v(AD+3)} offset:{q*256}")
    A(f"s_lshl_b32 {s(sT2)}, {s(sJ)}, 2"); A(f"s_add_u32 {s(sT2)}, {s(sT2)}, {s(sW)}")
    A(f"s_lshl_b32 {s(sT3)}, {s(sT2)}, 4"); A(f"s_add_u32 {s(sT3)}, {s(sT3)}, {s(sC)}")
    A(f"s_lshl_b32 {s(sT0)}, {s(sT3)}, 10"); A(f"s_add_u32 {s(sT0)}, {s(sT0)}, {WS_KVP}")
    A(f"s_lshl_b32 {s(sT1)}, {s(sT3)}, 6"); A(f"s_add_u32 {s(sT1)}, {s(sT1)}, {WS_ZP}")
    A(f"v_lshlrev_b32 {v(AD+4)}, 2, {v(vL)}")
    A.wait(lg=tk)
    for e in (0, 2):
        A(f"v_pk_add_f32 {v(ACC+e,2)}, {v(ACC+e,2)}, {v(ACC+4+e,2)}")
        A(f"v_pk_add_f32 {v(ACC+8+e,2)}, {v(ACC+8+e,2)}, {v(ACC+12+e,2)}")
        A(f"v_pk_add_f32 {v(ACC+e,2)}, {v(ACC+e,2)}, {v(ACC+8+e,2)}")
    A(f"buffer_store_dwordx4 {v(ACC,4)}, {v(vL16)}, {s(R_WS,4)}, {s(sT0)} offen sc1")
    A.wait(lg=tz)
    A(f"v_pk_add_f32 {v(ACC+16,2)}, {v(ACC+16,2)}, {v(ACC+18,2)}")
    A(f"v_add_f32 {v(ACC+16)}, {v(ACC+16)}, {v(ACC+17)}")
    A("s_mov_b64 exec, 0xffff")
    tok_pub = A(f"buffer_store_dword {v(ACC+16)}, {v(AD+4)}, {s(R_WS,4)}, {s(sT1)} offen sc1")
    A("s_mov_b64 exec, -1")
    stamp(3)
    QA = TM2
    extra = wo_ops(0, 2) + wo_ops(1, 3)
    def qreads(ks):
        b = BUF + 8 * (ks % 4)
        L = []
        for tl in range(2):
            base = (ks // 4) * 8192 + (ks % 4) * 2048
            L.append(f"ds_read_b64_tr_b16 {v(b+4*tl,2)}, {v(RT+tl)} offset:{base}")
            L.append(f"ds_read_b64_tr_b16 {v(b+4*tl+2,2)}, {v(RT+tl)} offset:{base+512}")
        return L
    toks = [run(qreads(0)), run(qreads(1))]
    for ks in range(32):
        A.wait(lg=toks[ks])
        rd = qreads(ks + 2) if ks + 2 < 32 else []
        b = BUF + 8 * (ks % 4)
        tok = None
        for tl in range(2):
            A(f"v_mfma_f32_32x32x16_bf16 {v(QA+16*tl,16)}, {v(b+4*tl,4)}, {a(4*ks,4)}, {'1.0' if ks == 0 else v(QA+16*tl,16)}")
            for r in rd[2*tl:2*tl+2]: tok = A(r)
            if extra: A(extra.pop(0))
        toks.append(tok)
        if ks == 15:
            A(f"s_lshl_b32 {s(sCH)}, {s(sT2)}, 8"); A(f"s_lshl_b32 {s(sT3)}, {s(sC)}, 2"); A(f"s_add_u32 {s(sCH)}, {s(sCH)}, {WS_KVF}")
            A(f"s_add_u32 {s(sT3)}, {s(sT3)}, {s(sCH)}")
            A.wait(vm=tok_pub)
            A("s_mov_b64 exec, 1")
            A(f"buffer_store_dword {v(vTAG)}, {v(vZ)}, {s(R_WS,4)}, {s(sT3)} offen sc1")
            A("s_mov_b64 exec, -1")
    assert not extra
    PQ = TMP
    for tl in range(2): phi(QA + 16 * tl, PQ + 8 * tl)
    A.wait_all(vm=True, lg=True)
    A("s_barrier")
    run(c_ops(0)); run(c_ops(1))
    pre, L = wo_to_regs(2)
    run(pre); run(L)
    stamp(4)
    A(f"v_and_b32 {v(t4)}, 60, {v(AD+4)}")
    def ld(): A(f"buffer_load_dword {v(t0)}, {v(t4)}, {s(R_WS,4)}, {s(sCH)} offen sc1")
    def ck(): A(f"v_cmp_ne_u32 vcc, {v(t0)}, {v(vTAG)}")
    spin("L_pkv", ld, ck)
    stamp(5)
    A(f"s_lshl_b32 {s(sT0)}, {s(sT2)}, 14"); A(f"s_add_u32 {s(sT0)}, {s(sT0)}, {WS_KVP}")
    A(f"s_lshl_b32 {s(sT1)}, {s(sT2)}, 10"); A(f"s_add_u32 {s(sT1)}, {s(sT1)}, {WS_ZP}")
    for q in range(4): tz = A(f"buffer_load_dword {v(t0+q)}, {v(AD+4)}, {s(R_WS,4)}, {s(sT1)} offen offset:{q*256} sc1")
    toks = []
    for q in range(16):
        toks.append(A(f"buffer_load_dwordx4 {v(ACC+4*q,4)}, {v(vL16)}, {s(R_WS,4)}, {s(sT0)} offen offset:{(q%4)*1024} sc1"))
        if q % 4 == 3 and q < 15: A(f"s_add_u32 {s(sT0)}, {s(sT0)}, 4096")
    KVS, ZS = SCR + 20480, SCR + 22528
    A(f"s_lshr_b32 {s(sT0)}, {s(sW)}, 1"); A(f"s_lshl_b32 {s(sT0)}, {s(sT0)}, 10")
    A(f"s_lshl_b32 {s(sT1)}, {s(sKH)}, 3"); A(f"s_add_u32 {s(sT1)}, {s(sT1)}, {s(sT0)}"); A(f"s_add_u32 {s(sT1)}, {s(sT1)}, {KVS}")
    A(f"v_add_u32 {v(AD)}, {s(sT1)}, {v(vL16)}")
    A(f"s_lshl_b32 {s(sT1)}, {s(sKH)}, 5"); A(f"s_add_u32 {s(sT1)}, {s(sT1)}, {s(sT0)}"); A(f"s_add_u32 {s(sT1)}, {s(sT1)}, {ZS}")
    A(f"v_bfe_u32 {v(t4)}, {v(vL)}, 2, 1"); A(f"v_bfe_u32 {v(t5)}, {v(vL)}, 3, 1"); A(f"v_and_b32 {v(t6)}, 3, {v(vL)}")
    A(f"v_lshl_add_u32 {v(t6)}, {v(t6)}, 1, {s(sT1)}")
    A(f"v_lshl_add_u32 {v(t6)}, {v(t5)}, 3, {v(t6)}")
    A(f"v_lshl_add_u32 {v(AD+1)}, {v(t4)}, 4, {v(t6)}")
    A(f"v_add_u32 {v(AD+2)}, {KVS}, {v(vL16)}")
    A(f"v_mov_b32 {v(AD+3)}, {v(AD+2)}")
    A(f"v_lshrrev_b32 {v(t4)}, 5, {v(vL)}")
    A(f"v_lshlrev_b32 {v(t4)}, 4, {v(t4)}")
    A("s_mov_b32 exec_lo, 0xffff0000"); A("s_mov_b32 exec_hi, 0xffff0000")
    A(f"v_add_u32 {v(AD+2)}, {ZS}, {v(t4)}")
    A("s_mov_b32 exec_lo, 0x0000ffff"); A("s_mov_b32 exec_hi, 0x0000ffff")
    A(f"v_add_u32 {v(AD+3)}, {ZS+32}, {v(t4)}")
    A("s_mov_b64 exec, -1")
    A(f"v_bfe_u32 {v(t4)}, {v(vL)}, 2, 1"); A(f"v_bfe_u32 {v(t5)}, {v(vL)}, 3, 2"); A(f"v_and_b32 {v(t6)}, 35, {v(vL)}")
    A(f"v_lshl_add_u32 {v(t6)}, {v(t5)}, 2, {v(t6)}")
    A(f"v_lshl_add_u32 {v(t6)}, {v(t4)}, 4, {v(t6)}")
    A(f"v_lshlrev_b32 {v(AD+5)}, 4, {v(t6)}")
    A.wait(vm=tz)
    A(f"v_pk_add_f32 {v(t0,2)}, {v(t0,2)}, {v(t2,2)}")
    A(f"v_add_f32 {v(t0)}, {v(t0)}, {v(t1)}")
    A(f"v_mov_b32 {v(t1)}, {v(t0)}")
    A(f"v_permlane32_swap_b32 {v(t0)}, {v(t1)}")
    A(f"v_add_f32 {v(t0)}, {v(t0)}, {v(t1)}")
    A(f"v_mov_b32 {v(t1)}, {v(t0)}")
    A(f"v_permlane16_swap_b32 {v(t0)}, {v(t1)}")
    A(f"v_add_f32 {v(t0)}, {v(t0)}, {v(t1)}")
    A(f"v_cvt_pk_bf16_f32 {v(t0)}, {v(t0)}, {v(t0)}")
    A(f"ds_write_b16 {v(AD+1)}, {v(t0)}")
    for q in range(1, 16):
        A.wait(vm=toks[q])
        for e in (0, 2): A(f"v_pk_add_f32 {v(ACC+e,2)}, {v(ACC+e,2)}, {v(ACC+4*q+e,2)}")
    A(f"v_cvt_pk_bf16_f32 {v(t2)}, {v(ACC)}, {v(ACC+1)}")
    A(f"v_cvt_pk_bf16_f32 {v(t3)}, {v(ACC+2)}, {v(ACC+3)}")
    A(f"ds_write_b64 {v(AD)}, {v(t2,2)}")
    A.wait_all(vm=False)
    A("s_barrier")
    AF = TMP + 16
    toks = []
    for hd4 in range(4): toks.append(A(f"ds_read_b128 {v(AF+4*hd4,4)}, {v(AD+2+(hd4&1))} offset:{(hd4>>1)*1024}"))
    for hd4 in range(4):
        A.wait(lg=toks[hd4])
        A(f"v_mfma_f32_32x32x16_bf16 {v(ACC+16*hd4,16)}, {v(AF+4*hd4,4)}, {v(PQ+4*hd4,4)}, 0")
    A(f"s_mul_i32 {s(sT0)}, {s(sTT)}, 98304"); A(f"s_lshl_b32 {s(sT1)}, {s(sJ)}, 12"); A(f"s_add_u32 {s(sT0)}, {s(sT0)}, {s(sT1)}")
    A(f"s_add_u32 {s(sT0)}, {s(sT0)}, {WS_ACT+65536}")
    OP = TMP + 32
    for hd4 in range(4):
        hd = hd4 & 1
        nb_, db_ = ACC + 16 * hd4 + 8 * hd, ACC + 16 * hd4 + 8 * (1 - hd)
        A(f"v_add_f32 {v(db_)}, {s(sL2E+4)}, {v(db_)}")
        A(f"v_rcp_f32 {v(db_)}, {v(db_)}")
        for e in range(0, 8, 2): A(f"v_pk_mul_f32 {v(nb_+e,2)}, {v(nb_+e,2)}, {v(db_,2)} op_sel_hi:[1,0]")
        for e in range(0, 8, 2): A(f"v_cvt_pk_bf16_f32 {v(OP+4*hd4+e//2)}, {v(nb_+e)}, {v(nb_+e+1)}")
        tok_o = A(f"buffer_store_dwordx4 {v(OP+4*hd4,4)}, {v(AD+5)}, {s(R_WS,4)}, {s(sT0)} offen offset:{hd4*1024} sc1")
    A(f"s_lshl_b32 {s(sT2)}, {s(sTT)}, 9"); A(f"s_lshr_b32 {s(sT3)}, {s(sJ)}, 2"); A(f"s_lshl_b32 {s(sT3)}, {s(sT3)}, 8")
    A(f"s_add_u32 {s(sT2)}, {s(sT2)}, {s(sT3)}"); A(f"s_and_b32 {s(sT3)}, {s(sJ)}, 3"); A(f"s_lshl_b32 {s(sT3)}, {s(sT3)}, 2")
    A(f"s_add_u32 {s(sT2)}, {s(sT2)}, {s(sT3)}"); A(f"s_add_u32 {s(sT2)}, {s(sT2)}, {WS_OF}")
    run(c_ops(2)); run(c_ops(3))
    A.wait(vm=tok_o)
    A("s_mov_b64 exec, 1")
    A(f"buffer_store_dword {v(vTAG)}, {v(vZ)}, {s(R_WS,4)}, {s(sT2)} offen sc1")
    A("s_mov_b64 exec, -1")
    stamp(6)

    A.label("L_phase2")
    A.hist = []
    A("s_nop 1")
    sTT2 = sTT
    A(f"s_lshr_b32 {s(sT0)}, {s(sW)}, 1"); A(f"s_lshl_b32 {s(sTT2)}, {s(sRB)}, 1"); A(f"s_add_u32 {s(sTT2)}, {s(sTT2)}, {s(sT0)}")
    A(f"s_lshl_b32 {s(sT0)}, {s(sNB)}, 1"); A(f"s_add_u32 {s(sT0)}, {s(sT0)}, {s(sKH)}"); A(f"s_lshl_b32 {s(sT0)}, {s(sT0)}, 5")
    A(f"v_and_b32 {v(t0)}, 31, {v(vL)}")
    A(f"v_add_u32 {v(t0)}, {s(sT0)}, {v(t0)}")
    A(f"v_lshrrev_b32 {v(t1)}, 5, {v(vL)}")
    A(f"v_lshlrev_b32 {v(t2)}, 1, {v(t0)}")
    A(f"v_lshl_add_u32 {v(AD)}, {v(t1)}, 12, {v(t2)}")
    A(f"v_lshlrev_b32 {v(t3)}, 2, {v(t0)}")
    A(f"v_lshl_add_u32 {v(AD+1)}, {v(t1)}, 13, {v(t3)}")
    A(f"v_lshlrev_b32 {v(AD+2)}, 4, {v(t1)}")
    A(f"global_load_ushort {v(t4)}, {v(t2)}, {s(P_DSK,2)}")
    A(f"s_lshl_b32 {s(sT0)}, {s(sTT2)}, 15")
    for j in range(4):
        for i in range(4):
            tx = A(f"buffer_load_ushort {v(ACC+4*j+i)}, {v(AD)}, {s(R_X,4)}, {s(sT0)} offen offset:{i*1024}")
        if j < 3: A(f"s_add_u32 {s(sT0)}, {s(sT0)}, 8192")
    A(f"s_mul_i32 {s(sT0)}, {s(sKH)}, {65536+4096}")
    A(f"s_mul_i32 {s(sT1)}, {s(sKH)}, {65536-4096}"); A(f"s_add_u32 {s(sT1)}, {s(sT1)}, 4096")
    for q in range(4):
        A(f"v_add_u32 {v(RA+q)}, {s(sT0)}, {v(RN+q)}")
        A(f"v_add_u32 {v(RB+q)}, {s(sT1)}, {v(RN+q)}")
    A(f"s_lshl_b32 {s(sT2)}, {s(sTT2)}, 1"); A(f"s_add_u32 {s(sT2)}, {s(sT2)}, {s(sKH)}"); A(f"s_lshl_b32 {s(sT2)}, {s(sT2)}, 8")
    A(f"s_add_u32 {s(sT3)}, {s(sT2)}, {WS_HF}")
    A(f"v_and_b32 {v(AD+3)}, 3, {v(vL)}"); A(f"v_lshlrev_b32 {v(AD+3)}, 2, {v(AD+3)}")
    A.wait_all(vm=True, lg=True, force=True)
    A("s_barrier")
    A(f"v_lshlrev_b32 {v(t4)}, 16, {v(t4)}")
    for k in range(16): A(f"v_lshlrev_b32 {v(ACC+k)}, 16, {v(ACC+k)}")
    for k in range(0, 16, 2): A(f"v_pk_mul_f32 {v(ACC+k,2)}, {v(ACC+k,2)}, {v(t4,2)} op_sel_hi:[1,0]")
    def creads(ks):
        jb, m, st = ks >> 3, (ks >> 1) & 3, ks & 1
        ct, cp = m >> 1, m & 1
        b = BUF + 8 * (ks % 4)
        off = jb * 16384 + cp * 8192
        return [f"ds_read_b128 {v(b,4)}, {v(RA+2*ct+st)} offset:{off}", f"ds_read_b128 {v(b+4,4)}, {v(RB+2*ct+st)} offset:{off}"]
    ctok = [run(creads(k)) for k in range(3)]
    stamp(7)
    def ld(): A(f"buffer_load_dword {v(t0)}, {v(AD+3)}, {s(R_WS,4)}, {s(sT3)} offen sc1")
    def ck(): A(f"v_cmp_ne_u32 vcc, {v(t0)}, {v(vTAG)}")
    spin("L_ph", ld, ck)
    stamp(8)
    A(f"s_mul_i32 {s(sXB)}, {s(sTT2)}, 98304"); A(f"s_add_u32 {s(sXB)}, {s(sXB)}, {WS_ACT}")
    A(f"s_lshl_b32 {s(sT0)}, {s(sKH)}, 15"); A(f"s_add_u32 {s(sT0)}, {s(sT0)}, {s(sXB)}")
    def hload(ks):
        o = []
        if ks % 4 == 0 and ks: o.append(f"s_add_u32 {s(sT0)}, {s(sT0)}, 4096")
        o.append(f"buffer_load_dwordx4 {a(4*ks,4)}, {v(vL16)}, {s(R_WS,4)}, {s(sT0)} offen offset:{(ks%4)*1024} sc1")
        return o
    AHEAD = 14
    htok = [run(hload(k)) for k in range(AHEAD)]
    GG = TM2
    for ks in range(32):
        A.wait(vm=htok[ks], lg=ctok[ks])
        b = BUF + 8 * (ks % 4)
        A(f"v_mfma_f32_32x32x16_bf16 {v(ACC,16)}, {a(4*ks,4)}, {v(b,4)}, {v(ACC,16)}")
        if ks + AHEAD < 32: htok.append(run(hload(ks + AHEAD)))
        if ks + AHEAD == 32:
            A(f"s_lshl_b32 {s(sT0)}, {s(sKH)}, 13"); A(f"s_lshl_b32 {s(sT1)}, {s(sTT2)}, 7"); A(f"s_add_u32 {s(sT0)}, {s(sT0)}, {s(sT1)}")
            A(f"s_add_u32 {s(sT0)}, {s(sT0)}, {WS_G}")
            for j in range(4): tg = A(f"buffer_load_dwordx4 {v(GG+4*j,4)}, {v(AD+2)}, {s(R_WS,4)}, {s(sT0)} offen offset:{j*32} sc1")
        A(f"v_mfma_f32_32x32x16_bf16 {v(ACC+16,16)}, {a(4*ks,4)}, {v(b+4,4)}, {'0' if ks == 0 else v(ACC+16,16)}")
        if ks + 3 < 32: ctok.append(run(creads(ks + 3)))
    stamp(9)
    A(f"s_add_u32 {s(sT3)}, {s(sT2)}, {WS_OF}")
    spin("L_po", ld, ck)
    stamp(10)
    A(f"s_lshl_b32 {s(sT0)}, {s(sKH)}, 14"); A(f"s_add_u32 {s(sT0)}, {s(sT0)}, {s(sXB)}"); A(f"s_add_u32 {s(sT0)}, {s(sT0)}, 65536")
    otok = []
    for ks in range(16):
        if ks % 4 == 0 and ks: A(f"s_add_u32 {s(sT0)}, {s(sT0)}, 4096")
        otok.append(A(f"buffer_load_dwordx4 {v(TMP+4*ks,4)}, {v(vL16)}, {s(R_WS,4)}, {s(sT0)} offen offset:{(ks%4)*1024} sc1"))
    for tl in range(2):
        for k in range(0, 16, 2): A(f"v_pk_mul_f32 {v(ACC+16*tl+k,2)}, {v(ACC+16*tl+k,2)}, {v(GG+k,2)}")
    for k in range(0, 16, 2): A(f"v_pk_add_f32 {v(GG+k,2)}, {v(GG+k,2)}, 1.0 op_sel_hi:[1,0] neg_lo:[1,0] neg_hi:[1,0]")
    A(f"s_xor_b32 {s(sT0)}, {s(sMX)}, 4096"); A(f"s_add_u32 {s(sT0)}, {s(sT0)}, {SCR}")
    A(f"v_add_u32 {v(AD+4)}, {s(sT0)}, {v(vL16)}")
    A(f"v_xor_b32 {v(AD+5)}, 4096, {v(AD+4)}")
    for ks in range(16):
        A.wait(vm=otok[ks])
        for tl in (1, 0):
            A(f"v_mfma_f32_32x32x16_bf16 {v(ACC+32+16*tl,16)}, {v(TMP+4*ks,4)}, {a(128+8*ks+4*tl,4)}, {'0' if ks == 0 else v(ACC+32+16*tl,16)}")
    stamp(11)
    for k in range(0, 16, 2):
        A(f"v_pk_fma_f32 {v(ACC+16+k,2)}, {v(ACC+48+k,2)}, {v(GG+k,2)}, {v(ACC+16+k,2)}")
        if k % 4 == 2: A(f"ds_write_b128 {v(AD+4)}, {v(ACC+16+k-2,4)} offset:{(k//4)*1024}")
    for k in range(0, 16, 2): A(f"v_pk_fma_f32 {v(ACC+k,2)}, {v(ACC+32+k,2)}, {v(GG+k,2)}, {v(ACC+k,2)}")
    A(f"s_lshl_b32 {s(sT0)}, {s(sTT2)}, 16")
    A.wait_all(vm=False)
    A("s_barrier")
    toks = [A(f"ds_read_b128 {v(ACC+32+4*j,4)}, {v(AD+5)} offset:{j*1024}") for j in range(4)]
    for j in range(4):
        A.wait(lg=toks[j])
        for e in (0, 2): A(f"v_pk_add_f32 {v(ACC+4*j+e,2)}, {v(ACC+4*j+e,2)}, {v(ACC+32+4*j+e,2)}")
        A(f"s_add_u32 {s(sT1)}, {s(sT0)}, 4096")
        for i in range(4):
            A(f"buffer_store_dword {v(ACC+4*j+i)}, {v(AD+1)}, {s(R_OUT,4)}, {s(sT0 if i < 2 else sT1)} offen offset:{(i%2)*2048}")
        if j < 3: A(f"s_add_u32 {s(sT0)}, {s(sT0)}, 16384")
    A(f"s_lshl_b32 {s(sT0)}, {s(sNB)}, 2"); A(f"s_add_u32 {s(sT0)}, {s(sT0)}, {s(sW)}"); A(f"s_lshl_b32 {s(sT0)}, {s(sT0)}, 5"); A(f"s_add_u32 {s(sT0)}, {s(sT0)}, {s(sRB)}")
    A(f"s_cmp_eq_u32 {s(sT0)}, 31")
    A("s_cbranch_scc0 L_fin")
    A("s_mov_b64 exec, 1")
    A(f"buffer_store_dword {v(vTAG)}, {v(vZ)}, {s(R_WS,4)}, 0 offen sc1")
    A("s_mov_b64 exec, -1")
    A.label("L_fin")
    if stamps:
        A("s_waitcnt vmcnt(0)")
        stamp(12)
        A("s_waitcnt lgkmcnt(0)")
        A(f"s_lshl_b32 {s(sT0)}, {s(sWG)}, 2"); A(f"s_add_u32 {s(sT0)}, {s(sT0)}, {s(sW)}"); A(f"s_lshl_b32 {s(sT0)}, {s(sT0)}, 6")
        A(f"s_add_u32 {s(sT0)}, {s(sT0)}, {WS_STAMP}")
        for i in range(14):
            A(f"v_mov_b32 {v(t0)}, {s(SREG[i] if i < 13 else sTY)}")
            A(f"buffer_store_dword {v(t0)}, {v(vZ)}, {s(R_WS,4)}, {s(sT0)} offen offset:{4*i}")
    A.label("L_end")
    hdr = open(os.path.join(os.path.dirname(__file__), "header.txt")).read()
    src = hdr + f"; @launch grid=(256,1,1) block=(256,1,1) lds={LDS_BYTES}\n" + f""".amdgcn_target "amdgcn-amd-amdhsa--gfx950"
.text
.globl {KNAME}
.p2align 8
.type {KNAME},@function
{KNAME}:
{A.text()}
    s_endpgm
.section .rodata,"a"
.p2align 6
.amdhsa_kernel {KNAME}
  .amdhsa_next_free_vgpr 512
  .amdhsa_next_free_sgpr 102
  .amdhsa_accum_offset 256
  .amdhsa_group_segment_fixed_size 0
  .amdhsa_kernarg_size 128
  .amdhsa_user_sgpr_count 2
  .amdhsa_user_sgpr_kernarg_segment_ptr 1
  .amdhsa_system_sgpr_workgroup_id_x 1
.end_amdhsa_kernel
"""
    return src, A

if __name__ == "__main__":
    out = sys.argv[1]
    src, A = gen(stamps=len(sys.argv) > 2 and sys.argv[2] == 'stamps')
    open(out, "w").write(src)
    print("lines", len(A.out), "nops", A.nops)
```

```python
import sys, re
sys.path.insert(0, "tools")
import gen as G
K = G.KNAME
def make(src, out, i, j, mode, ty, mult):
    m = re.search(r"; @launch (grid=\S+ block=\S+ lds=\d+)\n", src)
    lines = f"; @launch kernel={K} {m.group(1)}\n; @launch kernel=diag_kernel grid=(1,1,1) block=(64,1,1) lds=0\n"
    src = src.replace(m.group(0), lines)
    L = []
    A = L.append
    A("s_cmp_lg_u32 s2, 0"); A("s_cbranch_scc1 D_end")
    A("s_load_dwordx2 s[4:5], s[0:1], 120"); A("s_waitcnt lgkmcnt(0)")
    A(f"s_add_u32 s4, s4, {G.WS_STAMP}"); A("s_addc_u32 s5, s5, 0")
    A("v_lshlrev_b32 v1, 10, v0")
    for q in range(16):
        A(f"global_load_dword v{10+q}, v1, s[4:5] offset:{q*64+4*i}")
        A(f"global_load_dword v{30+q}, v1, s[4:5] offset:{q*64+4*j}")
        A(f"global_load_dword v{50+q}, v1, s[4:5] offset:{q*64+4*13}")
    A("s_waitcnt vmcnt(0)")
    if mode == 'span':
        for q in range(1, 16):
            A(f"v_min_u32 v10, v10, v{10+q}"); A(f"v_max_u32 v30, v30, v{30+q}")
        A("s_nop 1"); A("v_readlane_b32 s6, v10, 0"); A("v_readlane_b32 s7, v30, 0")
        for l in range(1, 64):
            A(f"v_readlane_b32 s8, v10, {l}"); A(f"v_readlane_b32 s9, v30, {l}"); A("s_nop 1")
            A("s_min_u32 s6, s6, s8"); A("s_max_u32 s7, s7, s9")
        A("s_sub_u32 s6, s7, s6")
        A(f"s_mul_i32 s6, s6, {mult}")
    else:
        A("v_mov_b32 v2, 0")
        for q in range(16):
            A(f"v_sub_u32 v3, v{30+q}, v{10+q}")
            A(f"v_cmp_eq_u32 vcc, {ty}, v{50+q}"); A("s_nop 1")
            A("v_cndmask_b32 v3, 0, v3, vcc"); A("v_add_u32 v2, v2, v3")
        A("s_mov_b32 s6, 0"); A("s_nop 1")
        for l in range(64):
            A(f"v_readlane_b32 s8, v2, {l}"); A("s_nop 1"); A("s_add_u32 s6, s6, s8")
        A(f"s_mul_i32 s6, s6, {mult}"); A("s_lshr_b32 s6, s6, 9")
    A("s_min_u32 s6, s6, 100000")
    A("s_memrealtime s[10:11]"); A("s_waitcnt lgkmcnt(0)")
    A("D_spin:"); A("s_memrealtime s[12:13]"); A("s_waitcnt lgkmcnt(0)")
    A("s_sub_u32 s14, s12, s10"); A("s_cmp_lt_u32 s14, s6"); A("s_cbranch_scc1 D_spin")
    A("D_end:")
    src += """
.text
.globl diag_kernel
.p2align 8
.type diag_kernel,@function
diag_kernel:
""" + "\n".join(L) + """
    s_endpgm
.section .rodata,"a"
.p2align 6
.amdhsa_kernel diag_kernel
  .amdhsa_next_free_vgpr 72
  .amdhsa_next_free_sgpr 32
  .amdhsa_accum_offset 72
  .amdhsa_group_segment_fixed_size 0
  .amdhsa_kernarg_size 128
  .amdhsa_user_sgpr_count 2
  .amdhsa_user_sgpr_kernarg_segment_ptr 1
  .amdhsa_system_sgpr_workgroup_id_x 1
.end_amdhsa_kernel
"""
    open(out, "w").write(src)
if __name__ == "__main__":
    src, _ = G.gen(stamps=True)
    specs = sys.argv[1:]
    for n, sp in enumerate(specs):
        i, j, mode, ty, mult = sp.split(",")
        make(src, f"d{n}.s", int(i), int(j), mode, int(ty), int(mult))
```

```python
import sys, os
sys.path.insert(0, os.path.dirname(__file__))
from asmlib import *

KNAME = "gated_mix__ssm_conv_s5__linear_attn_block__prompt_kernel"

WS_EPOCH = 0
WS_KVF   = 0x1000
WS_HF    = 0x4000
WS_OF    = 0xC000
WS_G     = 0x14000
WS_ZP    = 0x18000
WS_AGG   = 0x20000
WS_KVP   = 0x40000
WS_STAMP = 0xC0000
WS_ACT   = 0x100000
WS_SIZE  = WS_ACT + 64 * 98304
SCR = 131072
LDS_BYTES = 163840
SPIN = 1 << 17

def gen(stamps=False, opt=None):
    opt = opt or {}
    A = Asm()
    P_X, P_LRE, P_LIM, P_BRE, P_BIM, P_CRE, P_CIM, P_LDT = 4, 6, 8, 10, 12, 14, 16, 18
    P_DSK, P_BX, P_QKV, P_WO, P_GW, P_OUT, P_DBG, P_WS = 20, 22, 24, 26, 28, 30, 32, 34
    R_X, R_W, R_WS, R_C, R_WO, R_OUT = 36, 40, 44, 48, 52, 56
    sW, sC, sJ, sK0, sRB, sNB, sTAG, sTY = 60, 61, 62, 63, 64, 65, 66, 67
    sXB, sWB, sWST, sCH, sT0, sT1, sT2, sT3 = 68, 69, 70, 71, 72, 73, 74, 75
    sMX, sMW, sCNT, sTT, sKH, sM8 = 76, 77, 78, 79, 80, 81
    sL2E = 82
    sST = 88
    vL = 0; vZ = 1; vE = 2
    t0, t1, t2, t3, t4, t5, t6, t7 = 4, 5, 6, 7, 8, 9, 10, 11
    vTAG = 12; vL16 = 13
    ACC = 16; BUF = 80; TMP = 112; TM2 = 176
    VX, VW, VN, VK1 = 208, 212, 216, 220
    RX, RN, RT = 224, 228, 232
    RW = 234
    RA, RB = 236, 240
    AD = 244
    SREG = [88, 90, 92, 94, 96, 98, 22, 32, 6, 8, 10, 12, 14]
    sWG = 100
    names = opt.get('stamps') or [0, 1, 2, 3, 4, 5, 6, 7, 8, 9, 10, 11, 12]
    def stamp(i):
        if stamps and i in names:
            A(f"{'s_memtime' if opt.get('cyc') else 's_memrealtime'} {s(SREG[names.index(i)], 2)}")

    stamp(0)
    A("s_load_dwordx16 s[4:19], s[0:1], 0")
    A("s_load_dwordx16 s[20:35], s[0:1], 64")
    A("s_cmp_ge_u32 s2, 256")
    A("s_cbranch_scc1 L_end")
    A(f"v_lshrrev_b32 {v(t0)}, 6, v0")
    A(f"v_and_b32 {v(vL)}, 63, v0")
    A(f"v_readfirstlane_b32 {s(sW)}, {v(t0)}")
    A(f"v_mov_b32 {v(vZ)}, 0")
    A(f"s_and_b32 {s(sT0)}, s2, 7")
    A(f"s_lshr_b32 {s(sT1)}, s2, 3")
    A(f"s_and_b32 {s(sT2)}, {s(sT1)}, 7")
    A(f"s_lshr_b32 {s(sT3)}, {s(sT1)}, 3")
    A(f"s_and_b32 {s(sC)}, {s(sT0)}, 1"); A(f"s_lshl_b32 {s(sC)}, {s(sC)}, 3"); A(f"s_add_u32 {s(sC)}, {s(sC)}, {s(sT2)}")
    A(f"s_and_b32 {s(sTY)}, {s(sT3)}, 1")
    A(f"s_and_b32 {s(sJ)}, {s(sT0)}, 6"); A(f"s_lshr_b32 {s(sK0)}, {s(sT3)}, 1"); A(f"s_add_u32 {s(sJ)}, {s(sJ)}, {s(sK0)}")
    A(f"s_lshl_b32 {s(sK0)}, {s(sT3)}, 1"); A(f"s_add_u32 {s(sK0)}, {s(sK0)}, {s(sT2)}"); A(f"s_and_b32 {s(sK0)}, {s(sK0)}, 7")
    G_ = opt.get('G', 8)
    if G_ != 8:
        A(f"s_add_u32 {s(sK0)}, {s(sT3)}, {s(sT2)}"); A(f"s_and_b32 {s(sK0)}, {s(sK0)}, {G_-1}"); A(f"s_mul_i32 {s(sK0)}, {s(sK0)}, {8//G_}")
    A(f"s_lshl_b32 {s(sRB)}, {s(sT0)}, 2"); A(f"s_add_u32 {s(sRB)}, {s(sRB)}, {s(sT3)}")
    A(f"s_mov_b32 {s(sNB)}, {s(sT2)}")
    if stamps:
        A(f"s_mov_b32 {s(sWG)}, s2")
    A(f"v_lshrrev_b32 {v(t0)}, 3, {v(vL)}")
    A(f"v_and_b32 {v(t1)}, 7, {v(vL)}")
    A(f"v_lshrrev_b32 {v(t2)}, 1, {v(t0)}")
    A(f"v_xor_b32 {v(t3)}, {v(t1)}, {v(t2)}")
    A(f"v_lshlrev_b32 {v(t3)}, 4, {v(t3)}")
    A(f"v_and_b32 {v(t2)}, 1, {v(t2)}")
    A(f"v_lshlrev_b32 {v(t2)}, 2, {v(t2)}")
    A(f"v_xor_b32 {v(t4)}, {v(t1)}, {v(t2)}")
    A(f"v_lshlrev_b32 {v(t4)}, 4, {v(t4)}")
    A(f"v_lshrrev_b32 {v(t5)}, 2, {v(t0)}")
    A(f"v_and_b32 {v(t6)}, 3, {v(t0)}")
    A(f"v_lshl_add_u32 {v(t5)}, {v(t5)}, 4, {v(t6)}")
    A(f"v_lshl_add_u32 {v(VX)}, {v(t5)}, 10, {v(t3)}")
    A(f"v_xor_b32 {v(t5)}, 64, {v(VX)}")
    A(f"v_add_u32 {v(VX+1)}, {3072}, {v(t5)}")
    A(f"v_add_u32 {v(VX+2)}, {2*3072}, {v(VX)}")
    A(f"v_add_u32 {v(VX+3)}, {3*3072}, {v(t5)}")
    A(f"v_lshl_add_u32 {v(VN)}, {v(t0)}, 10, {v(t3)}")
    A(f"v_xor_b32 {v(t5)}, 64, {v(VN)}")
    A(f"v_add_u32 {v(VN+1)}, {7168}, {v(t5)}")
    A(f"v_add_u32 {v(VN+2)}, {2*7168}, {v(VN)}")
    A(f"v_add_u32 {v(VN+3)}, {3*7168}, {v(t5)}")
    A(f"v_lshl_add_u32 {v(VK1)}, {v(t0)}, 10, {v(t4)}")
    for q in (1, 2, 3): A(f"v_add_u32 {v(VK1+q)}, {q*7168}, {v(VK1)}")
    A(f"v_mul_u32_u24 {v(t5)}, 3072, {v(t0)}")
    A(f"v_add_u32 {v(VW)}, {v(t5)}, {v(t4)}")
    for q in (1, 2, 3): A(f"v_add_u32 {v(VW+q)}, {q*(8*3072-1024)}, {v(VW)}")
    A(f"s_lshl_b32 {s(sMX)}, {s(sW)}, 12")
    A(f"s_lshl_b32 {s(sM8)}, {s(sW)}, 13")
    A(f"s_add_u32 {s(sMW)}, {s(sMX)}, 16384")
    A(f"s_lshl_b32 {s(sTT)}, {s(sC)}, 2"); A(f"s_add_u32 {s(sTT)}, {s(sTT)}, {s(sW)}")
    A(f"s_lshl_b32 {s(sXB)}, {s(sTT)}, 15")
    A(f"s_mov_b32 {s(R_X+2)}, 0x200000"); A(f"s_mov_b32 {s(R_X+3)}, 0x20000")
    A(f"s_mov_b32 {s(R_W+3)}, 0x20000")
    A(f"s_mov_b32 {s(R_WS+2)}, {WS_SIZE}"); A(f"s_mov_b32 {s(R_WS+3)}, 0x20000")
    A(f"s_mov_b32 {s(R_C+2)}, 0x80000"); A(f"s_mov_b32 {s(R_C+3)}, 0x20000")
    A(f"s_mov_b32 {s(R_WO+2)}, 0x80000"); A(f"s_mov_b32 {s(R_WO+3)}, 0x20000")
    A(f"s_mov_b32 {s(R_OUT+2)}, 0x400000"); A(f"s_mov_b32 {s(R_OUT+3)}, 0x20000")
    A(f"s_cmp_eq_u32 {s(sTY)}, 0")
    A("s_cbranch_scc0 L_attn")
    snap0 = A.snapshot()

    def common_srds():
        A("s_waitcnt lgkmcnt(0)")
        stamp(20)
        A(f"s_mov_b64 {s(R_X,2)}, {s(P_X,2)}")
        A(f"s_mov_b64 {s(R_WS,2)}, {s(P_WS,2)}")

    def late_srds():
        A(f"s_mov_b64 {s(R_WO,2)}, {s(P_WO,2)}")
        A(f"s_mov_b64 {s(R_OUT,2)}, {s(P_OUT,2)}")
        A(f"s_bitcmp1_b32 {s(sW)}, 0")
        A(f"s_cselect_b64 {s(R_C,2)}, {s(P_CIM,2)}, {s(P_CRE,2)}")

    def dma4(voff, srd, soff, m0expr):
        ops = [m0expr]
        for q in range(4):
            off = f" offset:{q*1024}" if q else ""
            ops.append(f"buffer_load_dwordx4 {v(voff+q)}, {s(srd,4)}, {s(soff)} offen{off} lds")
        return ops

    def unit_ops(i):
        slot = (i % 4) * 32768
        ops = []
        if i == 0: ops.append(f"s_mov_b32 {s(sCH)}, {s(sK0)}")
        else:
            ops.append(f"s_add_u32 {s(sCH)}, {s(sCH)}, 1"); ops.append(f"s_and_b32 {s(sCH)}, {s(sCH)}, 7")
        ops.append(f"s_lshl_b32 {s(sT0)}, {s(sCH)}, 7"); ops.append(f"s_add_u32 {s(sT0)}, {s(sT0)}, {s(sXB)}")
        ops.append(f"s_mul_i32 {s(sT1)}, {s(sCH)}, {s(sWST)}"); ops.append(f"s_add_u32 {s(sT1)}, {s(sT1)}, {s(sWB)}")
        ops += dma4(VX, R_X, sT0, f"s_add_u32 m0, {s(sMX)}, {slot}")
        ops += dma4(VW, R_W, sT1, f"s_add_u32 m0, {s(sMW)}, {slot}")
        return ops

    def unit8_ops(voff, srd, pre, slot, rowstep):
        ops = list(pre)
        ops.append(f"s_add_u32 {s(sT1)}, {s(sT0)}, {rowstep}")
        ops += dma4(voff, srd, sT0, f"s_add_u32 m0, {s(sM8)}, {slot*32768}")
        ops += dma4(voff, srd, sT1, f"s_add_u32 m0, {s(sM8)}, {slot*32768+4096}")
        return ops

    def wq_ops(u):
        pre = [f"s_add_u32 {s(sT0)}, {s(sK0)}, {s(sW)}", f"s_add_u32 {s(sT0)}, {s(sT0)}, {4*u}", f"s_and_b32 {s(sT0)}, {s(sT0)}, 7",
               f"s_mul_i32 {s(sT0)}, {s(sT0)}, {64*3072}", f"s_lshl_b32 {s(sT1)}, {s(sJ)}, 7", f"s_add_u32 {s(sT0)}, {s(sT0)}, {s(sT1)}"]
        return unit8_ops(VW, R_W, pre, u, 32 * 3072)
    def wo_ops(u, slot):
        pre = [f"s_lshl_b32 {s(sT0)}, {s(sW)}, 16", f"s_lshl_b32 {s(sT1)}, {s(sNB)}, 7", f"s_add_u32 {s(sT0)}, {s(sT0)}, {s(sT1)}"]
        if u: pre.append(f"s_add_u32 {s(sT0)}, {s(sT0)}, {256*1024}")
        return unit8_ops(VK1, R_WO, pre, slot, 32 * 1024)
    def c_ops(u):
        pre = [f"s_lshr_b32 {s(sT0)}, {s(sW)}, 1", f"s_lshl_b32 {s(sT0)}, {s(sT0)}, 7", f"s_lshl_b32 {s(sT1)}, {s(sNB)}, 16",
               f"s_add_u32 {s(sT0)}, {s(sT0)}, {s(sT1)}"]
        if u: pre.append(f"s_add_u32 {s(sT0)}, {s(sT0)}, {u*256}")
        return unit8_ops(VN, R_C, pre, u, 32 * 1024)

    def touches():
        if not opt.get('touch'): return
        ssm = cur[0] == 'ssm'
        A(f"v_and_b32 {v(t0)}, 7, {v(vL)}"); A(f"v_lshrrev_b32 {v(t1)}, 3, {v(vL)}")
        A(f"v_lshlrev_b32 {v(t1)}, 7, {v(t1)}"); A(f"v_lshl_add_u32 {v(t0)}, {v(t0)}, 10, {v(t1)}")
        A(f"s_and_b32 {s(sT0)}, {s(sRB)}, 3"); A(f"s_lshl_b32 {s(sT0)}, {s(sT0)}, 15"); A(f"s_add_u32 {s(sT0)}, {s(sT0)}, {s(sM8)}")
        A(f"s_lshl_b32 {s(sT1)}, {s(sC)}, 17"); A(f"s_add_u32 {s(sT0)}, {s(sT0)}, {s(sT1)}")
        A(f"v_and_b32 {v(t2)}, 3, {v(vL)}"); A(f"v_lshrrev_b32 {v(t3)}, 2, {v(vL)}")
        st = 1024 if ssm else 3072
        A(f"v_mul_u32_u24 {v(t2)}, {st}, {v(t2)}")
        A(f"v_mul_u32_u24 {v(t3)}, {128 if ssm else 64*3072}, {v(t3)}")
        A(f"v_add_u32 {v(t2)}, {v(t2)}, {v(t3)}")
        A(f"s_mul_i32 {s(sT1)}, {s(sNB)}, {4*st}"); A(f"s_add_u32 {s(sT1)}, {s(sT1)}, {s(sWB)}")
        groups = {1: [(1, 8)], 2: [(1, 3), (3, 5), (5, 8)], 3: [(2, 4), (4, 6), (6, 8)], 4: [(2, 8)]}[opt['touch']]
        for (c0, c1) in groups:
            mx = ((1 << (8 * c1)) - 1) ^ ((1 << (8 * c0)) - 1)
            mw = ((1 << (4 * c1)) - 1) ^ ((1 << (4 * c0)) - 1)
            A(f"s_mov_b32 exec_lo, {mx & 0xffffffff:#x}"); A(f"s_mov_b32 exec_hi, {mx >> 32:#x}")
            A(f"buffer_load_dword {v(15)}, {v(t0)}, {s(R_X,4)}, {s(sT0)} offen")
            A(f"s_mov_b32 exec_lo, {mw & 0xffffffff:#x}"); A(f"s_mov_b32 exec_hi, 0")
            A(f"buffer_load_dword {v(15)}, {v(t2)}, {s(R_W,4)}, {s(sT1)} offen")
        A("s_mov_b64 exec, -1")
    cur = ['ssm']

    def run(ops):
        tok = None
        for o in ops:
            r = A(o)
            if r is not None: tok = r
        return tok

    def read_addr_regs():
        A(f"v_and_b32 {v(t0)}, 31, {v(vL)}")
        A(f"v_lshrrev_b32 {v(t1)}, 5, {v(vL)}")
        A(f"v_bfe_u32 {v(t2)}, {v(vL)}, 1, 3")
        A(f"v_xor_b32 {v(t2)}, {v(t2)}, {v(t1)}")
        A(f"v_lshlrev_b32 {v(t2)}, 4, {v(t2)}")
        A(f"v_lshl_add_u32 {v(RN)}, {v(t0)}, 7, {v(t2)}")
        for q in (1, 2, 3): A(f"v_xor_b32 {v(RN+q)}, {q*32}, {v(RN)}")
        for q in range(4): A(f"v_add_u32 {v(RX+q)}, {s(sMX)}, {v(RN+q)}")
        A(f"v_bfe_u32 {v(t2)}, {v(vL)}, 2, 2")
        A(f"v_bfe_u32 {v(t3)}, {v(vL)}, 3, 1")
        A(f"v_bfe_u32 {v(t4)}, {v(vL)}, 4, 1")
        A(f"v_and_b32 {v(t5)}, 3, {v(vL)}")
        A(f"v_lshlrev_b32 {v(t5)}, 3, {v(t5)}")
        A(f"v_lshl_add_u32 {v(t5)}, {v(t4)}, 5, {v(t5)}")
        A(f"v_lshl_add_u32 {v(t5)}, {v(t3)}, 6, {v(t5)}")
        A(f"v_lshl_add_u32 {v(t5)}, {v(t2)}, 7, {v(t5)}")
        A(f"v_lshl_add_u32 {v(RT)}, {v(t1)}, 10, {v(t5)}")
        A(f"v_xor_b32 {v(RT+1)}, 64, {v(RT)}")
        A(f"v_lshl_add_u32 {v(RW)}, {v(t1)}, 9, {v(t5)}")
        A(f"v_lshlrev_b32 {v(vL16)}, 4, {v(vL)}")
        A(f"s_and_b32 {s(sKH)}, {s(sW)}, 1")

    def main_loop(kind, tail_units):
        def reads(i, st):
            slot = (i % 2) * 32768
            b = BUF + 16 * ((4 * i + st) % 2)
            L = [f"ds_read_b128 {a(16*i+4*st,4)}, {v(RX+st)} offset:{slot}"]
            for tl in range(4):
                if kind == 'ssm':
                    L.append(f"ds_read_b128 {v(b+4*tl,4)}, {v(RN+st)} offset:{slot+16384+tl*4096}")
                else:
                    base = slot + 16384 + (tl >> 1) * 8192 + st * 2048
                    L.append(f"ds_read_b64_tr_b16 {v(b+4*tl,2)}, {v(RT+(tl&1))} offset:{base}")
                    L.append(f"ds_read_b64_tr_b16 {v(b+4*tl+2,2)}, {v(RT+(tl&1))} offset:{base+512}")
            return L
        def mfmas(i, st):
            b = BUF + 16 * ((4 * i + st) % 2)
            L = []
            for tl in range(4):
                c = v(ACC + 16 * tl, 16)
                if i == 0 and st == 0: c = "1.0" if (kind == 'attn' and tl < 2) else "0"
                L.append(f"v_mfma_f32_32x32x16_bf16 {v(ACC+16*tl,16)}, {a(16*i+4*st,4)}, {v(b+4*tl,4)}, {c}")
            return L
        prev = None
        for i in range(8):
            if i in (2, 4, 6):
                for q in range(4): A(f"v_xor_b32 {v(RX+q)}, 0x10000, {v(RX+q)}")
                if kind == 'ssm':
                    for q in range(4): A(f"v_xor_b32 {v(RN+q)}, 0x10000, {v(RN+q)}")
                else:
                    for q in range(2): A(f"v_xor_b32 {v(RT+q)}, 0x10000, {v(RT+q)}")
            A.wait(vm=utok[i])
            A("s_barrier")
            stamp(30 + i)
            nxt = unit_ops(i + 2) if i + 2 < 8 else tail_units[i - 6]
            nxt = list(nxt)
            if opt.get('nodma'): nxt = [o for o in nxt if 'buffer_load' not in o]
            per = (len(nxt) + 15) // 16
            if opt.get('per'): per = opt['per']
            for st in range(4):
                rd = reads(i, st)
                if opt.get('noreads') and i: rd = rd[:1]
                if prev is None:
                    tok = run(rd); prev = (i, st, tok); continue
                ms = mfmas(prev[0], prev[1])
                A.wait(lg=prev[2])
                n = (len(rd) + 3) // 4
                tok = None
                for tl in range(4):
                    if not opt.get('nomfma'): A(ms[tl])
                    for r in rd[tl*n:(tl+1)*n]: tok = A(r)
                    for _ in range(per):
                        if nxt:
                            r = A(nxt.pop(0))
                prev = (i, st, tok)
            for o in nxt: A(o)
            utok.append(A.vm)
        A.wait(lg=prev[2])
        run(mfmas(prev[0], prev[1]))
        if kind == 'ssm':
            for q in range(4): A(f"v_xor_b32 {v(RN+q)}, 0x10000, {v(RN+q)}")
        else:
            for q in range(2): A(f"v_xor_b32 {v(RT+q)}, 0x10000, {v(RT+q)}")

    def get_tag(tok):
        A.wait(vm=tok)
        A(f"v_readfirstlane_b32 {s(sTAG)}, {v(vE)}")
        A(f"s_mul_i32 {s(sTAG)}, {s(sTAG)}, 0x9E3779B5")
        A(f"s_add_u32 {s(sTAG)}, {s(sTAG)}, 0x7F4A7C15")
        A(f"v_mov_b32 {v(vTAG)}, {s(sTAG)}")

    def cmul(dst, x, y, add=None):
        if add is None:
            A(f"v_pk_mul_f32 {v(dst,2)}, {v(x,2)}, {v(y,2)} op_sel_hi:[0,1]")
        else:
            A(f"v_pk_fma_f32 {v(dst,2)}, {v(x,2)}, {v(y,2)}, {v(add,2)} op_sel_hi:[0,1,1]")
        A(f"v_pk_fma_f32 {v(dst,2)}, {v(x,2)}, {v(y,2)}, {v(dst,2)} op_sel:[1,1,0] op_sel_hi:[1,0,1] neg_lo:[0,1,0]")

    def wo_to_regs(slot0):
        L = []
        for st in range(16):
            for tl in range(2):
                d = 128 + 8 * st + 4 * tl
                L.append(f"ds_read_b64_tr_b16 {a(d,2)}, {v(RW+tl)} offset:{st*2048}")
                L.append(f"ds_read_b64_tr_b16 {a(d+2,2)}, {v(RW+tl)} offset:{st*2048+1024}")
        pre = [f"s_lshl_b32 {s(sT0)}, {s(sKH)}, 15", f"s_add_u32 {s(sT0)}, {s(sT0)}, {slot0*32768}",
               f"s_lshl_b32 {s(sT1)}, {s(sKH)}, 6",
               f"v_xor_b32 {v(RW)}, {s(sT1)}, {v(RW)}", f"v_add_u32 {v(RW)}, {s(sT0)}, {v(RW)}", f"v_xor_b32 {v(RW+1)}, 64, {v(RW)}"]
        return pre, L

    def spin(name, load, check):
        A(f"s_mov_b32 {s(sCNT)}, {SPIN}")
        A.label(name)
        load()
        A.wait_all(vm=True, lg=False, force=True)
        check()
        A(f"s_sub_u32 {s(sCNT)}, {s(sCNT)}, 1")
        A(f"s_cbranch_scc1 {name}_x")
        A(f"s_cbranch_vccnz {name}")
        A.label(name + "_x")

    for q in range(4): A(f"v_mov_b32 {v(VW+q)}, {v(VN+q)}")
    A(f"s_mov_b32 {s(sWST)}, 128")
    A(f"s_lshr_b32 {s(sT0)}, {s(sW)}, 1"); A(f"s_lshl_b32 {s(sT0)}, {s(sT0)}, 15")
    A(f"s_lshl_b32 {s(sWB)}, {s(sJ)}, 16"); A(f"s_add_u32 {s(sWB)}, {s(sWB)}, {s(sT0)}")
    A(f"s_mov_b32 {s(R_W+2)}, 0x80000")
    A(f"s_lshl_b32 {s(sT0)}, {s(sJ)}, 7")
    A(f"v_lshl_add_u32 {v(t7)}, {v(vL)}, 1, {s(sT0)}")
    common_srds()
    A(f"s_bitcmp1_b32 {s(sW)}, 0")
    A(f"s_cselect_b64 {s(R_W,2)}, {s(P_BIM,2)}, {s(P_BRE,2)}")
    tokE = A(f"global_load_dword {v(vE)}, {v(vZ)}, {s(P_WS,2)} sc1")
    PR = TM2
    pLRE, pLIM, pLDT = PR, PR + 1, PR + 2
    A(f"global_load_ushort {v(pLRE)}, {v(t7)}, {s(P_LRE,2)}")
    A(f"global_load_ushort {v(pLIM)}, {v(t7)}, {s(P_LIM,2)}")
    tokP = A(f"global_load_ushort {v(pLDT)}, {v(t7)}, {s(P_LDT,2)}")
    utok = []
    run(unit_ops(0)); utok.append(A.vm)
    stamp(21)
    touches()
    if opt.get('bar01'): A("s_barrier")
    run(unit_ops(1)); utok.append(A.vm)
    stamp(22)
    late_srds()
    read_addr_regs()
    L1, KK, L16, L32, L128 = PR + 4, PR + 6, PR + 8, PR + 10, PR + 12
    LT, KT = PR + 14, PR + 18
    WG_ = PR + 22
    A.wait(vm=tokP)
    get_tag(tokE)
    A(f"v_lshlrev_b32 {v(pLRE)}, 16, {v(pLRE)}")
    A(f"v_lshlrev_b32 {v(pLIM)}, 16, {v(pLIM)}")
    A(f"v_lshlrev_b32 {v(pLDT)}, 16, {v(pLDT)}")
    A(f"v_xor_b32 {v(pLIM)}, 0x80000000, {v(pLIM)}")
    A(f"v_mul_f32 {v(t0)}, 0x3fb8aa3b, {v(pLDT)}")
    A(f"v_exp_f32 {v(t0)}, {v(t0)}")
    A(f"v_cvt_pk_bf16_f32 {v(t0)}, {v(t0)}, {v(t0)}")
    A(f"v_and_b32 {v(t0)}, 0xffff0000, {v(t0)}")
    A(f"v_mul_f32 {v(t1)}, {v(t0)}, {v(pLRE)}")
    A(f"v_mul_f32 {v(t2)}, {v(t0)}, {v(pLIM)}")
    A(f"v_mul_f32 {v(t1)}, 0x3fb8aa3b, {v(t1)}")
    A(f"v_exp_f32 {v(t1)}, {v(t1)}")
    A(f"v_mul_f32 {v(t2)}, 0.15915494, {v(t2)}")
    A(f"v_rndne_f32 {v(t3)}, {v(t2)}")
    A(f"v_sub_f32 {v(t2)}, {v(t2)}, {v(t3)}")
    A(f"v_cos_f32 {v(t3)}, {v(t2)}")
    A(f"v_sin_f32 {v(t4)}, {v(t2)}")
    A(f"v_mul_f32 {v(L1)}, {v(t1)}, {v(t3)}")
    A(f"v_mul_f32 {v(L1+1)}, {v(t1)}, {v(t4)}")
    A(f"v_mul_f32 {v(t0)}, {v(pLRE)}, {v(pLRE)}")
    A(f"v_fmac_f32 {v(t0)}, {v(pLIM)}, {v(pLIM)}")
    A(f"v_rcp_f32 {v(t0)}, {v(t0)}")
    A(f"v_add_f32 {v(t1)}, -1.0, {v(L1)}")
    A(f"v_add_f32 {v(t0)}, {v(t0)}, {v(t0)}")
    A(f"v_mul_f32 {v(t2)}, {v(t1)}, {v(pLRE)}")
    A(f"v_fmac_f32 {v(t2)}, {v(L1+1)}, {v(pLIM)}")
    A(f"v_mul_f32 {v(t3)}, {v(L1+1)}, {v(pLRE)}")
    A(f"v_fma_f32 {v(t3)}, -{v(t1)}, {v(pLIM)}, {v(t3)}")
    A(f"v_mul_f32 {v(KK)}, {v(t2)}, {v(t0)}")
    A(f"v_mul_f32 {v(KK+1)}, {v(t3)}, {v(t0)}")
    cmul(t0, L1, L1); cmul(t2, t0, t0); cmul(t0, t2, t2); cmul(L16, t0, t0)
    cmul(L32, L16, L16); cmul(t0, L32, L32); cmul(L128, t0, t0)
    for (src, dst) in ((L1, LT), (KK, KT)):
        for e in range(2):
            A(f"v_mov_b32 {v(dst+e)}, {v(src+e)}")
            A(f"v_mov_b32 {v(dst+2+e)}, {v(src+e)}")
        for e in range(2):
            A(f"v_permlane32_swap_b32 {v(dst+e)}, {v(dst+2+e)}")
    WS_ = t6
    WSEG = PR + 30
    cmul(t0, L128, L128); cmul(t2, t0, t0)
    A(f"v_mov_b32 {v(WG_)}, 1.0"); A(f"v_mov_b32 {v(WG_+1)}, 0")
    A(f"v_mov_b32 {v(WSEG)}, 1.0"); A(f"v_mov_b32 {v(WSEG+1)}, 0")
    for q in range(3):
        A(f"s_cmp_gt_u32 {s(sW)}, {q}")
        A("s_cselect_b64 exec, -1, 0")
        cmul(t0, WG_, t2); A(f"v_mov_b64 {v(WG_,2)}, {v(t0,2)}")
        cmul(t0, WSEG, L32); A(f"v_mov_b64 {v(WSEG,2)}, {v(t0,2)}")
    A("s_mov_b64 exec, -1")
    for q in range(1, 4): cmul(WG_ + 2 * q, WG_ + 2 * q - 2, L128)
    stamp(1)
    main_loop('ssm', [wo_ops(0, 0), wo_ops(1, 1)])
    stamp(2)
    tok_wo = A.vm
    U = TMP
    def upair(ct, k): return U + 32 * ct + 2 * k
    E0 = t0
    for k in range(16):
        for ct in range(2):
            re, im = ACC + 32 * ct + (k & ~1), ACC + 32 * ct + 16 + (k & ~1)
            b = k & 1
            A(f"v_pk_mul_f32 {v(upair(ct,k),2)}, {v(re,2)}, {v(KT+2*ct,2)} op_sel:[{b},0] op_sel_hi:[{b},1]")
            A(f"v_pk_fma_f32 {v(upair(ct,k),2)}, {v(im,2)}, {v(KT+2*ct,2)}, {v(upair(ct,k),2)} op_sel:[{b},1,0] op_sel_hi:[{b},0,1] neg_hi:[0,1,0]")
            if k == 0: continue
            src = upair(ct, 0) if k == 1 else (t0 + 2 * ct if k % 2 == 0 else t4 + 2 * ct)
            dst = t0 + 2 * ct if k % 2 == 1 else t4 + 2 * ct
            cmul(dst, src, LT + 2 * ct, upair(ct, k))
    A(f"v_permlane32_swap_b32 {v(t0)}, {v(t2)}")
    A(f"v_permlane32_swap_b32 {v(t1)}, {v(t3)}")
    EA = ACC
    A(f"v_mov_b64 {v(EA,2)}, {v(t0,2)}")
    cmul(t2, t0, L16, t2)
    A(f"v_lshlrev_b32 {v(AD)}, 3, {v(vL)}")
    A(f"s_lshl_b32 {s(sT0)}, {s(sW)}, 9")
    A(f"v_add_u32 {v(AD)}, {SCR}, {v(AD)}")
    A(f"v_add_u32 {v(AD+1)}, {s(sT0)}, {v(AD)}")
    A(f"ds_write_b64 {v(AD+1)}, {v(t2,2)}")
    A.wait_all(vm=False)
    A("s_barrier")
    EW = ACC + 2
    for q in range(4): tok = A(f"ds_read_b64 {v(EW+2*q,2)}, {v(AD)} offset:{q*512}")
    A.wait(lg=tok)
    PF = ACC + 10
    cmul(PF, EW, L32, EW + 2)
    cmul(PF + 2, PF, L32, EW + 4)
    cmul(PF + 4, PF + 2, L32, EW + 6)
    GR = ACC + 16
    A(f"v_mov_b32 {v(GR)}, {v(PF+4)}"); A(f"v_mov_b32 {v(GR+1)}, {v(vTAG)}")
    A(f"v_mov_b32 {v(GR+2)}, {v(PF+5)}"); A(f"v_mov_b32 {v(GR+3)}, {v(vTAG)}")
    A(f"s_lshl_b32 {s(sT2)}, {s(sJ)}, 4"); A(f"s_add_u32 {s(sT2)}, {s(sT2)}, {s(sC)}"); A(f"s_lshl_b32 {s(sT2)}, {s(sT2)}, 10")
    A(f"s_add_u32 {s(sT2)}, {s(sT2)}, {WS_AGG}")
    A(f"s_cmp_eq_u32 {s(sW)}, 0")
    A("s_cselect_b64 exec, -1, 0")
    A(f"buffer_store_dwordx4 {v(GR,4)}, {v(vL16)}, {s(R_WS,4)}, {s(sT2)} offen sc1")
    A("s_mov_b64 exec, -1")
    stamp(3)
    run(c_ops(2)); run(c_ops(3))
    PW = ACC + 20
    A(f"v_mov_b32 {v(PW)}, 0"); A(f"v_mov_b32 {v(PW+1)}, 0")
    for q, src in ((1, EW), (2, PF), (3, PF + 2)):
        A(f"s_cmp_eq_u32 {s(sW)}, {q}")
        A("s_cselect_b64 exec, -1, 0")
        A(f"v_mov_b64 {v(PW,2)}, {v(src,2)}")
    A("s_mov_b64 exec, -1")
    A(f"s_and_b32 {s(sT0)}, {s(sJ)}, 3")
    A(f"s_cmp_eq_u32 {s(sT0)}, 0")
    A("s_cbranch_scc0 L_nogate")
    snapg = A.snapshot()
    GD = ACC + 32
    A(f"global_load_dwordx4 {v(GD,4)}, {v(vL16)}, {s(P_GW,2)}")
    A(f"s_lshl_b32 {s(sT0)}, {s(sW)}, 11")
    A(f"s_add_u32 {s(sT0)}, {s(sT0)}, {SCR+4096}")
    A(f"v_add_u32 {v(AD+2)}, {s(sT0)}, {v(vL16)}")
    A(f"s_lshl_b32 {s(sT1)}, {s(sK0)}, 7"); A(f"s_add_u32 {s(sT0)}, {s(sT0)}, {s(sT1)}")
    A(f"v_lshrrev_b32 {v(AD+3)}, 5, {v(vL)}")
    A(f"v_lshl_add_u32 {v(AD+3)}, {v(AD+3)}, 4, {s(sT0)}")
    A.wait_all(vm=True, lg=False)
    A(f"ds_write_b128 {v(AD+2)}, {v(GD,4)}")
    A(f"ds_write_b128 {v(AD+2)}, {v(GD,4)} offset:1024")
    A.wait_all(vm=False)
    toks = []
    for st in range(8): toks.append(A(f"ds_read_b128 {v(BUF+4*st,4)}, {v(AD+3)} offset:{st*32}"))
    for st in range(32):
        A.wait(lg=toks[st])
        A(f"v_mfma_f32_32x32x16_bf16 {v(GD,16)}, {v(BUF+4*(st%8),4)}, {a(4*st,4)}, {'0' if st == 0 else v(GD,16)}")
        if st + 8 < 32: toks.append(A(f"ds_read_b128 {v(BUF+4*(st%8),4)}, {v(AD+3)} offset:{(st+8)*32}"))
    A(f"v_bfe_u32 {v(t0)}, {v(vL)}, 2, 1"); A(f"v_bfe_u32 {v(t1)}, {v(vL)}, 3, 2"); A(f"v_and_b32 {v(t2)}, 3, {v(vL)}")
    A(f"v_lshlrev_b32 {v(t2)}, 2, {v(t2)}")
    A(f"v_lshl_add_u32 {v(t2)}, {v(t1)}, 4, {v(t2)}")
    A(f"v_lshl_add_u32 {v(t2)}, {v(t0)}, 6, {v(t2)}")
    A(f"s_lshl_b32 {s(sT0)}, {s(sJ)}, 11"); A(f"s_lshl_b32 {s(sT1)}, {s(sTT)}, 7"); A(f"s_add_u32 {s(sT0)}, {s(sT0)}, {s(sT1)}")
    A(f"s_add_u32 {s(sT0)}, {s(sT0)}, {WS_G}")
    A(f"v_mul_f32 {v(t0)}, 0xbfb8aa3b, {v(GD)}")
    A(f"v_exp_f32 {v(t0)}, {v(t0)}")
    A(f"v_add_f32 {v(t0)}, 1.0, {v(t0)}")
    A(f"v_rcp_f32 {v(t0)}, {v(t0)}")
    A("s_mov_b64 exec, 0xffffffff")
    A("s_nop 0")
    A(f"buffer_store_dword {v(t0)}, {v(t2)}, {s(R_WS,4)}, {s(sT0)} offen sc1")
    A("s_mov_b64 exec, -1")
    A.label("L_nogate")
    A.restore(snapg)
    A("s_nop 7"); A("s_nop 3")
    A.wait_all(vm=True, lg=True, force=True)
    A("s_barrier")
    pre, L = wo_to_regs(0)
    run(pre); run(L)
    LB = ACC + 32
    so = [sT0, sT1, sT3, sCH]
    for q in range(4):
        A(f"s_lshl_b32 {s(so[q])}, {s(sW)}, 2"); A(f"s_add_u32 {s(so[q])}, {s(so[q])}, {q+1}")
        A(f"s_cmp_le_u32 {s(so[q])}, {s(sC)}")
        A(f"s_cselect_b32 {s(so[q])}, {s(so[q])}, 0")
        A(f"s_lshl_b32 {s(so[q])}, {s(so[q])}, 10")
        A(f"s_sub_u32 {s(so[q])}, {s(sT2)}, {s(so[q])}")
    def ld():
        for q in range(4): A(f"buffer_load_dwordx4 {v(LB+4*q,4)}, {v(vL16)}, {s(R_WS,4)}, {s(so[q])} offen sc1")
    def ck():
        A(f"v_xor_b32 {v(t0)}, {v(LB+1)}, {v(vTAG)}")
        for r in (3, 5, 7, 9, 11, 13, 15):
            A(f"v_bitop3_b32 {v(t0)}, {v(t0)}, {v(LB+r)}, {v(vTAG)} bitop3:0xf6")
        A(f"v_cmp_ne_u32 vcc, 0, {v(t0)}")
    spin("L_pagg", ld, ck)
    stamp(4)
    A(f"v_mov_b32 {v(t0)}, 0"); A(f"v_mov_b32 {v(t1)}, 0")
    for q in range(4):
        A(f"s_cmp_lg_u32 {s(so[q])}, {s(sT2)}")
        A("s_cselect_b64 exec, -1, 0")
        A(f"v_pk_fma_f32 {v(t0,2)}, {v(LB+4*q,2)}, {v(WG_+2*q,2)}, {v(t0,2)} op_sel_hi:[0,1,1]")
        A(f"v_pk_fma_f32 {v(t0,2)}, {v(LB+4*q+2,2)}, {v(WG_+2*q,2)}, {v(t0,2)} op_sel:[0,1,0] op_sel_hi:[0,0,1] neg_lo:[0,1,0]")
    A("s_mov_b64 exec, -1")
    A(f"ds_write_b64 {v(AD+1)}, {v(t0,2)} offset:2048")
    A.wait_all(vm=False)
    A("s_barrier")
    for q in range(4): tok = A(f"ds_read_b64 {v(EW+2*q,2)}, {v(AD)} offset:{2048+q*512}")
    A(f"v_and_b32 {v(t4)}, 31, {v(vL)}")
    A(f"v_lshrrev_b32 {v(t5)}, 5, {v(vL)}")
    A(f"v_bfe_u32 {v(t6)}, {v(vL)}, 1, 2")
    A(f"v_lshlrev_b32 {v(t7)}, 1, {v(t5)}")
    A(f"v_xor_b32 {v(t6)}, {v(t6)}, {v(t7)}")
    A(f"v_lshlrev_b32 {v(t6)}, 4, {v(t6)}")
    A(f"v_lshl_add_u32 {v(t6)}, {v(t4)}, 6, {v(t6)}")
    A(f"v_add_u32 {v(AD+2)}, {s(sM8)}, {v(t6)}")
    A(f"v_xor_b32 {v(AD+3)}, 16, {v(AD+2)}")
    A(f"v_bfe_u32 {v(t4)}, {v(vL)}, 2, 2")
    A(f"v_lshl_add_u32 {v(t4)}, {v(t5)}, 3, {v(t4)}")
    A(f"v_bfe_u32 {v(t6)}, {v(vL)}, 4, 1"); A(f"v_bfe_u32 {v(t7)}, {v(vL)}, 1, 1")
    A(f"v_lshl_add_u32 {v(t6)}, {v(t6)}, 1, {v(t7)}")
    A(f"v_bfe_u32 {v(t7)}, {v(vL)}, 3, 1")
    A(f"v_xor_b32 {v(t6)}, {v(t6)}, {v(t7)}")
    A(f"v_lshlrev_b32 {v(t6)}, 4, {v(t6)}")
    A(f"v_lshl_add_u32 {v(t6)}, {v(t4)}, 6, {v(t6)}")
    A(f"v_and_b32 {v(t7)}, 1, {v(vL)}")
    A(f"v_lshl_add_u32 {v(t6)}, {v(t7)}, 3, {v(t6)}")
    A(f"v_add_u32 {v(AD+4)}, {s(sM8)}, {v(t6)}")
    A(f"v_xor_b32 {v(AD+5)}, 32, {v(AD+4)}")
    A.wait(lg=tok)
    A(f"v_pk_add_f32 {v(EW,2)}, {v(EW,2)}, {v(EW+2,2)}")
    A(f"v_pk_add_f32 {v(EW+4,2)}, {v(EW+4,2)}, {v(EW+6,2)}")
    A(f"v_pk_add_f32 {v(EW,2)}, {v(EW,2)}, {v(EW+4,2)}")
    cmul(t0, EW, WSEG, PW)
    cmul(t2, t0, L16, EA)
    A(f"v_permlane32_swap_b32 {v(t0)}, {v(t2)}")
    A(f"v_permlane32_swap_b32 {v(t1)}, {v(t3)}")
    HP = ACC + 32
    for k in range(16):
        for ct in range(2):
            src = t0 + 2 * ct if k == 0 else upair(ct, k - 1)
            cmul(upair(ct, k), src, LT + 2 * ct, upair(ct, k))
        if k & 1:
            for ct in range(2):
                for cp in range(2):
                    A(f"v_cvt_pk_bf16_f32 {v(HP+8*(2*ct+cp)+k//2)}, {v(upair(ct,k-1)+cp)}, {v(upair(ct,k)+cp)}")
        if k in (7, 15):
            for m in range(4):
                A(f"ds_write_b128 {v(AD+2+k//8)}, {v(HP+8*m+4*(k//8),4)} offset:{m*2048}")
    A.wait_all(vm=False)
    HT = TMP
    toks = []
    for f in range(8):
        A(f"ds_read_b64_tr_b16 {v(HT+4*f,2)}, {v(AD+4)} offset:{f*1024}")
        toks.append(A(f"ds_read_b64_tr_b16 {v(HT+4*f+2,2)}, {v(AD+5)} offset:{f*1024+256}"))
    A(f"s_mul_i32 {s(sT0)}, {s(sTT)}, 98304"); A(f"s_lshl_b32 {s(sT1)}, {s(sJ)}, 13"); A(f"s_add_u32 {s(sT0)}, {s(sT0)}, {s(sT1)}")
    A(f"s_add_u32 {s(sT0)}, {s(sT0)}, {WS_ACT}"); A(f"s_add_u32 {s(sT1)}, {s(sT0)}, 4096")
    for f in range(8):
        A.wait(lg=toks[f])
        A(f"buffer_store_dwordx4 {v(HT+4*f,4)}, {v(vL16)}, {s(R_WS,4)}, {s(sT0 if f < 4 else sT1)} offen offset:{(f%4)*1024} sc1")
    A(f"s_lshl_b32 {s(sT0)}, {s(sTT)}, 9"); A(f"s_lshr_b32 {s(sT1)}, {s(sJ)}, 2"); A(f"s_lshl_b32 {s(sT1)}, {s(sT1)}, 8")
    A(f"s_add_u32 {s(sT0)}, {s(sT0)}, {s(sT1)}"); A(f"s_and_b32 {s(sT1)}, {s(sJ)}, 3"); A(f"s_lshl_b32 {s(sT1)}, {s(sT1)}, 2")
    A(f"s_add_u32 {s(sT0)}, {s(sT0)}, {s(sT1)}"); A(f"s_add_u32 {s(sT0)}, {s(sT0)}, {WS_HF}")
    stamp(5)
    A.wait_all(vm=True, lg=True)
    A("s_mov_b64 exec, 1")
    A(f"buffer_store_dword {v(vTAG)}, {v(vZ)}, {s(R_WS,4)}, {s(sT0)} offen sc1")
    A("s_mov_b64 exec, -1")
    stamp(6)
    A("s_barrier")
    run(c_ops(0)); run(c_ops(1))
    A("s_branch L_phase2")

    A.restore(snap0)
    A.label("L_attn")
    cur[0] = 'attn'
    A(f"s_mov_b32 {s(sWST)}, {64*3072}")
    A(f"s_and_b32 {s(sT0)}, {s(sW)}, 1"); A(f"s_mul_i32 {s(sT0)}, {s(sT0)}, {32*3072}")
    A(f"s_lshr_b32 {s(sT1)}, {s(sW)}, 1"); A(f"s_lshl_b32 {s(sT1)}, {s(sT1)}, 10"); A(f"s_add_u32 {s(sT0)}, {s(sT0)}, {s(sT1)}")
    A(f"s_lshl_b32 {s(sT1)}, {s(sJ)}, 7"); A(f"s_add_u32 {s(sT0)}, {s(sT0)}, {s(sT1)}"); A(f"s_add_u32 {s(sWB)}, {s(sT0)}, 1024")
    A(f"s_mov_b32 {s(R_W+2)}, 0x180000")
    common_srds()
    A(f"s_mov_b64 {s(R_W,2)}, {s(P_QKV,2)}")
    tokE = A(f"global_load_dword {v(vE)}, {v(vZ)}, {s(P_WS,2)} sc1")
    utok = []
    run(unit_ops(0)); utok.append(A.vm)
    stamp(21)
    touches()
    if opt.get('bar01'): A("s_barrier")
    run(unit_ops(1)); utok.append(A.vm)
    stamp(22)
    late_srds()
    read_addr_regs()
    A(f"s_mov_b32 {s(sL2E)}, 0x3fb8aa3b"); A(f"s_mov_b32 {s(sL2E+1)}, 0x3fb8aa3b")
    A(f"s_mov_b32 {s(sL2E+4)}, 0x358637bd"); A(f"s_mov_b32 {s(sL2E+5)}, 0x358637bd")
    NL = AD + 10
    A(f"v_mov_b32 {v(NL)}, 0xbfb8aa3b"); A(f"v_mov_b32 {v(NL+1)}, 0xbfb8aa3b")
    ONES = TMP + 48
    for q in range(4): A(f"v_mov_b32 {v(ONES+q)}, 0x3f803f80")
    get_tag(tokE)
    stamp(1)
    main_loop('attn', [wq_ops(0), wq_ops(1)])
    stamp(2)
    tok_wq = A.vm
    def phi(src, dst):
        for k in range(0, 16, 2):
            tt = t0 + 2 * ((k // 2) % 4)
            A(f"v_pk_fma_f32 {v(tt,2)}, {v(src+k,2)}, {s(sL2E,2)}, {v(NL,2)}")
            A(f"v_exp_f32 {v(tt)}, {v(tt)} clamp")
            A(f"v_exp_f32 {v(tt+1)}, {v(tt+1)} clamp")
            if k >= 2:
                pp = t0 + 2 * ((k // 2 - 1) % 4)
                fin(src + k - 2, pp, dst + k // 2 - 1)
        fin(src + 14, t0 + 2 * (7 % 4), dst + 7)
    def fin(sr, pp, d):
        A(f"v_max_f32 {v(pp)}, {v(pp)}, {v(sr)}")
        A(f"v_max_f32 {v(pp+1)}, {v(pp+1)}, {v(sr+1)}")
        A(f"v_pk_add_f32 {v(pp,2)}, {v(pp,2)}, {s(sL2E+4,2)}")
        A(f"v_cvt_pk_bf16_f32 {v(d)}, {v(pp)}, {v(pp+1)}")
    PK, PV = TMP, TMP + 16
    for tl in range(2):
        phi(ACC + 16 * tl, PK + 8 * tl)
        for k in range(8): A(f"v_cvt_pk_bf16_f32 {v(PV+8*tl+k)}, {v(ACC+32+16*tl+2*k)}, {v(ACC+32+16*tl+2*k+1)}")
        for f in range(2):
            A(f"v_mfma_f32_32x32x16_bf16 {v(ACC+16*tl,16)}, {v(PK+8*tl+4*f,4)}, {v(PV+8*tl+4*f,4)}, {'0' if f == 0 else v(ACC+16*tl,16)}")
        for f in range(2):
            A(f"v_mfma_f32_32x32x16_bf16 {v(ACC+32+16*tl,16)}, {v(ONES,4)}, {v(PK+8*tl+4*f,4)}, {'0' if f == 0 else v(ACC+32+16*tl,16)}")
    A(f"s_lshl_b32 {s(sT0)}, {s(sW)}, 10"); A(f"s_add_u32 {s(sT0)}, {s(sT0)}, {SCR}")
    A(f"v_add_u32 {v(AD)}, {s(sT0)}, {v(vL16)}")
    A(f"s_add_u32 {s(sT0)}, {s(sMX)}, {SCR}")
    A(f"v_add_u32 {v(AD+1)}, {s(sT0)}, {v(vL16)}")
    A(f"s_lshl_b32 {s(sT0)}, {s(sW)}, 8"); A(f"s_add_u32 {s(sT0)}, {s(sT0)}, {SCR+16384}")
    A(f"v_lshl_add_u32 {v(AD+2)}, {v(vL)}, 2, {s(sT0)}")
    A(f"s_lshl_b32 {s(sT0)}, {s(sW)}, 6"); A(f"s_add_u32 {s(sT0)}, {s(sT0)}, {SCR+16384}")
    A(f"v_and_b32 {v(t0)}, 15, {v(vL)}")
    A(f"v_lshl_add_u32 {v(AD+3)}, {v(t0)}, 2, {s(sT0)}")
    A("s_mov_b32 exec_lo, 0xffff0000"); A("s_mov_b32 exec_hi, 0xffff0000")
    for tl in range(2):
        for q in range(4): A(f"v_mov_b64 {v(ACC+16*tl+2*q,2)}, {v(ACC+16*tl+8+2*q,2)}")
    A("s_mov_b32 exec_lo, 0"); A("s_mov_b32 exec_hi, -1")
    A(f"v_mov_b32 {v(ACC+32)}, {v(ACC+48)}")
    A("s_mov_b64 exec, -1")
    for qt in range(4):
        A(f"ds_write_b128 {v(AD)}, {v(ACC+16*(qt>>1)+4*(qt&1),4)} offset:{qt*4096}")
    A(f"ds_write_b32 {v(AD+2)}, {v(ACC+32)}")
    A.wait(vm=tok_wq)
    A.wait_all(vm=False)
    A("s_barrier")
    for q in range(4): tk = A(f"ds_read_b128 {v(ACC+4*q,4)}, {v(AD+1)} offset:{q*1024}")
    for q in range(4): tz = A(f"ds_read_b32 {v(ACC+16+q)}, {v(AD+3)} offset:{q*256}")
    A(f"s_lshl_b32 {s(sT2)}, {s(sJ)}, 2"); A(f"s_add_u32 {s(sT2)}, {s(sT2)}, {s(sW)}")
    A(f"s_lshl_b32 {s(sT3)}, {s(sT2)}, 4"); A(f"s_add_u32 {s(sT3)}, {s(sT3)}, {s(sC)}")
    A(f"s_lshl_b32 {s(sT0)}, {s(sT3)}, 10"); A(f"s_add_u32 {s(sT0)}, {s(sT0)}, {WS_KVP}")
    A(f"s_lshl_b32 {s(sT1)}, {s(sT3)}, 6"); A(f"s_add_u32 {s(sT1)}, {s(sT1)}, {WS_ZP}")
    A(f"v_lshlrev_b32 {v(AD+4)}, 2, {v(vL)}")
    A.wait(lg=tk)
    for e in (0, 2):
        A(f"v_pk_add_f32 {v(ACC+e,2)}, {v(ACC+e,2)}, {v(ACC+4+e,2)}")
        A(f"v_pk_add_f32 {v(ACC+8+e,2)}, {v(ACC+8+e,2)}, {v(ACC+12+e,2)}")
        A(f"v_pk_add_f32 {v(ACC+e,2)}, {v(ACC+e,2)}, {v(ACC+8+e,2)}")
    A(f"buffer_store_dwordx4 {v(ACC,4)}, {v(vL16)}, {s(R_WS,4)}, {s(sT0)} offen sc1")
    A.wait(lg=tz)
    A(f"v_pk_add_f32 {v(ACC+16,2)}, {v(ACC+16,2)}, {v(ACC+18,2)}")
    A(f"v_add_f32 {v(ACC+16)}, {v(ACC+16)}, {v(ACC+17)}")
    A("s_mov_b64 exec, 0xffff")
    tok_pub = A(f"buffer_store_dword {v(ACC+16)}, {v(AD+4)}, {s(R_WS,4)}, {s(sT1)} offen sc1")
    A("s_mov_b64 exec, -1")
    stamp(3)
    QA = TM2
    extra = wo_ops(0, 2) + wo_ops(1, 3)
    def qreads(ks):
        b = BUF + 8 * (ks % 4)
        L = []
        for tl in range(2):
            base = (ks // 4) * 8192 + (ks % 4) * 2048
            L.append(f"ds_read_b64_tr_b16 {v(b+4*tl,2)}, {v(RT+tl)} offset:{base}")
            L.append(f"ds_read_b64_tr_b16 {v(b+4*tl+2,2)}, {v(RT+tl)} offset:{base+512}")
        return L
    toks = [run(qreads(0)), run(qreads(1))]
    for ks in range(32):
        A.wait(lg=toks[ks])
        rd = qreads(ks + 2) if ks + 2 < 32 else []
        b = BUF + 8 * (ks % 4)
        tok = None
        for tl in range(2):
            A(f"v_mfma_f32_32x32x16_bf16 {v(QA+16*tl,16)}, {v(b+4*tl,4)}, {a(4*ks,4)}, {'1.0' if ks == 0 else v(QA+16*tl,16)}")
            for r in rd[2*tl:2*tl+2]: tok = A(r)
            if extra: A(extra.pop(0))
        toks.append(tok)
        if ks == 15:
            A(f"s_lshl_b32 {s(sCH)}, {s(sT2)}, 8"); A(f"s_lshl_b32 {s(sT3)}, {s(sC)}, 2"); A(f"s_add_u32 {s(sCH)}, {s(sCH)}, {WS_KVF}")
            A(f"s_add_u32 {s(sT3)}, {s(sT3)}, {s(sCH)}")
            A.wait(vm=tok_pub)
            A("s_mov_b64 exec, 1")
            A(f"buffer_store_dword {v(vTAG)}, {v(vZ)}, {s(R_WS,4)}, {s(sT3)} offen sc1")
            A("s_mov_b64 exec, -1")
    assert not extra
    PQ = TMP
    for tl in range(2): phi(QA + 16 * tl, PQ + 8 * tl)
    A.wait_all(vm=True, lg=True)
    A("s_barrier")
    run(c_ops(0)); run(c_ops(1))
    pre, L = wo_to_regs(2)
    run(pre); run(L)
    stamp(4)
    A(f"v_and_b32 {v(t4)}, 60, {v(AD+4)}")
    def ld(): A(f"buffer_load_dword {v(t0)}, {v(t4)}, {s(R_WS,4)}, {s(sCH)} offen sc1")
    def ck(): A(f"v_cmp_ne_u32 vcc, {v(t0)}, {v(vTAG)}")
    spin("L_pkv", ld, ck)
    stamp(5)
    A(f"s_lshl_b32 {s(sT0)}, {s(sT2)}, 14"); A(f"s_add_u32 {s(sT0)}, {s(sT0)}, {WS_KVP}")
    A(f"s_lshl_b32 {s(sT1)}, {s(sT2)}, 10"); A(f"s_add_u32 {s(sT1)}, {s(sT1)}, {WS_ZP}")
    for q in range(4): tz = A(f"buffer_load_dword {v(t0+q)}, {v(AD+4)}, {s(R_WS,4)}, {s(sT1)} offen offset:{q*256} sc1")
    toks = []
    for q in range(16):
        toks.append(A(f"buffer_load_dwordx4 {v(ACC+4*q,4)}, {v(vL16)}, {s(R_WS,4)}, {s(sT0)} offen offset:{(q%4)*1024} sc1"))
        if q % 4 == 3 and q < 15: A(f"s_add_u32 {s(sT0)}, {s(sT0)}, 4096")
    KVS, ZS = SCR + 20480, SCR + 22528
    A(f"s_lshr_b32 {s(sT0)}, {s(sW)}, 1"); A(f"s_lshl_b32 {s(sT0)}, {s(sT0)}, 10")
    A(f"s_lshl_b32 {s(sT1)}, {s(sKH)}, 3"); A(f"s_add_u32 {s(sT1)}, {s(sT1)}, {s(sT0)}"); A(f"s_add_u32 {s(sT1)}, {s(sT1)}, {KVS}")
    A(f"v_add_u32 {v(AD)}, {s(sT1)}, {v(vL16)}")
    A(f"s_lshl_b32 {s(sT1)}, {s(sKH)}, 5"); A(f"s_add_u32 {s(sT1)}, {s(sT1)}, {s(sT0)}"); A(f"s_add_u32 {s(sT1)}, {s(sT1)}, {ZS}")
    A(f"v_bfe_u32 {v(t4)}, {v(vL)}, 2, 1"); A(f"v_bfe_u32 {v(t5)}, {v(vL)}, 3, 1"); A(f"v_and_b32 {v(t6)}, 3, {v(vL)}")
    A(f"v_lshl_add_u32 {v(t6)}, {v(t6)}, 1, {s(sT1)}")
    A(f"v_lshl_add_u32 {v(t6)}, {v(t5)}, 3, {v(t6)}")
    A(f"v_lshl_add_u32 {v(AD+1)}, {v(t4)}, 4, {v(t6)}")
    A(f"v_add_u32 {v(AD+2)}, {KVS}, {v(vL16)}")
    A(f"v_mov_b32 {v(AD+3)}, {v(AD+2)}")
    A(f"v_lshrrev_b32 {v(t4)}, 5, {v(vL)}")
    A(f"v_lshlrev_b32 {v(t4)}, 4, {v(t4)}")
    A("s_mov_b32 exec_lo, 0xffff0000"); A("s_mov_b32 exec_hi, 0xffff0000")
    A(f"v_add_u32 {v(AD+2)}, {ZS}, {v(t4)}")
    A("s_mov_b32 exec_lo, 0x0000ffff"); A("s_mov_b32 exec_hi, 0x0000ffff")
    A(f"v_add_u32 {v(AD+3)}, {ZS+32}, {v(t4)}")
    A("s_mov_b64 exec, -1")
    A(f"v_bfe_u32 {v(t4)}, {v(vL)}, 2, 1"); A(f"v_bfe_u32 {v(t5)}, {v(vL)}, 3, 2"); A(f"v_and_b32 {v(t6)}, 35, {v(vL)}")
    A(f"v_lshl_add_u32 {v(t6)}, {v(t5)}, 2, {v(t6)}")
    A(f"v_lshl_add_u32 {v(t6)}, {v(t4)}, 4, {v(t6)}")
    A(f"v_lshlrev_b32 {v(AD+5)}, 4, {v(t6)}")
    A.wait(vm=tz)
    A(f"v_pk_add_f32 {v(t0,2)}, {v(t0,2)}, {v(t2,2)}")
    A(f"v_add_f32 {v(t0)}, {v(t0)}, {v(t1)}")
    A(f"v_mov_b32 {v(t1)}, {v(t0)}")
    A(f"v_permlane32_swap_b32 {v(t0)}, {v(t1)}")
    A(f"v_add_f32 {v(t0)}, {v(t0)}, {v(t1)}")
    A(f"v_mov_b32 {v(t1)}, {v(t0)}")
    A(f"v_permlane16_swap_b32 {v(t0)}, {v(t1)}")
    A(f"v_add_f32 {v(t0)}, {v(t0)}, {v(t1)}")
    A(f"v_cvt_pk_bf16_f32 {v(t0)}, {v(t0)}, {v(t0)}")
    A(f"ds_write_b16 {v(AD+1)}, {v(t0)}")
    for q in range(1, 16):
        A.wait(vm=toks[q])
        for e in (0, 2): A(f"v_pk_add_f32 {v(ACC+e,2)}, {v(ACC+e,2)}, {v(ACC+4*q+e,2)}")
    A(f"v_cvt_pk_bf16_f32 {v(t2)}, {v(ACC)}, {v(ACC+1)}")
    A(f"v_cvt_pk_bf16_f32 {v(t3)}, {v(ACC+2)}, {v(ACC+3)}")
    A(f"ds_write_b64 {v(AD)}, {v(t2,2)}")
    A.wait_all(vm=False)
    A("s_barrier")
    AF = TMP + 16
    toks = []
    for hd4 in range(4): toks.append(A(f"ds_read_b128 {v(AF+4*hd4,4)}, {v(AD+2+(hd4&1))} offset:{(hd4>>1)*1024}"))
    for hd4 in range(4):
        A.wait(lg=toks[hd4])
        A(f"v_mfma_f32_32x32x16_bf16 {v(ACC+16*hd4,16)}, {v(AF+4*hd4,4)}, {v(PQ+4*hd4,4)}, 0")
    A(f"s_mul_i32 {s(sT0)}, {s(sTT)}, 98304"); A(f"s_lshl_b32 {s(sT1)}, {s(sJ)}, 12"); A(f"s_add_u32 {s(sT0)}, {s(sT0)}, {s(sT1)}")
    A(f"s_add_u32 {s(sT0)}, {s(sT0)}, {WS_ACT+65536}")
    OP = TMP + 32
    for hd4 in range(4):
        hd = hd4 & 1
        nb_, db_ = ACC + 16 * hd4 + 8 * hd, ACC + 16 * hd4 + 8 * (1 - hd)
        A(f"v_add_f32 {v(db_)}, {s(sL2E+4)}, {v(db_)}")
        A(f"v_rcp_f32 {v(db_)}, {v(db_)}")
        for e in range(0, 8, 2): A(f"v_pk_mul_f32 {v(nb_+e,2)}, {v(nb_+e,2)}, {v(db_,2)} op_sel_hi:[1,0]")
        for e in range(0, 8, 2): A(f"v_cvt_pk_bf16_f32 {v(OP+4*hd4+e//2)}, {v(nb_+e)}, {v(nb_+e+1)}")
        tok_o = A(f"buffer_store_dwordx4 {v(OP+4*hd4,4)}, {v(AD+5)}, {s(R_WS,4)}, {s(sT0)} offen offset:{hd4*1024} sc1")
    A(f"s_lshl_b32 {s(sT2)}, {s(sTT)}, 9"); A(f"s_lshr_b32 {s(sT3)}, {s(sJ)}, 2"); A(f"s_lshl_b32 {s(sT3)}, {s(sT3)}, 8")
    A(f"s_add_u32 {s(sT2)}, {s(sT2)}, {s(sT3)}"); A(f"s_and_b32 {s(sT3)}, {s(sJ)}, 3"); A(f"s_lshl_b32 {s(sT3)}, {s(sT3)}, 2")
    A(f"s_add_u32 {s(sT2)}, {s(sT2)}, {s(sT3)}"); A(f"s_add_u32 {s(sT2)}, {s(sT2)}, {WS_OF}")
    run(c_ops(2)); run(c_ops(3))
    A.wait(vm=tok_o)
    A("s_mov_b64 exec, 1")
    A(f"buffer_store_dword {v(vTAG)}, {v(vZ)}, {s(R_WS,4)}, {s(sT2)} offen sc1")
    A("s_mov_b64 exec, -1")
    stamp(6)

    A.label("L_phase2")
    A.hist = []
    A("s_nop 1")
    sTT2 = sTT
    A(f"s_lshr_b32 {s(sT0)}, {s(sW)}, 1"); A(f"s_lshl_b32 {s(sTT2)}, {s(sRB)}, 1"); A(f"s_add_u32 {s(sTT2)}, {s(sTT2)}, {s(sT0)}")
    A(f"s_lshl_b32 {s(sT0)}, {s(sNB)}, 1"); A(f"s_add_u32 {s(sT0)}, {s(sT0)}, {s(sKH)}"); A(f"s_lshl_b32 {s(sT0)}, {s(sT0)}, 5")
    A(f"v_and_b32 {v(t0)}, 31, {v(vL)}")
    A(f"v_add_u32 {v(t0)}, {s(sT0)}, {v(t0)}")
    A(f"v_lshrrev_b32 {v(t1)}, 5, {v(vL)}")
    A(f"v_lshlrev_b32 {v(t2)}, 1, {v(t0)}")
    A(f"v_lshl_add_u32 {v(AD)}, {v(t1)}, 12, {v(t2)}")
    A(f"v_lshlrev_b32 {v(t3)}, 2, {v(t0)}")
    A(f"v_lshl_add_u32 {v(AD+1)}, {v(t1)}, 13, {v(t3)}")
    A(f"v_lshlrev_b32 {v(AD+2)}, 4, {v(t1)}")
    A(f"global_load_ushort {v(t4)}, {v(t2)}, {s(P_DSK,2)}")
    A(f"s_lshl_b32 {s(sT0)}, {s(sTT2)}, 15")
    for j in range(4):
        for i in range(4):
            tx = A(f"buffer_load_ushort {v(ACC+4*j+i)}, {v(AD)}, {s(R_X,4)}, {s(sT0)} offen offset:{i*1024}")
        if j < 3: A(f"s_add_u32 {s(sT0)}, {s(sT0)}, 8192")
    A(f"s_mul_i32 {s(sT0)}, {s(sKH)}, {65536+4096}")
    A(f"s_mul_i32 {s(sT1)}, {s(sKH)}, {65536-4096}"); A(f"s_add_u32 {s(sT1)}, {s(sT1)}, 4096")
    for q in range(4):
        A(f"v_add_u32 {v(RA+q)}, {s(sT0)}, {v(RN+q)}")
        A(f"v_add_u32 {v(RB+q)}, {s(sT1)}, {v(RN+q)}")
    A(f"s_lshl_b32 {s(sT2)}, {s(sTT2)}, 1"); A(f"s_add_u32 {s(sT2)}, {s(sT2)}, {s(sKH)}"); A(f"s_lshl_b32 {s(sT2)}, {s(sT2)}, 8")
    A(f"s_add_u32 {s(sT3)}, {s(sT2)}, {WS_HF}")
    A(f"v_and_b32 {v(AD+3)}, 3, {v(vL)}"); A(f"v_lshlrev_b32 {v(AD+3)}, 2, {v(AD+3)}")
    A.wait_all(vm=True, lg=True, force=True)
    A("s_barrier")
    A(f"v_lshlrev_b32 {v(t4)}, 16, {v(t4)}")
    for k in range(16): A(f"v_lshlrev_b32 {v(ACC+k)}, 16, {v(ACC+k)}")
    for k in range(0, 16, 2): A(f"v_pk_mul_f32 {v(ACC+k,2)}, {v(ACC+k,2)}, {v(t4,2)} op_sel_hi:[1,0]")
    def creads(ks):
        jb, m, st = ks >> 3, (ks >> 1) & 3, ks & 1
        ct, cp = m >> 1, m & 1
        b = BUF + 8 * (ks % 4)
        off = jb * 16384 + cp * 8192
        return [f"ds_read_b128 {v(b,4)}, {v(RA+2*ct+st)} offset:{off}", f"ds_read_b128 {v(b+4,4)}, {v(RB+2*ct+st)} offset:{off}"]
    ctok = [run(creads(k)) for k in range(3)]
    stamp(7)
    def ld(): A(f"buffer_load_dword {v(t0)}, {v(AD+3)}, {s(R_WS,4)}, {s(sT3)} offen sc1")
    def ck(): A(f"v_cmp_ne_u32 vcc, {v(t0)}, {v(vTAG)}")
    spin("L_ph", ld, ck)
    stamp(8)
    A(f"s_mul_i32 {s(sXB)}, {s(sTT2)}, 98304"); A(f"s_add_u32 {s(sXB)}, {s(sXB)}, {WS_ACT}")
    A(f"s_lshl_b32 {s(sT0)}, {s(sKH)}, 15"); A(f"s_add_u32 {s(sT0)}, {s(sT0)}, {s(sXB)}")
    def hload(ks):
        o = []
        if ks % 4 == 0 and ks: o.append(f"s_add_u32 {s(sT0)}, {s(sT0)}, 4096")
        o.append(f"buffer_load_dwordx4 {a(4*ks,4)}, {v(vL16)}, {s(R_WS,4)}, {s(sT0)} offen offset:{(ks%4)*1024} sc1")
        return o
    AHEAD = 14
    htok = [run(hload(k)) for k in range(AHEAD)]
    GG = TM2
    for ks in range(32):
        A.wait(vm=htok[ks], lg=ctok[ks])
        b = BUF + 8 * (ks % 4)
        A(f"v_mfma_f32_32x32x16_bf16 {v(ACC,16)}, {a(4*ks,4)}, {v(b,4)}, {v(ACC,16)}")
        if ks + AHEAD < 32: htok.append(run(hload(ks + AHEAD)))
        if ks + AHEAD == 32:
            A(f"s_lshl_b32 {s(sT0)}, {s(sKH)}, 13"); A(f"s_lshl_b32 {s(sT1)}, {s(sTT2)}, 7"); A(f"s_add_u32 {s(sT0)}, {s(sT0)}, {s(sT1)}")
            A(f"s_add_u32 {s(sT0)}, {s(sT0)}, {WS_G}")
            for j in range(4): tg = A(f"buffer_load_dwordx4 {v(GG+4*j,4)}, {v(AD+2)}, {s(R_WS,4)}, {s(sT0)} offen offset:{j*32} sc1")
        A(f"v_mfma_f32_32x32x16_bf16 {v(ACC+16,16)}, {a(4*ks,4)}, {v(b+4,4)}, {'0' if ks == 0 else v(ACC+16,16)}")
        if ks + 3 < 32: ctok.append(run(creads(ks + 3)))
    stamp(9)
    A(f"s_add_u32 {s(sT3)}, {s(sT2)}, {WS_OF}")
    spin("L_po", ld, ck)
    stamp(10)
    A(f"s_lshl_b32 {s(sT0)}, {s(sKH)}, 14"); A(f"s_add_u32 {s(sT0)}, {s(sT0)}, {s(sXB)}"); A(f"s_add_u32 {s(sT0)}, {s(sT0)}, 65536")
    otok = []
    for ks in range(16):
        if ks % 4 == 0 and ks: A(f"s_add_u32 {s(sT0)}, {s(sT0)}, 4096")
        otok.append(A(f"buffer_load_dwordx4 {v(TMP+4*ks,4)}, {v(vL16)}, {s(R_WS,4)}, {s(sT0)} offen offset:{(ks%4)*1024} sc1"))
    for tl in range(2):
        for k in range(0, 16, 2): A(f"v_pk_mul_f32 {v(ACC+16*tl+k,2)}, {v(ACC+16*tl+k,2)}, {v(GG+k,2)}")
    for k in range(0, 16, 2): A(f"v_pk_add_f32 {v(GG+k,2)}, {v(GG+k,2)}, 1.0 op_sel_hi:[1,0] neg_lo:[1,0] neg_hi:[1,0]")
    A(f"s_xor_b32 {s(sT0)}, {s(sMX)}, 4096"); A(f"s_add_u32 {s(sT0)}, {s(sT0)}, {SCR}")
    A(f"v_add_u32 {v(AD+4)}, {s(sT0)}, {v(vL16)}")
    A(f"v_xor_b32 {v(AD+5)}, 4096, {v(AD+4)}")
    for ks in range(16):
        A.wait(vm=otok[ks])
        for tl in (1, 0):
            A(f"v_mfma_f32_32x32x16_bf16 {v(ACC+32+16*tl,16)}, {v(TMP+4*ks,4)}, {a(128+8*ks+4*tl,4)}, {'0' if ks == 0 else v(ACC+32+16*tl,16)}")
    stamp(11)
    for k in range(0, 16, 2):
        A(f"v_pk_fma_f32 {v(ACC+16+k,2)}, {v(ACC+48+k,2)}, {v(GG+k,2)}, {v(ACC+16+k,2)}")
        if k % 4 == 2: A(f"ds_write_b128 {v(AD+4)}, {v(ACC+16+k-2,4)} offset:{(k//4)*1024}")
    for k in range(0, 16, 2): A(f"v_pk_fma_f32 {v(ACC+k,2)}, {v(ACC+32+k,2)}, {v(GG+k,2)}, {v(ACC+k,2)}")
    A(f"s_lshl_b32 {s(sT0)}, {s(sTT2)}, 16")
    A.wait_all(vm=False)
    A("s_barrier")
    toks = [A(f"ds_read_b128 {v(ACC+32+4*j,4)}, {v(AD+5)} offset:{j*1024}") for j in range(4)]
    for j in range(4):
        A.wait(lg=toks[j])
        for e in (0, 2): A(f"v_pk_add_f32 {v(ACC+4*j+e,2)}, {v(ACC+4*j+e,2)}, {v(ACC+32+4*j+e,2)}")
        A(f"s_add_u32 {s(sT1)}, {s(sT0)}, 4096")
        for i in range(4):
            A(f"buffer_store_dword {v(ACC+4*j+i)}, {v(AD+1)}, {s(R_OUT,4)}, {s(sT0 if i < 2 else sT1)} offen offset:{(i%2)*2048}")
        if j < 3: A(f"s_add_u32 {s(sT0)}, {s(sT0)}, 16384")
    A(f"s_lshl_b32 {s(sT0)}, {s(sNB)}, 2"); A(f"s_add_u32 {s(sT0)}, {s(sT0)}, {s(sW)}"); A(f"s_lshl_b32 {s(sT0)}, {s(sT0)}, 5"); A(f"s_add_u32 {s(sT0)}, {s(sT0)}, {s(sRB)}")
    A(f"s_cmp_eq_u32 {s(sT0)}, 31")
    A("s_cbranch_scc0 L_fin")
    A("s_mov_b64 exec, 1")
    A(f"buffer_store_dword {v(vTAG)}, {v(vZ)}, {s(R_WS,4)}, 0 offen sc1")
    A("s_mov_b64 exec, -1")
    A.label("L_fin")
    if stamps:
        A("s_waitcnt vmcnt(0)")
        stamp(12)
        A("s_waitcnt lgkmcnt(0)")
        A(f"s_lshl_b32 {s(sT0)}, {s(sWG)}, 2"); A(f"s_add_u32 {s(sT0)}, {s(sT0)}, {s(sW)}"); A(f"s_lshl_b32 {s(sT0)}, {s(sT0)}, 6")
        A(f"s_add_u32 {s(sT0)}, {s(sT0)}, {WS_STAMP}")
        for i in range(14):
            A(f"v_mov_b32 {v(t0)}, {s(SREG[i] if i < 13 else sTY)}")
            A(f"buffer_store_dword {v(t0)}, {v(vZ)}, {s(R_WS,4)}, {s(sT0)} offen offset:{4*i}")
    A.label("L_end")
    hdr = open(os.path.join(os.path.dirname(__file__), "header.txt")).read()
    src = hdr + f"; @launch grid=(256,1,1) block=(256,1,1) lds={LDS_BYTES}\n" + f""".amdgcn_target "amdgcn-amd-amdhsa--gfx950"
.text
.globl {KNAME}
.p2align 8
.type {KNAME},@function
{KNAME}:
{A.text()}
    s_endpgm
.section .rodata,"a"
.p2align 6
.amdhsa_kernel {KNAME}
  .amdhsa_next_free_vgpr 512
  .amdhsa_next_free_sgpr 102
  .amdhsa_accum_offset 256
  .amdhsa_group_segment_fixed_size 0
  .amdhsa_kernarg_size 128
  .amdhsa_user_sgpr_count 2
  .amdhsa_user_sgpr_kernarg_segment_ptr 1
  .amdhsa_system_sgpr_workgroup_id_x 1
.end_amdhsa_kernel
"""
    return src, A

if __name__ == "__main__":
    out = sys.argv[1]
    opt = {}
    for kv in sys.argv[3:]:
        k_, v_ = kv.split('='); opt[k_] = int(v_)
    src, A = gen(stamps=len(sys.argv) > 2 and sys.argv[2] == 'stamps', opt=opt)
    open(out, "w").write(src)
    print("lines", len(A.out), "nops", A.nops)
```

```python
import sys, re
sys.path.insert(0, "tools")
import gen as G
K = G.KNAME
def make(src, out, i, j, mode, ty, mult):
    m = re.search(r"; @launch (grid=\S+ block=\S+ lds=\d+)\n", src)
    lines = f"; @launch kernel={K} {m.group(1)}\n; @launch kernel=diag_kernel grid=(1,1,1) block=(64,1,1) lds=0\n"
    src = src.replace(m.group(0), lines)
    L = []
    A = L.append
    A("s_cmp_lg_u32 s2, 0"); A("s_cbranch_scc1 D_end")
    A("s_load_dwordx2 s[4:5], s[0:1], 120"); A("s_waitcnt lgkmcnt(0)")
    A(f"s_add_u32 s4, s4, {G.WS_STAMP}"); A("s_addc_u32 s5, s5, 0")
    A("v_lshlrev_b32 v1, 10, v0")
    for q in range(16):
        A(f"global_load_dword v{10+q}, v1, s[4:5] offset:{q*64+4*i}")
        A(f"global_load_dword v{30+q}, v1, s[4:5] offset:{q*64+4*j}")
        A(f"global_load_dword v{50+q}, v1, s[4:5] offset:{q*64+4*13}")
    A("s_waitcnt vmcnt(0)")
    if mode == 'span':
        for q in range(1, 16):
            A(f"v_min_u32 v10, v10, v{10+q}"); A(f"v_max_u32 v30, v30, v{30+q}")
        A("s_nop 1"); A("v_readlane_b32 s6, v10, 0"); A("v_readlane_b32 s7, v30, 0")
        for l in range(1, 64):
            A(f"v_readlane_b32 s8, v10, {l}"); A(f"v_readlane_b32 s9, v30, {l}"); A("s_nop 1")
            A("s_min_u32 s6, s6, s8"); A("s_max_u32 s7, s7, s9")
        A("s_sub_u32 s6, s7, s6")
        A(f"s_mul_i32 s6, s6, {mult}")
    else:
        A("v_mov_b32 v2, 0")
        for q in range(16):
            A(f"v_sub_u32 v3, v{30+q}, v{10+q}")
            A(f"v_cmp_eq_u32 vcc, {ty}, v{50+q}"); A("s_nop 1")
            A("v_cndmask_b32 v3, 0, v3, vcc"); A("v_add_u32 v2, v2, v3")
        A("s_mov_b32 s6, 0"); A("s_nop 1")
        for l in range(64):
            A(f"v_readlane_b32 s8, v2, {l}"); A("s_nop 1"); A("s_add_u32 s6, s6, s8")
        A(f"s_mul_i32 s6, s6, {mult}"); A("s_lshr_b32 s6, s6, 9")
    A("s_min_u32 s6, s6, 100000")
    A("s_memrealtime s[10:11]"); A("s_waitcnt lgkmcnt(0)")
    A("D_spin:"); A("s_memrealtime s[12:13]"); A("s_waitcnt lgkmcnt(0)")
    A("s_sub_u32 s14, s12, s10"); A("s_cmp_lt_u32 s14, s6"); A("s_cbranch_scc1 D_spin")
    A("D_end:")
    src += """
.text
.globl diag_kernel
.p2align 8
.type diag_kernel,@function
diag_kernel:
""" + "\n".join(L) + """
    s_endpgm
.section .rodata,"a"
.p2align 6
.amdhsa_kernel diag_kernel
  .amdhsa_next_free_vgpr 72
  .amdhsa_next_free_sgpr 32
  .amdhsa_accum_offset 72
  .amdhsa_group_segment_fixed_size 0
  .amdhsa_kernarg_size 128
  .amdhsa_user_sgpr_count 2
  .amdhsa_user_sgpr_kernarg_segment_ptr 1
  .amdhsa_system_sgpr_workgroup_id_x 1
.end_amdhsa_kernel
"""
    open(out, "w").write(src)
if __name__ == "__main__":
    opt = {}
    for kv in sys.argv[1].split(','):
        if '=' in kv:
            k_, v_ = kv.split('='); opt[k_] = [int(x) for x in v_.split('/')] if '/' in v_ else int(v_)
    src, _ = G.gen(stamps=True, opt=opt)
    specs = sys.argv[2:]
    for n, sp in enumerate(specs):
        i, j, mode, ty, mult = sp.split(",")
        make(src, f"d{n}.s", int(i), int(j), mode, int(ty), int(mult))
```

```python
import sys, os
sys.path.insert(0, os.path.dirname(__file__))
from asmlib import *

KNAME = "gated_mix__ssm_conv_s5__linear_attn_block__prompt_kernel"

WS_EPOCH = 0
WS_KVF   = 0x1000
WS_HF    = 0x4000
WS_OF    = 0xC000
WS_G     = 0x14000
WS_ZP    = 0x18000
WS_AGG   = 0x20000
WS_KVP   = 0x40000
WS_STAMP = 0xC0000
WS_ACT   = 0x100000
WS_SIZE  = WS_ACT + 64 * 98304
SCR = 131072
LDS_BYTES = 163840
SPIN = 1 << 17

def gen(stamps=False, opt=None):
    opt = opt or {}
    A = Asm()
    P_X, P_LRE, P_LIM, P_BRE, P_BIM, P_CRE, P_CIM, P_LDT = 4, 6, 8, 10, 12, 14, 16, 18
    P_DSK, P_BX, P_QKV, P_WO, P_GW, P_OUT, P_DBG, P_WS = 20, 22, 24, 26, 28, 30, 32, 34
    R_X, R_W, R_WS, R_C, R_WO, R_OUT = 36, 40, 44, 48, 52, 56
    sW, sC, sJ, sK0, sRB, sNB, sTAG, sTY = 60, 61, 62, 63, 64, 65, 66, 67
    sXB, sWB, sWST, sCH, sT0, sT1, sT2, sT3 = 68, 69, 70, 71, 72, 73, 74, 75
    sMX, sMW, sCNT, sTT, sKH, sM8 = 76, 77, 78, 79, 80, 81
    sL2E = 82
    sST = 88
    vL = 0; vZ = 1; vE = 2
    t0, t1, t2, t3, t4, t5, t6, t7 = 4, 5, 6, 7, 8, 9, 10, 11
    vTAG = 12; vL16 = 13
    ACC = 16; BUF = 80; TMP = 112; TM2 = 176
    VX, VW, VN, VK1 = 208, 212, 216, 220
    RX, RN, RT = 224, 228, 232
    RW = 234
    RA, RB = 236, 240
    AD = 244
    SREG = [88, 90, 92, 94, 96, 98, 22, 32, 6, 8, 10, 12, 14]
    sWG = 100
    names = opt.get('stamps') or [0, 1, 2, 3, 4, 5, 6, 7, 8, 9, 10, 11, 12]
    def stamp(i):
        if stamps and i in names:
            A(f"{'s_memtime' if opt.get('cyc') else 's_memrealtime'} {s(SREG[names.index(i)], 2)}")

    stamp(0)
    A("s_load_dwordx16 s[4:19], s[0:1], 0")
    A("s_load_dwordx16 s[20:35], s[0:1], 64")
    if opt.get('kfirst'):
        A("s_waitcnt lgkmcnt(0)")
        stamp(19)
    A("s_cmp_ge_u32 s2, 256")
    A("s_cbranch_scc1 L_end")
    A(f"v_lshrrev_b32 {v(t0)}, 6, v0")
    A(f"v_and_b32 {v(vL)}, 63, v0")
    A(f"v_readfirstlane_b32 {s(sW)}, {v(t0)}")
    A(f"v_mov_b32 {v(vZ)}, 0")
    A(f"s_and_b32 {s(sT0)}, s2, 7")
    A(f"s_lshr_b32 {s(sT1)}, s2, 3")
    A(f"s_and_b32 {s(sT2)}, {s(sT1)}, 7")
    A(f"s_lshr_b32 {s(sT3)}, {s(sT1)}, 3")
    A(f"s_and_b32 {s(sC)}, {s(sT0)}, 1"); A(f"s_lshl_b32 {s(sC)}, {s(sC)}, 3"); A(f"s_add_u32 {s(sC)}, {s(sC)}, {s(sT2)}")
    A(f"s_and_b32 {s(sTY)}, {s(sT3)}, 1")
    A(f"s_and_b32 {s(sJ)}, {s(sT0)}, 6"); A(f"s_lshr_b32 {s(sK0)}, {s(sT3)}, 1"); A(f"s_add_u32 {s(sJ)}, {s(sJ)}, {s(sK0)}")
    A(f"s_lshl_b32 {s(sK0)}, {s(sT3)}, 1"); A(f"s_add_u32 {s(sK0)}, {s(sK0)}, {s(sT2)}"); A(f"s_and_b32 {s(sK0)}, {s(sK0)}, 7")
    G_ = opt.get('G', 8)
    if G_ != 8:
        A(f"s_add_u32 {s(sK0)}, {s(sT3)}, {s(sT2)}"); A(f"s_and_b32 {s(sK0)}, {s(sK0)}, {G_-1}"); A(f"s_mul_i32 {s(sK0)}, {s(sK0)}, {8//G_}")
    A(f"s_lshl_b32 {s(sRB)}, {s(sT0)}, 2"); A(f"s_add_u32 {s(sRB)}, {s(sRB)}, {s(sT3)}")
    A(f"s_mov_b32 {s(sNB)}, {s(sT2)}")
    if stamps:
        A(f"s_mov_b32 {s(sWG)}, s2")
    A(f"v_lshrrev_b32 {v(t0)}, 3, {v(vL)}")
    A(f"v_and_b32 {v(t1)}, 7, {v(vL)}")
    A(f"v_lshrrev_b32 {v(t2)}, 1, {v(t0)}")
    A(f"v_xor_b32 {v(t3)}, {v(t1)}, {v(t2)}")
    A(f"v_lshlrev_b32 {v(t3)}, 4, {v(t3)}")
    A(f"v_and_b32 {v(t2)}, 1, {v(t2)}")
    A(f"v_lshlrev_b32 {v(t2)}, 2, {v(t2)}")
    A(f"v_xor_b32 {v(t4)}, {v(t1)}, {v(t2)}")
    A(f"v_lshlrev_b32 {v(t4)}, 4, {v(t4)}")
    A(f"v_lshrrev_b32 {v(t5)}, 2, {v(t0)}")
    A(f"v_and_b32 {v(t6)}, 3, {v(t0)}")
    A(f"v_lshl_add_u32 {v(t5)}, {v(t5)}, 4, {v(t6)}")
    A(f"v_lshl_add_u32 {v(VX)}, {v(t5)}, 10, {v(t3)}")
    A(f"v_xor_b32 {v(t5)}, 64, {v(VX)}")
    A(f"v_add_u32 {v(VX+1)}, {3072}, {v(t5)}")
    A(f"v_add_u32 {v(VX+2)}, {2*3072}, {v(VX)}")
    A(f"v_add_u32 {v(VX+3)}, {3*3072}, {v(t5)}")
    A(f"v_lshl_add_u32 {v(VN)}, {v(t0)}, 10, {v(t3)}")
    A(f"v_xor_b32 {v(t5)}, 64, {v(VN)}")
    A(f"v_add_u32 {v(VN+1)}, {7168}, {v(t5)}")
    A(f"v_add_u32 {v(VN+2)}, {2*7168}, {v(VN)}")
    A(f"v_add_u32 {v(VN+3)}, {3*7168}, {v(t5)}")
    A(f"v_lshl_add_u32 {v(VK1)}, {v(t0)}, 10, {v(t4)}")
    for q in (1, 2, 3): A(f"v_add_u32 {v(VK1+q)}, {q*7168}, {v(VK1)}")
    A(f"v_mul_u32_u24 {v(t5)}, 3072, {v(t0)}")
    A(f"v_add_u32 {v(VW)}, {v(t5)}, {v(t4)}")
    for q in (1, 2, 3): A(f"v_add_u32 {v(VW+q)}, {q*(8*3072-1024)}, {v(VW)}")
    A(f"s_lshl_b32 {s(sMX)}, {s(sW)}, 12")
    A(f"s_lshl_b32 {s(sM8)}, {s(sW)}, 13")
    A(f"s_add_u32 {s(sMW)}, {s(sMX)}, 16384")
    A(f"s_lshl_b32 {s(sTT)}, {s(sC)}, 2"); A(f"s_add_u32 {s(sTT)}, {s(sTT)}, {s(sW)}")
    A(f"s_lshl_b32 {s(sXB)}, {s(sTT)}, 15")
    A(f"s_mov_b32 {s(R_X+2)}, 0x200000"); A(f"s_mov_b32 {s(R_X+3)}, 0x20000")
    A(f"s_mov_b32 {s(R_W+3)}, 0x20000")
    A(f"s_mov_b32 {s(R_WS+2)}, {WS_SIZE}"); A(f"s_mov_b32 {s(R_WS+3)}, 0x20000")
    A(f"s_mov_b32 {s(R_C+2)}, 0x80000"); A(f"s_mov_b32 {s(R_C+3)}, 0x20000")
    A(f"s_mov_b32 {s(R_WO+2)}, 0x80000"); A(f"s_mov_b32 {s(R_WO+3)}, 0x20000")
    A(f"s_mov_b32 {s(R_OUT+2)}, 0x400000"); A(f"s_mov_b32 {s(R_OUT+3)}, 0x20000")
    stamp(18)
    A(f"s_cmp_eq_u32 {s(sTY)}, 0")
    A("s_cbranch_scc0 L_attn")
    snap0 = A.snapshot()

    def common_srds():
        A("s_waitcnt lgkmcnt(0)")
        stamp(20)
        A(f"s_mov_b64 {s(R_X,2)}, {s(P_X,2)}")
        A(f"s_mov_b64 {s(R_WS,2)}, {s(P_WS,2)}")

    def late_srds():
        A(f"s_mov_b64 {s(R_WO,2)}, {s(P_WO,2)}")
        A(f"s_mov_b64 {s(R_OUT,2)}, {s(P_OUT,2)}")
        A(f"s_bitcmp1_b32 {s(sW)}, 0")
        A(f"s_cselect_b64 {s(R_C,2)}, {s(P_CIM,2)}, {s(P_CRE,2)}")

    def dma4(voff, srd, soff, m0expr):
        ops = [m0expr]
        for q in range(4):
            off = f" offset:{q*1024}" if q else ""
            ops.append(f"buffer_load_dwordx4 {v(voff+q)}, {s(srd,4)}, {s(soff)} offen{off} lds")
        return ops

    def unit_ops(i):
        slot = (i % 4) * 32768
        ops = []
        if i == 0: ops.append(f"s_mov_b32 {s(sCH)}, {s(sK0)}")
        else:
            ops.append(f"s_add_u32 {s(sCH)}, {s(sCH)}, 1"); ops.append(f"s_and_b32 {s(sCH)}, {s(sCH)}, 7")
        ops.append(f"s_lshl_b32 {s(sT0)}, {s(sCH)}, 7"); ops.append(f"s_add_u32 {s(sT0)}, {s(sT0)}, {s(sXB)}")
        ops.append(f"s_mul_i32 {s(sT1)}, {s(sCH)}, {s(sWST)}"); ops.append(f"s_add_u32 {s(sT1)}, {s(sT1)}, {s(sWB)}")
        ops += dma4(VX, R_X, sT0, f"s_add_u32 m0, {s(sMX)}, {slot}")
        ops += dma4(VW, R_W, sT1, f"s_add_u32 m0, {s(sMW)}, {slot}")
        return ops

    def unit8_ops(voff, srd, pre, slot, rowstep):
        ops = list(pre)
        ops.append(f"s_add_u32 {s(sT1)}, {s(sT0)}, {rowstep}")
        ops += dma4(voff, srd, sT0, f"s_add_u32 m0, {s(sM8)}, {slot*32768}")
        ops += dma4(voff, srd, sT1, f"s_add_u32 m0, {s(sM8)}, {slot*32768+4096}")
        return ops

    def wq_ops(u):
        pre = [f"s_add_u32 {s(sT0)}, {s(sK0)}, {s(sW)}", f"s_add_u32 {s(sT0)}, {s(sT0)}, {4*u}", f"s_and_b32 {s(sT0)}, {s(sT0)}, 7",
               f"s_mul_i32 {s(sT0)}, {s(sT0)}, {64*3072}", f"s_lshl_b32 {s(sT1)}, {s(sJ)}, 7", f"s_add_u32 {s(sT0)}, {s(sT0)}, {s(sT1)}"]
        return unit8_ops(VW, R_W, pre, u, 32 * 3072)
    def wo_ops(u, slot):
        pre = [f"s_lshl_b32 {s(sT0)}, {s(sW)}, 16", f"s_lshl_b32 {s(sT1)}, {s(sNB)}, 7", f"s_add_u32 {s(sT0)}, {s(sT0)}, {s(sT1)}"]
        if u: pre.append(f"s_add_u32 {s(sT0)}, {s(sT0)}, {256*1024}")
        return unit8_ops(VK1, R_WO, pre, slot, 32 * 1024)
    def c_ops(u):
        pre = [f"s_lshr_b32 {s(sT0)}, {s(sW)}, 1", f"s_lshl_b32 {s(sT0)}, {s(sT0)}, 7", f"s_lshl_b32 {s(sT1)}, {s(sNB)}, 16",
               f"s_add_u32 {s(sT0)}, {s(sT0)}, {s(sT1)}"]
        if u: pre.append(f"s_add_u32 {s(sT0)}, {s(sT0)}, {u*256}")
        return unit8_ops(VN, R_C, pre, u, 32 * 1024)

    def touches():
        if not opt.get('touch'): return
        ssm = cur[0] == 'ssm'
        A(f"v_and_b32 {v(t0)}, 7, {v(vL)}"); A(f"v_lshrrev_b32 {v(t1)}, 3, {v(vL)}")
        A(f"v_lshlrev_b32 {v(t1)}, 7, {v(t1)}"); A(f"v_lshl_add_u32 {v(t0)}, {v(t0)}, 10, {v(t1)}")
        A(f"s_and_b32 {s(sT0)}, {s(sRB)}, 3"); A(f"s_lshl_b32 {s(sT0)}, {s(sT0)}, 15"); A(f"s_add_u32 {s(sT0)}, {s(sT0)}, {s(sM8)}")
        A(f"s_lshl_b32 {s(sT1)}, {s(sC)}, 17"); A(f"s_add_u32 {s(sT0)}, {s(sT0)}, {s(sT1)}")
        A(f"v_and_b32 {v(t2)}, 3, {v(vL)}"); A(f"v_lshrrev_b32 {v(t3)}, 2, {v(vL)}")
        st = 1024 if ssm else 3072
        A(f"v_mul_u32_u24 {v(t2)}, {st}, {v(t2)}")
        A(f"v_mul_u32_u24 {v(t3)}, {128 if ssm else 64*3072}, {v(t3)}")
        A(f"v_add_u32 {v(t2)}, {v(t2)}, {v(t3)}")
        A(f"s_mul_i32 {s(sT1)}, {s(sNB)}, {4*st}"); A(f"s_add_u32 {s(sT1)}, {s(sT1)}, {s(sWB)}")
        groups = {1: [(1, 8)], 2: [(1, 3), (3, 5), (5, 8)], 3: [(2, 4), (4, 6), (6, 8)], 4: [(2, 8)]}[opt['touch']]
        for (c0, c1) in groups:
            mx = ((1 << (8 * c1)) - 1) ^ ((1 << (8 * c0)) - 1)
            mw = ((1 << (4 * c1)) - 1) ^ ((1 << (4 * c0)) - 1)
            A(f"s_mov_b32 exec_lo, {mx & 0xffffffff:#x}"); A(f"s_mov_b32 exec_hi, {mx >> 32:#x}")
            A(f"buffer_load_dword {v(15)}, {v(t0)}, {s(R_X,4)}, {s(sT0)} offen")
            A(f"s_mov_b32 exec_lo, {mw & 0xffffffff:#x}"); A(f"s_mov_b32 exec_hi, 0")
            A(f"buffer_load_dword {v(15)}, {v(t2)}, {s(R_W,4)}, {s(sT1)} offen")
        A("s_mov_b64 exec, -1")
    cur = ['ssm']

    def run(ops):
        tok = None
        for o in ops:
            r = A(o)
            if r is not None: tok = r
        return tok

    def read_addr_regs():
        A(f"v_and_b32 {v(t0)}, 31, {v(vL)}")
        A(f"v_lshrrev_b32 {v(t1)}, 5, {v(vL)}")
        A(f"v_bfe_u32 {v(t2)}, {v(vL)}, 1, 3")
        A(f"v_xor_b32 {v(t2)}, {v(t2)}, {v(t1)}")
        A(f"v_lshlrev_b32 {v(t2)}, 4, {v(t2)}")
        A(f"v_lshl_add_u32 {v(RN)}, {v(t0)}, 7, {v(t2)}")
        for q in (1, 2, 3): A(f"v_xor_b32 {v(RN+q)}, {q*32}, {v(RN)}")
        for q in range(4): A(f"v_add_u32 {v(RX+q)}, {s(sMX)}, {v(RN+q)}")
        A(f"v_bfe_u32 {v(t2)}, {v(vL)}, 2, 2")
        A(f"v_bfe_u32 {v(t3)}, {v(vL)}, 3, 1")
        A(f"v_bfe_u32 {v(t4)}, {v(vL)}, 4, 1")
        A(f"v_and_b32 {v(t5)}, 3, {v(vL)}")
        A(f"v_lshlrev_b32 {v(t5)}, 3, {v(t5)}")
        A(f"v_lshl_add_u32 {v(t5)}, {v(t4)}, 5, {v(t5)}")
        A(f"v_lshl_add_u32 {v(t5)}, {v(t3)}, 6, {v(t5)}")
        A(f"v_lshl_add_u32 {v(t5)}, {v(t2)}, 7, {v(t5)}")
        A(f"v_lshl_add_u32 {v(RT)}, {v(t1)}, 10, {v(t5)}")
        A(f"v_xor_b32 {v(RT+1)}, 64, {v(RT)}")
        A(f"v_lshl_add_u32 {v(RW)}, {v(t1)}, 9, {v(t5)}")
        A(f"v_lshlrev_b32 {v(vL16)}, 4, {v(vL)}")
        A(f"s_and_b32 {s(sKH)}, {s(sW)}, 1")

    def main_loop(kind, tail_units):
        def reads(i, st):
            slot = (i % 2) * 32768
            b = BUF + 16 * ((4 * i + st) % 2)
            L = [f"ds_read_b128 {a(16*i+4*st,4)}, {v(RX+st)} offset:{slot}"]
            for tl in range(4):
                if kind == 'ssm':
                    L.append(f"ds_read_b128 {v(b+4*tl,4)}, {v(RN+st)} offset:{slot+16384+tl*4096}")
                else:
                    base = slot + 16384 + (tl >> 1) * 8192 + st * 2048
                    L.append(f"ds_read_b64_tr_b16 {v(b+4*tl,2)}, {v(RT+(tl&1))} offset:{base}")
                    L.append(f"ds_read_b64_tr_b16 {v(b+4*tl+2,2)}, {v(RT+(tl&1))} offset:{base+512}")
            return L
        def mfmas(i, st):
            b = BUF + 16 * ((4 * i + st) % 2)
            L = []
            for tl in range(4):
                c = v(ACC + 16 * tl, 16)
                if i == 0 and st == 0: c = "1.0" if (kind == 'attn' and tl < 2) else "0"
                L.append(f"v_mfma_f32_32x32x16_bf16 {v(ACC+16*tl,16)}, {a(16*i+4*st,4)}, {v(b+4*tl,4)}, {c}")
            return L
        prev = None
        for i in range(8):
            if i in (2, 4, 6):
                for q in range(4): A(f"v_xor_b32 {v(RX+q)}, 0x10000, {v(RX+q)}")
                if kind == 'ssm':
                    for q in range(4): A(f"v_xor_b32 {v(RN+q)}, 0x10000, {v(RN+q)}")
                else:
                    for q in range(2): A(f"v_xor_b32 {v(RT+q)}, 0x10000, {v(RT+q)}")
            A.wait(vm=utok[i])
            A("s_barrier")
            stamp(30 + i)
            nxt = unit_ops(i + 2) if i + 2 < 8 else tail_units[i - 6]
            nxt = list(nxt)
            if opt.get('nodma'): nxt = [o for o in nxt if 'buffer_load' not in o]
            per = (len(nxt) + 15) // 16
            if opt.get('per'): per = opt['per']
            for st in range(4):
                rd = reads(i, st)
                if opt.get('noreads') and i: rd = rd[:1]
                if prev is None:
                    tok = run(rd); prev = (i, st, tok); continue
                ms = mfmas(prev[0], prev[1])
                A.wait(lg=prev[2])
                n = (len(rd) + 3) // 4
                tok = None
                for tl in range(4):
                    if not opt.get('nomfma'): A(ms[tl])
                    for r in rd[tl*n:(tl+1)*n]: tok = A(r)
                    for _ in range(per):
                        if nxt:
                            r = A(nxt.pop(0))
                prev = (i, st, tok)
            for o in nxt: A(o)
            utok.append(A.vm)
        A.wait(lg=prev[2])
        run(mfmas(prev[0], prev[1]))
        if kind == 'ssm':
            for q in range(4): A(f"v_xor_b32 {v(RN+q)}, 0x10000, {v(RN+q)}")
        else:
            for q in range(2): A(f"v_xor_b32 {v(RT+q)}, 0x10000, {v(RT+q)}")

    def get_tag(tok):
        A.wait(vm=tok)
        A(f"v_readfirstlane_b32 {s(sTAG)}, {v(vE)}")
        A(f"s_mul_i32 {s(sTAG)}, {s(sTAG)}, 0x9E3779B5")
        A(f"s_add_u32 {s(sTAG)}, {s(sTAG)}, 0x7F4A7C15")
        A(f"v_mov_b32 {v(vTAG)}, {s(sTAG)}")

    def cmul(dst, x, y, add=None):
        if add is None:
            A(f"v_pk_mul_f32 {v(dst,2)}, {v(x,2)}, {v(y,2)} op_sel_hi:[0,1]")
        else:
            A(f"v_pk_fma_f32 {v(dst,2)}, {v(x,2)}, {v(y,2)}, {v(add,2)} op_sel_hi:[0,1,1]")
        A(f"v_pk_fma_f32 {v(dst,2)}, {v(x,2)}, {v(y,2)}, {v(dst,2)} op_sel:[1,1,0] op_sel_hi:[1,0,1] neg_lo:[0,1,0]")

    def wo_to_regs(slot0):
        L = []
        for st in range(16):
            for tl in range(2):
                d = 128 + 8 * st + 4 * tl
                L.append(f"ds_read_b64_tr_b16 {a(d,2)}, {v(RW+tl)} offset:{st*2048}")
                L.append(f"ds_read_b64_tr_b16 {a(d+2,2)}, {v(RW+tl)} offset:{st*2048+1024}")
        pre = [f"s_lshl_b32 {s(sT0)}, {s(sKH)}, 15", f"s_add_u32 {s(sT0)}, {s(sT0)}, {slot0*32768}",
               f"s_lshl_b32 {s(sT1)}, {s(sKH)}, 6",
               f"v_xor_b32 {v(RW)}, {s(sT1)}, {v(RW)}", f"v_add_u32 {v(RW)}, {s(sT0)}, {v(RW)}", f"v_xor_b32 {v(RW+1)}, 64, {v(RW)}"]
        return pre, L

    def spin(name, load, check):
        A(f"s_mov_b32 {s(sCNT)}, {SPIN}")
        A.label(name)
        load()
        A.wait_all(vm=True, lg=False, force=True)
        check()
        A(f"s_sub_u32 {s(sCNT)}, {s(sCNT)}, 1")
        A(f"s_cbranch_scc1 {name}_x")
        A(f"s_cbranch_vccnz {name}")
        A.label(name + "_x")

    for q in range(4): A(f"v_mov_b32 {v(VW+q)}, {v(VN+q)}")
    A(f"s_mov_b32 {s(sWST)}, 128")
    A(f"s_lshr_b32 {s(sT0)}, {s(sW)}, 1"); A(f"s_lshl_b32 {s(sT0)}, {s(sT0)}, 15")
    A(f"s_lshl_b32 {s(sWB)}, {s(sJ)}, 16"); A(f"s_add_u32 {s(sWB)}, {s(sWB)}, {s(sT0)}")
    A(f"s_mov_b32 {s(R_W+2)}, 0x80000")
    A(f"s_lshl_b32 {s(sT0)}, {s(sJ)}, 7")
    A(f"v_lshl_add_u32 {v(t7)}, {v(vL)}, 1, {s(sT0)}")
    common_srds()
    A(f"s_bitcmp1_b32 {s(sW)}, 0")
    A(f"s_cselect_b64 {s(R_W,2)}, {s(P_BIM,2)}, {s(P_BRE,2)}")
    tokE = A(f"global_load_dword {v(vE)}, {v(vZ)}, {s(P_WS,2)} sc1")
    PR = TM2
    pLRE, pLIM, pLDT = PR, PR + 1, PR + 2
    A(f"global_load_ushort {v(pLRE)}, {v(t7)}, {s(P_LRE,2)}")
    A(f"global_load_ushort {v(pLIM)}, {v(t7)}, {s(P_LIM,2)}")
    tokP = A(f"global_load_ushort {v(pLDT)}, {v(t7)}, {s(P_LDT,2)}")
    utok = []
    run(unit_ops(0)); utok.append(A.vm)
    stamp(21)
    touches()
    if opt.get('bar01'): A("s_barrier")
    run(unit_ops(1)); utok.append(A.vm)
    stamp(22)
    late_srds()
    read_addr_regs()
    L1, KK, L16, L32, L128 = PR + 4, PR + 6, PR + 8, PR + 10, PR + 12
    LT, KT = PR + 14, PR + 18
    WG_ = PR + 22
    A.wait(vm=tokP)
    get_tag(tokE)
    A(f"v_lshlrev_b32 {v(pLRE)}, 16, {v(pLRE)}")
    A(f"v_lshlrev_b32 {v(pLIM)}, 16, {v(pLIM)}")
    A(f"v_lshlrev_b32 {v(pLDT)}, 16, {v(pLDT)}")
    A(f"v_xor_b32 {v(pLIM)}, 0x80000000, {v(pLIM)}")
    A(f"v_mul_f32 {v(t0)}, 0x3fb8aa3b, {v(pLDT)}")
    A(f"v_exp_f32 {v(t0)}, {v(t0)}")
    A(f"v_cvt_pk_bf16_f32 {v(t0)}, {v(t0)}, {v(t0)}")
    A(f"v_and_b32 {v(t0)}, 0xffff0000, {v(t0)}")
    A(f"v_mul_f32 {v(t1)}, {v(t0)}, {v(pLRE)}")
    A(f"v_mul_f32 {v(t2)}, {v(t0)}, {v(pLIM)}")
    A(f"v_mul_f32 {v(t1)}, 0x3fb8aa3b, {v(t1)}")
    A(f"v_exp_f32 {v(t1)}, {v(t1)}")
    A(f"v_mul_f32 {v(t2)}, 0.15915494, {v(t2)}")
    A(f"v_rndne_f32 {v(t3)}, {v(t2)}")
    A(f"v_sub_f32 {v(t2)}, {v(t2)}, {v(t3)}")
    A(f"v_cos_f32 {v(t3)}, {v(t2)}")
    A(f"v_sin_f32 {v(t4)}, {v(t2)}")
    A(f"v_mul_f32 {v(L1)}, {v(t1)}, {v(t3)}")
    A(f"v_mul_f32 {v(L1+1)}, {v(t1)}, {v(t4)}")
    A(f"v_mul_f32 {v(t0)}, {v(pLRE)}, {v(pLRE)}")
    A(f"v_fmac_f32 {v(t0)}, {v(pLIM)}, {v(pLIM)}")
    A(f"v_rcp_f32 {v(t0)}, {v(t0)}")
    A(f"v_add_f32 {v(t1)}, -1.0, {v(L1)}")
    A(f"v_add_f32 {v(t0)}, {v(t0)}, {v(t0)}")
    A(f"v_mul_f32 {v(t2)}, {v(t1)}, {v(pLRE)}")
    A(f"v_fmac_f32 {v(t2)}, {v(L1+1)}, {v(pLIM)}")
    A(f"v_mul_f32 {v(t3)}, {v(L1+1)}, {v(pLRE)}")
    A(f"v_fma_f32 {v(t3)}, -{v(t1)}, {v(pLIM)}, {v(t3)}")
    A(f"v_mul_f32 {v(KK)}, {v(t2)}, {v(t0)}")
    A(f"v_mul_f32 {v(KK+1)}, {v(t3)}, {v(t0)}")
    cmul(t0, L1, L1); cmul(t2, t0, t0); cmul(t0, t2, t2); cmul(L16, t0, t0)
    cmul(L32, L16, L16); cmul(t0, L32, L32); cmul(L128, t0, t0)
    for (src, dst) in ((L1, LT), (KK, KT)):
        for e in range(2):
            A(f"v_mov_b32 {v(dst+e)}, {v(src+e)}")
            A(f"v_mov_b32 {v(dst+2+e)}, {v(src+e)}")
        for e in range(2):
            A(f"v_permlane32_swap_b32 {v(dst+e)}, {v(dst+2+e)}")
    WS_ = t6
    WSEG = PR + 30
    cmul(t0, L128, L128); cmul(t2, t0, t0)
    A(f"v_mov_b32 {v(WG_)}, 1.0"); A(f"v_mov_b32 {v(WG_+1)}, 0")
    A(f"v_mov_b32 {v(WSEG)}, 1.0"); A(f"v_mov_b32 {v(WSEG+1)}, 0")
    for q in range(3):
        A(f"s_cmp_gt_u32 {s(sW)}, {q}")
        A("s_cselect_b64 exec, -1, 0")
        cmul(t0, WG_, t2); A(f"v_mov_b64 {v(WG_,2)}, {v(t0,2)}")
        cmul(t0, WSEG, L32); A(f"v_mov_b64 {v(WSEG,2)}, {v(t0,2)}")
    A("s_mov_b64 exec, -1")
    for q in range(1, 4): cmul(WG_ + 2 * q, WG_ + 2 * q - 2, L128)
    stamp(1)
    main_loop('ssm', [wo_ops(0, 0), wo_ops(1, 1)])
    stamp(2)
    tok_wo = A.vm
    U = TMP
    def upair(ct, k): return U + 32 * ct + 2 * k
    E0 = t0
    for k in range(16):
        for ct in range(2):
            re, im = ACC + 32 * ct + (k & ~1), ACC + 32 * ct + 16 + (k & ~1)
            b = k & 1
            A(f"v_pk_mul_f32 {v(upair(ct,k),2)}, {v(re,2)}, {v(KT+2*ct,2)} op_sel:[{b},0] op_sel_hi:[{b},1]")
            A(f"v_pk_fma_f32 {v(upair(ct,k),2)}, {v(im,2)}, {v(KT+2*ct,2)}, {v(upair(ct,k),2)} op_sel:[{b},1,0] op_sel_hi:[{b},0,1] neg_hi:[0,1,0]")
            if k == 0: continue
            src = upair(ct, 0) if k == 1 else (t0 + 2 * ct if k % 2 == 0 else t4 + 2 * ct)
            dst = t0 + 2 * ct if k % 2 == 1 else t4 + 2 * ct
            cmul(dst, src, LT + 2 * ct, upair(ct, k))
    A(f"v_permlane32_swap_b32 {v(t0)}, {v(t2)}")
    A(f"v_permlane32_swap_b32 {v(t1)}, {v(t3)}")
    EA = ACC
    A(f"v_mov_b64 {v(EA,2)}, {v(t0,2)}")
    cmul(t2, t0, L16, t2)
    A(f"v_lshlrev_b32 {v(AD)}, 3, {v(vL)}")
    A(f"s_lshl_b32 {s(sT0)}, {s(sW)}, 9")
    A(f"v_add_u32 {v(AD)}, {SCR}, {v(AD)}")
    A(f"v_add_u32 {v(AD+1)}, {s(sT0)}, {v(AD)}")
    A(f"ds_write_b64 {v(AD+1)}, {v(t2,2)}")
    A.wait_all(vm=False)
    A("s_barrier")
    EW = ACC + 2
    for q in range(4): tok = A(f"ds_read_b64 {v(EW+2*q,2)}, {v(AD)} offset:{q*512}")
    A.wait(lg=tok)
    PF = ACC + 10
    cmul(PF, EW, L32, EW + 2)
    cmul(PF + 2, PF, L32, EW + 4)
    cmul(PF + 4, PF + 2, L32, EW + 6)
    GR = ACC + 16
    A(f"v_mov_b32 {v(GR)}, {v(PF+4)}"); A(f"v_mov_b32 {v(GR+1)}, {v(vTAG)}")
    A(f"v_mov_b32 {v(GR+2)}, {v(PF+5)}"); A(f"v_mov_b32 {v(GR+3)}, {v(vTAG)}")
    A(f"s_lshl_b32 {s(sT2)}, {s(sJ)}, 4"); A(f"s_add_u32 {s(sT2)}, {s(sT2)}, {s(sC)}"); A(f"s_lshl_b32 {s(sT2)}, {s(sT2)}, 10")
    A(f"s_add_u32 {s(sT2)}, {s(sT2)}, {WS_AGG}")
    A(f"s_cmp_eq_u32 {s(sW)}, 0")
    A("s_cselect_b64 exec, -1, 0")
    A(f"buffer_store_dwordx4 {v(GR,4)}, {v(vL16)}, {s(R_WS,4)}, {s(sT2)} offen sc1")
    A("s_mov_b64 exec, -1")
    stamp(3)
    run(c_ops(2)); run(c_ops(3))
    PW = ACC + 20
    A(f"v_mov_b32 {v(PW)}, 0"); A(f"v_mov_b32 {v(PW+1)}, 0")
    for q, src in ((1, EW), (2, PF), (3, PF + 2)):
        A(f"s_cmp_eq_u32 {s(sW)}, {q}")
        A("s_cselect_b64 exec, -1, 0")
        A(f"v_mov_b64 {v(PW,2)}, {v(src,2)}")
    A("s_mov_b64 exec, -1")
    A(f"s_and_b32 {s(sT0)}, {s(sJ)}, 3")
    A(f"s_cmp_eq_u32 {s(sT0)}, 0")
    A("s_cbranch_scc0 L_nogate")
    snapg = A.snapshot()
    GD = ACC + 32
    A(f"global_load_dwordx4 {v(GD,4)}, {v(vL16)}, {s(P_GW,2)}")
    A(f"s_lshl_b32 {s(sT0)}, {s(sW)}, 11")
    A(f"s_add_u32 {s(sT0)}, {s(sT0)}, {SCR+4096}")
    A(f"v_add_u32 {v(AD+2)}, {s(sT0)}, {v(vL16)}")
    A(f"s_lshl_b32 {s(sT1)}, {s(sK0)}, 7"); A(f"s_add_u32 {s(sT0)}, {s(sT0)}, {s(sT1)}")
    A(f"v_lshrrev_b32 {v(AD+3)}, 5, {v(vL)}")
    A(f"v_lshl_add_u32 {v(AD+3)}, {v(AD+3)}, 4, {s(sT0)}")
    A.wait_all(vm=True, lg=False)
    A(f"ds_write_b128 {v(AD+2)}, {v(GD,4)}")
    A(f"ds_write_b128 {v(AD+2)}, {v(GD,4)} offset:1024")
    A.wait_all(vm=False)
    toks = []
    for st in range(8): toks.append(A(f"ds_read_b128 {v(BUF+4*st,4)}, {v(AD+3)} offset:{st*32}"))
    for st in range(32):
        A.wait(lg=toks[st])
        A(f"v_mfma_f32_32x32x16_bf16 {v(GD,16)}, {v(BUF+4*(st%8),4)}, {a(4*st,4)}, {'0' if st == 0 else v(GD,16)}")
        if st + 8 < 32: toks.append(A(f"ds_read_b128 {v(BUF+4*(st%8),4)}, {v(AD+3)} offset:{(st+8)*32}"))
    A(f"v_bfe_u32 {v(t0)}, {v(vL)}, 2, 1"); A(f"v_bfe_u32 {v(t1)}, {v(vL)}, 3, 2"); A(f"v_and_b32 {v(t2)}, 3, {v(vL)}")
    A(f"v_lshlrev_b32 {v(t2)}, 2, {v(t2)}")
    A(f"v_lshl_add_u32 {v(t2)}, {v(t1)}, 4, {v(t2)}")
    A(f"v_lshl_add_u32 {v(t2)}, {v(t0)}, 6, {v(t2)}")
    A(f"s_lshl_b32 {s(sT0)}, {s(sJ)}, 11"); A(f"s_lshl_b32 {s(sT1)}, {s(sTT)}, 7"); A(f"s_add_u32 {s(sT0)}, {s(sT0)}, {s(sT1)}")
    A(f"s_add_u32 {s(sT0)}, {s(sT0)}, {WS_G}")
    A(f"v_mul_f32 {v(t0)}, 0xbfb8aa3b, {v(GD)}")
    A(f"v_exp_f32 {v(t0)}, {v(t0)}")
    A(f"v_add_f32 {v(t0)}, 1.0, {v(t0)}")
    A(f"v_rcp_f32 {v(t0)}, {v(t0)}")
    A("s_mov_b64 exec, 0xffffffff")
    A("s_nop 0")
    A(f"buffer_store_dword {v(t0)}, {v(t2)}, {s(R_WS,4)}, {s(sT0)} offen sc1")
    A("s_mov_b64 exec, -1")
    A.label("L_nogate")
    A.restore(snapg)
    A("s_nop 7"); A("s_nop 3")
    A.wait_all(vm=True, lg=True, force=True)
    A("s_barrier")
    pre, L = wo_to_regs(0)
    run(pre); run(L)
    LB = ACC + 32
    so = [sT0, sT1, sT3, sCH]
    for q in range(4):
        A(f"s_lshl_b32 {s(so[q])}, {s(sW)}, 2"); A(f"s_add_u32 {s(so[q])}, {s(so[q])}, {q+1}")
        A(f"s_cmp_le_u32 {s(so[q])}, {s(sC)}")
        A(f"s_cselect_b32 {s(so[q])}, {s(so[q])}, 0")
        A(f"s_lshl_b32 {s(so[q])}, {s(so[q])}, 10")
        A(f"s_sub_u32 {s(so[q])}, {s(sT2)}, {s(so[q])}")
    def ld():
        for q in range(4): A(f"buffer_load_dwordx4 {v(LB+4*q,4)}, {v(vL16)}, {s(R_WS,4)}, {s(so[q])} offen sc1")
    def ck():
        A(f"v_xor_b32 {v(t0)}, {v(LB+1)}, {v(vTAG)}")
        for r in (3, 5, 7, 9, 11, 13, 15):
            A(f"v_bitop3_b32 {v(t0)}, {v(t0)}, {v(LB+r)}, {v(vTAG)} bitop3:0xf6")
        A(f"v_cmp_ne_u32 vcc, 0, {v(t0)}")
    spin("L_pagg", ld, ck)
    stamp(4)
    A(f"v_mov_b32 {v(t0)}, 0"); A(f"v_mov_b32 {v(t1)}, 0")
    for q in range(4):
        A(f"s_cmp_lg_u32 {s(so[q])}, {s(sT2)}")
        A("s_cselect_b64 exec, -1, 0")
        A(f"v_pk_fma_f32 {v(t0,2)}, {v(LB+4*q,2)}, {v(WG_+2*q,2)}, {v(t0,2)} op_sel_hi:[0,1,1]")
        A(f"v_pk_fma_f32 {v(t0,2)}, {v(LB+4*q+2,2)}, {v(WG_+2*q,2)}, {v(t0,2)} op_sel:[0,1,0] op_sel_hi:[0,0,1] neg_lo:[0,1,0]")
    A("s_mov_b64 exec, -1")
    A(f"ds_write_b64 {v(AD+1)}, {v(t0,2)} offset:2048")
    A.wait_all(vm=False)
    A("s_barrier")
    for q in range(4): tok = A(f"ds_read_b64 {v(EW+2*q,2)}, {v(AD)} offset:{2048+q*512}")
    A(f"v_and_b32 {v(t4)}, 31, {v(vL)}")
    A(f"v_lshrrev_b32 {v(t5)}, 5, {v(vL)}")
    A(f"v_bfe_u32 {v(t6)}, {v(vL)}, 1, 2")
    A(f"v_lshlrev_b32 {v(t7)}, 1, {v(t5)}")
    A(f"v_xor_b32 {v(t6)}, {v(t6)}, {v(t7)}")
    A(f"v_lshlrev_b32 {v(t6)}, 4, {v(t6)}")
    A(f"v_lshl_add_u32 {v(t6)}, {v(t4)}, 6, {v(t6)}")
    A(f"v_add_u32 {v(AD+2)}, {s(sM8)}, {v(t6)}")
    A(f"v_xor_b32 {v(AD+3)}, 16, {v(AD+2)}")
    A(f"v_bfe_u32 {v(t4)}, {v(vL)}, 2, 2")
    A(f"v_lshl_add_u32 {v(t4)}, {v(t5)}, 3, {v(t4)}")
    A(f"v_bfe_u32 {v(t6)}, {v(vL)}, 4, 1"); A(f"v_bfe_u32 {v(t7)}, {v(vL)}, 1, 1")
    A(f"v_lshl_add_u32 {v(t6)}, {v(t6)}, 1, {v(t7)}")
    A(f"v_bfe_u32 {v(t7)}, {v(vL)}, 3, 1")
    A(f"v_xor_b32 {v(t6)}, {v(t6)}, {v(t7)}")
    A(f"v_lshlrev_b32 {v(t6)}, 4, {v(t6)}")
    A(f"v_lshl_add_u32 {v(t6)}, {v(t4)}, 6, {v(t6)}")
    A(f"v_and_b32 {v(t7)}, 1, {v(vL)}")
    A(f"v_lshl_add_u32 {v(t6)}, {v(t7)}, 3, {v(t6)}")
    A(f"v_add_u32 {v(AD+4)}, {s(sM8)}, {v(t6)}")
    A(f"v_xor_b32 {v(AD+5)}, 32, {v(AD+4)}")
    A.wait(lg=tok)
    A(f"v_pk_add_f32 {v(EW,2)}, {v(EW,2)}, {v(EW+2,2)}")
    A(f"v_pk_add_f32 {v(EW+4,2)}, {v(EW+4,2)}, {v(EW+6,2)}")
    A(f"v_pk_add_f32 {v(EW,2)}, {v(EW,2)}, {v(EW+4,2)}")
    cmul(t0, EW, WSEG, PW)
    cmul(t2, t0, L16, EA)
    A(f"v_permlane32_swap_b32 {v(t0)}, {v(t2)}")
    A(f"v_permlane32_swap_b32 {v(t1)}, {v(t3)}")
    HP = ACC + 32
    for k in range(16):
        for ct in range(2):
            src = t0 + 2 * ct if k == 0 else upair(ct, k - 1)
            cmul(upair(ct, k), src, LT + 2 * ct, upair(ct, k))
        if k & 1:
            for ct in range(2):
                for cp in range(2):
                    A(f"v_cvt_pk_bf16_f32 {v(HP+8*(2*ct+cp)+k//2)}, {v(upair(ct,k-1)+cp)}, {v(upair(ct,k)+cp)}")
        if k in (7, 15):
            for m in range(4):
                A(f"ds_write_b128 {v(AD+2+k//8)}, {v(HP+8*m+4*(k//8),4)} offset:{m*2048}")
    A.wait_all(vm=False)
    HT = TMP
    toks = []
    for f in range(8):
        A(f"ds_read_b64_tr_b16 {v(HT+4*f,2)}, {v(AD+4)} offset:{f*1024}")
        toks.append(A(f"ds_read_b64_tr_b16 {v(HT+4*f+2,2)}, {v(AD+5)} offset:{f*1024+256}"))
    A(f"s_mul_i32 {s(sT0)}, {s(sTT)}, 98304"); A(f"s_lshl_b32 {s(sT1)}, {s(sJ)}, 13"); A(f"s_add_u32 {s(sT0)}, {s(sT0)}, {s(sT1)}")
    A(f"s_add_u32 {s(sT0)}, {s(sT0)}, {WS_ACT}"); A(f"s_add_u32 {s(sT1)}, {s(sT0)}, 4096")
    for f in range(8):
        A.wait(lg=toks[f])
        A(f"buffer_store_dwordx4 {v(HT+4*f,4)}, {v(vL16)}, {s(R_WS,4)}, {s(sT0 if f < 4 else sT1)} offen offset:{(f%4)*1024} sc1")
    A(f"s_lshl_b32 {s(sT0)}, {s(sTT)}, 9"); A(f"s_lshr_b32 {s(sT1)}, {s(sJ)}, 2"); A(f"s_lshl_b32 {s(sT1)}, {s(sT1)}, 8")
    A(f"s_add_u32 {s(sT0)}, {s(sT0)}, {s(sT1)}"); A(f"s_and_b32 {s(sT1)}, {s(sJ)}, 3"); A(f"s_lshl_b32 {s(sT1)}, {s(sT1)}, 2")
    A(f"s_add_u32 {s(sT0)}, {s(sT0)}, {s(sT1)}"); A(f"s_add_u32 {s(sT0)}, {s(sT0)}, {WS_HF}")
    stamp(5)
    A.wait_all(vm=True, lg=True)
    A("s_mov_b64 exec, 1")
    A(f"buffer_store_dword {v(vTAG)}, {v(vZ)}, {s(R_WS,4)}, {s(sT0)} offen sc1")
    A("s_mov_b64 exec, -1")
    stamp(6)
    A("s_barrier")
    run(c_ops(0)); run(c_ops(1))
    A("s_branch L_phase2")

    A.restore(snap0)
    A.label("L_attn")
    cur[0] = 'attn'
    A(f"s_mov_b32 {s(sWST)}, {64*3072}")
    A(f"s_and_b32 {s(sT0)}, {s(sW)}, 1"); A(f"s_mul_i32 {s(sT0)}, {s(sT0)}, {32*3072}")
    A(f"s_lshr_b32 {s(sT1)}, {s(sW)}, 1"); A(f"s_lshl_b32 {s(sT1)}, {s(sT1)}, 10"); A(f"s_add_u32 {s(sT0)}, {s(sT0)}, {s(sT1)}")
    A(f"s_lshl_b32 {s(sT1)}, {s(sJ)}, 7"); A(f"s_add_u32 {s(sT0)}, {s(sT0)}, {s(sT1)}"); A(f"s_add_u32 {s(sWB)}, {s(sT0)}, 1024")
    A(f"s_mov_b32 {s(R_W+2)}, 0x180000")
    common_srds()
    A(f"s_mov_b64 {s(R_W,2)}, {s(P_QKV,2)}")
    tokE = A(f"global_load_dword {v(vE)}, {v(vZ)}, {s(P_WS,2)} sc1")
    utok = []
    run(unit_ops(0)); utok.append(A.vm)
    stamp(21)
    touches()
    if opt.get('bar01'): A("s_barrier")
    run(unit_ops(1)); utok.append(A.vm)
    stamp(22)
    late_srds()
    read_addr_regs()
    A(f"s_mov_b32 {s(sL2E)}, 0x3fb8aa3b"); A(f"s_mov_b32 {s(sL2E+1)}, 0x3fb8aa3b")
    A(f"s_mov_b32 {s(sL2E+4)}, 0x358637bd"); A(f"s_mov_b32 {s(sL2E+5)}, 0x358637bd")
    NL = AD + 10
    A(f"v_mov_b32 {v(NL)}, 0xbfb8aa3b"); A(f"v_mov_b32 {v(NL+1)}, 0xbfb8aa3b")
    ONES = TMP + 48
    for q in range(4): A(f"v_mov_b32 {v(ONES+q)}, 0x3f803f80")
    get_tag(tokE)
    stamp(1)
    main_loop('attn', [wq_ops(0), wq_ops(1)])
    stamp(2)
    tok_wq = A.vm
    def phi(src, dst):
        for k in range(0, 16, 2):
            tt = t0 + 2 * ((k // 2) % 4)
            A(f"v_pk_fma_f32 {v(tt,2)}, {v(src+k,2)}, {s(sL2E,2)}, {v(NL,2)}")
            A(f"v_exp_f32 {v(tt)}, {v(tt)} clamp")
            A(f"v_exp_f32 {v(tt+1)}, {v(tt+1)} clamp")
            if k >= 2:
                pp = t0 + 2 * ((k // 2 - 1) % 4)
                fin(src + k - 2, pp, dst + k // 2 - 1)
        fin(src + 14, t0 + 2 * (7 % 4), dst + 7)
    def fin(sr, pp, d):
        A(f"v_max_f32 {v(pp)}, {v(pp)}, {v(sr)}")
        A(f"v_max_f32 {v(pp+1)}, {v(pp+1)}, {v(sr+1)}")
        A(f"v_pk_add_f32 {v(pp,2)}, {v(pp,2)}, {s(sL2E+4,2)}")
        A(f"v_cvt_pk_bf16_f32 {v(d)}, {v(pp)}, {v(pp+1)}")
    PK, PV = TMP, TMP + 16
    for tl in range(2):
        phi(ACC + 16 * tl, PK + 8 * tl)
        for k in range(8): A(f"v_cvt_pk_bf16_f32 {v(PV+8*tl+k)}, {v(ACC+32+16*tl+2*k)}, {v(ACC+32+16*tl+2*k+1)}")
        for f in range(2):
            A(f"v_mfma_f32_32x32x16_bf16 {v(ACC+16*tl,16)}, {v(PK+8*tl+4*f,4)}, {v(PV+8*tl+4*f,4)}, {'0' if f == 0 else v(ACC+16*tl,16)}")
        for f in range(2):
            A(f"v_mfma_f32_32x32x16_bf16 {v(ACC+32+16*tl,16)}, {v(ONES,4)}, {v(PK+8*tl+4*f,4)}, {'0' if f == 0 else v(ACC+32+16*tl,16)}")
    A(f"s_lshl_b32 {s(sT0)}, {s(sW)}, 10"); A(f"s_add_u32 {s(sT0)}, {s(sT0)}, {SCR}")
    A(f"v_add_u32 {v(AD)}, {s(sT0)}, {v(vL16)}")
    A(f"s_add_u32 {s(sT0)}, {s(sMX)}, {SCR}")
    A(f"v_add_u32 {v(AD+1)}, {s(sT0)}, {v(vL16)}")
    A(f"s_lshl_b32 {s(sT0)}, {s(sW)}, 8"); A(f"s_add_u32 {s(sT0)}, {s(sT0)}, {SCR+16384}")
    A(f"v_lshl_add_u32 {v(AD+2)}, {v(vL)}, 2, {s(sT0)}")
    A(f"s_lshl_b32 {s(sT0)}, {s(sW)}, 6"); A(f"s_add_u32 {s(sT0)}, {s(sT0)}, {SCR+16384}")
    A(f"v_and_b32 {v(t0)}, 15, {v(vL)}")
    A(f"v_lshl_add_u32 {v(AD+3)}, {v(t0)}, 2, {s(sT0)}")
    A("s_mov_b32 exec_lo, 0xffff0000"); A("s_mov_b32 exec_hi, 0xffff0000")
    for tl in range(2):
        for q in range(4): A(f"v_mov_b64 {v(ACC+16*tl+2*q,2)}, {v(ACC+16*tl+8+2*q,2)}")
    A("s_mov_b32 exec_lo, 0"); A("s_mov_b32 exec_hi, -1")
    A(f"v_mov_b32 {v(ACC+32)}, {v(ACC+48)}")
    A("s_mov_b64 exec, -1")
    for qt in range(4):
        A(f"ds_write_b128 {v(AD)}, {v(ACC+16*(qt>>1)+4*(qt&1),4)} offset:{qt*4096}")
    A(f"ds_write_b32 {v(AD+2)}, {v(ACC+32)}")
    A.wait(vm=tok_wq)
    A.wait_all(vm=False)
    A("s_barrier")
    for q in range(4): tk = A(f"ds_read_b128 {v(ACC+4*q,4)}, {v(AD+1)} offset:{q*1024}")
    for q in range(4): tz = A(f"ds_read_b32 {v(ACC+16+q)}, {v(AD+3)} offset:{q*256}")
    A(f"s_lshl_b32 {s(sT2)}, {s(sJ)}, 2"); A(f"s_add_u32 {s(sT2)}, {s(sT2)}, {s(sW)}")
    A(f"s_lshl_b32 {s(sT3)}, {s(sT2)}, 4"); A(f"s_add_u32 {s(sT3)}, {s(sT3)}, {s(sC)}")
    A(f"s_lshl_b32 {s(sT0)}, {s(sT3)}, 10"); A(f"s_add_u32 {s(sT0)}, {s(sT0)}, {WS_KVP}")
    A(f"s_lshl_b32 {s(sT1)}, {s(sT3)}, 6"); A(f"s_add_u32 {s(sT1)}, {s(sT1)}, {WS_ZP}")
    A(f"v_lshlrev_b32 {v(AD+4)}, 2, {v(vL)}")
    A.wait(lg=tk)
    for e in (0, 2):
        A(f"v_pk_add_f32 {v(ACC+e,2)}, {v(ACC+e,2)}, {v(ACC+4+e,2)}")
        A(f"v_pk_add_f32 {v(ACC+8+e,2)}, {v(ACC+8+e,2)}, {v(ACC+12+e,2)}")
        A(f"v_pk_add_f32 {v(ACC+e,2)}, {v(ACC+e,2)}, {v(ACC+8+e,2)}")
    A(f"buffer_store_dwordx4 {v(ACC,4)}, {v(vL16)}, {s(R_WS,4)}, {s(sT0)} offen sc1")
    A.wait(lg=tz)
    A(f"v_pk_add_f32 {v(ACC+16,2)}, {v(ACC+16,2)}, {v(ACC+18,2)}")
    A(f"v_add_f32 {v(ACC+16)}, {v(ACC+16)}, {v(ACC+17)}")
    A("s_mov_b64 exec, 0xffff")
    tok_pub = A(f"buffer_store_dword {v(ACC+16)}, {v(AD+4)}, {s(R_WS,4)}, {s(sT1)} offen sc1")
    A("s_mov_b64 exec, -1")
    stamp(3)
    QA = TM2
    extra = wo_ops(0, 2) + wo_ops(1, 3)
    def qreads(ks):
        b = BUF + 8 * (ks % 4)
        L = []
        for tl in range(2):
            base = (ks // 4) * 8192 + (ks % 4) * 2048
            L.append(f"ds_read_b64_tr_b16 {v(b+4*tl,2)}, {v(RT+tl)} offset:{base}")
            L.append(f"ds_read_b64_tr_b16 {v(b+4*tl+2,2)}, {v(RT+tl)} offset:{base+512}")
        return L
    toks = [run(qreads(0)), run(qreads(1))]
    for ks in range(32):
        A.wait(lg=toks[ks])
        rd = qreads(ks + 2) if ks + 2 < 32 else []
        b = BUF + 8 * (ks % 4)
        tok = None
        for tl in range(2):
            A(f"v_mfma_f32_32x32x16_bf16 {v(QA+16*tl,16)}, {v(b+4*tl,4)}, {a(4*ks,4)}, {'1.0' if ks == 0 else v(QA+16*tl,16)}")
            for r in rd[2*tl:2*tl+2]: tok = A(r)
            if extra: A(extra.pop(0))
        toks.append(tok)
        if ks == 15:
            A(f"s_lshl_b32 {s(sCH)}, {s(sT2)}, 8"); A(f"s_lshl_b32 {s(sT3)}, {s(sC)}, 2"); A(f"s_add_u32 {s(sCH)}, {s(sCH)}, {WS_KVF}")
            A(f"s_add_u32 {s(sT3)}, {s(sT3)}, {s(sCH)}")
            A.wait(vm=tok_pub)
            A("s_mov_b64 exec, 1")
            A(f"buffer_store_dword {v(vTAG)}, {v(vZ)}, {s(R_WS,4)}, {s(sT3)} offen sc1")
            A("s_mov_b64 exec, -1")
    assert not extra
    PQ = TMP
    for tl in range(2): phi(QA + 16 * tl, PQ + 8 * tl)
    A.wait_all(vm=True, lg=True)
    A("s_barrier")
    run(c_ops(0)); run(c_ops(1))
    pre, L = wo_to_regs(2)
    run(pre); run(L)
    stamp(4)
    A(f"v_and_b32 {v(t4)}, 60, {v(AD+4)}")
    def ld(): A(f"buffer_load_dword {v(t0)}, {v(t4)}, {s(R_WS,4)}, {s(sCH)} offen sc1")
    def ck(): A(f"v_cmp_ne_u32 vcc, {v(t0)}, {v(vTAG)}")
    spin("L_pkv", ld, ck)
    stamp(5)
    A(f"s_lshl_b32 {s(sT0)}, {s(sT2)}, 14"); A(f"s_add_u32 {s(sT0)}, {s(sT0)}, {WS_KVP}")
    A(f"s_lshl_b32 {s(sT1)}, {s(sT2)}, 10"); A(f"s_add_u32 {s(sT1)}, {s(sT1)}, {WS_ZP}")
    for q in range(4): tz = A(f"buffer_load_dword {v(t0+q)}, {v(AD+4)}, {s(R_WS,4)}, {s(sT1)} offen offset:{q*256} sc1")
    toks = []
    for q in range(16):
        toks.append(A(f"buffer_load_dwordx4 {v(ACC+4*q,4)}, {v(vL16)}, {s(R_WS,4)}, {s(sT0)} offen offset:{(q%4)*1024} sc1"))
        if q % 4 == 3 and q < 15: A(f"s_add_u32 {s(sT0)}, {s(sT0)}, 4096")
    KVS, ZS = SCR + 20480, SCR + 22528
    A(f"s_lshr_b32 {s(sT0)}, {s(sW)}, 1"); A(f"s_lshl_b32 {s(sT0)}, {s(sT0)}, 10")
    A(f"s_lshl_b32 {s(sT1)}, {s(sKH)}, 3"); A(f"s_add_u32 {s(sT1)}, {s(sT1)}, {s(sT0)}"); A(f"s_add_u32 {s(sT1)}, {s(sT1)}, {KVS}")
    A(f"v_add_u32 {v(AD)}, {s(sT1)}, {v(vL16)}")
    A(f"s_lshl_b32 {s(sT1)}, {s(sKH)}, 5"); A(f"s_add_u32 {s(sT1)}, {s(sT1)}, {s(sT0)}"); A(f"s_add_u32 {s(sT1)}, {s(sT1)}, {ZS}")
    A(f"v_bfe_u32 {v(t4)}, {v(vL)}, 2, 1"); A(f"v_bfe_u32 {v(t5)}, {v(vL)}, 3, 1"); A(f"v_and_b32 {v(t6)}, 3, {v(vL)}")
    A(f"v_lshl_add_u32 {v(t6)}, {v(t6)}, 1, {s(sT1)}")
    A(f"v_lshl_add_u32 {v(t6)}, {v(t5)}, 3, {v(t6)}")
    A(f"v_lshl_add_u32 {v(AD+1)}, {v(t4)}, 4, {v(t6)}")
    A(f"v_add_u32 {v(AD+2)}, {KVS}, {v(vL16)}")
    A(f"v_mov_b32 {v(AD+3)}, {v(AD+2)}")
    A(f"v_lshrrev_b32 {v(t4)}, 5, {v(vL)}")
    A(f"v_lshlrev_b32 {v(t4)}, 4, {v(t4)}")
    A("s_mov_b32 exec_lo, 0xffff0000"); A("s_mov_b32 exec_hi, 0xffff0000")
    A(f"v_add_u32 {v(AD+2)}, {ZS}, {v(t4)}")
    A("s_mov_b32 exec_lo, 0x0000ffff"); A("s_mov_b32 exec_hi, 0x0000ffff")
    A(f"v_add_u32 {v(AD+3)}, {ZS+32}, {v(t4)}")
    A("s_mov_b64 exec, -1")
    A(f"v_bfe_u32 {v(t4)}, {v(vL)}, 2, 1"); A(f"v_bfe_u32 {v(t5)}, {v(vL)}, 3, 2"); A(f"v_and_b32 {v(t6)}, 35, {v(vL)}")
    A(f"v_lshl_add_u32 {v(t6)}, {v(t5)}, 2, {v(t6)}")
    A(f"v_lshl_add_u32 {v(t6)}, {v(t4)}, 4, {v(t6)}")
    A(f"v_lshlrev_b32 {v(AD+5)}, 4, {v(t6)}")
    A.wait(vm=tz)
    A(f"v_pk_add_f32 {v(t0,2)}, {v(t0,2)}, {v(t2,2)}")
    A(f"v_add_f32 {v(t0)}, {v(t0)}, {v(t1)}")
    A(f"v_mov_b32 {v(t1)}, {v(t0)}")
    A(f"v_permlane32_swap_b32 {v(t0)}, {v(t1)}")
    A(f"v_add_f32 {v(t0)}, {v(t0)}, {v(t1)}")
    A(f"v_mov_b32 {v(t1)}, {v(t0)}")
    A(f"v_permlane16_swap_b32 {v(t0)}, {v(t1)}")
    A(f"v_add_f32 {v(t0)}, {v(t0)}, {v(t1)}")
    A(f"v_cvt_pk_bf16_f32 {v(t0)}, {v(t0)}, {v(t0)}")
    A(f"ds_write_b16 {v(AD+1)}, {v(t0)}")
    for q in range(1, 16):
        A.wait(vm=toks[q])
        for e in (0, 2): A(f"v_pk_add_f32 {v(ACC+e,2)}, {v(ACC+e,2)}, {v(ACC+4*q+e,2)}")
    A(f"v_cvt_pk_bf16_f32 {v(t2)}, {v(ACC)}, {v(ACC+1)}")
    A(f"v_cvt_pk_bf16_f32 {v(t3)}, {v(ACC+2)}, {v(ACC+3)}")
    A(f"ds_write_b64 {v(AD)}, {v(t2,2)}")
    A.wait_all(vm=False)
    A("s_barrier")
    AF = TMP + 16
    toks = []
    for hd4 in range(4): toks.append(A(f"ds_read_b128 {v(AF+4*hd4,4)}, {v(AD+2+(hd4&1))} offset:{(hd4>>1)*1024}"))
    for hd4 in range(4):
        A.wait(lg=toks[hd4])
        A(f"v_mfma_f32_32x32x16_bf16 {v(ACC+16*hd4,16)}, {v(AF+4*hd4,4)}, {v(PQ+4*hd4,4)}, 0")
    A(f"s_mul_i32 {s(sT0)}, {s(sTT)}, 98304"); A(f"s_lshl_b32 {s(sT1)}, {s(sJ)}, 12"); A(f"s_add_u32 {s(sT0)}, {s(sT0)}, {s(sT1)}")
    A(f"s_add_u32 {s(sT0)}, {s(sT0)}, {WS_ACT+65536}")
    OP = TMP + 32
    for hd4 in range(4):
        hd = hd4 & 1
        nb_, db_ = ACC + 16 * hd4 + 8 * hd, ACC + 16 * hd4 + 8 * (1 - hd)
        A(f"v_add_f32 {v(db_)}, {s(sL2E+4)}, {v(db_)}")
        A(f"v_rcp_f32 {v(db_)}, {v(db_)}")
        for e in range(0, 8, 2): A(f"v_pk_mul_f32 {v(nb_+e,2)}, {v(nb_+e,2)}, {v(db_,2)} op_sel_hi:[1,0]")
        for e in range(0, 8, 2): A(f"v_cvt_pk_bf16_f32 {v(OP+4*hd4+e//2)}, {v(nb_+e)}, {v(nb_+e+1)}")
        tok_o = A(f"buffer_store_dwordx4 {v(OP+4*hd4,4)}, {v(AD+5)}, {s(R_WS,4)}, {s(sT0)} offen offset:{hd4*1024} sc1")
    A(f"s_lshl_b32 {s(sT2)}, {s(sTT)}, 9"); A(f"s_lshr_b32 {s(sT3)}, {s(sJ)}, 2"); A(f"s_lshl_b32 {s(sT3)}, {s(sT3)}, 8")
    A(f"s_add_u32 {s(sT2)}, {s(sT2)}, {s(sT3)}"); A(f"s_and_b32 {s(sT3)}, {s(sJ)}, 3"); A(f"s_lshl_b32 {s(sT3)}, {s(sT3)}, 2")
    A(f"s_add_u32 {s(sT2)}, {s(sT2)}, {s(sT3)}"); A(f"s_add_u32 {s(sT2)}, {s(sT2)}, {WS_OF}")
    run(c_ops(2)); run(c_ops(3))
    A.wait(vm=tok_o)
    A("s_mov_b64 exec, 1")
    A(f"buffer_store_dword {v(vTAG)}, {v(vZ)}, {s(R_WS,4)}, {s(sT2)} offen sc1")
    A("s_mov_b64 exec, -1")
    stamp(6)

    A.label("L_phase2")
    A.hist = []
    A("s_nop 1")
    sTT2 = sTT
    A(f"s_lshr_b32 {s(sT0)}, {s(sW)}, 1"); A(f"s_lshl_b32 {s(sTT2)}, {s(sRB)}, 1"); A(f"s_add_u32 {s(sTT2)}, {s(sTT2)}, {s(sT0)}")
    A(f"s_lshl_b32 {s(sT0)}, {s(sNB)}, 1"); A(f"s_add_u32 {s(sT0)}, {s(sT0)}, {s(sKH)}"); A(f"s_lshl_b32 {s(sT0)}, {s(sT0)}, 5")
    A(f"v_and_b32 {v(t0)}, 31, {v(vL)}")
    A(f"v_add_u32 {v(t0)}, {s(sT0)}, {v(t0)}")
    A(f"v_lshrrev_b32 {v(t1)}, 5, {v(vL)}")
    A(f"v_lshlrev_b32 {v(t2)}, 1, {v(t0)}")
    A(f"v_lshl_add_u32 {v(AD)}, {v(t1)}, 12, {v(t2)}")
    A(f"v_lshlrev_b32 {v(t3)}, 2, {v(t0)}")
    A(f"v_lshl_add_u32 {v(AD+1)}, {v(t1)}, 13, {v(t3)}")
    A(f"v_lshlrev_b32 {v(AD+2)}, 4, {v(t1)}")
    A(f"global_load_ushort {v(t4)}, {v(t2)}, {s(P_DSK,2)}")
    A(f"s_lshl_b32 {s(sT0)}, {s(sTT2)}, 15")
    for j in range(4):
        for i in range(4):
            tx = A(f"buffer_load_ushort {v(ACC+4*j+i)}, {v(AD)}, {s(R_X,4)}, {s(sT0)} offen offset:{i*1024}")
        if j < 3: A(f"s_add_u32 {s(sT0)}, {s(sT0)}, 8192")
    A(f"s_mul_i32 {s(sT0)}, {s(sKH)}, {65536+4096}")
    A(f"s_mul_i32 {s(sT1)}, {s(sKH)}, {65536-4096}"); A(f"s_add_u32 {s(sT1)}, {s(sT1)}, 4096")
    for q in range(4):
        A(f"v_add_u32 {v(RA+q)}, {s(sT0)}, {v(RN+q)}")
        A(f"v_add_u32 {v(RB+q)}, {s(sT1)}, {v(RN+q)}")
    A(f"s_lshl_b32 {s(sT2)}, {s(sTT2)}, 1"); A(f"s_add_u32 {s(sT2)}, {s(sT2)}, {s(sKH)}"); A(f"s_lshl_b32 {s(sT2)}, {s(sT2)}, 8")
    A(f"s_add_u32 {s(sT3)}, {s(sT2)}, {WS_HF}")
    A(f"v_and_b32 {v(AD+3)}, 3, {v(vL)}"); A(f"v_lshlrev_b32 {v(AD+3)}, 2, {v(AD+3)}")
    A.wait_all(vm=True, lg=True, force=True)
    A("s_barrier")
    A(f"v_lshlrev_b32 {v(t4)}, 16, {v(t4)}")
    for k in range(16): A(f"v_lshlrev_b32 {v(ACC+k)}, 16, {v(ACC+k)}")
    for k in range(0, 16, 2): A(f"v_pk_mul_f32 {v(ACC+k,2)}, {v(ACC+k,2)}, {v(t4,2)} op_sel_hi:[1,0]")
    def creads(ks):
        jb, m, st = ks >> 3, (ks >> 1) & 3, ks & 1
        ct, cp = m >> 1, m & 1
        b = BUF + 8 * (ks % 4)
        off = jb * 16384 + cp * 8192
        return [f"ds_read_b128 {v(b,4)}, {v(RA+2*ct+st)} offset:{off}", f"ds_read_b128 {v(b+4,4)}, {v(RB+2*ct+st)} offset:{off}"]
    ctok = [run(creads(k)) for k in range(3)]
    stamp(7)
    def ld(): A(f"buffer_load_dword {v(t0)}, {v(AD+3)}, {s(R_WS,4)}, {s(sT3)} offen sc1")
    def ck(): A(f"v_cmp_ne_u32 vcc, {v(t0)}, {v(vTAG)}")
    spin("L_ph", ld, ck)
    stamp(8)
    A(f"s_mul_i32 {s(sXB)}, {s(sTT2)}, 98304"); A(f"s_add_u32 {s(sXB)}, {s(sXB)}, {WS_ACT}")
    A(f"s_lshl_b32 {s(sT0)}, {s(sKH)}, 15"); A(f"s_add_u32 {s(sT0)}, {s(sT0)}, {s(sXB)}")
    def hload(ks):
        o = []
        if ks % 4 == 0 and ks: o.append(f"s_add_u32 {s(sT0)}, {s(sT0)}, 4096")
        o.append(f"buffer_load_dwordx4 {a(4*ks,4)}, {v(vL16)}, {s(R_WS,4)}, {s(sT0)} offen offset:{(ks%4)*1024} sc1")
        return o
    AHEAD = 14
    htok = [run(hload(k)) for k in range(AHEAD)]
    GG = TM2
    for ks in range(32):
        A.wait(vm=htok[ks], lg=ctok[ks])
        b = BUF + 8 * (ks % 4)
        A(f"v_mfma_f32_32x32x16_bf16 {v(ACC,16)}, {a(4*ks,4)}, {v(b,4)}, {v(ACC,16)}")
        if ks + AHEAD < 32: htok.append(run(hload(ks + AHEAD)))
        if ks + AHEAD == 32:
            A(f"s_lshl_b32 {s(sT0)}, {s(sKH)}, 13"); A(f"s_lshl_b32 {s(sT1)}, {s(sTT2)}, 7"); A(f"s_add_u32 {s(sT0)}, {s(sT0)}, {s(sT1)}")
            A(f"s_add_u32 {s(sT0)}, {s(sT0)}, {WS_G}")
            for j in range(4): tg = A(f"buffer_load_dwordx4 {v(GG+4*j,4)}, {v(AD+2)}, {s(R_WS,4)}, {s(sT0)} offen offset:{j*32} sc1")
        A(f"v_mfma_f32_32x32x16_bf16 {v(ACC+16,16)}, {a(4*ks,4)}, {v(b+4,4)}, {'0' if ks == 0 else v(ACC+16,16)}")
        if ks + 3 < 32: ctok.append(run(creads(ks + 3)))
    stamp(9)
    A(f"s_add_u32 {s(sT3)}, {s(sT2)}, {WS_OF}")
    spin("L_po", ld, ck)
    stamp(10)
    A(f"s_lshl_b32 {s(sT0)}, {s(sKH)}, 14"); A(f"s_add_u32 {s(sT0)}, {s(sT0)}, {s(sXB)}"); A(f"s_add_u32 {s(sT0)}, {s(sT0)}, 65536")
    otok = []
    for ks in range(16):
        if ks % 4 == 0 and ks: A(f"s_add_u32 {s(sT0)}, {s(sT0)}, 4096")
        otok.append(A(f"buffer_load_dwordx4 {v(TMP+4*ks,4)}, {v(vL16)}, {s(R_WS,4)}, {s(sT0)} offen offset:{(ks%4)*1024} sc1"))
    for tl in range(2):
        for k in range(0, 16, 2): A(f"v_pk_mul_f32 {v(ACC+16*tl+k,2)}, {v(ACC+16*tl+k,2)}, {v(GG+k,2)}")
    for k in range(0, 16, 2): A(f"v_pk_add_f32 {v(GG+k,2)}, {v(GG+k,2)}, 1.0 op_sel_hi:[1,0] neg_lo:[1,0] neg_hi:[1,0]")
    A(f"s_xor_b32 {s(sT0)}, {s(sMX)}, 4096"); A(f"s_add_u32 {s(sT0)}, {s(sT0)}, {SCR}")
    A(f"v_add_u32 {v(AD+4)}, {s(sT0)}, {v(vL16)}")
    A(f"v_xor_b32 {v(AD+5)}, 4096, {v(AD+4)}")
    for ks in range(16):
        A.wait(vm=otok[ks])
        for tl in (1, 0):
            A(f"v_mfma_f32_32x32x16_bf16 {v(ACC+32+16*tl,16)}, {v(TMP+4*ks,4)}, {a(128+8*ks+4*tl,4)}, {'0' if ks == 0 else v(ACC+32+16*tl,16)}")
    stamp(11)
    for k in range(0, 16, 2):
        A(f"v_pk_fma_f32 {v(ACC+16+k,2)}, {v(ACC+48+k,2)}, {v(GG+k,2)}, {v(ACC+16+k,2)}")
        if k % 4 == 2: A(f"ds_write_b128 {v(AD+4)}, {v(ACC+16+k-2,4)} offset:{(k//4)*1024}")
    for k in range(0, 16, 2): A(f"v_pk_fma_f32 {v(ACC+k,2)}, {v(ACC+32+k,2)}, {v(GG+k,2)}, {v(ACC+k,2)}")
    A(f"s_lshl_b32 {s(sT0)}, {s(sTT2)}, 16")
    A.wait_all(vm=False)
    A("s_barrier")
    toks = [A(f"ds_read_b128 {v(ACC+32+4*j,4)}, {v(AD+5)} offset:{j*1024}") for j in range(4)]
    for j in range(4):
        A.wait(lg=toks[j])
        for e in (0, 2): A(f"v_pk_add_f32 {v(ACC+4*j+e,2)}, {v(ACC+4*j+e,2)}, {v(ACC+32+4*j+e,2)}")
        A(f"s_add_u32 {s(sT1)}, {s(sT0)}, 4096")
        for i in range(4):
            A(f"buffer_store_dword {v(ACC+4*j+i)}, {v(AD+1)}, {s(R_OUT,4)}, {s(sT0 if i < 2 else sT1)} offen offset:{(i%2)*2048}")
        if j < 3: A(f"s_add_u32 {s(sT0)}, {s(sT0)}, 16384")
    A(f"s_lshl_b32 {s(sT0)}, {s(sNB)}, 2"); A(f"s_add_u32 {s(sT0)}, {s(sT0)}, {s(sW)}"); A(f"s_lshl_b32 {s(sT0)}, {s(sT0)}, 5"); A(f"s_add_u32 {s(sT0)}, {s(sT0)}, {s(sRB)}")
    A(f"s_cmp_eq_u32 {s(sT0)}, 31")
    A("s_cbranch_scc0 L_fin")
    A("s_mov_b64 exec, 1")
    A(f"buffer_store_dword {v(vTAG)}, {v(vZ)}, {s(R_WS,4)}, 0 offen sc1")
    A("s_mov_b64 exec, -1")
    A.label("L_fin")
    if stamps:
        A("s_waitcnt vmcnt(0)")
        stamp(12)
        A("s_waitcnt lgkmcnt(0)")
        A(f"s_lshl_b32 {s(sT0)}, {s(sWG)}, 2"); A(f"s_add_u32 {s(sT0)}, {s(sT0)}, {s(sW)}"); A(f"s_lshl_b32 {s(sT0)}, {s(sT0)}, 6")
        A(f"s_add_u32 {s(sT0)}, {s(sT0)}, {WS_STAMP}")
        for i in range(14):
            A(f"v_mov_b32 {v(t0)}, {s(SREG[i] if i < 13 else sTY)}")
            A(f"buffer_store_dword {v(t0)}, {v(vZ)}, {s(R_WS,4)}, {s(sT0)} offen offset:{4*i}")
    A.label("L_end")
    hdr = open(os.path.join(os.path.dirname(__file__), "header.txt")).read()
    src = hdr + f"; @launch grid=(256,1,1) block=(256,1,1) lds={LDS_BYTES}\n" + f""".amdgcn_target "amdgcn-amd-amdhsa--gfx950"
.text
.globl {KNAME}
.p2align 8
.type {KNAME},@function
{KNAME}:
{A.text()}
    s_endpgm
.section .rodata,"a"
.p2align 6
.amdhsa_kernel {KNAME}
  .amdhsa_next_free_vgpr 512
  .amdhsa_next_free_sgpr 102
  .amdhsa_accum_offset 256
  .amdhsa_group_segment_fixed_size 0
  .amdhsa_kernarg_size 128
  .amdhsa_user_sgpr_count 2
  .amdhsa_user_sgpr_kernarg_segment_ptr 1
  .amdhsa_system_sgpr_workgroup_id_x 1
.end_amdhsa_kernel
"""
    return src, A

if __name__ == "__main__":
    out = sys.argv[1]
    opt = {}
    for kv in sys.argv[3:]:
        k_, v_ = kv.split('='); opt[k_] = int(v_)
    src, A = gen(stamps=len(sys.argv) > 2 and sys.argv[2] == 'stamps', opt=opt)
    open(out, "w").write(src)
    print("lines", len(A.out), "nops", A.nops)
```

```python
import sys, os
sys.path.insert(0, os.path.dirname(__file__))
from asmlib import *

KNAME = "gated_mix__ssm_conv_s5__linear_attn_block__prompt_kernel"

WS_EPOCH = 0
WS_KVF   = 0x1000
WS_HF    = 0x4000
WS_OF    = 0xC000
WS_G     = 0x14000
WS_ZP    = 0x18000
WS_AGG   = 0x20000
WS_KVP   = 0x40000
WS_STAMP = 0xC0000
WS_ACT   = 0x100000
WS_SIZE  = WS_ACT + 64 * 98304
SCR = 131072
LDS_BYTES = 163840
SPIN = 1 << 17

def gen(stamps=False, opt=None):
    opt = opt or {}
    A = Asm()
    P_X, P_LRE, P_LIM, P_BRE, P_BIM, P_CRE, P_CIM, P_LDT = 4, 6, 8, 10, 12, 14, 16, 18
    P_DSK, P_BX, P_QKV, P_WO, P_GW, P_OUT, P_DBG, P_WS = 20, 22, 24, 26, 28, 30, 32, 34
    R_X, R_W, R_WS, R_C, R_WO, R_OUT = 36, 40, 44, 48, 52, 56
    sW, sC, sJ, sK0, sRB, sNB, sTAG, sTY = 60, 61, 62, 63, 64, 65, 66, 67
    sXO, sWO, sWST, sU0, sT0, sT1, sT2, sT3 = 68, 69, 70, 71, 72, 73, 74, 75
    sMX, sMW, sCNT, sTT, sKH, sM8 = 76, 77, 78, 79, 80, 81
    sL2E = 82
    sU1, sU2 = 84, 85
    sEPS = 86
    sD0, sD1 = 2, 3
    SREG = [88, 90, 92, 94, 96, 98, 22, 32, 6, 8, 10, 12, 14]
    sWG = 100
    sU3 = 101
    names = opt.get('stamps') or [0, 1, 2, 3, 4, 5, 6, 7, 8, 9, 10, 11, 12]
    def stamp(i):
        if stamps and i in names:
            A(f"{'s_memtime' if opt.get('cyc') else 's_memrealtime'} {s(SREG[names.index(i)], 2)}")
    vL = 0; vZ = 1; vE = 2; vJ = 3
    t0, t1, t2, t3, t4, t5, t6, t7 = 4, 5, 6, 7, 8, 9, 10, 11
    vTAG = 12; vL16 = 13; vL4 = 14; vF = 15
    ACC = 16; BUF = 80; TMP = 112; TM2 = 176
    VX, VW, VN, VK1 = 208, 212, 216, 220
    RX, RN, RT = 224, 228, 232
    RW = 234
    RA, RB = 236, 240
    AD = 244
    PR = TM2

    def run(ops):
        tok = None
        for o in ops:
            r = A(o) if isinstance(o, str) else o()
            if r is not None: tok = r
        return tok
    def sel_exec(lo, hi):
        A(f"s_mov_b32 exec_lo, {lo:#x}"); A(f"s_mov_b32 exec_hi, {hi:#x}")

    stamp(0)
    A("s_load_dwordx16 s[4:19], s[0:1], 0")
    A("s_load_dwordx16 s[20:35], s[0:1], 64")
    A("s_cmp_ge_u32 s2, 256")
    A("s_cbranch_scc1 L_end")
    A(f"s_getpc_b64 {s(sT2,2)}")
    A.label("L_pc")
    A(f"s_and_b32 {s(sT0)}, s2, 0xf8")
    A(f"v_lshrrev_b32 {v(t0)}, 5, v0")
    A(f"v_add_lshl_u32 {v(t0)}, {v(t0)}, {s(sT0)}, 7")
    A(f"v_min_u32 {v(t0)}, L_end-L_pc, {v(t0)}")
    if not opt.get('nocodepf'):
        A(f"global_load_dword {v(vJ)}, {v(t0)}, {s(sT2,2)}")
    A(f"v_lshrrev_b32 {v(t0)}, 6, v0")
    A(f"v_and_b32 {v(vL)}, 63, v0")
    A(f"v_readfirstlane_b32 {s(sW)}, {v(t0)}")
    A(f"v_mov_b32 {v(vZ)}, 0")
    A(f"s_and_b32 {s(sT0)}, s2, 7")
    A(f"s_bfe_u32 {s(sNB)}, s2, 0x30003")
    A(f"s_lshr_b32 {s(sT3)}, s2, 6")
    if stamps: A(f"s_mov_b32 {s(sWG)}, s2")
    A(f"s_and_b32 {s(sC)}, {s(sT0)}, 1"); A(f"s_lshl3_add_u32 {s(sC)}, {s(sC)}, {s(sNB)}")
    A(f"s_and_b32 {s(sJ)}, {s(sT0)}, 6"); A(f"s_lshr_b32 {s(sK0)}, {s(sT3)}, 1"); A(f"s_add_u32 {s(sJ)}, {s(sJ)}, {s(sK0)}")
    A(f"s_lshl2_add_u32 {s(sRB)}, {s(sT0)}, {s(sT3)}")
    A(f"s_add_u32 {s(sK0)}, {s(sK0)}, {s(sNB)}"); A(f"s_and_b32 {s(sK0)}, {s(sK0)}, 1"); A(f"s_lshl_b32 {s(sK0)}, {s(sK0)}, 2")
    A(f"s_and_b32 {s(sTY)}, {s(sT3)}, 1")
    A(f"v_lshrrev_b32 {v(t0)}, 3, {v(vL)}")
    A(f"v_and_b32 {v(t1)}, 7, {v(vL)}")
    A(f"v_lshrrev_b32 {v(t2)}, 4, {v(vL)}")
    A(f"v_xor_b32 {v(t3)}, {v(t1)}, {v(t2)}")
    A(f"v_lshlrev_b32 {v(t3)}, 4, {v(t3)}")
    A(f"v_and_b32 {v(t2)}, 16, {v(vL)}")
    A(f"v_lshlrev_b32 {v(t2)}, 2, {v(t2)}")
    A(f"v_lshlrev_b32 {v(t4)}, 4, {v(t1)}")
    A(f"v_xor_b32 {v(t4)}, {v(t4)}, {v(t2)}")
    A(f"v_lshrrev_b32 {v(t5)}, 5, {v(vL)}")
    A(f"v_and_b32 {v(t6)}, 3, {v(t0)}")
    A(f"v_lshl_add_u32 {v(t5)}, {v(t5)}, 4, {v(t6)}")
    A(f"v_lshl_add_u32 {v(VX)}, {v(t5)}, 10, {v(t3)}")
    A(f"v_xor_b32 {v(t5)}, 64, {v(VX)}")
    A(f"v_add_u32 {v(VX+1)}, {3072}, {v(t5)}")
    A(f"v_add_u32 {v(VX+2)}, {2*3072}, {v(VX)}")
    A(f"v_add_u32 {v(VX+3)}, {3*3072}, {v(t5)}")
    A(f"v_lshl_add_u32 {v(VN)}, {v(t0)}, 10, {v(t3)}")
    A(f"v_xor_b32 {v(t5)}, 64, {v(VN)}")
    A(f"v_add_u32 {v(VN+1)}, {7168}, {v(t5)}")
    A(f"v_add_u32 {v(VN+2)}, {2*7168}, {v(VN)}")
    A(f"v_add_u32 {v(VN+3)}, {3*7168}, {v(t5)}")
    A(f"v_lshl_add_u32 {v(VK1)}, {v(t0)}, 10, {v(t4)}")
    A(f"v_lshl_add_u32 {v(VW)}, {v(t0)}, 11, {v(VK1)}")
    for q in (1, 2, 3): A(f"v_add_u32 {v(VW+q)}, {q*(8*3072-1024)}, {v(VW)}")
    A(f"s_lshl_b32 {s(sT0)}, {s(sJ)}, 7")
    A(f"v_lshl_add_u32 {v(t7)}, {v(vL)}, 1, {s(sT0)}")
    A(f"v_lshlrev_b32 {v(vL16)}, 4, {v(vL)}")
    A(f"s_lshl_b32 {s(sMX)}, {s(sW)}, 12")
    A(f"s_add_u32 {s(sMW)}, {s(sMX)}, 16384")
    A(f"s_and_b32 {s(sKH)}, {s(sW)}, 1")
    A(f"s_lshr_b32 {s(sT1)}, {s(sW)}, 1")
    A(f"s_lshl2_add_u32 {s(sTT)}, {s(sC)}, {s(sW)}")
    A(f"s_lshl_b32 {s(sXO)}, {s(sTT)}, 15")
    A(f"s_lshl_b32 {s(sT2)}, {s(sK0)}, 7")
    A(f"s_add_u32 {s(sXO)}, {s(sXO)}, {s(sT2)}")
    A(f"s_lshl1_add_u32 {s(sT2)}, {s(sJ)}, {s(sT1)}"); A(f"s_lshl_b32 {s(sT2)}, {s(sT2)}, 15")
    A(f"s_mul_i32 {s(sT3)}, {s(sKH)}, {32*3072}"); A(f"s_lshl_b32 {s(sT1)}, {s(sT1)}, 10"); A(f"s_add_u32 {s(sT3)}, {s(sT3)}, {s(sT1)}")
    A(f"s_add_u32 {s(sT3)}, {s(sT3)}, {s(sT0)}"); A(f"s_add_u32 {s(sT3)}, {s(sT3)}, 1024")
    A(f"s_cmp_eq_u32 {s(sTY)}, 0")
    A(f"s_cselect_b32 {s(sWO)}, {s(sT2)}, {s(sT3)}")
    A(f"s_cselect_b32 {s(sWST)}, 128, {64*3072}") if False else None
    A(f"s_mov_b32 {s(sT1)}, {64*3072}"); A(f"s_cselect_b32 {s(sWST)}, 0x80, {s(sT1)}")
    A(f"s_mov_b32 {s(sT1)}, 0x180000"); A(f"s_cselect_b32 {s(R_W+2)}, 0x80000, {s(sT1)}")
    A("s_cselect_b64 exec, -1, 0")
    A(f"v_mov_b64 {v(VW,2)}, {v(VN,2)}"); A(f"v_mov_b64 {v(VW+2,2)}, {v(VN+2,2)}")
    A("s_mov_b64 exec, -1")
    A(f"s_mul_i32 {s(sT1)}, {s(sK0)}, {s(sWST)}"); A(f"s_add_u32 {s(sWO)}, {s(sWO)}, {s(sT1)}")
    A(f"s_mov_b32 {s(R_X+2)}, 0x200000"); A(f"s_mov_b32 {s(R_X+3)}, 0x20000")
    A(f"s_mov_b32 {s(R_W+3)}, 0x20000")
    A(f"s_mov_b32 m0, {s(sMX)}")
    A("s_waitcnt lgkmcnt(0)")
    stamp(20)
    A(f"s_mov_b64 {s(R_X,2)}, {s(P_X,2)}")
    pLRE, pLIM, pLDT = PR, PR + 1, PR + 2
    def dma(voff, srd, soff, q):
        off = f" offset:{q*1024}" if q else ""
        return f"buffer_load_dwordx4 {v(voff+q)}, {s(srd,4)}, {s(soff)} offen{off} lds"
    for q in range(4): A(dma(VX, R_X, sXO, q))
    A(f"s_cmp_eq_u32 {s(sKH)}, 0")
    A(f"s_cselect_b64 {s(R_W,2)}, {s(P_BRE,2)}, {s(P_BIM,2)}")
    A(f"s_cselect_b64 {s(R_C,2)}, {s(P_CRE,2)}, {s(P_CIM,2)}")
    A(f"s_cmp_eq_u32 {s(sTY)}, 0")
    A(f"s_cselect_b64 {s(R_W,2)}, {s(R_W,2)}, {s(P_QKV,2)}")
    A(f"s_mov_b32 m0, {s(sMW)}")
    A(f"global_load_ushort {v(pLRE)}, {v(t7)}, {s(P_LRE,2)}")
    A(f"global_load_ushort {v(pLIM)}, {v(t7)}, {s(P_LIM,2)}")
    A(f"global_load_ushort {v(pLDT)}, {v(t7)}, {s(P_LDT,2)}")
    tokE = A(f"global_load_dword {v(vE)}, {v(vZ)}, {s(P_WS,2)} sc1")
    for q in range(4): A(dma(VW, R_W, sWO, q))
    utok0 = [A.vm]
    stamp(21)
    def unit_ops(i):
        slot = (i % 4) * 32768
        ops = []
        if i == 4:
            ops += [f"s_lshl_b32 {s(sD0)}, {s(sK0)}, 8", f"s_sub_u32 {s(sXO)}, {s(sXO)}, {s(sD0)}",
                    f"s_mul_i32 {s(sD0)}, {s(sK0)}, {s(sWST)}", f"s_lshl_b32 {s(sD0)}, {s(sD0)}, 1", f"s_sub_u32 {s(sWO)}, {s(sWO)}, {s(sD0)}"]
        ops += [f"s_add_u32 {s(sXO)}, {s(sXO)}, 128", f"s_add_u32 m0, {s(sMX)}, {slot}"]
        ops += [dma(VX, R_X, sXO, q) for q in range(4)]
        ops += [f"s_add_u32 {s(sWO)}, {s(sWO)}, {s(sWST)}", f"s_add_u32 m0, {s(sMW)}, {slot}"]
        ops += [dma(VW, R_W, sWO, q) for q in range(4)]
        return ops
    A("s_barrier")
    run(unit_ops(1)); utok0.append(A.vm)
    stamp(22)
    A(f"s_mov_b64 {s(R_WS,2)}, {s(P_WS,2)}")
    A(f"s_mov_b32 {s(R_WS+2)}, {WS_SIZE}"); A(f"s_mov_b32 {s(R_WS+3)}, 0x20000")
    A(f"s_mov_b32 {s(R_C+2)}, 0x80000"); A(f"s_mov_b32 {s(R_C+3)}, 0x20000")
    A(f"s_mov_b64 {s(R_WO,2)}, {s(P_WO,2)}")
    A(f"s_mov_b32 {s(R_WO+2)}, 0x80000"); A(f"s_mov_b32 {s(R_WO+3)}, 0x20000")
    A(f"s_mov_b64 {s(R_OUT,2)}, {s(P_OUT,2)}")
    A(f"s_mov_b32 {s(R_OUT+2)}, 0x400000"); A(f"s_mov_b32 {s(R_OUT+3)}, 0x20000")
    A(f"s_lshl_b32 {s(sM8)}, {s(sW)}, 13")
    for q in (1, 2, 3): A(f"v_add_u32 {v(VK1+q)}, {q*7168}, {v(VK1)}")
    A(f"v_and_b32 {v(t0)}, 31, {v(vL)}")
    A(f"v_lshrrev_b32 {v(t1)}, 5, {v(vL)}")
    A(f"v_bfe_u32 {v(t2)}, {v(vL)}, 1, 3")
    A(f"v_xor_b32 {v(t2)}, {v(t2)}, {v(t1)}")
    A(f"v_lshlrev_b32 {v(t2)}, 4, {v(t2)}")
    A(f"v_lshl_add_u32 {v(RN)}, {v(t0)}, 7, {v(t2)}")
    for q in (1, 2, 3): A(f"v_xor_b32 {v(RN+q)}, {q*32}, {v(RN)}")
    for q in range(4): A(f"v_add_u32 {v(RX+q)}, {s(sMX)}, {v(RN+q)}")
    A(f"v_bfe_u32 {v(t2)}, {v(vL)}, 2, 2")
    A(f"v_bfe_u32 {v(t3)}, {v(vL)}, 3, 1")
    A(f"v_bfe_u32 {v(t4)}, {v(vL)}, 4, 1")
    A(f"v_and_b32 {v(t5)}, 3, {v(vL)}")
    A(f"v_lshlrev_b32 {v(t5)}, 3, {v(t5)}")
    A(f"v_lshl_add_u32 {v(t5)}, {v(t4)}, 5, {v(t5)}")
    A(f"v_lshl_add_u32 {v(t5)}, {v(t3)}, 6, {v(t5)}")
    A(f"v_lshl_add_u32 {v(t5)}, {v(t2)}, 7, {v(t5)}")
    A(f"v_lshl_add_u32 {v(RT)}, {v(t1)}, 10, {v(t5)}")
    A(f"v_xor_b32 {v(RT+1)}, 64, {v(RT)}")
    A(f"v_lshl_add_u32 {v(RW)}, {v(t1)}, 9, {v(t5)}")
    A(f"s_mul_i32 {s(sT0)}, {s(sKH)}, {16384+64}")
    A(f"v_xor_b32 {v(RW)}, {s(sT0)}, {v(RW)}")
    A(f"v_xor_b32 {v(RW+1)}, 64, {v(RW)}")
    A(f"v_lshlrev_b32 {v(vL4)}, 2, {v(vL)}")
    A(f"s_cmp_eq_u32 {s(sTY)}, 0")
    A("s_cbranch_scc0 L_attn")
    snap0 = A.snapshot()

    def unit8_ops(voff, srd, pre, base, rowstep):
        ops = list(pre)
        ops.append(f"s_add_u32 m0, {s(sM8)}, {base}")
        ops += [dma(voff, srd, sD0, q) for q in range(4)]
        ops.append(f"s_add_u32 {s(sD0)}, {s(sD0)}, {rowstep}")
        ops.append(f"s_add_u32 m0, {s(sM8)}, {base+4096}")
        ops += [dma(voff, srd, sD0, q) for q in range(4)]
        return ops
    def wq_ops(u):
        pre = [f"s_xor_b32 {s(sD0)}, {s(sK0)}, {4*u}", f"s_add_u32 {s(sD0)}, {s(sD0)}, {s(sW)}",
               f"s_mul_i32 {s(sD0)}, {s(sD0)}, {64*3072}", f"s_lshl_b32 {s(sD1)}, {s(sJ)}, 7", f"s_add_u32 {s(sD0)}, {s(sD0)}, {s(sD1)}"]
        return unit8_ops(VW, R_W, pre, u * 32768, 32 * 3072)
    def wo_ops(u, base):
        pre = [f"s_and_b32 {s(sD0)}, {s(sW)}, 2", f"s_add_u32 {s(sD0)}, {s(sD0)}, {s(sW)}", f"s_add_u32 {s(sD0)}, {s(sD0)}, {2*u}",
               f"s_lshl_b32 {s(sD0)}, {s(sD0)}, 9", f"s_add_u32 {s(sD0)}, {s(sD0)}, {s(sNB)}", f"s_lshl_b32 {s(sD0)}, {s(sD0)}, 7"]
        return unit8_ops(VK1, R_WO, pre, base, 32 * 1024)
    def c_ops(u):
        pre = [f"s_lshr_b32 {s(sD0)}, {s(sW)}, 1", f"s_lshl_b32 {s(sD1)}, {s(sNB)}, 9", f"s_add_u32 {s(sD0)}, {s(sD0)}, {s(sD1)}",
               f"s_add_u32 {s(sD0)}, {s(sD0)}, {2*u}", f"s_lshl_b32 {s(sD0)}, {s(sD0)}, 7"]
        return unit8_ops(VN, R_C, pre, u * 32768, 32 * 1024)
    def wo_reads(u, areg, off):
        L = []
        for st in range(8):
            for tl in range(2):
                d = 128 + 8 * (8 * u + st) + 4 * tl
                L.append(f"ds_read_b64_tr_b16 {a(d,2)}, {v(areg+tl)} offset:{off+st*2048}")
                L.append(f"ds_read_b64_tr_b16 {a(d+2,2)}, {v(areg+tl)} offset:{off+st*2048+1024}")
        return L
    class Stream:
        def __init__(self, ops): self.ops = list(ops)
        def dma(self, n=1):
            while n > 0 and self.ops:
                o = self.ops.pop(0); A(o)
                if o.startswith('buffer_') or o.startswith('global_'): n -= 1
        def salu(self):
            while self.ops and not (self.ops[0].startswith('buffer_') or self.ops[0].startswith('global_')): A(self.ops.pop(0))
        def some(self, n):
            tok = None
            for _ in range(n):
                if self.ops: tok = A(self.ops.pop(0))
            return tok
        def rest(self):
            tok = None
            while self.ops: tok = A(self.ops.pop(0))
            return tok
    def sprinkle(ops, stream, every):
        for n, o in enumerate(ops):
            A(o) if isinstance(o, str) else o()
            if (n + 1) % every == 0: stream.dma()

    def main_loop(kind, tail_units, hooks):
        utok = list(utok0)
        def reads(i, st):
            slot = (i % 2) * 32768
            b = BUF + 16 * ((4 * i + st) % 2)
            L = [f"ds_read_b128 {a(16*i+4*st,4)}, {v(RX+st)} offset:{slot}"]
            for tl in range(4):
                if kind == 'ssm':
                    L.append(f"ds_read_b128 {v(b+4*tl,4)}, {v(RN+st)} offset:{slot+16384+tl*4096}")
                else:
                    base = slot + 16384 + (tl >> 1) * 8192 + st * 2048
                    L.append(f"ds_read_b64_tr_b16 {v(b+4*tl,2)}, {v(RT+(tl&1))} offset:{base}")
                    L.append(f"ds_read_b64_tr_b16 {v(b+4*tl+2,2)}, {v(RT+(tl&1))} offset:{base+512}")
            if i % 2 == 1:
                L.append(f"v_xor_b32 {v(RX+st)}, 0x10000, {v(RX+st)}")
                if kind == 'ssm': L.append(f"v_xor_b32 {v(RN+st)}, 0x10000, {v(RN+st)}")
                elif st == 3: L += [f"v_xor_b32 {v(RT+q)}, 0x10000, {v(RT+q)}" for q in range(2)]
            return L
        def mfmas(i, st):
            b = BUF + 16 * ((4 * i + st) % 2)
            L = []
            for tl in range(4):
                c = v(ACC + 16 * tl, 16)
                if i == 0 and st == 0: c = "1.0" if (kind == 'attn' and tl < 2) else "0"
                L.append(f"v_mfma_f32_32x32x16_bf16 {v(ACC+16*tl,16)}, {a(16*i+4*st,4)}, {v(b+4*tl,4)}, {c}")
            return L
        prev = None
        for i in range(8):
            nxt = Stream(unit_ops(i + 2) if i + 2 < 8 else tail_units[i - 6])
            nxt.salu()
            A.wait(vm=utok[i])
            A("s_barrier")
            stamp(30 + i)
            burst = i < opt.get('burst', 2)
            for st in range(4):
                rd = reads(i, st)
                if prev is None:
                    run(rd); prev = (i, st, A.lg); nxt.dma(4 if burst else 2); nxt.salu(); continue
                ms = mfmas(prev[0], prev[1])
                A.wait(lg=prev[2])
                n = (len(rd) + 1) // 2
                for tl in range(4):
                    A(ms[tl])
                    if tl % 2 == 0:
                        run(rd[(tl//2)*n:(tl//2+1)*n])
                        if burst: nxt.dma()
                    else:
                        nxt.dma(); nxt.salu()
                prev = (i, st, A.lg)
            nxt.rest()
            utok.append(A.vm)
            if i in hooks: hooks[i]()
        A.wait(lg=prev[2])
        run(mfmas(prev[0], prev[1]))
        return utok

    def get_tag():
        A.wait(vm=tokE)
        A(f"v_readfirstlane_b32 {s(sTAG)}, {v(vE)}")
        A(f"s_mul_i32 {s(sTAG)}, {s(sTAG)}, 0x9E3779B5")
        A(f"s_add_u32 {s(sTAG)}, {s(sTAG)}, 0x7F4A7C15")
        A(f"v_mov_b32 {v(vTAG)}, {s(sTAG)}")

    def cmul_ops(dst, x, y, add=None):
        if add is None: o = f"v_pk_mul_f32 {v(dst,2)}, {v(x,2)}, {v(y,2)} op_sel_hi:[0,1]"
        else: o = f"v_pk_fma_f32 {v(dst,2)}, {v(x,2)}, {v(y,2)}, {v(add,2)} op_sel_hi:[0,1,1]"
        return [o, f"v_pk_fma_f32 {v(dst,2)}, {v(x,2)}, {v(y,2)}, {v(dst,2)} op_sel:[1,1,0] op_sel_hi:[1,0,1] neg_lo:[0,1,0]"]
    def cmul(*a_): run(cmul_ops(*a_))

    def spin(name, load, check):
        A(f"s_mov_b32 {s(sCNT)}, {SPIN}")
        A.label(name)
        load()
        A.wait_all(vm=True, lg=False, force=True)
        check()
        A(f"s_sub_u32 {s(sCNT)}, {s(sCNT)}, 1")
        A(f"s_cbranch_scc1 {name}_x")
        A(f"s_cbranch_vccnz {name}")
        A.label(name + "_x")
    def flag_store(soff, mask=1, voff=vZ):
        A(f"s_mov_b64 exec, {mask}")
        A(f"buffer_store_dword {v(vTAG)}, {v(voff)}, {s(R_WS,4)}, {s(soff)} offen sc1")
        A("s_mov_b64 exec, -1")
    def flag_addr(dst, tmp, base):
        A(f"s_lshr_b32 {s(tmp)}, {s(sJ)}, 2"); A(f"s_lshl1_add_u32 {s(dst)}, {s(sTT)}, {s(tmp)}"); A(f"s_lshl_b32 {s(dst)}, {s(dst)}, 6")
        A(f"s_and_b32 {s(tmp)}, {s(sJ)}, 3"); A(f"s_add_u32 {s(dst)}, {s(dst)}, {s(tmp)}"); A(f"s_lshl2_add_u32 {s(dst)}, {s(dst)}, {base}")

    L1, KK, L16, L32 = PR + 4, PR + 6, PR + 8, PR + 10
    L2T = PR + 0
    LT, KT = PR + 14, PR + 18
    WG_ = PR + 22
    WSEG = PR + 30
    L128 = PR + 12
    get_tag()
    A(f"v_lshlrev_b32 {v(pLRE)}, 16, {v(pLRE)}")
    A(f"v_lshlrev_b32 {v(pLIM)}, 16, {v(pLIM)}")
    A(f"v_lshlrev_b32 {v(pLDT)}, 16, {v(pLDT)}")
    A(f"v_xor_b32 {v(pLIM)}, 0x80000000, {v(pLIM)}")
    A(f"v_mul_f32 {v(t0)}, 0x3fb8aa3b, {v(pLDT)}")
    A(f"v_exp_f32 {v(t0)}, {v(t0)}")
    A(f"v_mul_f32 {v(t5)}, {v(pLRE)}, {v(pLRE)}")
    A(f"v_cvt_pk_bf16_f32 {v(t0)}, {v(t0)}, {v(t0)}")
    A(f"v_and_b32 {v(t0)}, 0xffff0000, {v(t0)}")
    A(f"v_mul_f32 {v(t1)}, {v(t0)}, {v(pLRE)}")
    A(f"v_mul_f32 {v(t2)}, {v(t0)}, {v(pLIM)}")
    A(f"v_mul_f32 {v(t1)}, 0x3fb8aa3b, {v(t1)}")
    A(f"v_exp_f32 {v(t1)}, {v(t1)}")
    A(f"v_mul_f32 {v(t2)}, 0.15915494, {v(t2)}")
    A(f"v_rndne_f32 {v(t3)}, {v(t2)}")
    A(f"v_sub_f32 {v(t2)}, {v(t2)}, {v(t3)}")
    A(f"v_cos_f32 {v(t3)}, {v(t2)}")
    A(f"v_sin_f32 {v(t4)}, {v(t2)}")
    A(f"v_fmac_f32 {v(t5)}, {v(pLIM)}, {v(pLIM)}")
    A(f"v_rcp_f32 {v(t0)}, {v(t5)}")
    A(f"v_mul_f32 {v(L1)}, {v(t1)}, {v(t3)}")
    A(f"v_mul_f32 {v(L1+1)}, {v(t1)}, {v(t4)}")
    A(f"v_add_f32 {v(t1)}, -1.0, {v(L1)}")
    A(f"v_add_f32 {v(t0)}, {v(t0)}, {v(t0)}")
    A(f"v_mul_f32 {v(t2)}, {v(t1)}, {v(pLRE)}")
    A(f"v_fmac_f32 {v(t2)}, {v(L1+1)}, {v(pLIM)}")
    A(f"v_mul_f32 {v(t3)}, {v(L1+1)}, {v(pLRE)}")
    A(f"v_fma_f32 {v(t3)}, -{v(t1)}, {v(pLIM)}, {v(t3)}")
    A(f"v_mul_f32 {v(KK)}, {v(t2)}, {v(t0)}")
    A(f"v_mul_f32 {v(KK+1)}, {v(t3)}, {v(t0)}")
    cmul(L2T, L1, L1); cmul(t2, L2T, L2T); cmul(t0, t2, t2); cmul(L16, t0, t0)
    cmul(L32, L16, L16)
    A(f"v_mov_b64 {v(L2T+2,2)}, {v(L2T,2)}")
    A(f"s_lshl_b32 {s(sT0)}, {s(sW)}, 9")
    A(f"v_lshlrev_b32 {v(AD)}, 3, {v(vL)}")
    for e in range(2): A(f"v_permlane32_swap_b32 {v(L2T+e)}, {v(L2T+2+e)}")
    A(f"v_add_u32 {v(AD)}, {SCR}, {v(AD)}")
    A(f"v_add_u32 {v(AD+1)}, {s(sT0)}, {v(AD)}")
    A(f"s_lshl4_add_u32 {s(sT2)}, {s(sJ)}, {s(sC)}"); A(f"s_lshl_b32 {s(sT2)}, {s(sT2)}, 10")
    A(f"s_add_u32 {s(sT2)}, {s(sT2)}, {WS_AGG}")
    GR = TMP + 60
    A(f"v_mov_b32 {v(GR+1)}, {v(vTAG)}"); A(f"v_mov_b32 {v(GR+3)}, {v(vTAG)}")
    stamp(1)
    utok = main_loop('ssm', [wo_ops(0, 0), wo_ops(1, 32768)], {})
    stamp(2)
    tok_wo = A.vm
    SA = [TMP, TMP + 8]
    for m in range(1, 8):
        for ct in range(2):
            are, aim = ACC + 32 * ct + 2 * m, ACC + 32 * ct + 16 + 2 * m
            if m == 1: sre, sim = ACC + 32 * ct, ACC + 32 * ct + 16
            else: sre, sim = SA[m % 2] + 4 * ct, SA[m % 2] + 4 * ct + 2
            dre, dim = SA[(m + 1) % 2] + 4 * ct, SA[(m + 1) % 2] + 4 * ct + 2
            l2 = v(L2T + 2 * ct, 2)
            A(f"v_pk_fma_f32 {v(dre,2)}, {v(sre,2)}, {l2}, {v(are,2)} op_sel_hi:[1,0,1]")
            A(f"v_pk_fma_f32 {v(dim,2)}, {v(sim,2)}, {l2}, {v(aim,2)} op_sel_hi:[1,0,1]")
            A(f"v_pk_fma_f32 {v(dre,2)}, {v(sim,2)}, {l2}, {v(dre,2)} op_sel:[0,1,0]")
            A(f"v_pk_fma_f32 {v(dim,2)}, {v(sre,2)}, {l2}, {v(dim,2)} op_sel:[0,1,0] neg_lo:[0,1,0] neg_hi:[0,1,0]")
    S_ = SA[0]
    for e in range(4): A(f"v_permlane32_swap_b32 {v(S_+e)}, {v(S_+4+e)}")
    EA = TMP + 16; EB = TMP + 18
    for sg, d in ((0, EA), (1, EB)):
        b = S_ + 4 * sg
        A(f"v_fma_f32 {v(d)}, {v(L1)}, {v(b)}, {v(b+1)}")
        A(f"v_fma_f32 {v(d+1)}, {v(L1+1)}, {v(b)}, -{v(b+3)}")
        A(f"v_fma_f32 {v(d)}, {v(L1+1)}, {v(b+2)}, {v(d)}")
        A(f"v_fma_f32 {v(d+1)}, -{v(L1)}, {v(b+2)}, {v(d+1)}")
    cmul(EB, EA, L16, EB)
    A(f"ds_write_b64 {v(AD+1)}, {v(EB,2)}")
    A.wait_all(vm=False)
    A("s_barrier")
    EW = BUF
    tk = [A(f"ds_read_b64 {v(EW+2*q,2)}, {v(AD)} offset:{q*512}") for q in range(4)]
    PF = BUF + 8
    A(f"s_cmp_eq_u32 {s(sW)}, 0")
    A.wait(lg=tk[1]); cmul(PF, EW, L32, EW + 2)
    A.wait(lg=tk[2]); cmul(PF + 2, PF, L32, EW + 4)
    A.wait(lg=tk[3]); cmul(PF + 4, PF + 2, L32, EW + 6)
    A("s_cbranch_scc0 L_nopub")
    A(f"v_mov_b32 {v(GR)}, {v(PF+4)}"); A(f"v_mov_b32 {v(GR+2)}, {v(PF+5)}")
    snap = A.snapshot()
    A(f"buffer_store_dwordx4 {v(GR,4)}, {v(vL16)}, {s(R_WS,4)}, {s(sT2)} offen sc1")
    A.restore(snap)
    A.label("L_nopub")
    stamp(3)
    st_ = Stream(c_ops(2) + (c_ops(3) if opt.get('c3early') else []))
    PW = BUF + 14; EK = BUF + 16
    ops = [f"v_mov_b32 {v(t0)}, 0", f"v_mov_b32 {v(t1)}, 0"]
    for q, src in ((1, EW), (2, PF), (3, PF + 2)):
        ops += [f"s_cmp_eq_u32 {s(sW)}, {q}", "s_cselect_b64 exec, -1, 0", f"v_mov_b64 {v(t0,2)}, {v(src,2)}"]
    ops += ["s_mov_b64 exec, -1"]
    run(ops)
    cmul(PW, t0, KK); cmul(EK, EA, KK)
    for (src, dst) in ((L1, LT), (KK, KT)):
        A(f"v_mov_b64 {v(dst,2)}, {v(src,2)}"); A(f"v_mov_b64 {v(dst+2,2)}, {v(src,2)}")
    for dst in (LT, KT):
        for e in range(2): A(f"v_permlane32_swap_b32 {v(dst+e)}, {v(dst+2+e)}")
    U = TMP
    def upair(ct, k): return U + 32 * ct + 2 * k
    ops = []
    for ct in range(2):
        for k in range(16):
            re, im = ACC + 32 * ct + (k & ~1), ACC + 32 * ct + 16 + (k & ~1)
            b = k & 1
            ops.append(f"v_pk_mul_f32 {v(upair(ct,k),2)}, {v(re,2)}, {v(KT+2*ct,2)} op_sel:[{b},0] op_sel_hi:[{b},1]")
            ops.append(f"v_pk_fma_f32 {v(upair(ct,k),2)}, {v(im,2)}, {v(KT+2*ct,2)}, {v(upair(ct,k),2)} op_sel:[{b},1,0] op_sel_hi:[{b},0,1] neg_hi:[0,1,0]")
    sprinkle(ops, st_, 4 if opt.get('c3early') else 8)
    st_.rest()
    cmul(t0, L32, L32); cmul(L128, t0, t0)
    cmul(t0, L128, L128); cmul(t2, t0, t0)
    A(f"v_mov_b64 {v(WG_,2)}, {v(KK,2)}")
    A(f"v_mov_b32 {v(WSEG)}, 1.0"); A(f"v_mov_b32 {v(WSEG+1)}, 0")
    for q in range(3):
        A(f"s_cmp_gt_u32 {s(sW)}, {q}")
        A("s_cselect_b64 exec, -1, 0")
        cmul(t0, WG_, t2); A(f"v_mov_b64 {v(WG_,2)}, {v(t0,2)}")
        cmul(t0, WSEG, L32); A(f"v_mov_b64 {v(WSEG,2)}, {v(t0,2)}")
    A("s_mov_b64 exec, -1")
    for q in range(1, 4): cmul(WG_ + 2 * q, WG_ + 2 * q - 2, L128)
    A.wait(vm=tok_wo)
    A("s_barrier")
    run(wo_reads(0, RW, 0)); run(wo_reads(1, RW, 32768))
    A(f"v_and_b32 {v(t4)}, 31, {v(vL)}")
    A(f"v_lshrrev_b32 {v(t5)}, 5, {v(vL)}")
    A(f"v_bfe_u32 {v(t6)}, {v(vL)}, 1, 2")
    A(f"v_lshlrev_b32 {v(t7)}, 1, {v(t5)}")
    A(f"v_xor_b32 {v(t6)}, {v(t6)}, {v(t7)}")
    A(f"v_lshlrev_b32 {v(t6)}, 4, {v(t6)}")
    A(f"v_lshl_add_u32 {v(t6)}, {v(t4)}, 6, {v(t6)}")
    A(f"v_add_u32 {v(AD+2)}, {s(sM8)}, {v(t6)}")
    A(f"v_xor_b32 {v(AD+3)}, 16, {v(AD+2)}")
    A(f"v_bfe_u32 {v(t4)}, {v(vL)}, 2, 2")
    A(f"v_lshl_add_u32 {v(t4)}, {v(t5)}, 3, {v(t4)}")
    A(f"v_bfe_u32 {v(t6)}, {v(vL)}, 4, 1"); A(f"v_bfe_u32 {v(t7)}, {v(vL)}, 1, 1")
    A(f"v_lshl_add_u32 {v(t6)}, {v(t6)}, 1, {v(t7)}")
    A(f"v_bfe_u32 {v(t7)}, {v(vL)}, 3, 1")
    A(f"v_xor_b32 {v(t6)}, {v(t6)}, {v(t7)}")
    A(f"v_lshlrev_b32 {v(t6)}, 4, {v(t6)}")
    A(f"v_lshl_add_u32 {v(t6)}, {v(t4)}, 6, {v(t6)}")
    A(f"v_and_b32 {v(t7)}, 1, {v(vL)}")
    A(f"v_lshl_add_u32 {v(t6)}, {v(t7)}, 3, {v(t6)}")
    A(f"v_add_u32 {v(AD+4)}, {s(sM8)}, {v(t6)}")
    A(f"v_xor_b32 {v(AD+5)}, 32, {v(AD+4)}")
    LB = ACC
    so = [sT0, sT1, sT3, sU0]; ex = [sU1, sU2, sXO, sWO]
    for q in range(4):
        A(f"s_lshl2_add_u32 {s(so[q])}, {s(sW)}, {q+1}")
        A(f"s_lshl_b32 {s(sD0)}, {s(so[q])}, 10")
        A(f"s_sub_u32 {s(sD0)}, {s(sT2)}, {s(sD0)}")
        A(f"s_cmp_le_u32 {s(so[q])}, {s(sC)}")
        A(f"s_cselect_b32 {s(so[q])}, {s(sD0)}, {WS_SIZE}")
        A(f"s_cselect_b32 {s(ex[q])}, {s(sTAG)}, 0")
    A(f"s_mul_i32 {s(sD0)}, {s(sTT)}, 98304"); A(f"s_lshl_b32 {s(sD1)}, {s(sJ)}, 13"); A(f"s_add_u32 {s(sD0)}, {s(sD0)}, {s(sD1)}")
    A(f"s_add_u32 {s(sU3)}, {s(sD0)}, {WS_ACT}")
    flag_addr(sT2, sD0, WS_HF)
    stamp(23)
    def ld():
        for q in range(4): A(f"buffer_load_dwordx4 {v(LB+4*q,4)}, {v(vL16)}, {s(R_WS,4)}, {s(so[q])} offen sc1")
    def ck():
        A(f"v_xor_b32 {v(t0)}, {s(ex[0])}, {v(LB+1)}")
        for r in (3, 5, 7, 9, 11, 13, 15):
            A(f"v_bitop3_b32 {v(t0)}, {v(t0)}, {v(LB+r)}, {s(ex[r//4])} bitop3:0xf6")
        A(f"v_cmp_ne_u32 vcc, 0, {v(t0)}")
    spin("L_pagg", ld, ck)
    stamp(4)
    for q in range(4):
        if q == 0: A(f"v_pk_mul_f32 {v(t0,2)}, {v(LB,2)}, {v(WG_,2)} op_sel_hi:[0,1]")
        else: A(f"v_pk_fma_f32 {v(t0,2)}, {v(LB+4*q,2)}, {v(WG_+2*q,2)}, {v(t0,2)} op_sel_hi:[0,1,1]")
        A(f"v_pk_fma_f32 {v(t0,2)}, {v(LB+4*q+2,2)}, {v(WG_+2*q,2)}, {v(t0,2)} op_sel:[0,1,0] op_sel_hi:[0,0,1] neg_lo:[0,1,0]")
    A(f"ds_write_b64 {v(AD+1)}, {v(t0,2)} offset:2048")
    A.wait_all(vm=False)
    A("s_barrier")
    for q in range(4): tok = A(f"ds_read_b64 {v(EW+2*q,2)}, {v(AD)} offset:{2048+q*512}")
    A.wait(lg=tok)
    A(f"v_pk_add_f32 {v(EW,2)}, {v(EW,2)}, {v(EW+2,2)}")
    A(f"v_pk_add_f32 {v(EW+4,2)}, {v(EW+4,2)}, {v(EW+6,2)}")
    A(f"v_pk_add_f32 {v(EW,2)}, {v(EW,2)}, {v(EW+4,2)}")
    cmul(t0, EW, WSEG, PW)
    cmul(t2, t0, L16, EK)
    A(f"v_permlane32_swap_b32 {v(t0)}, {v(t2)}")
    A(f"v_permlane32_swap_b32 {v(t1)}, {v(t3)}")
    HP = ACC; HT = ACC + 32
    rtok = []
    def h_reads(ct):
        for f in range(4 * ct, 4 * ct + 4):
            A(f"ds_read_b64_tr_b16 {v(HT+4*f,2)}, {v(AD+4)} offset:{f*1024}")
            rtok.append(A(f"ds_read_b64_tr_b16 {v(HT+4*f+2,2)}, {v(AD+5)} offset:{f*1024+256}"))
    def h_store(f):
        A.wait(lg=rtok[f])
        if f == 4: A(f"s_add_u32 {s(sU3)}, {s(sU3)}, 4096")
        return A(f"buffer_store_dwordx4 {v(HT+4*f,4)}, {v(vL16)}, {s(R_WS,4)}, {s(sU3)} offen offset:{(f%4)*1024} sc1")
    for ct in range(2):
        for k in range(16):
            src = t0 + 2 * ct if k == 0 else upair(ct, k - 1)
            cmul(upair(ct, k), src, LT + 2 * ct, upair(ct, k))
            if k & 1:
                for cp in range(2):
                    A(f"v_cvt_pk_bf16_f32 {v(HP+8*(2*ct+cp)+k//2)}, {v(upair(ct,k-1)+cp)}, {v(upair(ct,k)+cp)}")
            if k in (7, 15):
                for m in (2 * ct, 2 * ct + 1):
                    A(f"ds_write_b128 {v(AD+2+k//8)}, {v(HP+8*m+4*(k//8),4)} offset:{m*2048}")
            if ct == 1 and k == 3: h_reads(0)
            if ct == 1 and k in (9, 11, 13, 15): h_store((k - 9) // 2)
    h_reads(1)
    for f in range(4, 8): tok_h = h_store(f)
    stamp(5)
    rest = Stream(([] if opt.get('c3early') else c_ops(3)) + c_ops(1))
    rest.dma(8)
    A.wait(vm=tok_h)
    flag_store(sT2)
    stamp(6)
    A("s_barrier")
    rest.rest()
    run(c_ops(0))
    A(f"s_cmp_eq_u32 {s(sJ)}, 0")
    A("s_cbranch_scc0 L_phase2")
    GD = ACC
    tg = A(f"global_load_dwordx4 {v(GD,4)}, {v(vL16)}, {s(P_GW,2)}")
    A(f"s_add_u32 {s(sT0)}, {s(sMX)}, {SCR+4096}")
    A(f"v_add_u32 {v(AD+2)}, {s(sT0)}, {v(vL16)}")
    for q in range(4): A(f"v_mov_b32 {v(GD+4+q)}, 0")
    A(f"ds_write_b128 {v(AD+2)}, {v(GD+4,4)} offset:2048")
    A(f"ds_write_b128 {v(AD+2)}, {v(GD+4,4)} offset:3072")
    A(f"s_lshl_b32 {s(sT1)}, {s(sK0)}, 7"); A(f"s_add_u32 {s(sT0)}, {s(sT0)}, {s(sT1)}")
    A(f"v_lshrrev_b32 {v(t0)}, 5, {v(vL)}")
    A(f"v_lshl_add_u32 {v(AD+3)}, {v(t0)}, 4, {s(sT0)}")
    A(f"v_lshrrev_b32 {v(t0)}, 4, {v(vL)}"); A(f"v_xor_b32 {v(t0)}, {v(t0)}, {v(vL)}"); A(f"v_and_b32 {v(t0)}, 1, {v(t0)}")
    A(f"v_lshl_add_u32 {v(AD+3)}, {v(t0)}, 11, {v(AD+3)}")
    A.wait(vm=tg)
    A(f"ds_write_b128 {v(AD+2)}, {v(GD,4)}")
    A(f"ds_write_b128 {v(AD+2)}, {v(GD,4)} offset:1024")
    toks = []
    for st in range(8): toks.append(A(f"ds_read_b128 {v(BUF+4*st,4)}, {v(AD+3)} offset:{st*32}"))
    for st in range(32):
        A.wait(lg=toks[st])
        A(f"v_mfma_f32_16x16x32_bf16 {v(GD+8,4)}, {v(BUF+4*(st%8),4)}, {a(4*st,4)}, {'0' if st == 0 else v(GD+8,4)}")
        if st + 8 < 32: toks.append(A(f"ds_read_b128 {v(BUF+4*(st%8),4)}, {v(AD+3)} offset:{(st+8)*32}"))
    A(f"v_bfe_u32 {v(t0)}, {v(vL)}, 2, 1"); A(f"v_bfe_u32 {v(t1)}, {v(vL)}, 3, 2"); A(f"v_and_b32 {v(t2)}, 12, {v(vL4)}")
    A(f"v_lshl_add_u32 {v(t2)}, {v(t1)}, 4, {v(t2)}")
    A(f"v_lshl_add_u32 {v(t2)}, {v(t0)}, 6, {v(t2)}")
    A(f"s_lshl_b32 {s(sT0)}, {s(sTT)}, 7"); A(f"s_add_u32 {s(sT0)}, {s(sT0)}, {WS_G}")
    A(f"s_lshl_b32 {s(sT1)}, {s(sTT)}, 9"); A(f"s_add_u32 {s(sT1)}, {s(sT1)}, {WS_OF+16}")
    A(f"v_lshlrev_b32 {v(t3)}, 8, {v(vL)}")
    sel_exec(0xffff0000, 0)
    A(f"v_mov_b32 {v(GD+8)}, {v(GD+9)}")
    sel_exec(0xffffffff, 0)
    A(f"v_mul_f32 {v(t0)}, 0xbfb8aa3b, {v(GD+8)}")
    A(f"v_exp_f32 {v(t0)}, {v(t0)}")
    A(f"v_add_f32 {v(t0)}, 1.0, {v(t0)}")
    A(f"v_rcp_f32 {v(t0)}, {v(t0)}")
    A("s_nop 0")
    A(f"buffer_store_dword {v(t0)}, {v(t2)}, {s(R_WS,4)}, {s(sT0)} offen sc1")
    A.wait_all(vm=True, lg=False)
    flag_store(sT1, 3, t3)
    A("s_branch L_phase2")

    A.restore(snap0)
    A.label("L_attn")
    A(f"s_mov_b32 {s(sL2E)}, 0x3fb8aa3b"); A(f"s_mov_b32 {s(sL2E+1)}, 0x3fb8aa3b")
    A(f"s_mov_b32 {s(sEPS)}, 0x358637bd"); A(f"s_mov_b32 {s(sEPS+1)}, 0x358637bd")
    NL = AD + 10
    A(f"v_mov_b32 {v(NL)}, 0xbfb8aa3b"); A(f"v_mov_b32 {v(NL+1)}, 0xbfb8aa3b")
    ONES = TMP + 48
    for q in range(4): A(f"v_mov_b32 {v(ONES+q)}, 0x3f803f80")
    A(f"s_lshl2_add_u32 {s(sT2)}, {s(sJ)}, {s(sW)}")
    A(f"s_lshl4_add_u32 {s(sT3)}, {s(sT2)}, {s(sC)}")
    A(f"s_lshl_b32 {s(sU1)}, {s(sT3)}, 10"); A(f"s_add_u32 {s(sU1)}, {s(sU1)}, {WS_KVP}")
    A(f"s_lshl_b32 {s(sU2)}, {s(sT3)}, 6"); A(f"s_add_u32 {s(sU2)}, {s(sU2)}, {WS_ZP}")
    for q in range(4): A(f"v_mov_b32 {v(TMP+q)}, -1")
    A(f"buffer_store_dwordx4 {v(TMP,4)}, {v(vL16)}, {s(R_WS,4)}, {s(sU1)} offen sc1")
    A("s_mov_b64 exec, 0xffff")
    tok_clr = A(f"buffer_store_dword {v(TMP)}, {v(vL4)}, {s(R_WS,4)}, {s(sU2)} offen sc1")
    A("s_mov_b64 exec, -1")
    A(f"s_lshl_b32 {s(sU0)}, {s(sT2)}, 8"); A(f"s_add_u32 {s(sU0)}, {s(sU0)}, {WS_KVF}")
    A(f"s_lshl2_add_u32 {s(sT3)}, {s(sC)}, {s(sU0)}")
    A(f"s_lshl_b32 {s(sT0)}, {s(sW)}, 10"); A(f"s_add_u32 {s(sT0)}, {s(sT0)}, {SCR}")
    A(f"v_add_u32 {v(AD)}, {s(sT0)}, {v(vL16)}")
    A(f"s_add_u32 {s(sT0)}, {s(sMX)}, {SCR}")
    A(f"v_add_u32 {v(AD+1)}, {s(sT0)}, {v(vL16)}")
    A(f"s_lshl_b32 {s(sT0)}, {s(sW)}, 8"); A(f"s_add_u32 {s(sT0)}, {s(sT0)}, {SCR+16384}")
    A(f"v_add_u32 {v(AD+2)}, {s(sT0)}, {v(vL4)}")
    A(f"s_lshl_b32 {s(sT0)}, {s(sW)}, 6"); A(f"s_add_u32 {s(sT0)}, {s(sT0)}, {SCR+16384}")
    A(f"v_and_b32 {v(AD+4)}, 60, {v(vL4)}")
    A(f"v_add_u32 {v(AD+3)}, {s(sT0)}, {v(AD+4)}")
    A(f"v_add_u32 {v(AD+6)}, {SCR}, {v(RW)}"); A(f"v_add_u32 {v(AD+7)}, {SCR}, {v(RW+1)}")
    get_tag()
    stamp(1)
    def hook2():
        A.wait(vm=tok_clr)
        flag_store(sT3)
    tokF = []
    def hook7():
        tokF.append(A(f"buffer_load_dword {v(vF)}, {v(AD+4)}, {s(R_WS,4)}, {s(sU0)} offen sc1"))
    utok = main_loop('attn', [wq_ops(0), wq_ops(1)], {2: hook2, 7: hook7})
    stamp(2)
    tok_wq = utok[9]
    A("s_barrier")
    def phi_ops(src, dst):
        L = []
        def fin(sr, pp, d):
            L.append(f"v_max_f32 {v(pp)}, {v(pp)}, {v(sr)}")
            L.append(f"v_max_f32 {v(pp+1)}, {v(pp+1)}, {v(sr+1)}")
            L.append(f"v_pk_add_f32 {v(pp,2)}, {v(pp,2)}, {s(sEPS,2)}")
            L.append(f"v_cvt_pk_bf16_f32 {v(d)}, {v(pp)}, {v(pp+1)}")
        for k in range(0, 16, 2):
            tt = t0 + 2 * ((k // 2) % 4)
            L.append(f"v_pk_fma_f32 {v(tt,2)}, {v(src+k,2)}, {s(sL2E,2)}, {v(NL,2)}")
            L.append(f"v_exp_f32 {v(tt)}, {v(tt)} clamp")
            L.append(f"v_exp_f32 {v(tt+1)}, {v(tt+1)} clamp")
            if k >= 2: fin(src + k - 2, t0 + 2 * ((k // 2 - 1) % 4), dst + k // 2 - 1)
        fin(src + 14, t0 + 2 * (7 % 4), dst + 7)
        return L
    PK, PV = TMP, TMP + 16
    ZD = TM2
    st_ = Stream(c_ops(2) + c_ops(3))
    st_.dma(2)
    sprinkle(phi_ops(ACC, PK) + phi_ops(ACC + 16, PK + 8), st_, opt.get('e1every', 10))
    for tl in range(2):
        for f in range(2):
            A(f"v_mfma_f32_32x32x16_bf16 {v(ZD+16*tl,16)}, {v(ONES,4)}, {v(PK+8*tl+4*f,4)}, {'0' if f == 0 else v(ZD+16*tl,16)}")
            for k in range(4 * f, 4 * f + 4): A(f"v_cvt_pk_bf16_f32 {v(PV+8*tl+k)}, {v(ACC+32+16*tl+2*k)}, {v(ACC+32+16*tl+2*k+1)}")
    for tl in range(2):
        for f in range(2):
            A(f"v_mfma_f32_32x32x16_bf16 {v(ACC+16*tl,16)}, {v(PK+8*tl+4*f,4)}, {v(PV+8*tl+4*f,4)}, {'0' if f == 0 else v(ACC+16*tl,16)}")
            st_.dma()
    st_.rest()
    sel_exec(0, 0xffffffff)
    A(f"v_mov_b32 {v(ZD)}, {v(ZD+16)}")
    A("s_mov_b64 exec, -1")
    A(f"ds_write_b32 {v(AD+2)}, {v(ZD)}")
    for tl in range(2):
        sel_exec(0xffff0000, 0xffff0000)
        for q in range(4): A(f"v_mov_b64 {v(ACC+16*tl+2*q,2)}, {v(ACC+16*tl+8+2*q,2)}")
        A("s_mov_b64 exec, -1")
        for jj in range(2): A(f"ds_write_b128 {v(AD)}, {v(ACC+16*tl+4*jj,4)} offset:{(2*tl+jj)*4096}")
    A.wait(vm=tokF[0])
    A(f"v_cmp_ne_u32 vcc, {v(vF)}, {v(vTAG)}")
    A.wait_all(vm=False)
    A("s_barrier")
    for q in range(4): tk = A(f"ds_read_b128 {v(ACC+4*q,4)}, {v(AD+1)} offset:{q*1024}")
    for q in range(4): tz = A(f"ds_read_b32 {v(ACC+16+q)}, {v(AD+3)} offset:{q*256}")
    QA = TM2
    def qreads(ks):
        b = BUF + 8 * (ks % 4)
        L = []
        for tl in range(2):
            base = (ks // 4) * 8192 + (ks % 4) * 2048
            L.append(f"ds_read_b64_tr_b16 {v(b+4*tl,2)}, {v(RT+tl)} offset:{base}")
            L.append(f"ds_read_b64_tr_b16 {v(b+4*tl+2,2)}, {v(RT+tl)} offset:{base+512}")
        return L
    toks = [run(qreads(0))]
    A.wait(lg=tk)
    for e in (0, 2):
        A(f"v_pk_add_f32 {v(ACC+e,2)}, {v(ACC+e,2)}, {v(ACC+4+e,2)}")
        A(f"v_pk_add_f32 {v(ACC+8+e,2)}, {v(ACC+8+e,2)}, {v(ACC+12+e,2)}")
        A(f"v_pk_add_f32 {v(ACC+e,2)}, {v(ACC+e,2)}, {v(ACC+8+e,2)}")
    for e in range(4): A(f"v_min_u32 {v(ACC+e)}, -2, {v(ACC+e)}")
    A(f"buffer_store_dwordx4 {v(ACC,4)}, {v(vL16)}, {s(R_WS,4)}, {s(sU1)} offen sc1")
    A.wait(lg=tz)
    A(f"v_pk_add_f32 {v(ACC+16,2)}, {v(ACC+16,2)}, {v(ACC+18,2)}")
    A(f"v_add_f32 {v(ACC+16)}, {v(ACC+16)}, {v(ACC+17)}")
    A(f"v_min_u32 {v(ACC+16)}, -2, {v(ACC+16)}")
    A("s_mov_b64 exec, 0xffff")
    A(f"buffer_store_dword {v(ACC+16)}, {v(vL4)}, {s(R_WS,4)}, {s(sU2)} offen sc1")
    A("s_mov_b64 exec, -1")
    stamp(3)
    A("s_cbranch_vccz L_clr_x")
    snap = A.snapshot()
    def ld(): A(f"buffer_load_dword {v(vF)}, {v(AD+4)}, {s(R_WS,4)}, {s(sU0)} offen sc1")
    def ck(): A(f"v_cmp_ne_u32 vcc, {v(vF)}, {v(vTAG)}")
    spin("L_clr", ld, ck)
    A.restore(snap)
    toks.append(run(qreads(1)))
    A(f"s_lshl_b32 {s(sU1)}, {s(sT2)}, 14"); A(f"s_add_u32 {s(sU1)}, {s(sU1)}, {WS_KVP}")
    A(f"s_lshl_b32 {s(sU2)}, {s(sT2)}, 10"); A(f"s_add_u32 {s(sU2)}, {s(sU2)}, {WS_ZP}")
    ZL = TMP + 52
    def kv_loads():
        L = [f"buffer_load_dword {v(ZL+q)}, {v(vL4)}, {s(R_WS,4)}, {s(sU2)} offen offset:{q*256} sc1" for q in range(4)]
        for q in range(16):
            if q % 4 == 0: L.append(f"s_add_u32 {s(sD1)}, {s(sU1)}, {q*1024}")
            L.append(f"buffer_load_dwordx4 {v(ACC+4*q,4)}, {v(vL16)}, {s(R_WS,4)}, {s(sD1)} offen offset:{(q%4)*1024} sc1")
        return L
    KVAT = opt.get('kvat', 24)
    side = None; wrd = None
    for ks in range(32):
        if ks == 2:
            A("s_barrier")
            side = Stream(wo_ops(0, SCR))
        if ks == 16:
            A.wait(vm=tok_wo0)
            A("s_barrier")
            side = Stream(wo_ops(1, 0)); wrd = Stream(wo_reads(0, AD + 6, 0))
        if ks == KVAT:
            side.rest(); tok_wo1 = A.vm
            side = Stream(kv_loads())
        A.wait(lg=toks[ks])
        rd = qreads(ks + 2) if ks + 2 < 32 else []
        b = BUF + 8 * (ks % 4)
        for tl in range(2):
            A(f"v_mfma_f32_32x32x16_bf16 {v(QA+16*tl,16)}, {v(b+4*tl,4)}, {a(4*ks,4)}, {'1.0' if ks == 0 else v(QA+16*tl,16)}")
            if tl == 0:
                run(rd); toks.append(A.lg)
            else:
                if wrd: wrd.some(2)
                if side: side.dma()
        if ks == 15:
            side.rest(); tok_wo0 = A.vm
    wrd.rest()
    PQ = TMP
    sprinkle(phi_ops(QA, PQ), side, 4)
    side.rest()
    tok_kv = A.vm
    A.wait(vm=tok_wo1); A.wait_all(vm=False)
    A("s_barrier")
    run(wo_reads(1, RW, 0))
    side = Stream(c_ops(1))
    sprinkle(phi_ops(QA + 16, PQ + 8), side, 7)
    side.rest()
    KVS, ZS = SCR + 20480, SCR + 22528
    A(f"s_lshr_b32 {s(sT0)}, {s(sW)}, 1"); A(f"s_lshl_b32 {s(sT0)}, {s(sT0)}, 10")
    A(f"s_lshl3_add_u32 {s(sT1)}, {s(sKH)}, {s(sT0)}"); A(f"s_add_u32 {s(sT1)}, {s(sT1)}, {KVS}")
    A(f"v_add_u32 {v(AD)}, {s(sT1)}, {v(vL16)}")
    A(f"s_lshl_b32 {s(sT1)}, {s(sKH)}, 5"); A(f"s_add_u32 {s(sT1)}, {s(sT1)}, {s(sT0)}"); A(f"s_add_u32 {s(sT1)}, {s(sT1)}, {ZS}")
    A(f"v_bfe_u32 {v(t4)}, {v(vL)}, 2, 1"); A(f"v_bfe_u32 {v(t5)}, {v(vL)}, 3, 1"); A(f"v_and_b32 {v(t6)}, 3, {v(vL)}")
    A(f"v_lshl_add_u32 {v(t6)}, {v(t6)}, 1, {s(sT1)}")
    A(f"v_lshl_add_u32 {v(t6)}, {v(t5)}, 3, {v(t6)}")
    A(f"v_lshl_add_u32 {v(AD+1)}, {v(t4)}, 4, {v(t6)}")
    A(f"v_add_u32 {v(AD+2)}, {KVS}, {v(vL16)}")
    A(f"v_mov_b32 {v(AD+3)}, {v(AD+2)}")
    A(f"v_lshrrev_b32 {v(t5)}, 5, {v(vL)}")
    A(f"v_lshlrev_b32 {v(t5)}, 4, {v(t5)}")
    sel_exec(0xffff0000, 0xffff0000)
    A(f"v_add_u32 {v(AD+2)}, {ZS}, {v(t5)}")
    sel_exec(0x0000ffff, 0x0000ffff)
    A(f"v_add_u32 {v(AD+3)}, {ZS+32}, {v(t5)}")
    A("s_mov_b64 exec, -1")
    A(f"v_bfe_u32 {v(t5)}, {v(vL)}, 3, 2"); A(f"v_and_b32 {v(t6)}, 35, {v(vL)}")
    A(f"v_lshl_add_u32 {v(t6)}, {v(t5)}, 2, {v(t6)}")
    A(f"v_lshl_add_u32 {v(t6)}, {v(t4)}, 4, {v(t6)}")
    A(f"v_lshlrev_b32 {v(AD+5)}, 4, {v(t6)}")
    A(f"s_mul_i32 {s(sT0)}, {s(sTT)}, 98304"); A(f"s_lshl_b32 {s(sT1)}, {s(sJ)}, 12"); A(f"s_add_u32 {s(sT0)}, {s(sT0)}, {s(sT1)}")
    A(f"s_add_u32 {s(sT0)}, {s(sT0)}, {WS_ACT+65536}")
    flag_addr(sT2, sT3, WS_OF)
    A(f"s_mov_b32 {s(sCNT)}, {SPIN}")
    stamp(4)
    A.wait(vm=tok_kv)
    A.label("L_kvck")
    A(f"v_max3_u32 {v(t0)}, {v(ZL)}, {v(ZL+1)}, {v(ZL+2)}")
    A(f"v_max3_u32 {v(t0)}, {v(t0)}, {v(ZL+3)}, {v(ACC)}")
    for r in range(1, 63, 2): A(f"v_max3_u32 {v(t0)}, {v(t0)}, {v(ACC+r)}, {v(ACC+r+1)}")
    A(f"v_max_u32 {v(t0)}, {v(t0)}, {v(ACC+63)}")
    A(f"v_cmp_eq_u32 vcc, -1, {v(t0)}")
    A(f"s_sub_u32 {s(sCNT)}, {s(sCNT)}, 1")
    A("s_cbranch_scc1 L_kvok")
    A("s_cbranch_vccz L_kvok")
    snap = A.snapshot()
    run(kv_loads())
    A.wait_all(vm=True, lg=False, force=True)
    A("s_branch L_kvck")
    A.restore(snap)
    A.label("L_kvok")
    stamp(5)
    A(f"v_pk_add_f32 {v(ZL,2)}, {v(ZL,2)}, {v(ZL+2,2)}")
    A(f"v_add_f32 {v(t0)}, {v(ZL)}, {v(ZL+1)}")
    A(f"v_mov_b32 {v(t1)}, {v(t0)}")
    adds = []
    for lvl in (8, 4, 2, 1):
        for q in range(lvl):
            for e in (0, 2): adds.append(f"v_pk_add_f32 {v(ACC+4*q+e,2)}, {v(ACC+4*q+e,2)}, {v(ACC+4*(q+lvl)+e,2)}")
    run(adds[:2])
    A(f"v_permlane32_swap_b32 {v(t0)}, {v(t1)}")
    A(f"v_add_f32 {v(t0)}, {v(t0)}, {v(t1)}")
    A(f"v_mov_b32 {v(t1)}, {v(t0)}")
    run(adds[2:4])
    A(f"v_permlane16_swap_b32 {v(t0)}, {v(t1)}")
    A(f"v_add_f32 {v(t0)}, {v(t0)}, {v(t1)}")
    A(f"v_cvt_pk_bf16_f32 {v(t0)}, {v(t0)}, {v(t0)}")
    A(f"ds_write_b16 {v(AD+1)}, {v(t0)}")
    run(adds[4:])
    A(f"v_cvt_pk_bf16_f32 {v(t2)}, {v(ACC)}, {v(ACC+1)}")
    A(f"v_cvt_pk_bf16_f32 {v(t3)}, {v(ACC+2)}, {v(ACC+3)}")
    A(f"ds_write_b64 {v(AD)}, {v(t2,2)}")
    A.wait_all(vm=False)
    A("s_barrier")
    AF = TMP + 16
    toks = []
    for hd4 in range(4): toks.append(A(f"ds_read_b128 {v(AF+4*hd4,4)}, {v(AD+2+(hd4&1))} offset:{(hd4>>1)*1024}"))
    side = Stream(c_ops(0))
    for hd4 in range(4):
        A.wait(lg=toks[hd4])
        A(f"v_mfma_f32_32x32x16_bf16 {v(ACC+16*hd4,16)}, {v(AF+4*hd4,4)}, {v(PQ+4*hd4,4)}, 0")
        side.dma()
    OP = TMP + 32
    for hd4 in range(4):
        hd = hd4 & 1
        nb_, db_ = ACC + 16 * hd4 + 8 * hd, ACC + 16 * hd4 + 8 * (1 - hd)
        A(f"v_add_f32 {v(db_)}, {s(sEPS)}, {v(db_)}")
        A(f"v_rcp_f32 {v(db_)}, {v(db_)}")
        for e in range(0, 8, 2): A(f"v_pk_mul_f32 {v(nb_+e,2)}, {v(nb_+e,2)}, {v(db_,2)} op_sel_hi:[1,0]")
        for e in range(0, 8, 2): A(f"v_cvt_pk_bf16_f32 {v(OP+4*hd4+e//2)}, {v(nb_+e)}, {v(nb_+e+1)}")
        tok_o = A(f"buffer_store_dwordx4 {v(OP+4*hd4,4)}, {v(AD+5)}, {s(R_WS,4)}, {s(sT0)} offen offset:{hd4*1024} sc1")
    side.rest()
    A.wait(vm=tok_o)
    flag_store(sT2)
    stamp(6)

    A.label("L_phase2")
    A.hist = []
    A("s_nop 1")
    sTT2 = sTT
    A(f"s_lshr_b32 {s(sT0)}, {s(sW)}, 1"); A(f"s_lshl1_add_u32 {s(sTT2)}, {s(sRB)}, {s(sT0)}")
    A(f"s_lshl1_add_u32 {s(sT0)}, {s(sNB)}, {s(sKH)}"); A(f"s_lshl_b32 {s(sT0)}, {s(sT0)}, 5")
    A(f"v_and_b32 {v(t0)}, 31, {v(vL)}")
    A(f"v_add_u32 {v(t0)}, {s(sT0)}, {v(t0)}")
    A(f"v_lshrrev_b32 {v(t1)}, 5, {v(vL)}")
    A(f"v_lshlrev_b32 {v(t2)}, 1, {v(t0)}")
    A(f"v_lshl_add_u32 {v(AD)}, {v(t1)}, 12, {v(t2)}")
    A(f"v_lshlrev_b32 {v(t3)}, 2, {v(t0)}")
    A(f"v_lshl_add_u32 {v(AD+1)}, {v(t1)}, 13, {v(t3)}")
    A(f"v_lshlrev_b32 {v(AD+2)}, 4, {v(t1)}")
    A(f"global_load_ushort {v(t4)}, {v(t2)}, {s(P_DSK,2)}")
    A(f"s_lshl_b32 {s(sT0)}, {s(sTT2)}, 15")
    for j in range(4):
        for i in range(4):
            A(f"buffer_load_ushort {v(ACC+4*j+i)}, {v(AD)}, {s(R_X,4)}, {s(sT0)} offen offset:{i*1024}")
        if j < 3: A(f"s_add_u32 {s(sT0)}, {s(sT0)}, 8192")
    A(f"s_mul_i32 {s(sT0)}, {s(sKH)}, {65536+4096}")
    A(f"s_xor_b32 {s(sT1)}, {s(sT0)}, 4096")
    for q in range(4):
        A(f"v_add_u32 {v(RA+q)}, {s(sT0)}, {v(RN+q)}")
        A(f"v_add_u32 {v(RB+q)}, {s(sT1)}, {v(RN+q)}")
    A(f"s_lshl1_add_u32 {s(sT2)}, {s(sTT2)}, {s(sKH)}"); A(f"s_lshl_b32 {s(sT2)}, {s(sT2)}, 8")
    A(f"s_add_u32 {s(sT3)}, {s(sT2)}, {WS_HF}")
    A(f"s_add_u32 {s(sT2)}, {s(sT2)}, {WS_OF}")
    A(f"v_and_b32 {v(AD+3)}, 12, {v(vL4)}")
    A(f"v_min_u32 {v(AD+6)}, 16, {v(vL4)}")
    A(f"s_xor_b32 {s(sT0)}, {s(sMX)}, 4096"); A(f"s_add_u32 {s(sT0)}, {s(sT0)}, {SCR}")
    A(f"v_add_u32 {v(AD+4)}, {s(sT0)}, {v(vL16)}")
    A(f"v_xor_b32 {v(AD+5)}, 4096, {v(AD+4)}")
    A(f"s_mul_i32 {s(sXO)}, {s(sTT2)}, 98304"); A(f"s_add_u32 {s(sXO)}, {s(sXO)}, {WS_ACT}")
    A(f"s_lshl_b32 {s(sU0)}, {s(sKH)}, 15"); A(f"s_add_u32 {s(sU0)}, {s(sU0)}, {s(sXO)}")
    A(f"s_lshl_b32 {s(sU1)}, {s(sKH)}, 14"); A(f"s_add_u32 {s(sU1)}, {s(sU1)}, {s(sXO)}"); A(f"s_add_u32 {s(sU1)}, {s(sU1)}, 65536")
    A(f"s_lshl_b32 {s(sU2)}, {s(sTT2)}, 7"); A(f"s_add_u32 {s(sU2)}, {s(sU2)}, {WS_G}")
    stamp(7)
    def ld(): A(f"buffer_load_dword {v(vF)}, {v(AD+3)}, {s(R_WS,4)}, {s(sT3)} offen sc1")
    def ck(): A(f"v_cmp_ne_u32 vcc, {v(vF)}, {v(vTAG)}")
    spin("L_ph", ld, ck)
    stamp(8)
    def hload(ks):
        o = []
        if ks % 4 == 0 and ks: o.append(f"s_add_u32 {s(sU0)}, {s(sU0)}, 4096")
        o.append(f"buffer_load_dwordx4 {a(4*ks,4)}, {v(vL16)}, {s(R_WS,4)}, {s(sU0)} offen offset:{(ks%4)*1024} sc1")
        return o
    AHEAD = opt.get('ahead', 14)
    htok = [run(hload(k)) for k in range(4)]
    A.wait_all(vm=False, lg=True, force=True)
    A("s_barrier")
    htok += [run(hload(k)) for k in range(4, AHEAD)]
    def creads(ks):
        jb, m, st = ks >> 3, (ks >> 1) & 3, ks & 1
        ct, cp = m >> 1, m & 1
        b = BUF + 8 * (ks % 4)
        off = jb * 16384 + cp * 8192
        return [f"ds_read_b128 {v(b,4)}, {v(RA+2*ct+st)} offset:{off}", f"ds_read_b128 {v(b+4,4)}, {v(RB+2*ct+st)} offset:{off}"]
    ctok = [run(creads(k)) for k in range(3)]
    A(f"v_lshlrev_b32 {v(t4)}, 16, {v(t4)}")
    for k in range(16): A(f"v_lshlrev_b32 {v(ACC+k)}, 16, {v(ACC+k)}")
    for k in range(0, 16, 2): A(f"v_pk_mul_f32 {v(ACC+k,2)}, {v(ACC+k,2)}, {v(t4,2)} op_sel_hi:[1,0]")
    GG = TM2
    def og_loads():
        L = [f"buffer_load_dwordx4 {v(GG+4*j,4)}, {v(AD+2)}, {s(R_WS,4)}, {s(sU2)} offen offset:{j*32} sc1" for j in range(4)]
        for ks in range(16):
            if ks % 4 == 0 and ks: L.append(f"s_add_u32 {s(sU1)}, {s(sU1)}, 4096")
            L.append(f"buffer_load_dwordx4 {v(TMP+4*ks,4)}, {v(vL16)}, {s(R_WS,4)}, {s(sU1)} offen offset:{(ks%4)*1024} sc1")
        return L
    KCHK = 32 - AHEAD
    def step2a(ks, side):
        A.wait(vm=htok[ks], lg=ctok[ks])
        b = BUF + 8 * (ks % 4)
        A(f"v_mfma_f32_32x32x16_bf16 {v(ACC,16)}, {a(4*ks,4)}, {v(b,4)}, {v(ACC,16)}")
        if ks + AHEAD < 32: htok.append(run(hload(ks + AHEAD)))
        if side: side.dma(5 if ks == KCHK else 1)
        A(f"v_mfma_f32_32x32x16_bf16 {v(ACC+16,16)}, {a(4*ks,4)}, {v(b+4,4)}, {'0' if ks == 0 else v(ACC+16,16)}")
        if ks + 3 < 32: ctok.append(run(creads(ks + 3)))
        if side and ks >= 30: side.dma()
    for ks in range(KCHK):
        step2a(ks, None)
        if ks + AHEAD == KCHK: tokO = A(f"buffer_load_dword {v(vF)}, {v(AD+6)}, {s(R_WS,4)}, {s(sT2)} offen sc1")
    A.wait(vm=tokO)
    A(f"v_cmp_ne_u32 vcc, {v(vF)}, {v(vTAG)}")
    A("s_nop 0")
    A("s_cbranch_vccnz L_slow")
    snap = A.snapshot(); ctok_s = list(ctok)
    side = Stream(og_loads())
    for ks in range(KCHK, 32): step2a(ks, side)
    side.rest()
    stamp(9); stamp(10)
    A.label("L_2b")
    otok = [A.vm - 15 + k for k in range(16)]
    A.wait(vm=otok[0] - 1)
    A("s_nop 7")
    for tl in range(2):
        for k in range(0, 16, 2): A(f"v_pk_mul_f32 {v(ACC+16*tl+k,2)}, {v(ACC+16*tl+k,2)}, {v(GG+k,2)}")
    for k in range(0, 16, 2): A(f"v_pk_add_f32 {v(GG+k,2)}, {v(GG+k,2)}, 1.0 op_sel_hi:[1,0] neg_lo:[1,0] neg_hi:[1,0]")
    for ks in range(16):
        A.wait(vm=otok[ks])
        for tl in (1, 0):
            A(f"v_mfma_f32_32x32x16_bf16 {v(ACC+32+16*tl,16)}, {v(TMP+4*ks,4)}, {a(128+8*ks+4*tl,4)}, {'0' if ks == 0 else v(ACC+32+16*tl,16)}")
    stamp(11)
    A(f"s_lshl_b32 {s(sT0)}, {s(sTT2)}, 16")
    for k in range(0, 16, 2):
        A(f"v_pk_fma_f32 {v(ACC+16+k,2)}, {v(ACC+48+k,2)}, {v(GG+k,2)}, {v(ACC+16+k,2)}")
        if k % 4 == 2: A(f"ds_write_b128 {v(AD+4)}, {v(ACC+16+k-2,4)} offset:{(k//4)*1024}")
    for k in range(0, 16, 2): A(f"v_pk_fma_f32 {v(ACC+k,2)}, {v(ACC+32+k,2)}, {v(GG+k,2)}, {v(ACC+k,2)}")
    A.wait_all(vm=False)
    A("s_barrier")
    toks = [A(f"ds_read_b128 {v(ACC+32+4*j,4)}, {v(AD+5)} offset:{j*1024}") for j in range(4)]
    of = {0: "", 1: " nt", 2: " sc1", 3: " sc0 sc1"}[opt.get('outfl', 0)]
    for j in range(4):
        A.wait(lg=toks[j])
        for e in (0, 2): A(f"v_pk_add_f32 {v(ACC+4*j+e,2)}, {v(ACC+4*j+e,2)}, {v(ACC+32+4*j+e,2)}")
        A(f"s_add_u32 {s(sT1)}, {s(sT0)}, 4096")
        for i in range(4):
            A(f"buffer_store_dword {v(ACC+4*j+i)}, {v(AD+1)}, {s(R_OUT,4)}, {s(sT0 if i < 2 else sT1)} offen offset:{(i%2)*2048}{of}")
        if j < 3: A(f"s_add_u32 {s(sT0)}, {s(sT0)}, 16384")
    A(f"s_lshl2_add_u32 {s(sT0)}, {s(sNB)}, {s(sW)}"); A(f"s_lshl_b32 {s(sT0)}, {s(sT0)}, 5"); A(f"s_add_u32 {s(sT0)}, {s(sT0)}, {s(sRB)}")
    A(f"s_cmp_eq_u32 {s(sT0)}, 31")
    A("s_cbranch_scc0 L_fin")
    A("s_mov_b64 exec, 1")
    A(f"buffer_store_dword {v(vTAG)}, {v(vZ)}, {s(R_WS,4)}, 0 offen sc1")
    A("s_mov_b64 exec, -1")
    A.label("L_fin")
    if stamps:
        A("s_waitcnt vmcnt(0)")
        stamp(12)
        A("s_waitcnt lgkmcnt(0)")
        A(f"s_lshl2_add_u32 {s(sT0)}, {s(sWG)}, {s(sW)}"); A(f"s_lshl_b32 {s(sT0)}, {s(sT0)}, 6")
        A(f"s_add_u32 {s(sT0)}, {s(sT0)}, {WS_STAMP}")
        for i in range(14):
            A(f"v_mov_b32 {v(t0)}, {s(SREG[i] if i < 13 else sTY)}")
            A(f"buffer_store_dword {v(t0)}, {v(vZ)}, {s(R_WS,4)}, {s(sT0)} offen offset:{4*i}")
    A("s_endpgm")
    A.label("L_slow")
    A.restore(snap); ctok[:] = ctok_s
    for ks in range(KCHK, 32): step2a(ks, None)
    stamp(9)
    def ld(): A(f"buffer_load_dword {v(vF)}, {v(AD+6)}, {s(R_WS,4)}, {s(sT2)} offen sc1")
    spin("L_po", ld, ck)
    stamp(10)
    run(og_loads())
    A("s_branch L_2b")
    A.label("L_end")
    hdr = open(os.path.join(os.path.dirname(__file__), "header.txt")).read()
    src = hdr + f"; @launch grid=(256,1,1) block=(256,1,1) lds={LDS_BYTES}\n" + f""".amdgcn_target "amdgcn-amd-amdhsa--gfx950"
.text
.globl {KNAME}
.p2align 8
.type {KNAME},@function
{KNAME}:
{A.text()}
    s_endpgm
.section .rodata,"a"
.p2align 6
.amdhsa_kernel {KNAME}
  .amdhsa_next_free_vgpr 512
  .amdhsa_next_free_sgpr 102
  .amdhsa_accum_offset 256
  .amdhsa_group_segment_fixed_size 0
  .amdhsa_kernarg_size 128
  .amdhsa_user_sgpr_count 2
  .amdhsa_user_sgpr_kernarg_segment_ptr 1
  .amdhsa_system_sgpr_workgroup_id_x 1
.end_amdhsa_kernel
"""
    return src, A

if __name__ == "__main__":
    out = sys.argv[1]
    opt = {}
    for kv in sys.argv[3:]:
        k_, v_ = kv.split('='); opt[k_] = int(v_)
    src, A = gen(stamps=len(sys.argv) > 2 and sys.argv[2] == 'stamps', opt=opt)
    open(out, "w").write(src)
    print("lines", len(A.out), "nops", A.nops)
```

```python
import re

REG_RE = re.compile(r'(?<![\w.])([vas])(?:\[(\d+):(\d+)\]|(\d+))(?![\w])')

def regs_of(op):
    out = set()
    for m in REG_RE.finditer(op):
        k = m.group(1)
        if m.group(2) is not None:
            lo, hi = int(m.group(2)), int(m.group(3))
        else:
            lo = hi = int(m.group(4))
        for i in range(lo, hi + 1):
            out.add((k, i))
    if re.search(r'\bvcc\b', op): out.add(('s', 'vcc'))
    if re.search(r'\bexec\b', op): out.add(('s', 'exec'))
    if re.search(r'\bm0\b', op): out.add(('s', 'm0'))
    return out

TRANS = ('v_exp_f32', 'v_log_f32', 'v_rcp_f32', 'v_rsq_f32', 'v_sqrt_f32', 'v_sin_f32', 'v_cos_f32')

class Ins:
    __slots__ = ('text', 'op', 'defs', 'uses', 'kind', 'passes', 'srcC', 'srcAB', 'states', 'wide_store', 'ldsdma')
    def __init__(self, text):
        self.text = text
        t = text.split(';')[0].strip()
        parts = t.split(None, 1)
        self.op = parts[0]
        rest = parts[1] if len(parts) > 1 else ''
        ops = []; depth = 0; cur = ''
        for ch in rest:
            if ch == '[': depth += 1
            if ch == ']': depth -= 1
            if ch == ',' and depth == 0:
                ops.append(cur.strip()); cur = ''
            else: cur += ch
        if cur.strip(): ops.append(cur.strip())
        if ops:
            last = ops[-1]
            last = re.sub(r'\b(op_sel|op_sel_hi|neg_lo|neg_hi):\[[^\]]*\]', '', last)
            ops[-1] = last
        op = self.op
        self.defs = set(); self.uses = set(); self.passes = 0; self.srcC = set(); self.srcAB = set()
        self.states = 1; self.wide_store = False; self.ldsdma = False
        if op == 's_nop':
            self.kind = 'nop'; self.states = int(ops[0], 0) + 1
        elif op.startswith('v_mfma'):
            self.kind = 'mfma'
            self.passes = 8 if '32x32' in op else 4
            self.defs = regs_of(ops[0]); self.srcAB = regs_of(ops[1]) | regs_of(ops[2]); self.srcC = regs_of(ops[3])
            self.uses = self.srcAB | self.srcC
        elif op.startswith('v_'):
            self.kind = 'valu'
            if op.startswith('v_permlane') and 'swap' in op:
                self.defs = regs_of(ops[0]) | regs_of(ops[1]); self.uses = set(self.defs)
            elif op.startswith('v_cmp'):
                self.defs = regs_of(ops[0])
                for o in ops[1:]: self.uses |= regs_of(o)
            else:
                self.defs = regs_of(ops[0])
                for o in ops[1:]: self.uses |= regs_of(o)
                if op.startswith('v_fmac') or op.startswith('v_dot2c') or 'writelane' in op: self.uses |= self.defs
                if op.startswith('v_cndmask') and len(ops) == 3: self.uses.add(('s', 'vcc'))
        elif op.startswith('ds_'):
            self.kind = 'ds'
            if op.startswith('ds_read') or 'bpermute' in op or 'swizzle' in op:
                self.defs = regs_of(ops[0])
                for o in ops[1:]: self.uses |= regs_of(o)
            else:
                for o in ops: self.uses |= regs_of(o)
        elif op.startswith('buffer_') or op.startswith('global_'):
            self.kind = 'vmem'
            islds = bool(re.search(r'\blds\b', rest))
            self.ldsdma = islds
            if 'load' in op and not islds:
                self.defs = regs_of(ops[0])
                for o in ops[1:]: self.uses |= regs_of(o)
                if 'd16' in op: self.uses |= self.defs
            else:
                for o in ops: self.uses |= regs_of(o)
                if islds: self.uses.add(('s', 'm0'))
                if 'store' in op and ('x3' in op or 'x4' in op):
                    self.wide_store = True
                    data = ops[0] if op.startswith('buffer_') else ops[1]
                    self.srcC = regs_of(data)
        elif op.startswith('s_'):
            self.kind = 'salu'
            if op in ('s_waitcnt', 's_barrier', 's_endpgm', 's_sleep', 's_setprio') or op.startswith('s_cbranch') or op == 's_branch':
                pass
            elif op.startswith('s_cmp'):
                for o in ops: self.uses |= regs_of(o)
            else:
                self.defs = regs_of(ops[0])
                for o in ops[1:]: self.uses |= regs_of(o)
        else:
            raise ValueError("unknown instr " + text)

def vec(rs): return {r for r in rs if r[0] in 'va'}
def sca(rs): return {r for r in rs if r[0] == 's'}

def need_states(p, c):
    n = 0
    if p.kind == 'valu':
        vd = vec(p.defs); sd = sca(p.defs)
        if c.kind == 'mfma' and vd & c.uses: n = max(n, 2)
        if c.kind == 'valu':
            if c.op.startswith('v_permlane') and vd & c.uses: n = max(n, 2)
            if ('readfirstlane' in c.op or 'readlane' in c.op) and vd & c.uses: n = max(n, 1)
            if p.op.replace('_e64', '').replace('_e32', '') in TRANS and vd & c.uses: n = max(n, 1)
            if sd & c.uses: n = max(n, 4 if 'lane' in c.op else 2)
            if 'dpp' in c.text or 'row_' in c.text or 'quad_perm' in c.text:
                if vd & c.uses: n = max(n, 2)
            if 'op_sel' in p.text and not p.op.startswith('v_pk') and vd & (c.uses | c.defs): n = max(n, 1)
        if c.kind == 'vmem' and sd & c.uses: n = max(n, 5)
        if c.kind == 'salu' and sd & c.uses: n = max(n, 1)
        if c.op.startswith('s_cbranch_vcc') and ('s', 'vcc') in sd: n = max(n, 1)
    if p.kind == 'mfma':
        big = {4: 8, 8: 12}[p.passes]
        d = p.defs
        if c.kind == 'mfma':
            if d & c.srcAB: n = max(n, big)
            if d & c.srcC:
                if not (c.srcC == d and c.passes == p.passes): n = max(n, {4: 6, 8: 10}[p.passes])
            elif d & c.defs: n = max(n, {4: 6, 8: 10}[p.passes])
        elif c.kind in ('valu', 'vmem', 'ds'):
            if d & (c.uses | c.defs): n = max(n, big)
        if c.kind == 'valu' and vec(p.srcC) & c.defs: n = max(n, {4: 3, 8: 7}[p.passes])
    if p.kind == 'vmem' and p.wide_store:
        if p.srcC & c.defs: n = max(n, 2)
    if p.kind == 'salu' and ('s', 'm0') in p.defs and c.kind == 'vmem' and c.ldsdma: n = max(n, 1)
    return n

class Asm:
    def __init__(self):
        self.out = []
        self.hist = []
        self.vm = 0
        self.vm_done = 0
        self.lg = 0
        self.lg_done = 0
        self.nops = 0
        self.pend_vm = {}
        self.pend_lg = {}
    def raw(self, text): self.out.append(text)
    def label(self, name):
        self.out.append(name + ":")
    def comment(self, t): self.out.append("    ; " + t)
    def __call__(self, text):
        ins = Ins(text)
        dist = 0; need = 0
        for p in reversed(self.hist):
            k = need_states(p, ins) - dist
            if k > need: need = k
            dist += p.states
            if dist >= 20: break
        if need > 0:
            self.nops += need
            nop = Ins(f"s_nop {need-1}")
            self.hist.append(nop); self.out.append(f"    s_nop {need-1}")
        for r in (ins.uses | ins.defs):
            if r in self.pend_vm and self.pend_vm[r] > self.vm_done:
                if not (ins.kind == 'vmem' and r in ins.defs and r not in ins.uses):
                    raise RuntimeError(f"missing vm wait for {r} at: {text}")
            if r in self.pend_lg and self.pend_lg[r] > self.lg_done:
                if not (ins.kind == 'ds' and r in ins.defs and r not in ins.uses):
                    raise RuntimeError(f"missing lgkm wait for {r} at: {text}")
        self.hist.append(ins)
        if len(self.hist) > 40: self.hist = self.hist[-30:]
        self.out.append("    " + text)
        if ins.kind == 'vmem':
            self.vm += 1
            for r in ins.defs: self.pend_vm[r] = self.vm
            return self.vm
        if ins.kind == 'ds':
            self.lg += 1
            for r in ins.defs: self.pend_lg[r] = self.lg
            return self.lg
        return None
    def wait(self, vm=None, lg=None):
        parts = []
        if vm is not None and vm > self.vm_done:
            n = self.vm - vm
            assert n >= 0
            n = min(n, 63)
            parts.append(f"vmcnt({n})"); self.vm_done = self.vm - n
        if lg is not None and lg > self.lg_done:
            n = min(self.lg - lg, 15)
            parts.append(f"lgkmcnt({n})"); self.lg_done = self.lg - n
        if parts: self("s_waitcnt " + " ".join(parts))
    def wait_all(self, vm=True, lg=True, force=False):
        parts = []
        if vm and (force or self.vm > self.vm_done): parts.append("vmcnt(0)"); self.vm_done = self.vm
        if lg and (force or self.lg > self.lg_done): parts.append("lgkmcnt(0)"); self.lg_done = self.lg
        if parts: self("s_waitcnt " + " ".join(parts))
    def snapshot(self):
        return (list(self.hist), self.vm, self.vm_done, self.lg, self.lg_done, dict(self.pend_vm), dict(self.pend_lg))
    def restore(self, s):
        self.hist, self.vm, self.vm_done, self.lg, self.lg_done, self.pend_vm, self.pend_lg = list(s[0]), s[1], s[2], s[3], s[4], dict(s[5]), dict(s[6])
    def text(self): return "\n".join(self.out)

def v(i, n=1): return f"v{i}" if n == 1 else f"v[{i}:{i+n-1}]"
def a(i, n=1): return f"a{i}" if n == 1 else f"a[{i}:{i+n-1}]"
def s(i, n=1): return f"s{i}" if n == 1 else f"s[{i}:{i+n-1}]"

class Alloc:
    def __init__(self, start, limit):
        self.p = start; self.limit = limit; self.names = {}
    def __call__(self, name, n=1, align=1):
        self.p = (self.p + align - 1) // align * align
        r = self.p; self.p += n
        assert self.p <= self.limit, f"out of regs at {name}"
        self.names[name] = (r, n)
        return r

import subprocess, tempfile, os
def instr_sizes(lines):
    src = '.amdgcn_target "amdgcn-amd-amdhsa--gfx950"\n.text\n' + "\n".join(lines) + "\ns_endpgm\n"
    d = tempfile.mkdtemp()
    open(d + "/a.s", "w").write(src)
    subprocess.run(["clang", "-x", "assembler", "-target", "amdgcn-amd-amdhsa", "-mcpu=gfx950", "-c", d + "/a.s", "-o", d + "/a.o"], check=True)
    out = subprocess.run(["llvm-objdump", "-d", "--mcpu=gfx950", d + "/a.o"], capture_output=True, text=True, check=True).stdout
    sz = []
    for l in out.splitlines():
        m = re.search(r'// [0-9A-F]{12}: ((?:[0-9A-F]{8} ?)+)', l)
        if m: sz.append(4 * len(m.group(1).split()))
    return sz[:-1]

PROMOTE_OK = re.compile(r'^v_(mov_b32|mov_b64|add_f32|sub_f32|mul_f32|max_f32|min_f32|add_u32|and_b32|or_b32|xor_b32|lshlrev_b32|lshrrev_b32|fmac_f32|max_u32|min_u32|exp_f32|rcp_f32|sin_f32|cos_f32|rndne_f32|cvt_f32_u32)\s')
def align_pass(lines, minrun=5):
    idx = [i for i, l in enumerate(lines) if l.startswith("    ") and not l.strip().startswith(";")]
    sz = instr_sizes(lines)
    assert len(sz) == len(idx), (len(sz), len(idx))
    out = list(lines); ins = {}
    off = 0; n = len(idx); fixed = padded = 0
    for k in range(n):
        if sz[k] == 8 and off % 8 == 4 and k > 0 and sz[k-1] == 4:
            r = 0
            while k + r < n and sz[k + r] == 8 and not lines[idx[k + r]].strip().startswith(("v_mfma", "buffer_", "global_", "ds_write")): r += 1
            if r >= minrun:
                j = k - 1; done = False
                while j >= 0 and sz[j] == 4 and k - j <= 6:
                    t = out[idx[j]].strip()
                    if PROMOTE_OK.match(t):
                        op, rest = t.split(None, 1)
                        out[idx[j]] = f"    {op}_e64 {rest}"; done = True; fixed += 1; sz[j] = 8
                        break
                    j -= 1
                if not done and r >= 9:
                    ins[idx[k]] = "    s_nop 0"; done = True; padded += 1
                if done: off += 4
        off += sz[k]
    res = []
    for i, l in enumerate(out):
        if i in ins: res.append(ins[i])
        res.append(l)
    return res, fixed, padded
```

```python
import sys, os
sys.path.insert(0, os.path.dirname(__file__))
from asmlib import *

KNAME = "gated_mix__ssm_conv_s5__linear_attn_block__prompt_kernel"

WS_EPOCH = 0
WS_KVF   = 0xD0000
WS_HF    = 0x4000
WS_OF    = 0xC000
WS_G     = 0x14000
WS_ZP    = 0x18000
WS_AGG   = 0x20000
WS_KVP   = 0x40000
WS_STAMP = 0xC0000
WS_ACT   = 0x100000
WS_SIZE  = WS_ACT + 64 * 98304
SCR = 131072
LDS_BYTES = 163840
SPIN = 1 << 17

def gen(stamps=False, opt=None):
    opt = opt or {}
    A = Asm()
    P_X, P_LRE, P_LIM, P_BRE, P_BIM, P_CRE, P_CIM, P_LDT = 4, 6, 8, 10, 12, 14, 16, 18
    P_DSK, P_BX, P_QKV, P_WO, P_GW, P_OUT, P_DBG, P_WS = 20, 22, 24, 26, 28, 30, 32, 34
    R_X, R_W, R_WS, R_C, R_WO, R_OUT = 36, 40, 44, 48, 52, 56
    sW, sC, sJ, sK0, sRB, sNB, sTAG, sTY = 60, 61, 62, 63, 64, 65, 66, 67
    sXO, sWO, sWST, sU0, sT0, sT1, sT2, sT3 = 68, 69, 70, 71, 72, 73, 74, 75
    sMX, sMW, sCNT, sTT, sKH, sM8 = 76, 77, 78, 79, 80, 81
    sL2E = 82
    sU1, sU2 = 84, 85
    sEPS = 86
    sD0, sD1 = 2, 3
    SREG = [88, 90, 92, 94, 96, 98, 22, 32, 6, 8, 10, 12, 14]
    sWG = 100
    sU3 = 101
    names = opt.get('stamps') or [0, 1, 2, 3, 4, 5, 6, 7, 8, 9, 10, 11, 12]
    def stamp(i):
        if stamps and i in names:
            A(f"{'s_memtime' if opt.get('cyc') else 's_memrealtime'} {s(SREG[names.index(i)], 2)}")
    vL = 0; vZ = 1; vE = 2; vJ = 3
    t0, t1, t2, t3, t4, t5, t6, t7 = 4, 5, 6, 7, 8, 9, 10, 11
    vTAG = 12; vL16 = 13; vL4 = 14; vF = 15
    ACC = 16; BUF = 80; TMP = 112; TM2 = 176
    VX, VW, VN, VK1 = 208, 212, 216, 220
    RX, RN, RT = 224, 228, 232
    RW = 234
    RA, RB = 236, 240
    AD = 244
    PR = TM2

    def run(ops):
        tok = None
        for o in ops:
            r = A(o) if isinstance(o, str) else o()
            if r is not None: tok = r
        return tok
    def sel_exec(lo, hi):
        A(f"s_mov_b32 exec_lo, {lo:#x}"); A(f"s_mov_b32 exec_hi, {hi:#x}")

    stamp(0)
    A("s_load_dwordx16 s[4:19], s[0:1], 0")
    A("s_load_dwordx16 s[20:35], s[0:1], 64")
    A("s_cmp_ge_u32 s2, 256")
    A("s_cbranch_scc1 L_end")
    A(f"s_getpc_b64 {s(sT2,2)}")
    A.label("L_pc")
    A(f"s_and_b32 {s(sT0)}, s2, 0xf8")
    A(f"v_lshrrev_b32 {v(t0)}, 5, v0")
    A(f"v_add_lshl_u32 {v(t0)}, {v(t0)}, {s(sT0)}, 7")
    A(f"v_min_u32 {v(t0)}, L_end-L_pc, {v(t0)}")
    if not opt.get('nocodepf'):
        A(f"global_load_dword {v(vJ)}, {v(t0)}, {s(sT2,2)}")
    A(f"v_lshrrev_b32 {v(t0)}, 6, v0")
    A(f"v_and_b32 {v(vL)}, 63, v0")
    A(f"v_readfirstlane_b32 {s(sW)}, {v(t0)}")
    A(f"v_mov_b32 {v(vZ)}, 0")
    A(f"s_and_b32 {s(sT0)}, s2, 7")
    A(f"s_bfe_u32 {s(sNB)}, s2, 0x30003")
    A(f"s_lshr_b32 {s(sT3)}, s2, 6")
    if stamps: A(f"s_mov_b32 {s(sWG)}, s2")
    A(f"s_and_b32 {s(sC)}, {s(sT0)}, 1"); A(f"s_lshl3_add_u32 {s(sC)}, {s(sC)}, {s(sNB)}")
    A(f"s_and_b32 {s(sJ)}, {s(sT0)}, 6"); A(f"s_lshr_b32 {s(sK0)}, {s(sT3)}, 1"); A(f"s_add_u32 {s(sJ)}, {s(sJ)}, {s(sK0)}")
    A(f"s_lshl2_add_u32 {s(sRB)}, {s(sT0)}, {s(sT3)}")
    A(f"s_add_u32 {s(sK0)}, {s(sK0)}, {s(sNB)}"); A(f"s_and_b32 {s(sK0)}, {s(sK0)}, 1"); A(f"s_lshl_b32 {s(sK0)}, {s(sK0)}, 2")
    A(f"s_and_b32 {s(sTY)}, {s(sT3)}, 1")
    A(f"v_lshrrev_b32 {v(t0)}, 3, {v(vL)}")
    A(f"v_and_b32 {v(t1)}, 7, {v(vL)}")
    A(f"v_lshrrev_b32 {v(t2)}, 4, {v(vL)}")
    A(f"v_xor_b32 {v(t3)}, {v(t1)}, {v(t2)}")
    A(f"v_lshlrev_b32 {v(t3)}, 4, {v(t3)}")
    A(f"v_and_b32 {v(t2)}, 16, {v(vL)}")
    A(f"v_lshlrev_b32 {v(t2)}, 2, {v(t2)}")
    A(f"v_lshlrev_b32 {v(t4)}, 4, {v(t1)}")
    A(f"v_xor_b32 {v(t4)}, {v(t4)}, {v(t2)}")
    A(f"v_lshrrev_b32 {v(t5)}, 5, {v(vL)}")
    A(f"v_and_b32 {v(t6)}, 3, {v(t0)}")
    A(f"v_lshl_add_u32 {v(t5)}, {v(t5)}, 4, {v(t6)}")
    A(f"v_lshl_add_u32 {v(VX)}, {v(t5)}, 10, {v(t3)}")
    A(f"v_xor_b32 {v(t5)}, 64, {v(VX)}")
    A(f"v_add_u32 {v(VX+1)}, {3072}, {v(t5)}")
    A(f"v_add_u32 {v(VX+2)}, {2*3072}, {v(VX)}")
    A(f"v_add_u32 {v(VX+3)}, {3*3072}, {v(t5)}")
    A(f"v_lshl_add_u32 {v(VN)}, {v(t0)}, 10, {v(t3)}")
    A(f"v_xor_b32 {v(t5)}, 64, {v(VN)}")
    A(f"v_add_u32 {v(VN+1)}, {7168}, {v(t5)}")
    A(f"v_add_u32 {v(VN+2)}, {2*7168}, {v(VN)}")
    A(f"v_add_u32 {v(VN+3)}, {3*7168}, {v(t5)}")
    A(f"v_lshl_add_u32 {v(VK1)}, {v(t0)}, 10, {v(t4)}")
    A(f"v_lshl_add_u32 {v(VW)}, {v(t0)}, 11, {v(VK1)}")
    for q in (1, 2, 3): A(f"v_add_u32 {v(VW+q)}, {q*(8*3072-1024)}, {v(VW)}")
    A(f"s_lshl_b32 {s(sT0)}, {s(sJ)}, 7")
    A(f"v_lshl_add_u32 {v(t7)}, {v(vL)}, 1, {s(sT0)}")
    A(f"v_lshlrev_b32 {v(vL16)}, 4, {v(vL)}")
    A(f"s_lshl_b32 {s(sMX)}, {s(sW)}, 12")
    A(f"s_add_u32 {s(sMW)}, {s(sMX)}, 16384")
    A(f"s_and_b32 {s(sKH)}, {s(sW)}, 1")
    A(f"s_lshr_b32 {s(sT1)}, {s(sW)}, 1")
    A(f"s_lshl2_add_u32 {s(sTT)}, {s(sC)}, {s(sW)}")
    A(f"s_lshl_b32 {s(sXO)}, {s(sTT)}, 15")
    A(f"s_lshl_b32 {s(sT2)}, {s(sK0)}, 7")
    A(f"s_add_u32 {s(sXO)}, {s(sXO)}, {s(sT2)}")
    A(f"s_lshl1_add_u32 {s(sT2)}, {s(sJ)}, {s(sT1)}"); A(f"s_lshl_b32 {s(sT2)}, {s(sT2)}, 15")
    A(f"s_mul_i32 {s(sT3)}, {s(sKH)}, {32*3072}"); A(f"s_lshl_b32 {s(sT1)}, {s(sT1)}, 10"); A(f"s_add_u32 {s(sT3)}, {s(sT3)}, {s(sT1)}")
    A(f"s_add_u32 {s(sT3)}, {s(sT3)}, {s(sT0)}"); A(f"s_add_u32 {s(sT3)}, {s(sT3)}, 1024")
    A(f"s_cmp_eq_u32 {s(sTY)}, 0")
    A(f"s_cselect_b32 {s(sWO)}, {s(sT2)}, {s(sT3)}")
    A(f"s_cselect_b32 {s(sWST)}, 128, {64*3072}") if False else None
    A(f"s_mov_b32 {s(sT1)}, {64*3072}"); A(f"s_cselect_b32 {s(sWST)}, 0x80, {s(sT1)}")
    A(f"s_mov_b32 {s(sT1)}, 0x180000"); A(f"s_cselect_b32 {s(R_W+2)}, 0x80000, {s(sT1)}")
    A("s_cselect_b64 exec, -1, 0")
    A(f"v_mov_b64 {v(VW,2)}, {v(VN,2)}"); A(f"v_mov_b64 {v(VW+2,2)}, {v(VN+2,2)}")
    A("s_mov_b64 exec, -1")
    A(f"s_mul_i32 {s(sT1)}, {s(sK0)}, {s(sWST)}"); A(f"s_add_u32 {s(sWO)}, {s(sWO)}, {s(sT1)}")
    A(f"s_mov_b32 {s(R_X+2)}, 0x200000"); A(f"s_mov_b32 {s(R_X+3)}, 0x20000")
    A(f"s_mov_b32 {s(R_W+3)}, 0x20000")
    A(f"s_mov_b32 m0, {s(sMX)}")
    A(f"s_mov_b32 {s(R_WS+2)}, {WS_SIZE}"); A(f"s_mov_b32 {s(R_WS+3)}, 0x20000")
    A(f"s_mov_b32 {s(R_C+2)}, 0x80000"); A(f"s_mov_b32 {s(R_C+3)}, 0x20000")
    A(f"s_mov_b32 {s(R_WO+2)}, 0x80000"); A(f"s_mov_b32 {s(R_WO+3)}, 0x20000")
    A(f"s_mov_b32 {s(R_OUT+2)}, 0x400000"); A(f"s_mov_b32 {s(R_OUT+3)}, 0x20000")
    A(f"s_lshl_b32 {s(sM8)}, {s(sW)}, 13")
    late = []
    Lt = late.append
    for q in (1, 2, 3): Lt(f"v_add_u32 {v(VK1+q)}, {q*7168}, {v(VK1)}")
    Lt(f"v_and_b32 {v(t0)}, 31, {v(vL)}")
    Lt(f"v_lshrrev_b32 {v(t1)}, 5, {v(vL)}")
    Lt(f"v_bfe_u32 {v(t2)}, {v(vL)}, 1, 3")
    Lt(f"v_xor_b32 {v(t2)}, {v(t2)}, {v(t1)}")
    Lt(f"v_lshlrev_b32 {v(t2)}, 4, {v(t2)}")
    Lt(f"v_lshl_add_u32 {v(RN)}, {v(t0)}, 7, {v(t2)}")
    for q in (1, 2, 3): Lt(f"v_xor_b32 {v(RN+q)}, {q*32}, {v(RN)}")
    for q in range(4): Lt(f"v_add_u32 {v(RX+q)}, {s(sMX)}, {v(RN+q)}")
    Lt(f"v_bfe_u32 {v(t2)}, {v(vL)}, 2, 2")
    Lt(f"v_bfe_u32 {v(t3)}, {v(vL)}, 3, 1")
    Lt(f"v_bfe_u32 {v(t4)}, {v(vL)}, 4, 1")
    Lt(f"v_and_b32 {v(t5)}, 3, {v(vL)}")
    Lt(f"v_lshlrev_b32 {v(t5)}, 3, {v(t5)}")
    Lt(f"v_lshl_add_u32 {v(t5)}, {v(t4)}, 5, {v(t5)}")
    Lt(f"v_lshl_add_u32 {v(t5)}, {v(t3)}, 6, {v(t5)}")
    Lt(f"v_lshl_add_u32 {v(t5)}, {v(t2)}, 7, {v(t5)}")
    Lt(f"v_lshl_add_u32 {v(RT)}, {v(t1)}, 10, {v(t5)}")
    Lt(f"v_xor_b32 {v(RT+1)}, 64, {v(RT)}")
    Lt(f"v_lshl_add_u32 {v(RW)}, {v(t1)}, 9, {v(t5)}")
    Lt(f"s_mul_i32 {s(sT0)}, {s(sKH)}, {16384+64}")
    Lt(f"v_xor_b32 {v(RW)}, {s(sT0)}, {v(RW)}")
    Lt(f"v_xor_b32 {v(RW+1)}, 64, {v(RW)}")
    Lt(f"v_lshlrev_b32 {v(vL4)}, 2, {v(vL)}")
    Lt(f"s_mul_i32 {s(sT0)}, {s(sKH)}, {65536+4096}")
    Lt(f"s_xor_b32 {s(sT1)}, {s(sT0)}, 4096")
    for q in range(4):
        Lt(f"v_add_u32 {v(RA+q)}, {s(sT0)}, {v(RN+q)}")
        Lt(f"v_add_u32 {v(RB+q)}, {s(sT1)}, {v(RN+q)}")
    Lt(f"s_mov_b64 {s(R_WS,2)}, {s(P_WS,2)}")
    Lt(f"s_mov_b64 {s(R_WO,2)}, {s(P_WO,2)}")
    Lt(f"s_mov_b64 {s(R_OUT,2)}, {s(P_OUT,2)}")
    A(f"s_cmp_eq_u32 {s(sKH)}, 0")
    A("s_waitcnt lgkmcnt(0)")
    stamp(20)
    A(f"s_mov_b64 {s(R_X,2)}, {s(P_X,2)}")
    pLRE, pLIM, pLDT = PR, PR + 1, PR + 2
    def dma(voff, srd, soff, q):
        off = f" offset:{q*1024}" if q else ""
        return f"buffer_load_dwordx4 {v(voff+q)}, {s(srd,4)}, {s(soff)} offen{off} lds"
    for q in range(4): A(dma(VX, R_X, sXO, q))
    A(f"s_cselect_b64 {s(R_W,2)}, {s(P_BRE,2)}, {s(P_BIM,2)}")
    A(f"s_cselect_b64 {s(R_C,2)}, {s(P_CRE,2)}, {s(P_CIM,2)}")
    A(f"s_cmp_eq_u32 {s(sTY)}, 0")
    A(f"s_cselect_b64 {s(R_W,2)}, {s(R_W,2)}, {s(P_QKV,2)}")
    A(f"s_mov_b32 m0, {s(sMW)}")
    for q in range(4):
        run(late[:4]); late = late[4:]
        A(dma(VW, R_W, sWO, q))
    utok0 = [A.vm]
    stamp(21)
    def unit_ops(i):
        slot = (i % 4) * 32768
        ops = []
        if i == 4:
            ops += [f"s_lshl_b32 {s(sD0)}, {s(sK0)}, 8", f"s_sub_u32 {s(sXO)}, {s(sXO)}, {s(sD0)}",
                    f"s_mul_i32 {s(sD0)}, {s(sK0)}, {s(sWST)}", f"s_lshl_b32 {s(sD0)}, {s(sD0)}, 1", f"s_sub_u32 {s(sWO)}, {s(sWO)}, {s(sD0)}"]
        ops += [f"s_add_u32 {s(sXO)}, {s(sXO)}, 128", f"s_add_u32 m0, {s(sMX)}, {slot}"]
        ops += [dma(VX, R_X, sXO, q) for q in range(4)]
        ops += [f"s_add_u32 {s(sWO)}, {s(sWO)}, {s(sWST)}", f"s_add_u32 m0, {s(sMW)}, {slot}"]
        ops += [dma(VW, R_W, sWO, q) for q in range(4)]
        return ops
    for o in unit_ops(1):
        if o.startswith('buffer'):
            run(late[:4]); late = late[4:]
        A(o)
    run(late)
    utok0.append(A.vm)
    stamp(22)
    A(f"s_cmp_eq_u32 {s(sTY)}, 0")
    A("s_cbranch_scc0 L_attn")
    snap0 = A.snapshot()

    def unit8_ops(voff, srd, pre, base, rowstep):
        ops = list(pre)
        ops.append(f"s_add_u32 m0, {s(sM8)}, {base}")
        ops += [dma(voff, srd, sD0, q) for q in range(4)]
        ops.append(f"s_add_u32 {s(sD0)}, {s(sD0)}, {rowstep}")
        ops.append(f"s_add_u32 m0, {s(sM8)}, {base+4096}")
        ops += [dma(voff, srd, sD0, q) for q in range(4)]
        return ops
    def wq_ops(u):
        pre = [f"s_xor_b32 {s(sD0)}, {s(sK0)}, {4*u}", f"s_add_u32 {s(sD0)}, {s(sD0)}, {s(sW)}",
               f"s_mul_i32 {s(sD0)}, {s(sD0)}, {64*3072}", f"s_lshl_b32 {s(sD1)}, {s(sJ)}, 7", f"s_add_u32 {s(sD0)}, {s(sD0)}, {s(sD1)}"]
        return unit8_ops(VW, R_W, pre, u * 32768, 32 * 3072)
    def wo_ops(u, base):
        pre = [f"s_and_b32 {s(sD0)}, {s(sW)}, 2", f"s_add_u32 {s(sD0)}, {s(sD0)}, {s(sW)}", f"s_add_u32 {s(sD0)}, {s(sD0)}, {2*u}",
               f"s_lshl_b32 {s(sD0)}, {s(sD0)}, 9", f"s_add_u32 {s(sD0)}, {s(sD0)}, {s(sNB)}", f"s_lshl_b32 {s(sD0)}, {s(sD0)}, 7"]
        return unit8_ops(VK1, R_WO, pre, base, 32 * 1024)
    def c_ops(u):
        pre = [f"s_lshr_b32 {s(sD0)}, {s(sW)}, 1", f"s_lshl_b32 {s(sD1)}, {s(sNB)}, 9", f"s_add_u32 {s(sD0)}, {s(sD0)}, {s(sD1)}",
               f"s_add_u32 {s(sD0)}, {s(sD0)}, {2*u}", f"s_lshl_b32 {s(sD0)}, {s(sD0)}, 7"]
        return unit8_ops(VN, R_C, pre, u * 32768, 32 * 1024)
    def wo_reads(u, areg, off):
        L = []
        for st in range(8):
            for tl in range(2):
                d = 128 + 8 * (8 * u + st) + 4 * tl
                L.append(f"ds_read_b64_tr_b16 {a(d,2)}, {v(areg+tl)} offset:{off+st*2048}")
                L.append(f"ds_read_b64_tr_b16 {a(d+2,2)}, {v(areg+tl)} offset:{off+st*2048+1024}")
        return L
    class Stream:
        def __init__(self, ops): self.ops = list(ops)
        def dma(self, n=1):
            while n > 0 and self.ops:
                o = self.ops.pop(0); A(o)
                if o.startswith('buffer_') or o.startswith('global_'): n -= 1
        def salu(self):
            while self.ops and not (self.ops[0].startswith('buffer_') or self.ops[0].startswith('global_')): A(self.ops.pop(0))
        def some(self, n):
            tok = None
            for _ in range(n):
                if self.ops: tok = A(self.ops.pop(0))
            return tok
        def rest(self):
            tok = None
            while self.ops: tok = A(self.ops.pop(0))
            return tok
    def sprinkle(ops, stream, every):
        for n, o in enumerate(ops):
            A(o) if isinstance(o, str) else o()
            if (n + 1) % every == 0: stream.dma()

    def main_loop(kind, tail_units, fill):
        utok = list(utok0)
        def reads(i, st):
            slot = (i % 2) * 32768
            b = BUF + 16 * ((4 * i + st) % 2)
            L = [f"ds_read_b128 {a(16*i+4*st,4)}, {v(RX+st)} offset:{slot}"]
            for tl in range(4):
                if kind == 'ssm':
                    L.append(f"ds_read_b128 {v(b+4*tl,4)}, {v(RN+st)} offset:{slot+16384+tl*4096}")
                else:
                    base = slot + 16384 + (tl >> 1) * 8192 + st * 2048
                    L.append(f"ds_read_b64_tr_b16 {v(b+4*tl,2)}, {v(RT+(tl&1))} offset:{base}")
                    L.append(f"ds_read_b64_tr_b16 {v(b+4*tl+2,2)}, {v(RT+(tl&1))} offset:{base+512}")
            if i % 2 == 1:
                L.append(f"v_xor_b32 {v(RX+st)}, 0x10000, {v(RX+st)}")
                if kind == 'ssm': L.append(f"v_xor_b32 {v(RN+st)}, 0x10000, {v(RN+st)}")
                elif st == 3: L += [f"v_xor_b32 {v(RT+q)}, 0x10000, {v(RT+q)}" for q in range(2)]
            return L
        def mfmas(i, st):
            b = BUF + 16 * ((4 * i + st) % 2)
            L = []
            for tl in range(4):
                c = v(ACC + 16 * tl, 16)
                if i == 0 and st == 0: c = "1.0" if (kind == 'attn' and tl < 2) else "0"
                L.append(f"v_mfma_f32_32x32x16_bf16 {v(ACC+16*tl,16)}, {a(16*i+4*st,4)}, {v(b+4*tl,4)}, {c}")
            return L
        prev = None
        while fill and fill[0][0] < 0: run(fill.pop(0)[1])
        stamp(1)
        for i in range(8):
            nxt = Stream(unit_ops(i + 2) if i + 2 < 8 else tail_units[i - 6])
            nxt.salu()
            A.wait(vm=utok[i])
            A("s_barrier")
            stamp(30 + i)
            burst = i < opt.get('burst', 2)
            for st in range(4):
                rd = reads(i, st)
                if prev is None:
                    run(rd); prev = (i, st, A.lg); nxt.dma(4 if burst else 2); nxt.salu(); continue
                ms = mfmas(prev[0], prev[1])
                A.wait(lg=prev[2])
                split = opt.get('sa', [3, 3, 9, 0]) if kind == 'attn' else opt.get('ss', [3, 9, 0, 0])
                fper = opt.get('fa', [1, 0, 1, 2]) if kind == 'attn' else opt.get('fs', [2, 3, 1, 1])
                dgap = opt.get('dga', [1, 3]) if kind == 'attn' else opt.get('dgs', [2, 3])
                for tl in range(4):
                    A(ms[tl])
                    if opt.get('dfirst') and (tl in dgap or burst): nxt.dma(); nxt.salu()
                    run(rd[:split[tl]]); rd = rd[split[tl]:]
                    if not opt.get('dfirst') and (tl in dgap or burst): nxt.dma(); nxt.salu()
                    n = fper[tl]
                    while n > 0 and fill and fill[0][0] <= i:
                        g = fill.pop(0)[1]
                        run(g); n -= len(g)
                assert not rd
                prev = (i, st, A.lg)
            nxt.rest()
            utok.append(A.vm)
        assert not fill, len(fill)
        A.wait(lg=prev[2])
        run(mfmas(prev[0], prev[1]))
        return utok

    class Fill(list):
        it = -1
        def __call__(self, *ops): self.append((self.it, list(ops)))
    def epoch_load():
        A("s_mov_b64 exec, 1")
        A(f"global_load_dword {v(vE)}, {v(vZ)}, {s(P_WS,2)} sc1")
        A("s_mov_b64 exec, -1")
    def get_tag(F):
        F(f"v_readfirstlane_b32 {s(sTAG)}, {v(vE)}")
        F(f"s_mul_i32 {s(sTAG)}, {s(sTAG)}, 0x9E3779B5")
        F(f"s_add_u32 {s(sTAG)}, {s(sTAG)}, 0x7F4A7C15")
        F(f"v_mov_b32 {v(vTAG)}, {s(sTAG)}")
    def cmul4(F, d, x, y):
        F(f"v_mul_f32 {v(d)}, {v(x)}, {v(y)}")
        F(f"v_mul_f32 {v(d+1)}, {v(x)}, {v(y+1)}")
        F(f"v_fma_f32 {v(d)}, -{v(x+1)}, {v(y+1)}, {v(d)}")
        F(f"v_fmac_f32 {v(d+1)}, {v(x+1)}, {v(y)}")
    def p2_setup():
        A(f"s_lshr_b32 {s(sT0)}, {s(sW)}, 1"); A(f"s_lshl1_add_u32 {s(sTT2)}, {s(sRB)}, {s(sT0)}")
        A(f"s_lshl1_add_u32 {s(sT0)}, {s(sNB)}, {s(sKH)}"); A(f"s_lshl_b32 {s(sT0)}, {s(sT0)}, 6")
        A(f"v_and_b32 {v(t0)}, 31, {v(vL)}")
        A(f"v_lshrrev_b32 {v(t1)}, 5, {v(vL)}")
        A(f"v_lshl_add_u32 {v(t2)}, {v(t0)}, 1, {s(sT0)}")
        A(f"v_lshlrev_b32 {v(AD+2)}, 4, {v(t1)}")
        A(f"v_lshl_add_u32 {v(t3)}, {v(t0)}, 10, {v(AD+2)}")
        A(f"v_lshlrev_b32 {v(AD+7)}, 2, {v(t0)}")
        A(f"s_lshl_b32 {s(sT1)}, {s(sW)}, 7"); A(f"s_add_u32 {s(sT1)}, {s(sT1)}, {SCR+24576}")
        A(f"v_add_u32 {v(AD+2)}, {s(sT1)}, {v(AD+2)}")
        A(f"v_add_u32 {v(AD)}, {s(sT1)}, {v(AD+7)}")
        A(f"s_lshl_b32 {s(sT1)}, {s(sTT2)}, 15"); A(f"s_add_u32 {s(sT1)}, {s(sT1)}, {s(sT0)}")
        A(f"global_load_ushort {v(t4)}, {v(t2)}, {s(P_DSK,2)}")
        A(f"buffer_load_dwordx4 {v(XF,4)}, {v(t3)}, {s(R_X,4)}, {s(sT1)} offen")
        A(f"buffer_load_dwordx4 {v(XF+4,4)}, {v(t3)}, {s(R_X,4)}, {s(sT1)} offen offset:32")
        A(f"v_lshlrev_b32 {v(t2)}, 1, {v(t2)}")
        A(f"v_lshl_add_u32 {v(AD+1)}, {v(t1)}, 13, {v(t2)}")
        A(f"s_lshl1_add_u32 {s(sU3)}, {s(sTT2)}, {s(sKH)}"); A(f"s_lshl_b32 {s(sU3)}, {s(sU3)}, 8")
        A(f"s_add_u32 {s(sT3)}, {s(sU3)}, {WS_HF}")
        A(f"s_add_u32 {s(sU3)}, {s(sU3)}, {WS_OF}")
        A(f"v_and_b32 {v(AD+3)}, 12, {v(vL4)}")
        A(f"v_min_u32 {v(AD+6)}, 16, {v(vL4)}")
        A(f"s_xor_b32 {s(sT0)}, {s(sMX)}, 4096"); A(f"s_add_u32 {s(sT0)}, {s(sT0)}, {SCR}")
        A(f"v_add_u32 {v(AD+4)}, {s(sT0)}, {v(vL16)}")
        A(f"v_xor_b32 {v(AD+5)}, 4096, {v(AD+4)}")
        A(f"s_mul_i32 {s(sXO)}, {s(sTT2)}, 98304"); A(f"s_add_u32 {s(sXO)}, {s(sXO)}, {WS_ACT}")
        A(f"s_lshl_b32 {s(sU0)}, {s(sKH)}, 15"); A(f"s_add_u32 {s(sU0)}, {s(sU0)}, {s(sXO)}")
        A(f"s_lshl_b32 {s(sU1)}, {s(sKH)}, 14"); A(f"s_add_u32 {s(sU1)}, {s(sU1)}, {s(sXO)}"); A(f"s_add_u32 {s(sU1)}, {s(sU1)}, 65536")
        A(f"s_lshl_b32 {s(sU2)}, {s(sTT2)}, 7"); A(f"s_add_u32 {s(sU2)}, {s(sU2)}, {WS_G}")
        for q in range(4): A(f"v_mov_b64 {v(DF+2*q,2)}, 0")
        A(f"v_mov_b32 {v(t5)}, 0")
        A(f"v_and_b32 {v(t6)}, 48, {v(vL16)}")
    sFM = sMW; sTT2 = sWST; XF = TM2 + 16; DF = TM2 + 24

    def cmul_ops(dst, x, y, add=None):
        if add is None: o = f"v_pk_mul_f32 {v(dst,2)}, {v(x,2)}, {v(y,2)} op_sel_hi:[0,1]"
        else: o = f"v_pk_fma_f32 {v(dst,2)}, {v(x,2)}, {v(y,2)}, {v(add,2)} op_sel_hi:[0,1,1]"
        return [o, f"v_pk_fma_f32 {v(dst,2)}, {v(x,2)}, {v(y,2)}, {v(dst,2)} op_sel:[1,1,0] op_sel_hi:[1,0,1] neg_lo:[0,1,0]"]
    def cmul(*a_): run(cmul_ops(*a_))

    def spin(name, load, check):
        A(f"s_mov_b32 {s(sCNT)}, {SPIN}")
        A.label(name)
        load()
        A.wait_all(vm=True, lg=False, force=True)
        check()
        A(f"s_sub_u32 {s(sCNT)}, {s(sCNT)}, 1")
        A(f"s_cbranch_scc1 {name}_x")
        A(f"s_cbranch_vccnz {name}")
        A.label(name + "_x")
    def flag_store(soff, mask=1, voff=vZ):
        A(f"s_mov_b64 exec, {mask}")
        A(f"buffer_store_dword {v(vTAG)}, {v(voff)}, {s(R_WS,4)}, {s(soff)} offen sc1")
        A("s_mov_b64 exec, -1")
    def flag_addr(F, dst, tmp, base):
        F(f"s_lshr_b32 {s(tmp)}, {s(sJ)}, 2"); F(f"s_lshl1_add_u32 {s(dst)}, {s(sTT)}, {s(tmp)}"); F(f"s_lshl_b32 {s(dst)}, {s(dst)}, 6")
        F(f"s_and_b32 {s(tmp)}, {s(sJ)}, 3"); F(f"s_add_u32 {s(dst)}, {s(dst)}, {s(tmp)}"); F(f"s_lshl2_add_u32 {s(dst)}, {s(dst)}, {base}")

    L1, KK, L16, L32 = PR + 4, PR + 6, PR + 8, PR + 10
    L2T = PR + 0
    LT, KT = PR + 14, PR + 18
    WG_ = PR + 22
    WSEG = PR + 30
    L128 = PR + 12
    epoch_load()
    A(f"global_load_ushort {v(pLRE)}, {v(t7)}, {s(P_LRE,2)}")
    A(f"global_load_ushort {v(pLIM)}, {v(t7)}, {s(P_LIM,2)}")
    A(f"global_load_ushort {v(pLDT)}, {v(t7)}, {s(P_LDT,2)}")
    A(f"global_load_dwordx4 {v(TMP+4,4)}, {v(vL16)}, {s(P_GW,2)}")
    GWS = SCR + 20480
    F = Fill()
    F(f"s_lshl_b32 {s(sT0)}, {s(sW)}, 10"); F(f"s_add_u32 {s(sT0)}, {s(sT0)}, {GWS}")
    F(f"v_add_u32 {v(AD+8)}, {s(sT0)}, {v(vL16)}")
    GR = TMP + 60
    sHF = sEPS
    F(f"s_lshl_b32 {s(sT0)}, {s(sW)}, 9")
    F(f"v_lshlrev_b32 {v(AD)}, 3, {v(vL)}")
    F(f"v_add_u32 {v(AD)}, {SCR}, {v(AD)}")
    F(f"v_add_u32 {v(AD+1)}, {s(sT0)}, {v(AD)}")
    F(f"s_lshl4_add_u32 {s(sT2)}, {s(sJ)}, {s(sC)}"); F(f"s_lshl_b32 {s(sT2)}, {s(sT2)}, 10")
    F(f"s_add_u32 {s(sT2)}, {s(sT2)}, {WS_AGG}")
    F(f"v_and_b32 {v(t4)}, 31, {v(vL)}")
    F(f"v_lshrrev_b32 {v(t5)}, 5, {v(vL)}")
    F(f"v_bfe_u32 {v(t6)}, {v(vL)}, 1, 2")
    F(f"v_lshlrev_b32 {v(t7)}, 1, {v(t5)}")
    F(f"v_xor_b32 {v(t6)}, {v(t6)}, {v(t7)}")
    F(f"v_lshlrev_b32 {v(t6)}, 4, {v(t6)}")
    F(f"v_lshl_add_u32 {v(t6)}, {v(t4)}, 6, {v(t6)}")
    F(f"s_add_u32 {s(sT1)}, {s(sMX)}, {SCR+4096}")
    F(f"v_add_u32 {v(AD+2)}, {s(sT1)}, {v(t6)}")
    F(f"v_xor_b32 {v(AD+3)}, 16, {v(AD+2)}")
    F(f"v_bfe_u32 {v(t4)}, {v(vL)}, 2, 2")
    F(f"v_lshl_add_u32 {v(t4)}, {v(t5)}, 3, {v(t4)}")
    F(f"v_bfe_u32 {v(t6)}, {v(vL)}, 4, 1"); F(f"v_bfe_u32 {v(t7)}, {v(vL)}, 1, 1")
    F(f"v_lshl_add_u32 {v(t6)}, {v(t6)}, 1, {v(t7)}")
    F(f"v_bfe_u32 {v(t7)}, {v(vL)}, 3, 1")
    F(f"v_xor_b32 {v(t6)}, {v(t6)}, {v(t7)}")
    F(f"v_lshlrev_b32 {v(t6)}, 4, {v(t6)}")
    F(f"v_lshl_add_u32 {v(t6)}, {v(t4)}, 6, {v(t6)}")
    F(f"v_and_b32 {v(t7)}, 1, {v(vL)}")
    F(f"v_lshl_add_u32 {v(t6)}, {v(t7)}, 3, {v(t6)}")
    F(f"v_add_u32 {v(AD+4)}, {s(sT1)}, {v(t6)}")
    F(f"v_xor_b32 {v(AD+5)}, 32, {v(AD+4)}")
    F(f"s_mul_i32 {s(sU3)}, {s(sTT)}, 98304"); F(f"s_lshl_b32 {s(sT0)}, {s(sJ)}, 13"); F(f"s_add_u32 {s(sU3)}, {s(sU3)}, {s(sT0)}")
    F(f"s_add_u32 {s(sU3)}, {s(sU3)}, {WS_ACT}")
    flag_addr(F, sHF, sT0, WS_HF)
    F(f"v_cvt_f32_u32 {v(t6)}, {s(sW)}")
    F(f"v_mul_f32 {v(t6)}, 0x42000000, {v(t6)}")
    F.it = 2
    get_tag(F)
    F(f"s_cmp_ge_u32 {s(sW)}, 2", "s_cselect_b64 exec, -1, 0", f"v_mov_b64 {v(TMP+4,2)}, 0", f"v_mov_b64 {v(TMP+6,2)}, 0", "s_mov_b64 exec, -1")
    F(f"ds_write_b128 {v(AD+8)}, {v(TMP+4,4)}")
    F(f"v_lshlrev_b32 {v(pLRE)}, 16, {v(pLRE)}")
    F(f"v_lshlrev_b32 {v(pLIM)}, 16, {v(pLIM)}")
    F(f"v_lshlrev_b32 {v(pLDT)}, 16, {v(pLDT)}")
    F(f"v_xor_b32 {v(pLIM)}, 0x80000000, {v(pLIM)}")
    F(f"v_mul_f32 {v(t0)}, 0x3fb8aa3b, {v(pLDT)}")
    F(f"v_exp_f32 {v(t0)}, {v(t0)}")
    F(f"v_mul_f32 {v(t5)}, {v(pLRE)}, {v(pLRE)}")
    F(f"v_cvt_pk_bf16_f32 {v(t0)}, {v(t0)}, {v(t0)}")
    F(f"v_and_b32 {v(t0)}, 0xffff0000, {v(t0)}")
    EXA, EXB = TMP, TMP + 1
    F(f"v_mul_f32 {v(EXA)}, {v(t0)}, {v(pLRE)}")
    F(f"v_mul_f32 {v(EXB)}, {v(t0)}, {v(pLIM)}")
    F(f"v_mul_f32 {v(EXA)}, 0x3fb8aa3b, {v(EXA)}")
    F(f"v_mul_f32 {v(EXB)}, 0.15915494, {v(EXB)}")
    def cexp(d, ea, eb):
        F(f"v_exp_f32 {v(t1)}, {v(ea)}")
        F(f"v_rndne_f32 {v(t3)}, {v(eb)}")
        F(f"v_sub_f32 {v(t2)}, {v(eb)}, {v(t3)}")
        F(f"v_cos_f32 {v(t3)}, {v(t2)}")
        F(f"v_sin_f32 {v(t4)}, {v(t2)}")
        F(f"v_mul_f32 {v(d)}, {v(t1)}, {v(t3)}")
        F(f"v_mul_f32 {v(d+1)}, {v(t1)}, {v(t4)}")
    cexp(L1, EXA, EXB)
    F(f"v_fmac_f32 {v(t5)}, {v(pLIM)}, {v(pLIM)}")
    F(f"v_rcp_f32 {v(t0)}, {v(t5)}")
    F(f"v_add_f32 {v(t1)}, -1.0, {v(L1)}")
    F(f"v_add_f32 {v(t0)}, {v(t0)}, {v(t0)}")
    F(f"v_mul_f32 {v(t2)}, {v(t1)}, {v(pLRE)}")
    F(f"v_fmac_f32 {v(t2)}, {v(L1+1)}, {v(pLIM)}")
    F(f"v_mul_f32 {v(t3)}, {v(L1+1)}, {v(pLRE)}")
    F(f"v_fma_f32 {v(t3)}, -{v(t1)}, {v(pLIM)}, {v(t3)}")
    F(f"v_mul_f32 {v(KK)}, {v(t2)}, {v(t0)}")
    F(f"v_mul_f32 {v(KK+1)}, {v(t3)}, {v(t0)}")
    cmul4(F, L2T, L1, L1); cmul4(F, t2, L2T, L2T); cmul4(F, t0, t2, t2); cmul4(F, L16, t0, t0)
    cmul4(F, L32, L16, L16); cmul4(F, t0, L32, L32); cmul4(F, L128, t0, t0)
    F(f"v_mul_f32 {v(EXA)}, {v(EXA)}, {v(t6)}"); F(f"v_mul_f32 {v(EXB)}, {v(EXB)}, {v(t6)}")
    cexp(WSEG, EXA, EXB)
    F(f"v_mul_f32 {v(EXA)}, 0x41800000, {v(EXA)}"); F(f"v_mul_f32 {v(EXB)}, 0x41800000, {v(EXB)}")
    cexp(t6, EXA, EXB)
    cmul4(F, WG_, t6, KK)
    for q in range(1, 4): cmul4(F, WG_ + 2 * q, WG_ + 2 * q - 2, L128)
    for (src, dst) in ((L2T, L2T), (L1, LT), (KK, KT)):
        for e in range(2):
            if src != dst: F(f"v_mov_b32 {v(dst+e)}, {v(src+e)}")
            F(f"v_mov_b32 {v(dst+2+e)}, {v(src+e)}")
    F(f"v_mov_b32 {v(GR+1)}, {v(vTAG)}"); F(f"v_mov_b32 {v(GR+3)}, {v(vTAG)}")
    for dst in (L2T, LT, KT):
        for e in range(2): F(f"v_permlane32_swap_b32 {v(dst+e)}, {v(dst+2+e)}")
    so = [sT0, sT1, sT3, sU0]; ex = [sU1, sU2, sL2E, sL2E + 1]
    for q in range(4):
        F(f"s_lshl2_add_u32 {s(so[q])}, {s(sW)}, {q+1}")
        F(f"s_lshl_b32 {s(ex[q])}, {s(so[q])}, 10")
        F(f"s_sub_u32 {s(ex[q])}, {s(sT2)}, {s(ex[q])}")
        F(f"s_cmp_le_u32 {s(so[q])}, {s(sC)}", f"s_cselect_b32 {s(so[q])}, {s(ex[q])}, {WS_SIZE}", f"s_cselect_b32 {s(ex[q])}, {s(sTAG)}, 0")
    utok = main_loop('ssm', [wo_ops(0, 0), wo_ops(1, 32768)], F)
    stamp(2)
    tok_wo = A.vm
    SA = [TMP, TMP + 8]
    for m in range(1, 8):
        for ct in range(2):
            are, aim = ACC + 32 * ct + 2 * m, ACC + 32 * ct + 16 + 2 * m
            if m == 1: sre, sim = ACC + 32 * ct, ACC + 32 * ct + 16
            else: sre, sim = SA[m % 2] + 4 * ct, SA[m % 2] + 4 * ct + 2
            dre, dim = SA[(m + 1) % 2] + 4 * ct, SA[(m + 1) % 2] + 4 * ct + 2
            l2 = v(L2T + 2 * ct, 2)
            A(f"v_pk_fma_f32 {v(dre,2)}, {v(sre,2)}, {l2}, {v(are,2)} op_sel_hi:[1,0,1]")
            A(f"v_pk_fma_f32 {v(dim,2)}, {v(sim,2)}, {l2}, {v(aim,2)} op_sel_hi:[1,0,1]")
            A(f"v_pk_fma_f32 {v(dre,2)}, {v(sim,2)}, {l2}, {v(dre,2)} op_sel:[0,1,0]")
            A(f"v_pk_fma_f32 {v(dim,2)}, {v(sre,2)}, {l2}, {v(dim,2)} op_sel:[0,1,0] neg_lo:[0,1,0] neg_hi:[0,1,0]")
    S_ = SA[0]
    for e in range(4): A(f"v_permlane32_swap_b32 {v(S_+e)}, {v(S_+4+e)}")
    EA = TMP + 16; EB = TMP + 18
    for sg, d in ((0, EA), (1, EB)):
        b = S_ + 4 * sg
        A(f"v_fma_f32 {v(d)}, {v(L1)}, {v(b)}, {v(b+1)}")
        A(f"v_fma_f32 {v(d+1)}, {v(L1+1)}, {v(b)}, -{v(b+3)}")
        A(f"v_fma_f32 {v(d)}, {v(L1+1)}, {v(b+2)}, {v(d)}")
        A(f"v_fma_f32 {v(d+1)}, -{v(L1)}, {v(b+2)}, {v(d+1)}")
    cmul(EB, EA, L16, EB)
    A(f"ds_write_b64 {v(AD+1)}, {v(EB,2)}")
    A.wait_all(vm=False)
    A("s_barrier")
    EW = BUF
    tk = [A(f"ds_read_b64 {v(EW+2*q,2)}, {v(AD)} offset:{q*512}") for q in range(4)]
    PF = BUF + 8
    A(f"s_cmp_eq_u32 {s(sW)}, 0")
    A.wait(lg=tk[1]); cmul(PF, EW, L32, EW + 2)
    A.wait(lg=tk[2]); cmul(PF + 2, PF, L32, EW + 4)
    A.wait(lg=tk[3]); cmul(PF + 4, PF + 2, L32, EW + 6)
    A("s_cbranch_scc0 L_nopub")
    A(f"v_mov_b32 {v(GR)}, {v(PF+4)}"); A(f"v_mov_b32 {v(GR+2)}, {v(PF+5)}")
    snap = A.snapshot()
    A(f"buffer_store_dwordx4 {v(GR,4)}, {v(vL16)}, {s(R_WS,4)}, {s(sT2)} offen sc1")
    A.restore(snap)
    A.label("L_nopub")
    stamp(3)
    st_ = Stream(c_ops(2) + c_ops(3))
    PW = BUF + 14; EK = BUF + 16
    ops = [f"v_mov_b32 {v(t0)}, 0", f"v_mov_b32 {v(t1)}, 0"]
    for q, src in ((1, EW), (2, PF), (3, PF + 2)):
        ops += [f"s_cmp_eq_u32 {s(sW)}, {q}", "s_cselect_b64 exec, -1, 0", f"v_mov_b64 {v(t0,2)}, {v(src,2)}"]
    ops += ["s_mov_b64 exec, -1"]
    run(ops)
    cmul(PW, t0, KK); cmul(EK, EA, KK)
    U = TMP
    def upair(ct, k): return U + 32 * ct + 2 * k
    ops = []
    for ct in range(2):
        for k in range(16):
            re, im = ACC + 32 * ct + (k & ~1), ACC + 32 * ct + 16 + (k & ~1)
            b = k & 1
            ops.append(f"v_pk_mul_f32 {v(upair(ct,k),2)}, {v(re,2)}, {v(KT+2*ct,2)} op_sel:[{b},0] op_sel_hi:[{b},1]")
            ops.append(f"v_pk_fma_f32 {v(upair(ct,k),2)}, {v(im,2)}, {v(KT+2*ct,2)}, {v(upair(ct,k),2)} op_sel:[{b},1,0] op_sel_hi:[{b},0,1] neg_hi:[0,1,0]")
    sprinkle(ops, st_, 8)
    A.wait(vm=tok_wo)
    A("s_barrier")
    sprinkle(wo_reads(0, RW, 0) + wo_reads(1, RW, 32768), st_, 8)
    st_.rest()
    LB = ACC
    stamp(23)
    def ld():
        for q in range(4): A(f"buffer_load_dwordx4 {v(LB+4*q,4)}, {v(vL16)}, {s(R_WS,4)}, {s(so[q])} offen sc1")
    def ck():
        A(f"v_xor_b32 {v(t0)}, {s(ex[0])}, {v(LB+1)}")
        for r in (3, 5, 7, 9, 11, 13, 15):
            A(f"v_bitop3_b32 {v(t0)}, {v(t0)}, {v(LB+r)}, {s(ex[r//4])} bitop3:0xf6")
        A(f"v_cmp_ne_u32 vcc, 0, {v(t0)}")
    spin("L_pagg", ld, ck)
    stamp(4)
    for q in range(4):
        if q == 0: A(f"v_pk_mul_f32 {v(t0,2)}, {v(LB,2)}, {v(WG_,2)} op_sel_hi:[0,1]")
        else: A(f"v_pk_fma_f32 {v(t0,2)}, {v(LB+4*q,2)}, {v(WG_+2*q,2)}, {v(t0,2)} op_sel_hi:[0,1,1]")
        A(f"v_pk_fma_f32 {v(t0,2)}, {v(LB+4*q+2,2)}, {v(WG_+2*q,2)}, {v(t0,2)} op_sel:[0,1,0] op_sel_hi:[0,0,1] neg_lo:[0,1,0]")
    A(f"ds_write_b64 {v(AD+1)}, {v(t0,2)} offset:2048")
    A.wait_all(vm=False)
    A("s_barrier")
    stamp(24)
    for q in range(4): tok = A(f"ds_read_b64 {v(EW+2*q,2)}, {v(AD)} offset:{2048+q*512}")
    A.wait(lg=tok)
    A(f"v_pk_add_f32 {v(EW,2)}, {v(EW,2)}, {v(EW+2,2)}")
    A(f"v_pk_add_f32 {v(EW+4,2)}, {v(EW+4,2)}, {v(EW+6,2)}")
    A(f"v_pk_add_f32 {v(EW,2)}, {v(EW,2)}, {v(EW+4,2)}")
    cmul(t0, EW, WSEG, PW)
    cmul(t2, t0, L16, EK)
    A(f"v_permlane32_swap_b32 {v(t0)}, {v(t2)}")
    A(f"v_permlane32_swap_b32 {v(t1)}, {v(t3)}")
    HP = ACC; HT = ACC + 32
    rtok = []
    def h_reads(ct):
        for f in range(4 * ct, 4 * ct + 4):
            A(f"ds_read_b64_tr_b16 {v(HT+4*f,2)}, {v(AD+4)} offset:{(f%4)*1024}")
            rtok.append(A(f"ds_read_b64_tr_b16 {v(HT+4*f+2,2)}, {v(AD+5)} offset:{(f%4)*1024+256}"))
    def h_store(f):
        A.wait(lg=rtok[f])
        if f == 4: A(f"s_add_u32 {s(sU3)}, {s(sU3)}, 4096")
        return A(f"buffer_store_dwordx4 {v(HT+4*f,4)}, {v(vL16)}, {s(R_WS,4)}, {s(sU3)} offen offset:{(f%4)*1024} sc1")
    for ct in range(2):
        for k in range(16):
            src = t0 + 2 * ct if k == 0 else upair(ct, k - 1)
            cmul(upair(ct, k), src, LT + 2 * ct, upair(ct, k))
            if k & 1:
                for cp in range(2):
                    A(f"v_cvt_pk_bf16_f32 {v(HP+8*(2*ct+cp)+k//2)}, {v(upair(ct,k-1)+cp)}, {v(upair(ct,k)+cp)}")
            if k in (7, 15):
                for m in (2 * ct, 2 * ct + 1):
                    A(f"ds_write_b128 {v(AD+2+k//8)}, {v(HP+8*m+4*(k//8),4)} offset:{(m%2)*2048}")
            if ct == 1 and k == 3: h_reads(0)
            if ct == 1 and k in (9, 11, 13, 15): h_store((k - 9) // 2)
    stamp(25)
    h_reads(1)
    for f in range(4, 8): tok_h = h_store(f)
    stamp(5)
    rest = Stream(c_ops(0) + c_ops(1))
    rest.dma(opt.get('sdrain', 4))
    p2_setup()
    A.wait(vm=tok_h)
    flag_store(sHF)
    stamp(6)
    rest.rest()
    stamp(26)
    A(f"s_mov_b32 {s(sFM)}, 0")
    A(f"s_cmp_eq_u32 {s(sJ)}, 0")
    A("s_cbranch_scc0 L_phase2")
    GD = ACC
    A(f"s_lshl_b32 {s(sT0)}, {s(sK0)}, 7"); A(f"s_add_u32 {s(sT0)}, {s(sT0)}, {GWS}")
    A(f"v_lshrrev_b32 {v(t0)}, 5, {v(vL)}")
    A(f"v_lshl_add_u32 {v(AD+9)}, {v(t0)}, 4, {s(sT0)}")
    A(f"v_lshrrev_b32 {v(t0)}, 4, {v(vL)}"); A(f"v_xor_b32 {v(t0)}, {v(t0)}, {v(vL)}"); A(f"v_and_b32 {v(t0)}, 1, {v(t0)}")
    A(f"v_lshl_add_u32 {v(AD+9)}, {v(t0)}, 11, {v(AD+9)}")
    toks = []
    for st in range(8): toks.append(A(f"ds_read_b128 {v(BUF+4*st,4)}, {v(AD+9)} offset:{st*32}"))
    for st in range(32):
        A.wait(lg=toks[st])
        A(f"v_mfma_f32_16x16x32_bf16 {v(GD+8,4)}, {v(BUF+4*(st%8),4)}, {a(4*st,4)}, {'0' if st == 0 else v(GD+8,4)}")
        if st + 8 < 32: toks.append(A(f"ds_read_b128 {v(BUF+4*(st%8),4)}, {v(AD+9)} offset:{(st+8)*32}"))
    A(f"v_bfe_u32 {v(t0)}, {v(vL)}, 2, 1"); A(f"v_bfe_u32 {v(t1)}, {v(vL)}, 3, 2"); A(f"v_and_b32 {v(t2)}, 12, {v(vL4)}")
    A(f"v_lshl_add_u32 {v(t2)}, {v(t1)}, 4, {v(t2)}")
    A(f"v_lshl_add_u32 {v(t2)}, {v(t0)}, 6, {v(t2)}")
    A(f"s_lshl_b32 {s(sT0)}, {s(sTT)}, 7"); A(f"s_add_u32 {s(sT0)}, {s(sT0)}, {WS_G}")
    A(f"s_lshl_b32 {s(sT2)}, {s(sTT)}, 9"); A(f"s_add_u32 {s(sT2)}, {s(sT2)}, {WS_OF+16}")
    A(f"s_mov_b32 {s(sFM)}, 3")
    sel_exec(0xffff0000, 0xffff0000)
    A(f"v_mov_b32 {v(GD+8)}, {v(GD+9)}")
    A("s_mov_b64 exec, -1")
    A(f"v_mul_f32 {v(t0)}, 0xbfb8aa3b, {v(GD+8)}")
    A(f"v_exp_f32 {v(t0)}, {v(t0)}")
    A(f"v_add_f32 {v(t0)}, 1.0, {v(t0)}")
    A(f"v_rcp_f32 {v(t0)}, {v(t0)}")
    A("s_nop 0")
    A(f"buffer_store_dword {v(t0)}, {v(t2)}, {s(R_WS,4)}, {s(sT0)} offen sc1")
    A("s_branch L_phase2")

    A.restore(snap0)
    A.label("L_attn")
    epoch_load()
    F = Fill()
    NL = AD + 10
    ONES = TMP + 48
    LA = TMP + 56
    sOA, sOF = sT0, sT1
    F(f"s_lshl2_add_u32 {s(sT2)}, {s(sJ)}, {s(sW)}")
    F(f"s_lshl4_add_u32 {s(sT3)}, {s(sT2)}, {s(sC)}")
    F(f"s_lshl_b32 {s(sU1)}, {s(sT3)}, 10"); F(f"s_add_u32 {s(sU1)}, {s(sU1)}, {WS_KVP}")
    F(f"s_lshl_b32 {s(sU2)}, {s(sT3)}, 6"); F(f"s_add_u32 {s(sU2)}, {s(sU2)}, {WS_ZP}")
    F(f"v_mov_b64 {v(TMP,2)}, -1"); F(f"v_mov_b64 {v(TMP+2,2)}, -1")
    F(f"s_mov_b32 {s(sL2E)}, 0x3fb8aa3b"); F(f"s_mov_b32 {s(sL2E+1)}, 0x3fb8aa3b")
    F(f"s_mov_b32 {s(sEPS)}, 0x358637bd"); F(f"s_mov_b32 {s(sEPS+1)}, 0x358637bd")
    F(f"v_mov_b32 {v(NL)}, 0xbfb8aa3b"); F(f"v_mov_b32 {v(NL+1)}, 0xbfb8aa3b")
    for q in range(4): F(f"v_mov_b32 {v(ONES+q)}, 0x3f803f80")
    F(f"s_lshl_b32 {s(sU0)}, {s(sT2)}, 11"); F(f"s_add_u32 {s(sU0)}, {s(sU0)}, {WS_KVF}")
    F(f"s_lshl_b32 {s(sT3)}, {s(sC)}, 7"); F(f"s_add_u32 {s(sT3)}, {s(sT3)}, {s(sU0)}")
    F(f"v_lshrrev_b32 {v(AD+8)}, 2, {v(vL)}"); F(f"v_lshlrev_b32 {v(AD+8)}, 7, {v(AD+8)}")
    F(f"s_lshl_b32 {s(sT0)}, {s(sW)}, 10"); F(f"s_add_u32 {s(sT0)}, {s(sT0)}, {SCR}")
    F(f"v_add_u32 {v(AD)}, {s(sT0)}, {v(vL16)}")
    F(f"s_add_u32 {s(sT0)}, {s(sMX)}, {SCR}")
    F(f"v_add_u32 {v(AD+1)}, {s(sT0)}, {v(vL16)}")
    F(f"s_lshl_b32 {s(sT0)}, {s(sW)}, 8"); F(f"s_add_u32 {s(sT0)}, {s(sT0)}, {SCR+16384}")
    F(f"v_add_u32 {v(AD+2)}, {s(sT0)}, {v(vL4)}")
    F(f"s_lshl_b32 {s(sT0)}, {s(sW)}, 6"); F(f"s_add_u32 {s(sT0)}, {s(sT0)}, {SCR+16384}")
    F(f"v_and_b32 {v(AD+4)}, 60, {v(vL4)}")
    F(f"v_add_u32 {v(AD+3)}, {s(sT0)}, {v(AD+4)}")
    F(f"v_add_u32 {v(AD+6)}, {SCR}, {v(RW)}"); F(f"v_add_u32 {v(AD+7)}, {SCR}, {v(RW+1)}")
    KVS, ZS = SCR + 20480, SCR + 22528
    F(f"s_lshr_b32 {s(sT0)}, {s(sW)}, 1"); F(f"s_lshl_b32 {s(sT0)}, {s(sT0)}, 10")
    F(f"s_lshl3_add_u32 {s(sT1)}, {s(sKH)}, {s(sT0)}"); F(f"s_add_u32 {s(sT1)}, {s(sT1)}, {KVS}")
    F(f"v_add_u32 {v(LA)}, {s(sT1)}, {v(vL16)}")
    F(f"s_lshl_b32 {s(sT1)}, {s(sKH)}, 5"); F(f"s_add_u32 {s(sT1)}, {s(sT1)}, {s(sT0)}"); F(f"s_add_u32 {s(sT1)}, {s(sT1)}, {ZS}")
    F(f"v_bfe_u32 {v(t4)}, {v(vL)}, 2, 1"); F(f"v_bfe_u32 {v(t5)}, {v(vL)}, 3, 1"); F(f"v_and_b32 {v(t6)}, 3, {v(vL)}")
    F(f"v_lshl_add_u32 {v(t6)}, {v(t6)}, 1, {s(sT1)}")
    F(f"v_lshl_add_u32 {v(t6)}, {v(t5)}, 3, {v(t6)}")
    F(f"v_lshl_add_u32 {v(LA+1)}, {v(t4)}, 4, {v(t6)}")
    F(f"v_add_u32 {v(LA+2)}, {KVS}, {v(vL16)}")
    F(f"v_mov_b32 {v(LA+3)}, {v(LA+2)}")
    F(f"v_lshrrev_b32 {v(t5)}, 5, {v(vL)}")
    F(f"v_lshlrev_b32 {v(t5)}, 4, {v(t5)}")
    F(lambda: sel_exec(0xffff0000, 0xffff0000), f"v_add_u32 {v(LA+2)}, {ZS}, {v(t5)}", "s_mov_b64 exec, -1")
    F(lambda: sel_exec(0x0000ffff, 0x0000ffff), f"v_add_u32 {v(LA+3)}, {ZS+32}, {v(t5)}", "s_mov_b64 exec, -1")
    F(f"v_bfe_u32 {v(t5)}, {v(vL)}, 3, 2"); F(f"v_and_b32 {v(t6)}, 35, {v(vL)}")
    F(f"v_lshl_add_u32 {v(t6)}, {v(t5)}, 2, {v(t6)}")
    F(f"v_lshl_add_u32 {v(t6)}, {v(t4)}, 4, {v(t6)}")
    F(f"v_lshlrev_b32 {v(LA+4)}, 4, {v(t6)}")
    F(f"s_mul_i32 {s(sOA)}, {s(sTT)}, 98304"); F(f"s_lshl_b32 {s(sT1)}, {s(sJ)}, 12"); F(f"s_add_u32 {s(sOA)}, {s(sOA)}, {s(sT1)}")
    F(f"s_add_u32 {s(sOA)}, {s(sOA)}, {WS_ACT+65536}")
    flag_addr(F, sOF, sU3, WS_OF)
    F.it = opt.get('clrit', 2)
    tok_clr = []
    F(f"buffer_store_dwordx4 {v(TMP,4)}, {v(vL16)}, {s(R_WS,4)}, {s(sU1)} offen sc1")
    F("s_mov_b64 exec, 0xffff", lambda: tok_clr.append(A(f"buffer_store_dword {v(TMP)}, {v(vL4)}, {s(R_WS,4)}, {s(sU2)} offen sc1")), "s_mov_b64 exec, -1")
    get_tag(F)
    F.it += 2
    F(lambda: A.wait(vm=tok_clr[0]), lambda: flag_store(sT3))
    utok = main_loop('attn', [wq_ops(0), wq_ops(1)], F)
    tokF = [A(f"buffer_load_dword {v(vF)}, {v(AD+8)}, {s(R_WS,4)}, {s(sU0)} offen sc1")]
    stamp(2)
    tok_wq = utok[9]
    A("s_barrier")
    def phi_ops(src, dst):
        L = []
        def fin(sr, pp, d):
            L.append(f"v_max_f32 {v(pp)}, {v(pp)}, {v(sr)}")
            L.append(f"v_max_f32 {v(pp+1)}, {v(pp+1)}, {v(sr+1)}")
            L.append(f"v_pk_add_f32 {v(pp,2)}, {v(pp,2)}, {s(sEPS,2)}")
            L.append(f"v_cvt_pk_bf16_f32 {v(d)}, {v(pp)}, {v(pp+1)}")
        for k in range(0, 16, 2):
            tt = t0 + 2 * ((k // 2) % 4)
            L.append(f"v_pk_fma_f32 {v(tt,2)}, {v(src+k,2)}, {s(sL2E,2)}, {v(NL,2)}")
            L.append(f"v_exp_f32 {v(tt)}, {v(tt)} clamp")
            L.append(f"v_exp_f32 {v(tt+1)}, {v(tt+1)} clamp")
            if k >= 2: fin(src + k - 2, t0 + 2 * ((k // 2 - 1) % 4), dst + k // 2 - 1)
        fin(src + 14, t0 + 2 * (7 % 4), dst + 7)
        return L
    PK, PV = TMP, TMP + 16
    ZD = TM2
    st_ = Stream(c_ops(2))
    st_.salu()
    run(phi_ops(ACC, PK) + phi_ops(ACC + 16, PK + 8))
    stamp(40)
    for tl in range(2):
        for f in range(2):
            A(f"v_mfma_f32_32x32x16_bf16 {v(ZD+16*tl,16)}, {v(ONES,4)}, {v(PK+8*tl+4*f,4)}, {'0' if f == 0 else v(ZD+16*tl,16)}")
            for k in range(4 * f, 4 * f + 4): A(f"v_cvt_pk_bf16_f32 {v(PV+8*tl+k)}, {v(ACC+32+16*tl+2*k)}, {v(ACC+32+16*tl+2*k+1)}")
            st_.dma()
    for tl in range(2):
        for f in range(2):
            A(f"v_mfma_f32_32x32x16_bf16 {v(ACC+16*tl,16)}, {v(PK+8*tl+4*f,4)}, {v(PV+8*tl+4*f,4)}, {'0' if f == 0 else v(ACC+16*tl,16)}")
            st_.dma()
    st_.rest()
    stamp(41)
    sel_exec(0, 0xffffffff)
    A(f"v_mov_b32 {v(ZD)}, {v(ZD+16)}")
    A("s_mov_b64 exec, -1")
    A(f"ds_write_b32 {v(AD+2)}, {v(ZD)}")
    for tl in range(2):
        sel_exec(0xffff0000, 0xffff0000)
        for q in range(4): A(f"v_mov_b64 {v(ACC+16*tl+2*q,2)}, {v(ACC+16*tl+8+2*q,2)}")
        A("s_mov_b64 exec, -1")
        for jj in range(2): A(f"ds_write_b128 {v(AD)}, {v(ACC+16*tl+4*jj,4)} offset:{(2*tl+jj)*4096}")
    stamp(42)
    A.wait(vm=tokF[0])
    stamp(43)
    A(f"v_cmp_ne_u32 vcc, {v(vF)}, {v(vTAG)}")
    A.wait_all(vm=False)
    A("s_barrier")
    stamp(44)
    for q in range(4): tk = A(f"ds_read_b128 {v(ACC+4*q,4)}, {v(AD+1)} offset:{q*1024}")
    for q in range(4): tz = A(f"ds_read_b32 {v(ACC+16+q)}, {v(AD+3)} offset:{q*256}")
    QA = TM2
    def qreads(ks):
        b = BUF + 8 * (ks % 4)
        L = []
        for tl in range(2):
            base = (ks // 4) * 8192 + (ks % 4) * 2048
            L.append(f"ds_read_b64_tr_b16 {v(b+4*tl,2)}, {v(RT+tl)} offset:{base}")
            L.append(f"ds_read_b64_tr_b16 {v(b+4*tl+2,2)}, {v(RT+tl)} offset:{base+512}")
        return L
    toks = [run(qreads(0))]
    A.wait(lg=tk)
    for e in (0, 2):
        A(f"v_pk_add_f32 {v(ACC+e,2)}, {v(ACC+e,2)}, {v(ACC+4+e,2)}")
        A(f"v_pk_add_f32 {v(ACC+8+e,2)}, {v(ACC+8+e,2)}, {v(ACC+12+e,2)}")
        A(f"v_pk_add_f32 {v(ACC+e,2)}, {v(ACC+e,2)}, {v(ACC+8+e,2)}")
    for e in range(4): A(f"v_min_u32 {v(ACC+e)}, -2, {v(ACC+e)}")
    A(f"buffer_store_dwordx4 {v(ACC,4)}, {v(vL16)}, {s(R_WS,4)}, {s(sU1)} offen sc1")
    A.wait(lg=tz)
    A(f"v_pk_add_f32 {v(ACC+16,2)}, {v(ACC+16,2)}, {v(ACC+18,2)}")
    A(f"v_add_f32 {v(ACC+16)}, {v(ACC+16)}, {v(ACC+17)}")
    A(f"v_min_u32 {v(ACC+16)}, -2, {v(ACC+16)}")
    A("s_mov_b64 exec, 0xffff")
    A(f"buffer_store_dword {v(ACC+16)}, {v(vL4)}, {s(R_WS,4)}, {s(sU2)} offen sc1")
    A("s_mov_b64 exec, -1")
    stamp(3)
    A("s_cbranch_vccz L_clr_x")
    snap = A.snapshot()
    def ld(): A(f"buffer_load_dword {v(vF)}, {v(AD+8)}, {s(R_WS,4)}, {s(sU0)} offen sc1")
    def ck(): A(f"v_cmp_ne_u32 vcc, {v(vF)}, {v(vTAG)}")
    spin("L_clr", ld, ck)
    A.restore(snap)
    toks.append(run(qreads(1)))
    A(f"s_lshl_b32 {s(sU1)}, {s(sT2)}, 14"); A(f"s_add_u32 {s(sU1)}, {s(sU1)}, {WS_KVP}")
    A(f"s_lshl_b32 {s(sU2)}, {s(sT2)}, 10"); A(f"s_add_u32 {s(sU2)}, {s(sU2)}, {WS_ZP}")
    ZL = TMP + 52
    def kv_loads():
        L = [f"buffer_load_dword {v(ZL+q)}, {v(vL4)}, {s(R_WS,4)}, {s(sU2)} offen offset:{q*256} sc1" for q in range(4)]
        for q in range(16):
            if q % 4 == 0: L.append(f"s_add_u32 {s(sD1)}, {s(sU1)}, {q*1024}")
            L.append(f"buffer_load_dwordx4 {v(ACC+4*q,4)}, {v(vL16)}, {s(R_WS,4)}, {s(sD1)} offen offset:{(q%4)*1024} sc1")
        return L
    KVAT = opt.get('kvat', 24)
    side = None; wrd = None
    for ks in range(32):
        if ks == 0:
            A("s_barrier")
            side = Stream(wo_ops(0, SCR))
        if ks == 8:
            side.rest(); tok_wo0 = A.vm
            side = Stream(c_ops(3))
        if ks == 16:
            A.wait(vm=tok_wo0)
            A("s_barrier")
            stamp(23)
            side = Stream(wo_ops(1, 0)); wrd = Stream(wo_reads(0, AD + 6, 0))
        if ks == KVAT:
            side.rest(); tok_wo1 = A.vm
            side = Stream(kv_loads())
        A.wait(lg=toks[ks])
        rd = qreads(ks + 2) if ks + 2 < 32 else []
        b = BUF + 8 * (ks % 4)
        for tl in range(2):
            A(f"v_mfma_f32_32x32x16_bf16 {v(QA+16*tl,16)}, {v(b+4*tl,4)}, {a(4*ks,4)}, {'1.0' if ks == 0 else v(QA+16*tl,16)}")
            if tl == 0:
                run(rd); toks.append(A.lg)
            else:
                if wrd: wrd.some(2)
                if side: side.dma()
        if ks == 15: side.rest()
    wrd.rest()
    stamp(24)
    PQ = TMP
    sprinkle(phi_ops(QA, PQ) + phi_ops(QA + 16, PQ + 8), side, opt.get('kvevery', 9))
    side.rest()
    tok_kv = A.vm
    A.wait(vm=tok_wo1); A.wait_all(vm=False)
    A("s_barrier")
    stamp(25)
    run(wo_reads(1, RW, 0))
    A(f"s_mov_b32 {s(sCNT)}, {SPIN}")
    stamp(4)
    def kv_sum(side, last):
        A.wait(vm=last - 15)
        A(f"v_max3_u32 {v(t2)}, {v(ZL)}, {v(ZL+1)}, {v(ZL+2)}")
        A(f"v_max3_u32 {v(t2)}, {v(t2)}, {v(ZL+3)}, {v(ACC)}")
        A(f"v_pk_add_f32 {v(ZL,2)}, {v(ZL,2)}, {v(ZL+2,2)}")
        A(f"v_add_f32 {v(t0)}, {v(ZL)}, {v(ZL+1)}")
        A(f"v_mov_b32 {v(t1)}, {v(t0)}")
        A(f"v_max3_u32 {v(t2)}, {v(t2)}, {v(ACC+1)}, {v(ACC+2)}")
        A(f"v_max_u32 {v(t2)}, {v(t2)}, {v(ACC+3)}")
        A(f"v_permlane32_swap_b32 {v(t0)}, {v(t1)}")
        A(f"v_add_f32 {v(t0)}, {v(t0)}, {v(t1)}")
        A(f"v_mov_b32 {v(t1)}, {v(t0)}")
        for q in range(1, 16):
            A.wait(vm=last - 15 + q)
            for e in (0, 2): A(f"v_max3_u32 {v(t2)}, {v(t2)}, {v(ACC+4*q+e)}, {v(ACC+4*q+e+1)}")
            if q == 15: A(f"v_cmp_eq_u32 vcc, -1, {v(t2)}")
            for e in (0, 2): A(f"v_pk_add_f32 {v(ACC+e,2)}, {v(ACC+e,2)}, {v(ACC+4*q+e,2)}")
            if q == 1:
                A(f"v_permlane16_swap_b32 {v(t0)}, {v(t1)}")
                A(f"v_add_f32 {v(t0)}, {v(t0)}, {v(t1)}")
                A(f"v_cvt_pk_bf16_f32 {v(t0)}, {v(t0)}, {v(t0)}")
            if side and q % 2 == 0: side.dma()
    side = Stream(c_ops(1))
    side.dma()
    kv_sum(side, tok_kv)
    assert not side.ops
    A("s_cbranch_vccnz L_kvretry")
    snap_kv = A.snapshot()
    A.label("L_kvok")
    stamp(5)
    A(f"ds_write_b16 {v(LA+1)}, {v(t0)}")
    A(f"v_cvt_pk_bf16_f32 {v(t2)}, {v(ACC)}, {v(ACC+1)}")
    A(f"v_cvt_pk_bf16_f32 {v(t3)}, {v(ACC+2)}, {v(ACC+3)}")
    A(f"ds_write_b64 {v(LA)}, {v(t2,2)}")
    A.wait_all(vm=False)
    A("s_barrier")
    AF = TMP + 16
    toks = []
    for hd4 in range(4): toks.append(A(f"ds_read_b128 {v(AF+4*hd4,4)}, {v(LA+2+(hd4&1))} offset:{(hd4>>1)*1024}"))
    side = Stream(c_ops(0))
    for hd4 in range(4):
        A.wait(lg=toks[hd4])
        A(f"v_mfma_f32_32x32x16_bf16 {v(ACC+16*hd4,16)}, {v(AF+4*hd4,4)}, {v(PQ+4*hd4,4)}, 0")
        side.dma()
    OP = TMP + 32
    for hd4 in range(4):
        hd = hd4 & 1
        nb_, db_ = ACC + 16 * hd4 + 8 * hd, ACC + 16 * hd4 + 8 * (1 - hd)
        A(f"v_add_f32 {v(db_)}, {s(sEPS)}, {v(db_)}")
        A(f"v_rcp_f32 {v(db_)}, {v(db_)}")
        for e in range(0, 8, 2): A(f"v_pk_mul_f32 {v(nb_+e,2)}, {v(nb_+e,2)}, {v(db_,2)} op_sel_hi:[1,0]")
        for e in range(0, 8, 2): A(f"v_cvt_pk_bf16_f32 {v(OP+4*hd4+e//2)}, {v(nb_+e)}, {v(nb_+e+1)}")
        tok_o = A(f"buffer_store_dwordx4 {v(OP+4*hd4,4)}, {v(LA+4)}, {s(R_WS,4)}, {s(sOA)} offen offset:{hd4*1024} sc1")
    stamp(26)
    side.rest()
    A(f"s_mov_b32 {s(sT2)}, {s(sOF)}"); A(f"s_mov_b32 {s(sFM)}, 1")
    p2_setup()
    stamp(6)

    A.label("L_phase2")
    A.hist = []
    stamp(7)
    def ld(): A(f"buffer_load_dword {v(vF)}, {v(AD+3)}, {s(R_WS,4)}, {s(sT3)} offen sc1")
    def ck(): A(f"v_cmp_ne_u32 vcc, {v(vF)}, {v(vTAG)}")
    ld()
    A(f"v_lshlrev_b32 {v(t3)}, 8, {v(vL)}")
    A(f"s_cmp_eq_u32 {s(sFM)}, 0")
    A.wait_all(vm=True, lg=True, force=True)
    A("s_cbranch_scc1 L_noflag")
    A(f"s_mov_b32 exec_lo, {s(sFM)}"); A("s_mov_b32 exec_hi, 0")
    A(f"buffer_store_dword {v(vTAG)}, {v(t3)}, {s(R_WS,4)}, {s(sT2)} offen sc1")
    A("s_mov_b64 exec, -1")
    A.vm -= 1
    A.label("L_noflag")
    ck()
    A("s_barrier")
    A("s_cbranch_vccz L_ph_x")
    spin("L_ph", ld, ck)
    stamp(8)
    AHEAD = opt.get('ahead', 10)
    GG = TM2
    def load_ops(n):
        o = []
        if n < 32:
            if n % 4 == 0 and n: o.append(f"s_add_u32 {s(sU0)}, {s(sU0)}, 4096")
            o.append(f"buffer_load_dwordx4 {a(4*n,4)}, {v(vL16)}, {s(R_WS,4)}, {s(sU0)} offen offset:{(n%4)*1024} sc1")
        else:
            k = n - 32
            if k == 0: o.append(f"buffer_load_dword {v(vE)}, {v(AD+7)}, {s(R_WS,4)}, {s(sU2)} offen sc1")
            if k % 4 == 0 and k: o.append(f"s_add_u32 {s(sU1)}, {s(sU1)}, 4096")
            o.append(f"buffer_load_dwordx4 {v(TMP+4*k,4)}, {v(vL16)}, {s(R_WS,4)}, {s(sU1)} offen offset:{(k%4)*1024} sc1")
        return o
    def creads(ks):
        jb, m, st = ks >> 3, (ks >> 1) & 3, ks & 1
        ct, cp = m >> 1, m & 1
        b = BUF + 8 * (ks % 4)
        off = jb * 16384 + cp * 8192
        return [f"ds_read_b128 {v(b,4)}, {v(RA+2*ct+st)} offset:{off}", f"ds_read_b128 {v(b+4,4)}, {v(RB+2*ct+st)} offset:{off}"]
    ltok = [run(load_ops(k)) for k in range(4)]
    A(f"v_lshlrev_b64 {v(t4,2)}, {v(t6)}, {v(t4,2)}")
    for q in range(4):
        m = 0xf << (16 * (q >> 1) + 4 * (q & 1))
        sel_exec(m, m << 8)
        A(f"v_mov_b64 {v(DF+2*q,2)}, {v(t4,2)}")
        A("s_mov_b64 exec, -1")
        ltok.append(run(load_ops(4 + q)))
    ctok = [run(creads(k)) for k in range(3)]
    for q in range(2): A(f"v_mfma_f32_32x32x16_bf16 {v(ACC,16)}, {v(XF+4*q,4)}, {v(DF+4*q,4)}, {'0' if q == 0 else v(ACC,16)}")
    ltok += [run(load_ops(k)) for k in range(8, AHEAD)]
    KCHK = 32 - AHEAD
    def step2a(ks, more):
        A.wait(vm=ltok[ks], lg=ctok[ks])
        stamp(100 + ks)
        b = BUF + 8 * (ks % 4)
        A(f"v_mfma_f32_32x32x16_bf16 {v(ACC,16)}, {a(4*ks,4)}, {v(b,4)}, {v(ACC,16)}")
        if more: ltok.append(run(load_ops(ks + AHEAD)))
        A(f"v_mfma_f32_32x32x16_bf16 {v(ACC+16,16)}, {a(4*ks,4)}, {v(b+4,4)}, {'0' if ks == 0 else v(ACC+16,16)}")
        if ks + 3 < 32: ctok.append(run(creads(ks + 3)))
    for ks in range(KCHK):
        step2a(ks, True)
        if ks + AHEAD == KCHK - 1: tokO = A(f"buffer_load_dword {v(vF)}, {v(AD+6)}, {s(R_WS,4)}, {s(sU3)} offen sc1")
    A.wait(vm=tokO)
    A(f"v_cmp_ne_u32 vcc, {v(vF)}, {v(vTAG)}")
    A("s_nop 0")
    A("s_cbranch_vccnz L_slow")
    snap = A.snapshot(); ctok_s = list(ctok); ltok_s = list(ltok)
    for ks in range(KCHK, 32): step2a(ks, True)
    stamp(9); stamp(10)
    A.label("L_2b")
    gops = []
    for tl in (1, 0):
        for k in range(16): gops.append(f"v_mul_f32 {v(ACC+16*tl+k)}, {v(ACC+16*tl+k)}, {v(GG+k)}")
    for k in range(16): gops.append(f"v_sub_f32 {v(GG+k)}, 1.0, {v(GG+k)}")
    for ks in range(16):
        A.wait(vm=ltok[32 + ks])
        stamp(140 + ks)
        for tl in (1, 0):
            A(f"v_mfma_f32_32x32x16_bf16 {v(ACC+32+16*tl,16)}, {v(TMP+4*ks,4)}, {a(128+8*ks+4*tl,4)}, {'0' if ks == 0 else v(ACC+32+16*tl,16)}")
            if tl == 1 and 32 + ks + AHEAD < 48: ltok.append(run(load_ops(32 + ks + AHEAD)))
            if ks == 0 and tl == 0: A(f"ds_write_b32 {v(AD)}, {v(vE)}")
            if ks in (1, 2) and tl == 0:
                for j in (2 * ks - 2, 2 * ks - 1): tg = A(f"ds_read_b128 {v(GG+4*j,4)}, {v(AD+2)} offset:{j*32}")
            if ks >= 6:
                A.wait(lg=tg)
                run(gops[:3]); gops = gops[3:]
    assert not gops
    stamp(11)
    A(f"s_lshl_b32 {s(sT0)}, {s(sTT2)}, 16")
    for k in range(0, 16, 2):
        A(f"v_pk_fma_f32 {v(ACC+16+k,2)}, {v(ACC+48+k,2)}, {v(GG+k,2)}, {v(ACC+16+k,2)}")
        if k % 4 == 2: A(f"ds_write_b128 {v(AD+4)}, {v(ACC+16+k-2,4)} offset:{(k//4)*1024}")
    for k in range(0, 16, 2): A(f"v_pk_fma_f32 {v(ACC+k,2)}, {v(ACC+32+k,2)}, {v(GG+k,2)}, {v(ACC+k,2)}")
    A.wait_all(vm=False)
    A("s_barrier")
    toks = [A(f"ds_read_b128 {v(ACC+32+4*j,4)}, {v(AD+5)} offset:{j*1024}") for j in range(4)]
    of = {0: "", 1: " nt", 2: " sc1", 3: " sc0 sc1"}[opt.get('outfl', 0)]
    for j in range(4):
        A.wait(lg=toks[j])
        for e in (0, 2): A(f"v_pk_add_f32 {v(ACC+4*j+e,2)}, {v(ACC+4*j+e,2)}, {v(ACC+32+4*j+e,2)}")
        A(f"s_add_u32 {s(sT1)}, {s(sT0)}, 4096")
        for i in range(4):
            A(f"buffer_store_dword {v(ACC+4*j+i)}, {v(AD+1)}, {s(R_OUT,4)}, {s(sT0 if i < 2 else sT1)} offen offset:{(i%2)*2048}{of}")
        if j < 3: A(f"s_add_u32 {s(sT0)}, {s(sT0)}, 16384")
    A(f"s_lshl2_add_u32 {s(sT0)}, {s(sNB)}, {s(sW)}"); A(f"s_lshl_b32 {s(sT0)}, {s(sT0)}, 5"); A(f"s_add_u32 {s(sT0)}, {s(sT0)}, {s(sRB)}")
    A(f"s_cmp_eq_u32 {s(sT0)}, 31")
    A("s_cbranch_scc0 L_fin")
    A("s_mov_b64 exec, 1")
    A(f"buffer_store_dword {v(vTAG)}, {v(vZ)}, {s(R_WS,4)}, 0 offen sc1")
    A("s_mov_b64 exec, -1")
    A.label("L_fin")
    if stamps:
        A("s_waitcnt vmcnt(0)")
        stamp(12)
        A("s_waitcnt lgkmcnt(0)")
        A(f"s_lshl2_add_u32 {s(sT0)}, {s(sWG)}, {s(sW)}"); A(f"s_lshl_b32 {s(sT0)}, {s(sT0)}, 6")
        A(f"s_add_u32 {s(sT0)}, {s(sT0)}, {WS_STAMP}")
        for i in range(14):
            A(f"v_mov_b32 {v(t0)}, {s(SREG[i] if i < 13 else sTY)}")
            A(f"buffer_store_dword {v(t0)}, {v(vZ)}, {s(R_WS,4)}, {s(sT0)} offen offset:{4*i}")
    A("s_endpgm")
    A.label("L_kvretry")
    A.restore(snap_kv)
    run(kv_loads())
    kv_sum(None, A.vm)
    A(f"s_sub_u32 {s(sCNT)}, {s(sCNT)}, 1")
    A("s_cbranch_scc1 L_kvok")
    A("s_cbranch_vccnz L_kvretry")
    A("s_branch L_kvok")
    A.label("L_slow")
    A.restore(snap); ctok[:] = ctok_s; ltok[:] = ltok_s
    for ks in range(KCHK, 32): step2a(ks, False)
    stamp(9)
    def ld(): A(f"buffer_load_dword {v(vF)}, {v(AD+6)}, {s(R_WS,4)}, {s(sU3)} offen sc1")
    spin("L_po", ld, ck)
    stamp(10)
    for n in range(32, 32 + AHEAD): run(load_ops(n))
    A("s_branch L_2b")
    A.label("L_end")
    if not opt.get('noalign'):
        A.out, A.fixed, A.padded = align_pass(A.out)
    hdr = open(os.path.join(os.path.dirname(__file__), "header.txt")).read()
    src = hdr + f"; @launch grid=(256,1,1) block=(256,1,1) lds={LDS_BYTES}\n" + f""".amdgcn_target "amdgcn-amd-amdhsa--gfx950"
.text
.globl {KNAME}
.p2align 12
.type {KNAME},@function
{KNAME}:
{A.text()}
    s_endpgm
.section .rodata,"a"
.p2align 6
.amdhsa_kernel {KNAME}
  .amdhsa_next_free_vgpr 512
  .amdhsa_next_free_sgpr 102
  .amdhsa_accum_offset 256
  .amdhsa_group_segment_fixed_size 0
  .amdhsa_kernarg_size 128
  .amdhsa_user_sgpr_count 2
  .amdhsa_user_sgpr_kernarg_segment_ptr 1
  .amdhsa_system_sgpr_workgroup_id_x 1
.end_amdhsa_kernel
"""
    return src, A

if __name__ == "__main__":
    out = sys.argv[1]
    opt = {}
    for kv in sys.argv[3:]:
        k_, v_ = kv.split('='); opt[k_] = int(v_)
    src, A = gen(stamps=len(sys.argv) > 2 and sys.argv[2] == 'stamps', opt=opt)
    open(out, "w").write(src)
    print("lines", len(A.out), "nops", A.nops, "widened", getattr(A, 'fixed', 0), "padded", getattr(A, 'padded', 0))
```

```python
import sys, os
sys.path.insert(0, os.path.dirname(__file__))
from asmlib import *

KNAME = "gated_mix__ssm_conv_s5__linear_attn_block__prompt_kernel"

WS_EPOCH = 0
WS_KVF   = 0xD0000
WS_HF    = 0x4000
WS_OF    = 0xC000
WS_G     = 0x14000
WS_ZP    = 0x18000
WS_AGG   = 0x20000
WS_KVP   = 0x40000
WS_STAMP = 0xC0000
WS_ACT   = 0x100000
WS_SIZE  = WS_ACT + 64 * 98304
SCR = 131072
LDS_BYTES = 163840
SPIN = 1 << 17

def gen(stamps=False, opt=None):
    opt = opt or {}
    A = Asm()
    P_X, P_LRE, P_LIM, P_BRE, P_BIM, P_CRE, P_CIM, P_LDT = 4, 6, 8, 10, 12, 14, 16, 18
    P_DSK, P_BX, P_QKV, P_WO, P_GW, P_OUT, P_DBG, P_WS = 20, 22, 24, 26, 28, 30, 32, 34
    R_X, R_W, R_WS, R_C, R_WO, R_OUT = 36, 40, 44, 48, 52, 56
    sW, sC, sJ, sK0, sRB, sNB, sTAG, sTY = 60, 61, 62, 63, 64, 65, 66, 67
    sXO, sWO, sWST, sU0, sT0, sT1, sT2, sT3 = 68, 69, 70, 71, 72, 73, 74, 75
    sMX, sMW, sCNT, sTT, sKH, sM8 = 76, 77, 78, 79, 80, 81
    sL2E = 82
    sU1, sU2 = 84, 85
    sEPS = 86
    sD0, sD1 = 2, 3
    SREG = [88, 90, 92, 94, 96, 98, 22, 32, 6, 8, 10, 12, 14]
    sWG = 100
    sU3 = 101
    names = opt.get('stamps') or [0, 1, 2, 3, 4, 5, 6, 7, 8, 9, 10, 11, 12]
    def stamp(i):
        if stamps and i in names:
            A(f"{'s_memtime' if opt.get('cyc') else 's_memrealtime'} {s(SREG[names.index(i)], 2)}")
    vL = 0; vZ = 1; vE = 2; vJ = 3
    t0, t1, t2, t3, t4, t5, t6, t7 = 4, 5, 6, 7, 8, 9, 10, 11
    vTAG = 12; vL16 = 13; vL4 = 14; vF = 15
    ACC = 16; BUF = 80; TMP = 112; TM2 = 176
    VX, VW, VN, VK1 = 208, 212, 216, 220
    RX, RN, RT = 224, 228, 232
    RW = 234
    RA, RB = 236, 240
    AD = 244
    PR = TM2

    def run(ops):
        tok = None
        for o in ops:
            r = A(o) if isinstance(o, str) else o()
            if r is not None: tok = r
        return tok
    def sel_exec(lo, hi):
        A(f"s_mov_b32 exec_lo, {lo:#x}"); A(f"s_mov_b32 exec_hi, {hi:#x}")

    stamp(0)
    A("s_load_dwordx16 s[4:19], s[0:1], 0")
    A("s_load_dwordx16 s[20:35], s[0:1], 64")
    A("s_cmp_ge_u32 s2, 256")
    A("s_cbranch_scc1 L_end")
    A(f"s_getpc_b64 {s(sT2,2)}")
    A.label("L_pc")
    A(f"s_and_b32 {s(sT0)}, s2, 0xf8")
    A(f"v_lshrrev_b32 {v(t0)}, 5, v0")
    A(f"v_add_lshl_u32 {v(t0)}, {v(t0)}, {s(sT0)}, 7")
    A(f"v_min_u32 {v(t0)}, L_end-L_pc, {v(t0)}")
    if not opt.get('nocodepf'):
        A(f"global_load_dword {v(vJ)}, {v(t0)}, {s(sT2,2)}")
    A(f"v_lshrrev_b32 {v(t0)}, 6, v0")
    A(f"v_and_b32 {v(vL)}, 63, v0")
    A(f"v_readfirstlane_b32 {s(sW)}, {v(t0)}")
    A(f"v_mov_b32 {v(vZ)}, 0")
    A(f"s_and_b32 {s(sT0)}, s2, 7")
    A(f"s_bfe_u32 {s(sNB)}, s2, 0x30003")
    A(f"s_lshr_b32 {s(sT3)}, s2, 6")
    if stamps: A(f"s_mov_b32 {s(sWG)}, s2")
    A(f"s_and_b32 {s(sC)}, {s(sT0)}, 1"); A(f"s_lshl3_add_u32 {s(sC)}, {s(sC)}, {s(sNB)}")
    A(f"s_and_b32 {s(sJ)}, {s(sT0)}, 6"); A(f"s_lshr_b32 {s(sK0)}, {s(sT3)}, 1"); A(f"s_add_u32 {s(sJ)}, {s(sJ)}, {s(sK0)}")
    A(f"s_lshr_b32 {s(sT1)}, {s(sT0)}, 1"); A(f"s_and_b32 {s(sT2)}, {s(sT0)}, 1")
    A(f"s_lshl2_add_u32 {s(sRB)}, {s(sT2)}, {s(sT1)}"); A(f"s_lshl2_add_u32 {s(sRB)}, {s(sRB)}, {s(sT3)}")
    G_ = opt.get('G', 2)
    if G_ == 1: A(f"s_mov_b32 {s(sK0)}, 0")
    elif G_ == 2: A(f"s_add_u32 {s(sK0)}, {s(sK0)}, {s(sNB)}"); A(f"s_lshl_b32 {s(sK0)}, {s(sK0)}, 2")
    elif G_ == 4: A(f"s_add_u32 {s(sK0)}, {s(sT3)}, {s(sNB)}"); A(f"s_lshl_b32 {s(sK0)}, {s(sK0)}, 1")
    else: A(f"s_lshl1_add_u32 {s(sK0)}, {s(sT3)}, {s(sNB)}")
    X_ = opt.get('xoff', 1)
    if X_ == 1: A(f"s_lshl1_add_u32 {s(sT1)}, {s(sT2)}, {s(sT1)}"); A(f"s_add_u32 {s(sK0)}, {s(sK0)}, {s(sT1)}")
    if X_ == 2: A(f"s_add_u32 {s(sT1)}, {s(sT2)}, {s(sT1)}"); A(f"s_add_u32 {s(sK0)}, {s(sK0)}, {s(sT1)}")
    if X_ == 3: A(f"s_lshl1_add_u32 {s(sT1)}, {s(sT2)}, {s(sT1)}"); A(f"s_lshl1_add_u32 {s(sK0)}, {s(sT1)}, {s(sK0)}")
    A(f"s_and_b32 {s(sK0)}, {s(sK0)}, 7")
    A(f"s_and_b32 {s(sTY)}, {s(sT3)}, 1")
    A(f"v_lshrrev_b32 {v(t0)}, 3, {v(vL)}")
    A(f"v_and_b32 {v(t1)}, 7, {v(vL)}")
    A(f"v_lshrrev_b32 {v(t2)}, 4, {v(vL)}")
    A(f"v_xor_b32 {v(t3)}, {v(t1)}, {v(t2)}")
    A(f"v_lshlrev_b32 {v(t3)}, 4, {v(t3)}")
    A(f"v_and_b32 {v(t2)}, 16, {v(vL)}")
    A(f"v_lshlrev_b32 {v(t2)}, 2, {v(t2)}")
    A(f"v_lshlrev_b32 {v(t4)}, 4, {v(t1)}")
    A(f"v_xor_b32 {v(t4)}, {v(t4)}, {v(t2)}")
    A(f"v_lshrrev_b32 {v(t5)}, 5, {v(vL)}")
    A(f"v_and_b32 {v(t6)}, 3, {v(t0)}")
    A(f"v_lshl_add_u32 {v(t5)}, {v(t5)}, 4, {v(t6)}")
    A(f"v_lshl_add_u32 {v(VX)}, {v(t5)}, 10, {v(t3)}")
    A(f"v_xor_b32 {v(t5)}, 64, {v(VX)}")
    A(f"v_add_u32 {v(VX+1)}, {3072}, {v(t5)}")
    A(f"v_add_u32 {v(VX+2)}, {2*3072}, {v(VX)}")
    A(f"v_add_u32 {v(VX+3)}, {3*3072}, {v(t5)}")
    A(f"v_lshl_add_u32 {v(VN)}, {v(t0)}, 10, {v(t3)}")
    A(f"v_xor_b32 {v(t5)}, 64, {v(VN)}")
    A(f"v_add_u32 {v(VN+1)}, {7168}, {v(t5)}")
    A(f"v_add_u32 {v(VN+2)}, {2*7168}, {v(VN)}")
    A(f"v_add_u32 {v(VN+3)}, {3*7168}, {v(t5)}")
    A(f"v_lshl_add_u32 {v(VK1)}, {v(t0)}, 10, {v(t4)}")
    A(f"v_lshl_add_u32 {v(VW)}, {v(t0)}, 11, {v(VK1)}")
    for q in (1, 2, 3): A(f"v_add_u32 {v(VW+q)}, {q*(8*3072-1024)}, {v(VW)}")
    A(f"s_lshl_b32 {s(sT0)}, {s(sJ)}, 7")
    A(f"v_lshl_add_u32 {v(t7)}, {v(vL)}, 1, {s(sT0)}")
    A(f"v_lshlrev_b32 {v(vL16)}, 4, {v(vL)}")
    A(f"s_lshl_b32 {s(sMX)}, {s(sW)}, 12")
    A(f"s_add_u32 {s(sMW)}, {s(sMX)}, 16384")
    A(f"s_and_b32 {s(sKH)}, {s(sW)}, 1")
    A(f"s_lshr_b32 {s(sT1)}, {s(sW)}, 1")
    A(f"s_lshl2_add_u32 {s(sTT)}, {s(sC)}, {s(sW)}")
    A(f"s_lshl_b32 {s(sXO)}, {s(sTT)}, 15")
    A(f"s_lshl_b32 {s(sT2)}, {s(sK0)}, 7")
    A(f"s_add_u32 {s(sXO)}, {s(sXO)}, {s(sT2)}")
    A(f"s_lshl1_add_u32 {s(sT2)}, {s(sJ)}, {s(sT1)}"); A(f"s_lshl_b32 {s(sT2)}, {s(sT2)}, 15")
    A(f"s_mul_i32 {s(sT3)}, {s(sKH)}, {32*3072}"); A(f"s_lshl_b32 {s(sT1)}, {s(sT1)}, 10"); A(f"s_add_u32 {s(sT3)}, {s(sT3)}, {s(sT1)}")
    A(f"s_add_u32 {s(sT3)}, {s(sT3)}, {s(sT0)}"); A(f"s_add_u32 {s(sT3)}, {s(sT3)}, 1024")
    A(f"s_cmp_eq_u32 {s(sTY)}, 0")
    A(f"s_cselect_b32 {s(sWO)}, {s(sT2)}, {s(sT3)}")
    A(f"s_cselect_b32 {s(sWST)}, 128, {64*3072}") if False else None
    A(f"s_mov_b32 {s(sT1)}, {64*3072}"); A(f"s_cselect_b32 {s(sWST)}, 0x80, {s(sT1)}")
    A(f"s_mov_b32 {s(sT1)}, 0x180000"); A(f"s_cselect_b32 {s(R_W+2)}, 0x80000, {s(sT1)}")
    A("s_cselect_b64 exec, -1, 0")
    A(f"v_mov_b64 {v(VW,2)}, {v(VN,2)}"); A(f"v_mov_b64 {v(VW+2,2)}, {v(VN+2,2)}")
    A("s_mov_b64 exec, -1")
    A(f"s_mul_i32 {s(sT1)}, {s(sK0)}, {s(sWST)}"); A(f"s_add_u32 {s(sWO)}, {s(sWO)}, {s(sT1)}")
    A(f"s_mov_b32 {s(R_X+2)}, 0x200000"); A(f"s_mov_b32 {s(R_X+3)}, 0x20000")
    A(f"s_mov_b32 {s(R_W+3)}, 0x20000")
    A(f"s_mov_b32 m0, {s(sMX)}")
    A(f"s_mov_b32 {s(R_WS+2)}, {WS_SIZE}"); A(f"s_mov_b32 {s(R_WS+3)}, 0x20000")
    A(f"s_mov_b32 {s(R_C+2)}, 0x80000"); A(f"s_mov_b32 {s(R_C+3)}, 0x20000")
    A(f"s_mov_b32 {s(R_WO+2)}, 0x80000"); A(f"s_mov_b32 {s(R_WO+3)}, 0x20000")
    A(f"s_mov_b32 {s(R_OUT+2)}, 0x400000"); A(f"s_mov_b32 {s(R_OUT+3)}, 0x20000")
    A(f"s_lshl_b32 {s(sM8)}, {s(sW)}, 13")
    late = []
    Lt = late.append
    for q in (1, 2, 3): Lt(f"v_add_u32 {v(VK1+q)}, {q*7168}, {v(VK1)}")
    Lt(f"v_and_b32 {v(t0)}, 31, {v(vL)}")
    Lt(f"v_lshrrev_b32 {v(t1)}, 5, {v(vL)}")
    Lt(f"v_bfe_u32 {v(t2)}, {v(vL)}, 1, 3")
    Lt(f"v_xor_b32 {v(t2)}, {v(t2)}, {v(t1)}")
    Lt(f"v_lshlrev_b32 {v(t2)}, 4, {v(t2)}")
    Lt(f"v_lshl_add_u32 {v(RN)}, {v(t0)}, 7, {v(t2)}")
    for q in (1, 2, 3): Lt(f"v_xor_b32 {v(RN+q)}, {q*32}, {v(RN)}")
    for q in range(4): Lt(f"v_add_u32 {v(RX+q)}, {s(sMX)}, {v(RN+q)}")
    Lt(f"v_bfe_u32 {v(t2)}, {v(vL)}, 2, 2")
    Lt(f"v_bfe_u32 {v(t3)}, {v(vL)}, 3, 1")
    Lt(f"v_bfe_u32 {v(t4)}, {v(vL)}, 4, 1")
    Lt(f"v_and_b32 {v(t5)}, 3, {v(vL)}")
    Lt(f"v_lshlrev_b32 {v(t5)}, 3, {v(t5)}")
    Lt(f"v_lshl_add_u32 {v(t5)}, {v(t4)}, 5, {v(t5)}")
    Lt(f"v_lshl_add_u32 {v(t5)}, {v(t3)}, 6, {v(t5)}")
    Lt(f"v_lshl_add_u32 {v(t5)}, {v(t2)}, 7, {v(t5)}")
    Lt(f"v_lshl_add_u32 {v(RT)}, {v(t1)}, 10, {v(t5)}")
    Lt(f"v_xor_b32 {v(RT+1)}, 64, {v(RT)}")
    Lt(f"v_lshl_add_u32 {v(RW)}, {v(t1)}, 9, {v(t5)}")
    Lt(f"s_mul_i32 {s(sT0)}, {s(sKH)}, {16384+64}")
    Lt(f"v_xor_b32 {v(RW)}, {s(sT0)}, {v(RW)}")
    Lt(f"v_xor_b32 {v(RW+1)}, 64, {v(RW)}")
    Lt(f"v_lshlrev_b32 {v(vL4)}, 2, {v(vL)}")
    Lt(f"s_mul_i32 {s(sT0)}, {s(sKH)}, {65536+4096}")
    Lt(f"s_xor_b32 {s(sT1)}, {s(sT0)}, 4096")
    for q in range(4):
        Lt(f"v_add_u32 {v(RA+q)}, {s(sT0)}, {v(RN+q)}")
        Lt(f"v_add_u32 {v(RB+q)}, {s(sT1)}, {v(RN+q)}")
    Lt(f"s_mov_b64 {s(R_WS,2)}, {s(P_WS,2)}")
    Lt(f"s_mov_b64 {s(R_WO,2)}, {s(P_WO,2)}")
    Lt(f"s_mov_b64 {s(R_OUT,2)}, {s(P_OUT,2)}")
    A(f"s_cmp_eq_u32 {s(sKH)}, 0")
    A("s_waitcnt lgkmcnt(0)")
    stamp(20)
    A(f"s_mov_b64 {s(R_X,2)}, {s(P_X,2)}")
    pLRE, pLIM, pLDT = PR, PR + 1, PR + 2
    def dma(voff, srd, soff, q):
        off = f" offset:{q*1024}" if q else ""
        return f"buffer_load_dwordx4 {v(voff+q)}, {s(srd,4)}, {s(soff)} offen{off} lds"
    for q in range(4): A(dma(VX, R_X, sXO, q))
    A(f"s_cselect_b64 {s(R_W,2)}, {s(P_BRE,2)}, {s(P_BIM,2)}")
    A(f"s_cselect_b64 {s(R_C,2)}, {s(P_CRE,2)}, {s(P_CIM,2)}")
    A(f"s_cmp_eq_u32 {s(sTY)}, 0")
    A(f"s_cselect_b64 {s(R_W,2)}, {s(R_W,2)}, {s(P_QKV,2)}")
    A(f"s_mov_b32 m0, {s(sMW)}")
    for q in range(4):
        run(late[:4]); late = late[4:]
        A(dma(VW, R_W, sWO, q))
    utok0 = [A.vm]
    stamp(21)
    def unit_ops(i):
        slot = (i % 4) * 32768
        ops = []
        ops += [f"s_cmp_eq_u32 {s(sK0)}, {8-i}", f"s_cselect_b32 {s(sD0)}, -7, 1", f"s_mul_i32 {s(sD1)}, {s(sD0)}, {s(sWST)}",
                f"s_lshl_b32 {s(sD0)}, {s(sD0)}, 7", f"s_add_u32 {s(sXO)}, {s(sXO)}, {s(sD0)}", f"s_add_u32 m0, {s(sMX)}, {slot}"]
        ops += [dma(VX, R_X, sXO, q) for q in range(4)]
        ops += [f"s_add_u32 {s(sWO)}, {s(sWO)}, {s(sD1)}", f"s_add_u32 m0, {s(sMW)}, {slot}"]
        ops += [dma(VW, R_W, sWO, q) for q in range(4)]
        return ops
    for o in unit_ops(1):
        if o.startswith('buffer'):
            run(late[:4]); late = late[4:]
        A(o)
    run(late)
    utok0.append(A.vm)
    stamp(22)
    A(f"s_cmp_eq_u32 {s(sTY)}, 0")
    A("s_cbranch_scc0 L_attn")
    snap0 = A.snapshot()

    def unit8_ops(voff, srd, pre, base, rowstep):
        ops = list(pre)
        ops.append(f"s_add_u32 m0, {s(sM8)}, {base}")
        ops += [dma(voff, srd, sD0, q) for q in range(4)]
        ops.append(f"s_add_u32 {s(sD0)}, {s(sD0)}, {rowstep}")
        ops.append(f"s_add_u32 m0, {s(sM8)}, {base+4096}")
        ops += [dma(voff, srd, sD0, q) for q in range(4)]
        return ops
    def wq_ops(u):
        pre = [f"s_xor_b32 {s(sD0)}, {s(sK0)}, {4*u}", f"s_add_u32 {s(sD0)}, {s(sD0)}, {s(sW)}", f"s_and_b32 {s(sD0)}, {s(sD0)}, 7",
               f"s_mul_i32 {s(sD0)}, {s(sD0)}, {64*3072}", f"s_lshl_b32 {s(sD1)}, {s(sJ)}, 7", f"s_add_u32 {s(sD0)}, {s(sD0)}, {s(sD1)}"]
        return unit8_ops(VW, R_W, pre, u * 32768, 32 * 3072)
    def wo_ops(u, base):
        pre = [f"s_and_b32 {s(sD0)}, {s(sW)}, 2", f"s_add_u32 {s(sD0)}, {s(sD0)}, {s(sW)}", f"s_add_u32 {s(sD0)}, {s(sD0)}, {2*u}",
               f"s_lshl_b32 {s(sD0)}, {s(sD0)}, 9", f"s_add_u32 {s(sD0)}, {s(sD0)}, {s(sNB)}", f"s_lshl_b32 {s(sD0)}, {s(sD0)}, 7"]
        return unit8_ops(VK1, R_WO, pre, base, 32 * 1024)
    def c_ops(slot, swap=0):
        u = slot ^ swap
        pre = [f"s_lshr_b32 {s(sD0)}, {s(sW)}, 1", f"s_lshl_b32 {s(sD1)}, {s(sNB)}, 9", f"s_add_u32 {s(sD0)}, {s(sD0)}, {s(sD1)}",
               f"s_add_u32 {s(sD0)}, {s(sD0)}, {2*u}", f"s_lshl_b32 {s(sD0)}, {s(sD0)}, 7"]
        return unit8_ops(VN, R_C, pre, slot * 32768, 32 * 1024)
    def wo_reads(u, areg, off):
        L = []
        for st in range(8):
            for tl in range(2):
                d = 128 + 8 * (8 * u + st) + 4 * tl
                L.append(f"ds_read_b64_tr_b16 {a(d,2)}, {v(areg+tl)} offset:{off+st*2048}")
                L.append(f"ds_read_b64_tr_b16 {a(d+2,2)}, {v(areg+tl)} offset:{off+st*2048+1024}")
        return L
    class Stream:
        def __init__(self, ops): self.ops = list(ops)
        def dma(self, n=1):
            while n > 0 and self.ops:
                o = self.ops.pop(0); A(o)
                if o.startswith('buffer_') or o.startswith('global_'): n -= 1
        def salu(self):
            while self.ops and not (self.ops[0].startswith('buffer_') or self.ops[0].startswith('global_')): A(self.ops.pop(0))
        def some(self, n):
            tok = None
            for _ in range(n):
                if self.ops: tok = A(self.ops.pop(0))
            return tok
        def rest(self):
            tok = None
            while self.ops: tok = A(self.ops.pop(0))
            return tok
    def sprinkle(ops, stream, every):
        for n, o in enumerate(ops):
            A(o) if isinstance(o, str) else o()
            if (n + 1) % every == 0: stream.dma()

    def main_loop(kind, tail_units, fill):
        utok = list(utok0)
        def reads(i, st):
            slot = (i % 2) * 32768
            b = BUF + 16 * ((4 * i + st) % 2)
            L = [f"ds_read_b128 {a(16*i+4*st,4)}, {v(RX+st)} offset:{slot}"]
            for tl in range(4):
                if kind == 'ssm':
                    L.append(f"ds_read_b128 {v(b+4*tl,4)}, {v(RN+st)} offset:{slot+16384+tl*4096}")
                else:
                    base = slot + 16384 + (tl >> 1) * 8192 + st * 2048
                    L.append(f"ds_read_b64_tr_b16 {v(b+4*tl,2)}, {v(RT+(tl&1))} offset:{base}")
                    L.append(f"ds_read_b64_tr_b16 {v(b+4*tl+2,2)}, {v(RT+(tl&1))} offset:{base+512}")
            if i % 2 == 1:
                L.append(f"v_xor_b32 {v(RX+st)}, 0x10000, {v(RX+st)}")
                if kind == 'ssm': L.append(f"v_xor_b32 {v(RN+st)}, 0x10000, {v(RN+st)}")
                elif st == 3: L += [f"v_xor_b32 {v(RT+q)}, 0x10000, {v(RT+q)}" for q in range(2)]
            return L
        def mfmas(i, st):
            b = BUF + 16 * ((4 * i + st) % 2)
            L = []
            for tl in range(4):
                c = v(ACC + 16 * tl, 16)
                if i == 0 and st == 0: c = "1.0" if (kind == 'attn' and tl < 2) else "0"
                L.append(f"v_mfma_f32_32x32x16_bf16 {v(ACC+16*tl,16)}, {a(16*i+4*st,4)}, {v(b+4*tl,4)}, {c}")
            return L
        prev = None
        while fill and fill[0][0] < 0: run(fill.pop(0)[1])
        stamp(1)
        for i in range(8):
            nxt = Stream(unit_ops(i + 2) if i + 2 < 8 else tail_units[i - 6])
            nxt.salu()
            A.wait(vm=utok[i])
            A("s_barrier")
            stamp(30 + i)
            burst = i < opt.get('burst', 2)
            for st in range(4):
                rd = reads(i, st)
                if prev is None:
                    run(rd); prev = (i, st, A.lg); nxt.dma(4 if burst else 2); nxt.salu(); continue
                ms = mfmas(prev[0], prev[1])
                A.wait(lg=prev[2])
                split = opt.get('sa', [3, 3, 9, 0]) if kind == 'attn' else opt.get('ss', [3, 9, 0, 0])
                fper = opt.get('fa', [1, 0, 1, 2]) if kind == 'attn' else opt.get('fs', [2, 3, 1, 1])
                dgap = opt.get('dga', [1, 3]) if kind == 'attn' else opt.get('dgs', [2, 3])
                for tl in range(4):
                    A(ms[tl])
                    if opt.get('dfirst') and (tl in dgap or burst): nxt.dma(); nxt.salu()
                    run(rd[:split[tl]]); rd = rd[split[tl]:]
                    if not opt.get('dfirst') and (tl in dgap or burst): nxt.dma(); nxt.salu()
                    n = fper[tl]
                    while n > 0 and fill and fill[0][0] <= i:
                        g = fill.pop(0)[1]
                        run(g); n -= len(g)
                assert not rd
                prev = (i, st, A.lg)
            nxt.rest()
            utok.append(A.vm)
        assert not fill, len(fill)
        A.wait(lg=prev[2])
        run(mfmas(prev[0], prev[1]))
        return utok

    class Fill(list):
        it = -1
        def __call__(self, *ops): self.append((self.it, list(ops)))
    def epoch_load():
        A("s_mov_b64 exec, 1")
        A(f"global_load_dword {v(vE)}, {v(vZ)}, {s(P_WS,2)} sc1")
        A("s_mov_b64 exec, -1")
    def get_tag(F):
        F(f"v_readfirstlane_b32 {s(sTAG)}, {v(vE)}")
        F(f"s_mul_i32 {s(sTAG)}, {s(sTAG)}, 0x9E3779B5")
        F(f"s_add_u32 {s(sTAG)}, {s(sTAG)}, 0x7F4A7C15")
        F(f"v_mov_b32 {v(vTAG)}, {s(sTAG)}")
    def cmul4(F, d, x, y):
        F(f"v_mul_f32 {v(d)}, {v(x)}, {v(y)}")
        F(f"v_mul_f32 {v(d+1)}, {v(x)}, {v(y+1)}")
        F(f"v_fma_f32 {v(d)}, -{v(x+1)}, {v(y+1)}, {v(d)}")
        F(f"v_fmac_f32 {v(d+1)}, {v(x+1)}, {v(y)}")
    def p2_setup():
        A(f"s_lshr_b32 {s(sT0)}, {s(sW)}, 1"); A(f"s_lshl1_add_u32 {s(sTT2)}, {s(sRB)}, {s(sT0)}")
        A(f"s_lshl1_add_u32 {s(sT0)}, {s(sNB)}, {s(sKH)}"); A(f"s_lshl_b32 {s(sT0)}, {s(sT0)}, 6")
        A(f"v_and_b32 {v(t0)}, 31, {v(vL)}")
        A(f"v_lshrrev_b32 {v(t1)}, 5, {v(vL)}")
        A(f"v_lshl_add_u32 {v(t2)}, {v(t0)}, 1, {s(sT0)}")
        A(f"v_lshlrev_b32 {v(AD+2)}, 4, {v(t1)}")
        A(f"v_lshl_add_u32 {v(t3)}, {v(t0)}, 10, {v(AD+2)}")
        A(f"v_lshlrev_b32 {v(AD+7)}, 2, {v(t0)}")
        A(f"s_lshl_b32 {s(sT1)}, {s(sW)}, 7"); A(f"s_add_u32 {s(sT1)}, {s(sT1)}, {SCR+24576}")
        A(f"v_add_u32 {v(AD+2)}, {s(sT1)}, {v(AD+2)}")
        A(f"v_add_u32 {v(AD)}, {s(sT1)}, {v(AD+7)}")
        A(f"s_lshl_b32 {s(sT1)}, {s(sTT2)}, 15"); A(f"s_add_u32 {s(sT1)}, {s(sT1)}, {s(sT0)}")
        A(f"global_load_ushort {v(t4)}, {v(t2)}, {s(P_DSK,2)}")
        A(f"buffer_load_dwordx4 {v(XF,4)}, {v(t3)}, {s(R_X,4)}, {s(sT1)} offen")
        A(f"buffer_load_dwordx4 {v(XF+4,4)}, {v(t3)}, {s(R_X,4)}, {s(sT1)} offen offset:32")
        A(f"v_lshlrev_b32 {v(t2)}, 1, {v(t2)}")
        A(f"v_lshl_add_u32 {v(AD+1)}, {v(t1)}, 13, {v(t2)}")
        A(f"s_lshl1_add_u32 {s(sU3)}, {s(sTT2)}, {s(sKH)}"); A(f"s_lshl_b32 {s(sU3)}, {s(sU3)}, 8")
        A(f"s_add_u32 {s(sT3)}, {s(sU3)}, {WS_HF}")
        A(f"s_add_u32 {s(sU3)}, {s(sU3)}, {WS_OF}")
        A(f"v_and_b32 {v(AD+3)}, 12, {v(vL4)}")
        A(f"v_min_u32 {v(AD+6)}, 16, {v(vL4)}")
        A(f"s_xor_b32 {s(sT0)}, {s(sMX)}, 4096"); A(f"s_add_u32 {s(sT0)}, {s(sT0)}, {SCR}")
        A(f"v_add_u32 {v(AD+4)}, {s(sT0)}, {v(vL16)}")
        A(f"v_xor_b32 {v(AD+5)}, 4096, {v(AD+4)}")
        A(f"s_mul_i32 {s(sXO)}, {s(sTT2)}, 98304"); A(f"s_add_u32 {s(sXO)}, {s(sXO)}, {WS_ACT}")
        A(f"s_lshl_b32 {s(sU0)}, {s(sKH)}, 15"); A(f"s_add_u32 {s(sU0)}, {s(sU0)}, {s(sXO)}")
        A(f"s_lshl_b32 {s(sU1)}, {s(sKH)}, 14"); A(f"s_add_u32 {s(sU1)}, {s(sU1)}, {s(sXO)}"); A(f"s_add_u32 {s(sU1)}, {s(sU1)}, 65536")
        A(f"s_lshl_b32 {s(sU2)}, {s(sTT2)}, 7"); A(f"s_add_u32 {s(sU2)}, {s(sU2)}, {WS_G}")
        for q in range(4): A(f"v_mov_b64 {v(DF+2*q,2)}, 0")
        A(f"v_mov_b32 {v(t5)}, 0")
        A(f"v_and_b32 {v(t6)}, 48, {v(vL16)}")
    sFM = sMW; sTT2 = sWST; XF = TM2 + 16; DF = TM2 + 24

    def cmul_ops(dst, x, y, add=None):
        if add is None: o = f"v_pk_mul_f32 {v(dst,2)}, {v(x,2)}, {v(y,2)} op_sel_hi:[0,1]"
        else: o = f"v_pk_fma_f32 {v(dst,2)}, {v(x,2)}, {v(y,2)}, {v(add,2)} op_sel_hi:[0,1,1]"
        return [o, f"v_pk_fma_f32 {v(dst,2)}, {v(x,2)}, {v(y,2)}, {v(dst,2)} op_sel:[1,1,0] op_sel_hi:[1,0,1] neg_lo:[0,1,0]"]
    def cmul(*a_): run(cmul_ops(*a_))

    def spin(name, load, check):
        A(f"s_mov_b32 {s(sCNT)}, {SPIN}")
        A.label(name)
        load()
        A.wait_all(vm=True, lg=False, force=True)
        check()
        A(f"s_sub_u32 {s(sCNT)}, {s(sCNT)}, 1")
        A(f"s_cbranch_scc1 {name}_x")
        A(f"s_cbranch_vccnz {name}")
        A.label(name + "_x")
    def flag_store(soff, mask=1, voff=vZ):
        A(f"s_mov_b64 exec, {mask}")
        A(f"buffer_store_dword {v(vTAG)}, {v(voff)}, {s(R_WS,4)}, {s(soff)} offen sc1")
        A("s_mov_b64 exec, -1")
    def flag_addr(F, dst, tmp, base):
        F(f"s_lshr_b32 {s(tmp)}, {s(sJ)}, 2"); F(f"s_lshl1_add_u32 {s(dst)}, {s(sTT)}, {s(tmp)}"); F(f"s_lshl_b32 {s(dst)}, {s(dst)}, 6")
        F(f"s_and_b32 {s(tmp)}, {s(sJ)}, 3"); F(f"s_add_u32 {s(dst)}, {s(dst)}, {s(tmp)}"); F(f"s_lshl2_add_u32 {s(dst)}, {s(dst)}, {base}")

    L1, KK, L16, L32 = PR + 4, PR + 6, PR + 8, PR + 10
    L2T = PR + 0
    LT, KT = PR + 14, PR + 18
    WG_ = PR + 22
    WSEG = PR + 30
    L128 = PR + 12
    epoch_load()
    A(f"global_load_ushort {v(pLRE)}, {v(t7)}, {s(P_LRE,2)}")
    A(f"global_load_ushort {v(pLIM)}, {v(t7)}, {s(P_LIM,2)}")
    A(f"global_load_ushort {v(pLDT)}, {v(t7)}, {s(P_LDT,2)}")
    A(f"global_load_dwordx4 {v(TMP+4,4)}, {v(vL16)}, {s(P_GW,2)}")
    GWS = SCR + 20480
    F = Fill()
    F(f"s_lshl_b32 {s(sT0)}, {s(sW)}, 10"); F(f"s_add_u32 {s(sT0)}, {s(sT0)}, {GWS}")
    F(f"v_add_u32 {v(AD+8)}, {s(sT0)}, {v(vL16)}")
    GR = TMP + 60
    sHF = sEPS
    F(f"s_lshl_b32 {s(sT0)}, {s(sW)}, 9")
    F(f"v_lshlrev_b32 {v(AD)}, 3, {v(vL)}")
    F(f"v_add_u32 {v(AD)}, {SCR}, {v(AD)}")
    F(f"v_add_u32 {v(AD+1)}, {s(sT0)}, {v(AD)}")
    F(f"s_lshl4_add_u32 {s(sT2)}, {s(sJ)}, {s(sC)}"); F(f"s_lshl_b32 {s(sT2)}, {s(sT2)}, 10")
    F(f"s_add_u32 {s(sT2)}, {s(sT2)}, {WS_AGG}")
    F(f"v_and_b32 {v(t4)}, 31, {v(vL)}")
    F(f"v_lshrrev_b32 {v(t5)}, 5, {v(vL)}")
    F(f"v_bfe_u32 {v(t6)}, {v(vL)}, 1, 2")
    F(f"v_lshlrev_b32 {v(t7)}, 1, {v(t5)}")
    F(f"v_xor_b32 {v(t6)}, {v(t6)}, {v(t7)}")
    F(f"v_lshlrev_b32 {v(t6)}, 4, {v(t6)}")
    F(f"v_lshl_add_u32 {v(t6)}, {v(t4)}, 6, {v(t6)}")
    F(f"s_add_u32 {s(sT1)}, {s(sMX)}, {SCR+4096}")
    F(f"v_add_u32 {v(AD+2)}, {s(sT1)}, {v(t6)}")
    F(f"v_xor_b32 {v(AD+3)}, 16, {v(AD+2)}")
    F(f"v_bfe_u32 {v(t4)}, {v(vL)}, 2, 2")
    F(f"v_lshl_add_u32 {v(t4)}, {v(t5)}, 3, {v(t4)}")
    F(f"v_bfe_u32 {v(t6)}, {v(vL)}, 4, 1"); F(f"v_bfe_u32 {v(t7)}, {v(vL)}, 1, 1")
    F(f"v_lshl_add_u32 {v(t6)}, {v(t6)}, 1, {v(t7)}")
    F(f"v_bfe_u32 {v(t7)}, {v(vL)}, 3, 1")
    F(f"v_xor_b32 {v(t6)}, {v(t6)}, {v(t7)}")
    F(f"v_lshlrev_b32 {v(t6)}, 4, {v(t6)}")
    F(f"v_lshl_add_u32 {v(t6)}, {v(t4)}, 6, {v(t6)}")
    F(f"v_and_b32 {v(t7)}, 1, {v(vL)}")
    F(f"v_lshl_add_u32 {v(t6)}, {v(t7)}, 3, {v(t6)}")
    F(f"v_add_u32 {v(AD+4)}, {s(sT1)}, {v(t6)}")
    F(f"v_xor_b32 {v(AD+5)}, 32, {v(AD+4)}")
    F(f"s_mul_i32 {s(sU3)}, {s(sTT)}, 98304"); F(f"s_lshl_b32 {s(sT0)}, {s(sJ)}, 13"); F(f"s_add_u32 {s(sU3)}, {s(sU3)}, {s(sT0)}")
    F(f"s_add_u32 {s(sU3)}, {s(sU3)}, {WS_ACT}")
    flag_addr(F, sHF, sT0, WS_HF)
    F(f"v_cvt_f32_u32 {v(t6)}, {s(sW)}")
    F(f"v_mul_f32 {v(t6)}, 0x42000000, {v(t6)}")
    F.it = 2
    get_tag(F)
    F(f"s_cmp_ge_u32 {s(sW)}, 2", "s_cselect_b64 exec, -1, 0", f"v_mov_b64 {v(TMP+4,2)}, 0", f"v_mov_b64 {v(TMP+6,2)}, 0", "s_mov_b64 exec, -1")
    F(f"ds_write_b128 {v(AD+8)}, {v(TMP+4,4)}")
    F(f"v_lshlrev_b32 {v(pLRE)}, 16, {v(pLRE)}")
    F(f"v_lshlrev_b32 {v(pLIM)}, 16, {v(pLIM)}")
    F(f"v_lshlrev_b32 {v(pLDT)}, 16, {v(pLDT)}")
    F(f"v_xor_b32 {v(pLIM)}, 0x80000000, {v(pLIM)}")
    F(f"v_mul_f32 {v(t0)}, 0x3fb8aa3b, {v(pLDT)}")
    F(f"v_exp_f32 {v(t0)}, {v(t0)}")
    F(f"v_mul_f32 {v(t5)}, {v(pLRE)}, {v(pLRE)}")
    F(f"v_cvt_pk_bf16_f32 {v(t0)}, {v(t0)}, {v(t0)}")
    F(f"v_and_b32 {v(t0)}, 0xffff0000, {v(t0)}")
    EXA, EXB = TMP, TMP + 1
    F(f"v_mul_f32 {v(EXA)}, {v(t0)}, {v(pLRE)}")
    F(f"v_mul_f32 {v(EXB)}, {v(t0)}, {v(pLIM)}")
    F(f"v_mul_f32 {v(EXA)}, 0x3fb8aa3b, {v(EXA)}")
    F(f"v_mul_f32 {v(EXB)}, 0.15915494, {v(EXB)}")
    def cexp(d, ea, eb):
        F(f"v_exp_f32 {v(t1)}, {v(ea)}")
        F(f"v_rndne_f32 {v(t3)}, {v(eb)}")
        F(f"v_sub_f32 {v(t2)}, {v(eb)}, {v(t3)}")
        F(f"v_cos_f32 {v(t3)}, {v(t2)}")
        F(f"v_sin_f32 {v(t4)}, {v(t2)}")
        F(f"v_mul_f32 {v(d)}, {v(t1)}, {v(t3)}")
        F(f"v_mul_f32 {v(d+1)}, {v(t1)}, {v(t4)}")
    cexp(L1, EXA, EXB)
    F(f"v_fmac_f32 {v(t5)}, {v(pLIM)}, {v(pLIM)}")
    F(f"v_rcp_f32 {v(t0)}, {v(t5)}")
    F(f"v_add_f32 {v(t1)}, -1.0, {v(L1)}")
    F(f"v_add_f32 {v(t0)}, {v(t0)}, {v(t0)}")
    F(f"v_mul_f32 {v(t2)}, {v(t1)}, {v(pLRE)}")
    F(f"v_fmac_f32 {v(t2)}, {v(L1+1)}, {v(pLIM)}")
    F(f"v_mul_f32 {v(t3)}, {v(L1+1)}, {v(pLRE)}")
    F(f"v_fma_f32 {v(t3)}, -{v(t1)}, {v(pLIM)}, {v(t3)}")
    F(f"v_mul_f32 {v(KK)}, {v(t2)}, {v(t0)}")
    F(f"v_mul_f32 {v(KK+1)}, {v(t3)}, {v(t0)}")
    cmul4(F, L2T, L1, L1); cmul4(F, t2, L2T, L2T); cmul4(F, t0, t2, t2); cmul4(F, L16, t0, t0)
    cmul4(F, L32, L16, L16); cmul4(F, t0, L32, L32); cmul4(F, L128, t0, t0)
    F(f"v_mul_f32 {v(EXA)}, {v(EXA)}, {v(t6)}"); F(f"v_mul_f32 {v(EXB)}, {v(EXB)}, {v(t6)}")
    cexp(WSEG, EXA, EXB)
    F(f"v_mul_f32 {v(EXA)}, 0x41800000, {v(EXA)}"); F(f"v_mul_f32 {v(EXB)}, 0x41800000, {v(EXB)}")
    cexp(t6, EXA, EXB)
    cmul4(F, WG_, t6, KK)
    for q in range(1, 4): cmul4(F, WG_ + 2 * q, WG_ + 2 * q - 2, L128)
    for (src, dst) in ((L2T, L2T), (L1, LT), (KK, KT)):
        for e in range(2):
            if src != dst: F(f"v_mov_b32 {v(dst+e)}, {v(src+e)}")
            F(f"v_mov_b32 {v(dst+2+e)}, {v(src+e)}")
    F(f"v_mov_b32 {v(GR+1)}, {v(vTAG)}"); F(f"v_mov_b32 {v(GR+3)}, {v(vTAG)}")
    for dst in (L2T, LT, KT):
        for e in range(2): F(f"v_permlane32_swap_b32 {v(dst+e)}, {v(dst+2+e)}")
    so = [sT0, sT1, sT3, sU0]; ex = [sU1, sU2, sL2E, sL2E + 1]
    for q in range(4):
        F(f"s_lshl2_add_u32 {s(so[q])}, {s(sW)}, {q+1}")
        F(f"s_lshl_b32 {s(ex[q])}, {s(so[q])}, 10")
        F(f"s_sub_u32 {s(ex[q])}, {s(sT2)}, {s(ex[q])}")
        F(f"s_cmp_le_u32 {s(so[q])}, {s(sC)}", f"s_cselect_b32 {s(so[q])}, {s(ex[q])}, {WS_SIZE}", f"s_cselect_b32 {s(ex[q])}, {s(sTAG)}, 0")
    utok = main_loop('ssm', [wo_ops(0, 0), wo_ops(1, 32768)], F)
    stamp(2)
    tok_wo = A.vm
    SA = [TMP, TMP + 8]
    for m in range(1, 8):
        for ct in range(2):
            are, aim = ACC + 32 * ct + 2 * m, ACC + 32 * ct + 16 + 2 * m
            if m == 1: sre, sim = ACC + 32 * ct, ACC + 32 * ct + 16
            else: sre, sim = SA[m % 2] + 4 * ct, SA[m % 2] + 4 * ct + 2
            dre, dim = SA[(m + 1) % 2] + 4 * ct, SA[(m + 1) % 2] + 4 * ct + 2
            l2 = v(L2T + 2 * ct, 2)
            A(f"v_pk_fma_f32 {v(dre,2)}, {v(sre,2)}, {l2}, {v(are,2)} op_sel_hi:[1,0,1]")
            A(f"v_pk_fma_f32 {v(dim,2)}, {v(sim,2)}, {l2}, {v(aim,2)} op_sel_hi:[1,0,1]")
            A(f"v_pk_fma_f32 {v(dre,2)}, {v(sim,2)}, {l2}, {v(dre,2)} op_sel:[0,1,0]")
            A(f"v_pk_fma_f32 {v(dim,2)}, {v(sre,2)}, {l2}, {v(dim,2)} op_sel:[0,1,0] neg_lo:[0,1,0] neg_hi:[0,1,0]")
    S_ = SA[0]
    for e in range(4): A(f"v_permlane32_swap_b32 {v(S_+e)}, {v(S_+4+e)}")
    EA = TMP + 16; EB = TMP + 18
    for sg, d in ((0, EA), (1, EB)):
        b = S_ + 4 * sg
        A(f"v_fma_f32 {v(d)}, {v(L1)}, {v(b)}, {v(b+1)}")
        A(f"v_fma_f32 {v(d+1)}, {v(L1+1)}, {v(b)}, -{v(b+3)}")
        A(f"v_fma_f32 {v(d)}, {v(L1+1)}, {v(b+2)}, {v(d)}")
        A(f"v_fma_f32 {v(d+1)}, -{v(L1)}, {v(b+2)}, {v(d+1)}")
    cmul(EB, EA, L16, EB)
    A(f"ds_write_b64 {v(AD+1)}, {v(EB,2)}")
    A.wait_all(vm=False)
    A("s_barrier")
    EW = BUF
    tk = [A(f"ds_read_b64 {v(EW+2*q,2)}, {v(AD)} offset:{q*512}") for q in range(4)]
    PF = BUF + 8
    A(f"s_cmp_eq_u32 {s(sW)}, 0")
    A.wait(lg=tk[1]); cmul(PF, EW, L32, EW + 2)
    A.wait(lg=tk[2]); cmul(PF + 2, PF, L32, EW + 4)
    A.wait(lg=tk[3]); cmul(PF + 4, PF + 2, L32, EW + 6)
    A("s_cbranch_scc0 L_nopub")
    A(f"v_mov_b32 {v(GR)}, {v(PF+4)}"); A(f"v_mov_b32 {v(GR+2)}, {v(PF+5)}")
    snap = A.snapshot()
    A(f"buffer_store_dwordx4 {v(GR,4)}, {v(vL16)}, {s(R_WS,4)}, {s(sT2)} offen sc1")
    A.restore(snap)
    A.label("L_nopub")
    stamp(3)
    st_ = Stream(c_ops(2) + c_ops(3))
    PW = BUF + 14; EK = BUF + 16
    ops = [f"v_mov_b32 {v(t0)}, 0", f"v_mov_b32 {v(t1)}, 0"]
    for q, src in ((1, EW), (2, PF), (3, PF + 2)):
        ops += [f"s_cmp_eq_u32 {s(sW)}, {q}", "s_cselect_b64 exec, -1, 0", f"v_mov_b64 {v(t0,2)}, {v(src,2)}"]
    ops += ["s_mov_b64 exec, -1"]
    run(ops)
    cmul(PW, t0, KK); cmul(EK, EA, KK)
    U = TMP
    def upair(ct, k): return U + 32 * ct + 2 * k
    ops = []
    for ct in range(2):
        for k in range(16):
            re, im = ACC + 32 * ct + (k & ~1), ACC + 32 * ct + 16 + (k & ~1)
            b = k & 1
            ops.append(f"v_pk_mul_f32 {v(upair(ct,k),2)}, {v(re,2)}, {v(KT+2*ct,2)} op_sel:[{b},0] op_sel_hi:[{b},1]")
            ops.append(f"v_pk_fma_f32 {v(upair(ct,k),2)}, {v(im,2)}, {v(KT+2*ct,2)}, {v(upair(ct,k),2)} op_sel:[{b},1,0] op_sel_hi:[{b},0,1] neg_hi:[0,1,0]")
    sprinkle(ops, st_, 8)
    A.wait(vm=tok_wo)
    A("s_barrier")
    sprinkle(wo_reads(0, RW, 0) + wo_reads(1, RW, 32768), st_, 8)
    st_.rest()
    LB = ACC
    stamp(23)
    def ld():
        for q in range(4): A(f"buffer_load_dwordx4 {v(LB+4*q,4)}, {v(vL16)}, {s(R_WS,4)}, {s(so[q])} offen sc1")
    def ck():
        A(f"v_xor_b32 {v(t0)}, {s(ex[0])}, {v(LB+1)}")
        for r in (3, 5, 7, 9, 11, 13, 15):
            A(f"v_bitop3_b32 {v(t0)}, {v(t0)}, {v(LB+r)}, {s(ex[r//4])} bitop3:0xf6")
        A(f"v_cmp_ne_u32 vcc, 0, {v(t0)}")
    spin("L_pagg", ld, ck)
    stamp(4)
    for q in range(4):
        if q == 0: A(f"v_pk_mul_f32 {v(t0,2)}, {v(LB,2)}, {v(WG_,2)} op_sel_hi:[0,1]")
        else: A(f"v_pk_fma_f32 {v(t0,2)}, {v(LB+4*q,2)}, {v(WG_+2*q,2)}, {v(t0,2)} op_sel_hi:[0,1,1]")
        A(f"v_pk_fma_f32 {v(t0,2)}, {v(LB+4*q+2,2)}, {v(WG_+2*q,2)}, {v(t0,2)} op_sel:[0,1,0] op_sel_hi:[0,0,1] neg_lo:[0,1,0]")
    A(f"ds_write_b64 {v(AD+1)}, {v(t0,2)} offset:2048")
    A.wait_all(vm=False)
    A("s_barrier")
    stamp(24)
    for q in range(4): tok = A(f"ds_read_b64 {v(EW+2*q,2)}, {v(AD)} offset:{2048+q*512}")
    A.wait(lg=tok)
    A(f"v_pk_add_f32 {v(EW,2)}, {v(EW,2)}, {v(EW+2,2)}")
    A(f"v_pk_add_f32 {v(EW+4,2)}, {v(EW+4,2)}, {v(EW+6,2)}")
    A(f"v_pk_add_f32 {v(EW,2)}, {v(EW,2)}, {v(EW+4,2)}")
    cmul(t0, EW, WSEG, PW)
    cmul(t2, t0, L16, EK)
    A(f"v_permlane32_swap_b32 {v(t0)}, {v(t2)}")
    A(f"v_permlane32_swap_b32 {v(t1)}, {v(t3)}")
    HP = ACC; HT = ACC + 32
    rtok = []
    def h_reads(ct):
        for f in range(4 * ct, 4 * ct + 4):
            A(f"ds_read_b64_tr_b16 {v(HT+4*f,2)}, {v(AD+4)} offset:{(f%4)*1024}")
            rtok.append(A(f"ds_read_b64_tr_b16 {v(HT+4*f+2,2)}, {v(AD+5)} offset:{(f%4)*1024+256}"))
    def h_store(f):
        A.wait(lg=rtok[f])
        if f == 4: A(f"s_add_u32 {s(sU3)}, {s(sU3)}, 4096")
        return A(f"buffer_store_dwordx4 {v(HT+4*f,4)}, {v(vL16)}, {s(R_WS,4)}, {s(sU3)} offen offset:{(f%4)*1024} sc1")
    for ct in range(2):
        for k in range(16):
            src = t0 + 2 * ct if k == 0 else upair(ct, k - 1)
            cmul(upair(ct, k), src, LT + 2 * ct, upair(ct, k))
            if k & 1:
                for cp in range(2):
                    A(f"v_cvt_pk_bf16_f32 {v(HP+8*(2*ct+cp)+k//2)}, {v(upair(ct,k-1)+cp)}, {v(upair(ct,k)+cp)}")
            if k in (7, 15):
                for m in (2 * ct, 2 * ct + 1):
                    A(f"ds_write_b128 {v(AD+2+k//8)}, {v(HP+8*m+4*(k//8),4)} offset:{(m%2)*2048}")
            if ct == 1 and k == 3: h_reads(0)
            if ct == 1 and k in (9, 11, 13, 15): h_store((k - 9) // 2)
    stamp(25)
    h_reads(1)
    for f in range(4, 8): tok_h = h_store(f)
    stamp(5)
    rest = Stream(c_ops(0) + c_ops(1))
    rest.dma(opt.get('sdrain', 4))
    p2_setup()
    A.wait(vm=tok_h)
    flag_store(sHF)
    stamp(6)
    rest.rest()
    stamp(26)
    A(f"s_mov_b32 {s(sFM)}, 0")
    A(f"s_cmp_eq_u32 {s(sJ)}, 0")
    A("s_cbranch_scc0 L_phase2")
    GD = ACC
    A(f"s_lshl_b32 {s(sT0)}, {s(sK0)}, 7"); A(f"s_add_u32 {s(sT0)}, {s(sT0)}, {GWS}")
    A(f"v_lshrrev_b32 {v(t0)}, 5, {v(vL)}")
    A(f"v_lshl_add_u32 {v(AD+9)}, {v(t0)}, 4, {s(sT0)}")
    A(f"v_lshrrev_b32 {v(t0)}, 4, {v(vL)}"); A(f"v_xor_b32 {v(t0)}, {v(t0)}, {v(vL)}"); A(f"v_and_b32 {v(t0)}, 1, {v(t0)}")
    A(f"v_lshl_add_u32 {v(AD+9)}, {v(t0)}, 11, {v(AD+9)}")
    toks = []
    for st in range(8): toks.append(A(f"ds_read_b128 {v(BUF+4*st,4)}, {v(AD+9)} offset:{st*32}"))
    for st in range(32):
        A.wait(lg=toks[st])
        A(f"v_mfma_f32_16x16x32_bf16 {v(GD+8,4)}, {v(BUF+4*(st%8),4)}, {a(4*st,4)}, {'0' if st == 0 else v(GD+8,4)}")
        if st + 8 < 32: toks.append(A(f"ds_read_b128 {v(BUF+4*(st%8),4)}, {v(AD+9)} offset:{(st+8)*32}"))
    A(f"v_bfe_u32 {v(t0)}, {v(vL)}, 2, 1"); A(f"v_bfe_u32 {v(t1)}, {v(vL)}, 3, 2"); A(f"v_and_b32 {v(t2)}, 12, {v(vL4)}")
    A(f"v_lshl_add_u32 {v(t2)}, {v(t1)}, 4, {v(t2)}")
    A(f"v_lshl_add_u32 {v(t2)}, {v(t0)}, 6, {v(t2)}")
    A(f"s_lshl_b32 {s(sT0)}, {s(sTT)}, 7"); A(f"s_add_u32 {s(sT0)}, {s(sT0)}, {WS_G}")
    A(f"s_lshl_b32 {s(sT2)}, {s(sTT)}, 9"); A(f"s_add_u32 {s(sT2)}, {s(sT2)}, {WS_OF+16}")
    A(f"s_mov_b32 {s(sFM)}, 3")
    sel_exec(0xffff0000, 0xffff0000)
    A(f"v_mov_b32 {v(GD+8)}, {v(GD+9)}")
    A("s_mov_b64 exec, -1")
    A(f"v_mul_f32 {v(t0)}, 0xbfb8aa3b, {v(GD+8)}")
    A(f"v_exp_f32 {v(t0)}, {v(t0)}")
    A(f"v_add_f32 {v(t0)}, 1.0, {v(t0)}")
    A(f"v_rcp_f32 {v(t0)}, {v(t0)}")
    A("s_nop 0")
    A(f"buffer_store_dword {v(t0)}, {v(t2)}, {s(R_WS,4)}, {s(sT0)} offen sc1")
    A("s_branch L_phase2")

    A.restore(snap0)
    A.label("L_attn")
    epoch_load()
    F = Fill()
    CSW = opt.get('csw', 2)
    if CSW:
        for q in range(8): F(f"v_xor_b32 {v(RA+q)}, 0x10000, {v(RA+q)}")
    NL = AD + 10
    ONES = TMP + 48
    LA = TMP + 56
    sOA, sOF = sT0, sT1
    F(f"s_lshl2_add_u32 {s(sT2)}, {s(sJ)}, {s(sW)}")
    F(f"s_lshl4_add_u32 {s(sT3)}, {s(sT2)}, {s(sC)}")
    F(f"s_lshl_b32 {s(sU1)}, {s(sT3)}, 10"); F(f"s_add_u32 {s(sU1)}, {s(sU1)}, {WS_KVP}")
    F(f"s_lshl_b32 {s(sU2)}, {s(sT3)}, 6"); F(f"s_add_u32 {s(sU2)}, {s(sU2)}, {WS_ZP}")
    F(f"v_mov_b64 {v(TMP,2)}, -1"); F(f"v_mov_b64 {v(TMP+2,2)}, -1")
    F(f"s_mov_b32 {s(sL2E)}, 0x3fb8aa3b"); F(f"s_mov_b32 {s(sL2E+1)}, 0x3fb8aa3b")
    F(f"s_mov_b32 {s(sEPS)}, 0x358637bd"); F(f"s_mov_b32 {s(sEPS+1)}, 0x358637bd")
    F(f"v_mov_b32 {v(NL)}, 0xbfb8aa3b"); F(f"v_mov_b32 {v(NL+1)}, 0xbfb8aa3b")
    for q in range(4): F(f"v_mov_b32 {v(ONES+q)}, 0x3f803f80")
    F(f"s_lshl_b32 {s(sU0)}, {s(sT2)}, 11"); F(f"s_add_u32 {s(sU0)}, {s(sU0)}, {WS_KVF}")
    F(f"s_lshl_b32 {s(sT3)}, {s(sC)}, 7"); F(f"s_add_u32 {s(sT3)}, {s(sT3)}, {s(sU0)}")
    F(f"v_lshrrev_b32 {v(AD+8)}, 2, {v(vL)}"); F(f"v_lshlrev_b32 {v(AD+8)}, 7, {v(AD+8)}")
    F(f"s_lshl_b32 {s(sT0)}, {s(sW)}, 10"); F(f"s_add_u32 {s(sT0)}, {s(sT0)}, {SCR}")
    F(f"v_add_u32 {v(AD)}, {s(sT0)}, {v(vL16)}")
    F(f"s_add_u32 {s(sT0)}, {s(sMX)}, {SCR}")
    F(f"v_add_u32 {v(AD+1)}, {s(sT0)}, {v(vL16)}")
    F(f"s_lshl_b32 {s(sT0)}, {s(sW)}, 8"); F(f"s_add_u32 {s(sT0)}, {s(sT0)}, {SCR+16384}")
    F(f"v_add_u32 {v(AD+2)}, {s(sT0)}, {v(vL4)}")
    F(f"s_lshl_b32 {s(sT0)}, {s(sW)}, 6"); F(f"s_add_u32 {s(sT0)}, {s(sT0)}, {SCR+16384}")
    F(f"v_and_b32 {v(AD+4)}, 60, {v(vL4)}")
    F(f"v_add_u32 {v(AD+3)}, {s(sT0)}, {v(AD+4)}")
    F(f"v_add_u32 {v(AD+6)}, {SCR}, {v(RW)}"); F(f"v_add_u32 {v(AD+7)}, {SCR}, {v(RW+1)}")
    KVS, ZS = SCR + 20480, SCR + 22528
    F(f"s_lshr_b32 {s(sT0)}, {s(sW)}, 1"); F(f"s_lshl_b32 {s(sT0)}, {s(sT0)}, 10")
    F(f"s_lshl3_add_u32 {s(sT1)}, {s(sKH)}, {s(sT0)}"); F(f"s_add_u32 {s(sT1)}, {s(sT1)}, {KVS}")
    F(f"v_add_u32 {v(LA)}, {s(sT1)}, {v(vL16)}")
    F(f"s_lshl_b32 {s(sT1)}, {s(sKH)}, 5"); F(f"s_add_u32 {s(sT1)}, {s(sT1)}, {s(sT0)}"); F(f"s_add_u32 {s(sT1)}, {s(sT1)}, {ZS}")
    F(f"v_bfe_u32 {v(t4)}, {v(vL)}, 2, 1"); F(f"v_bfe_u32 {v(t5)}, {v(vL)}, 3, 1"); F(f"v_and_b32 {v(t6)}, 3, {v(vL)}")
    F(f"v_lshl_add_u32 {v(t6)}, {v(t6)}, 1, {s(sT1)}")
    F(f"v_lshl_add_u32 {v(t6)}, {v(t5)}, 3, {v(t6)}")
    F(f"v_lshl_add_u32 {v(LA+1)}, {v(t4)}, 4, {v(t6)}")
    F(f"v_add_u32 {v(LA+2)}, {KVS}, {v(vL16)}")
    F(f"v_mov_b32 {v(LA+3)}, {v(LA+2)}")
    F(f"v_lshrrev_b32 {v(t5)}, 5, {v(vL)}")
    F(f"v_lshlrev_b32 {v(t5)}, 4, {v(t5)}")
    F(lambda: sel_exec(0xffff0000, 0xffff0000), f"v_add_u32 {v(LA+2)}, {ZS}, {v(t5)}", "s_mov_b64 exec, -1")
    F(lambda: sel_exec(0x0000ffff, 0x0000ffff), f"v_add_u32 {v(LA+3)}, {ZS+32}, {v(t5)}", "s_mov_b64 exec, -1")
    F(f"v_bfe_u32 {v(t5)}, {v(vL)}, 3, 2"); F(f"v_and_b32 {v(t6)}, 35, {v(vL)}")
    F(f"v_lshl_add_u32 {v(t6)}, {v(t5)}, 2, {v(t6)}")
    F(f"v_lshl_add_u32 {v(t6)}, {v(t4)}, 4, {v(t6)}")
    F(f"v_lshlrev_b32 {v(LA+4)}, 4, {v(t6)}")
    F(f"s_mul_i32 {s(sOA)}, {s(sTT)}, 98304"); F(f"s_lshl_b32 {s(sT1)}, {s(sJ)}, 12"); F(f"s_add_u32 {s(sOA)}, {s(sOA)}, {s(sT1)}")
    F(f"s_add_u32 {s(sOA)}, {s(sOA)}, {WS_ACT+65536}")
    flag_addr(F, sOF, sU3, WS_OF)
    F.it = opt.get('clrit', 2)
    tok_clr = []
    F(f"buffer_store_dwordx4 {v(TMP,4)}, {v(vL16)}, {s(R_WS,4)}, {s(sU1)} offen sc1")
    F("s_mov_b64 exec, 0xffff", lambda: tok_clr.append(A(f"buffer_store_dword {v(TMP)}, {v(vL4)}, {s(R_WS,4)}, {s(sU2)} offen sc1")), "s_mov_b64 exec, -1")
    get_tag(F)
    F.it += 2
    F(lambda: A.wait(vm=tok_clr[0]), lambda: flag_store(sT3))
    utok = main_loop('attn', [wq_ops(0), wq_ops(1)], F)
    tokF = [A(f"buffer_load_dword {v(vF)}, {v(AD+8)}, {s(R_WS,4)}, {s(sU0)} offen sc1")]
    stamp(2)
    tok_wq = utok[9]
    A("s_barrier")
    def phi_ops(src, dst):
        L = []
        def fin(sr, pp, d):
            L.append(f"v_max_f32 {v(pp)}, {v(pp)}, {v(sr)}")
            L.append(f"v_max_f32 {v(pp+1)}, {v(pp+1)}, {v(sr+1)}")
            L.append(f"v_pk_add_f32 {v(pp,2)}, {v(pp,2)}, {s(sEPS,2)}")
            L.append(f"v_cvt_pk_bf16_f32 {v(d)}, {v(pp)}, {v(pp+1)}")
        for k in range(0, 16, 2):
            tt = t0 + 2 * ((k // 2) % 4)
            L.append(f"v_pk_fma_f32 {v(tt,2)}, {v(src+k,2)}, {s(sL2E,2)}, {v(NL,2)}")
            L.append(f"v_exp_f32 {v(tt)}, {v(tt)} clamp")
            L.append(f"v_exp_f32 {v(tt+1)}, {v(tt+1)} clamp")
            if k >= 2: fin(src + k - 2, t0 + 2 * ((k // 2 - 1) % 4), dst + k // 2 - 1)
        fin(src + 14, t0 + 2 * (7 % 4), dst + 7)
        return L
    PK, PV = TMP, TMP + 16
    ZD = TM2
    st_ = Stream(c_ops(2, CSW))
    st_.salu()
    run(phi_ops(ACC, PK) + phi_ops(ACC + 16, PK + 8))
    stamp(40)
    for tl in range(2):
        for f in range(2):
            A(f"v_mfma_f32_32x32x16_bf16 {v(ZD+16*tl,16)}, {v(ONES,4)}, {v(PK+8*tl+4*f,4)}, {'0' if f == 0 else v(ZD+16*tl,16)}")
            for k in range(4 * f, 4 * f + 4): A(f"v_cvt_pk_bf16_f32 {v(PV+8*tl+k)}, {v(ACC+32+16*tl+2*k)}, {v(ACC+32+16*tl+2*k+1)}")
            st_.dma()
    for tl in range(2):
        for f in range(2):
            A(f"v_mfma_f32_32x32x16_bf16 {v(ACC+16*tl,16)}, {v(PK+8*tl+4*f,4)}, {v(PV+8*tl+4*f,4)}, {'0' if f == 0 else v(ACC+16*tl,16)}")
            st_.dma()
    st_.rest()
    stamp(41)
    sel_exec(0, 0xffffffff)
    A(f"v_mov_b32 {v(ZD)}, {v(ZD+16)}")
    A("s_mov_b64 exec, -1")
    A(f"ds_write_b32 {v(AD+2)}, {v(ZD)}")
    for tl in range(2):
        sel_exec(0xffff0000, 0xffff0000)
        for q in range(4): A(f"v_mov_b64 {v(ACC+16*tl+2*q,2)}, {v(ACC+16*tl+8+2*q,2)}")
        A("s_mov_b64 exec, -1")
        for jj in range(2): A(f"ds_write_b128 {v(AD)}, {v(ACC+16*tl+4*jj,4)} offset:{(2*tl+jj)*4096}")
    stamp(42)
    A.wait(vm=tokF[0])
    stamp(43)
    A(f"v_cmp_ne_u32 vcc, {v(vF)}, {v(vTAG)}")
    A.wait_all(vm=False)
    A("s_barrier")
    stamp(44)
    for q in range(4): tk = A(f"ds_read_b128 {v(ACC+4*q,4)}, {v(AD+1)} offset:{q*1024}")
    for q in range(4): tz = A(f"ds_read_b32 {v(ACC+16+q)}, {v(AD+3)} offset:{q*256}")
    QA = TM2
    def qreads(ks):
        b = BUF + 8 * (ks % 4)
        L = []
        for tl in range(2):
            base = (ks // 4) * 8192 + (ks % 4) * 2048
            L.append(f"ds_read_b64_tr_b16 {v(b+4*tl,2)}, {v(RT+tl)} offset:{base}")
            L.append(f"ds_read_b64_tr_b16 {v(b+4*tl+2,2)}, {v(RT+tl)} offset:{base+512}")
        return L
    toks = [run(qreads(0))]
    A.wait(lg=tk)
    for e in (0, 2):
        A(f"v_pk_add_f32 {v(ACC+e,2)}, {v(ACC+e,2)}, {v(ACC+4+e,2)}")
        A(f"v_pk_add_f32 {v(ACC+8+e,2)}, {v(ACC+8+e,2)}, {v(ACC+12+e,2)}")
        A(f"v_pk_add_f32 {v(ACC+e,2)}, {v(ACC+e,2)}, {v(ACC+8+e,2)}")
    for e in range(4): A(f"v_min_u32 {v(ACC+e)}, -2, {v(ACC+e)}")
    A(f"buffer_store_dwordx4 {v(ACC,4)}, {v(vL16)}, {s(R_WS,4)}, {s(sU1)} offen sc1")
    A.wait(lg=tz)
    A(f"v_pk_add_f32 {v(ACC+16,2)}, {v(ACC+16,2)}, {v(ACC+18,2)}")
    A(f"v_add_f32 {v(ACC+16)}, {v(ACC+16)}, {v(ACC+17)}")
    A(f"v_min_u32 {v(ACC+16)}, -2, {v(ACC+16)}")
    A("s_mov_b64 exec, 0xffff")
    A(f"buffer_store_dword {v(ACC+16)}, {v(vL4)}, {s(R_WS,4)}, {s(sU2)} offen sc1")
    A("s_mov_b64 exec, -1")
    stamp(3)
    A("s_cbranch_vccz L_clr_x")
    snap = A.snapshot()
    def ld(): A(f"buffer_load_dword {v(vF)}, {v(AD+8)}, {s(R_WS,4)}, {s(sU0)} offen sc1")
    def ck(): A(f"v_cmp_ne_u32 vcc, {v(vF)}, {v(vTAG)}")
    spin("L_clr", ld, ck)
    A.restore(snap)
    toks.append(run(qreads(1)))
    A(f"s_lshl_b32 {s(sU1)}, {s(sT2)}, 14"); A(f"s_add_u32 {s(sU1)}, {s(sU1)}, {WS_KVP}")
    A(f"s_lshl_b32 {s(sU2)}, {s(sT2)}, 10"); A(f"s_add_u32 {s(sU2)}, {s(sU2)}, {WS_ZP}")
    ZL = TMP + 52
    def kv_loads():
        L = [f"buffer_load_dword {v(ZL+q)}, {v(vL4)}, {s(R_WS,4)}, {s(sU2)} offen offset:{q*256} sc1" for q in range(4)]
        for q in range(16):
            if q % 4 == 0: L.append(f"s_add_u32 {s(sD1)}, {s(sU1)}, {q*1024}")
            L.append(f"buffer_load_dwordx4 {v(ACC+4*q,4)}, {v(vL16)}, {s(R_WS,4)}, {s(sD1)} offen offset:{(q%4)*1024} sc1")
        return L
    KVAT = opt.get('kvat', 24)
    side = None; wrd = None
    for ks in range(32):
        if ks == 0:
            A("s_barrier")
            side = Stream(wo_ops(0, SCR))
        if ks == 8:
            side.rest(); tok_wo0 = A.vm
            side = Stream(c_ops(3, CSW))
        if ks == 16:
            A.wait(vm=tok_wo0)
            A("s_barrier")
            stamp(23)
            side = Stream(wo_ops(1, 0)); wrd = Stream(wo_reads(0, AD + 6, 0))
        if ks == KVAT:
            side.rest(); tok_wo1 = A.vm
            side = Stream(kv_loads())
        A.wait(lg=toks[ks])
        rd = qreads(ks + 2) if ks + 2 < 32 else []
        b = BUF + 8 * (ks % 4)
        for tl in range(2):
            A(f"v_mfma_f32_32x32x16_bf16 {v(QA+16*tl,16)}, {v(b+4*tl,4)}, {a(4*ks,4)}, {'1.0' if ks == 0 else v(QA+16*tl,16)}")
            if tl == 0:
                run(rd); toks.append(A.lg)
            else:
                if wrd: wrd.some(2)
                if side: side.dma()
        if ks == 15: side.rest()
    wrd.rest()
    stamp(24)
    PQ = TMP
    sprinkle(phi_ops(QA, PQ) + phi_ops(QA + 16, PQ + 8), side, opt.get('kvevery', 9))
    side.rest()
    tok_kv = A.vm
    A.wait(vm=tok_wo1); A.wait_all(vm=False)
    A("s_barrier")
    stamp(25)
    run(wo_reads(1, RW, 0))
    A(f"s_mov_b32 {s(sCNT)}, {SPIN}")
    stamp(4)
    def kv_sum(side, last):
        A.wait(vm=last - 15)
        A(f"v_max3_u32 {v(t2)}, {v(ZL)}, {v(ZL+1)}, {v(ZL+2)}")
        A(f"v_max3_u32 {v(t2)}, {v(t2)}, {v(ZL+3)}, {v(ACC)}")
        A(f"v_pk_add_f32 {v(ZL,2)}, {v(ZL,2)}, {v(ZL+2,2)}")
        A(f"v_add_f32 {v(t0)}, {v(ZL)}, {v(ZL+1)}")
        A(f"v_mov_b32 {v(t1)}, {v(t0)}")
        A(f"v_max3_u32 {v(t2)}, {v(t2)}, {v(ACC+1)}, {v(ACC+2)}")
        A(f"v_max_u32 {v(t2)}, {v(t2)}, {v(ACC+3)}")
        A(f"v_permlane32_swap_b32 {v(t0)}, {v(t1)}")
        A(f"v_add_f32 {v(t0)}, {v(t0)}, {v(t1)}")
        A(f"v_mov_b32 {v(t1)}, {v(t0)}")
        for q in range(1, 16):
            A.wait(vm=last - 15 + q)
            for e in (0, 2): A(f"v_max3_u32 {v(t2)}, {v(t2)}, {v(ACC+4*q+e)}, {v(ACC+4*q+e+1)}")
            if q == 15: A(f"v_cmp_eq_u32 vcc, -1, {v(t2)}")
            for e in (0, 2): A(f"v_pk_add_f32 {v(ACC+e,2)}, {v(ACC+e,2)}, {v(ACC+4*q+e,2)}")
            if q == 1:
                A(f"v_permlane16_swap_b32 {v(t0)}, {v(t1)}")
                A(f"v_add_f32 {v(t0)}, {v(t0)}, {v(t1)}")
                A(f"v_cvt_pk_bf16_f32 {v(t0)}, {v(t0)}, {v(t0)}")
            if side and q % 2 == 0: side.dma()
    side = Stream(c_ops(1, CSW))
    side.dma()
    kv_sum(side, tok_kv)
    assert not side.ops
    A("s_cbranch_vccnz L_kvretry")
    snap_kv = A.snapshot()
    A.label("L_kvok")
    stamp(5)
    A(f"ds_write_b16 {v(LA+1)}, {v(t0)}")
    A(f"v_cvt_pk_bf16_f32 {v(t2)}, {v(ACC)}, {v(ACC+1)}")
    A(f"v_cvt_pk_bf16_f32 {v(t3)}, {v(ACC+2)}, {v(ACC+3)}")
    A(f"ds_write_b64 {v(LA)}, {v(t2,2)}")
    A.wait_all(vm=False)
    A("s_barrier")
    AF = TMP + 16
    toks = []
    for hd4 in range(4): toks.append(A(f"ds_read_b128 {v(AF+4*hd4,4)}, {v(LA+2+(hd4&1))} offset:{(hd4>>1)*1024}"))
    side = Stream(c_ops(0, CSW))
    for hd4 in range(4):
        A.wait(lg=toks[hd4])
        A(f"v_mfma_f32_32x32x16_bf16 {v(ACC+16*hd4,16)}, {v(AF+4*hd4,4)}, {v(PQ+4*hd4,4)}, 0")
        side.dma()
    OP = TMP + 32
    for hd4 in range(4):
        hd = hd4 & 1
        nb_, db_ = ACC + 16 * hd4 + 8 * hd, ACC + 16 * hd4 + 8 * (1 - hd)
        A(f"v_add_f32 {v(db_)}, {s(sEPS)}, {v(db_)}")
        A(f"v_rcp_f32 {v(db_)}, {v(db_)}")
        for e in range(0, 8, 2): A(f"v_pk_mul_f32 {v(nb_+e,2)}, {v(nb_+e,2)}, {v(db_,2)} op_sel_hi:[1,0]")
        for e in range(0, 8, 2): A(f"v_cvt_pk_bf16_f32 {v(OP+4*hd4+e//2)}, {v(nb_+e)}, {v(nb_+e+1)}")
        tok_o = A(f"buffer_store_dwordx4 {v(OP+4*hd4,4)}, {v(LA+4)}, {s(R_WS,4)}, {s(sOA)} offen offset:{hd4*1024} sc1")
    stamp(26)
    side.rest()
    A(f"s_mov_b32 {s(sT2)}, {s(sOF)}"); A(f"s_mov_b32 {s(sFM)}, 1")
    p2_setup()
    stamp(6)

    A.label("L_phase2")
    A.hist = []
    stamp(7)
    def ld(): A(f"buffer_load_dword {v(vF)}, {v(AD+3)}, {s(R_WS,4)}, {s(sT3)} offen sc1")
    def ck(): A(f"v_cmp_ne_u32 vcc, {v(vF)}, {v(vTAG)}")
    ld()
    A(f"v_lshlrev_b32 {v(t3)}, 8, {v(vL)}")
    A(f"s_cmp_eq_u32 {s(sFM)}, 0")
    A.wait_all(vm=True, lg=True, force=True)
    A("s_cbranch_scc1 L_noflag")
    A(f"s_mov_b32 exec_lo, {s(sFM)}"); A("s_mov_b32 exec_hi, 0")
    A(f"buffer_store_dword {v(vTAG)}, {v(t3)}, {s(R_WS,4)}, {s(sT2)} offen sc1")
    A("s_mov_b64 exec, -1")
    A.vm -= 1
    A.label("L_noflag")
    ck()
    A("s_barrier")
    A("s_cbranch_vccz L_ph_x")
    spin("L_ph", ld, ck)
    stamp(8)
    AHEAD = opt.get('ahead', 10)
    GG = TM2
    def load_ops(n):
        o = []
        if n < 32:
            if n % 4 == 0 and n: o.append(f"s_add_u32 {s(sU0)}, {s(sU0)}, 4096")
            o.append(f"buffer_load_dwordx4 {a(4*n,4)}, {v(vL16)}, {s(R_WS,4)}, {s(sU0)} offen offset:{(n%4)*1024} sc1")
        else:
            k = n - 32
            if k == 0: o.append(f"buffer_load_dword {v(vE)}, {v(AD+7)}, {s(R_WS,4)}, {s(sU2)} offen sc1")
            if k % 4 == 0 and k: o.append(f"s_add_u32 {s(sU1)}, {s(sU1)}, 4096")
            o.append(f"buffer_load_dwordx4 {v(TMP+4*k,4)}, {v(vL16)}, {s(R_WS,4)}, {s(sU1)} offen offset:{(k%4)*1024} sc1")
        return o
    def creads(ks):
        jb, m, st = ks >> 3, (ks >> 1) & 3, ks & 1
        ct, cp = m >> 1, m & 1
        b = BUF + 8 * (ks % 4)
        off = jb * 16384 + cp * 8192
        return [f"ds_read_b128 {v(b,4)}, {v(RA+2*ct+st)} offset:{off}", f"ds_read_b128 {v(b+4,4)}, {v(RB+2*ct+st)} offset:{off}"]
    ltok = [run(load_ops(k)) for k in range(4)]
    A(f"v_lshlrev_b64 {v(t4,2)}, {v(t6)}, {v(t4,2)}")
    for q in range(4):
        m = 0xf << (16 * (q >> 1) + 4 * (q & 1))
        sel_exec(m, m << 8)
        A(f"v_mov_b64 {v(DF+2*q,2)}, {v(t4,2)}")
        A("s_mov_b64 exec, -1")
        ltok.append(run(load_ops(4 + q)))
    ctok = [run(creads(k)) for k in range(3)]
    for q in range(2): A(f"v_mfma_f32_32x32x16_bf16 {v(ACC,16)}, {v(XF+4*q,4)}, {v(DF+4*q,4)}, {'0' if q == 0 else v(ACC,16)}")
    ltok += [run(load_ops(k)) for k in range(8, AHEAD)]
    KCHK = 32 - AHEAD
    def step2a(ks, more):
        A.wait(vm=ltok[ks], lg=ctok[ks])
        stamp(100 + ks)
        b = BUF + 8 * (ks % 4)
        A(f"v_mfma_f32_32x32x16_bf16 {v(ACC,16)}, {a(4*ks,4)}, {v(b,4)}, {v(ACC,16)}")
        if more: ltok.append(run(load_ops(ks + AHEAD)))
        A(f"v_mfma_f32_32x32x16_bf16 {v(ACC+16,16)}, {a(4*ks,4)}, {v(b+4,4)}, {'0' if ks == 0 else v(ACC+16,16)}")
        if ks + 3 < 32: ctok.append(run(creads(ks + 3)))
    for ks in range(KCHK):
        step2a(ks, True)
        if ks + AHEAD == KCHK - 1: tokO = A(f"buffer_load_dword {v(vF)}, {v(AD+6)}, {s(R_WS,4)}, {s(sU3)} offen sc1")
    A.wait(vm=tokO)
    A(f"v_cmp_ne_u32 vcc, {v(vF)}, {v(vTAG)}")
    A("s_nop 0")
    A("s_cbranch_vccnz L_slow")
    snap = A.snapshot(); ctok_s = list(ctok); ltok_s = list(ltok)
    for ks in range(KCHK, 32): step2a(ks, True)
    stamp(9); stamp(10)
    A.label("L_2b")
    gops = []
    for tl in (1, 0):
        for k in range(16): gops.append(f"v_mul_f32 {v(ACC+16*tl+k)}, {v(ACC+16*tl+k)}, {v(GG+k)}")
    for k in range(16): gops.append(f"v_sub_f32 {v(GG+k)}, 1.0, {v(GG+k)}")
    for ks in range(16):
        A.wait(vm=ltok[32 + ks])
        stamp(140 + ks)
        for tl in (1, 0):
            A(f"v_mfma_f32_32x32x16_bf16 {v(ACC+32+16*tl,16)}, {v(TMP+4*ks,4)}, {a(128+8*ks+4*tl,4)}, {'0' if ks == 0 else v(ACC+32+16*tl,16)}")
            if tl == 1 and 32 + ks + AHEAD < 48: ltok.append(run(load_ops(32 + ks + AHEAD)))
            if ks == 0 and tl == 0: A(f"ds_write_b32 {v(AD)}, {v(vE)}")
            if ks in (1, 2) and tl == 0:
                for j in (2 * ks - 2, 2 * ks - 1): tg = A(f"ds_read_b128 {v(GG+4*j,4)}, {v(AD+2)} offset:{j*32}")
            if ks >= 6:
                A.wait(lg=tg)
                run(gops[:3]); gops = gops[3:]
    assert not gops
    stamp(11)
    A(f"s_lshl_b32 {s(sT0)}, {s(sTT2)}, 16")
    for k in range(0, 16, 2):
        A(f"v_pk_fma_f32 {v(ACC+16+k,2)}, {v(ACC+48+k,2)}, {v(GG+k,2)}, {v(ACC+16+k,2)}")
        if k % 4 == 2: A(f"ds_write_b128 {v(AD+4)}, {v(ACC+16+k-2,4)} offset:{(k//4)*1024}")
    for k in range(0, 16, 2): A(f"v_pk_fma_f32 {v(ACC+k,2)}, {v(ACC+32+k,2)}, {v(GG+k,2)}, {v(ACC+k,2)}")
    A.wait_all(vm=False)
    A("s_barrier")
    toks = [A(f"ds_read_b128 {v(ACC+32+4*j,4)}, {v(AD+5)} offset:{j*1024}") for j in range(4)]
    of = {0: "", 1: " nt", 2: " sc1", 3: " sc0 sc1"}[opt.get('outfl', 0)]
    for j in range(4):
        A.wait(lg=toks[j])
        for e in (0, 2): A(f"v_pk_add_f32 {v(ACC+4*j+e,2)}, {v(ACC+4*j+e,2)}, {v(ACC+32+4*j+e,2)}")
        A(f"s_add_u32 {s(sT1)}, {s(sT0)}, 4096")
        for i in range(4):
            A(f"buffer_store_dword {v(ACC+4*j+i)}, {v(AD+1)}, {s(R_OUT,4)}, {s(sT0 if i < 2 else sT1)} offen offset:{(i%2)*2048}{of}")
        if j < 3: A(f"s_add_u32 {s(sT0)}, {s(sT0)}, 16384")
    A(f"s_lshl2_add_u32 {s(sT0)}, {s(sNB)}, {s(sW)}"); A(f"s_lshl_b32 {s(sT0)}, {s(sT0)}, 5"); A(f"s_add_u32 {s(sT0)}, {s(sT0)}, {s(sRB)}")
    A(f"s_cmp_eq_u32 {s(sT0)}, 31")
    A("s_cbranch_scc0 L_fin")
    A("s_mov_b64 exec, 1")
    A(f"buffer_store_dword {v(vTAG)}, {v(vZ)}, {s(R_WS,4)}, 0 offen sc1")
    A("s_mov_b64 exec, -1")
    A.label("L_fin")
    if stamps:
        A("s_waitcnt vmcnt(0)")
        stamp(12)
        A("s_waitcnt lgkmcnt(0)")
        A(f"s_lshl2_add_u32 {s(sT0)}, {s(sWG)}, {s(sW)}"); A(f"s_lshl_b32 {s(sT0)}, {s(sT0)}, 6")
        A(f"s_add_u32 {s(sT0)}, {s(sT0)}, {WS_STAMP}")
        for i in range(14):
            A(f"v_mov_b32 {v(t0)}, {s(SREG[i] if i < 13 else sTY)}")
            A(f"buffer_store_dword {v(t0)}, {v(vZ)}, {s(R_WS,4)}, {s(sT0)} offen offset:{4*i}")
    A("s_endpgm")
    A.label("L_kvretry")
    A.restore(snap_kv)
    run(kv_loads())
    kv_sum(None, A.vm)
    A(f"s_sub_u32 {s(sCNT)}, {s(sCNT)}, 1")
    A("s_cbranch_scc1 L_kvok")
    A("s_cbranch_vccnz L_kvretry")
    A("s_branch L_kvok")
    A.label("L_slow")
    A.restore(snap); ctok[:] = ctok_s; ltok[:] = ltok_s
    for ks in range(KCHK, 32): step2a(ks, False)
    stamp(9)
    def ld(): A(f"buffer_load_dword {v(vF)}, {v(AD+6)}, {s(R_WS,4)}, {s(sU3)} offen sc1")
    spin("L_po", ld, ck)
    stamp(10)
    for n in range(32, 32 + AHEAD): run(load_ops(n))
    A("s_branch L_2b")
    A.label("L_end")
    if not opt.get('noalign'):
        A.out, A.fixed, A.padded = align_pass(A.out)
    hdr = open(os.path.join(os.path.dirname(__file__), "header.txt")).read()
    src = hdr + f"; @launch grid=(256,1,1) block=(256,1,1) lds={LDS_BYTES}\n" + f""".amdgcn_target "amdgcn-amd-amdhsa--gfx950"
.text
.globl {KNAME}
.p2align 12
.type {KNAME},@function
{KNAME}:
{A.text()}
    s_endpgm
.section .rodata,"a"
.p2align 6
.amdhsa_kernel {KNAME}
  .amdhsa_next_free_vgpr 512
  .amdhsa_next_free_sgpr 102
  .amdhsa_accum_offset 256
  .amdhsa_group_segment_fixed_size 0
  .amdhsa_kernarg_size 128
  .amdhsa_user_sgpr_count 2
  .amdhsa_user_sgpr_kernarg_segment_ptr 1
  .amdhsa_system_sgpr_workgroup_id_x 1
.end_amdhsa_kernel
"""
    return src, A

if __name__ == "__main__":
    out = sys.argv[1]
    opt = {}
    for kv in sys.argv[3:]:
        k_, v_ = kv.split('='); opt[k_] = int(v_)
    src, A = gen(stamps=len(sys.argv) > 2 and sys.argv[2] == 'stamps', opt=opt)
    open(out, "w").write(src)
    print("lines", len(A.out), "nops", A.nops, "widened", getattr(A, 'fixed', 0), "padded", getattr(A, 'padded', 0))
```

```python
import re

REG_RE = re.compile(r'(?<![\w.])([vas])(?:\[(\d+):(\d+)\]|(\d+))(?![\w])')

def regs_of(op):
    out = set()
    for m in REG_RE.finditer(op):
        k = m.group(1)
        if m.group(2) is not None:
            lo, hi = int(m.group(2)), int(m.group(3))
        else:
            lo = hi = int(m.group(4))
        for i in range(lo, hi + 1):
            out.add((k, i))
    if re.search(r'\bvcc\b', op): out.add(('s', 'vcc'))
    if re.search(r'\bexec\b', op): out.add(('s', 'exec'))
    if re.search(r'\bm0\b', op): out.add(('s', 'm0'))
    return out

TRANS = ('v_exp_f32', 'v_log_f32', 'v_rcp_f32', 'v_rsq_f32', 'v_sqrt_f32', 'v_sin_f32', 'v_cos_f32')

class Ins:
    __slots__ = ('text', 'op', 'defs', 'uses', 'kind', 'passes', 'srcC', 'srcAB', 'states', 'wide_store', 'ldsdma')
    def __init__(self, text):
        self.text = text
        t = text.split(';')[0].strip()
        parts = t.split(None, 1)
        self.op = parts[0]
        rest = parts[1] if len(parts) > 1 else ''
        ops = []; depth = 0; cur = ''
        for ch in rest:
            if ch == '[': depth += 1
            if ch == ']': depth -= 1
            if ch == ',' and depth == 0:
                ops.append(cur.strip()); cur = ''
            else: cur += ch
        if cur.strip(): ops.append(cur.strip())
        if ops:
            last = ops[-1]
            last = re.sub(r'\b(op_sel|op_sel_hi|neg_lo|neg_hi):\[[^\]]*\]', '', last)
            ops[-1] = last
        op = self.op
        self.defs = set(); self.uses = set(); self.passes = 0; self.srcC = set(); self.srcAB = set()
        self.states = 1; self.wide_store = False; self.ldsdma = False
        if op == 's_nop':
            self.kind = 'nop'; self.states = int(ops[0], 0) + 1
        elif op.startswith('v_mfma'):
            self.kind = 'mfma'
            self.passes = 8 if '32x32' in op else 4
            self.defs = regs_of(ops[0]); self.srcAB = regs_of(ops[1]) | regs_of(ops[2]); self.srcC = regs_of(ops[3])
            self.uses = self.srcAB | self.srcC
        elif op.startswith('v_'):
            self.kind = 'valu'
            if op.startswith('v_permlane') and 'swap' in op:
                self.defs = regs_of(ops[0]) | regs_of(ops[1]); self.uses = set(self.defs)
            elif op.startswith('v_cmp'):
                self.defs = regs_of(ops[0])
                for o in ops[1:]: self.uses |= regs_of(o)
            else:
                self.defs = regs_of(ops[0])
                for o in ops[1:]: self.uses |= regs_of(o)
                if op.startswith('v_fmac') or op.startswith('v_dot2c') or 'writelane' in op: self.uses |= self.defs
                if op.startswith('v_cndmask') and len(ops) == 3: self.uses.add(('s', 'vcc'))
        elif op.startswith('ds_'):
            self.kind = 'ds'
            if op.startswith('ds_read') or 'bpermute' in op or 'swizzle' in op:
                self.defs = regs_of(ops[0])
                for o in ops[1:]: self.uses |= regs_of(o)
            else:
                for o in ops: self.uses |= regs_of(o)
        elif op.startswith('buffer_') or op.startswith('global_'):
            self.kind = 'vmem'
            islds = bool(re.search(r'\blds\b', rest))
            self.ldsdma = islds
            if 'load' in op and not islds:
                self.defs = regs_of(ops[0])
                for o in ops[1:]: self.uses |= regs_of(o)
                if 'd16' in op: self.uses |= self.defs
            else:
                for o in ops: self.uses |= regs_of(o)
                if islds: self.uses.add(('s', 'm0'))
                if 'store' in op and ('x3' in op or 'x4' in op):
                    self.wide_store = True
                    data = ops[0] if op.startswith('buffer_') else ops[1]
                    self.srcC = regs_of(data)
        elif op.startswith('s_'):
            self.kind = 'salu'
            if op in ('s_waitcnt', 's_barrier', 's_endpgm', 's_sleep', 's_setprio') or op.startswith('s_cbranch') or op == 's_branch':
                pass
            elif op.startswith('s_cmp') or op.startswith('s_atomic'):
                for o in ops: self.uses |= regs_of(o)
            else:
                self.defs = regs_of(ops[0])
                for o in ops[1:]: self.uses |= regs_of(o)
        else:
            raise ValueError("unknown instr " + text)

def vec(rs): return {r for r in rs if r[0] in 'va'}
def sca(rs): return {r for r in rs if r[0] == 's'}

def need_states(p, c):
    n = 0
    if p.kind == 'valu':
        vd = vec(p.defs); sd = sca(p.defs)
        if c.kind == 'mfma' and vd & c.uses: n = max(n, 2)
        if c.kind == 'valu':
            if c.op.startswith('v_permlane') and vd & c.uses: n = max(n, 2)
            if ('readfirstlane' in c.op or 'readlane' in c.op) and vd & c.uses: n = max(n, 1)
            if p.op.replace('_e64', '').replace('_e32', '') in TRANS and vd & c.uses: n = max(n, 1)
            if sd & c.uses: n = max(n, 4 if 'lane' in c.op else 2)
            if 'dpp' in c.text or 'row_' in c.text or 'quad_perm' in c.text:
                if vd & c.uses: n = max(n, 2)
            if 'op_sel' in p.text and not p.op.startswith('v_pk') and vd & (c.uses | c.defs): n = max(n, 1)
        if c.kind == 'vmem' and sd & c.uses: n = max(n, 5)
        if c.kind == 'salu' and sd & c.uses: n = max(n, 1)
        if c.op.startswith('s_cbranch_vcc') and ('s', 'vcc') in sd: n = max(n, 1)
    if p.kind == 'mfma':
        big = {4: 8, 8: 12}[p.passes]
        d = p.defs
        if c.kind == 'mfma':
            if d & c.srcAB: n = max(n, big)
            if d & c.srcC:
                if not (c.srcC == d and c.passes == p.passes): n = max(n, {4: 6, 8: 10}[p.passes])
            elif d & c.defs: n = max(n, {4: 6, 8: 10}[p.passes])
        elif c.kind in ('valu', 'vmem', 'ds'):
            if d & (c.uses | c.defs): n = max(n, big)
        if c.kind == 'valu' and vec(p.srcC) & c.defs: n = max(n, {4: 3, 8: 7}[p.passes])
    if p.kind == 'vmem' and p.wide_store:
        if p.srcC & c.defs: n = max(n, 2)
    if p.kind == 'salu' and ('s', 'm0') in p.defs and c.kind == 'vmem' and c.ldsdma: n = max(n, 1)
    return n

class Asm:
    def __init__(self):
        self.out = []
        self.hist = []
        self.vm = 0
        self.vm_done = 0
        self.lg = 0
        self.lg_done = 0
        self.nops = 0
        self.pend_vm = {}
        self.pend_lg = {}
    def raw(self, text): self.out.append(text)
    def label(self, name):
        self.out.append(name + ":")
    def comment(self, t): self.out.append("    ; " + t)
    def __call__(self, text):
        ins = Ins(text)
        dist = 0; need = 0
        for p in reversed(self.hist):
            k = need_states(p, ins) - dist
            if k > need: need = k
            dist += p.states
            if dist >= 20: break
        if need > 0:
            self.nops += need
            nop = Ins(f"s_nop {need-1}")
            self.hist.append(nop); self.out.append(f"    s_nop {need-1}")
        for r in (ins.uses | ins.defs):
            if r in self.pend_vm and self.pend_vm[r] > self.vm_done:
                if not (ins.kind == 'vmem' and r in ins.defs and r not in ins.uses):
                    raise RuntimeError(f"missing vm wait for {r} at: {text}")
            if r in self.pend_lg and self.pend_lg[r] > self.lg_done:
                if not (ins.kind == 'ds' and r in ins.defs and r not in ins.uses):
                    raise RuntimeError(f"missing lgkm wait for {r} at: {text}")
        self.hist.append(ins)
        if len(self.hist) > 40: self.hist = self.hist[-30:]
        self.out.append("    " + text)
        if ins.kind == 'vmem':
            self.vm += 1
            for r in ins.defs: self.pend_vm[r] = self.vm
            return self.vm
        if ins.kind == 'ds':
            self.lg += 1
            for r in ins.defs: self.pend_lg[r] = self.lg
            return self.lg
        return None
    def wait(self, vm=None, lg=None):
        parts = []
        if vm is not None and vm > self.vm_done:
            n = self.vm - vm
            assert n >= 0
            n = min(n, 63)
            parts.append(f"vmcnt({n})"); self.vm_done = self.vm - n
        if lg is not None and lg > self.lg_done:
            n = min(self.lg - lg, 15)
            parts.append(f"lgkmcnt({n})"); self.lg_done = self.lg - n
        if parts: self("s_waitcnt " + " ".join(parts))
    def wait_all(self, vm=True, lg=True, force=False):
        parts = []
        if vm and (force or self.vm > self.vm_done): parts.append("vmcnt(0)"); self.vm_done = self.vm
        if lg and (force or self.lg > self.lg_done): parts.append("lgkmcnt(0)"); self.lg_done = self.lg
        if parts: self("s_waitcnt " + " ".join(parts))
    def snapshot(self):
        return (list(self.hist), self.vm, self.vm_done, self.lg, self.lg_done, dict(self.pend_vm), dict(self.pend_lg))
    def restore(self, s):
        self.hist, self.vm, self.vm_done, self.lg, self.lg_done, self.pend_vm, self.pend_lg = list(s[0]), s[1], s[2], s[3], s[4], dict(s[5]), dict(s[6])
    def text(self): return "\n".join(self.out)

def v(i, n=1): return f"v{i}" if n == 1 else f"v[{i}:{i+n-1}]"
def a(i, n=1): return f"a{i}" if n == 1 else f"a[{i}:{i+n-1}]"
def s(i, n=1): return f"s{i}" if n == 1 else f"s[{i}:{i+n-1}]"

class Alloc:
    def __init__(self, start, limit):
        self.p = start; self.limit = limit; self.names = {}
    def __call__(self, name, n=1, align=1):
        self.p = (self.p + align - 1) // align * align
        r = self.p; self.p += n
        assert self.p <= self.limit, f"out of regs at {name}"
        self.names[name] = (r, n)
        return r

import subprocess, tempfile, os
def instr_sizes(lines):
    src = '.amdgcn_target "amdgcn-amd-amdhsa--gfx950"\n.text\n' + "\n".join(lines) + "\ns_endpgm\n"
    d = tempfile.mkdtemp()
    open(d + "/a.s", "w").write(src)
    subprocess.run(["clang", "-x", "assembler", "-target", "amdgcn-amd-amdhsa", "-mcpu=gfx950", "-c", d + "/a.s", "-o", d + "/a.o"], check=True)
    out = subprocess.run(["llvm-objdump", "-d", "--mcpu=gfx950", d + "/a.o"], capture_output=True, text=True, check=True).stdout
    sz = []
    for l in out.splitlines():
        m = re.search(r'// [0-9A-F]{12}: ((?:[0-9A-F]{8} ?)+)', l)
        if m: sz.append(4 * len(m.group(1).split()))
    return sz[:-1]

PROMOTE_OK = re.compile(r'^v_(mov_b32|mov_b64|add_f32|sub_f32|mul_f32|max_f32|min_f32|add_u32|and_b32|or_b32|xor_b32|lshlrev_b32|lshrrev_b32|fmac_f32|max_u32|min_u32|exp_f32|rcp_f32|sin_f32|cos_f32|rndne_f32|cvt_f32_u32)\s')
def align_pass(lines, minrun=5):
    idx = [i for i, l in enumerate(lines) if l.startswith("    ") and not l.strip().startswith(";")]
    sz = instr_sizes([l for l in lines if not l.startswith(".p2align")])
    assert len(sz) == len(idx), (len(sz), len(idx))
    out = list(lines); ins = {}
    off = 0; n = len(idx); fixed = padded = 0
    resets = {i for i, l in enumerate(lines) if l.startswith(".p2align")}
    for k in range(n):
        if any((idx[k-1] if k else -1) < r < idx[k] for r in resets): off = 0
        if sz[k] == 8 and off % 8 == 4 and k > 0 and sz[k-1] == 4:
            r = 0
            while k + r < n and sz[k + r] == 8 and not lines[idx[k + r]].strip().startswith(("v_mfma", "buffer_", "global_", "ds_write")): r += 1
            if r >= minrun:
                j = k - 1; done = False
                while j >= 0 and sz[j] == 4 and k - j <= 6:
                    t = out[idx[j]].strip()
                    if PROMOTE_OK.match(t):
                        op, rest = t.split(None, 1)
                        out[idx[j]] = f"    {op}_e64 {rest}"; done = True; fixed += 1; sz[j] = 8
                        break
                    j -= 1
                if not done and r >= 9:
                    ins[idx[k]] = "    s_nop 0"; done = True; padded += 1
                if done: off += 4
        off += sz[k]
    res = []
    for i, l in enumerate(out):
        if i in ins: res.append(ins[i])
        res.append(l)
    return res, fixed, padded

def page_pads(lines, base, regions):
    idx = [i for i, l in enumerate(lines) if l.startswith("    ") and not l.strip().startswith(";")]
    sz = dict(zip(idx, instr_sizes([l for l in lines if not l.startswith(".p2align")])))
    out = []; off = base; reg = None; masked = False; want = False; cnt = {}
    for i, l in enumerate(lines):
        if l.startswith(".p2align"): off = 0; want = False
        if l.endswith(":") and l[:-1] in regions: reg = regions[l[:-1]]; want = False
        if i in sz:
            if want and reg and not masked:
                n = cnt.get(reg, 0); cnt[reg] = n + 1
                out.append(f"L_pg_{reg}_{n}:"); out.append(f"    s_cbranch_execz L_pgret_{reg}"); out.append("    s_nop 0")
                off += 8; want = False
            t = l.strip()
            if re.match(r's_\w+ exec(_lo|_hi)?,', t): masked = t != "s_mov_b64 exec, -1"
            if (off + sz[i]) // 4096 != off // 4096: want = True
            off += sz[i]
        out.append(l)
    return out, cnt
```

```python
import sys, os
sys.path.insert(0, os.path.dirname(__file__))
from asmlib import *

KNAME = "gated_mix__ssm_conv_s5__linear_attn_block__prompt_kernel"

WS_EPOCH = 0
WS_KVF   = 0xD0000
WS_HF    = 0x4000
WS_OF    = 0xC000
WS_G     = 0x14000
WS_ZP    = 0x18000
WS_AGG   = 0x20000
WS_KVP   = 0x40000
WS_STAMP = 0xC0000
WS_ACT   = 0x100000
WS_SIZE  = WS_ACT + 64 * 98304
SCR = 131072
LDS_BYTES = 163840
SPIN = 1 << 17

def gen(stamps=False, opt=None):
    opt = opt or {}
    A = Asm()
    P_X, P_LRE, P_LIM, P_BRE, P_BIM, P_CRE, P_CIM, P_LDT = 4, 6, 8, 10, 12, 14, 16, 18
    P_DSK, P_BX, P_QKV, P_WO, P_GW, P_OUT, P_DBG, P_WS = 20, 22, 24, 26, 28, 30, 32, 34
    R_X, R_W, R_WS, R_C, R_WO, R_OUT = 36, 40, 44, 48, 52, 56
    sW, sC, sJ, sK0, sRB, sNB, sTAG, sTY = 60, 61, 62, 63, 64, 65, 66, 67
    sXO, sWO, sWST, sU0, sT0, sT1, sT2, sT3 = 68, 69, 70, 71, 72, 73, 74, 75
    sMX, sMW, sCNT, sTT, sKH, sM8 = 76, 77, 78, 79, 80, 81
    sL2E = 82
    sU1, sU2 = 84, 85
    sEPS = 86
    sD0, sD1 = 2, 3
    SREG = [88, 90, 92, 94, 96, 98, 16, 18, 6, 8, 10, 12, 14]
    sWG = 100
    sU3 = 101
    names = opt.get('stamps') or [0, 1, 2, 3, 4, 5, 6, 7, 8, 9, 10, 11, 12]
    def stamp(i):
        if stamps and i in names:
            A(f"{'s_memtime' if opt.get('cyc') else 's_memrealtime'} {s(SREG[names.index(i)], 2)}")
    vL = 0; vZ = 1; vE = 2; vJ = 3
    t0, t1, t2, t3, t4, t5, t6, t7 = 4, 5, 6, 7, 8, 9, 10, 11
    vTAG = 12; vL16 = 13; vL4 = 14; vF = 15
    ACC = 16; BUF = 80; TMP = 112; TM2 = 176
    VX, VW, VN, VK1 = 208, 212, 216, 220
    RX, RN, RT = 224, 228, 232
    RW = 234
    RA, RB = 236, 240
    AD = 244
    PR = TM2

    def run(ops):
        tok = None
        for o in ops:
            r = A(o) if isinstance(o, str) else o()
            if r is not None: tok = r
        return tok
    def sel_exec(lo, hi):
        A(f"s_mov_b32 exec_lo, {lo:#x}"); A(f"s_mov_b32 exec_hi, {hi:#x}")

    stamp(0)
    A("s_load_dwordx16 s[4:19], s[0:1], 0")
    A("s_load_dwordx16 s[20:35], s[0:1], 64")
    A("s_cmp_ge_u32 s2, 256")
    A("s_cbranch_scc1 L_end")
    A(f"s_getpc_b64 {s(sT2,2)}")
    A.label("L_pc")
    A(f"s_and_b32 {s(sT0)}, s2, 0xf8")
    A(f"v_lshrrev_b32 {v(t0)}, 5, v0")
    A(f"v_add_lshl_u32 {v(t0)}, {v(t0)}, {s(sT0)}, 7")
    A(f"v_min_u32 {v(t0)}, L_end-L_pc, {v(t0)}")
    if not opt.get('nocodepf'):
        A(f"global_load_dword {v(BUF)}, {v(t0)}, {s(sT2,2)}")
    A(f"v_lshrrev_b32 {v(t0)}, 6, v0")
    A(f"v_and_b32 {v(vL)}, 63, v0")
    A(f"v_readfirstlane_b32 {s(sW)}, {v(t0)}")
    A(f"v_mov_b32 {v(vZ)}, 0")
    A(f"s_and_b32 {s(sT0)}, s2, 7")
    A(f"s_bfe_u32 {s(sNB)}, s2, 0x30003")
    A(f"s_lshr_b32 {s(sT3)}, s2, 6")
    if stamps: A(f"s_mov_b32 {s(sWG)}, s2")
    A(f"s_and_b32 {s(sC)}, {s(sT0)}, 1"); A(f"s_lshl3_add_u32 {s(sC)}, {s(sC)}, {s(sNB)}")
    A(f"s_and_b32 {s(sJ)}, {s(sT0)}, 6"); A(f"s_lshr_b32 {s(sK0)}, {s(sT3)}, 1"); A(f"s_add_u32 {s(sJ)}, {s(sJ)}, {s(sK0)}")
    A(f"s_lshr_b32 {s(sT1)}, {s(sT0)}, 1"); A(f"s_and_b32 {s(sT2)}, {s(sT0)}, 1")
    A(f"s_lshl2_add_u32 {s(sRB)}, {s(sT2)}, {s(sT1)}"); A(f"s_lshl2_add_u32 {s(sRB)}, {s(sRB)}, {s(sT3)}")
    G_ = opt.get('G', 2)
    if G_ == 1: A(f"s_mov_b32 {s(sK0)}, 0")
    elif G_ == 2: A(f"s_add_u32 {s(sK0)}, {s(sK0)}, {s(sNB)}"); A(f"s_lshl_b32 {s(sK0)}, {s(sK0)}, 2")
    elif G_ == 4: A(f"s_add_u32 {s(sK0)}, {s(sT3)}, {s(sNB)}"); A(f"s_lshl_b32 {s(sK0)}, {s(sK0)}, 1")
    else: A(f"s_lshl1_add_u32 {s(sK0)}, {s(sT3)}, {s(sNB)}")
    X_ = opt.get('xoff', 0)
    if X_ == 1: A(f"s_lshl1_add_u32 {s(sT1)}, {s(sT2)}, {s(sT1)}"); A(f"s_add_u32 {s(sK0)}, {s(sK0)}, {s(sT1)}")
    if X_ == 2: A(f"s_add_u32 {s(sT1)}, {s(sT2)}, {s(sT1)}"); A(f"s_add_u32 {s(sK0)}, {s(sK0)}, {s(sT1)}")
    if X_ == 3: A(f"s_lshl1_add_u32 {s(sT1)}, {s(sT2)}, {s(sT1)}"); A(f"s_lshl1_add_u32 {s(sK0)}, {s(sT1)}, {s(sK0)}")
    A(f"s_and_b32 {s(sK0)}, {s(sK0)}, 7")
    A(f"s_and_b32 {s(sTY)}, {s(sT3)}, 1")
    A(f"v_lshrrev_b32 {v(t0)}, 3, {v(vL)}")
    A(f"v_and_b32 {v(t1)}, 7, {v(vL)}")
    A(f"v_lshrrev_b32 {v(t2)}, 4, {v(vL)}")
    A(f"v_xor_b32 {v(t3)}, {v(t1)}, {v(t2)}")
    A(f"v_lshlrev_b32 {v(t3)}, 4, {v(t3)}")
    A(f"v_and_b32 {v(t2)}, 16, {v(vL)}")
    A(f"v_lshlrev_b32 {v(t2)}, 2, {v(t2)}")
    A(f"v_lshlrev_b32 {v(t4)}, 4, {v(t1)}")
    A(f"v_xor_b32 {v(t4)}, {v(t4)}, {v(t2)}")
    A(f"v_lshrrev_b32 {v(t5)}, 5, {v(vL)}")
    A(f"v_and_b32 {v(t6)}, 3, {v(t0)}")
    A(f"v_lshl_add_u32 {v(t5)}, {v(t5)}, 4, {v(t6)}")
    A(f"v_lshl_add_u32 {v(VX)}, {v(t5)}, 10, {v(t3)}")
    A(f"v_xor_b32 {v(t5)}, 64, {v(VX)}")
    A(f"v_add_u32 {v(VX+1)}, {3072}, {v(t5)}")
    A(f"v_add_u32 {v(VX+2)}, {2*3072}, {v(VX)}")
    A(f"v_add_u32 {v(VX+3)}, {3*3072}, {v(t5)}")
    A(f"v_lshl_add_u32 {v(VN)}, {v(t0)}, 10, {v(t3)}")
    A(f"v_xor_b32 {v(t5)}, 64, {v(VN)}")
    A(f"v_add_u32 {v(VN+1)}, {7168}, {v(t5)}")
    A(f"v_add_u32 {v(VN+2)}, {2*7168}, {v(VN)}")
    A(f"v_add_u32 {v(VN+3)}, {3*7168}, {v(t5)}")
    A(f"v_lshl_add_u32 {v(VK1)}, {v(t0)}, 10, {v(t4)}")
    A(f"v_lshl_add_u32 {v(VW)}, {v(t0)}, 11, {v(VK1)}")
    for q in (1, 2, 3): A(f"v_add_u32 {v(VW+q)}, {q*(8*3072-1024)}, {v(VW)}")
    A(f"s_lshl_b32 {s(sT0)}, {s(sJ)}, 7")
    A(f"v_lshl_add_u32 {v(t7)}, {v(vL)}, 1, {s(sT0)}")
    A(f"v_lshlrev_b32 {v(vL16)}, 4, {v(vL)}")
    A(f"s_lshl_b32 {s(sMX)}, {s(sW)}, 12")
    A(f"s_add_u32 {s(sMW)}, {s(sMX)}, 16384")
    A(f"s_and_b32 {s(sKH)}, {s(sW)}, 1")
    A(f"s_lshr_b32 {s(sT1)}, {s(sW)}, 1")
    A(f"s_lshl2_add_u32 {s(sTT)}, {s(sC)}, {s(sW)}")
    A(f"s_lshl_b32 {s(sXO)}, {s(sTT)}, 15")
    A(f"s_lshl_b32 {s(sT2)}, {s(sK0)}, 7")
    A(f"s_add_u32 {s(sXO)}, {s(sXO)}, {s(sT2)}")
    A(f"s_lshl1_add_u32 {s(sT2)}, {s(sJ)}, {s(sT1)}"); A(f"s_lshl_b32 {s(sT2)}, {s(sT2)}, 15")
    A(f"s_mul_i32 {s(sT3)}, {s(sKH)}, {32*3072}"); A(f"s_lshl_b32 {s(sT1)}, {s(sT1)}, 10"); A(f"s_add_u32 {s(sT3)}, {s(sT3)}, {s(sT1)}")
    A(f"s_add_u32 {s(sT3)}, {s(sT3)}, {s(sT0)}"); A(f"s_add_u32 {s(sT3)}, {s(sT3)}, 1024")
    A(f"s_cmp_eq_u32 {s(sTY)}, 0")
    A(f"s_cselect_b32 {s(sWO)}, {s(sT2)}, {s(sT3)}")
    A(f"s_cselect_b32 {s(sWST)}, 128, {64*3072}") if False else None
    A(f"s_mov_b32 {s(sT1)}, {64*3072}"); A(f"s_cselect_b32 {s(sWST)}, 0x80, {s(sT1)}")
    A(f"s_mov_b32 {s(sT1)}, 0x180000"); A(f"s_cselect_b32 {s(R_W+2)}, 0x80000, {s(sT1)}")
    A("s_cselect_b64 exec, -1, 0")
    A(f"v_mov_b64 {v(VW,2)}, {v(VN,2)}"); A(f"v_mov_b64 {v(VW+2,2)}, {v(VN+2,2)}")
    A("s_mov_b64 exec, -1")
    A(f"s_mul_i32 {s(sT1)}, {s(sK0)}, {s(sWST)}"); A(f"s_add_u32 {s(sWO)}, {s(sWO)}, {s(sT1)}")
    A(f"s_mov_b32 {s(R_X+2)}, 0x200000"); A(f"s_mov_b32 {s(R_X+3)}, 0x20000")
    A(f"s_mov_b32 {s(R_W+3)}, 0x20000")
    A(f"s_mov_b32 m0, {s(sMX)}")
    A(f"s_mov_b32 {s(R_WS+2)}, {WS_SIZE}"); A(f"s_mov_b32 {s(R_WS+3)}, 0x20000")
    A(f"s_mov_b32 {s(R_C+2)}, 0x80000"); A(f"s_mov_b32 {s(R_C+3)}, 0x20000")
    A(f"s_mov_b32 {s(R_WO+2)}, 0x80000"); A(f"s_mov_b32 {s(R_WO+3)}, 0x20000")
    A(f"s_mov_b32 {s(R_OUT+2)}, 0x400000"); A(f"s_mov_b32 {s(R_OUT+3)}, 0x20000")
    A(f"s_lshl_b32 {s(sM8)}, {s(sW)}, 13")
    late = []
    Lt = late.append
    for q in (1, 2, 3): Lt(f"v_add_u32 {v(VK1+q)}, {q*7168}, {v(VK1)}")
    Lt(f"v_and_b32 {v(t0)}, 31, {v(vL)}")
    Lt(f"v_lshrrev_b32 {v(t1)}, 5, {v(vL)}")
    Lt(f"v_bfe_u32 {v(t2)}, {v(vL)}, 1, 3")
    Lt(f"v_xor_b32 {v(t2)}, {v(t2)}, {v(t1)}")
    Lt(f"v_lshlrev_b32 {v(t2)}, 4, {v(t2)}")
    Lt(f"v_lshl_add_u32 {v(RN)}, {v(t0)}, 7, {v(t2)}")
    for q in (1, 2, 3): Lt(f"v_xor_b32 {v(RN+q)}, {q*32}, {v(RN)}")
    for q in range(4): Lt(f"v_add_u32 {v(RX+q)}, {s(sMX)}, {v(RN+q)}")
    Lt(f"v_bfe_u32 {v(t2)}, {v(vL)}, 2, 2")
    Lt(f"v_bfe_u32 {v(t3)}, {v(vL)}, 3, 1")
    Lt(f"v_bfe_u32 {v(t4)}, {v(vL)}, 4, 1")
    Lt(f"v_and_b32 {v(t5)}, 3, {v(vL)}")
    Lt(f"v_lshlrev_b32 {v(t5)}, 3, {v(t5)}")
    Lt(f"v_lshl_add_u32 {v(t5)}, {v(t4)}, 5, {v(t5)}")
    Lt(f"v_lshl_add_u32 {v(t5)}, {v(t3)}, 6, {v(t5)}")
    Lt(f"v_lshl_add_u32 {v(t5)}, {v(t2)}, 7, {v(t5)}")
    Lt(f"v_lshl_add_u32 {v(RT)}, {v(t1)}, 10, {v(t5)}")
    Lt(f"v_xor_b32 {v(RT+1)}, 64, {v(RT)}")
    Lt(f"v_lshl_add_u32 {v(RW)}, {v(t1)}, 9, {v(t5)}")
    Lt(f"s_mul_i32 {s(sT0)}, {s(sKH)}, {16384+64}")
    Lt(f"v_xor_b32 {v(RW)}, {s(sT0)}, {v(RW)}")
    Lt(f"v_xor_b32 {v(RW+1)}, 64, {v(RW)}")
    Lt(f"v_lshlrev_b32 {v(vL4)}, 2, {v(vL)}")
    sWOB, sCB = P_DBG, P_DBG + 1
    Lt(f"s_and_b32 {s(sT1)}, {s(sJ)}, 1")
    Lt(f"s_and_b32 {s(sWOB)}, {s(sW)}, 2"); Lt(f"s_add_u32 {s(sWOB)}, {s(sWOB)}, {s(sW)}"); Lt(f"s_lshl1_add_u32 {s(sWOB)}, {s(sT1)}, {s(sWOB)}")
    Lt(f"s_lshl_b32 {s(sWOB)}, {s(sWOB)}, 9"); Lt(f"s_add_u32 {s(sWOB)}, {s(sWOB)}, {s(sNB)}"); Lt(f"s_lshl_b32 {s(sWOB)}, {s(sWOB)}, 7")
    Lt(f"s_lshr_b32 {s(sCB)}, {s(sW)}, 1"); Lt(f"s_lshl2_add_u32 {s(sCB)}, {s(sT1)}, {s(sCB)}")
    Lt(f"s_lshl_b32 {s(sT0)}, {s(sNB)}, 9"); Lt(f"s_add_u32 {s(sCB)}, {s(sCB)}, {s(sT0)}"); Lt(f"s_lshl_b32 {s(sCB)}, {s(sCB)}, 7")
    if opt.get('rot', 1):
        Lt(f"s_and_b32 {s(sT0)}, {s(sNB)}, 3"); Lt(f"s_lshl_b32 {s(sT0)}, {s(sT0)}, 7"); Lt(f"s_xor_b32 {s(sCB)}, {s(sCB)}, {s(sT0)}")
        Lt(f"s_lshl_b32 {s(sT0)}, {s(sT0)}, 9"); Lt(f"s_xor_b32 {s(sWOB)}, {s(sWOB)}, {s(sT0)}")
    Lt(f"s_mul_i32 {s(sT0)}, {s(sKH)}, {65536+4096}")
    Lt(f"s_lshl_b32 {s(sT1)}, {s(sT1)}, 16"); Lt(f"s_xor_b32 {s(sT0)}, {s(sT0)}, {s(sT1)}")
    Lt(f"s_xor_b32 {s(sT1)}, {s(sT0)}, 4096")
    for q in range(4):
        Lt(f"v_add_u32 {v(RA+q)}, {s(sT0)}, {v(RN+q)}")
        Lt(f"v_add_u32 {v(RB+q)}, {s(sT1)}, {v(RN+q)}")
    Lt(f"s_mov_b64 {s(R_WS,2)}, {s(P_WS,2)}")
    Lt(f"s_mov_b64 {s(R_WO,2)}, {s(P_WO,2)}")
    Lt(f"s_mov_b64 {s(R_OUT,2)}, {s(P_OUT,2)}")
    A(f"s_cmp_eq_u32 {s(sTY)}, 0")
    A("s_waitcnt lgkmcnt(0)")
    stamp(20)
    A(f"s_mov_b64 {s(R_X,2)}, {s(P_X,2)}")
    pLRE, pLIM, pLDT = PR, PR + 1, PR + 2
    A("s_cbranch_scc0 L_nopar")
    A(f"global_load_ushort {v(pLRE)}, {v(t7)}, {s(P_LRE,2)}")
    A(f"global_load_ushort {v(pLIM)}, {v(t7)}, {s(P_LIM,2)}")
    A(f"global_load_ushort {v(pLDT)}, {v(t7)}, {s(P_LDT,2)}")
    tokP = A(f"global_load_dword {v(vE)}, {v(vZ)}, {s(P_WS,2)} sc1")
    A.label("L_nopar")
    A(f"s_cmp_eq_u32 {s(sKH)}, 0")
    def dma(voff, srd, soff, q):
        off = f" offset:{q*1024}" if q else ""
        return f"buffer_load_dwordx4 {v(voff+q)}, {s(srd,4)}, {s(soff)} offen{off} lds"
    for q in range(4): A(dma(VX, R_X, sXO, q))
    A(f"s_cselect_b64 {s(R_W,2)}, {s(P_BRE,2)}, {s(P_BIM,2)}")
    A(f"s_cselect_b64 {s(R_C,2)}, {s(P_CRE,2)}, {s(P_CIM,2)}")
    A(f"s_cmp_eq_u32 {s(sTY)}, 0")
    A(f"s_cselect_b64 {s(R_W,2)}, {s(R_W,2)}, {s(P_QKV,2)}")
    A(f"s_mov_b32 m0, {s(sMW)}")
    for q in range(4):
        run(late[:5]); late = late[5:]
        A(dma(VW, R_W, sWO, q))
    utok0 = [A.vm]
    stamp(21)
    def unit_ops(i):
        slot = (i % 4) * 32768
        ops = []
        ops += [f"s_cmp_eq_u32 {s(sK0)}, {8-i}", f"s_cselect_b32 {s(sD0)}, -7, 1", f"s_mul_i32 {s(sD1)}, {s(sD0)}, {s(sWST)}",
                f"s_lshl_b32 {s(sD0)}, {s(sD0)}, 7", f"s_add_u32 {s(sXO)}, {s(sXO)}, {s(sD0)}", f"s_add_u32 m0, {s(sMX)}, {slot}"]
        ops += [dma(VX, R_X, sXO, q) for q in range(4)]
        ops += [f"s_add_u32 {s(sWO)}, {s(sWO)}, {s(sD1)}", f"s_add_u32 m0, {s(sMW)}, {slot}"]
        ops += [dma(VW, R_W, sWO, q) for q in range(4)]
        return ops
    for o in unit_ops(1):
        if o.startswith('buffer'):
            run(late[:5]); late = late[5:]
        A(o)
    run(late)
    utok0.append(A.vm)
    stamp(22)
    A(f"s_cmp_eq_u32 {s(sTY)}, 0")
    A("s_cbranch_scc0 L_attn")
    snap0 = A.snapshot()

    def unit8_ops(voff, srd, pre, base, rowstep):
        ops = list(pre)
        ops.append(f"s_add_u32 m0, {s(sM8)}, {base}")
        ops += [dma(voff, srd, sD0, q) for q in range(4)]
        ops.append(f"s_add_u32 {s(sD0)}, {s(sD0)}, {rowstep}")
        ops.append(f"s_add_u32 m0, {s(sM8)}, {base+4096}")
        ops += [dma(voff, srd, sD0, q) for q in range(4)]
        return ops
    def wq_ops(u):
        pre = [f"s_xor_b32 {s(sD0)}, {s(sK0)}, {4*u}", f"s_add_u32 {s(sD0)}, {s(sD0)}, {s(sW)}", f"s_and_b32 {s(sD0)}, {s(sD0)}, 7",
               f"s_mul_i32 {s(sD0)}, {s(sD0)}, {64*3072}", f"s_lshl_b32 {s(sD1)}, {s(sJ)}, 7", f"s_add_u32 {s(sD0)}, {s(sD0)}, {s(sD1)}"]
        return unit8_ops(VW, R_W, pre, u * 32768, 32 * 3072)
    def wo_ops(u, base):
        pre = [f"s_xor_b32 {s(sD0)}, {s(sWOB)}, {u << 17}"]
        return unit8_ops(VK1, R_WO, pre, base, 32 * 1024)
    def c_ops(slot):
        pre = [f"s_xor_b32 {s(sD0)}, {s(sCB)}, {slot << 8}"]
        return unit8_ops(VN, R_C, pre, slot * 32768, 32 * 1024)
    def wo_reads(u, areg, off):
        L = []
        for st in range(8):
            for tl in range(2):
                d = 128 + 8 * (8 * u + st) + 4 * tl
                L.append(f"ds_read_b64_tr_b16 {a(d,2)}, {v(areg+tl)} offset:{off+st*2048}")
                L.append(f"ds_read_b64_tr_b16 {a(d+2,2)}, {v(areg+tl)} offset:{off+st*2048+1024}")
        return L
    class Stream:
        def __init__(self, ops): self.ops = list(ops)
        def dma(self, n=1):
            while n > 0 and self.ops:
                o = self.ops.pop(0); A(o)
                if o.startswith('buffer_') or o.startswith('global_'): n -= 1; self.last = A.vm
        def salu(self):
            while self.ops and not (self.ops[0].startswith('buffer_') or self.ops[0].startswith('global_')): A(self.ops.pop(0))
        def some(self, n):
            tok = None
            for _ in range(n):
                if self.ops: tok = A(self.ops.pop(0))
            return tok
        def rest(self):
            tok = None
            while self.ops:
                tok = A(self.ops.pop(0)); self.last = A.vm
            return tok
    def sprinkle(ops, stream, every):
        for n, o in enumerate(ops):
            A(o) if isinstance(o, str) else o()
            if (n + 1) % every == 0: stream.dma()

    def main_loop(kind, tail_units, fill):
        utok = list(utok0)
        def reads(i, st):
            slot = (i % 2) * 32768
            b = BUF + 16 * ((4 * i + st) % 2)
            L = [f"ds_read_b128 {a(16*i+4*st,4)}, {v(RX+st)} offset:{slot}"]
            for tl in range(4):
                if kind == 'ssm':
                    L.append(f"ds_read_b128 {v(b+4*tl,4)}, {v(RN+st)} offset:{slot+16384+tl*4096}")
                else:
                    base = slot + 16384 + (tl >> 1) * 8192 + st * 2048
                    L.append(f"ds_read_b64_tr_b16 {v(b+4*tl,2)}, {v(RT+(tl&1))} offset:{base}")
                    L.append(f"ds_read_b64_tr_b16 {v(b+4*tl+2,2)}, {v(RT+(tl&1))} offset:{base+512}")
            if i % 2 == 1:
                L.append(f"v_xor_b32 {v(RX+st)}, 0x10000, {v(RX+st)}")
                if kind == 'ssm': L.append(f"v_xor_b32 {v(RN+st)}, 0x10000, {v(RN+st)}")
                elif st == 3: L += [f"v_xor_b32 {v(RT+q)}, 0x10000, {v(RT+q)}" for q in range(2)]
            return L
        def mfmas(i, st):
            b = BUF + 16 * ((4 * i + st) % 2)
            L = []
            for tl in range(4):
                c = v(ACC + 16 * tl, 16)
                if i == 0 and st == 0: c = "1.0" if (kind == 'attn' and tl < 2) else "0"
                L.append(f"v_mfma_f32_32x32x16_bf16 {v(ACC+16*tl,16)}, {a(16*i+4*st,4)}, {v(b+4*tl,4)}, {c}")
            return L
        prev = None
        while fill and fill[0][0] < 0: run(fill.pop(0)[1])
        stamp(1)
        for i in range(8):
            nxt = Stream(unit_ops(i + 2) if i + 2 < 8 else tail_units[i - 6])
            nxt.salu()
            A.wait(vm=utok[i])
            A("s_barrier")
            stamp(30 + i)
            burst = i < opt.get('burst', 2)
            for st in range(4):
                rd = reads(i, st)
                if prev is None:
                    run(rd); prev = (i, st, A.lg); nxt.dma(4 if burst else 2); nxt.salu(); continue
                ms = mfmas(prev[0], prev[1])
                A.wait(lg=prev[2])
                split = opt.get('sa', [3, 3, 9, 0]) if kind == 'attn' else opt.get('ss', [3, 9, 0, 0])
                fper = opt.get('fa', [1, 0, 1, 2]) if kind == 'attn' else opt.get('fs', [2, 3, 1, 1])
                dgap = opt.get('dga', [1, 3]) if kind == 'attn' else opt.get('dgs', [2, 3])
                for tl in range(4):
                    A(ms[tl])
                    if opt.get('dfirst') and (tl in dgap or burst): nxt.dma(); nxt.salu()
                    run(rd[:split[tl]]); rd = rd[split[tl]:]
                    if not opt.get('dfirst') and (tl in dgap or burst): nxt.dma(); nxt.salu()
                    n = fper[tl]
                    while n > 0 and fill and fill[0][0] <= i:
                        g = fill.pop(0)[1]
                        run(g); n -= len(g)
                assert not rd
                prev = (i, st, A.lg)
            nxt.rest()
            utok.append(A.vm)
        assert not fill, len(fill)
        A.wait(lg=prev[2])
        run(mfmas(prev[0], prev[1]))
        return utok

    def weight_touch(F):
        if not opt.get('wt', 1): return
        it = F.it
        F.it = -1
        F(f"s_lshl3_add_u32 {s(sCNT)}, {s(sRB)}, {s(sNB)}")
        F(f"v_lshrrev_b32 {v(vJ)}, 2, {v(vL)}")
        F(f"s_lshl_b32 {s(sCNT)}, {s(sCNT)}, 4")
        F(f"v_add_u32 {v(vJ)}, {s(sCNT)}, {v(vJ)}")
        F(f"v_lshrrev_b32 {v(vF)}, 3, {v(vJ)}")
        F(f"v_lshlrev_b32 {v(vJ)}, 7, {v(vJ)}")
        F(f"s_cmp_eq_u32 {s(sW)}, 3", f"s_cselect_b32 {s(sCNT)}, 0x800, 0", f"s_cselect_b64 {s(P_BX,2)}, {s(P_QKV,2)}, {s(P_WO,2)}")
        F(f"v_mad_u32_u24 {v(vJ)}, {v(vF)}, {s(sCNT)}, {v(vJ)}")
        F(f"s_cmp_lt_u32 {s(sW)}, 2", f"s_cselect_b64 {s(P_BX,2)}, {s(R_C,2)}, {s(P_BX,2)}")
        F.sort(key=lambda e: e[0])
        F.it = opt.get('wtit', 2) - 0.5
        F(f"global_load_dword {v(vJ)}, {v(vJ)}, {s(P_BX,2)}")
        F.sort(key=lambda e: e[0])
        F.it = it
    class Fill(list):
        it = -1
        def __call__(self, *ops): self.append((self.it, list(ops)))
    def epoch_load():
        A("s_mov_b64 exec, 1")
        A(f"global_load_dword {v(vE)}, {v(vZ)}, {s(P_WS,2)} sc1")
        A("s_mov_b64 exec, -1")
    def get_tag(F):
        F(f"v_readfirstlane_b32 {s(sTAG)}, {v(vE)}")
        F(f"s_mul_i32 {s(sTAG)}, {s(sTAG)}, 0x9E3779B5")
        F(f"s_add_u32 {s(sTAG)}, {s(sTAG)}, 0x7F4A7C15")
        F(f"v_mov_b32 {v(vTAG)}, {s(sTAG)}")
    def cmul4(F, d, x, y):
        if F.it < 0:
            for o in cmul_ops(d, x, y): F(o)
            return
        F(f"v_mul_f32 {v(d)}, {v(x)}, {v(y)}")
        F(f"v_mul_f32 {v(d+1)}, {v(x)}, {v(y+1)}")
        F(f"v_fma_f32 {v(d)}, -{v(x+1)}, {v(y+1)}, {v(d)}")
        F(f"v_fmac_f32 {v(d+1)}, {v(x+1)}, {v(y)}")
    def p2_setup():
        A(f"s_lshr_b32 {s(sT0)}, {s(sW)}, 1"); A(f"s_lshl1_add_u32 {s(sTT2)}, {s(sRB)}, {s(sT0)}")
        A(f"s_lshl1_add_u32 {s(sT0)}, {s(sNB)}, {s(sKH)}"); A(f"s_lshl_b32 {s(sT0)}, {s(sT0)}, 6")
        A(f"v_and_b32 {v(t0)}, 31, {v(vL)}")
        A(f"v_lshrrev_b32 {v(t1)}, 5, {v(vL)}")
        A(f"v_lshl_add_u32 {v(t2)}, {v(t0)}, 1, {s(sT0)}")
        A(f"global_load_ushort {v(t4)}, {v(t2)}, {s(P_DSK,2)}")
        A(f"s_lshl2_add_u32 {s(sT1)}, {s(sRB)}, {s(sW)}"); A(f"s_lshl_b32 {s(sT1)}, {s(sT1)}, 7"); A(f"s_add_u32 {s(sT1)}, {s(sT1)}, {s(sNB)}")
        A(f"s_lshr_b32 {s(sT0)}, {s(sMX)}, 1"); A(f"s_add_u32 m0, {s(sT0)}, {XS}")
        A(f"s_lshl_b32 {s(sT1)}, {s(sT1)}, 7")
        for q in range(2): A(dma(VN, R_X, sT1, q))
        A(f"s_and_b32 {s(sT0)}, {s(sT0)}, 4096"); A(f"s_add_u32 {s(sT0)}, {s(sT0)}, {XS}")
        A(f"s_lshl_b32 {s(sT1)}, {s(sKH)}, 6")
        A(f"v_xor_b32 {v(AD+10)}, {s(sT1)}, {v(RN)}")
        A(f"v_add_u32 {v(AD+10)}, {s(sT0)}, {v(AD+10)}")
        A(f"v_xor_b32 {v(AD+11)}, 32, {v(AD+10)}")
        A(f"v_lshlrev_b32 {v(AD+7)}, 2, {v(t0)}")
        A(f"s_lshl_b32 {s(sT1)}, {s(sW)}, 7"); A(f"s_add_u32 {s(sT1)}, {s(sT1)}, {SCR+16384}")
        A(f"v_lshl_add_u32 {v(AD+2)}, {v(t1)}, 4, {s(sT1)}")
        A(f"v_add_u32 {v(AD)}, {s(sT1)}, {v(AD+7)}")
        A(f"v_lshlrev_b32 {v(t2)}, 1, {v(t2)}")
        A(f"v_lshl_add_u32 {v(AD+1)}, {v(t1)}, 13, {v(t2)}")
        A(f"s_lshl1_add_u32 {s(sU3)}, {s(sTT2)}, {s(sKH)}"); A(f"s_lshl_b32 {s(sU3)}, {s(sU3)}, 8")
        A(f"s_add_u32 {s(sT3)}, {s(sU3)}, {WS_HF}")
        A(f"s_add_u32 {s(sU3)}, {s(sU3)}, {WS_OF}")
        A(f"v_and_b32 {v(AD+3)}, 12, {v(vL4)}")
        A(f"v_min_u32 {v(AD+6)}, 16, {v(vL4)}")
        A(f"s_xor_b32 {s(sT0)}, {s(sMX)}, 4096"); A(f"s_add_u32 {s(sT0)}, {s(sT0)}, {SCR}")
        A(f"v_add_u32 {v(AD+4)}, {s(sT0)}, {v(vL16)}")
        A(f"v_xor_b32 {v(AD+5)}, 4096, {v(AD+4)}")
        A(f"s_mul_i32 {s(sXO)}, {s(sTT2)}, 98304"); A(f"s_add_u32 {s(sXO)}, {s(sXO)}, {WS_ACT}")
        A(f"s_lshl_b32 {s(sU0)}, {s(sKH)}, 15"); A(f"s_add_u32 {s(sU0)}, {s(sU0)}, {s(sXO)}")
        A(f"s_lshl_b32 {s(sU1)}, {s(sKH)}, 14"); A(f"s_add_u32 {s(sU1)}, {s(sU1)}, {s(sXO)}"); A(f"s_add_u32 {s(sU1)}, {s(sU1)}, 65536")
        A(f"s_and_b32 {s(sT0)}, {s(sJ)}, 1"); A(f"s_lshl_b32 {s(sT0)}, {s(sT0)}, 13"); A(f"s_add_u32 {s(sU1)}, {s(sU1)}, {s(sT0)}")
        if opt.get('rot', 1):
            A(f"s_and_b32 {s(sT0)}, {s(sNB)}, 3"); A(f"s_lshl_b32 {s(sT0)}, {s(sT0)}, 12"); A(f"s_xor_b32 {s(sU1)}, {s(sU1)}, {s(sT0)}")
            A(f"s_lshl1_add_u32 {s(sU0)}, {s(sT0)}, {s(sU0)}")
        A(f"s_lshl_b32 {s(sU2)}, {s(sTT2)}, 7"); A(f"s_add_u32 {s(sU2)}, {s(sU2)}, {WS_G}")
        for q in range(4): A(f"v_mov_b64 {v(DF+2*q,2)}, 0")
        A(f"v_mov_b32 {v(t5)}, 0")
        A(f"v_and_b32 {v(t6)}, 48, {v(vL16)}")
    XS = SCR + 24576
    sFM = sMW; sTT2 = sWST; XF = TM2 + 16; DF = TM2 + 24

    def cmul_ops(dst, x, y, add=None):
        if add is None: o = f"v_pk_mul_f32 {v(dst,2)}, {v(x,2)}, {v(y,2)} op_sel_hi:[0,1]"
        else: o = f"v_pk_fma_f32 {v(dst,2)}, {v(x,2)}, {v(y,2)}, {v(add,2)} op_sel_hi:[0,1,1]"
        return [o, f"v_pk_fma_f32 {v(dst,2)}, {v(x,2)}, {v(y,2)}, {v(dst,2)} op_sel:[1,1,0] op_sel_hi:[1,0,1] neg_lo:[0,1,0]"]
    def cmul(*a_): run(cmul_ops(*a_))

    def spin(name, load, check):
        A(f"s_mov_b32 {s(sCNT)}, {SPIN}")
        A.label(name)
        load()
        A.wait_all(vm=True, lg=False, force=True)
        check()
        A(f"s_sub_u32 {s(sCNT)}, {s(sCNT)}, 1")
        A(f"s_cbranch_scc1 {name}_x")
        A(f"s_cbranch_vccnz {name}")
        A.label(name + "_x")
    def flag_store(soff, mask=1, voff=vZ):
        A(f"s_mov_b64 exec, {mask}")
        A(f"buffer_store_dword {v(vTAG)}, {v(voff)}, {s(R_WS,4)}, {s(soff)} offen sc1")
        A("s_mov_b64 exec, -1")
    def flag_addr(F, dst, tmp, base):
        F(f"s_lshr_b32 {s(tmp)}, {s(sJ)}, 2"); F(f"s_lshl1_add_u32 {s(dst)}, {s(sTT)}, {s(tmp)}"); F(f"s_lshl_b32 {s(dst)}, {s(dst)}, 6")
        F(f"s_and_b32 {s(tmp)}, {s(sJ)}, 3"); F(f"s_add_u32 {s(dst)}, {s(dst)}, {s(tmp)}"); F(f"s_lshl2_add_u32 {s(dst)}, {s(dst)}, {base}")

    def page_touch(r):
        if opt.get('nopg'): return
        A("s_mov_b64 exec, 0")
        for n in range(2):
            A(f"s_cmp_eq_u32 {s(sW)}, {n}")
            A(f"s_cbranch_scc1 L_pg_{r}_{n}")
        A.label(f"L_pgret_{r}")
        A("s_mov_b64 exec, -1")
    def poll_issue():
        A(f"buffer_load_dword {v(vF)}, {v(AD+3)}, {s(R_WS,4)}, {s(sT3)} offen sc1")
    A.label("L_ssm")
    page_touch('s')
    L1, KK, L16, L32 = PR + 4, PR + 6, PR + 8, PR + 10
    L2T = PR + 0
    LT, KT = PR + 14, PR + 18
    WG_ = PR + 22
    WSEG = PR + 30
    L128 = PR + 12
    A(f"global_load_dwordx4 {v(TMP+4,4)}, {v(vL16)}, {s(P_GW,2)}")
    GWS = SCR + 20480
    F = Fill()
    F(f"s_lshl_b32 {s(sT0)}, {s(sW)}, 10"); F(f"s_add_u32 {s(sT0)}, {s(sT0)}, {GWS}")
    F(f"v_add_u32 {v(AD+8)}, {s(sT0)}, {v(vL16)}")
    GR = TMP + 60
    sHF = sEPS
    F(f"s_lshl_b32 {s(sT0)}, {s(sW)}, 9")
    F(f"v_lshlrev_b32 {v(AD)}, 3, {v(vL)}")
    F(f"v_add_u32 {v(AD)}, {SCR}, {v(AD)}")
    F(f"v_add_u32 {v(AD+1)}, {s(sT0)}, {v(AD)}")
    F(f"s_lshl4_add_u32 {s(sT2)}, {s(sJ)}, {s(sC)}"); F(f"s_lshl_b32 {s(sT2)}, {s(sT2)}, 10")
    F(f"s_add_u32 {s(sT2)}, {s(sT2)}, {WS_AGG}")
    F(f"v_and_b32 {v(t4)}, 31, {v(vL)}")
    F(f"v_lshrrev_b32 {v(t5)}, 5, {v(vL)}")
    F(f"v_bfe_u32 {v(t6)}, {v(vL)}, 1, 2")
    F(f"v_lshlrev_b32 {v(t7)}, 1, {v(t5)}")
    F(f"v_xor_b32 {v(t6)}, {v(t6)}, {v(t7)}")
    F(f"v_lshlrev_b32 {v(t6)}, 4, {v(t6)}")
    F(f"v_lshl_add_u32 {v(t6)}, {v(t4)}, 6, {v(t6)}")
    F(f"s_add_u32 {s(sT1)}, {s(sMX)}, {SCR+4096}")
    F(f"v_add_u32 {v(AD+2)}, {s(sT1)}, {v(t6)}")
    F(f"v_xor_b32 {v(AD+3)}, 16, {v(AD+2)}")
    F(f"v_bfe_u32 {v(t4)}, {v(vL)}, 2, 2")
    F(f"v_lshl_add_u32 {v(t4)}, {v(t5)}, 3, {v(t4)}")
    F(f"v_bfe_u32 {v(t6)}, {v(vL)}, 4, 1"); F(f"v_bfe_u32 {v(t7)}, {v(vL)}, 1, 1")
    F(f"v_lshl_add_u32 {v(t6)}, {v(t6)}, 1, {v(t7)}")
    F(f"v_bfe_u32 {v(t7)}, {v(vL)}, 3, 1")
    F(f"v_xor_b32 {v(t6)}, {v(t6)}, {v(t7)}")
    F(f"v_lshlrev_b32 {v(t6)}, 4, {v(t6)}")
    F(f"v_lshl_add_u32 {v(t6)}, {v(t4)}, 6, {v(t6)}")
    F(f"v_and_b32 {v(t7)}, 1, {v(vL)}")
    F(f"v_lshl_add_u32 {v(t6)}, {v(t7)}, 3, {v(t6)}")
    F(f"v_add_u32 {v(AD+4)}, {s(sT1)}, {v(t6)}")
    F(f"v_xor_b32 {v(AD+5)}, 32, {v(AD+4)}")
    F(f"s_mul_i32 {s(sU3)}, {s(sTT)}, 98304"); F(f"s_lshl_b32 {s(sT0)}, {s(sJ)}, 13"); F(f"s_add_u32 {s(sU3)}, {s(sU3)}, {s(sT0)}")
    F(f"s_add_u32 {s(sU3)}, {s(sU3)}, {WS_ACT}")
    flag_addr(F, sHF, sT0, WS_HF)
    F(f"v_cvt_f32_u32 {v(t6)}, {s(sW)}")
    F(f"v_mul_f32 {v(t6)}, 0x42000000, {v(t6)}")
    F(lambda: A.wait(vm=tokP))
    get_tag(F)
    F(f"v_lshlrev_b32 {v(pLRE)}, 16, {v(pLRE)}")
    F(f"v_lshlrev_b32 {v(pLIM)}, 16, {v(pLIM)}")
    F(f"v_lshlrev_b32 {v(pLDT)}, 16, {v(pLDT)}")
    F(f"v_xor_b32 {v(pLIM)}, 0x80000000, {v(pLIM)}")
    F(f"v_mul_f32 {v(t0)}, 0x3fb8aa3b, {v(pLDT)}")
    F(f"v_exp_f32 {v(t0)}, {v(t0)}")
    F(f"v_mul_f32 {v(t5)}, {v(pLRE)}, {v(pLRE)}")
    F(f"v_cvt_pk_bf16_f32 {v(t0)}, {v(t0)}, {v(t0)}")
    F(f"v_and_b32 {v(t0)}, 0xffff0000, {v(t0)}")
    EXA, EXB = TMP, TMP + 1
    F(f"v_mul_f32 {v(EXA)}, {v(t0)}, {v(pLRE)}")
    F(f"v_mul_f32 {v(EXB)}, {v(t0)}, {v(pLIM)}")
    F(f"v_mul_f32 {v(EXA)}, 0x3fb8aa3b, {v(EXA)}")
    F(f"v_mul_f32 {v(EXB)}, 0.15915494, {v(EXB)}")
    def cexp(d, ea, eb):
        F(f"v_exp_f32 {v(t1)}, {v(ea)}")
        F(f"v_rndne_f32 {v(t3)}, {v(eb)}")
        F(f"v_sub_f32 {v(t2)}, {v(eb)}, {v(t3)}")
        F(f"v_cos_f32 {v(t3)}, {v(t2)}")
        F(f"v_sin_f32 {v(t4)}, {v(t2)}")
        F(f"v_mul_f32 {v(d)}, {v(t1)}, {v(t3)}")
        F(f"v_mul_f32 {v(d+1)}, {v(t1)}, {v(t4)}")
    cexp(L1, EXA, EXB)
    F(f"v_fmac_f32 {v(t5)}, {v(pLIM)}, {v(pLIM)}")
    F(f"v_rcp_f32 {v(t0)}, {v(t5)}")
    F(f"v_add_f32 {v(t1)}, -1.0, {v(L1)}")
    F(f"v_add_f32 {v(t0)}, {v(t0)}, {v(t0)}")
    F(f"v_mul_f32 {v(t2)}, {v(t1)}, {v(pLRE)}")
    F(f"v_fmac_f32 {v(t2)}, {v(L1+1)}, {v(pLIM)}")
    F(f"v_mul_f32 {v(t3)}, {v(L1+1)}, {v(pLRE)}")
    F(f"v_fma_f32 {v(t3)}, -{v(t1)}, {v(pLIM)}, {v(t3)}")
    F(f"v_mul_f32 {v(KK)}, {v(t2)}, {v(t0)}")
    F(f"v_mul_f32 {v(KK+1)}, {v(t3)}, {v(t0)}")
    cmul4(F, L2T, L1, L1); cmul4(F, t2, L2T, L2T); cmul4(F, t0, t2, t2); cmul4(F, L16, t0, t0)
    cmul4(F, L32, L16, L16); cmul4(F, t0, L32, L32); cmul4(F, L128, t0, t0)
    F(f"v_mul_f32 {v(EXA)}, {v(EXA)}, {v(t6)}"); F(f"v_mul_f32 {v(EXB)}, {v(EXB)}, {v(t6)}")
    cexp(WSEG, EXA, EXB)
    F(f"v_mul_f32 {v(EXA)}, 0x41800000, {v(EXA)}"); F(f"v_mul_f32 {v(EXB)}, 0x41800000, {v(EXB)}")
    cexp(t6, EXA, EXB)
    cmul4(F, WG_, t6, KK)
    for q in range(1, 4): cmul4(F, WG_ + 2 * q, WG_ + 2 * q - 2, L128)
    for (src, dst) in ((L2T, L2T), (L1, LT), (KK, KT)):
        if src != dst: F(f"v_mov_b64 {v(dst,2)}, {v(src,2)}")
        F(f"v_mov_b64 {v(dst+2,2)}, {v(src,2)}")
    F(f"v_mov_b32 {v(GR+1)}, {v(vTAG)}"); F(f"v_mov_b32 {v(GR+3)}, {v(vTAG)}")
    for dst in (L2T, LT, KT):
        for e in range(2): F(f"v_permlane32_swap_b32 {v(dst+e)}, {v(dst+2+e)}")
    so = [sT0, sT1, sT3, sU0]; ex = [sU1, sU2, sL2E, sL2E + 1]
    for q in range(4):
        F(f"s_lshl2_add_u32 {s(so[q])}, {s(sW)}, {q+1}")
        F(f"s_lshl_b32 {s(ex[q])}, {s(so[q])}, 10")
        F(f"s_sub_u32 {s(ex[q])}, {s(sT2)}, {s(ex[q])}")
        F(f"s_cmp_le_u32 {s(so[q])}, {s(sC)}", f"s_cselect_b32 {s(so[q])}, {s(ex[q])}, {WS_SIZE}", f"s_cselect_b32 {s(ex[q])}, {s(sTAG)}, 0")
    F.it = 2
    F(f"s_cmp_ge_u32 {s(sW)}, 2", "s_cselect_b64 exec, -1, 0", f"v_mov_b64 {v(TMP+4,2)}, 0", f"v_mov_b64 {v(TMP+6,2)}, 0", "s_mov_b64 exec, -1")
    F(f"ds_write_b128 {v(AD+8)}, {v(TMP+4,4)}")
    weight_touch(F)
    utok = main_loop('ssm', [wo_ops(0, 0), c_ops(1)], F)
    stamp(2)
    tok_wo = utok[8]
    SA = [TMP, TMP + 8]
    for m in range(1, 8):
        for ct in range(2):
            are, aim = ACC + 32 * ct + 2 * m, ACC + 32 * ct + 16 + 2 * m
            if m == 1: sre, sim = ACC + 32 * ct, ACC + 32 * ct + 16
            else: sre, sim = SA[m % 2] + 4 * ct, SA[m % 2] + 4 * ct + 2
            dre, dim = SA[(m + 1) % 2] + 4 * ct, SA[(m + 1) % 2] + 4 * ct + 2
            l2 = v(L2T + 2 * ct, 2)
            A(f"v_pk_fma_f32 {v(dre,2)}, {v(sre,2)}, {l2}, {v(are,2)} op_sel_hi:[1,0,1]")
            A(f"v_pk_fma_f32 {v(dim,2)}, {v(sim,2)}, {l2}, {v(aim,2)} op_sel_hi:[1,0,1]")
            A(f"v_pk_fma_f32 {v(dre,2)}, {v(sim,2)}, {l2}, {v(dre,2)} op_sel:[0,1,0]")
            A(f"v_pk_fma_f32 {v(dim,2)}, {v(sre,2)}, {l2}, {v(dim,2)} op_sel:[0,1,0] neg_lo:[0,1,0] neg_hi:[0,1,0]")
    S_ = SA[0]
    for e in range(4): A(f"v_permlane32_swap_b32 {v(S_+e)}, {v(S_+4+e)}")
    EA = TMP + 16; EB = TMP + 18
    for sg, d in ((0, EA), (1, EB)):
        b = S_ + 4 * sg
        A(f"v_fma_f32 {v(d)}, {v(L1)}, {v(b)}, {v(b+1)}")
        A(f"v_fma_f32 {v(d+1)}, {v(L1+1)}, {v(b)}, -{v(b+3)}")
        A(f"v_fma_f32 {v(d)}, {v(L1+1)}, {v(b+2)}, {v(d)}")
        A(f"v_fma_f32 {v(d+1)}, -{v(L1)}, {v(b+2)}, {v(d+1)}")
    cmul(EB, EA, L16, EB)
    A(f"ds_write_b64 {v(AD+1)}, {v(EB,2)}")
    A.wait_all(vm=False)
    A("s_barrier")
    EW = BUF
    tk = [A(f"ds_read_b64 {v(EW+2*q,2)}, {v(AD)} offset:{q*512}") for q in range(4)]
    PF = BUF + 8
    A(f"s_cmp_eq_u32 {s(sW)}, 0")
    A.wait(lg=tk[1]); cmul(PF, EW, L32, EW + 2)
    A.wait(lg=tk[2]); cmul(PF + 2, PF, L32, EW + 4)
    A.wait(lg=tk[3]); cmul(PF + 4, PF + 2, L32, EW + 6)
    A("s_cbranch_scc0 L_nopub")
    A(f"v_mov_b32 {v(GR)}, {v(PF+4)}"); A(f"v_mov_b32 {v(GR+2)}, {v(PF+5)}")
    snap = A.snapshot()
    A(f"buffer_store_dwordx4 {v(GR,4)}, {v(vL16)}, {s(R_WS,4)}, {s(sT2)} offen sc1")
    A.restore(snap)
    A.label("L_nopub")
    stamp(3)
    st_ = Stream(wo_ops(1, 65536))
    PW = BUF + 14; EK = BUF + 16
    ops = [f"v_mov_b32 {v(t0)}, 0", f"v_mov_b32 {v(t1)}, 0"]
    for q, src in ((1, EW), (2, PF), (3, PF + 2)):
        ops += [f"s_cmp_eq_u32 {s(sW)}, {q}", "s_cselect_b64 exec, -1, 0", f"v_mov_b64 {v(t0,2)}, {v(src,2)}"]
    ops += ["s_mov_b64 exec, -1"]
    run(ops)
    cmul(PW, t0, KK); cmul(EK, EA, KK)
    U = TMP
    def upair(ct, k): return U + 32 * ct + 2 * k
    ops = []
    for ct in range(2):
        for k in range(16):
            re, im = ACC + 32 * ct + (k & ~1), ACC + 32 * ct + 16 + (k & ~1)
            b = k & 1
            ops.append(f"v_pk_mul_f32 {v(upair(ct,k),2)}, {v(re,2)}, {v(KT+2*ct,2)} op_sel:[{b},0] op_sel_hi:[{b},1]")
            ops.append(f"v_pk_fma_f32 {v(upair(ct,k),2)}, {v(im,2)}, {v(KT+2*ct,2)}, {v(upair(ct,k),2)} op_sel:[{b},1,0] op_sel_hi:[{b},0,1] neg_hi:[0,1,0]")
    sprinkle(ops, st_, 8)
    st_.rest()
    LB = ACC
    stamp(23)
    def ld():
        for q in range(4): A(f"buffer_load_dwordx4 {v(LB+4*q,4)}, {v(vL16)}, {s(R_WS,4)}, {s(so[q])} offen sc1")
    def ck():
        A(f"v_xor_b32 {v(t0)}, {s(ex[0])}, {v(LB+1)}")
        for r in (3, 5, 7, 9, 11, 13, 15):
            A(f"v_bitop3_b32 {v(t0)}, {v(t0)}, {v(LB+r)}, {s(ex[r//4])} bitop3:0xf6")
        A(f"v_cmp_ne_u32 vcc, 0, {v(t0)}")
    A.wait(vm=tok_wo)
    A("s_barrier")
    wr = wo_reads(0, RW, 0)
    PA = opt.get('pollat', 32)
    run(wr[:PA])
    ld()
    run(wr[PA:])
    A.wait_all(vm=True, lg=False, force=True)
    ck()
    A("s_nop 0")
    A("s_cbranch_vccz L_pagg_x")
    spin("L_pagg", ld, ck)
    stamp(4)
    for q in range(4):
        if q == 0: A(f"v_pk_mul_f32 {v(t0,2)}, {v(LB,2)}, {v(WG_,2)} op_sel_hi:[0,1]")
        else: A(f"v_pk_fma_f32 {v(t0,2)}, {v(LB+4*q,2)}, {v(WG_+2*q,2)}, {v(t0,2)} op_sel_hi:[0,1,1]")
        A(f"v_pk_fma_f32 {v(t0,2)}, {v(LB+4*q+2,2)}, {v(WG_+2*q,2)}, {v(t0,2)} op_sel:[0,1,0] op_sel_hi:[0,0,1] neg_lo:[0,1,0]")
    A(f"ds_write_b64 {v(AD+1)}, {v(t0,2)} offset:2048")
    A.wait_all(vm=False)
    A("s_barrier")
    stamp(24)
    for q in range(4): tok = A(f"ds_read_b64 {v(EW+2*q,2)}, {v(AD)} offset:{2048+q*512}")
    A.wait(lg=tok)
    A(f"v_pk_add_f32 {v(EW,2)}, {v(EW,2)}, {v(EW+2,2)}")
    A(f"v_pk_add_f32 {v(EW+4,2)}, {v(EW+4,2)}, {v(EW+6,2)}")
    A(f"v_pk_add_f32 {v(EW,2)}, {v(EW,2)}, {v(EW+4,2)}")
    cmul(t0, EW, WSEG, PW)
    cmul(t2, t0, L16, EK)
    A(f"v_permlane32_swap_b32 {v(t0)}, {v(t2)}")
    A(f"v_permlane32_swap_b32 {v(t1)}, {v(t3)}")
    HP = ACC; HT = ACC + 32
    rtok = []
    def h_reads(ct):
        for f in range(4 * ct, 4 * ct + 4):
            A(f"ds_read_b64_tr_b16 {v(HT+4*f,2)}, {v(AD+4)} offset:{(f%4)*1024}")
            rtok.append(A(f"ds_read_b64_tr_b16 {v(HT+4*f+2,2)}, {v(AD+5)} offset:{(f%4)*1024+256}"))
    def h_store(f):
        A.wait(lg=rtok[f])
        if f == 4: A(f"s_add_u32 {s(sU3)}, {s(sU3)}, 4096")
        return A(f"buffer_store_dwordx4 {v(HT+4*f,4)}, {v(vL16)}, {s(R_WS,4)}, {s(sU3)} offen offset:{(f%4)*1024} sc1")
    for ct in range(2):
        for k in range(16):
            src = t0 + 2 * ct if k == 0 else upair(ct, k - 1)
            cmul(upair(ct, k), src, LT + 2 * ct, upair(ct, k))
            if k & 1:
                for cp in range(2):
                    A(f"v_cvt_pk_bf16_f32 {v(HP+8*(2*ct+cp)+k//2)}, {v(upair(ct,k-1)+cp)}, {v(upair(ct,k)+cp)}")
            if k in (7, 15):
                for m in (2 * ct, 2 * ct + 1):
                    A(f"ds_write_b128 {v(AD+2+k//8)}, {v(HP+8*m+4*(k//8),4)} offset:{(m%2)*2048}")
            if ct == 1 and k == 3: h_reads(0)
            if ct == 1 and k in (9, 11, 13, 15): h_store((k - 9) // 2)
    stamp(25)
    h_reads(1)
    for f in range(4, 8): tok_h = h_store(f)
    stamp(5)
    rest = Stream(c_ops(3) + c_ops(0))
    A(f"v_add_u32 {v(RW)}, 0x10000, {v(RW)}"); A(f"v_add_u32 {v(RW+1)}, 0x10000, {v(RW+1)}")
    sprinkle(wo_reads(1, RW, 0), rest, 32 // opt.get('sdrain', 4))
    assert not rest.ops[0].startswith('buffer')
    p2_setup()
    A.wait(vm=tok_h)
    flag_store(sHF)
    stamp(6)
    A.wait_all(vm=False)
    A("s_barrier")
    rest.rest()
    run(c_ops(2))
    stamp(26)
    A(f"s_mov_b32 {s(sFM)}, 0")
    A(f"s_cmp_eq_u32 {s(sJ)}, 0")
    A("s_cbranch_scc0 L_nogate")
    GD = ACC
    A(f"s_lshl_b32 {s(sT0)}, {s(sK0)}, 7"); A(f"s_add_u32 {s(sT0)}, {s(sT0)}, {GWS}")
    A(f"v_lshrrev_b32 {v(t0)}, 5, {v(vL)}")
    A(f"v_lshl_add_u32 {v(AD+9)}, {v(t0)}, 4, {s(sT0)}")
    A(f"v_lshrrev_b32 {v(t0)}, 4, {v(vL)}"); A(f"v_xor_b32 {v(t0)}, {v(t0)}, {v(vL)}"); A(f"v_and_b32 {v(t0)}, 1, {v(t0)}")
    A(f"v_lshl_add_u32 {v(AD+9)}, {v(t0)}, 11, {v(AD+9)}")
    toks = []
    for st in range(8): toks.append(A(f"ds_read_b128 {v(BUF+4*st,4)}, {v(AD+9)} offset:{st*32}"))
    for st in range(32):
        A.wait(lg=toks[st])
        A(f"v_mfma_f32_16x16x32_bf16 {v(GD+8,4)}, {v(BUF+4*(st%8),4)}, {a(4*st,4)}, {'0' if st == 0 else v(GD+8,4)}")
        if st + 8 < 32: toks.append(A(f"ds_read_b128 {v(BUF+4*(st%8),4)}, {v(AD+9)} offset:{(st+8)*32}"))
    A(f"v_bfe_u32 {v(t0)}, {v(vL)}, 2, 1"); A(f"v_bfe_u32 {v(t1)}, {v(vL)}, 3, 2"); A(f"v_and_b32 {v(t2)}, 12, {v(vL4)}")
    A(f"v_lshl_add_u32 {v(t2)}, {v(t1)}, 4, {v(t2)}")
    A(f"v_lshl_add_u32 {v(t2)}, {v(t0)}, 6, {v(t2)}")
    A(f"s_lshl_b32 {s(sT0)}, {s(sTT)}, 7"); A(f"s_add_u32 {s(sT0)}, {s(sT0)}, {WS_G}")
    A(f"s_lshl_b32 {s(sT2)}, {s(sTT)}, 9"); A(f"s_add_u32 {s(sT2)}, {s(sT2)}, {WS_OF+16}")
    A(f"s_mov_b32 {s(sFM)}, 3")
    sel_exec(0xffff0000, 0xffff0000)
    A(f"v_mov_b32 {v(GD+8)}, {v(GD+9)}")
    A("s_mov_b64 exec, -1")
    A(f"v_mul_f32 {v(t0)}, 0xbfb8aa3b, {v(GD+8)}")
    A(f"v_exp_f32 {v(t0)}, {v(t0)}")
    A(f"v_add_f32 {v(t0)}, 1.0, {v(t0)}")
    A(f"v_rcp_f32 {v(t0)}, {v(t0)}")
    A("s_nop 0")
    A(f"buffer_store_dword {v(t0)}, {v(t2)}, {s(R_WS,4)}, {s(sT0)} offen sc1")
    A.label("L_nogate")
    poll_issue()
    A("s_branch L_phase2")

    A.restore(snap0)
    A.raw(".p2align 12")
    A.label("L_attn")
    page_touch('a')
    epoch_load()
    F = Fill()

    NL = AD + 10
    ONES = TMP + 48
    LA = TMP + 56
    sOA, sOF = sT0, sT1
    F(f"s_lshl2_add_u32 {s(sT2)}, {s(sJ)}, {s(sW)}")
    F(f"s_lshl4_add_u32 {s(sT3)}, {s(sT2)}, {s(sC)}")
    F(f"s_lshl_b32 {s(sU1)}, {s(sT3)}, 10"); F(f"s_add_u32 {s(sU1)}, {s(sU1)}, {WS_KVP}")
    F(f"s_lshl_b32 {s(sU2)}, {s(sT3)}, 6"); F(f"s_add_u32 {s(sU2)}, {s(sU2)}, {WS_ZP}")
    F(f"v_mov_b64 {v(TMP,2)}, -1"); F(f"v_mov_b64 {v(TMP+2,2)}, -1")
    F(f"s_mov_b32 {s(sL2E)}, 0x3fb8aa3b"); F(f"s_mov_b32 {s(sL2E+1)}, 0x3fb8aa3b")
    F(f"s_mov_b32 {s(sEPS)}, 0x358637bd"); F(f"s_mov_b32 {s(sEPS+1)}, 0x358637bd")
    F(f"v_mov_b32 {v(NL)}, 0xbfb8aa3b"); F(f"v_mov_b32 {v(NL+1)}, 0xbfb8aa3b")
    SEL = TMP + 32
    F(f"v_bfe_u32 {v(t0)}, {v(vL)}, 2, 2")
    F(f"v_mov_b32 {v(t1)}, 0x3f803f80")
    for hd in range(4):
        F(f"v_cmp_eq_u32 vcc, {hd}, {v(t0)}", f"v_cndmask_b32 {v(SEL+4*hd)}, 0, {v(t1)}, vcc")
        F(f"v_mov_b32 {v(SEL+4*hd+1)}, {v(SEL+4*hd)}")
        F(f"v_mov_b64 {v(SEL+4*hd+2,2)}, {v(SEL+4*hd,2)}")
    F(f"s_lshl_b32 {s(sU0)}, {s(sT2)}, 11"); F(f"s_add_u32 {s(sU0)}, {s(sU0)}, {WS_KVF}")
    F(f"s_lshl_b32 {s(sT3)}, {s(sC)}, 7"); F(f"s_add_u32 {s(sT3)}, {s(sT3)}, {s(sU0)}")
    F(f"v_lshrrev_b32 {v(AD+8)}, 2, {v(vL)}"); F(f"v_lshlrev_b32 {v(AD+8)}, 7, {v(AD+8)}")
    F(f"s_lshl_b32 {s(sT0)}, {s(sW)}, 10"); F(f"s_add_u32 {s(sT0)}, {s(sT0)}, {SCR}")
    F(f"v_add_u32 {v(AD)}, {s(sT0)}, {v(vL16)}")
    F(f"s_add_u32 {s(sT0)}, {s(sMX)}, {SCR}")
    F(f"v_add_u32 {v(AD+1)}, {s(sT0)}, {v(vL16)}")
    F(f"s_lshl_b32 {s(sT0)}, {s(sW)}, 8"); F(f"s_add_u32 {s(sT0)}, {s(sT0)}, {SCR+16384}")
    F(f"v_add_u32 {v(AD+2)}, {s(sT0)}, {v(vL4)}")
    F(f"s_lshl_b32 {s(sT0)}, {s(sW)}, 6"); F(f"s_add_u32 {s(sT0)}, {s(sT0)}, {SCR+16384}")
    F(f"v_and_b32 {v(AD+4)}, 60, {v(vL4)}")
    F(f"v_add_u32 {v(AD+3)}, {s(sT0)}, {v(AD+4)}")
    F(f"v_add_u32 {v(AD+6)}, {SCR}, {v(RW)}"); F(f"v_add_u32 {v(AD+7)}, {SCR}, {v(RW+1)}")
    F(f"v_add_u32 {v(AD+4)}, 0x18000, {v(RW)}"); F(f"v_add_u32 {v(AD+5)}, 0x18000, {v(RW+1)}")
    KVS, ZS = SCR + 20480, SCR + 22528
    F(f"s_lshr_b32 {s(sT0)}, {s(sW)}, 1"); F(f"s_lshl_b32 {s(sT0)}, {s(sT0)}, 10")
    F(f"s_lshl_b32 {s(sT1)}, {s(sKH)}, 8"); F(f"s_add_u32 {s(sT1)}, {s(sT1)}, {s(sT0)}"); F(f"s_add_u32 {s(sT1)}, {s(sT1)}, {KVS}")
    F(f"v_and_b32 {v(t4)}, 0xf0, {v(vL16)}"); F(f"v_bfe_u32 {v(t5)}, {v(vL)}, 4, 1"); F(f"v_lshrrev_b32 {v(t6)}, 5, {v(vL)}")
    F(f"v_lshl_add_u32 {v(t4)}, {v(t5)}, 9, {v(t4)}"); F(f"v_lshl_add_u32 {v(t4)}, {v(t6)}, 3, {v(t4)}")
    F(f"v_add_u32 {v(LA)}, {s(sT1)}, {v(t4)}")
    F(f"s_lshl_b32 {s(sT1)}, {s(sKH)}, 5"); F(f"s_add_u32 {s(sT1)}, {s(sT1)}, {s(sT0)}"); F(f"s_add_u32 {s(sT1)}, {s(sT1)}, {ZS}")
    F(f"v_bfe_u32 {v(t4)}, {v(vL)}, 2, 1"); F(f"v_bfe_u32 {v(t5)}, {v(vL)}, 3, 1"); F(f"v_and_b32 {v(t6)}, 3, {v(vL)}")
    F(f"v_lshl_add_u32 {v(t6)}, {v(t6)}, 1, {s(sT1)}")
    F(f"v_lshl_add_u32 {v(t6)}, {v(t5)}, 3, {v(t6)}")
    F(f"v_lshl_add_u32 {v(LA+1)}, {v(t4)}, 4, {v(t6)}")
    F(f"v_add_u32 {v(LA+2)}, {KVS}, {v(vL16)}")
    F(f"v_mov_b32 {v(LA+3)}, {v(LA+2)}")
    F(f"v_lshrrev_b32 {v(t5)}, 5, {v(vL)}")
    F(f"v_lshlrev_b32 {v(t5)}, 4, {v(t5)}")
    F(lambda: sel_exec(0xffff0000, 0xffff0000), f"v_add_u32 {v(LA+2)}, {ZS}, {v(t5)}", "s_mov_b64 exec, -1")
    F(lambda: sel_exec(0x0000ffff, 0x0000ffff), f"v_add_u32 {v(LA+3)}, {ZS+32}, {v(t5)}", "s_mov_b64 exec, -1")
    F(f"v_bfe_u32 {v(t5)}, {v(vL)}, 3, 2"); F(f"v_and_b32 {v(t6)}, 35, {v(vL)}")
    F(f"v_lshl_add_u32 {v(t6)}, {v(t5)}, 2, {v(t6)}")
    F(f"v_lshl_add_u32 {v(t6)}, {v(t4)}, 4, {v(t6)}")
    F(f"v_lshlrev_b32 {v(LA+4)}, 4, {v(t6)}")
    F(f"s_mul_i32 {s(sOA)}, {s(sTT)}, 98304"); F(f"s_lshl_b32 {s(sT1)}, {s(sJ)}, 12"); F(f"s_add_u32 {s(sOA)}, {s(sOA)}, {s(sT1)}")
    F(f"s_add_u32 {s(sOA)}, {s(sOA)}, {WS_ACT+65536}")
    flag_addr(F, sOF, sU3, WS_OF)
    F.it = opt.get('clrit', 2)
    tok_clr = []
    F(f"buffer_store_dwordx4 {v(TMP,4)}, {v(vL16)}, {s(R_WS,4)}, {s(sU1)} offen sc1")
    F("s_mov_b64 exec, 0xffff", lambda: tok_clr.append(A(f"buffer_store_dword {v(TMP)}, {v(vL4)}, {s(R_WS,4)}, {s(sU2)} offen sc1")), "s_mov_b64 exec, -1")
    get_tag(F)
    F.it += 2
    F(lambda: A.wait(vm=tok_clr[0]), lambda: flag_store(sT3))
    weight_touch(F)
    utok = main_loop('attn', [wq_ops(0), wq_ops(1)], F)
    tokF = [A(f"buffer_load_dword {v(vF)}, {v(AD+8)}, {s(R_WS,4)}, {s(sU0)} offen sc1")]
    stamp(2)
    tok_wq = utok[9]
    A("s_barrier")
    def phi_ops(src, dst):
        L = []
        def fin(sr, pp, d):
            L.append(f"v_max_f32 {v(pp)}, {v(pp)}, {v(sr)}")
            L.append(f"v_max_f32 {v(pp+1)}, {v(pp+1)}, {v(sr+1)}")
            L.append(f"v_pk_add_f32 {v(pp,2)}, {v(pp,2)}, {s(sEPS,2)}")
            L.append(f"v_cvt_pk_bf16_f32 {v(d)}, {v(pp)}, {v(pp+1)}")
        for k in range(0, 16, 2):
            tt = t0 + 2 * ((k // 2) % 4)
            L.append(f"v_pk_fma_f32 {v(tt,2)}, {v(src+k,2)}, {s(sL2E,2)}, {v(NL,2)}")
            L.append(f"v_exp_f32 {v(tt)}, {v(tt)} clamp")
            L.append(f"v_exp_f32 {v(tt+1)}, {v(tt+1)} clamp")
            if k >= 2: fin(src + k - 2, t0 + 2 * ((k // 2 - 1) % 4), dst + k // 2 - 1)
        fin(src + 14, t0 + 2 * (7 % 4), dst + 7)
        return L
    PK, PV = TMP, TMP + 16
    ZD = TM2; KD = TM2 + 4
    st_ = Stream(wo_ops(0, 98304) + c_ops(2))
    def swaps(b): return [f"v_permlane16_swap_b32 {v(b+r)}, {v(b+4+r)}" for r in range(4)]
    e1 = phi_ops(ACC, PK) + [f"v_cvt_pk_bf16_f32 {v(PV+k)}, {v(ACC+32+2*k)}, {v(ACC+32+2*k+1)}" for k in range(16)]
    e1 += swaps(PK) + swaps(PV) + swaps(PV + 8) + phi_ops(ACC + 16, PK + 8)
    E0 = opt.get('e1skip', 20)
    run(e1[:E0])
    vm0 = A.vm
    sprinkle(e1[E0:], st_, opt.get('e1every', 10))
    tok_wo0 = vm0 + 8
    stamp(40)
    sw = swaps(PK + 8)
    def kvm(hd): A(f"v_mfma_f32_16x16x32_bf16 {v(KD+4*hd,4)}, {v(PK+4*hd,4)}, {v(PV+4*hd,4)}, 0")
    def zm(hd): A(f"v_mfma_f32_16x16x32_bf16 {v(ZD,4)}, {v(SEL+4*hd,4)}, {v(PK+4*hd,4)}, {'0' if hd == 0 else v(ZD,4)}")
    kvm(0); run(sw[:2]); kvm(1); run(sw[2:]); zm(0); zm(1); kvm(2); kvm(3); zm(2); zm(3)
    stamp(41)
    for hd in range(4):
        A(f"ds_write_b128 {v(AD)}, {v(KD+4*hd,4)} offset:{hd*4096}")
    A(f"ds_write_b32 {v(AD+2)}, {v(ZD)}")
    st_.dma(opt.get('e1d', 2))
    stamp(42)
    A.wait(vm=tokF[0])
    stamp(43)
    A(f"v_cmp_ne_u32 vcc, {v(vF)}, {v(vTAG)}")
    A.wait_all(vm=False)
    A("s_barrier")
    stamp(44)
    for q in range(4): tk = A(f"ds_read_b128 {v(ACC+4*q,4)}, {v(AD+1)} offset:{q*1024}")
    for q in range(4): tz = A(f"ds_read_b32 {v(ACC+16+q)}, {v(AD+3)} offset:{q*256}")
    QA = TM2
    def qreads(ks):
        b = BUF + 8 * (ks % 4)
        L = []
        for tl in range(2):
            base = (ks // 4) * 8192 + (ks % 4) * 2048
            L.append(f"ds_read_b64_tr_b16 {v(b+4*tl,2)}, {v(RT+tl)} offset:{base}")
            L.append(f"ds_read_b64_tr_b16 {v(b+4*tl+2,2)}, {v(RT+tl)} offset:{base+512}")
        return L
    toks = [run(qreads(0))]
    st_.dma(1)
    A.wait(lg=tk)
    for e in (0, 2):
        A(f"v_pk_add_f32 {v(ACC+e,2)}, {v(ACC+e,2)}, {v(ACC+4+e,2)}")
        A(f"v_pk_add_f32 {v(ACC+8+e,2)}, {v(ACC+8+e,2)}, {v(ACC+12+e,2)}")
        A(f"v_pk_add_f32 {v(ACC+e,2)}, {v(ACC+e,2)}, {v(ACC+8+e,2)}")
    for e in range(4): A(f"v_min_u32 {v(ACC+e)}, -2, {v(ACC+e)}")
    A(f"buffer_store_dwordx4 {v(ACC,4)}, {v(vL16)}, {s(R_WS,4)}, {s(sU1)} offen sc1")
    A.wait(lg=tz)
    A(f"v_pk_add_f32 {v(ACC+16,2)}, {v(ACC+16,2)}, {v(ACC+18,2)}")
    A(f"v_add_f32 {v(ACC+16)}, {v(ACC+16)}, {v(ACC+17)}")
    A(f"v_min_u32 {v(ACC+16)}, -2, {v(ACC+16)}")
    A("s_mov_b64 exec, 0xffff")
    A(f"buffer_store_dword {v(ACC+16)}, {v(vL4)}, {s(R_WS,4)}, {s(sU2)} offen sc1")
    A("s_mov_b64 exec, -1")
    stamp(3)
    st_.rest()
    tok_e1 = st_.last
    A("s_cbranch_vccz L_clr_x")
    snap = A.snapshot()
    def ld(): A(f"buffer_load_dword {v(vF)}, {v(AD+8)}, {s(R_WS,4)}, {s(sU0)} offen sc1")
    def ck(): A(f"v_cmp_ne_u32 vcc, {v(vF)}, {v(vTAG)}")
    spin("L_clr", ld, ck)
    A.restore(snap)
    toks.append(run(qreads(1)))
    A(f"s_and_b32 {s(sU1)}, {s(sC)}, {3 if opt.get('rotkv', 1) else 0}"); A(f"s_lshl2_add_u32 {s(sU1)}, {s(sT2)}, {s(sU1)}")
    A(f"s_lshl_b32 {s(sU1)}, {s(sU1)}, 12"); A(f"s_add_u32 {s(sU1)}, {s(sU1)}, {WS_KVP}")
    A(f"s_lshl_b32 {s(sU2)}, {s(sT2)}, 10"); A(f"s_add_u32 {s(sU2)}, {s(sU2)}, {WS_ZP}")
    ZL = TMP + 52
    def kv_loads():
        L = [f"buffer_load_dword {v(ZL+q)}, {v(vL4)}, {s(R_WS,4)}, {s(sU2)} offen offset:{q*256} sc1" for q in range(4)]
        for q in range(16):
            if q % 4 == 0: L.append(f"s_xor_b32 {s(sD1)}, {s(sU1)}, {q*1024}")
            L.append(f"buffer_load_dwordx4 {v(ACC+4*q,4)}, {v(vL16)}, {s(R_WS,4)}, {s(sD1)} offen offset:{(q%4)*1024} sc1")
        return L
    KVAT = opt.get('kvat', 25)
    side = None; wrd = None
    for ks in range(32):
        if ks == 0:
            A.wait(vm=tok_wo0)
            A("s_barrier")
            side = Stream(wo_ops(1, SCR)); wrd = Stream(wo_reads(0, AD + 4, 0))
        if ks == 8:
            side.rest(); tok_wo1 = A.vm
            tok_wr = A.lg
        if ks == 9:
            A.wait(lg=tok_wr)
            A("s_barrier")
            side = Stream(c_ops(3))
        if ks == 17:
            side.rest()
            A.wait(vm=tok_wo1)
            A("s_barrier")
            stamp(23)
            side = Stream(c_ops(0)); wrd = Stream(wo_reads(1, AD + 6, 0))
        if ks == KVAT:
            side.rest()
            side = Stream(kv_loads())
            side.dma(2)
        A.wait(lg=toks[ks])
        stamp(200 + ks)
        rd = qreads(ks + 2) if ks + 2 < 32 else []
        b = BUF + 8 * (ks % 4)
        for tl in range(2):
            A(f"v_mfma_f32_32x32x16_bf16 {v(QA+16*tl,16)}, {v(b+4*tl,4)}, {a(4*ks,4)}, {'1.0' if ks == 0 else v(QA+16*tl,16)}")
            if tl == 0:
                run(rd); toks.append(A.lg)
                if wrd and (ks < 8 or ks >= 30): wrd.some(2)
            else:
                if wrd: wrd.some(2)
                if side: side.dma()
    wrd.rest()
    stamp(24)
    PQ = TMP
    sprinkle(phi_ops(QA, PQ) + phi_ops(QA + 16, PQ + 8), side, opt.get('kvevery', 10))
    side.rest()
    tok_kv = A.vm
    A.wait_all(vm=False)
    A("s_barrier")
    stamp(25)
    A(f"s_mov_b32 {s(sCNT)}, {SPIN}")
    stamp(4)
    def kv_sum(fast, last):
        A.wait(vm=last - 15)
        if not fast:
            A(f"v_max3_u32 {v(t2)}, {v(ZL)}, {v(ZL+1)}, {v(ZL+2)}")
            A(f"v_max3_u32 {v(t2)}, {v(t2)}, {v(ZL+3)}, {v(ACC)}")
            A(f"v_max3_u32 {v(t2)}, {v(t2)}, {v(ACC+1)}, {v(ACC+2)}")
            A(f"v_max_u32 {v(t2)}, {v(t2)}, {v(ACC+3)}")
        A(f"v_pk_add_f32 {v(ZL,2)}, {v(ZL,2)}, {v(ZL+2,2)}")
        A(f"v_add_f32 {v(t0)}, {v(ZL)}, {v(ZL+1)}")
        A(f"v_mov_b32 {v(t1)}, {v(t0)}")
        for q in range(1, 16):
            if q in (1, 8, 12, 14, 15) or not fast: A.wait(vm=last - 15 + ({1: 7, 8: 11, 12: 13}.get(q, q) if fast else q))
            if fast: stamp(50 + q)
            else:
                for e in (0, 2): A(f"v_max3_u32 {v(t2)}, {v(t2)}, {v(ACC+4*q+e)}, {v(ACC+4*q+e+1)}")
            for e in (0, 2): A(f"v_pk_add_f32 {v(ACC+e,2)}, {v(ACC+e,2)}, {v(ACC+4*q+e,2)}")
            if q in (1, 2):
                A(f"v_permlane{32 if q == 1 else 16}_swap_b32 {v(t0)}, {v(t1)}")
                A(f"v_add_f32 {v(t0)}, {v(t0)}, {v(t1)}")
                if q == 1: A(f"v_mov_b32 {v(t1)}, {v(t0)}")
        if fast:
            A(f"v_pk_add_f32 {v(t2,2)}, {v(ACC,2)}, {v(ACC+2,2)}")
            A(f"v_add_f32 {v(t2)}, {v(t2)}, {v(t0)}")
            A(f"v_cmp_u_f32 vcc, {v(t2)}, {v(t3)}")
        else:
            A(f"v_cmp_eq_u32 vcc, -1, {v(t2)}")
        A(f"v_cvt_pk_bf16_f32 {v(t0)}, {v(t0)}, {v(t0)}")
    cs = Stream(c_ops(1))
    cs.dma(opt.get('c1pre', 2))
    kv_sum(True, tok_kv)
    A("s_cbranch_vccnz L_kvretry")
    snap_kv = A.snapshot()
    A.label("L_kvok")
    stamp(5)
    A(f"ds_write_b16 {v(LA+1)}, {v(t0)}")
    A(f"v_cvt_pk_bf16_f32 {v(t2)}, {v(ACC)}, {v(ACC+1)}")
    A(f"v_cvt_pk_bf16_f32 {v(t3)}, {v(ACC+2)}, {v(ACC+3)}")
    A(f"ds_write_b64 {v(LA)}, {v(t2,2)}")
    A.wait_all(vm=False)
    A("s_barrier")
    stamp(70)
    AF = TMP + 16
    toks = []
    for hd4 in range(4): toks.append(A(f"ds_read_b128 {v(AF+4*hd4,4)}, {v(LA+2+(hd4&1))} offset:{(hd4>>1)*1024}"))
    side = cs
    side.dma(2)
    for hd4 in range(4):
        A.wait(lg=toks[hd4])
        A(f"v_mfma_f32_32x32x16_bf16 {v(ACC+16*hd4,16)}, {v(AF+4*hd4,4)}, {v(PQ+4*hd4,4)}, 0")
        side.dma()
    stamp(71)
    OP = TMP + 32
    for hd4 in range(4):
        hd = hd4 & 1
        nb_, db_ = ACC + 16 * hd4 + 8 * hd, ACC + 16 * hd4 + 8 * (1 - hd)
        A(f"v_add_f32 {v(db_)}, {s(sEPS)}, {v(db_)}")
        A(f"v_rcp_f32 {v(db_)}, {v(db_)}")
        for e in range(0, 8, 2): A(f"v_pk_mul_f32 {v(nb_+e,2)}, {v(nb_+e,2)}, {v(db_,2)} op_sel_hi:[1,0]")
        for e in range(0, 8, 2): A(f"v_cvt_pk_bf16_f32 {v(OP+4*hd4+e//2)}, {v(nb_+e)}, {v(nb_+e+1)}")
        tok_o = A(f"buffer_store_dwordx4 {v(OP+4*hd4,4)}, {v(LA+4)}, {s(R_WS,4)}, {s(sOA)} offen offset:{hd4*1024} sc1")
    stamp(26)
    side.rest()
    A(f"s_mov_b32 {s(sT2)}, {s(sOF)}"); A(f"s_mov_b32 {s(sFM)}, 1")
    p2_setup()
    stamp(6)

    poll_issue()
    A("s_branch L_phase2")
    A.raw(".p2align 12")
    A.label("L_phase2")
    A.hist = []
    stamp(7)
    def ld(): A(f"buffer_load_dword {v(vF)}, {v(AD+3)}, {s(R_WS,4)}, {s(sT3)} offen sc1")
    def ck(): A(f"v_cmp_ne_u32 vcc, {v(vF)}, {v(vTAG)}")
    A(f"v_lshlrev_b32 {v(t3)}, 8, {v(vL)}")
    A(f"s_cmp_eq_u32 {s(sFM)}, 0")
    A.wait_all(vm=True, lg=True, force=True)
    A("s_cbranch_scc1 L_noflag")
    A(f"s_mov_b32 exec_lo, {s(sFM)}"); A("s_mov_b32 exec_hi, 0")
    A(f"buffer_store_dword {v(vTAG)}, {v(t3)}, {s(R_WS,4)}, {s(sT2)} offen sc1")
    A("s_mov_b64 exec, -1")
    A.vm -= 1
    A.label("L_noflag")
    ck()
    A("s_barrier")
    A("s_cbranch_vccz L_ph_x")
    spin("L_ph", ld, ck)
    stamp(8)
    AHEAD = opt.get('ahead', 10)
    GG = TM2
    def load_ops(n):
        o = []
        if n < 32:
            if n % 4 == 0 and n: o.append(f"s_xor_b32 {s(sU0)}, {s(sU0)}, {((n//4) ^ (n//4-1)) << 12}")
            o.append(f"buffer_load_dwordx4 {a(4*n,4)}, {v(vL16)}, {s(R_WS,4)}, {s(sU0)} offen offset:{(n%4)*1024} sc1")
        else:
            k = n - 32
            if k == 0: o.append(f"buffer_load_dword {v(vE)}, {v(AD+7)}, {s(R_WS,4)}, {s(sU2)} offen sc1")
            if k % 4 == 0 and k: o.append(f"s_xor_b32 {s(sU1)}, {s(sU1)}, {0x3000 if k == 8 else 0x1000}")
            o.append(f"buffer_load_dwordx4 {v(TMP+4*k,4)}, {v(vL16)}, {s(R_WS,4)}, {s(sU1)} offen offset:{(k%4)*1024} sc1")
        return o
    def creads(ks):
        jb, m, st = ks >> 3, (ks >> 1) & 3, ks & 1
        ct, cp = m >> 1, m & 1
        b = BUF + 8 * (ks % 4)
        off = jb * 16384 + cp * 8192
        return [f"ds_read_b128 {v(b,4)}, {v(RA+2*ct+st)} offset:{off}", f"ds_read_b128 {v(b+4,4)}, {v(RB+2*ct+st)} offset:{off}"]
    ltok = [run(load_ops(k)) for k in range(4)]
    for q in range(2): tx = A(f"ds_read_b128 {v(XF+4*q,4)}, {v(AD+10+q)}")
    A(f"v_lshlrev_b64 {v(t4,2)}, {v(t6)}, {v(t4,2)}")
    for q in range(4):
        m = 0xf << (16 * (q >> 1) + 4 * (q & 1))
        sel_exec(m, m << 8)
        A(f"v_mov_b64 {v(DF+2*q,2)}, {v(t4,2)}")
        A("s_mov_b64 exec, -1")
        ltok.append(run(load_ops(4 + q)))
    ctok = [run(creads(k)) for k in range(3)]
    A.wait(lg=tx)
    for q in range(2): A(f"v_mfma_f32_32x32x16_bf16 {v(ACC,16)}, {v(XF+4*q,4)}, {v(DF+4*q,4)}, {'0' if q == 0 else v(ACC,16)}")
    ltok += [run(load_ops(k)) for k in range(8, AHEAD)]
    KCHK = 32 - AHEAD
    def step2a(ks, more):
        A.wait(vm=ltok[ks], lg=ctok[ks])
        stamp(100 + ks)
        b = BUF + 8 * (ks % 4)
        A(f"v_mfma_f32_32x32x16_bf16 {v(ACC,16)}, {a(4*ks,4)}, {v(b,4)}, {v(ACC,16)}")
        if more: ltok.append(run(load_ops(ks + AHEAD)))
        A(f"v_mfma_f32_32x32x16_bf16 {v(ACC+16,16)}, {a(4*ks,4)}, {v(b+4,4)}, {'0' if ks == 0 else v(ACC+16,16)}")
        if ks + 3 < 32: ctok.append(run(creads(ks + 3)))
    for ks in range(KCHK):
        step2a(ks, True)
        if ks + AHEAD == KCHK - 1: tokO = A(f"buffer_load_dword {v(vF)}, {v(AD+6)}, {s(R_WS,4)}, {s(sU3)} offen sc1")
    A.wait(vm=tokO)
    A(f"v_cmp_ne_u32 vcc, {v(vF)}, {v(vTAG)}")
    A("s_nop 0")
    A("s_cbranch_vccnz L_slow")
    snap = A.snapshot(); ctok_s = list(ctok); ltok_s = list(ltok)
    for ks in range(KCHK, 32): step2a(ks, True)
    stamp(9); stamp(10)
    A.label("L_2b")
    gops = []
    for tl in (1, 0):
        for k in range(16): gops.append(f"v_mul_f32 {v(ACC+16*tl+k)}, {v(ACC+16*tl+k)}, {v(GG+k)}")
    for k in range(16): gops.append(f"v_sub_f32 {v(GG+k)}, 1.0, {v(GG+k)}")
    for ks in range(16):
        A.wait(vm=ltok[32 + ks])
        stamp(140 + ks)
        for tl in (1, 0):
            A(f"v_mfma_f32_32x32x16_bf16 {v(ACC+32+16*tl,16)}, {v(TMP+4*ks,4)}, {a(128+8*ks+4*tl,4)}, {'0' if ks == 0 else v(ACC+32+16*tl,16)}")
            if tl == 1 and 32 + ks + AHEAD < 48: ltok.append(run(load_ops(32 + ks + AHEAD)))
            if ks == 0 and tl == 0: A(f"ds_write_b32 {v(AD)}, {v(vE)}")
            if ks in (1, 2) and tl == 0:
                for j in (2 * ks - 2, 2 * ks - 1): tg = A(f"ds_read_b128 {v(GG+4*j,4)}, {v(AD+2)} offset:{j*32}")
            if ks >= 6:
                A.wait(lg=tg)
                run(gops[:3]); gops = gops[3:]
    assert not gops
    stamp(11)
    A(f"s_lshl_b32 {s(sT0)}, {s(sTT2)}, 16")
    for k in range(0, 16, 2):
        A(f"v_pk_fma_f32 {v(ACC+16+k,2)}, {v(ACC+48+k,2)}, {v(GG+k,2)}, {v(ACC+16+k,2)}")
        if k % 4 == 2: A(f"ds_write_b128 {v(AD+4)}, {v(ACC+16+k-2,4)} offset:{(k//4)*1024}")
    for k in range(0, 16, 2): A(f"v_pk_fma_f32 {v(ACC+k,2)}, {v(ACC+32+k,2)}, {v(GG+k,2)}, {v(ACC+k,2)}")
    A.wait_all(vm=False)
    A("s_barrier")
    toks = [A(f"ds_read_b128 {v(ACC+32+4*j,4)}, {v(AD+5)} offset:{j*1024}") for j in range(4)]
    of = {0: "", 1: " nt", 2: " sc1", 3: " sc0 sc1"}[opt.get('outfl', 0)]
    for j in range(4):
        A.wait(lg=toks[j])
        for e in (0, 2): A(f"v_pk_add_f32 {v(ACC+4*j+e,2)}, {v(ACC+4*j+e,2)}, {v(ACC+32+4*j+e,2)}")
        A(f"s_add_u32 {s(sT1)}, {s(sT0)}, 4096")
        for i in range(4):
            A(f"buffer_store_dword {v(ACC+4*j+i)}, {v(AD+1)}, {s(R_OUT,4)}, {s(sT0 if i < 2 else sT1)} offen offset:{(i%2)*2048}{of}")
        if j < 3: A(f"s_add_u32 {s(sT0)}, {s(sT0)}, 16384")
    A(f"s_lshl2_add_u32 {s(sT0)}, {s(sNB)}, {s(sW)}"); A(f"s_lshl_b32 {s(sT0)}, {s(sT0)}, 5"); A(f"s_add_u32 {s(sT0)}, {s(sT0)}, {s(sRB)}")
    A(f"s_cmp_eq_u32 {s(sT0)}, 31")
    A("s_cbranch_scc0 L_fin")
    A("s_mov_b64 exec, 1")
    A(f"buffer_store_dword {v(vTAG)}, {v(vZ)}, {s(R_WS,4)}, 0 offen sc1")
    A("s_mov_b64 exec, -1")
    A.label("L_fin")
    if stamps:
        A("s_waitcnt vmcnt(0)")
        stamp(12)
        A("s_waitcnt lgkmcnt(0)")
        A(f"s_lshl2_add_u32 {s(sT0)}, {s(sWG)}, {s(sW)}"); A(f"s_lshl_b32 {s(sT0)}, {s(sT0)}, 6")
        A(f"s_add_u32 {s(sT0)}, {s(sT0)}, {WS_STAMP}")
        for i in range(14):
            A(f"v_mov_b32 {v(t0)}, {s(SREG[i] if i < 13 else sTY)}")
            A(f"buffer_store_dword {v(t0)}, {v(vZ)}, {s(R_WS,4)}, {s(sT0)} offen offset:{4*i}")
    A("s_endpgm")
    A.label("L_kvretry")
    A.restore(snap_kv)
    run(kv_loads())
    kv_sum(False, A.vm)
    A(f"s_sub_u32 {s(sCNT)}, {s(sCNT)}, 1")
    A("s_cbranch_scc1 L_kvok")
    A("s_cbranch_vccnz L_kvretry")
    A("s_branch L_kvok")
    A.label("L_slow")
    A.restore(snap); ctok[:] = ctok_s; ltok[:] = ltok_s
    for ks in range(KCHK, 32): step2a(ks, False)
    stamp(9)
    def ld(): A(f"buffer_load_dword {v(vF)}, {v(AD+6)}, {s(R_WS,4)}, {s(sU3)} offen sc1")
    spin("L_po", ld, ck)
    stamp(10)
    for n in range(32, 32 + AHEAD): run(load_ops(n))
    A("s_branch L_2b")
    A.label("L_end")
    if not opt.get('nopg'):
        tmp = A.out + [f"L_pg_{r}_{n}:" for r in 'sa' for n in range(2)]
        tmp, A.fixed, A.padded = align_pass(tmp)
        tmp, cnt = page_pads(tmp, 0x300, {"L_ssm": 's', "L_attn": 'a', "L_phase2": None})
        assert cnt['s'] >= 2 and cnt['a'] >= 2, cnt
        A.out = tmp[:-4]
    else:
        A.out, A.fixed, A.padded = align_pass(A.out)
    hdr = open(os.path.join(os.path.dirname(__file__), "header.txt")).read()
    src = hdr + f"; @launch grid=(256,1,1) block=(256,1,1) lds={LDS_BYTES}\n" + f""".amdgcn_target "amdgcn-amd-amdhsa--gfx950"
.text
.globl {KNAME}
.p2align 12
.type {KNAME},@function
{KNAME}:
{A.text()}
    s_endpgm
.section .rodata,"a"
.p2align 6
.amdhsa_kernel {KNAME}
  .amdhsa_next_free_vgpr 512
  .amdhsa_next_free_sgpr 102
  .amdhsa_accum_offset 256
  .amdhsa_group_segment_fixed_size 0
  .amdhsa_kernarg_size 128
  .amdhsa_user_sgpr_count 2
  .amdhsa_user_sgpr_kernarg_segment_ptr 1
  .amdhsa_system_sgpr_workgroup_id_x 1
.end_amdhsa_kernel
"""
    return src, A

if __name__ == "__main__":
    out = sys.argv[1]
    opt = {}
    for kv in sys.argv[3:]:
        k_, v_ = kv.split('='); opt[k_] = int(v_)
    src, A = gen(stamps=len(sys.argv) > 2 and sys.argv[2] == 'stamps', opt=opt)
    open(out, "w").write(src)
    print("lines", len(A.out), "nops", A.nops, "widened", getattr(A, 'fixed', 0), "padded", getattr(A, 'padded', 0))
```

```python
import sys, os
sys.path.insert(0, os.path.dirname(__file__))
from asmlib import *

KNAME = "gated_mix__ssm_conv_s5__linear_attn_block__prompt_kernel"

WS_EPOCH = 0
WS_KVF   = 0xD0000
WS_HF    = 0x4000
WS_OF    = 0xC000
WS_G     = 0x14000
WS_ZP    = 0x18000
WS_AGG   = 0x20000
WS_KVP   = 0x40000
WS_STAMP = 0xC0000
WS_ACT   = 0x100000
WS_SIZE  = WS_ACT + 64 * 98304
SCR = 131072
LDS_BYTES = 163840
SPIN = 1 << 17

def gen(stamps=False, opt=None):
    opt = opt or {}
    A = Asm()
    P_X, P_LRE, P_LIM, P_BRE, P_BIM, P_CRE, P_CIM, P_LDT = 4, 6, 8, 10, 12, 14, 16, 18
    P_DSK, P_BX, P_QKV, P_WO, P_GW, P_OUT, P_DBG, P_WS = 20, 22, 24, 26, 28, 30, 32, 34
    R_X, R_W, R_WS, R_C, R_WO, R_OUT = 36, 40, 44, 48, 52, 56
    sW, sC, sJ, sK0, sRB, sNB, sTAG, sTY = 60, 61, 62, 63, 64, 65, 66, 67
    sXO, sWO, sWST, sU0, sT0, sT1, sT2, sT3 = 68, 69, 70, 71, 72, 73, 74, 75
    sMX, sMW, sCNT, sTT, sKH, sM8 = 76, 77, 78, 79, 80, 81
    sL2E = 82
    sU1, sU2 = 84, 85
    sEPS = 86
    sD0, sD1 = 2, 3
    SREG = [88, 90, 92, 94, 96, 98, 16, 18, 6, 8, 10, 12, 14]
    sWG = 100
    sU3 = 101
    names = opt.get('stamps') or [0, 1, 2, 3, 4, 5, 6, 7, 8, 9, 10, 11, 12]
    def stamp(i):
        if stamps and i in names:
            A(f"{'s_memtime' if opt.get('cyc') else 's_memrealtime'} {s(SREG[names.index(i)], 2)}")
    vL = 0; vZ = 1; vE = 2; vJ = 3
    t0, t1, t2, t3, t4, t5, t6, t7 = 4, 5, 6, 7, 8, 9, 10, 11
    vTAG = 12; vL16 = 13; vL4 = 14; vF = 15
    ACC = 16; BUF = 80; TMP = 112; TM2 = 176
    VX, VW, VN, VK1 = 208, 212, 216, 220
    RX, RN, RT = 224, 228, 232
    RW = 234
    RA, RB = 236, 240
    AD = 244
    PR = TM2

    def run(ops):
        tok = None
        for o in ops:
            r = A(o) if isinstance(o, str) else o()
            if r is not None: tok = r
        return tok
    def sel_exec(lo, hi):
        A(f"s_mov_b32 exec_lo, {lo:#x}"); A(f"s_mov_b32 exec_hi, {hi:#x}")

    stamp(0)
    A("s_load_dwordx16 s[4:19], s[0:1], 0")
    A("s_load_dwordx16 s[20:35], s[0:1], 64")
    A("s_cmp_ge_u32 s2, 256")
    A("s_cbranch_scc1 L_end")
    A(f"s_getpc_b64 {s(sT2,2)}")
    A.label("L_pc")
    A(f"s_and_b32 {s(sT0)}, s2, 0xf8")
    A(f"v_lshrrev_b32 {v(t0)}, 5, v0")
    A(f"v_add_lshl_u32 {v(t0)}, {v(t0)}, {s(sT0)}, 7")
    A(f"v_min_u32 {v(t0)}, L_end-L_pc, {v(t0)}")
    if not opt.get('nocodepf'):
        A(f"global_load_dword {v(BUF)}, {v(t0)}, {s(sT2,2)}")
    A(f"v_lshrrev_b32 {v(t0)}, 6, v0")
    A(f"v_and_b32 {v(vL)}, 63, v0")
    A(f"v_readfirstlane_b32 {s(sW)}, {v(t0)}")
    A(f"v_mov_b32 {v(vZ)}, 0")
    A(f"s_and_b32 {s(sT0)}, s2, 7")
    A(f"s_bfe_u32 {s(sNB)}, s2, 0x30003")
    A(f"s_lshr_b32 {s(sT3)}, s2, 6")
    if stamps: A(f"s_mov_b32 {s(sWG)}, s2")
    A(f"s_and_b32 {s(sC)}, {s(sT0)}, 1"); A(f"s_lshl3_add_u32 {s(sC)}, {s(sC)}, {s(sNB)}")
    A(f"s_and_b32 {s(sJ)}, {s(sT0)}, 6"); A(f"s_lshr_b32 {s(sK0)}, {s(sT3)}, 1"); A(f"s_add_u32 {s(sJ)}, {s(sJ)}, {s(sK0)}")
    A(f"s_lshr_b32 {s(sT1)}, {s(sT0)}, 1"); A(f"s_and_b32 {s(sT2)}, {s(sT0)}, 1")
    A(f"s_lshl2_add_u32 {s(sRB)}, {s(sT2)}, {s(sT1)}"); A(f"s_lshl2_add_u32 {s(sRB)}, {s(sRB)}, {s(sT3)}")
    G_ = opt.get('G', 2)
    if G_ == 1: A(f"s_mov_b32 {s(sK0)}, 0")
    elif G_ == 2: A(f"s_add_u32 {s(sK0)}, {s(sK0)}, {s(sNB)}"); A(f"s_lshl_b32 {s(sK0)}, {s(sK0)}, 2")
    elif G_ == 4: A(f"s_add_u32 {s(sK0)}, {s(sT3)}, {s(sNB)}"); A(f"s_lshl_b32 {s(sK0)}, {s(sK0)}, 1")
    else: A(f"s_lshl1_add_u32 {s(sK0)}, {s(sT3)}, {s(sNB)}")
    X_ = opt.get('xoff', 0)
    if X_ == 1: A(f"s_lshl1_add_u32 {s(sT1)}, {s(sT2)}, {s(sT1)}"); A(f"s_add_u32 {s(sK0)}, {s(sK0)}, {s(sT1)}")
    if X_ == 2: A(f"s_add_u32 {s(sT1)}, {s(sT2)}, {s(sT1)}"); A(f"s_add_u32 {s(sK0)}, {s(sK0)}, {s(sT1)}")
    if X_ == 3: A(f"s_lshl1_add_u32 {s(sT1)}, {s(sT2)}, {s(sT1)}"); A(f"s_lshl1_add_u32 {s(sK0)}, {s(sT1)}, {s(sK0)}")
    A(f"s_and_b32 {s(sK0)}, {s(sK0)}, 7")
    A(f"s_and_b32 {s(sTY)}, {s(sT3)}, 1")
    A(f"v_lshrrev_b32 {v(t0)}, 3, {v(vL)}")
    A(f"v_and_b32 {v(t1)}, 7, {v(vL)}")
    A(f"v_lshrrev_b32 {v(t2)}, 4, {v(vL)}")
    A(f"v_xor_b32 {v(t3)}, {v(t1)}, {v(t2)}")
    A(f"v_lshlrev_b32 {v(t3)}, 4, {v(t3)}")
    A(f"v_and_b32 {v(t2)}, 16, {v(vL)}")
    A(f"v_lshlrev_b32 {v(t2)}, 2, {v(t2)}")
    A(f"v_lshlrev_b32 {v(t4)}, 4, {v(t1)}")
    A(f"v_xor_b32 {v(t4)}, {v(t4)}, {v(t2)}")
    A(f"v_lshrrev_b32 {v(t5)}, 5, {v(vL)}")
    A(f"v_and_b32 {v(t6)}, 3, {v(t0)}")
    A(f"v_lshl_add_u32 {v(t5)}, {v(t5)}, 4, {v(t6)}")
    A(f"v_lshl_add_u32 {v(VX)}, {v(t5)}, 10, {v(t3)}")
    A(f"v_xor_b32 {v(t5)}, 64, {v(VX)}")
    A(f"v_add_u32 {v(VX+1)}, {3072}, {v(t5)}")
    A(f"v_add_u32 {v(VX+2)}, {2*3072}, {v(VX)}")
    A(f"v_add_u32 {v(VX+3)}, {3*3072}, {v(t5)}")
    A(f"v_lshl_add_u32 {v(VN)}, {v(t0)}, 10, {v(t3)}")
    A(f"v_xor_b32 {v(t5)}, 64, {v(VN)}")
    A(f"v_add_u32 {v(VN+1)}, {7168}, {v(t5)}")
    A(f"v_add_u32 {v(VN+2)}, {2*7168}, {v(VN)}")
    A(f"v_add_u32 {v(VN+3)}, {3*7168}, {v(t5)}")
    A(f"v_lshl_add_u32 {v(VK1)}, {v(t0)}, 10, {v(t4)}")
    A(f"v_lshl_add_u32 {v(VW)}, {v(t0)}, 11, {v(VK1)}")
    for q in (1, 2, 3): A(f"v_add_u32 {v(VW+q)}, {q*(8*3072-1024)}, {v(VW)}")
    A(f"s_lshl_b32 {s(sT0)}, {s(sJ)}, 7")
    A(f"v_lshrrev_b32 {v(t7)}, 1, {v(vL)}"); A(f"v_xor_b32 {v(t7)}, {v(t7)}, {v(vL)}"); A(f"v_and_b32 {v(t7)}, 4, {v(t7)}")
    A(f"v_mul_u32_u24 {v(t7)}, 3, {v(t7)}"); A(f"v_xor_b32 {v(t7)}, {v(t7)}, {v(vL)}")
    A(f"v_lshl_add_u32 {v(t7)}, {v(t7)}, 1, {s(sT0)}")
    A(f"v_lshlrev_b32 {v(vL16)}, 4, {v(vL)}")
    A(f"s_lshl_b32 {s(sMX)}, {s(sW)}, 12")
    A(f"s_add_u32 {s(sMW)}, {s(sMX)}, 16384")
    A(f"s_and_b32 {s(sKH)}, {s(sW)}, 1")
    A(f"s_lshr_b32 {s(sT1)}, {s(sW)}, 1")
    A(f"s_lshl2_add_u32 {s(sTT)}, {s(sC)}, {s(sW)}")
    A(f"s_lshl_b32 {s(sXO)}, {s(sTT)}, 15")
    A(f"s_lshl_b32 {s(sT2)}, {s(sK0)}, 7")
    A(f"s_add_u32 {s(sXO)}, {s(sXO)}, {s(sT2)}")
    A(f"s_lshl1_add_u32 {s(sT2)}, {s(sJ)}, {s(sT1)}"); A(f"s_lshl_b32 {s(sT2)}, {s(sT2)}, 15")
    A(f"s_mul_i32 {s(sT3)}, {s(sKH)}, {32*3072}"); A(f"s_lshl_b32 {s(sT1)}, {s(sT1)}, 10"); A(f"s_add_u32 {s(sT3)}, {s(sT3)}, {s(sT1)}")
    A(f"s_add_u32 {s(sT3)}, {s(sT3)}, {s(sT0)}"); A(f"s_add_u32 {s(sT3)}, {s(sT3)}, 1024")
    A(f"s_cmp_eq_u32 {s(sTY)}, 0")
    A(f"s_cselect_b32 {s(sWO)}, {s(sT2)}, {s(sT3)}")
    A(f"s_cselect_b32 {s(sWST)}, 128, {64*3072}") if False else None
    A(f"s_mov_b32 {s(sT1)}, {64*3072}"); A(f"s_cselect_b32 {s(sWST)}, 0x80, {s(sT1)}")
    A(f"s_mov_b32 {s(sT1)}, 0x180000"); A(f"s_cselect_b32 {s(R_W+2)}, 0x80000, {s(sT1)}")
    A("s_cselect_b64 exec, -1, 0")
    A(f"v_and_b32 {v(t5)}, 32, {v(vL)}")
    A(f"v_lshl_add_u32 {v(VW)}, {v(t5)}, 7, {v(VN)}")
    A(f"v_xor_b32 {v(t5)}, 64, {v(VW)}")
    A(f"v_add_u32 {v(VW+1)}, {3072}, {v(t5)}")
    A(f"v_add_u32 {v(VW+2)}, {14*1024}, {v(VW)}")
    A(f"v_add_u32 {v(VW+3)}, {17*1024}, {v(t5)}")
    A("s_mov_b64 exec, -1")
    A(f"s_mul_i32 {s(sT1)}, {s(sK0)}, {s(sWST)}"); A(f"s_add_u32 {s(sWO)}, {s(sWO)}, {s(sT1)}")
    A(f"s_mov_b32 {s(R_X+2)}, 0x200000"); A(f"s_mov_b32 {s(R_X+3)}, 0x20000")
    A(f"s_mov_b32 {s(R_W+3)}, 0x20000")
    A(f"s_mov_b32 m0, {s(sMX)}")
    A(f"s_mov_b32 {s(R_WS+2)}, {WS_SIZE}"); A(f"s_mov_b32 {s(R_WS+3)}, 0x20000")
    A(f"s_mov_b32 {s(R_C+2)}, 0x80000"); A(f"s_mov_b32 {s(R_C+3)}, 0x20000")
    A(f"s_mov_b32 {s(R_WO+2)}, 0x80000"); A(f"s_mov_b32 {s(R_WO+3)}, 0x20000")
    A(f"s_mov_b32 {s(R_OUT+2)}, 0x400000"); A(f"s_mov_b32 {s(R_OUT+3)}, 0x20000")
    A(f"s_lshl_b32 {s(sM8)}, {s(sW)}, 13")
    late = []
    Lt = late.append
    for q in (1, 2, 3): Lt(f"v_add_u32 {v(VK1+q)}, {q*7168}, {v(VK1)}")
    Lt(f"v_and_b32 {v(t0)}, 31, {v(vL)}")
    Lt(f"v_lshrrev_b32 {v(t1)}, 5, {v(vL)}")
    Lt(f"v_bfe_u32 {v(t2)}, {v(vL)}, 1, 3")
    Lt(f"v_xor_b32 {v(t2)}, {v(t2)}, {v(t1)}")
    Lt(f"v_lshlrev_b32 {v(t2)}, 4, {v(t2)}")
    Lt(f"v_lshl_add_u32 {v(RN)}, {v(t0)}, 7, {v(t2)}")
    for q in (1, 2, 3): Lt(f"v_xor_b32 {v(RN+q)}, {q*32}, {v(RN)}")
    for q in range(4): Lt(f"v_add_u32 {v(RX+q)}, {s(sMX)}, {v(RN+q)}")
    Lt(f"v_bfe_u32 {v(t2)}, {v(vL)}, 2, 2")
    Lt(f"v_bfe_u32 {v(t3)}, {v(vL)}, 3, 1")
    Lt(f"v_bfe_u32 {v(t4)}, {v(vL)}, 4, 1")
    Lt(f"v_and_b32 {v(t5)}, 3, {v(vL)}")
    Lt(f"v_lshlrev_b32 {v(t5)}, 3, {v(t5)}")
    Lt(f"v_lshl_add_u32 {v(t5)}, {v(t4)}, 5, {v(t5)}")
    Lt(f"v_lshl_add_u32 {v(t5)}, {v(t3)}, 6, {v(t5)}")
    Lt(f"v_lshl_add_u32 {v(t5)}, {v(t2)}, 7, {v(t5)}")
    Lt(f"v_lshl_add_u32 {v(RT)}, {v(t1)}, 10, {v(t5)}")
    Lt(f"v_xor_b32 {v(RT+1)}, 64, {v(RT)}")
    Lt(f"v_lshl_add_u32 {v(RW)}, {v(t1)}, 9, {v(t5)}")
    Lt(f"s_mul_i32 {s(sT0)}, {s(sKH)}, {16384+64}")
    Lt(f"v_xor_b32 {v(RW)}, {s(sT0)}, {v(RW)}")
    Lt(f"v_xor_b32 {v(RW+1)}, 64, {v(RW)}")
    Lt(f"v_lshlrev_b32 {v(vL4)}, 2, {v(vL)}")
    sWOB, sCB = P_DBG, P_DBG + 1
    Lt(f"s_and_b32 {s(sT1)}, {s(sJ)}, 1")
    Lt(f"s_and_b32 {s(sWOB)}, {s(sW)}, 2"); Lt(f"s_add_u32 {s(sWOB)}, {s(sWOB)}, {s(sW)}"); Lt(f"s_lshl1_add_u32 {s(sWOB)}, {s(sT1)}, {s(sWOB)}")
    Lt(f"s_lshl_b32 {s(sWOB)}, {s(sWOB)}, 9"); Lt(f"s_add_u32 {s(sWOB)}, {s(sWOB)}, {s(sNB)}"); Lt(f"s_lshl_b32 {s(sWOB)}, {s(sWOB)}, 7")
    Lt(f"s_lshr_b32 {s(sCB)}, {s(sW)}, 1"); Lt(f"s_lshl2_add_u32 {s(sCB)}, {s(sT1)}, {s(sCB)}")
    Lt(f"s_lshl_b32 {s(sT0)}, {s(sNB)}, 9"); Lt(f"s_add_u32 {s(sCB)}, {s(sCB)}, {s(sT0)}"); Lt(f"s_lshl_b32 {s(sCB)}, {s(sCB)}, 7")
    if True:
        Lt(f"s_and_b32 {s(sT0)}, {s(sNB)}, 3"); Lt(f"s_lshl_b32 {s(sT0)}, {s(sT0)}, 7"); Lt(f"s_xor_b32 {s(sCB)}, {s(sCB)}, {s(sT0)}")
        Lt(f"s_lshl_b32 {s(sT0)}, {s(sT0)}, 9"); Lt(f"s_xor_b32 {s(sWOB)}, {s(sWOB)}, {s(sT0)}")
    Lt(f"s_mul_i32 {s(sT0)}, {s(sKH)}, {65536+4096}")
    Lt(f"s_lshl_b32 {s(sT1)}, {s(sT1)}, 16"); Lt(f"s_xor_b32 {s(sT0)}, {s(sT0)}, {s(sT1)}")
    Lt(f"s_xor_b32 {s(sT1)}, {s(sT0)}, 4096")
    for q in range(4):
        Lt(f"v_add_u32 {v(RA+q)}, {s(sT0)}, {v(RN+q)}")
        Lt(f"v_add_u32 {v(RB+q)}, {s(sT1)}, {v(RN+q)}")
    Lt(f"s_mov_b64 {s(R_WS,2)}, {s(P_WS,2)}")
    Lt(f"s_mov_b64 {s(R_WO,2)}, {s(P_WO,2)}")
    Lt(f"s_mov_b64 {s(R_OUT,2)}, {s(P_OUT,2)}")
    PRE = opt.get('pre', 27)
    run(late[:PRE]); late = late[PRE:]
    A(f"s_cmp_eq_u32 {s(sTY)}, 0")
    A("s_waitcnt lgkmcnt(0)")
    stamp(20)
    A(f"s_mov_b64 {s(R_X,2)}, {s(P_X,2)}")
    pLRE, pLIM, pLDT = PR, PR + 1, PR + 2
    A("s_cbranch_scc0 L_nopar")
    A(f"global_load_ushort {v(pLRE)}, {v(t7)}, {s(P_LRE,2)}")
    A(f"global_load_ushort {v(pLIM)}, {v(t7)}, {s(P_LIM,2)}")
    A(f"global_load_ushort {v(pLDT)}, {v(t7)}, {s(P_LDT,2)}")
    tokP = A(f"global_load_dword {v(vE)}, {v(vZ)}, {s(P_WS,2)} sc1")
    A.label("L_nopar")
    A(f"s_cmp_eq_u32 {s(sKH)}, 0")
    def dma(voff, srd, soff, q):
        off = f" offset:{q*1024}" if q else ""
        return f"buffer_load_dwordx4 {v(voff+q)}, {s(srd,4)}, {s(soff)} offen{off} lds"
    for q in range(4):
        A(dma(VX, R_X, sXO, q))
    A(f"s_cselect_b64 {s(R_W,2)}, {s(P_BRE,2)}, {s(P_BIM,2)}")
    A(f"s_cselect_b64 {s(R_C,2)}, {s(P_CRE,2)}, {s(P_CIM,2)}")
    A(f"s_cmp_eq_u32 {s(sTY)}, 0")
    A(f"s_cselect_b64 {s(R_W,2)}, {s(R_W,2)}, {s(P_QKV,2)}")
    A(f"s_mov_b32 m0, {s(sMW)}")
    for q in range(4):
        if q: run(late[:11]); late = late[11:]
        A(dma(VW, R_W, sWO, q))
    utok0 = [A.vm]
    stamp(21)
    def unit_ops(i):
        slot = (i % 4) * 32768
        ops = []
        ops += [f"s_cmp_eq_u32 {s(sK0)}, {8-i}", f"s_cselect_b32 {s(sD0)}, -7, 1", f"s_mul_i32 {s(sD1)}, {s(sD0)}, {s(sWST)}",
                f"s_lshl_b32 {s(sD0)}, {s(sD0)}, 7", f"s_add_u32 {s(sXO)}, {s(sXO)}, {s(sD0)}", f"s_add_u32 m0, {s(sMX)}, {slot}"]
        ops += [dma(VX, R_X, sXO, q) for q in range(4)]
        ops += [f"s_add_u32 {s(sWO)}, {s(sWO)}, {s(sD1)}", f"s_add_u32 m0, {s(sMW)}, {slot}"]
        ops += [dma(VW, R_W, sWO, q) for q in range(4)]
        return ops
    u1 = unit_ops(1)
    U1C = opt.get('u1c', 2)
    k = [n for n, o in enumerate(u1) if o.startswith('buffer')][U1C - 1] + 1 if U1C else 0
    run(late[:8]); run(u1[:k]); run(late[8:]); u1 = u1[k:]
    A(f"s_cmp_eq_u32 {s(sTY)}, 0")
    A("s_cbranch_scc0 L_attn")
    snap0 = A.snapshot()

    def unit8_ops(voff, srd, pre, base, rowstep):
        ops = list(pre)
        ops.append(f"s_add_u32 m0, {s(sM8)}, {base}")
        ops += [dma(voff, srd, sD0, q) for q in range(4)]
        ops.append(f"s_add_u32 {s(sD0)}, {s(sD0)}, {rowstep}")
        ops.append(f"s_add_u32 m0, {s(sM8)}, {base+4096}")
        ops += [dma(voff, srd, sD0, q) for q in range(4)]
        return ops
    def wq_ops(u):
        pre = [f"s_xor_b32 {s(sD0)}, {s(sK0)}, {4*u}", f"s_add_u32 {s(sD0)}, {s(sD0)}, {s(sW)}", f"s_and_b32 {s(sD0)}, {s(sD0)}, 7",
               f"s_mul_i32 {s(sD0)}, {s(sD0)}, {64*3072}", f"s_lshl_b32 {s(sD1)}, {s(sJ)}, 7", f"s_add_u32 {s(sD0)}, {s(sD0)}, {s(sD1)}"]
        return unit8_ops(VW, R_W, pre, u * 32768, 32 * 3072)
    def wo_ops(u, base):
        pre = [f"s_xor_b32 {s(sD0)}, {s(sWOB)}, {u << 17}"]
        return unit8_ops(VK1, R_WO, pre, base, 32 * 1024)
    def c_ops(slot):
        pre = [f"s_xor_b32 {s(sD0)}, {s(sCB)}, {slot << 8}"]
        return unit8_ops(VN, R_C, pre, slot * 32768, 32 * 1024)
    def wo_reads(u, areg, off):
        L = []
        for st in range(8):
            for tl in range(2):
                d = 128 + 8 * (8 * u + st) + 4 * tl
                L.append(f"ds_read_b64_tr_b16 {a(d,2)}, {v(areg+tl)} offset:{off+st*2048}")
                L.append(f"ds_read_b64_tr_b16 {a(d+2,2)}, {v(areg+tl)} offset:{off+st*2048+1024}")
        return L
    class Stream:
        def __init__(self, ops): self.ops = list(ops)
        def dma(self, n=1):
            while n > 0 and self.ops:
                o = self.ops.pop(0); A(o)
                if o.startswith('buffer_') or o.startswith('global_'): n -= 1; self.last = A.vm
        def salu(self):
            while self.ops and not (self.ops[0].startswith('buffer_') or self.ops[0].startswith('global_')): A(self.ops.pop(0))
        def some(self, n):
            tok = None
            for _ in range(n):
                if self.ops: tok = A(self.ops.pop(0))
            return tok
        def rest(self):
            tok = None
            while self.ops:
                tok = A(self.ops.pop(0)); self.last = A.vm
            return tok
    def sprinkle(ops, stream, every):
        for n, o in enumerate(ops):
            A(o) if isinstance(o, str) else o()
            if (n + 1) % every == 0: stream.dma()

    def main_loop(kind, tail_units, fill):
        utok = list(utok0)
        def reads(i, st):
            slot = (i % 2) * 32768
            b = BUF + 16 * ((4 * i + st) % 2)
            L = [f"ds_read_b128 {a(16*i+4*st,4)}, {v(RX+st)} offset:{slot}"]
            for tl in range(4):
                if kind == 'ssm':
                    L.append(f"ds_read_b128 {v(b+4*tl,4)}, {v(RN+st)} offset:{slot+16384+tl*4096}")
                else:
                    base = slot + 16384 + (tl >> 1) * 8192 + st * 2048
                    L.append(f"ds_read_b64_tr_b16 {v(b+4*tl,2)}, {v(RT+(tl&1))} offset:{base}")
                    L.append(f"ds_read_b64_tr_b16 {v(b+4*tl+2,2)}, {v(RT+(tl&1))} offset:{base+512}")
            if i % 2 == 1:
                L.append(f"v_xor_b32 {v(RX+st)}, 0x10000, {v(RX+st)}")
                if kind == 'ssm': L.append(f"v_xor_b32 {v(RN+st)}, 0x10000, {v(RN+st)}")
                elif st == 3: L += [f"v_xor_b32 {v(RT+q)}, 0x10000, {v(RT+q)}" for q in range(2)]
            return L
        def mfmas(i, st):
            b = BUF + 16 * ((4 * i + st) % 2)
            L = []
            for tl in range(4):
                c = v(ACC + 16 * tl, 16)
                if i == 0 and st == 0: c = "1.0" if (kind == 'attn' and tl < 2) else "0"
                L.append(f"v_mfma_f32_32x32x16_bf16 {v(ACC+16*tl,16)}, {a(16*i+4*st,4)}, {v(b+4*tl,4)}, {c}")
            return L
        prev = None
        u1s = Stream(u1); n = 0; left = 8 - U1C
        while fill and fill[0][0] < 0:
            g = fill.pop(0)[1]; run(g); n += len(g)
            if n >= opt.get('u1e', 11) and left > opt.get('u1l', 2): n = 0; left -= 1; u1s.dma()
        u1s.rest(); utok.append(A.vm)
        stamp(1)
        D3 = opt.get('d3', 0)
        if D3:
            u2s = Stream(unit_ops(2)); u2s.dma(D3)
        for i in range(8):
            nxt = Stream(unit_ops(i + 2) if i + 2 < 8 else tail_units[i - 6])
            if D3 and i == 0: nxt = Stream(u2s.ops + unit_ops(3)); tok2 = A.vm + 8 - D3
            if D3 and i == 1: nxt = Stream([])
            nxt.salu()
            if i == opt.get('pgit', 2): page_touch(kind[0])
            A.wait(vm=utok[i])
            A("s_barrier")
            stamp(30 + i)
            burst = i < opt.get('burst', 0 if D3 else 2)
            for st in range(4):
                rd = reads(i, st)
                if prev is None:
                    run(rd); prev = (i, st, A.lg); nxt.dma(4 if burst else 2); nxt.salu(); continue
                ms = mfmas(prev[0], prev[1])
                A.wait(lg=prev[2])
                split = opt.get('sa', [3, 3, 9, 0]) if kind == 'attn' else opt.get('ss', [3, 9, 0, 0])
                fper = opt.get('fa', [1, 0, 1, 2]) if kind == 'attn' else opt.get('fs', [2, 3, 1, 1])
                dgap = opt.get('dga', [1, 3]) if kind == 'attn' else opt.get('dgs', [2, 3])
                for tl in range(4):
                    A(ms[tl])
                    if opt.get('dfirst') and (tl in dgap or burst): nxt.dma(); nxt.salu()
                    run(rd[:split[tl]]); rd = rd[split[tl]:]
                    if not opt.get('dfirst') and (tl in dgap or burst): nxt.dma(); nxt.salu()
                    n = fper[tl]
                    while n > 0 and fill and fill[0][0] <= i:
                        g = fill.pop(0)[1]
                        run(g); n -= len(g)
                assert not rd
                prev = (i, st, A.lg)
            nxt.rest()
            if D3 and i == 0: utok += [tok2, A.vm]
            elif not (D3 and i == 1): utok.append(A.vm)
            if i == 6:
                kk = [n for n, o in enumerate(tail_units[1]) if o.startswith('buffer')][opt.get('t1', 5) - 1] + 1
                tail_units[1], leftover = tail_units[1][:kk], tail_units[1][kk:]
        assert not fill, len(fill)
        A.wait(lg=prev[2])
        run(mfmas(prev[0], prev[1]))
        return utok, leftover

    def weight_touch(F):
        if not opt.get('wt', 1): return
        it = F.it
        F.it = -1
        F(f"s_lshl3_add_u32 {s(sCNT)}, {s(sRB)}, {s(sNB)}")
        F(f"v_lshrrev_b32 {v(vJ)}, 2, {v(vL)}")
        F(f"s_lshl_b32 {s(sCNT)}, {s(sCNT)}, 4")
        F(f"v_add_u32 {v(vJ)}, {s(sCNT)}, {v(vJ)}")
        F(f"v_lshrrev_b32 {v(vF)}, 3, {v(vJ)}")
        F(f"v_lshlrev_b32 {v(vJ)}, 7, {v(vJ)}")
        F(f"s_cmp_eq_u32 {s(sW)}, 3", f"s_cselect_b32 {s(sCNT)}, 0x800, 0", f"s_cselect_b64 {s(P_BX,2)}, {s(P_QKV,2)}, {s(P_WO,2)}")
        F(f"v_mad_u32_u24 {v(vJ)}, {v(vF)}, {s(sCNT)}, {v(vJ)}")
        F(f"s_cmp_lt_u32 {s(sW)}, 2", f"s_cselect_b64 {s(P_BX,2)}, {s(R_C,2)}, {s(P_BX,2)}")
        F.sort(key=lambda e: e[0])
        F.it = opt.get('wtit', 2) - 0.5
        F(f"global_load_dword {v(vJ)}, {v(vJ)}, {s(P_BX,2)}")
        F.sort(key=lambda e: e[0])
        F.it = it
    class Fill(list):
        it = -1
        def __call__(self, *ops): self.append((self.it, list(ops)))
    def epoch_load():
        A("s_mov_b64 exec, 1")
        A(f"global_load_dword {v(vE)}, {v(vZ)}, {s(P_WS,2)} sc1")
        A("s_mov_b64 exec, -1")
    def get_tag(F):
        F(f"v_readfirstlane_b32 {s(sTAG)}, {v(vE)}")
        F(f"s_mul_i32 {s(sTAG)}, {s(sTAG)}, 0x9E3779B5")
        F(f"s_add_u32 {s(sTAG)}, {s(sTAG)}, 0x7F4A7C15")
        F(f"v_mov_b32 {v(vTAG)}, {s(sTAG)}")
    def cmul4(F, d, x, y):
        if F.it < 0:
            for o in cmul_ops(d, x, y): F(o)
            return
        F(f"v_mul_f32 {v(d)}, {v(x)}, {v(y)}")
        F(f"v_mul_f32 {v(d+1)}, {v(x)}, {v(y+1)}")
        F(f"v_fma_f32 {v(d)}, -{v(x+1)}, {v(y+1)}, {v(d)}")
        F(f"v_fmac_f32 {v(d+1)}, {v(x+1)}, {v(y)}")
    def p2_early(F):
        it = F.it; F.it = -0.9
        F(f"s_lshr_b32 {s(sTT2)}, {s(sW)}, 1"); F(f"s_lshl1_add_u32 {s(sTT2)}, {s(sRB)}, {s(sTT2)}")
        F(f"s_lshl1_add_u32 {s(sHFA)}, {s(sTT2)}, {s(sKH)}"); F(f"s_lshl_b32 {s(sHFA)}, {s(sHFA)}, 8"); F(f"s_add_u32 {s(sHFA)}, {s(sHFA)}, {WS_HF}")
        F(f"s_mul_i32 {s(sHB)}, {s(sTT2)}, 3"); F(f"s_add_u32 {s(sHB)}, {s(sHB)}, {s(sKH)}")
        F(f"s_and_b32 {s(sXT)}, {s(sNB)}, 3"); F(f"s_lshl2_add_u32 {s(sHB)}, {s(sHB)}, {s(sXT)}")
        F(f"s_lshl_b32 {s(sHB)}, {s(sHB)}, 13"); F(f"s_add_u32 {s(sHB)}, {s(sHB)}, {WS_ACT}")
        F(f"s_lshl2_add_u32 {s(sXT)}, {s(sRB)}, {s(sW)}"); F(f"s_lshl_b32 {s(sXT)}, {s(sXT)}, 7"); F(f"s_add_u32 {s(sXT)}, {s(sXT)}, {s(sNB)}")
        F(f"s_lshl_b32 {s(sXT)}, {s(sXT)}, 7")
        F(f"s_lshr_b32 {s(sXM)}, {s(sMX)}, 1"); F(f"s_add_u32 {s(sXM)}, {s(sXM)}, {XS}")
        F(f"s_lshl1_add_u32 {s(sCOL)}, {s(sNB)}, {s(sKH)}"); F(f"s_lshl_b32 {s(sCOL)}, {s(sCOL)}, 6")
        F(f"v_and_b32 {v(AD+9)}, 12, {v(vL4)}")
        F.it = 4.5
        F(f"v_and_b32 {v(vE)}, 31, {v(vL)}")
        F(f"v_lshl_add_u32 {v(vE)}, {v(vE)}, 1, {s(sCOL)}")
        F(f"global_load_ushort {v(vE)}, {v(vE)}, {s(P_DSK,2)}")
        F.sort(key=lambda e: e[0])
        F.it = it
    def p2_setup():
        A(f"s_mov_b32 m0, {s(sXM)}")
        for q in range(2): A(dma(VN, R_X, sXT, q))
    def p2_late():
        L = []
        B = lambda *o: L.append(list(o))
        B(f"s_and_b32 {s(sT0)}, {s(sMX)}, 8192"); B(f"s_lshr_b32 {s(sT0)}, {s(sT0)}, 1"); B(f"s_add_u32 {s(sT0)}, {s(sT0)}, {XS}")
        B(f"s_lshl_b32 {s(sT1)}, {s(sKH)}, 6")
        B(f"v_xor_b32 {v(AD+10)}, {s(sT1)}, {v(RN)}")
        B(f"v_add_u32 {v(AD+10)}, {s(sT0)}, {v(AD+10)}")
        B(f"v_xor_b32 {v(AD+11)}, 32, {v(AD+10)}")
        for q in range(2): B(f"ds_read_b128 {v(XF+4*q,4)}, {v(AD+10+q)}")
        for q in range(4): B(f"v_mov_b64 {v(DF+2*q,2)}, 0")
        B(f"v_mov_b32 {v(vE+1)}, 0")
        B(f"v_and_b32 {v(t6)}, 48, {v(vL16)}")
        B(f"v_lshlrev_b64 {v(t4,2)}, {v(t6)}, {v(vE,2)}")
        for q in range(4):
            m = 0xf << (16 * (q >> 1) + 4 * (q & 1))
            B(f"s_mov_b32 exec_lo, {m:#x}", f"s_mov_b32 exec_hi, {m << 8:#x}", f"v_mov_b64 {v(DF+2*q,2)}, {v(t4,2)}", "s_mov_b64 exec, -1")
        B(f"v_and_b32 {v(t0)}, 31, {v(vL)}")
        B(f"v_lshrrev_b32 {v(t1)}, 5, {v(vL)}")
        B(f"v_lshlrev_b32 {v(AD+7)}, 2, {v(t0)}")
        B(f"s_lshl_b32 {s(sT1)}, {s(sW)}, 7"); B(f"s_add_u32 {s(sT1)}, {s(sT1)}, {SCR+16384}")
        B(f"v_lshl_add_u32 {v(AD+2)}, {v(t1)}, 4, {s(sT1)}")
        B(f"v_add_u32 {v(AD)}, {s(sT1)}, {v(AD+7)}")
        B(f"v_lshl_add_u32 {v(t2)}, {s(sCOL)}, 1, {v(AD+7)}")
        B(f"v_lshl_add_u32 {v(AD+1)}, {v(t1)}, 13, {v(t2)}")
        B(f"s_add_u32 {s(sU3)}, {s(sHFA)}, {WS_OF-WS_HF}")
        B(f"v_min_u32 {v(AD+6)}, 16, {v(vL4)}")
        B(f"s_xor_b32 {s(sT0)}, {s(sMX)}, 4096"); B(f"s_add_u32 {s(sT0)}, {s(sT0)}, {SCR}")
        B(f"v_add_u32 {v(AD+4)}, {s(sT0)}, {v(vL16)}")
        B(f"v_xor_b32 {v(AD+5)}, 4096, {v(AD+4)}")
        B(f"s_mul_i32 {s(sU1)}, {s(sTT2)}, 6"); B(f"s_add_u32 {s(sU1)}, {s(sU1)}, {s(sKH)}")
        B(f"s_and_b32 {s(sT0)}, {s(sJ)}, 1"); B(f"s_lshl_b32 {s(sT0)}, {s(sT0)}, 1"); B(f"s_xor_b32 {s(sT0)}, {s(sT0)}, {s(sNB)}"); B(f"s_and_b32 {s(sT0)}, {s(sT0)}, 3")
        B(f"s_lshl2_add_u32 {s(sU1)}, {s(sU1)}, {s(sT0)}"); B(f"s_lshl_b32 {s(sU1)}, {s(sU1)}, 12"); B(f"s_add_u32 {s(sU1)}, {s(sU1)}, {WS_ACT+65536}")
        B(f"s_lshl_b32 {s(sU2)}, {s(sTT2)}, 7"); B(f"s_add_u32 {s(sU2)}, {s(sU2)}, {WS_G}")
        return L
    sHFA, sHB, sXT, sXM, sCOL = P_X + 1, P_WS, P_WS + 1, P_QKV, P_QKV + 1
    XS = SCR + 24576
    sFM = sMW; sTT2 = P_X; XF = TM2 + 16; DF = TM2 + 24

    def cmul_ops(dst, x, y, add=None):
        if add is None: o = f"v_pk_mul_f32 {v(dst,2)}, {v(x,2)}, {v(y,2)} op_sel_hi:[0,1]"
        else: o = f"v_pk_fma_f32 {v(dst,2)}, {v(x,2)}, {v(y,2)}, {v(add,2)} op_sel_hi:[0,1,1]"
        return [o, f"v_pk_fma_f32 {v(dst,2)}, {v(x,2)}, {v(y,2)}, {v(dst,2)} op_sel:[1,1,0] op_sel_hi:[1,0,1] neg_lo:[0,1,0]"]
    def cmul(*a_): run(cmul_ops(*a_))

    def spin(name, load, check):
        A(f"s_mov_b32 {s(sCNT)}, {SPIN}")
        A.label(name)
        load()
        A.wait_all(vm=True, lg=False, force=True)
        check()
        A(f"s_sub_u32 {s(sCNT)}, {s(sCNT)}, 1")
        A(f"s_cbranch_scc1 {name}_x")
        A(f"s_cbranch_vccnz {name}")
        A.label(name + "_x")
    def flag_store(soff, mask=1, voff=vZ):
        A(f"s_mov_b64 exec, {mask}")
        A(f"buffer_store_dword {v(vTAG)}, {v(voff)}, {s(R_WS,4)}, {s(soff)} offen sc1")
        A("s_mov_b64 exec, -1")
    def flag_addr(F, dst, tmp, base):
        F(f"s_lshr_b32 {s(tmp)}, {s(sJ)}, 2"); F(f"s_lshl1_add_u32 {s(dst)}, {s(sTT)}, {s(tmp)}"); F(f"s_lshl_b32 {s(dst)}, {s(dst)}, 6")
        F(f"s_and_b32 {s(tmp)}, {s(sJ)}, 3"); F(f"s_add_u32 {s(dst)}, {s(dst)}, {s(tmp)}"); F(f"s_lshl2_add_u32 {s(dst)}, {s(dst)}, {base}")

    def page_touch(r):
        if opt.get('nopg'): return
        A("s_mov_b64 exec, 0")
        for n in range(2):
            A(f"s_cmp_eq_u32 {s(sW)}, {n}")
            A(f"s_cbranch_scc1 L_pg_{r}_{n}")
        if r == 'a':
            A(f"s_cmp_eq_u32 {s(sW)}, 2")
            A("s_cbranch_scc1 L_ph_x")
        A.label(f"L_pgret_{r}")
        A("s_mov_b64 exec, -1")
    def poll_issue():
        A(f"buffer_load_dword {v(vF)}, {v(AD+9)}, {s(R_WS,4)}, {s(sHFA)} offen sc1")
    AHEAD = opt.get('ahead', 10)
    GG = TM2
    def load_ops(n):
        o = []
        if n < 32:
            if n % 4 == 0 and n: o.append(f"s_xor_b32 {s(sHB)}, {s(sHB)}, {((n//4) ^ (n//4-1)) << 12}")
            o.append(f"buffer_load_dwordx4 {a(4*n,4)}, {v(vL16)}, {s(R_WS,4)}, {s(sHB)} offen offset:{(n%4)*1024} sc1")
        else:
            k = n - 32
            if k == 0: o.append(f"buffer_load_dword {v(vE)}, {v(AD+7)}, {s(R_WS,4)}, {s(sU2)} offen sc1")
            if k % 4 == 0 and k: o.append(f"s_xor_b32 {s(sU1)}, {s(sU1)}, {0x3000 if k == 8 else 0x1000}")
            o.append(f"buffer_load_dwordx4 {v(TMP+4*k,4)}, {v(vL16)}, {s(R_WS,4)}, {s(sU1)} offen offset:{(k%4)*1024} sc1")
        return o
    def creads(ks):
        jb, m, st = ks >> 3, (ks >> 1) & 3, ks & 1
        ct, cp = m >> 1, m & 1
        b = BUF + 8 * (ks % 4)
        off = jb * 16384 + cp * 8192
        return [f"ds_read_b128 {v(b,4)}, {v(RA+2*ct+st)} offset:{off}", f"ds_read_b128 {v(b+4,4)}, {v(RB+2*ct+st)} offset:{off}"]
    def p2_head():
        ltok = []
        def ld1(): ltok.append(run(load_ops(len(ltok))))
        for k in range(3): ld1()
        n = 0
        for g in p2_late():
            run(g); n += len(g)
            if n >= 10 and len(ltok) < AHEAD - 1: n = 0; ld1()
        tx = A.lg
        ctok = [run(creads(k)) for k in range(3)]
        A.wait(lg=tx)
        for q in range(2): A(f"v_mfma_f32_32x32x16_bf16 {v(ACC,16)}, {v(XF+4*q,4)}, {v(DF+4*q,4)}, {'0' if q == 0 else v(ACC,16)}")
        while len(ltok) < AHEAD: ld1()
        return ltok, ctok
    KCHK = 32 - AHEAD
    def step2a(ks, more, ltok, ctok):
        A.wait(vm=ltok[ks], lg=ctok[ks])
        stamp(100 + ks)
        b = BUF + 8 * (ks % 4)
        A(f"v_mfma_f32_32x32x16_bf16 {v(ACC,16)}, {a(4*ks,4)}, {v(b,4)}, {v(ACC,16)}")
        if more: ltok.append(run(load_ops(ks + AHEAD)))
        A(f"v_mfma_f32_32x32x16_bf16 {v(ACC+16,16)}, {a(4*ks,4)}, {v(b+4,4)}, {'0' if ks == 0 else v(ACC+16,16)}")
        if ks + 3 < 32: ctok.append(run(creads(ks + 3)))
    A.label("L_ssm")
    L1, KK, L16, L32 = PR + 4, PR + 6, PR + 8, PR + 10
    L2T = PR + 0
    LT, KT = PR + 14, PR + 18
    WG_ = PR + 22
    WSEG = PR + 30
    L128 = PR + 12
    GWS = SCR + 20480
    F = Fill()
    F(f"s_cmp_lt_u32 {s(sW)}, 2", f"s_cselect_b32 {s(P_GW+2)}, 0x400, 0")
    F(f"s_mov_b32 {s(P_GW+3)}, 0x20000")
    GR = TMP + 60
    sHF = sEPS
    F(f"s_lshl_b32 {s(sT0)}, {s(sW)}, 9")
    F(f"v_lshlrev_b32 {v(AD)}, 3, {v(vL)}")
    F(f"v_add_u32 {v(AD)}, {SCR}, {v(AD)}")
    F(f"v_add_u32 {v(AD+1)}, {s(sT0)}, {v(AD)}")
    F(f"s_lshl4_add_u32 {s(sT2)}, {s(sJ)}, {s(sC)}"); F(f"s_lshl_b32 {s(sT2)}, {s(sT2)}, 10")
    F(f"s_add_u32 {s(sT2)}, {s(sT2)}, {WS_AGG}")
    F(f"s_mul_i32 {s(sU3)}, {s(sTT)}, 98304"); F(f"s_lshl_b32 {s(sT0)}, {s(sJ)}, 13"); F(f"s_add_u32 {s(sU3)}, {s(sU3)}, {s(sT0)}")
    F(f"s_add_u32 {s(sU3)}, {s(sU3)}, {WS_ACT}")
    flag_addr(F, sHF, sT0, WS_HF)
    F(f"v_cvt_f32_u32 {v(t6)}, {s(sW)}")
    F(f"v_mul_f32 {v(t6)}, 0x42000000, {v(t6)}")
    F(lambda: A.wait(vm=tokP))
    get_tag(F)
    F(f"v_lshlrev_b32 {v(pLRE)}, 16, {v(pLRE)}")
    F(f"v_lshlrev_b32 {v(pLIM)}, 16, {v(pLIM)}")
    F(f"v_lshlrev_b32 {v(pLDT)}, 16, {v(pLDT)}")
    F(f"v_xor_b32 {v(pLIM)}, 0x80000000, {v(pLIM)}")
    F(f"v_mul_f32 {v(t0)}, 0x3fb8aa3b, {v(pLDT)}")
    F(f"v_exp_f32 {v(t0)}, {v(t0)}")
    F(f"v_mul_f32 {v(t5)}, {v(pLRE)}, {v(pLRE)}")
    F(f"v_cvt_pk_bf16_f32 {v(t0)}, {v(t0)}, {v(t0)}")
    F(f"v_and_b32 {v(t0)}, 0xffff0000, {v(t0)}")
    EXA, EXB = TMP, TMP + 1
    F(f"v_mul_f32 {v(EXA)}, {v(t0)}, {v(pLRE)}")
    F(f"v_mul_f32 {v(EXB)}, {v(t0)}, {v(pLIM)}")
    F(f"v_mul_f32 {v(EXA)}, 0x3fb8aa3b, {v(EXA)}")
    F(f"v_mul_f32 {v(EXB)}, 0.15915494, {v(EXB)}")
    def cexp(d, ea, eb):
        F(f"v_exp_f32 {v(t1)}, {v(ea)}")
        F(f"v_rndne_f32 {v(t3)}, {v(eb)}")
        F(f"v_sub_f32 {v(t2)}, {v(eb)}, {v(t3)}")
        F(f"v_cos_f32 {v(t3)}, {v(t2)}")
        F(f"v_sin_f32 {v(t4)}, {v(t2)}")
        F(f"v_mul_f32 {v(d)}, {v(t1)}, {v(t3)}")
        F(f"v_mul_f32 {v(d+1)}, {v(t1)}, {v(t4)}")
    cexp(L1, EXA, EXB)
    F(f"v_fmac_f32 {v(t5)}, {v(pLIM)}, {v(pLIM)}")
    F(f"v_rcp_f32 {v(t0)}, {v(t5)}")
    F(f"v_add_f32 {v(t1)}, -1.0, {v(L1)}")
    F(f"v_add_f32 {v(t0)}, {v(t0)}, {v(t0)}")
    F(f"v_mul_f32 {v(t2)}, {v(t1)}, {v(pLRE)}")
    F(f"v_fmac_f32 {v(t2)}, {v(L1+1)}, {v(pLIM)}")
    F(f"v_mul_f32 {v(t3)}, {v(L1+1)}, {v(pLRE)}")
    F(f"v_fma_f32 {v(t3)}, -{v(t1)}, {v(pLIM)}, {v(t3)}")
    F(f"v_mul_f32 {v(KK)}, {v(t2)}, {v(t0)}")
    F(f"v_mul_f32 {v(KK+1)}, {v(t3)}, {v(t0)}")
    cmul4(F, L2T, L1, L1); cmul4(F, t2, L2T, L2T); cmul4(F, t0, t2, t2); cmul4(F, L16, t0, t0)
    cmul4(F, L32, L16, L16); cmul4(F, t0, L32, L32); cmul4(F, L128, t0, t0)
    F(f"v_mul_f32 {v(EXA)}, {v(EXA)}, {v(t6)}"); F(f"v_mul_f32 {v(EXB)}, {v(EXB)}, {v(t6)}")
    cexp(WSEG, EXA, EXB)
    F(f"v_mul_f32 {v(EXA)}, 0x41800000, {v(EXA)}"); F(f"v_mul_f32 {v(EXB)}, 0x41800000, {v(EXB)}")
    cexp(t6, EXA, EXB)
    cmul4(F, WG_, t6, KK)
    for q in range(1, 4): cmul4(F, WG_ + 2 * q, WG_ + 2 * q - 2, L128)
    for (src, dst) in ((L2T, L2T), (L1, LT), (KK, KT)):
        if src != dst: F(f"v_mov_b64 {v(dst,2)}, {v(src,2)}")
        F(f"v_mov_b64 {v(dst+2,2)}, {v(src,2)}")
    F(f"v_mov_b32 {v(GR+1)}, {v(vTAG)}"); F(f"v_mov_b32 {v(GR+3)}, {v(vTAG)}")
    for dst in (L2T, LT, KT):
        for e in range(2): F(f"v_permlane32_swap_b32 {v(dst+e)}, {v(dst+2+e)}")
    so = [sT0, sT1, sT3, sU0]; ex = [sU1, sU2, sL2E, sL2E + 1]
    for q in range(4):
        F(f"s_lshl2_add_u32 {s(so[q])}, {s(sW)}, {q+1}")
        F(f"s_lshl_b32 {s(ex[q])}, {s(so[q])}, 10")
        F(f"s_sub_u32 {s(ex[q])}, {s(sT2)}, {s(ex[q])}")
        F(f"s_cmp_le_u32 {s(so[q])}, {s(sC)}", f"s_cselect_b32 {s(so[q])}, {s(ex[q])}, {WS_SIZE}", f"s_cselect_b32 {s(ex[q])}, {s(sTAG)}, 0")
    weight_touch(F)
    p2_early(F)
    utok, lo = main_loop('ssm', [wo_ops(0, 0), c_ops(1)], F)
    stamp(2)
    tok_wo = utok[8]
    SA = [TMP, TMP + 8]
    for m in range(1, 8):
        for ct in range(2):
            are, aim = ACC + 32 * ct + 2 * m, ACC + 32 * ct + 16 + 2 * m
            if m == 1: sre, sim = ACC + 32 * ct, ACC + 32 * ct + 16
            else: sre, sim = SA[m % 2] + 4 * ct, SA[m % 2] + 4 * ct + 2
            dre, dim = SA[(m + 1) % 2] + 4 * ct, SA[(m + 1) % 2] + 4 * ct + 2
            l2 = v(L2T + 2 * ct, 2)
            A(f"v_pk_fma_f32 {v(dre,2)}, {v(sre,2)}, {l2}, {v(are,2)} op_sel_hi:[1,0,1]")
            A(f"v_pk_fma_f32 {v(dim,2)}, {v(sim,2)}, {l2}, {v(aim,2)} op_sel_hi:[1,0,1]")
            A(f"v_pk_fma_f32 {v(dre,2)}, {v(sim,2)}, {l2}, {v(dre,2)} op_sel:[0,1,0]")
            A(f"v_pk_fma_f32 {v(dim,2)}, {v(sre,2)}, {l2}, {v(dim,2)} op_sel:[0,1,0] neg_lo:[0,1,0] neg_hi:[0,1,0]")
    S_ = SA[0]
    for e in range(4): A(f"v_permlane32_swap_b32 {v(S_+e)}, {v(S_+4+e)}")
    EA = TMP + 16; EB = TMP + 18
    for sg, d in ((0, EA), (1, EB)):
        b = S_ + 4 * sg
        A(f"v_fma_f32 {v(d)}, {v(L1)}, {v(b)}, {v(b+1)}")
        A(f"v_fma_f32 {v(d+1)}, {v(L1+1)}, {v(b)}, -{v(b+3)}")
        A(f"v_fma_f32 {v(d)}, {v(L1+1)}, {v(b+2)}, {v(d)}")
        A(f"v_fma_f32 {v(d+1)}, -{v(L1)}, {v(b+2)}, {v(d+1)}")
    cmul(EB, EA, L16, EB)
    A(f"ds_write_b64 {v(AD+1)}, {v(EB,2)}")
    A.wait(vm=tok_wo, lg=A.lg)
    A("s_barrier")
    EW = BUF
    tk = [A(f"ds_read_b64 {v(EW+2*q,2)}, {v(AD)} offset:{q*512}") for q in range(4)]
    PF = BUF + 8
    A(f"s_cmp_eq_u32 {s(sW)}, 0")
    A.wait(lg=tk[1]); cmul(PF, EW, L32, EW + 2)
    A.wait(lg=tk[2]); cmul(PF + 2, PF, L32, EW + 4)
    A.wait(lg=tk[3]); cmul(PF + 4, PF + 2, L32, EW + 6)
    A("s_cbranch_scc0 L_nopub")
    A(f"v_mov_b32 {v(GR)}, {v(PF+4)}"); A(f"v_mov_b32 {v(GR+2)}, {v(PF+5)}")
    snap = A.snapshot()
    A(f"buffer_store_dwordx4 {v(GR,4)}, {v(vL16)}, {s(R_WS,4)}, {s(sT2)} offen sc1")
    A.restore(snap)
    A.label("L_nopub")
    stamp(3)
    EP = opt.get('ep', 1)
    st_ = Stream(lo + wo_ops(1, 65536) + ([] if EP else c_ops(3)))
    tok_wo1 = A.vm + 8 + sum(o.startswith('buffer') for o in lo)
    st_.dma(2)
    PW = BUF + 14; EK = BUF + 16
    ops = [f"v_mov_b32 {v(t0)}, 0", f"v_mov_b32 {v(t1)}, 0"]
    for q, src in ((1, EW), (2, PF), (3, PF + 2)):
        ops += [f"s_cmp_eq_u32 {s(sW)}, {q}", "s_cselect_b64 exec, -1, 0", f"v_mov_b64 {v(t0,2)}, {v(src,2)}"]
    ops += ["s_mov_b64 exec, -1"]
    run(ops)
    cmul(PW, t0, KK); cmul(EK, EA, KK)
    IF = BUF + 20
    A(f"v_mov_b32 {v(t4)}, 0x3f80"); A(f"v_mov_b32 {v(t5)}, 0"); A(f"v_and_b32 {v(t6)}, 48, {v(vL16)}")
    for q in range(4): A(f"v_mov_b64 {v(IF+2*q,2)}, 0")
    A(f"v_lshlrev_b64 {v(t4,2)}, {v(t6)}, {v(t4,2)}")
    for q in range(4):
        sel_exec(0xf << (4 * q), 0xf << (16 + 4 * q))
        A(f"v_mov_b64 {v(IF+2*q,2)}, {v(t4,2)}")
    A("s_mov_b64 exec, -1")
    U = TMP
    def upair(ct, k): return U + 32 * ct + 2 * k
    ops = []
    for ct in range(2):
        for k in range(16):
            re, im = ACC + 32 * ct + (k & ~1), ACC + 32 * ct + 16 + (k & ~1)
            b = k & 1
            ops.append(f"v_pk_mul_f32 {v(upair(ct,k),2)}, {v(re,2)}, {v(KT+2*ct,2)} op_sel:[{b},0] op_sel_hi:[{b},1]")
            ops.append(f"v_pk_fma_f32 {v(upair(ct,k),2)}, {v(im,2)}, {v(KT+2*ct,2)}, {v(upair(ct,k),2)} op_sel:[{b},1,0] op_sel_hi:[{b},0,1] neg_hi:[0,1,0]")
    def rw_hi(): A(f"v_add_u32 {v(RW)}, 0x10000, {v(RW)}"); A(f"v_add_u32 {v(RW+1)}, 0x10000, {v(RW+1)}")
    if EP: sprinkle(ops, st_, 7)
    else: sprinkle(wo_reads(0, RW, 0) + ops, st_, 7); rw_hi()
    st_.rest()
    LB = ACC
    stamp(23)
    def ld():
        for q in range(4): A(f"buffer_load_dwordx4 {v(LB+4*q,4)}, {v(vL16)}, {s(R_WS,4)}, {s(so[q])} offen sc1")
    def ck():
        A(f"v_xor_b32 {v(t0)}, {s(ex[0])}, {v(LB+1)}")
        for r in (3, 5, 7, 9, 11, 13, 15):
            A(f"v_bitop3_b32 {v(t0)}, {v(t0)}, {v(LB+r)}, {s(ex[r//4])} bitop3:0xf6")
        A(f"v_cmp_ne_u32 vcc, 0, {v(t0)}")
    ld()
    tok_p = A.vm
    if EP:
        run(wo_reads(0, RW, 0)); rw_hi()
    else:
        A.wait(vm=tok_wo1, lg=A.lg)
        A("s_barrier")
        run(wo_reads(1, RW, 0))
    A.wait(vm=tok_p)
    ck()
    A("s_nop 0")
    A("s_cbranch_vccz L_pagg_x")
    snap = A.snapshot()
    spin("L_pagg", ld, ck)
    A.restore(snap)
    stamp(4)
    for q in range(4):
        if q == 0: A(f"v_pk_mul_f32 {v(t0,2)}, {v(LB,2)}, {v(WG_,2)} op_sel_hi:[0,1]")
        else: A(f"v_pk_fma_f32 {v(t0,2)}, {v(LB+4*q,2)}, {v(WG_+2*q,2)}, {v(t0,2)} op_sel_hi:[0,1,1]")
        A(f"v_pk_fma_f32 {v(t0,2)}, {v(LB+4*q+2,2)}, {v(WG_+2*q,2)}, {v(t0,2)} op_sel:[0,1,0] op_sel_hi:[0,0,1] neg_lo:[0,1,0]")
    A(f"ds_write_b64 {v(AD+1)}, {v(t0,2)} offset:2048")
    A.wait_all(vm=False)
    A("s_barrier")
    stamp(24)
    for q in range(4): tok = A(f"ds_read_b64 {v(EW+2*q,2)}, {v(AD)} offset:{2048+q*512}")
    A.wait(lg=tok)
    A(f"v_pk_add_f32 {v(EW,2)}, {v(EW,2)}, {v(EW+2,2)}")
    A(f"v_pk_add_f32 {v(EW+4,2)}, {v(EW+4,2)}, {v(EW+6,2)}")
    A(f"v_pk_add_f32 {v(EW,2)}, {v(EW,2)}, {v(EW+4,2)}")
    cmul(t0, EW, WSEG, PW)
    cmul(t2, t0, L16, EK)
    A(f"v_permlane32_swap_b32 {v(t0)}, {v(t2)}")
    A(f"v_permlane32_swap_b32 {v(t1)}, {v(t3)}")
    HP = ACC
    TD = [ACC + 32, ACC + 48, TMP, TMP + 16]
    def cvt1(ct): return [f"v_cvt_pk_bf16_f32 {v(HP+8*(2*ct+cp)+k)}, {v(upair(ct,2*k)+cp)}, {v(upair(ct,2*k+1)+cp)}" for cp in range(2) for k in range(8)]
    def cvt2(f): return [f"v_cvt_pk_bf16_f32 {v(HP+4*f+k)}, {v(TD[f//2]+8*(f%2)+2*k)}, {v(TD[f//2]+8*(f%2)+2*k+1)}" for k in range(4)]
    def tm(f): A(f"v_mfma_f32_32x32x16_bf16 {v(TD[f//2],16)}, {v(HP+4*f,4)}, {v(IF+4*(f%2),4)}, {'0' if f % 2 == 0 else v(TD[f//2],16)}")
    def h_store(f):
        if f == 4: A(f"s_add_u32 {s(sU3)}, {s(sU3)}, 4096")
        return A(f"buffer_store_dwordx4 {v(HP+4*f,4)}, {v(vL16)}, {s(R_WS,4)}, {s(sU3)} offen offset:{(f%4)*1024} sc1")
    mid = Stream(c_ops(3) if EP else c_ops(0))
    if opt.get('md', 0): mid.salu()
    for ct in range(2):
        for k in range(16):
            cmul(upair(ct, k), t0 + 2 * ct if k == 0 else upair(ct, k - 1), LT + 2 * ct, upair(ct, k))
        cs_ = cvt1(ct)
        run(cs_[:6])
        f0 = 4 * ct
        if ct == 0 and opt.get('md', 0):
            tm(f0); run(cs_[6:12]); tm(f0 + 1); run(cs_[12:]); mid.dma()
            tm(f0 + 2); mid.dma(); tm(f0 + 3); mid.dma(2)
        else:
            tm(f0); run(cs_[6:12]); tm(f0 + 1); run(cs_[12:]); A("s_nop 1")
            tm(f0 + 2); A("s_nop 3"); tm(f0 + 3)
        if ct == 0: stamp(25)
        for f in range(f0, f0 + 4):
            run(cvt2(f)); tok_h = h_store(f)
    stamp(5)
    A(f"s_lshr_b32 {s(sT0)}, {s(sMX)}, 2"); A(f"s_add_u32 m0, {s(sT0)}, {GWS}")
    tok_gw = A(f"buffer_load_dwordx4 {v(vL16)}, {s(P_GW,4)}, 0 offen lds")
    rest = Stream(mid.ops + (c_ops(0) if EP else c_ops(2)))
    if EP: run(wo_reads(1, RW, 0))
    p2_setup()
    rest.dma(opt.get('sdrain', 4))
    A.wait(vm=tok_h)
    flag_store(sHF)
    stamp(6)
    rest.rest()
    if EP:
        A.wait_all(vm=False)
        A("s_barrier")
        run(c_ops(2))
    stamp(26)
    A(f"s_mov_b32 {s(sFM)}, 0")
    A(f"s_cmp_eq_u32 {s(sJ)}, 0")
    A("s_cbranch_scc0 L_nogate")
    GD = ACC
    A.wait(vm=tok_gw)
    A("s_barrier")
    A(f"s_lshl_b32 {s(sT0)}, {s(sK0)}, 7"); A(f"s_add_u32 {s(sT0)}, {s(sT0)}, {GWS}")
    A(f"v_lshrrev_b32 {v(t0)}, 5, {v(vL)}")
    A(f"v_lshl_add_u32 {v(AD+8)}, {v(t0)}, 4, {s(sT0)}")
    A(f"v_lshrrev_b32 {v(t0)}, 4, {v(vL)}"); A(f"v_xor_b32 {v(t0)}, {v(t0)}, {v(vL)}"); A(f"v_and_b32 {v(t0)}, 1, {v(t0)}")
    A(f"v_lshl_add_u32 {v(AD+8)}, {v(t0)}, 11, {v(AD+8)}")
    toks = []
    for st in range(8): toks.append(A(f"ds_read_b128 {v(BUF+4*st,4)}, {v(AD+8)} offset:{st*32}"))
    for st in range(32):
        A.wait(lg=toks[st])
        A(f"v_mfma_f32_16x16x32_bf16 {v(GD+8,4)}, {v(BUF+4*(st%8),4)}, {a(4*st,4)}, {'0' if st == 0 else v(GD+8,4)}")
        if st + 8 < 32: toks.append(A(f"ds_read_b128 {v(BUF+4*(st%8),4)}, {v(AD+8)} offset:{(st+8)*32}"))
    A(f"v_bfe_u32 {v(t0)}, {v(vL)}, 2, 1"); A(f"v_bfe_u32 {v(t1)}, {v(vL)}, 3, 2"); A(f"v_and_b32 {v(t2)}, 12, {v(vL4)}")
    A(f"v_lshl_add_u32 {v(t2)}, {v(t1)}, 4, {v(t2)}")
    A(f"v_lshl_add_u32 {v(t2)}, {v(t0)}, 6, {v(t2)}")
    A(f"s_lshl_b32 {s(sT0)}, {s(sTT)}, 7"); A(f"s_add_u32 {s(sT0)}, {s(sT0)}, {WS_G}")
    A(f"s_lshl_b32 {s(sT2)}, {s(sTT)}, 9"); A(f"s_add_u32 {s(sT2)}, {s(sT2)}, {WS_OF+16}")
    A(f"s_mov_b32 {s(sFM)}, 3")
    sel_exec(0xffff0000, 0xffff0000)
    A(f"v_mov_b32 {v(GD+8)}, {v(GD+9)}")
    A("s_mov_b64 exec, -1")
    A(f"v_mul_f32 {v(t0)}, 0xbfb8aa3b, {v(GD+8)}")
    A(f"v_exp_f32 {v(t0)}, {v(t0)}")
    A(f"v_add_f32 {v(t0)}, 1.0, {v(t0)}")
    A(f"v_rcp_f32 {v(t0)}, {v(t0)}")
    A("s_nop 0")
    A(f"buffer_store_dword {v(t0)}, {v(t2)}, {s(R_WS,4)}, {s(sT0)} offen sc1")
    A.label("L_nogate")
    poll_issue()
    A("s_branch L_phase2")

    A.restore(snap0)
    A.raw(".p2align 12")
    A.label("L_attn")
    epoch_load()
    F = Fill()

    NL = AD + 10
    ONES = TMP + 48
    LA = TMP + 56
    sOA, sOF, sKB, sZB = P_GW, P_GW + 1, P_OUT, P_OUT + 1
    F(f"s_lshl2_add_u32 {s(sT2)}, {s(sJ)}, {s(sW)}")
    F(f"s_lshl4_add_u32 {s(sT3)}, {s(sT2)}, {s(sC)}")
    F(f"s_lshl_b32 {s(sU1)}, {s(sT3)}, 10"); F(f"s_add_u32 {s(sU1)}, {s(sU1)}, {WS_KVP}")
    F(f"s_lshl_b32 {s(sU2)}, {s(sT3)}, 6"); F(f"s_add_u32 {s(sU2)}, {s(sU2)}, {WS_ZP}")
    F(f"v_mov_b64 {v(TMP,2)}, -1"); F(f"v_mov_b64 {v(TMP+2,2)}, -1")
    F(f"s_mov_b32 {s(sL2E)}, 0x3fb8aa3b"); F(f"s_mov_b32 {s(sL2E+1)}, 0x3fb8aa3b")
    F(f"s_mov_b32 {s(sEPS)}, 0x358637bd"); F(f"s_mov_b32 {s(sEPS+1)}, 0x358637bd")
    F(f"v_mov_b32 {v(NL)}, 0xbfb8aa3b"); F(f"v_mov_b32 {v(NL+1)}, 0xbfb8aa3b")
    SEL = TMP + 32
    F(f"v_bfe_u32 {v(t0)}, {v(vL)}, 2, 2")
    F(f"v_mov_b32 {v(t1)}, 0x3f803f80")
    for hd in range(4):
        F(f"v_cmp_eq_u32 vcc, {hd}, {v(t0)}", f"v_cndmask_b32 {v(SEL+4*hd)}, 0, {v(t1)}, vcc")
        F(f"v_mov_b32 {v(SEL+4*hd+1)}, {v(SEL+4*hd)}")
        F(f"v_mov_b64 {v(SEL+4*hd+2,2)}, {v(SEL+4*hd,2)}")
    F(f"s_lshl_b32 {s(sU0)}, {s(sT2)}, 11"); F(f"s_add_u32 {s(sU0)}, {s(sU0)}, {WS_KVF}")
    F(f"s_lshl_b32 {s(sT3)}, {s(sC)}, 7"); F(f"s_add_u32 {s(sT3)}, {s(sT3)}, {s(sU0)}")
    F(f"v_lshrrev_b32 {v(AD+8)}, 2, {v(vL)}"); F(f"v_lshlrev_b32 {v(AD+8)}, 7, {v(AD+8)}")
    F(f"s_lshl_b32 {s(sT0)}, {s(sW)}, 10"); F(f"s_add_u32 {s(sT0)}, {s(sT0)}, {SCR}")
    F(f"v_add_u32 {v(AD)}, {s(sT0)}, {v(vL16)}")
    F(f"s_add_u32 {s(sT0)}, {s(sMX)}, {SCR}")
    F(f"v_add_u32 {v(AD+1)}, {s(sT0)}, {v(vL16)}")
    F(f"s_lshl_b32 {s(sT0)}, {s(sW)}, 8"); F(f"s_add_u32 {s(sT0)}, {s(sT0)}, {SCR+16384}")
    F(f"v_add_u32 {v(AD+2)}, {s(sT0)}, {v(vL4)}")
    F(f"s_lshl_b32 {s(sT0)}, {s(sW)}, 6"); F(f"s_add_u32 {s(sT0)}, {s(sT0)}, {SCR+16384}")
    F(f"v_and_b32 {v(AD+4)}, 60, {v(vL4)}")
    F(f"v_add_u32 {v(AD+3)}, {s(sT0)}, {v(AD+4)}")
    F(f"v_add_u32 {v(AD+6)}, {SCR}, {v(RW)}"); F(f"v_add_u32 {v(AD+7)}, {SCR}, {v(RW+1)}")
    F(f"v_add_u32 {v(AD+4)}, 0x18000, {v(RW)}"); F(f"v_add_u32 {v(AD+5)}, 0x18000, {v(RW+1)}")
    KVS, ZS = SCR + 20480, SCR + 22528
    F(f"s_lshr_b32 {s(sT0)}, {s(sW)}, 1"); F(f"s_lshl_b32 {s(sT0)}, {s(sT0)}, 10")
    F(f"s_lshl_b32 {s(sT1)}, {s(sKH)}, 8"); F(f"s_add_u32 {s(sT1)}, {s(sT1)}, {s(sT0)}"); F(f"s_add_u32 {s(sT1)}, {s(sT1)}, {KVS}")
    F(f"v_and_b32 {v(t4)}, 0xf0, {v(vL16)}"); F(f"v_bfe_u32 {v(t5)}, {v(vL)}, 4, 1"); F(f"v_lshrrev_b32 {v(t6)}, 5, {v(vL)}")
    F(f"v_lshl_add_u32 {v(t4)}, {v(t5)}, 9, {v(t4)}"); F(f"v_lshl_add_u32 {v(t4)}, {v(t6)}, 3, {v(t4)}")
    F(f"v_add_u32 {v(LA)}, {s(sT1)}, {v(t4)}")
    F(f"s_lshl_b32 {s(sT1)}, {s(sKH)}, 5"); F(f"s_add_u32 {s(sT1)}, {s(sT1)}, {s(sT0)}"); F(f"s_add_u32 {s(sT1)}, {s(sT1)}, {ZS}")
    F(f"v_bfe_u32 {v(t4)}, {v(vL)}, 2, 1"); F(f"v_bfe_u32 {v(t5)}, {v(vL)}, 3, 1"); F(f"v_and_b32 {v(t6)}, 3, {v(vL)}")
    F(f"v_lshl_add_u32 {v(t6)}, {v(t6)}, 1, {s(sT1)}")
    F(f"v_lshl_add_u32 {v(t6)}, {v(t5)}, 3, {v(t6)}")
    F(f"v_lshl_add_u32 {v(LA+1)}, {v(t4)}, 4, {v(t6)}")
    F(f"v_add_u32 {v(LA+2)}, {KVS}, {v(vL16)}")
    F(f"v_mov_b32 {v(LA+3)}, {v(LA+2)}")
    F(f"v_lshrrev_b32 {v(t5)}, 5, {v(vL)}")
    F(f"v_lshlrev_b32 {v(t5)}, 4, {v(t5)}")
    F(lambda: sel_exec(0xffff0000, 0xffff0000), f"v_add_u32 {v(LA+2)}, {ZS}, {v(t5)}", "s_mov_b64 exec, -1")
    F(lambda: sel_exec(0x0000ffff, 0x0000ffff), f"v_add_u32 {v(LA+3)}, {ZS+32}, {v(t5)}", "s_mov_b64 exec, -1")
    F(f"v_bfe_u32 {v(t5)}, {v(vL)}, 3, 2"); F(f"v_and_b32 {v(t6)}, 35, {v(vL)}")
    F(f"v_lshl_add_u32 {v(t6)}, {v(t5)}, 2, {v(t6)}")
    F(f"v_lshl_add_u32 {v(t6)}, {v(t4)}, 4, {v(t6)}")
    F(f"v_lshlrev_b32 {v(LA+4)}, 4, {v(t6)}")
    F(f"s_mul_i32 {s(sOA)}, {s(sTT)}, 98304"); F(f"s_lshl_b32 {s(sT1)}, {s(sJ)}, 12"); F(f"s_add_u32 {s(sOA)}, {s(sOA)}, {s(sT1)}")
    F(f"s_add_u32 {s(sOA)}, {s(sOA)}, {WS_ACT+65536}")
    flag_addr(F, sOF, sU3, WS_OF)
    F(f"s_and_b32 {s(sKB)}, {s(sC)}, 3"); F(f"s_lshl2_add_u32 {s(sKB)}, {s(sT2)}, {s(sKB)}")
    F(f"s_lshl_b32 {s(sKB)}, {s(sKB)}, 12"); F(f"s_add_u32 {s(sKB)}, {s(sKB)}, {WS_KVP}")
    F(f"s_lshl_b32 {s(sZB)}, {s(sT2)}, 10"); F(f"s_add_u32 {s(sZB)}, {s(sZB)}, {WS_ZP}")
    F.it = opt.get('clrit', 2)
    tok_clr = []
    F(f"buffer_store_dwordx4 {v(TMP,4)}, {v(vL16)}, {s(R_WS,4)}, {s(sU1)} offen sc1")
    F("s_mov_b64 exec, 0xffff", lambda: tok_clr.append(A(f"buffer_store_dword {v(TMP)}, {v(vL4)}, {s(R_WS,4)}, {s(sU2)} offen sc1")), "s_mov_b64 exec, -1")
    get_tag(F)
    F.it += 2
    F(lambda: A.wait(vm=tok_clr[0]), lambda: flag_store(sT3))
    weight_touch(F)
    p2_early(F)
    utok, lo = main_loop('attn', [wq_ops(0), wq_ops(1)], F)
    stamp(2)
    tok_wq = utok[9]
    A("s_barrier")
    def phi_ops(src, dst):
        L = []
        def fin(sr, pp, d):
            L.append(f"v_max_f32 {v(pp)}, {v(pp)}, {v(sr)}")
            L.append(f"v_max_f32 {v(pp+1)}, {v(pp+1)}, {v(sr+1)}")
            L.append(f"v_pk_add_f32 {v(pp,2)}, {v(pp,2)}, {s(sEPS,2)}")
            L.append(f"v_cvt_pk_bf16_f32 {v(d)}, {v(pp)}, {v(pp+1)}")
        for k in range(0, 16, 2):
            tt = t0 + 2 * ((k // 2) % 4)
            L.append(f"v_pk_fma_f32 {v(tt,2)}, {v(src+k,2)}, {s(sL2E,2)}, {v(NL,2)}")
            L.append(f"v_exp_f32 {v(tt)}, {v(tt)} clamp")
            L.append(f"v_exp_f32 {v(tt+1)}, {v(tt+1)} clamp")
            if k >= 2: fin(src + k - 2, t0 + 2 * ((k // 2 - 1) % 4), dst + k // 2 - 1)
        fin(src + 14, t0 + 2 * (7 % 4), dst + 7)
        return L
    PK, PV = TMP, TMP + 16
    ZD = TM2; KD = TM2 + 4
    st_ = Stream(wo_ops(0, 98304) + c_ops(2))
    def swaps(b): return [f"v_permlane16_swap_b32 {v(b+r)}, {v(b+4+r)}" for r in range(4)]
    e1 = phi_ops(ACC, PK) + [f"v_cvt_pk_bf16_f32 {v(PV+k)}, {v(ACC+32+2*k)}, {v(ACC+32+2*k+1)}" for k in range(16)]
    e1 += swaps(PK) + swaps(PV) + swaps(PV + 8) + phi_ops(ACC + 16, PK + 8)
    E0 = opt.get('e1skip', 30)
    sprinkle(e1[:E0], los := Stream(lo + [f"buffer_load_dword {v(vF)}, {v(AD+8)}, {s(R_WS,4)}, {s(sU0)} offen sc1"]), 7)
    los.rest()
    tokF = [A.vm]
    vm0 = A.vm
    sprinkle(e1[E0:], st_, opt.get('e1every', 9))
    tok_wo0 = vm0 + 8
    stamp(40)
    sw = swaps(PK + 8)
    def kvm(hd): A(f"v_mfma_f32_16x16x32_bf16 {v(KD+4*hd,4)}, {v(PK+4*hd,4)}, {v(PV+4*hd,4)}, 0")
    def zm(hd): A(f"v_mfma_f32_16x16x32_bf16 {v(ZD,4)}, {v(SEL+4*hd,4)}, {v(PK+4*hd,4)}, {'0' if hd == 0 else v(ZD,4)}")
    kvm(0); run(sw[:2]); kvm(1); run(sw[2:]); zm(0); zm(1); kvm(2); kvm(3); zm(2); zm(3)
    stamp(41)
    for hd in range(4):
        A(f"ds_write_b128 {v(AD)}, {v(KD+4*hd,4)} offset:{hd*4096}")
    A(f"ds_write_b32 {v(AD+2)}, {v(ZD)}")
    st_.dma(opt.get('e1d', 2))
    stamp(42)
    A.wait(vm=tokF[0])
    stamp(43)
    A(f"v_cmp_ne_u32 vcc, {v(vF)}, {v(vTAG)}")
    A.wait_all(vm=False)
    A("s_barrier")
    stamp(44)
    for q in range(4): tk = A(f"ds_read_b128 {v(ACC+4*q,4)}, {v(AD+1)} offset:{q*1024}")
    for q in range(4): tz = A(f"ds_read_b32 {v(ACC+16+q)}, {v(AD+3)} offset:{q*256}")
    QA = TM2
    def qreads(ks):
        b = BUF + 8 * (ks % 4)
        L = []
        for tl in range(2):
            base = (ks // 4) * 8192 + (ks % 4) * 2048
            L.append(f"ds_read_b64_tr_b16 {v(b+4*tl,2)}, {v(RT+tl)} offset:{base}")
            L.append(f"ds_read_b64_tr_b16 {v(b+4*tl+2,2)}, {v(RT+tl)} offset:{base+512}")
        return L
    toks = [run(qreads(0))]
    st_.dma(1)
    A.wait(lg=tk)
    for e in (0, 2):
        A(f"v_pk_add_f32 {v(ACC+e,2)}, {v(ACC+e,2)}, {v(ACC+4+e,2)}")
        A(f"v_pk_add_f32 {v(ACC+8+e,2)}, {v(ACC+8+e,2)}, {v(ACC+12+e,2)}")
        A(f"v_pk_add_f32 {v(ACC+e,2)}, {v(ACC+e,2)}, {v(ACC+8+e,2)}")
    for e in range(4): A(f"v_min_u32 {v(ACC+e)}, -2, {v(ACC+e)}")
    A(f"buffer_store_dwordx4 {v(ACC,4)}, {v(vL16)}, {s(R_WS,4)}, {s(sU1)} offen sc1")
    A.wait(lg=tz)
    A(f"v_pk_add_f32 {v(ACC+16,2)}, {v(ACC+16,2)}, {v(ACC+18,2)}")
    A(f"v_add_f32 {v(ACC+16)}, {v(ACC+16)}, {v(ACC+17)}")
    A(f"v_min_u32 {v(ACC+16)}, -2, {v(ACC+16)}")
    A("s_mov_b64 exec, 0xffff")
    A(f"buffer_store_dword {v(ACC+16)}, {v(vL4)}, {s(R_WS,4)}, {s(sU2)} offen sc1")
    A("s_mov_b64 exec, -1")
    stamp(3)
    st_.rest()
    tok_e1 = st_.last
    A("s_cbranch_vccz L_clr_x")
    snap = A.snapshot()
    def ld(): A(f"buffer_load_dword {v(vF)}, {v(AD+8)}, {s(R_WS,4)}, {s(sU0)} offen sc1")
    def ck(): A(f"v_cmp_ne_u32 vcc, {v(vF)}, {v(vTAG)}")
    spin("L_clr", ld, ck)
    A.restore(snap)
    toks.append(run(qreads(1)))
    ZL = TMP + 52
    def kv_loads():
        L = [f"buffer_load_dword {v(ZL+q)}, {v(vL4)}, {s(R_WS,4)}, {s(sZB)} offen offset:{q*256} sc1" for q in range(4)]
        for q in range(16):
            if q % 4 == 0: L.append(f"s_xor_b32 {s(sD1)}, {s(sKB)}, {q*1024}")
            L.append(f"buffer_load_dwordx4 {v(ACC+4*q,4)}, {v(vL16)}, {s(R_WS,4)}, {s(sD1)} offen offset:{(q%4)*1024} sc1")
        return L
    KVAT = opt.get('kvat', 17)
    side = None; wrd = None
    for ks in range(32):
        if ks == 0:
            A.wait(vm=tok_wo0)
            A("s_barrier")
            side = Stream(wo_ops(1, SCR)); wrd = Stream(wo_reads(0, AD + 4, 0))
        if ks == 8:
            side.rest(); tok_wo1 = A.vm
            tok_wr = A.lg
        if ks == 9:
            A.wait(lg=tok_wr)
            A("s_barrier")
            side = Stream(c_ops(3))
        if ks == 17:
            side.rest()
            A.wait(vm=tok_wo1)
            A("s_barrier")
            stamp(23)
            side = Stream(c_ops(0)); wrd = Stream(wo_reads(1, AD + 6, 0))
        if ks == KVAT:
            nk = A.vm + 20
            side = Stream(kv_loads() + side.ops)
            side.dma(2)
        A.wait(lg=toks[ks])
        stamp(200 + ks)
        rd = qreads(ks + 2) if ks + 2 < 32 else []
        b = BUF + 8 * (ks % 4)
        for tl in range(2):
            A(f"v_mfma_f32_32x32x16_bf16 {v(QA+16*tl,16)}, {v(b+4*tl,4)}, {a(4*ks,4)}, {'1.0' if ks == 0 else v(QA+16*tl,16)}")
            if tl == 0:
                run(rd); toks.append(A.lg)
                if wrd and (ks < 8 or ks >= 30): wrd.some(2)
            else:
                if wrd: wrd.some(2)
                if side: side.dma()
    wrd.rest()
    stamp(24)
    PQ = TMP
    sprinkle(phi_ops(QA, PQ) + phi_ops(QA + 16, PQ + 8), side, opt.get('kvevery', 10))
    side.rest()
    tok_kv = nk
    A.wait_all(vm=False)
    A("s_barrier")
    stamp(25)
    A(f"s_mov_b32 {s(sCNT)}, {SPIN}")
    stamp(4)
    KS = TMP + 16
    def kv_sum(last, side=None):
        A.wait(vm=last - 15)
        A(f"v_pk_add_f32 {v(t0,2)}, {v(ZL,2)}, {v(ZL+2,2)}")
        A(f"v_add_f32 {v(t0)}, {v(t0)}, {v(t1)}")
        A(f"v_mov_b32 {v(t1)}, {v(t0)}")
        for q in range(1, 16):
            if q in (1, 8, 12, 14, 15): A.wait(vm=last - 15 + {1: 7, 8: 11, 12: 13}.get(q, q))
            if side: stamp(50 + q)
            for e in (0, 2): A(f"v_pk_add_f32 {v(KS+e,2)}, {v((ACC if q == 1 else KS)+e,2)}, {v(ACC+4*q+e,2)}")
            if q in (1, 2):
                A(f"v_permlane{32 if q == 1 else 16}_swap_b32 {v(t0)}, {v(t1)}")
                A(f"v_add_f32 {v(t0)}, {v(t0)}, {v(t1)}")
                if q == 1: A(f"v_mov_b32 {v(t1)}, {v(t0)}")
        A(f"v_pk_add_f32 {v(t2,2)}, {v(KS,2)}, {v(KS+2,2)}")
        A(f"v_add_f32 {v(t2)}, {v(t2)}, {v(t0)}")
        A(f"v_cmp_u_f32 vcc, {v(t2)}, {v(t3)}")
        A(f"v_cvt_pk_bf16_f32 {v(t0)}, {v(t0)}, {v(t0)}")
    p2_setup()
    A(f"s_mov_b32 {s(sT2)}, {s(sOF)}"); A(f"s_mov_b32 {s(sFM)}, 1")
    cs = Stream(c_ops(1))
    cs.dma(opt.get('c1pre', 0))
    kv_sum(tok_kv, cs)
    A("s_cbranch_vccnz L_kvretry")
    snap_kv = A.snapshot()
    A.label("L_kvok")
    stamp(5)
    A(f"ds_write_b16 {v(LA+1)}, {v(t0)}")
    A(f"v_cvt_pk_bf16_f32 {v(t2)}, {v(KS)}, {v(KS+1)}")
    A(f"v_cvt_pk_bf16_f32 {v(t3)}, {v(KS+2)}, {v(KS+3)}")
    A(f"ds_write_b64 {v(LA)}, {v(t2,2)}")
    A.wait_all(vm=False)
    A("s_barrier")
    stamp(70)
    AF = TMP + 16
    toks = []
    for hd4 in range(4): toks.append(A(f"ds_read_b128 {v(AF+4*hd4,4)}, {v(LA+2+(hd4&1))} offset:{(hd4>>1)*1024}"))
    cs.dma(3)
    for hd4 in range(4):
        A.wait(lg=toks[hd4])
        A(f"v_mfma_f32_32x32x16_bf16 {v(ACC+16*hd4,16)}, {v(AF+4*hd4,4)}, {v(PQ+4*hd4,4)}, 0")
        cs.dma()
    cs.rest()
    poll_issue(); tok_pl = A.vm
    stamp(71)
    OP = TMP + 48
    for hd4 in range(4):
        hd = hd4 & 1
        nb_, db_ = ACC + 16 * hd4 + 8 * hd, ACC + 16 * hd4 + 8 * (1 - hd)
        A(f"v_add_f32 {v(db_)}, {s(sEPS)}, {v(db_)}")
        A(f"v_rcp_f32 {v(db_)}, {v(db_)}")
        for e in range(0, 8, 2): A(f"v_pk_mul_f32 {v(nb_+e,2)}, {v(nb_+e,2)}, {v(db_,2)} op_sel_hi:[1,0]")
        for e in range(0, 8, 2): A(f"v_cvt_pk_bf16_f32 {v(TM2+4*hd4+e//2)}, {v(nb_+e)}, {v(nb_+e+1)}")
        A(f"buffer_store_dwordx4 {v(TM2+4*hd4,4)}, {v(LA+4)}, {s(R_WS,4)}, {s(sOA)} offen offset:{hd4*1024} sc1")
    stamp(26)
    A(f"v_lshlrev_b32 {v(t3)}, 8, {v(vL)}")
    A.wait(vm=tok_pl, lg=A.lg)
    A(f"v_cmp_ne_u32 vcc, {v(vF)}, {v(vTAG)}")
    A("s_barrier")
    stamp(6); stamp(7)
    A("s_cbranch_vccz L_ph_x")
    poll_issue()
    A("s_branch L_p2s")

    A.raw(".p2align 12")
    A.label("L_phase2")
    A.hist = []
    A.wait_all(vm=True, lg=True, force=True)
    A("s_barrier")
    A.label("L_p2s")
    stamp(7)
    def ld(): A(f"buffer_load_dword {v(vF)}, {v(AD+9)}, {s(R_WS,4)}, {s(sHFA)} offen sc1")
    def ck(): A(f"v_cmp_ne_u32 vcc, {v(vF)}, {v(vTAG)}")
    A(f"v_lshlrev_b32 {v(t3)}, 8, {v(vL)}")
    A(f"s_cmp_eq_u32 {s(sFM)}, 0")
    A.wait_all(vm=True, lg=True, force=True)
    def late_flag(lab):
        A(f"s_cbranch_scc1 {lab}")
        A(f"s_mov_b32 exec_lo, {s(sFM)}"); A("s_mov_b32 exec_hi, 0")
        A(f"buffer_store_dword {v(vTAG)}, {v(t3)}, {s(R_WS,4)}, {s(sT2)} offen sc1")
        A("s_mov_b64 exec, -1")
        A(f"s_mov_b32 {s(sFM)}, 0")
        A.vm -= 1
        A.label(lab)
    late_flag("L_noflag")
    ck()
    A("s_nop 0")
    A("s_cbranch_vccz L_ph_x")
    spin("L_ph", ld, ck)
    if not opt.get('nopg'): A("s_cbranch_execz L_pgret_a")
    stamp(8)
    ltok, ctok = p2_head()
    for ks in range(KCHK):
        if ks == 0:
            A(f"s_cmp_eq_u32 {s(sFM)}, 0")
            A.wait(vm=ltok[0])
            late_flag("L_noflag2")
        step2a(ks, True, ltok, ctok)
        if ks + AHEAD == KCHK - 1: tokO = A(f"buffer_load_dword {v(vF)}, {v(AD+6)}, {s(R_WS,4)}, {s(sU3)} offen sc1")
    A.wait(vm=tokO)
    A(f"v_cmp_ne_u32 vcc, {v(vF)}, {v(vTAG)}")
    A("s_nop 0")
    A("s_cbranch_vccnz L_slow")
    snap = A.snapshot(); ctok_s = list(ctok); ltok_s = list(ltok)
    for ks in range(KCHK, 32): step2a(ks, True, ltok, ctok)
    stamp(9); stamp(10)
    A.label("L_2b")
    gops = []
    for tl in (1, 0):
        for k in range(16): gops.append(f"v_mul_f32 {v(ACC+16*tl+k)}, {v(ACC+16*tl+k)}, {v(GG+k)}")
    for k in range(16): gops.append(f"v_sub_f32 {v(GG+k)}, 1.0, {v(GG+k)}")
    LG = opt.get('lag', 10)
    seq = [(ks, tl) for ks in range(16 - LG) for tl in (1, 0)] + [(ks, 1) for ks in range(16 - LG, 16)] + [(ks, 0) for ks in range(16 - LG, 16)]
    NB_ = 32 - LG
    XR = BUF
    tail = [["s_nop 4"], ["s_nop 4"]]
    for j in range(4):
        tail.append([f"v_fmac_f32 {v(ACC+16+4*j+i)}, {v(ACC+48+4*j+i)}, {v(GG+4*j+i)}" for i in range(4)] +
                    [f"ds_write_b128 {v(AD+4)}, {v(ACC+16+4*j,4)} offset:{j*1024}"])
    xt = []
    tail.append([lambda: A.wait_all(vm=False), "s_barrier"] + [(lambda j=j: xt.append(A(f"ds_read_b128 {v(XR+4*j,4)}, {v(AD+5)} offset:{j*1024}"))) for j in range(4)])
    tail.append([f"s_lshl_b32 {s(sT0)}, {s(sTT2)}, 16"])
    for j in range(4):
        tail.append([(lambda j=j: A.wait(lg=xt[j]))] + [f"v_add_f32 {v(ACC+4*j+i)}, {v(ACC+4*j+i)}, {v(XR+4*j+i)}" for i in range(4)])
    for n, (ks, tl) in enumerate(seq):
        if tl == 1:
            A.wait(vm=ltok[32 + ks])
            stamp(140 + ks)
        A(f"v_mfma_f32_32x32x16_bf16 {v(ACC+32+16*tl,16)}, {v(TMP+4*ks,4)}, {a(128+8*ks+4*tl,4)}, {'0' if ks == 0 else v(ACC+32+16*tl,16)}")
        if n % 2 == 0 and len(ltok) < 48: ltok.append(run(load_ops(len(ltok))))
        if n == 1: A(f"ds_write_b32 {v(AD)}, {v(vE)}")
        if n in (3, 5):
            for j in (n - 3, n - 2): tg = A(f"ds_read_b128 {v(GG+4*j,4)}, {v(AD+2)} offset:{j*32}")
        if n >= 8 and gops:
            A.wait(lg=tg)
            m = 5 if len(ltok) == 48 or n % 2 else 1
            run(gops[:m]); gops = gops[m:]
        if n >= NB_ - 1 and tail:
            if tail[0]: run(gops); gops = []
            run(tail.pop(0))
    stamp(11)
    for g_ in tail: run(g_)
    of = {0: "", 1: " nt", 2: " sc1", 3: " sc0 sc1"}[opt.get('outfl', 2)]
    for j in range(4):
        for e in (0, 2): A(f"v_pk_fma_f32 {v(ACC+4*j+e,2)}, {v(ACC+32+4*j+e,2)}, {v(GG+4*j+e,2)}, {v(ACC+4*j+e,2)}")
        A(f"s_add_u32 {s(sT1)}, {s(sT0)}, 4096")
        for i in range(4):
            A(f"buffer_store_dword {v(ACC+4*j+i)}, {v(AD+1)}, {s(R_OUT,4)}, {s(sT0 if i < 2 else sT1)} offen offset:{(i%2)*2048}{of}")
        if j < 3: A(f"s_add_u32 {s(sT0)}, {s(sT0)}, 16384")
    A(f"s_lshl2_add_u32 {s(sT0)}, {s(sNB)}, {s(sW)}"); A(f"s_lshl_b32 {s(sT0)}, {s(sT0)}, 5"); A(f"s_add_u32 {s(sT0)}, {s(sT0)}, {s(sRB)}")
    A(f"s_cmp_eq_u32 {s(sT0)}, 31")
    A("s_cbranch_scc0 L_fin")
    A("s_mov_b64 exec, 1")
    A(f"buffer_store_dword {v(vTAG)}, {v(vZ)}, {s(R_WS,4)}, 0 offen sc1")
    A("s_mov_b64 exec, -1")
    A.label("L_fin")
    if stamps:
        A("s_waitcnt vmcnt(0)")
        stamp(12)
        A("s_waitcnt lgkmcnt(0)")
        A(f"s_lshl2_add_u32 {s(sT0)}, {s(sWG)}, {s(sW)}"); A(f"s_lshl_b32 {s(sT0)}, {s(sT0)}, 6")
        A(f"s_add_u32 {s(sT0)}, {s(sT0)}, {WS_STAMP}")
        for i in range(14):
            A(f"v_mov_b32 {v(t0)}, {s(SREG[i] if i < 13 else sTY)}")
            A(f"buffer_store_dword {v(t0)}, {v(vZ)}, {s(R_WS,4)}, {s(sT0)} offen offset:{4*i}")
    A("s_endpgm")
    A.label("L_slow")
    A.restore(snap); ctok[:] = ctok_s; ltok[:] = ltok_s
    def ld(): A(f"buffer_load_dword {v(vF)}, {v(AD+6)}, {s(R_WS,4)}, {s(sU3)} offen sc1")
    K2S = KCHK + opt.get('k2s', 2); K2 = opt.get('k2', 29)
    for ks in range(KCHK, K2):
        if ks == K2S: ld()
        step2a(ks, False, ltok, ctok)
    A.wait_all(vm=True, lg=False)
    ck()
    A("s_nop 0")
    A("s_cbranch_vccnz L_slow2")
    snap2 = A.snapshot(); ctok_s = list(ctok)
    n = 32
    for ks in range(K2, 32):
        for _ in range(2): run(load_ops(n)); n += 1
        step2a(ks, False, ltok, ctok)
    while n < 32 + AHEAD: run(load_ops(n)); n += 1
    stamp(9); stamp(10)
    A("s_branch L_2b")
    A.label("L_slow2")
    A.restore(snap2); ctok[:] = ctok_s
    ld()
    for ks in range(K2, 32): step2a(ks, False, ltok, ctok)
    stamp(9)
    A.wait_all(vm=True, lg=False)
    ck()
    A("s_nop 0")
    A("s_cbranch_vccz L_po_x")
    spin("L_po", ld, ck)
    stamp(10)
    for n in range(32, 32 + AHEAD): run(load_ops(n))
    A("s_branch L_2b")
    A.label("L_kvretry")
    A.restore(snap_kv)
    kl = kv_loads()
    A(f"s_mov_b32 {s(sT0)}, 0")
    groups = [(ZL, kl[:4])]; pre = []
    for o in kl[4:]:
        if o.startswith('s_'): pre = [o]
        else: groups.append((ACC + 4 * (len(groups) - 1), pre + [o]))
    for n, (r, ops) in enumerate(groups):
        A(f"v_max3_u32 {v(t2)}, {v(r)}, {v(r+1)}, {v(r+2)}")
        A(f"v_max_u32 {v(t2)}, {v(t2)}, {v(r+3)}")
        A(f"v_cmp_eq_u32 vcc, -1, {v(t2)}")
        A("s_nop 0")
        A(f"s_cbranch_vccz L_kvh{n}")
        run(ops)
        A(f"s_mov_b32 {s(sT0)}, 1")
        A.label(f"L_kvh{n}")
    A(f"s_cmp_eq_u32 {s(sT0)}, 0")
    A("s_cbranch_scc1 L_kvok")
    A.wait_all(vm=True, lg=False, force=True)
    kv_sum(A.vm)
    A(f"s_sub_u32 {s(sCNT)}, {s(sCNT)}, 1")
    A("s_cbranch_scc1 L_kvok")
    A("s_cbranch_vccnz L_kvretry")
    A("s_branch L_kvok")
    A.label("L_end")
    if not opt.get('nopg'):
        tmp = A.out + [f"L_pg_{r}_{n}:" for r in 'sa' for n in range(3)]
        tmp, A.fixed, A.padded = align_pass(tmp)
        tmp, cnt = page_pads(tmp, 0x300, {"L_ssm": 's', "L_attn": 'a', "L_phase2": None})
        assert cnt['s'] >= 2 and cnt['a'] >= 2, cnt
        A.out = tmp[:-6]
    else:
        A.out, A.fixed, A.padded = align_pass(A.out)
    hdr = open(os.path.join(os.path.dirname(__file__), "header.txt")).read()
    src = hdr + f"; @launch grid=(256,1,1) block=(256,1,1) lds={LDS_BYTES}\n" + f""".amdgcn_target "amdgcn-amd-amdhsa--gfx950"
.text
.globl {KNAME}
.p2align 12
.type {KNAME},@function
{KNAME}:
{A.text()}
    s_endpgm
.section .rodata,"a"
.p2align 6
.amdhsa_kernel {KNAME}
  .amdhsa_next_free_vgpr 512
  .amdhsa_next_free_sgpr 102
  .amdhsa_accum_offset 256
  .amdhsa_group_segment_fixed_size 0
  .amdhsa_kernarg_size 128
  .amdhsa_user_sgpr_count 2
  .amdhsa_user_sgpr_kernarg_segment_ptr 1
  .amdhsa_system_sgpr_workgroup_id_x 1
.end_amdhsa_kernel
"""
    return src, A

if __name__ == "__main__":
    out = sys.argv[1]
    opt = {}
    for kv in sys.argv[3:]:
        k_, v_ = kv.split('='); opt[k_] = int(v_)
    src, A = gen(stamps=len(sys.argv) > 2 and sys.argv[2] == 'stamps', opt=opt)
    open(out, "w").write(src)
    print("lines", len(A.out), "nops", A.nops, "widened", getattr(A, 'fixed', 0), "padded", getattr(A, 'padded', 0))
```

```python
import sys, os
sys.path.insert(0, os.path.dirname(__file__))
from asmlib import *

KNAME = "gated_mix__ssm_conv_s5__linear_attn_block__prompt_kernel"

WS_EPOCH = 0
WS_KVF   = 0xD0000
WS_HF    = 0xE0000
WS_OF    = 0xE0200
WS_G     = 0x14000
WS_ZP    = 0x18000
WS_AGG   = 0x20000
WS_KVP   = 0x40000
WS_STAMP = 0xC0000
WS_ACT   = 0x100000
WS_SIZE  = WS_ACT + 64 * 98304
SCR = 131072
LDS_BYTES = 163840
SPIN = 1 << 17

def gen(stamps=False, opt=None):
    opt = opt or {}
    A = Asm()
    P_X, P_LRE, P_LIM, P_BRE, P_BIM, P_CRE, P_CIM, P_LDT = 4, 6, 8, 10, 12, 14, 16, 18
    P_DSK, P_BX, P_QKV, P_WO, P_GW, P_OUT, P_DBG, P_WS = 20, 22, 24, 26, 28, 30, 32, 34
    R_X, R_W, R_WS, R_C, R_WO, R_OUT = 36, 40, 44, 48, 52, 56
    sW, sC, sJ, sK0, sRB, sNB, sTAG, sTY = 60, 61, 62, 63, 64, 65, 66, 67
    sXO, sWO, sWST, sU0, sT0, sT1, sT2, sT3 = 68, 69, 70, 71, 72, 73, 74, 75
    sMX, sMW, sCNT, sTT, sKH, sM8 = 76, 77, 78, 79, 80, 81
    sL2E = 82
    sU1, sU2 = 84, 85
    sEPS = 86
    sD0, sD1 = 2, 3
    SREG = [88, 90, 92, 94, 96, 98, 16, 18, 6, 0, 26, 22, 20]
    sWG = 100
    sU3 = 101
    names = opt.get('stamps') or [0, 1, 2, 3, 4, 5, 6, 7, 8, 9, 10, 11, 12]
    def stamp(i):
        if stamps and i in names:
            A(f"{'s_memtime' if opt.get('cyc') else 's_memrealtime'} {s(SREG[names.index(i)], 2)}")
    vL = 0; vZ = 1; vE = 2; vJ = 3
    t0, t1, t2, t3, t4, t5, t6, t7 = 4, 5, 6, 7, 8, 9, 10, 11
    vTAG = 12; vL16 = 13; vL4 = 14; vF = 15
    ACC = 16; BUF = 80; TMP = 112; TM2 = 176
    VX, VW, VN, VK1 = 208, 212, 216, 220
    RX, RN, RT = 224, 228, 232
    RW = 234
    RA, RB = 236, 240
    AD = 244
    PR = TM2

    def run(ops):
        tok = None
        for o in ops:
            r = A(o) if isinstance(o, str) else o()
            if r is not None: tok = r
        return tok
    def sel_exec(lo, hi):
        A(f"s_mov_b32 exec_lo, {lo:#x}"); A(f"s_mov_b32 exec_hi, {hi:#x}")

    stamp(0)
    A("s_load_dwordx16 s[4:19], s[0:1], 0")
    A("s_load_dwordx16 s[20:35], s[0:1], 64")
    A("s_cmp_ge_u32 s2, 256")
    A("s_cbranch_scc1 L_end")
    A(f"s_getpc_b64 {s(sT2,2)}")
    A.label("L_pc")
    A(f"s_and_b32 {s(sT0)}, s2, 0xf8")
    A(f"v_lshrrev_b32 {v(t0)}, 5, v0")
    A(f"v_add_lshl_u32 {v(t0)}, {v(t0)}, {s(sT0)}, 7")
    A(f"v_min_u32 {v(t0)}, L_end-L_pc, {v(t0)}")
    if not opt.get('nocodepf'):
        A(f"global_load_dword {v(BUF)}, {v(t0)}, {s(sT2,2)}")
    A(f"v_lshrrev_b32 {v(t0)}, 6, v0")
    A(f"v_and_b32 {v(vL)}, 63, v0")
    A(f"v_readfirstlane_b32 {s(sW)}, {v(t0)}")
    A(f"v_mov_b32 {v(vZ)}, 0")
    A(f"s_and_b32 {s(sT0)}, s2, 7")
    A(f"s_bfe_u32 {s(sNB)}, s2, 0x30003")
    A(f"s_lshr_b32 {s(sT3)}, s2, 6")
    if stamps: A(f"s_mov_b32 {s(sWG)}, s2")
    A(f"s_and_b32 {s(sC)}, {s(sT0)}, 1"); A(f"s_lshl3_add_u32 {s(sC)}, {s(sC)}, {s(sNB)}")
    A(f"s_and_b32 {s(sJ)}, {s(sT0)}, 6"); A(f"s_lshr_b32 {s(sK0)}, {s(sT3)}, 1"); A(f"s_add_u32 {s(sJ)}, {s(sJ)}, {s(sK0)}")
    A(f"s_lshr_b32 {s(sT1)}, {s(sT0)}, 1"); A(f"s_and_b32 {s(sT2)}, {s(sT0)}, 1")
    A(f"s_lshl2_add_u32 {s(sRB)}, {s(sT2)}, {s(sT1)}"); A(f"s_lshl2_add_u32 {s(sRB)}, {s(sRB)}, {s(sT3)}")
    G_ = opt.get('G', 2)
    if G_ == 1: A(f"s_mov_b32 {s(sK0)}, 0")
    elif G_ == 2: A(f"s_add_u32 {s(sK0)}, {s(sK0)}, {s(sNB)}"); A(f"s_lshl_b32 {s(sK0)}, {s(sK0)}, 2")
    elif G_ == 4: A(f"s_add_u32 {s(sK0)}, {s(sT3)}, {s(sNB)}"); A(f"s_lshl_b32 {s(sK0)}, {s(sK0)}, 1")
    else: A(f"s_lshl1_add_u32 {s(sK0)}, {s(sT3)}, {s(sNB)}")
    X_ = opt.get('xoff', 0)
    if X_ == 1: A(f"s_lshl1_add_u32 {s(sT1)}, {s(sT2)}, {s(sT1)}"); A(f"s_add_u32 {s(sK0)}, {s(sK0)}, {s(sT1)}")
    if X_ == 2: A(f"s_add_u32 {s(sT1)}, {s(sT2)}, {s(sT1)}"); A(f"s_add_u32 {s(sK0)}, {s(sK0)}, {s(sT1)}")
    if X_ == 3: A(f"s_lshl1_add_u32 {s(sT1)}, {s(sT2)}, {s(sT1)}"); A(f"s_lshl1_add_u32 {s(sK0)}, {s(sT1)}, {s(sK0)}")
    A(f"s_and_b32 {s(sK0)}, {s(sK0)}, 7")
    A(f"s_and_b32 {s(sTY)}, {s(sT3)}, 1")
    A(f"v_lshrrev_b32 {v(t0)}, 3, {v(vL)}")
    A(f"v_and_b32 {v(t1)}, 7, {v(vL)}")
    A(f"v_lshrrev_b32 {v(t2)}, 4, {v(vL)}")
    A(f"v_xor_b32 {v(t3)}, {v(t1)}, {v(t2)}")
    A(f"v_lshlrev_b32 {v(t3)}, 4, {v(t3)}")
    A(f"v_and_b32 {v(t2)}, 16, {v(vL)}")
    A(f"v_lshlrev_b32 {v(t2)}, 2, {v(t2)}")
    A(f"v_lshlrev_b32 {v(t4)}, 4, {v(t1)}")
    A(f"v_xor_b32 {v(t4)}, {v(t4)}, {v(t2)}")
    A(f"v_lshrrev_b32 {v(t5)}, 5, {v(vL)}")
    A(f"v_and_b32 {v(t6)}, 3, {v(t0)}")
    A(f"v_lshl_add_u32 {v(t5)}, {v(t5)}, 4, {v(t6)}")
    A(f"v_lshl_add_u32 {v(VX)}, {v(t5)}, 10, {v(t3)}")
    A(f"v_xor_b32 {v(t5)}, 64, {v(VX)}")
    A(f"v_add_u32 {v(VX+1)}, {3072}, {v(t5)}")
    A(f"v_add_u32 {v(VX+2)}, {2*3072}, {v(VX)}")
    A(f"v_add_u32 {v(VX+3)}, {3*3072}, {v(t5)}")
    A(f"v_lshl_add_u32 {v(VN)}, {v(t0)}, 10, {v(t3)}")
    A(f"v_xor_b32 {v(t5)}, 64, {v(VN)}")
    A(f"v_add_u32 {v(VN+1)}, {7168}, {v(t5)}")
    A(f"v_add_u32 {v(VN+2)}, {2*7168}, {v(VN)}")
    A(f"v_add_u32 {v(VN+3)}, {3*7168}, {v(t5)}")
    A(f"v_lshl_add_u32 {v(VK1)}, {v(t0)}, 10, {v(t4)}")
    A(f"v_lshl_add_u32 {v(VW)}, {v(t0)}, 11, {v(VK1)}")
    for q in (1, 2, 3): A(f"v_add_u32 {v(VW+q)}, {q*(8*3072-1024)}, {v(VW)}")
    A(f"s_lshl_b32 {s(sT0)}, {s(sJ)}, 7")
    A(f"v_lshrrev_b32 {v(t7)}, 1, {v(vL)}"); A(f"v_xor_b32 {v(t7)}, {v(t7)}, {v(vL)}"); A(f"v_and_b32 {v(t7)}, 4, {v(t7)}")
    A(f"v_mul_u32_u24 {v(t7)}, 3, {v(t7)}"); A(f"v_xor_b32 {v(t7)}, {v(t7)}, {v(vL)}")
    A(f"v_lshl_add_u32 {v(t7)}, {v(t7)}, 1, {s(sT0)}")
    A(f"v_lshlrev_b32 {v(vL16)}, 4, {v(vL)}")
    A(f"s_lshl_b32 {s(sMX)}, {s(sW)}, 12")
    A(f"s_add_u32 {s(sMW)}, {s(sMX)}, 16384")
    A(f"s_and_b32 {s(sKH)}, {s(sW)}, 1")
    A(f"s_lshr_b32 {s(sT1)}, {s(sW)}, 1")
    A(f"s_lshl2_add_u32 {s(sTT)}, {s(sC)}, {s(sW)}")
    A(f"s_lshl_b32 {s(sXO)}, {s(sTT)}, 15")
    A(f"s_lshl_b32 {s(sT2)}, {s(sK0)}, 7")
    A(f"s_add_u32 {s(sXO)}, {s(sXO)}, {s(sT2)}")
    A(f"s_lshl1_add_u32 {s(sT2)}, {s(sJ)}, {s(sT1)}"); A(f"s_lshl_b32 {s(sT2)}, {s(sT2)}, 15")
    A(f"s_mul_i32 {s(sT3)}, {s(sKH)}, {32*3072}"); A(f"s_lshl_b32 {s(sT1)}, {s(sT1)}, 10"); A(f"s_add_u32 {s(sT3)}, {s(sT3)}, {s(sT1)}")
    A(f"s_add_u32 {s(sT3)}, {s(sT3)}, {s(sT0)}"); A(f"s_add_u32 {s(sT3)}, {s(sT3)}, 1024")
    A(f"s_cmp_eq_u32 {s(sTY)}, 0")
    A(f"s_cselect_b32 {s(sWO)}, {s(sT2)}, {s(sT3)}")
    A(f"s_cselect_b32 {s(sWST)}, 128, {64*3072}") if False else None
    A(f"s_mov_b32 {s(sT1)}, {64*3072}"); A(f"s_cselect_b32 {s(sWST)}, 0x80, {s(sT1)}")
    A(f"s_mov_b32 {s(sT1)}, 0x180000"); A(f"s_cselect_b32 {s(R_W+2)}, 0x80000, {s(sT1)}")
    A("s_cselect_b64 exec, -1, 0")
    A(f"v_and_b32 {v(t5)}, 32, {v(vL)}")
    A(f"v_lshl_add_u32 {v(VW)}, {v(t5)}, 7, {v(VN)}")
    A(f"v_xor_b32 {v(t5)}, 64, {v(VW)}")
    A(f"v_add_u32 {v(VW+1)}, {3072}, {v(t5)}")
    A(f"v_add_u32 {v(VW+2)}, {14*1024}, {v(VW)}")
    A(f"v_add_u32 {v(VW+3)}, {17*1024}, {v(t5)}")
    A("s_mov_b64 exec, -1")
    A(f"s_mul_i32 {s(sT1)}, {s(sK0)}, {s(sWST)}"); A(f"s_add_u32 {s(sWO)}, {s(sWO)}, {s(sT1)}")
    A(f"s_mov_b32 {s(R_X+2)}, 0x200000"); A(f"s_mov_b32 {s(R_X+3)}, 0x20000")
    A(f"s_mov_b32 {s(R_W+3)}, 0x20000")
    A(f"s_mov_b32 m0, {s(sMX)}")
    A(f"s_mov_b32 {s(R_WS+2)}, {WS_SIZE}"); A(f"s_mov_b32 {s(R_WS+3)}, 0x20000")
    A(f"s_mov_b32 {s(R_C+2)}, 0x80000"); A(f"s_mov_b32 {s(R_C+3)}, 0x20000")
    A(f"s_mov_b32 {s(R_WO+2)}, 0x80000"); A(f"s_mov_b32 {s(R_WO+3)}, 0x20000")
    A(f"s_mov_b32 {s(R_OUT+2)}, 0x400000"); A(f"s_mov_b32 {s(R_OUT+3)}, 0x20000")
    A(f"s_lshl_b32 {s(sM8)}, {s(sW)}, 13")
    late = []
    Lt = late.append
    for q in (1, 2, 3): Lt(f"v_add_u32 {v(VK1+q)}, {q*7168}, {v(VK1)}")
    Lt(f"v_and_b32 {v(t0)}, 31, {v(vL)}")
    Lt(f"v_lshrrev_b32 {v(t1)}, 5, {v(vL)}")
    Lt(f"v_bfe_u32 {v(t2)}, {v(vL)}, 1, 3")
    Lt(f"v_xor_b32 {v(t2)}, {v(t2)}, {v(t1)}")
    Lt(f"v_lshlrev_b32 {v(t2)}, 4, {v(t2)}")
    Lt(f"v_lshl_add_u32 {v(RN)}, {v(t0)}, 7, {v(t2)}")
    for q in (1, 2, 3): Lt(f"v_xor_b32 {v(RN+q)}, {q*32}, {v(RN)}")
    for q in range(4): Lt(f"v_add_u32 {v(RX+q)}, {s(sMX)}, {v(RN+q)}")
    Lt(f"v_bfe_u32 {v(t2)}, {v(vL)}, 2, 2")
    Lt(f"v_bfe_u32 {v(t3)}, {v(vL)}, 3, 1")
    Lt(f"v_bfe_u32 {v(t4)}, {v(vL)}, 4, 1")
    Lt(f"v_and_b32 {v(t5)}, 3, {v(vL)}")
    Lt(f"v_lshlrev_b32 {v(t5)}, 3, {v(t5)}")
    Lt(f"v_lshl_add_u32 {v(t5)}, {v(t4)}, 5, {v(t5)}")
    Lt(f"v_lshl_add_u32 {v(t5)}, {v(t3)}, 6, {v(t5)}")
    Lt(f"v_lshl_add_u32 {v(t5)}, {v(t2)}, 7, {v(t5)}")
    Lt(f"v_lshl_add_u32 {v(RT)}, {v(t1)}, 10, {v(t5)}")
    Lt(f"v_xor_b32 {v(RT+1)}, 64, {v(RT)}")
    Lt(f"v_lshl_add_u32 {v(RW)}, {v(t1)}, 9, {v(t5)}")
    Lt(f"s_mul_i32 {s(sT0)}, {s(sKH)}, {16384+64}")
    Lt(f"v_xor_b32 {v(RW)}, {s(sT0)}, {v(RW)}")
    Lt(f"v_xor_b32 {v(RW+1)}, 64, {v(RW)}")
    Lt(f"v_lshlrev_b32 {v(vL4)}, 2, {v(vL)}")
    sWOB, sCB = P_DBG, P_DBG + 1
    Lt(f"s_and_b32 {s(sT1)}, {s(sJ)}, 1")
    Lt(f"s_and_b32 {s(sWOB)}, {s(sW)}, 2"); Lt(f"s_add_u32 {s(sWOB)}, {s(sWOB)}, {s(sW)}"); Lt(f"s_lshl1_add_u32 {s(sWOB)}, {s(sT1)}, {s(sWOB)}")
    Lt(f"s_lshl_b32 {s(sWOB)}, {s(sWOB)}, 9"); Lt(f"s_add_u32 {s(sWOB)}, {s(sWOB)}, {s(sNB)}"); Lt(f"s_lshl_b32 {s(sWOB)}, {s(sWOB)}, 7")
    Lt(f"s_lshr_b32 {s(sCB)}, {s(sW)}, 1"); Lt(f"s_lshl2_add_u32 {s(sCB)}, {s(sT1)}, {s(sCB)}")
    Lt(f"s_lshl_b32 {s(sT0)}, {s(sNB)}, 9"); Lt(f"s_add_u32 {s(sCB)}, {s(sCB)}, {s(sT0)}"); Lt(f"s_lshl_b32 {s(sCB)}, {s(sCB)}, 7")
    if True:
        Lt(f"s_and_b32 {s(sT0)}, {s(sNB)}, 3"); Lt(f"s_lshl_b32 {s(sT0)}, {s(sT0)}, 7"); Lt(f"s_xor_b32 {s(sCB)}, {s(sCB)}, {s(sT0)}")
        Lt(f"s_lshl_b32 {s(sT0)}, {s(sT0)}, 9"); Lt(f"s_xor_b32 {s(sWOB)}, {s(sWOB)}, {s(sT0)}")
    Lt(f"s_mul_i32 {s(sT0)}, {s(sKH)}, {65536+4096}")
    Lt(f"s_lshl_b32 {s(sT1)}, {s(sT1)}, 16"); Lt(f"s_xor_b32 {s(sT0)}, {s(sT0)}, {s(sT1)}")
    Lt(f"s_xor_b32 {s(sT1)}, {s(sT0)}, 4096")
    for q in range(4):
        Lt(f"v_add_u32 {v(RA+q)}, {s(sT0)}, {v(RN+q)}")
        Lt(f"v_add_u32 {v(RB+q)}, {s(sT1)}, {v(RN+q)}")
    Lt(f"s_mov_b64 {s(R_WS,2)}, {s(P_WS,2)}")
    Lt(f"s_mov_b64 {s(R_WO,2)}, {s(P_WO,2)}")
    Lt(f"s_mov_b64 {s(R_OUT,2)}, {s(P_OUT,2)}")
    PRE = opt.get('pre', 27)
    run(late[:PRE]); late = late[PRE:]
    A(f"s_cmp_eq_u32 {s(sTY)}, 0")
    A("s_waitcnt lgkmcnt(0)")
    stamp(20)
    A(f"s_mov_b64 {s(R_X,2)}, {s(P_X,2)}")
    pLRE, pLIM, pLDT = PR, PR + 1, PR + 2
    A("s_cbranch_scc0 L_nopar")
    A(f"global_load_ushort {v(pLRE)}, {v(t7)}, {s(P_LRE,2)}")
    A(f"global_load_ushort {v(pLIM)}, {v(t7)}, {s(P_LIM,2)}")
    A(f"global_load_ushort {v(pLDT)}, {v(t7)}, {s(P_LDT,2)}")
    tokP = A(f"global_load_dword {v(vE)}, {v(vZ)}, {s(P_WS,2)} sc1")
    A.label("L_nopar")
    A(f"s_cmp_eq_u32 {s(sKH)}, 0")
    def dma(voff, srd, soff, q):
        off = f" offset:{q*1024}" if q else ""
        return f"buffer_load_dwordx4 {v(voff+q)}, {s(srd,4)}, {s(soff)} offen{off} lds"
    for q in range(4):
        A(dma(VX, R_X, sXO, q))
    A(f"s_cselect_b64 {s(R_W,2)}, {s(P_BRE,2)}, {s(P_BIM,2)}")
    A(f"s_cselect_b64 {s(R_C,2)}, {s(P_CRE,2)}, {s(P_CIM,2)}")
    A(f"s_cmp_eq_u32 {s(sTY)}, 0")
    A(f"s_cselect_b64 {s(R_W,2)}, {s(R_W,2)}, {s(P_QKV,2)}")
    A(f"s_mov_b32 m0, {s(sMW)}")
    for q in range(4):
        if q: run(late[:11]); late = late[11:]
        A(dma(VW, R_W, sWO, q))
    utok0 = [A.vm]
    stamp(21)
    def unit_ops(i):
        slot = (i % 4) * 32768
        ops = []
        ops += [f"s_cmp_eq_u32 {s(sK0)}, {8-i}", f"s_cselect_b32 {s(sD0)}, -7, 1", f"s_mul_i32 {s(sD1)}, {s(sD0)}, {s(sWST)}",
                f"s_lshl_b32 {s(sD0)}, {s(sD0)}, 7", f"s_add_u32 {s(sXO)}, {s(sXO)}, {s(sD0)}", f"s_add_u32 m0, {s(sMX)}, {slot}"]
        ops += [dma(VX, R_X, sXO, q) for q in range(4)]
        ops += [f"s_add_u32 {s(sWO)}, {s(sWO)}, {s(sD1)}", f"s_add_u32 m0, {s(sMW)}, {slot}"]
        ops += [dma(VW, R_W, sWO, q) for q in range(4)]
        return ops
    u1 = unit_ops(1)
    U1C = opt.get('u1c', 2)
    k = [n for n, o in enumerate(u1) if o.startswith('buffer')][U1C - 1] + 1 if U1C else 0
    run(late[:8]); run(u1[:k]); run(late[8:]); u1 = u1[k:]
    A(f"s_cmp_eq_u32 {s(sTY)}, 0")
    A("s_cbranch_scc0 L_attn")
    snap0 = A.snapshot()

    def unit8_ops(voff, srd, pre, base, rowstep):
        ops = list(pre)
        ops.append(f"s_add_u32 m0, {s(sM8)}, {base}")
        ops += [dma(voff, srd, sD0, q) for q in range(4)]
        ops.append(f"s_add_u32 {s(sD0)}, {s(sD0)}, {rowstep}")
        ops.append(f"s_add_u32 m0, {s(sM8)}, {base+4096}")
        ops += [dma(voff, srd, sD0, q) for q in range(4)]
        return ops
    def wq_ops(u):
        pre = [f"s_xor_b32 {s(sD0)}, {s(sK0)}, {4*u}", f"s_add_u32 {s(sD0)}, {s(sD0)}, {s(sW)}", f"s_and_b32 {s(sD0)}, {s(sD0)}, 7",
               f"s_mul_i32 {s(sD0)}, {s(sD0)}, {64*3072}", f"s_lshl_b32 {s(sD1)}, {s(sJ)}, 7", f"s_add_u32 {s(sD0)}, {s(sD0)}, {s(sD1)}"]
        return unit8_ops(VW, R_W, pre, u * 32768, 32 * 3072)
    def wo_ops(u, base):
        pre = [f"s_xor_b32 {s(sD0)}, {s(sWOB)}, {u << 17}"]
        return unit8_ops(VK1, R_WO, pre, base, 32 * 1024)
    def c_ops(slot):
        pre = [f"s_xor_b32 {s(sD0)}, {s(sCB)}, {slot << 8}"]
        return unit8_ops(VN, R_C, pre, slot * 32768, 32 * 1024)
    def wo_reads(u, areg, off):
        L = []
        for st in range(8):
            for tl in range(2):
                d = 128 + 8 * (8 * u + st) + 4 * tl
                L.append(f"ds_read_b64_tr_b16 {a(d,2)}, {v(areg+tl)} offset:{off+st*2048}")
                L.append(f"ds_read_b64_tr_b16 {a(d+2,2)}, {v(areg+tl)} offset:{off+st*2048+1024}")
        return L
    class Stream:
        def __init__(self, ops): self.ops = list(ops)
        def dma(self, n=1):
            while n > 0 and self.ops:
                o = self.ops.pop(0); A(o)
                if o.startswith('buffer_') or o.startswith('global_'): n -= 1; self.last = A.vm
        def salu(self):
            while self.ops and not (self.ops[0].startswith('buffer_') or self.ops[0].startswith('global_')): A(self.ops.pop(0))
        def some(self, n):
            tok = None
            for _ in range(n):
                if self.ops: tok = A(self.ops.pop(0))
            return tok
        def rest(self):
            tok = None
            while self.ops:
                tok = A(self.ops.pop(0)); self.last = A.vm
            return tok
    def sprinkle(ops, stream, every):
        for n, o in enumerate(ops):
            A(o) if isinstance(o, str) else o()
            if (n + 1) % every == 0: stream.dma()

    def main_loop(kind, tail_units, fill):
        utok = list(utok0)
        def reads(i, st):
            slot = (i % 2) * 32768
            b = BUF + 16 * ((4 * i + st) % 2)
            L = [f"ds_read_b128 {a(16*i+4*st,4)}, {v(RX+st)} offset:{slot}"]
            for tl in range(4):
                if kind == 'ssm':
                    L.append(f"ds_read_b128 {v(b+4*tl,4)}, {v(RN+st)} offset:{slot+16384+tl*4096}")
                else:
                    base = slot + 16384 + (tl >> 1) * 8192 + st * 2048
                    L.append(f"ds_read_b64_tr_b16 {v(b+4*tl,2)}, {v(RT+(tl&1))} offset:{base}")
                    L.append(f"ds_read_b64_tr_b16 {v(b+4*tl+2,2)}, {v(RT+(tl&1))} offset:{base+512}")
            if i % 2 == 1:
                L.append(f"v_xor_b32 {v(RX+st)}, 0x10000, {v(RX+st)}")
                if kind == 'ssm': L.append(f"v_xor_b32 {v(RN+st)}, 0x10000, {v(RN+st)}")
                elif st == 3: L += [f"v_xor_b32 {v(RT+q)}, 0x10000, {v(RT+q)}" for q in range(2)]
            return L
        def mfmas(i, st):
            b = BUF + 16 * ((4 * i + st) % 2)
            L = []
            for tl in range(4):
                c = v(ACC + 16 * tl, 16)
                if i == 0 and st == 0: c = "1.0" if (kind == 'attn' and tl < 2) else "0"
                L.append(f"v_mfma_f32_32x32x16_bf16 {v(ACC+16*tl,16)}, {a(16*i+4*st,4)}, {v(b+4*tl,4)}, {c}")
            return L
        prev = None
        u1s = Stream(u1); n = 0; left = 8 - U1C
        while fill and fill[0][0] < 0:
            g = fill.pop(0)[1]; run(g); n += len(g)
            if n >= opt.get('u1e', 11) and left > opt.get('u1l', 2): n = 0; left -= 1; u1s.dma()
        u1s.rest(); utok.append(A.vm)
        if opt.get('et', 0):
            rs, ws_ = (1024, 128) if kind == 'ssm' else (3072, 64 * 3072)
            A(f"v_and_b32 {v(t0)}, 3, {v(vL)}"); A(f"v_bfe_u32 {v(t1)}, {v(vL)}, 2, 1")
            A(f"v_lshlrev_b32 {v(t2)}, 7, {v(t1)}"); A(f"v_lshl_add_u32 {v(t2)}, {v(t0)}, 10, {v(t2)}")
            if kind != 'ssm':
                A(f"v_mul_u32_u24 {v(t0)}, {rs}, {v(t0)}"); A(f"v_mul_u32_u24 {v(t1)}, {ws_}, {v(t1)}"); A(f"v_add_u32 {v(t0)}, {v(t0)}, {v(t1)}")
            A(f"s_and_b32 {s(sD0)}, {s(sJ)}, 6"); A(f"s_add_u32 {s(sD0)}, {s(sD0)}, {s(sTY)}"); A(f"s_lshl_b32 {s(sD0)}, {s(sD0)}, 12")
            A(f"s_add_u32 {s(sD0)}, {s(sD0)}, {s(sXO)}")
            A(f"s_lshr_b32 {s(sD1)}, {s(sC)}, 1"); A(f"s_mul_i32 {s(sD1)}, {s(sD1)}, {4*rs}"); A(f"s_add_u32 {s(sD1)}, {s(sD1)}, {s(sWO)}")
            A(f"s_add_u32 {s(sD1)}, {s(sD1)}, {ws_}")
            A("s_mov_b64 exec, 0xff")
            A(f"buffer_load_dword {v(t3)}, {v(t2)}, {s(R_X,4)}, {s(sD0)} offen offset:128")
            A(f"buffer_load_dword {v(t3)}, {v(t2 if kind == 'ssm' else t0)}, {s(R_W,4)}, {s(sD1)} offen")
            A("s_mov_b64 exec, -1")
        stamp(1)
        D3 = opt.get('d3', 0)
        if D3:
            u2s = Stream(unit_ops(2)); u2s.dma(D3)
        for i in range(8):
            nxt = Stream(unit_ops(i + 2) if i + 2 < 8 else tail_units[i - 6])
            if D3 and i == 0: nxt = Stream(u2s.ops + unit_ops(3)); tok2 = A.vm + 8 - D3
            if D3 and i == 1: nxt = Stream([])
            nxt.salu()
            if i == opt.get('pgit', 2): page_touch(kind[0])
            A.wait(vm=utok[i])
            A("s_barrier")
            stamp(30 + i)
            burst = i < opt.get('burst', 0 if D3 else 2)
            for st in range(4):
                rd = reads(i, st)
                if prev is None:
                    run(rd); prev = (i, st, A.lg); nxt.dma(4 if burst else 2); nxt.salu(); continue
                ms = mfmas(prev[0], prev[1])
                A.wait(lg=prev[2])
                split = opt.get('sa', [3, 3, 9, 0]) if kind == 'attn' else opt.get('ss', [3, 9, 0, 0])
                fper = opt.get('fa', [1, 0, 1, 2]) if kind == 'attn' else opt.get('fs', [2, 3, 1, 1])
                dgap = opt.get('dga', [1, 3]) if kind == 'attn' else opt.get('dgs', [2, 3])
                for tl in range(4):
                    A(ms[tl])
                    if opt.get('dfirst') and (tl in dgap or burst): nxt.dma(); nxt.salu()
                    run(rd[:split[tl]]); rd = rd[split[tl]:]
                    if not opt.get('dfirst') and (tl in dgap or burst): nxt.dma(); nxt.salu()
                    n = fper[tl]
                    while n > 0 and fill and fill[0][0] <= i:
                        g = fill.pop(0)[1]
                        run(g); n -= len(g)
                assert not rd
                prev = (i, st, A.lg)
            nxt.rest()
            if D3 and i == 0: utok += [tok2, A.vm]
            elif not (D3 and i == 1): utok.append(A.vm)
            if i == 6:
                kk = [n for n, o in enumerate(tail_units[1]) if o.startswith('buffer')][opt.get('t1', 5) - 1] + 1
                tail_units[1], leftover = tail_units[1][:kk], tail_units[1][kk:]
        assert not fill, len(fill)
        A.wait(lg=prev[2])
        run(mfmas(prev[0], prev[1]))
        return utok, leftover

    def weight_touch(F):
        if not opt.get('wt', 1): return
        it = F.it
        F.it = -1
        F(f"s_lshl3_add_u32 {s(sCNT)}, {s(sRB)}, {s(sNB)}")
        F(f"v_lshrrev_b32 {v(vJ)}, 2, {v(vL)}")
        F(f"s_lshl_b32 {s(sCNT)}, {s(sCNT)}, 4")
        F(f"v_add_u32 {v(vJ)}, {s(sCNT)}, {v(vJ)}")
        F(f"v_lshrrev_b32 {v(vF)}, 3, {v(vJ)}")
        F(f"v_lshlrev_b32 {v(vJ)}, 7, {v(vJ)}")
        F(f"s_cmp_eq_u32 {s(sW)}, 3", f"s_cselect_b32 {s(sCNT)}, 0x800, 0", f"s_cselect_b64 {s(P_BX,2)}, {s(P_QKV,2)}, {s(P_WO,2)}")
        F(f"v_mad_u32_u24 {v(vJ)}, {v(vF)}, {s(sCNT)}, {v(vJ)}")
        F(f"s_cmp_lt_u32 {s(sW)}, 2", f"s_cselect_b64 {s(P_BX,2)}, {s(R_C,2)}, {s(P_BX,2)}")
        F.sort(key=lambda e: e[0])
        F.it = opt.get('wtit', 2) - 0.5
        F(f"global_load_dword {v(vJ)}, {v(vJ)}, {s(P_BX,2)}")
        F.sort(key=lambda e: e[0])
        F.it = it
    class Fill(list):
        it = -1
        def __call__(self, *ops): self.append((self.it, list(ops)))
    def epoch_load():
        A("s_mov_b64 exec, 1")
        A(f"global_load_dword {v(vE)}, {v(vZ)}, {s(P_WS,2)} sc1")
        A("s_mov_b64 exec, -1")
    def get_tag(F):
        F(f"v_readfirstlane_b32 {s(sTAG)}, {v(vE)}")
        F(f"s_mul_i32 {s(sTAG)}, {s(sTAG)}, 0x9E3779B5")
        F(f"s_add_u32 {s(sTAG)}, {s(sTAG)}, 0x7F4A7C15")
        F(f"v_mov_b32 {v(vTAG)}, {s(sTAG)}")
    def cmul4(F, d, x, y):
        if F.it < 0:
            for o in cmul_ops(d, x, y): F(o)
            return
        F(f"v_mul_f32 {v(d)}, {v(x)}, {v(y)}")
        F(f"v_mul_f32 {v(d+1)}, {v(x)}, {v(y+1)}")
        F(f"v_fma_f32 {v(d)}, -{v(x+1)}, {v(y+1)}, {v(d)}")
        F(f"v_fmac_f32 {v(d+1)}, {v(x+1)}, {v(y)}")
    def p2_early(F):
        it = F.it; F.it = -0.9
        F(f"s_lshr_b32 {s(sTT2)}, {s(sW)}, 1"); F(f"s_lshl1_add_u32 {s(sTT2)}, {s(sRB)}, {s(sTT2)}")
        F(f"s_lshl1_add_u32 {s(sHFA)}, {s(sTT2)}, {s(sKH)}"); F(f"s_lshl_b32 {s(sHFA)}, {s(sHFA)}, 10"); F(f"s_add_u32 {s(sHFA)}, {s(sHFA)}, {WS_HF}")
        F(f"s_mul_i32 {s(sHB)}, {s(sTT2)}, 3"); F(f"s_add_u32 {s(sHB)}, {s(sHB)}, {s(sKH)}")
        F(f"s_and_b32 {s(sXT)}, {s(sNB)}, 3"); F(f"s_lshl2_add_u32 {s(sHB)}, {s(sHB)}, {s(sXT)}")
        F(f"s_lshl_b32 {s(sHB)}, {s(sHB)}, 13"); F(f"s_add_u32 {s(sHB)}, {s(sHB)}, {WS_ACT}")
        F(f"s_lshl2_add_u32 {s(sXT)}, {s(sRB)}, {s(sW)}"); F(f"s_lshl_b32 {s(sXT)}, {s(sXT)}, 7"); F(f"s_add_u32 {s(sXT)}, {s(sXT)}, {s(sNB)}")
        F(f"s_lshl_b32 {s(sXT)}, {s(sXT)}, 7")
        F(f"s_lshr_b32 {s(sXM)}, {s(sMX)}, 1"); F(f"s_add_u32 {s(sXM)}, {s(sXM)}, {XS}")
        F(f"s_lshl1_add_u32 {s(sCOL)}, {s(sNB)}, {s(sKH)}"); F(f"s_lshl_b32 {s(sCOL)}, {s(sCOL)}, 6")
        F.it = 4.5
        F(f"v_and_b32 {v(vE)}, 31, {v(vL)}")
        F(f"v_lshl_add_u32 {v(vE)}, {v(vE)}, 1, {s(sCOL)}")
        F(f"global_load_ushort {v(vE)}, {v(vE)}, {s(P_DSK,2)}")
        F.sort(key=lambda e: e[0])
        F.it = it
    def p2_setup():
        A(f"s_mov_b32 m0, {s(sXM)}")
        for q in range(2): A(dma(VN, R_X, sXT, q))
    def p2_late():
        L = []
        B = lambda *o: L.append(list(o))
        B(f"s_and_b32 {s(sT0)}, {s(sMX)}, 8192"); B(f"s_lshr_b32 {s(sT0)}, {s(sT0)}, 1"); B(f"s_add_u32 {s(sT0)}, {s(sT0)}, {XS}")
        B(f"s_lshl_b32 {s(sT1)}, {s(sKH)}, 6")
        B(f"v_xor_b32 {v(AD+10)}, {s(sT1)}, {v(RN)}")
        B(f"v_add_u32 {v(AD+10)}, {s(sT0)}, {v(AD+10)}")
        B(f"v_xor_b32 {v(AD+11)}, 32, {v(AD+10)}")
        for q in range(4): B(f"v_mov_b64 {v(DF+2*q,2)}, 0")
        B(f"v_mov_b32 {v(vE+1)}, 0")
        B(f"v_and_b32 {v(t6)}, 48, {v(vL16)}")
        B(f"v_lshlrev_b64 {v(t4,2)}, {v(t6)}, {v(vE,2)}")
        for q in range(4):
            m = 0xf << (16 * (q >> 1) + 4 * (q & 1))
            B(f"s_mov_b32 exec_lo, {m:#x}", f"s_mov_b32 exec_hi, {m << 8:#x}", f"v_mov_b64 {v(DF+2*q,2)}, {v(t4,2)}", "s_mov_b64 exec, -1")
        B(f"v_and_b32 {v(t0)}, 31, {v(vL)}")
        B(f"v_lshrrev_b32 {v(t1)}, 5, {v(vL)}")
        B(f"v_lshlrev_b32 {v(AD+7)}, 2, {v(t0)}")
        B(f"s_lshl_b32 {s(sT1)}, {s(sW)}, 7"); B(f"s_add_u32 {s(sT1)}, {s(sT1)}, {SCR+16384}")
        B(f"v_lshl_add_u32 {v(AD+2)}, {v(t1)}, 4, {s(sT1)}")
        B(f"v_add_u32 {v(AD)}, {s(sT1)}, {v(AD+7)}")
        B(f"v_lshl_add_u32 {v(t2)}, {s(sCOL)}, 1, {v(AD+7)}")
        B(f"v_lshl_add_u32 {v(AD+1)}, {v(t1)}, 13, {v(t2)}")
        B(f"s_xor_b32 {s(sT0)}, {s(sMX)}, 4096"); B(f"s_add_u32 {s(sT0)}, {s(sT0)}, {SCR}")
        B(f"v_add_u32 {v(AD+4)}, {s(sT0)}, {v(vL16)}")
        B(f"v_xor_b32 {v(AD+5)}, 4096, {v(AD+4)}")
        B(f"s_mul_i32 {s(sU1)}, {s(sTT2)}, 6"); B(f"s_add_u32 {s(sU1)}, {s(sU1)}, {s(sKH)}")
        B(f"s_and_b32 {s(sT0)}, {s(sJ)}, 1"); B(f"s_lshl_b32 {s(sT0)}, {s(sT0)}, 1"); B(f"s_xor_b32 {s(sT0)}, {s(sT0)}, {s(sNB)}"); B(f"s_and_b32 {s(sT0)}, {s(sT0)}, 3")
        B(f"s_lshl2_add_u32 {s(sU1)}, {s(sU1)}, {s(sT0)}"); B(f"s_lshl_b32 {s(sU1)}, {s(sU1)}, 12"); B(f"s_add_u32 {s(sU1)}, {s(sU1)}, {WS_ACT+65536}")
        B(f"s_lshl_b32 {s(sU2)}, {s(sTT2)}, 7"); B(f"s_add_u32 {s(sU2)}, {s(sU2)}, {WS_G}")
        return L
    sHFA, sHB, sXT, sXM, sCOL = P_X + 1, P_WS, P_WS + 1, P_QKV, P_QKV + 1
    XS = SCR + 24576
    sFM = sMW; sTT2 = P_X; XF = TM2 + 16; DF = TM2 + 24

    def cmul_ops(dst, x, y, add=None):
        if add is None: o = f"v_pk_mul_f32 {v(dst,2)}, {v(x,2)}, {v(y,2)} op_sel_hi:[0,1]"
        else: o = f"v_pk_fma_f32 {v(dst,2)}, {v(x,2)}, {v(y,2)}, {v(add,2)} op_sel_hi:[0,1,1]"
        return [o, f"v_pk_fma_f32 {v(dst,2)}, {v(x,2)}, {v(y,2)}, {v(dst,2)} op_sel:[1,1,0] op_sel_hi:[1,0,1] neg_lo:[0,1,0]"]
    def cmul(*a_): run(cmul_ops(*a_))

    def spin(name, load, check):
        A(f"s_mov_b32 {s(sCNT)}, {SPIN}")
        A.label(name)
        load()
        A.wait_all(vm=True, lg=False, force=True)
        check()
        A(f"s_sub_u32 {s(sCNT)}, {s(sCNT)}, 1")
        A(f"s_cbranch_scc1 {name}_x")
        A(f"s_cbranch_vccnz {name}")
        A.label(name + "_x")
    def flag_store(soff, mask=1, voff=vZ):
        A(f"s_mov_b64 exec, {mask}")
        A(f"buffer_store_dword {v(vTAG)}, {v(voff)}, {s(R_WS,4)}, {s(soff)} offen sc1")
        A("s_mov_b64 exec, -1")
    def flag_addr(F, dst, tmp, base):
        F(f"s_lshr_b32 {s(tmp)}, {s(sJ)}, 2"); F(f"s_lshl1_add_u32 {s(dst)}, {s(sTT)}, {s(tmp)}"); F(f"s_lshl_b32 {s(dst)}, {s(dst)}, 8")
        F(f"s_and_b32 {s(tmp)}, {s(sJ)}, 3"); F(f"s_add_u32 {s(dst)}, {s(dst)}, {s(tmp)}"); F(f"s_lshl2_add_u32 {s(dst)}, {s(dst)}, {base}")
        if opt.get('ft', 1): F(f"s_load_dword s8, {s(R_WS,2)}, {s(dst)} glc")

    def page_touch(r):
        if opt.get('nopg'): return
        A("s_mov_b64 exec, 0")
        for n in range(2):
            A(f"s_cmp_eq_u32 {s(sW)}, {n}")
            A(f"s_cbranch_scc1 L_pg_{r}_{n}")
        if r == 'a':
            A(f"s_cmp_eq_u32 {s(sW)}, 2")
            A("s_cbranch_scc1 L_phase2")
        A.label(f"L_pgret_{r}")
        A("s_mov_b64 exec, -1")
    sP = 8
    def sflag(soff, off=0): A(f"s_atomic_swap {s(sTAG)}, {s(R_WS,2)}, {s(soff)}" + (f" offset:{off}" if off else ""))
    def ssample(n): A(f"s_load_dwordx4 {s(sP,4)}, {s(R_WS,2)}, {s(sHFA)} glc" if n == 4 else f"s_load_dwordx8 {s(sP,8)}, {s(R_WS,2)}, {s(sHFA)} offset:{WS_OF-WS_HF} glc")
    def scheck(n):
        A.wait_all(vm=False, lg=True, force=True)
        for q in range(n): A(f"s_xor_b32 {s(sP+q)}, {s(sP+q)}, {s(sTAG)}")
        if n == 5: A(f"s_or_b32 {s(sP)}, {s(sP)}, {s(sP+4)}")
        A(f"s_or_b64 {s(sP,2)}, {s(sP,2)}, {s(sP+2,2)}")
    def sspin(name, n):
        A(f"s_mov_b32 {s(sCNT)}, {SPIN}")
        A.label(name)
        A(f"s_sub_u32 {s(sCNT)}, {s(sCNT)}, 1")
        A(f"s_cbranch_scc1 {name}_x")
        ssample(n); scheck(n)
        A(f"s_cbranch_scc1 {name}")
        A.label(name + "_x")
    def poll_issue(): ssample(4)
    AHEAD = opt.get('ahead', 10)
    GG = TM2
    def load_ops(n):
        o = []
        if n < 32:
            if n % 4 == 0 and n: o.append(f"s_xor_b32 {s(sHB)}, {s(sHB)}, {((n//4) ^ (n//4-1)) << 12}")
            o.append(f"buffer_load_dwordx4 {a(4*n,4)}, {v(vL16)}, {s(R_WS,4)}, {s(sHB)} offen offset:{(n%4)*1024} sc1")
        else:
            k = n - 32
            if k == 0: o.append(f"buffer_load_dword {v(vE)}, {v(AD+7)}, {s(R_WS,4)}, {s(sU2)} offen sc1")
            if k % 4 == 0 and k: o.append(f"s_xor_b32 {s(sU1)}, {s(sU1)}, {0x3000 if k == 8 else 0x1000}")
            o.append(f"buffer_load_dwordx4 {v(TMP+4*k,4)}, {v(vL16)}, {s(R_WS,4)}, {s(sU1)} offen offset:{(k%4)*1024} sc1")
        return o
    def creads(ks):
        jb, m, st = ks >> 3, (ks >> 1) & 3, ks & 1
        ct, cp = m >> 1, m & 1
        b = BUF + 8 * (ks % 4)
        off = jb * 16384 + cp * 8192
        return [f"ds_read_b128 {v(b,4)}, {v(RA+2*ct+st)} offset:{off}", f"ds_read_b128 {v(b+4,4)}, {v(RB+2*ct+st)} offset:{off}"]
    def p2_head(late_flag):
        ltok = []; old = A.vm
        def ld1(): ltok.append(run(load_ops(len(ltok))))
        for k in range(3): ld1()
        n = 0
        for g in p2_late():
            run(g); n += len(g)
            if n >= 10 and len(ltok) < AHEAD - 1: n = 0; ld1()
        while len(ltok) < AHEAD: ld1()
        A.wait(vm=old)
        late_flag("L_noflag2")
        A("s_barrier")
        for q in range(2): tx = A(f"ds_read_b128 {v(XF+4*q,4)}, {v(AD+10+q)}")
        ctok = [run(creads(k)) for k in range(3)]
        A.wait(lg=tx)
        for q in range(2): A(f"v_mfma_f32_32x32x16_bf16 {v(ACC,16)}, {v(XF+4*q,4)}, {v(DF+4*q,4)}, {'0' if q == 0 else v(ACC,16)}")
        while len(ltok) < AHEAD: ld1()
        return ltok, ctok
    KCHK = 32 - AHEAD
    def step2a(ks, more, ltok, ctok, chk=False):
        A.wait(vm=ltok[ks], lg=ctok[ks])
        stamp(100 + ks)
        b = BUF + 8 * (ks % 4)
        A(f"v_mfma_f32_32x32x16_bf16 {v(ACC,16)}, {a(4*ks,4)}, {v(b,4)}, {v(ACC,16)}")
        if more: ltok.append(run(load_ops(ks + AHEAD)))
        A(f"v_mfma_f32_32x32x16_bf16 {v(ACC+16,16)}, {a(4*ks,4)}, {v(b+4,4)}, {'0' if ks == 0 else v(ACC+16,16)}")
        if chk: scheck(5)
        if ks + 3 < 32: ctok.append(run(creads(ks + 3)))
    A.label("L_ssm")
    L1, KK, L16, L32 = PR + 4, PR + 6, PR + 8, PR + 10
    L2T = PR + 0
    LT, KT = PR + 14, PR + 18
    WG_ = PR + 22
    WSEG = PR + 30
    L128 = PR + 12
    GWS = SCR + 20480
    F = Fill()
    F(f"s_cmp_lt_u32 {s(sW)}, 2", f"s_cselect_b32 {s(P_GW+2)}, 0x400, 0")
    F(f"s_mov_b32 {s(P_GW+3)}, 0x20000")
    GR = TMP + 60
    sHF = sEPS
    flag_addr(F, sHF, sT0, WS_HF)
    F(f"s_lshl_b32 {s(sT0)}, {s(sW)}, 9")
    F(f"v_lshlrev_b32 {v(AD)}, 3, {v(vL)}")
    F(f"v_add_u32 {v(AD)}, {SCR}, {v(AD)}")
    F(f"v_add_u32 {v(AD+1)}, {s(sT0)}, {v(AD)}")
    F(f"s_lshl4_add_u32 {s(sT2)}, {s(sJ)}, {s(sC)}"); F(f"s_lshl_b32 {s(sT2)}, {s(sT2)}, 10")
    F(f"s_add_u32 {s(sT2)}, {s(sT2)}, {WS_AGG}")
    F(f"s_mul_i32 {s(sU3)}, {s(sTT)}, 98304"); F(f"s_lshl_b32 {s(sT0)}, {s(sJ)}, 13"); F(f"s_add_u32 {s(sU3)}, {s(sU3)}, {s(sT0)}")
    F(f"s_add_u32 {s(sU3)}, {s(sU3)}, {WS_ACT}")
    F(f"v_cvt_f32_u32 {v(t6)}, {s(sW)}")
    F(f"v_mul_f32 {v(t6)}, 0x42000000, {v(t6)}")
    F(lambda: A.wait(vm=tokP))
    get_tag(F)
    F(f"v_lshlrev_b32 {v(pLRE)}, 16, {v(pLRE)}")
    F(f"v_lshlrev_b32 {v(pLIM)}, 16, {v(pLIM)}")
    F(f"v_lshlrev_b32 {v(pLDT)}, 16, {v(pLDT)}")
    F(f"v_xor_b32 {v(pLIM)}, 0x80000000, {v(pLIM)}")
    F(f"v_mul_f32 {v(t0)}, 0x3fb8aa3b, {v(pLDT)}")
    F(f"v_exp_f32 {v(t0)}, {v(t0)}")
    F(f"v_mul_f32 {v(t5)}, {v(pLRE)}, {v(pLRE)}")
    F(f"v_cvt_pk_bf16_f32 {v(t0)}, {v(t0)}, {v(t0)}")
    F(f"v_and_b32 {v(t0)}, 0xffff0000, {v(t0)}")
    EXA, EXB = TMP, TMP + 1
    F(f"v_mul_f32 {v(EXA)}, {v(t0)}, {v(pLRE)}")
    F(f"v_mul_f32 {v(EXB)}, {v(t0)}, {v(pLIM)}")
    F(f"v_mul_f32 {v(EXA)}, 0x3fb8aa3b, {v(EXA)}")
    F(f"v_mul_f32 {v(EXB)}, 0.15915494, {v(EXB)}")
    def cexp(d, ea, eb):
        F(f"v_exp_f32 {v(t1)}, {v(ea)}")
        F(f"v_rndne_f32 {v(t3)}, {v(eb)}")
        F(f"v_sub_f32 {v(t2)}, {v(eb)}, {v(t3)}")
        F(f"v_cos_f32 {v(t3)}, {v(t2)}")
        F(f"v_sin_f32 {v(t4)}, {v(t2)}")
        F(f"v_mul_f32 {v(d)}, {v(t1)}, {v(t3)}")
        F(f"v_mul_f32 {v(d+1)}, {v(t1)}, {v(t4)}")
    cexp(L1, EXA, EXB)
    F(f"v_fmac_f32 {v(t5)}, {v(pLIM)}, {v(pLIM)}")
    F(f"v_rcp_f32 {v(t0)}, {v(t5)}")
    F(f"v_add_f32 {v(t1)}, -1.0, {v(L1)}")
    F(f"v_add_f32 {v(t0)}, {v(t0)}, {v(t0)}")
    F(f"v_mul_f32 {v(t2)}, {v(t1)}, {v(pLRE)}")
    F(f"v_fmac_f32 {v(t2)}, {v(L1+1)}, {v(pLIM)}")
    F(f"v_mul_f32 {v(t3)}, {v(L1+1)}, {v(pLRE)}")
    F(f"v_fma_f32 {v(t3)}, -{v(t1)}, {v(pLIM)}, {v(t3)}")
    F(f"v_mul_f32 {v(KK)}, {v(t2)}, {v(t0)}")
    F(f"v_mul_f32 {v(KK+1)}, {v(t3)}, {v(t0)}")
    cmul4(F, L2T, L1, L1); cmul4(F, t2, L2T, L2T); cmul4(F, t0, t2, t2); cmul4(F, L16, t0, t0)
    cmul4(F, L32, L16, L16); cmul4(F, t0, L32, L32); cmul4(F, L128, t0, t0)
    F(f"v_mul_f32 {v(EXA)}, {v(EXA)}, {v(t6)}"); F(f"v_mul_f32 {v(EXB)}, {v(EXB)}, {v(t6)}")
    cexp(WSEG, EXA, EXB)
    F(f"v_mul_f32 {v(EXA)}, 0x41800000, {v(EXA)}"); F(f"v_mul_f32 {v(EXB)}, 0x41800000, {v(EXB)}")
    cexp(t6, EXA, EXB)
    cmul4(F, WG_, t6, KK)
    for q in range(1, 4): cmul4(F, WG_ + 2 * q, WG_ + 2 * q - 2, L128)
    for (src, dst) in ((L2T, L2T), (L1, LT), (KK, KT)):
        if src != dst: F(f"v_mov_b64 {v(dst,2)}, {v(src,2)}")
        F(f"v_mov_b64 {v(dst+2,2)}, {v(src,2)}")
    F(f"v_mov_b32 {v(GR+1)}, {v(vTAG)}"); F(f"v_mov_b32 {v(GR+3)}, {v(vTAG)}")
    for dst in (L2T, LT, KT):
        for e in range(2): F(f"v_permlane32_swap_b32 {v(dst+e)}, {v(dst+2+e)}")
    so = [sT0, sT1, sT3, sU0]; ex = [sU1, sU2, sL2E, sL2E + 1]
    for q in range(4):
        F(f"s_lshl2_add_u32 {s(so[q])}, {s(sW)}, {q+1}")
        F(f"s_lshl_b32 {s(ex[q])}, {s(so[q])}, 10")
        F(f"s_sub_u32 {s(ex[q])}, {s(sT2)}, {s(ex[q])}")
        F(f"s_cmp_le_u32 {s(so[q])}, {s(sC)}", f"s_cselect_b32 {s(so[q])}, {s(ex[q])}, {WS_SIZE}", f"s_cselect_b32 {s(ex[q])}, {s(sTAG)}, 0")
    weight_touch(F)
    p2_early(F)
    utok, lo = main_loop('ssm', [wo_ops(0, 0), c_ops(1)], F)
    stamp(2)
    tok_wo = utok[8]
    SA = [TMP, TMP + 8]
    for m in range(1, 8):
        for ct in range(2):
            are, aim = ACC + 32 * ct + 2 * m, ACC + 32 * ct + 16 + 2 * m
            if m == 1: sre, sim = ACC + 32 * ct, ACC + 32 * ct + 16
            else: sre, sim = SA[m % 2] + 4 * ct, SA[m % 2] + 4 * ct + 2
            dre, dim = SA[(m + 1) % 2] + 4 * ct, SA[(m + 1) % 2] + 4 * ct + 2
            l2 = v(L2T + 2 * ct, 2)
            A(f"v_pk_fma_f32 {v(dre,2)}, {v(sre,2)}, {l2}, {v(are,2)} op_sel_hi:[1,0,1]")
            A(f"v_pk_fma_f32 {v(dim,2)}, {v(sim,2)}, {l2}, {v(aim,2)} op_sel_hi:[1,0,1]")
            A(f"v_pk_fma_f32 {v(dre,2)}, {v(sim,2)}, {l2}, {v(dre,2)} op_sel:[0,1,0]")
            A(f"v_pk_fma_f32 {v(dim,2)}, {v(sre,2)}, {l2}, {v(dim,2)} op_sel:[0,1,0] neg_lo:[0,1,0] neg_hi:[0,1,0]")
    S_ = SA[0]
    for e in range(4): A(f"v_permlane32_swap_b32 {v(S_+e)}, {v(S_+4+e)}")
    EA = TMP + 16; EB = TMP + 18
    for sg, d in ((0, EA), (1, EB)):
        b = S_ + 4 * sg
        A(f"v_fma_f32 {v(d)}, {v(L1)}, {v(b)}, {v(b+1)}")
        A(f"v_fma_f32 {v(d+1)}, {v(L1+1)}, {v(b)}, -{v(b+3)}")
        A(f"v_fma_f32 {v(d)}, {v(L1+1)}, {v(b+2)}, {v(d)}")
        A(f"v_fma_f32 {v(d+1)}, -{v(L1)}, {v(b+2)}, {v(d+1)}")
    cmul(EB, EA, L16, EB)
    A(f"ds_write_b64 {v(AD+1)}, {v(EB,2)}")
    A.wait(vm=tok_wo, lg=A.lg)
    A("s_barrier")
    EW = BUF
    tk = [A(f"ds_read_b64 {v(EW+2*q,2)}, {v(AD)} offset:{q*512}") for q in range(4)]
    PF = BUF + 8
    A(f"s_cmp_eq_u32 {s(sW)}, 0")
    A.wait(lg=tk[1]); cmul(PF, EW, L32, EW + 2)
    A.wait(lg=tk[2]); cmul(PF + 2, PF, L32, EW + 4)
    A.wait(lg=tk[3]); cmul(PF + 4, PF + 2, L32, EW + 6)
    A("s_cbranch_scc0 L_nopub")
    A(f"v_mov_b32 {v(GR)}, {v(PF+4)}"); A(f"v_mov_b32 {v(GR+2)}, {v(PF+5)}")
    snap = A.snapshot()
    A(f"buffer_store_dwordx4 {v(GR,4)}, {v(vL16)}, {s(R_WS,4)}, {s(sT2)} offen sc1")
    A.restore(snap)
    A.label("L_nopub")
    stamp(3)
    EP = opt.get('ep', 1)
    st_ = Stream(lo + wo_ops(1, 65536) + ([] if EP else c_ops(3)))
    tok_wo1 = A.vm + 8 + sum(o.startswith('buffer') for o in lo)
    st_.dma(2)
    PW = BUF + 14; EK = BUF + 16
    ops = [f"v_mov_b32 {v(t0)}, 0", f"v_mov_b32 {v(t1)}, 0"]
    for q, src in ((1, EW), (2, PF), (3, PF + 2)):
        ops += [f"s_cmp_eq_u32 {s(sW)}, {q}", "s_cselect_b64 exec, -1, 0", f"v_mov_b64 {v(t0,2)}, {v(src,2)}"]
    ops += ["s_mov_b64 exec, -1"]
    run(ops)
    cmul(PW, t0, KK); cmul(EK, EA, KK)
    IF = BUF + 20
    A(f"v_mov_b32 {v(t4)}, 0x3f80"); A(f"v_mov_b32 {v(t5)}, 0"); A(f"v_and_b32 {v(t6)}, 48, {v(vL16)}")
    for q in range(4): A(f"v_mov_b64 {v(IF+2*q,2)}, 0")
    A(f"v_lshlrev_b64 {v(t4,2)}, {v(t6)}, {v(t4,2)}")
    for q in range(4):
        sel_exec(0xf << (4 * q), 0xf << (16 + 4 * q))
        A(f"v_mov_b64 {v(IF+2*q,2)}, {v(t4,2)}")
    A("s_mov_b64 exec, -1")
    U = TMP
    def upair(ct, k): return U + 32 * ct + 2 * k
    ops = []
    for ct in range(2):
        for k in range(16):
            re, im = ACC + 32 * ct + (k & ~1), ACC + 32 * ct + 16 + (k & ~1)
            b = k & 1
            ops.append(f"v_pk_mul_f32 {v(upair(ct,k),2)}, {v(re,2)}, {v(KT+2*ct,2)} op_sel:[{b},0] op_sel_hi:[{b},1]")
            ops.append(f"v_pk_fma_f32 {v(upair(ct,k),2)}, {v(im,2)}, {v(KT+2*ct,2)}, {v(upair(ct,k),2)} op_sel:[{b},1,0] op_sel_hi:[{b},0,1] neg_hi:[0,1,0]")
    def rw_hi(): A(f"v_add_u32 {v(RW)}, 0x10000, {v(RW)}"); A(f"v_add_u32 {v(RW+1)}, 0x10000, {v(RW+1)}")
    if EP: sprinkle(ops, st_, 7)
    else: sprinkle(wo_reads(0, RW, 0) + ops, st_, 7); rw_hi()
    st_.rest()
    LB = ACC
    stamp(23)
    def ld():
        for q in range(4): A(f"buffer_load_dwordx4 {v(LB+4*q,4)}, {v(vL16)}, {s(R_WS,4)}, {s(so[q])} offen sc1")
    def ck():
        A(f"v_xor_b32 {v(t0)}, {s(ex[0])}, {v(LB+1)}")
        for r in (3, 5, 7, 9, 11, 13, 15):
            A(f"v_bitop3_b32 {v(t0)}, {v(t0)}, {v(LB+r)}, {s(ex[r//4])} bitop3:0xf6")
        A(f"v_cmp_ne_u32 vcc, 0, {v(t0)}")
    ld()
    tok_p = A.vm
    if EP:
        run(wo_reads(0, RW, 0)); rw_hi()
    else:
        A.wait(vm=tok_wo1, lg=A.lg)
        A("s_barrier")
        run(wo_reads(1, RW, 0))
    A.wait(vm=tok_p)
    ck()
    A("s_nop 0")
    DY = opt.get('dyn', 1) and EP
    if DY: A(f"s_mov_b32 {s(sWST)}, 0")
    A("s_cbranch_vccz L_pagg_x")
    snap = A.snapshot()
    if DY:
        run(c_ops(3)); A(f"s_mov_b32 {s(sWST)}, 1")
    spin("L_pagg", ld, ck)
    A.restore(snap)
    stamp(4)
    for q in range(4):
        if q == 0: A(f"v_pk_mul_f32 {v(t0,2)}, {v(LB,2)}, {v(WG_,2)} op_sel_hi:[0,1]")
        else: A(f"v_pk_fma_f32 {v(t0,2)}, {v(LB+4*q,2)}, {v(WG_+2*q,2)}, {v(t0,2)} op_sel_hi:[0,1,1]")
        A(f"v_pk_fma_f32 {v(t0,2)}, {v(LB+4*q+2,2)}, {v(WG_+2*q,2)}, {v(t0,2)} op_sel:[0,1,0] op_sel_hi:[0,0,1] neg_lo:[0,1,0]")
    A(f"ds_write_b64 {v(AD+1)}, {v(t0,2)} offset:2048")
    A.wait_all(vm=False)
    A("s_barrier")
    stamp(24)
    for q in range(4): tok = A(f"ds_read_b64 {v(EW+2*q,2)}, {v(AD)} offset:{2048+q*512}")
    A.wait(lg=tok)
    A(f"v_pk_add_f32 {v(EW,2)}, {v(EW,2)}, {v(EW+2,2)}")
    A(f"v_pk_add_f32 {v(EW+4,2)}, {v(EW+4,2)}, {v(EW+6,2)}")
    A(f"v_pk_add_f32 {v(EW,2)}, {v(EW,2)}, {v(EW+4,2)}")
    cmul(t0, EW, WSEG, PW)
    cmul(t2, t0, L16, EK)
    A(f"v_permlane32_swap_b32 {v(t0)}, {v(t2)}")
    A(f"v_permlane32_swap_b32 {v(t1)}, {v(t3)}")
    HP = ACC
    TD = [ACC + 32, ACC + 48, TMP, TMP + 16]
    def cvt1(ct): return [f"v_cvt_pk_bf16_f32 {v(HP+8*(2*ct+cp)+k)}, {v(upair(ct,2*k)+cp)}, {v(upair(ct,2*k+1)+cp)}" for cp in range(2) for k in range(8)]
    def cvt2(f): return [f"v_cvt_pk_bf16_f32 {v(HP+4*f+k)}, {v(TD[f//2]+8*(f%2)+2*k)}, {v(TD[f//2]+8*(f%2)+2*k+1)}" for k in range(4)]
    def tm(f): A(f"v_mfma_f32_32x32x16_bf16 {v(TD[f//2],16)}, {v(HP+4*f,4)}, {v(IF+4*(f%2),4)}, {'0' if f % 2 == 0 else v(TD[f//2],16)}")
    def h_store(f):
        if f == 4: A(f"s_add_u32 {s(sU3)}, {s(sU3)}, 4096")
        return A(f"buffer_store_dwordx4 {v(HP+4*f,4)}, {v(vL16)}, {s(R_WS,4)}, {s(sU3)} offen offset:{(f%4)*1024} sc1")
    mid = Stream(c_ops(0))
    if opt.get('md', 0): mid.salu()
    for ct in range(2):
        for k in range(16):
            cmul(upair(ct, k), t0 + 2 * ct if k == 0 else upair(ct, k - 1), LT + 2 * ct, upair(ct, k))
        cs_ = cvt1(ct)
        run(cs_[:6])
        f0 = 4 * ct
        if ct == 0 and opt.get('md', 0):
            tm(f0); run(cs_[6:12]); tm(f0 + 1); run(cs_[12:]); mid.dma()
            tm(f0 + 2); mid.dma(); tm(f0 + 3); mid.dma(2)
        else:
            tm(f0); run(cs_[6:12]); tm(f0 + 1); run(cs_[12:]); A("s_nop 1")
            tm(f0 + 2); A("s_nop 3"); tm(f0 + 3)
        if ct == 0: stamp(25)
        for f in range(f0, f0 + 4):
            run(cvt2(f)); tok_h = h_store(f)
    stamp(5)
    A(f"s_lshr_b32 {s(sT0)}, {s(sMX)}, 2"); A(f"s_add_u32 m0, {s(sT0)}, {GWS}")
    tok_gw = A(f"buffer_load_dwordx4 {v(vL16)}, {s(P_GW,4)}, 0 offen lds")
    rest = Stream(mid.ops + (([] if DY else c_ops(3)) if EP else c_ops(2)))
    if EP: run(wo_reads(1, RW, 0))
    p2_setup()
    if EP:
        A.wait_all(vm=False)
        A("s_barrier")
        rest.ops += c_ops(2)
    rest.dma(opt.get('sdrain', 4))
    A.wait(vm=tok_h)
    if opt.get('vflag', 0): flag_store(sHF)
    else: sflag(sHF)
    stamp(6)
    rest.rest()
    if DY:
        A(f"s_cmp_eq_u32 {s(sWST)}, 1")
        A("s_cbranch_scc1 L_c3done")
        run(c_ops(3)); A.vm -= 8
        A.label("L_c3done")
    stamp(26)
    A(f"s_mov_b32 {s(sFM)}, 0")
    A(f"s_cmp_eq_u32 {s(sJ)}, 0")
    A("s_cbranch_scc0 L_nogate")
    GD = ACC
    A.wait(vm=tok_gw)
    A("s_barrier")
    A(f"s_lshl_b32 {s(sT0)}, {s(sK0)}, 7"); A(f"s_add_u32 {s(sT0)}, {s(sT0)}, {GWS}")
    A(f"v_lshrrev_b32 {v(t0)}, 5, {v(vL)}")
    A(f"v_lshl_add_u32 {v(AD+8)}, {v(t0)}, 4, {s(sT0)}")
    A(f"v_lshrrev_b32 {v(t0)}, 4, {v(vL)}"); A(f"v_xor_b32 {v(t0)}, {v(t0)}, {v(vL)}"); A(f"v_and_b32 {v(t0)}, 1, {v(t0)}")
    A(f"v_lshl_add_u32 {v(AD+8)}, {v(t0)}, 11, {v(AD+8)}")
    toks = []
    for st in range(8): toks.append(A(f"ds_read_b128 {v(BUF+4*st,4)}, {v(AD+8)} offset:{st*32}"))
    for st in range(32):
        A.wait(lg=toks[st])
        A(f"v_mfma_f32_16x16x32_bf16 {v(GD+8,4)}, {v(BUF+4*(st%8),4)}, {a(4*st,4)}, {'0' if st == 0 else v(GD+8,4)}")
        if st + 8 < 32: toks.append(A(f"ds_read_b128 {v(BUF+4*(st%8),4)}, {v(AD+8)} offset:{(st+8)*32}"))
    A(f"v_bfe_u32 {v(t0)}, {v(vL)}, 2, 1"); A(f"v_bfe_u32 {v(t1)}, {v(vL)}, 3, 2"); A(f"v_and_b32 {v(t2)}, 12, {v(vL4)}")
    A(f"v_lshl_add_u32 {v(t2)}, {v(t1)}, 4, {v(t2)}")
    A(f"v_lshl_add_u32 {v(t2)}, {v(t0)}, 6, {v(t2)}")
    A(f"s_lshl_b32 {s(sT0)}, {s(sTT)}, 7"); A(f"s_add_u32 {s(sT0)}, {s(sT0)}, {WS_G}")
    A(f"s_lshl_b32 {s(sT2)}, {s(sTT)}, 11"); A(f"s_add_u32 {s(sT2)}, {s(sT2)}, {WS_OF+16}")
    A(f"s_mov_b32 {s(sFM)}, 3")
    sel_exec(0xffff0000, 0xffff0000)
    A(f"v_mov_b32 {v(GD+8)}, {v(GD+9)}")
    A("s_mov_b64 exec, -1")
    A(f"v_mul_f32 {v(t0)}, 0xbfb8aa3b, {v(GD+8)}")
    A(f"v_exp_f32 {v(t0)}, {v(t0)}")
    A(f"v_add_f32 {v(t0)}, 1.0, {v(t0)}")
    A(f"v_rcp_f32 {v(t0)}, {v(t0)}")
    A("s_nop 0")
    A(f"buffer_store_dword {v(t0)}, {v(t2)}, {s(R_WS,4)}, {s(sT0)} offen sc1")
    A.label("L_nogate")
    poll_issue()
    A("s_branch L_phase2")

    A.restore(snap0)
    A.raw(".p2align 12")
    A.label("L_attn")
    epoch_load()
    F = Fill()

    NL = AD + 10
    ONES = TMP + 48
    LA = TMP + 56
    sOA, sOF, sKB, sZB = P_GW, P_GW + 1, P_OUT, P_OUT + 1
    flag_addr(F, sOF, sU3, WS_OF)
    F(f"s_lshl2_add_u32 {s(sT2)}, {s(sJ)}, {s(sW)}")
    F(f"s_lshl4_add_u32 {s(sT3)}, {s(sT2)}, {s(sC)}")
    F(f"s_lshl_b32 {s(sU1)}, {s(sT3)}, 9"); F(f"s_add_u32 {s(sU1)}, {s(sU1)}, {WS_KVP}")
    F(f"v_lshlrev_b32 {v(AD+9)}, 3, {v(vL)}")
    SUMS = TMP + 48
    F(f"v_mov_b32 {v(t4)}, 0x3f80"); F(f"v_mov_b32 {v(t5)}, 0"); F(f"v_and_b32 {v(t6)}, 48, {v(vL16)}")
    F(f"v_mov_b64 {v(SUMS,2)}, 0"); F(f"v_mov_b64 {v(SUMS+2,2)}, 0")
    F(f"v_lshlrev_b64 {v(t4,2)}, {v(t6)}, {v(t4,2)}")
    for q in range(2):
        m = 0x00f0000f << (8 * q)
        F(f"s_mov_b32 exec_lo, {m:#x}", f"s_mov_b32 exec_hi, {m:#x}", f"v_mov_b64 {v(SUMS+2*q,2)}, {v(t4,2)}", "s_mov_b64 exec, -1")
    F(f"s_lshl_b32 {s(sU2)}, {s(sT3)}, 6"); F(f"s_add_u32 {s(sU2)}, {s(sU2)}, {WS_ZP}")
    F(f"v_mov_b64 {v(TMP,2)}, -1")
    F(f"s_mov_b32 {s(sL2E)}, 0x3fb8aa3b"); F(f"s_mov_b32 {s(sL2E+1)}, 0x3fb8aa3b")
    F(f"s_mov_b32 {s(sEPS)}, 0x358637bd"); F(f"s_mov_b32 {s(sEPS+1)}, 0x358637bd")
    F(f"v_mov_b32 {v(NL)}, 0xbfb8aa3b"); F(f"v_mov_b32 {v(NL+1)}, 0xbfb8aa3b")
    SEL = TMP + 32
    F(f"v_bfe_u32 {v(t0)}, {v(vL)}, 2, 2")
    F(f"v_mov_b32 {v(t1)}, 0x3f803f80")
    for hd in range(4):
        F(f"v_cmp_eq_u32 vcc, {hd}, {v(t0)}", f"v_cndmask_b32 {v(SEL+4*hd)}, 0, {v(t1)}, vcc")
        F(f"v_mov_b32 {v(SEL+4*hd+1)}, {v(SEL+4*hd)}")
        F(f"v_mov_b64 {v(SEL+4*hd+2,2)}, {v(SEL+4*hd,2)}")
    F(f"s_lshl_b32 {s(sU0)}, {s(sT2)}, 11"); F(f"s_add_u32 {s(sU0)}, {s(sU0)}, {WS_KVF}")
    F(f"s_lshl_b32 {s(sT3)}, {s(sC)}, 7"); F(f"s_add_u32 {s(sT3)}, {s(sT3)}, {s(sU0)}")
    F(f"v_lshrrev_b32 {v(AD+8)}, 2, {v(vL)}"); F(f"v_lshlrev_b32 {v(AD+8)}, 7, {v(AD+8)}")
    F(f"s_lshl_b32 {s(sT0)}, {s(sW)}, 10"); F(f"s_add_u32 {s(sT0)}, {s(sT0)}, {SCR}")
    F(f"v_add_u32 {v(AD)}, {s(sT0)}, {v(vL16)}")
    F(f"s_add_u32 {s(sT0)}, {s(sMX)}, {SCR}")
    F(f"v_add_u32 {v(AD+1)}, {s(sT0)}, {v(vL16)}")
    F(f"s_lshl_b32 {s(sT0)}, {s(sW)}, 8"); F(f"s_add_u32 {s(sT0)}, {s(sT0)}, {SCR+16384}")
    F(f"v_add_u32 {v(AD+2)}, {s(sT0)}, {v(vL4)}")
    F(f"s_lshl_b32 {s(sT0)}, {s(sW)}, 6"); F(f"s_add_u32 {s(sT0)}, {s(sT0)}, {SCR+16384}")
    F(f"v_and_b32 {v(AD+4)}, 60, {v(vL4)}")
    F(f"v_add_u32 {v(AD+3)}, {s(sT0)}, {v(AD+4)}")
    F(f"v_add_u32 {v(AD+6)}, {SCR}, {v(RW)}"); F(f"v_add_u32 {v(AD+7)}, {SCR}, {v(RW+1)}")
    F(f"v_add_u32 {v(AD+4)}, 0x18000, {v(RW)}"); F(f"v_add_u32 {v(AD+5)}, 0x18000, {v(RW+1)}")
    KVS, ZS = SCR + 20480, SCR + 22528
    F(f"s_lshr_b32 {s(sT0)}, {s(sW)}, 1"); F(f"s_lshl_b32 {s(sT0)}, {s(sT0)}, 10")
    F(f"s_lshl_b32 {s(sT1)}, {s(sKH)}, 8"); F(f"s_add_u32 {s(sT1)}, {s(sT1)}, {s(sT0)}"); F(f"s_add_u32 {s(sT1)}, {s(sT1)}, {KVS}")
    F(f"v_and_b32 {v(t4)}, 7, {v(vL)}"); F(f"v_lshrrev_b32 {v(t5)}, 5, {v(vL)}"); F(f"v_lshl_add_u32 {v(t4)}, {v(t4)}, 1, {v(t5)}")
    F(f"v_lshlrev_b32 {v(t4)}, 4, {v(t4)}"); F(f"v_bfe_u32 {v(t5)}, {v(vL)}, 3, 1"); F(f"v_bfe_u32 {v(t6)}, {v(vL)}, 4, 1")
    F(f"v_lshl_add_u32 {v(t4)}, {v(t5)}, 9, {v(t4)}"); F(f"v_lshl_add_u32 {v(t4)}, {v(t6)}, 3, {v(t4)}")
    F(f"v_add_u32 {v(LA)}, {s(sT1)}, {v(t4)}")
    F(f"s_lshl_b32 {s(sT1)}, {s(sKH)}, 5"); F(f"s_add_u32 {s(sT1)}, {s(sT1)}, {s(sT0)}"); F(f"s_add_u32 {s(sT1)}, {s(sT1)}, {ZS}")
    F(f"v_bfe_u32 {v(t4)}, {v(vL)}, 2, 1"); F(f"v_bfe_u32 {v(t5)}, {v(vL)}, 3, 1"); F(f"v_and_b32 {v(t6)}, 3, {v(vL)}")
    F(f"v_lshl_add_u32 {v(t6)}, {v(t6)}, 1, {s(sT1)}")
    F(f"v_lshl_add_u32 {v(t6)}, {v(t5)}, 3, {v(t6)}")
    F(f"v_lshl_add_u32 {v(LA+1)}, {v(t4)}, 4, {v(t6)}")
    F(f"v_add_u32 {v(LA+2)}, {KVS}, {v(vL16)}")
    F(f"v_mov_b32 {v(LA+3)}, {v(LA+2)}")
    F(f"v_lshrrev_b32 {v(t5)}, 5, {v(vL)}")
    F(f"v_lshlrev_b32 {v(t5)}, 4, {v(t5)}")
    F(lambda: sel_exec(0xffff0000, 0xffff0000), f"v_add_u32 {v(LA+2)}, {ZS}, {v(t5)}", "s_mov_b64 exec, -1")
    F(lambda: sel_exec(0x0000ffff, 0x0000ffff), f"v_add_u32 {v(LA+3)}, {ZS+32}, {v(t5)}", "s_mov_b64 exec, -1")
    F(f"v_bfe_u32 {v(t5)}, {v(vL)}, 3, 2"); F(f"v_and_b32 {v(t6)}, 35, {v(vL)}")
    F(f"v_lshl_add_u32 {v(t6)}, {v(t5)}, 2, {v(t6)}")
    F(f"v_lshl_add_u32 {v(t6)}, {v(t4)}, 4, {v(t6)}")
    F(f"v_lshlrev_b32 {v(LA+4)}, 4, {v(t6)}")
    F(f"s_mul_i32 {s(sOA)}, {s(sTT)}, 98304"); F(f"s_lshl_b32 {s(sT1)}, {s(sJ)}, 12"); F(f"s_add_u32 {s(sOA)}, {s(sOA)}, {s(sT1)}")
    F(f"s_add_u32 {s(sOA)}, {s(sOA)}, {WS_ACT+65536}")
    F(f"s_and_b32 {s(sKB)}, {s(sC)}, 1"); F(f"s_lshl1_add_u32 {s(sKB)}, {s(sT2)}, {s(sKB)}")
    F(f"s_lshl_b32 {s(sKB)}, {s(sKB)}, 12"); F(f"s_add_u32 {s(sKB)}, {s(sKB)}, {WS_KVP}")
    F(f"s_lshl_b32 {s(sZB)}, {s(sT2)}, 10"); F(f"s_add_u32 {s(sZB)}, {s(sZB)}, {WS_ZP}")
    F.it = opt.get('clrit', 2)
    tok_clr = []
    F(f"buffer_store_dwordx2 {v(TMP,2)}, {v(AD+9)}, {s(R_WS,4)}, {s(sU1)} offen sc1")
    F("s_mov_b64 exec, 0xffff", lambda: tok_clr.append(A(f"buffer_store_dword {v(TMP)}, {v(vL4)}, {s(R_WS,4)}, {s(sU2)} offen sc1")), "s_mov_b64 exec, -1")
    get_tag(F)
    F.it += 2
    F(lambda: A.wait(vm=tok_clr[0]), lambda: flag_store(sT3))
    weight_touch(F)
    p2_early(F)
    utok, lo = main_loop('attn', [wq_ops(0), wq_ops(1)], F)
    stamp(2)
    tok_wq = utok[9]
    A("s_barrier")
    def phi_ops(src, dst):
        L = []
        def fin(sr, pp, d):
            L.append(f"v_max_f32 {v(pp)}, {v(pp)}, {v(sr)}")
            L.append(f"v_max_f32 {v(pp+1)}, {v(pp+1)}, {v(sr+1)}")
            L.append(f"v_pk_add_f32 {v(pp,2)}, {v(pp,2)}, {s(sEPS,2)}")
            L.append(f"v_cvt_pk_bf16_f32 {v(d)}, {v(pp)}, {v(pp+1)}")
        for k in range(0, 16, 2):
            tt = t0 + 2 * ((k // 2) % 4)
            L.append(f"v_pk_fma_f32 {v(tt,2)}, {v(src+k,2)}, {s(sL2E,2)}, {v(NL,2)}")
            L.append(f"v_exp_f32 {v(tt)}, {v(tt)} clamp")
            L.append(f"v_exp_f32 {v(tt+1)}, {v(tt+1)} clamp")
            if k >= 2: fin(src + k - 2, t0 + 2 * ((k // 2 - 1) % 4), dst + k // 2 - 1)
        fin(src + 14, t0 + 2 * (7 % 4), dst + 7)
        return L
    PK, PV = TMP, TMP + 16
    ZD = TM2; KD = TM2 + 4
    st_ = Stream(wo_ops(0, 98304) + c_ops(2))
    def swaps(b): return [f"v_permlane16_swap_b32 {v(b+r)}, {v(b+4+r)}" for r in range(4)]
    e1 = phi_ops(ACC, PK) + [f"v_cvt_pk_bf16_f32 {v(PV+k)}, {v(ACC+32+2*k)}, {v(ACC+32+2*k+1)}" for k in range(16)]
    e1 += swaps(PK) + swaps(PV) + swaps(PV + 8) + phi_ops(ACC + 16, PK + 8)
    E0 = opt.get('e1skip', 30)
    sprinkle(e1[:E0], los := Stream(lo + [f"buffer_load_dword {v(vF)}, {v(AD+8)}, {s(R_WS,4)}, {s(sU0)} offen sc1"]), 7)
    los.rest()
    tokF = [A.vm]
    vm0 = A.vm
    sprinkle(e1[E0:], st_, opt.get('e1every', 9))
    tok_wo0 = vm0 + 8
    stamp(40)
    sw = swaps(PK + 8)
    def kvm(hd): A(f"v_mfma_f32_16x16x32_bf16 {v(KD+4*hd,4)}, {v(PK+4*hd,4)}, {v(PV+4*hd,4)}, 0")
    def zm(hd): A(f"v_mfma_f32_16x16x32_bf16 {v(ZD,4)}, {v(SEL+4*hd,4)}, {v(PK+4*hd,4)}, {'0' if hd == 0 else v(ZD,4)}")
    kvm(0); run(sw[:2]); kvm(1); run(sw[2:]); zm(0); zm(1); kvm(2); kvm(3); zm(2); zm(3)
    stamp(41)
    for hd in range(4):
        A(f"ds_write_b128 {v(AD)}, {v(KD+4*hd,4)} offset:{hd*4096}")
    A(f"ds_write_b32 {v(AD+2)}, {v(ZD)}")
    st_.dma(opt.get('e1d', 2))
    stamp(42)
    A.wait(vm=tokF[0])
    stamp(43)
    A(f"v_cmp_ne_u32 vcc, {v(vF)}, {v(vTAG)}")
    A.wait_all(vm=False)
    A("s_barrier")
    stamp(44)
    for q in range(4): tk = A(f"ds_read_b128 {v(ACC+4*q,4)}, {v(AD+1)} offset:{q*1024}")
    for q in range(4): tz = A(f"ds_read_b32 {v(ACC+16+q)}, {v(AD+3)} offset:{q*256}")
    QA = TM2
    def qreads(ks):
        b = BUF + 8 * (ks % 4)
        L = []
        for tl in range(2):
            base = (ks // 4) * 8192 + (ks % 4) * 2048
            L.append(f"ds_read_b64_tr_b16 {v(b+4*tl,2)}, {v(RT+tl)} offset:{base}")
            L.append(f"ds_read_b64_tr_b16 {v(b+4*tl+2,2)}, {v(RT+tl)} offset:{base+512}")
        return L
    toks = [run(qreads(0))]
    st_.dma(1)
    A.wait(lg=tk)
    for e in (0, 2):
        A(f"v_pk_add_f32 {v(ACC+e,2)}, {v(ACC+e,2)}, {v(ACC+4+e,2)}")
        A(f"v_pk_add_f32 {v(ACC+8+e,2)}, {v(ACC+8+e,2)}, {v(ACC+12+e,2)}")
        A(f"v_pk_add_f32 {v(ACC+e,2)}, {v(ACC+e,2)}, {v(ACC+8+e,2)}")
    for e in range(2): A(f"v_cvt_pk_bf16_f32 {v(ACC+e)}, {v(ACC+2*e)}, {v(ACC+2*e+1)}")
    for e in range(2): A(f"v_min_u32 {v(ACC+e)}, -2, {v(ACC+e)}")
    A(f"buffer_store_dwordx2 {v(ACC,2)}, {v(AD+9)}, {s(R_WS,4)}, {s(sU1)} offen sc1")
    A.wait(lg=tz)
    A(f"v_pk_add_f32 {v(ACC+16,2)}, {v(ACC+16,2)}, {v(ACC+18,2)}")
    A(f"v_add_f32 {v(ACC+16)}, {v(ACC+16)}, {v(ACC+17)}")
    A(f"v_min_u32 {v(ACC+16)}, -2, {v(ACC+16)}")
    A("s_mov_b64 exec, 0xffff")
    A(f"buffer_store_dword {v(ACC+16)}, {v(vL4)}, {s(R_WS,4)}, {s(sU2)} offen sc1")
    A("s_mov_b64 exec, -1")
    stamp(3)
    st_.rest()
    tok_e1 = st_.last
    A("s_cbranch_vccz L_clr_x")
    snap = A.snapshot()
    def ld(): A(f"buffer_load_dword {v(vF)}, {v(AD+8)}, {s(R_WS,4)}, {s(sU0)} offen sc1")
    def ck(): A(f"v_cmp_ne_u32 vcc, {v(vF)}, {v(vTAG)}")
    spin("L_clr", ld, ck)
    A.restore(snap)
    toks.append(run(qreads(1)))
    ZL = TMP + 52
    def kv_loads():
        L = [f"buffer_load_dword {v(ZL+q)}, {v(vL4)}, {s(R_WS,4)}, {s(sZB)} offen offset:{q*256} sc1" for q in range(4)]
        for q in range(8):
            if q % 4 == 0: L.append(f"s_xor_b32 {s(sD1)}, {s(sKB)}, {q*1024}")
            L.append(f"buffer_load_dwordx4 {v(ACC+4*q,4)}, {v(vL16)}, {s(R_WS,4)}, {s(sD1)} offen offset:{(q%4)*1024} sc1")
        return L
    KVAT = opt.get('kvat', 25)
    side = None; wrd = None
    for ks in range(32):
        if ks == 0:
            A.wait(vm=tok_wo0)
            A("s_barrier")
            side = Stream(wo_ops(1, SCR)); wrd = Stream(wo_reads(0, AD + 4, 0))
        if ks == 8:
            side.rest(); tok_wo1 = A.vm
            tok_wr = A.lg
        if ks == 9:
            A.wait(lg=tok_wr)
            A("s_barrier")
            side = Stream(c_ops(3))
        if ks == 17:
            side.rest()
            A.wait(vm=tok_wo1)
            A("s_barrier")
            stamp(23)
            side = Stream(c_ops(0)); wrd = Stream(wo_reads(1, AD + 6, 0))
        if ks == KVAT:
            nk = A.vm + 12
            side = Stream(kv_loads() + side.ops)
            side.dma(2)
        A.wait(lg=toks[ks])
        stamp(200 + ks)
        rd = qreads(ks + 2) if ks + 2 < 32 else []
        b = BUF + 8 * (ks % 4)
        for tl in range(2):
            A(f"v_mfma_f32_32x32x16_bf16 {v(QA+16*tl,16)}, {v(b+4*tl,4)}, {a(4*ks,4)}, {'1.0' if ks == 0 else v(QA+16*tl,16)}")
            if tl == 0:
                run(rd); toks.append(A.lg)
                if wrd and (ks < 8 or ks >= 30): wrd.some(2)
            else:
                if wrd: wrd.some(2)
                if side: side.dma()
    wrd.rest()
    stamp(24)
    PQ = TMP
    A.wait_all(vm=False)
    A("s_barrier")
    side.ops += [f"s_mov_b32 m0, {s(sXM)}", dma(VN, R_X, sXT, 0), dma(VN, R_X, sXT, 1)] + c_ops(1)
    ph = phi_ops(QA, PQ) + phi_ops(QA + 16, PQ + 8)
    PE = opt.get('phe', 90)
    sprinkle(ph[:PE], side, opt.get('kvevery', 10))
    run(ph[PE:])
    tok_kv = nk
    stamp(25)
    A(f"s_mov_b32 {s(sCNT)}, {SPIN}")
    stamp(4)
    KS = TMP + 16
    def kv_sum(last, side=None):
        zs = [f"v_add_f32 {v(t0)}, {v(ZL)}, {v(ZL+1)}", f"v_add_f32 {v(t1)}, {v(ZL+2)}, {v(ZL+3)}",
              f"v_add_f32 {v(t0)}, {v(t0)}, {v(t1)}", f"v_mov_b32 {v(t1)}, {v(t0)}", "s_nop 0", f"v_permlane32_swap_b32 {v(t0)}, {v(t1)}",
              f"v_add_f32 {v(t0)}, {v(t0)}, {v(t1)}", f"v_mov_b32 {v(t1)}, {v(t0)}", "s_nop 0", f"v_permlane16_swap_b32 {v(t0)}, {v(t1)}",
              f"v_add_f32 {v(t0)}, {v(t0)}, {v(t1)}", f"v_cvt_pk_bf16_f32 {v(t1)}, {v(t0)}, {v(t0)}"]
        for q in range(8):
            if q in (0, 4, 6, 7): A.wait(vm=last - 7 + {0: 3, 4: 5}.get(q, q))
            A(f"v_mfma_f32_16x16x32_bf16 {v(KS,4)}, {v(SUMS,4)}, {v(ACC+4*q,4)}, {'0' if q == 0 else v(KS,4)}")
            run(zs[2*q:2*q+2])
        A(f"v_cmp_u_f32 vcc, {v(t0)}, {v(KS)}")
    A(f"s_mov_b32 {s(sT2)}, {s(sOF)}"); A(f"s_mov_b32 {s(sFM)}, 1")
    cs = side
    kv_sum(tok_kv, cs)
    A("s_cbranch_vccnz L_kvretry")
    snap_kv = A.snapshot()
    A.label("L_kvok")
    stamp(5)
    A(f"ds_write_b16 {v(LA+1)}, {v(t1)}")
    A(f"v_cvt_pk_bf16_f32 {v(t2)}, {v(KS)}, {v(KS+1)}")
    A(f"v_cvt_pk_bf16_f32 {v(t3)}, {v(KS+2)}, {v(KS+3)}")
    A(f"ds_write_b64 {v(LA)}, {v(t2,2)}")
    A.wait_all(vm=False)
    A("s_barrier")
    stamp(70)
    AF = TMP + 16
    toks = []
    ES = opt.get('es', 1)
    if ES: poll_issue()
    for hd4 in range(4): toks.append(A(f"ds_read_b128 {v(AF+4*hd4,4)}, {v(LA+2+(hd4&1))} offset:{(hd4>>1)*1024}"))
    if ES:
        for q in range(2): A(f"ds_read_b32 {v(t4+q)}, {v(LA+2)}")
    cs.dma(1)
    for hd4 in range(4):
        A.wait(lg=toks[hd4])
        A(f"v_mfma_f32_32x32x16_bf16 {v(ACC+16*hd4,16)}, {v(AF+4*hd4,4)}, {v(PQ+4*hd4,4)}, 0")
        cs.dma()
    if not ES: poll_issue()
    cs.rest()
    stamp(71)
    OP = TMP + 48
    for hd4 in range(4):
        hd = hd4 & 1
        nb_, db_ = ACC + 16 * hd4 + 8 * hd, ACC + 16 * hd4 + 8 * (1 - hd)
        A(f"v_add_f32 {v(db_)}, {s(sEPS)}, {v(db_)}")
        A(f"v_rcp_f32 {v(db_)}, {v(db_)}")
        for e in range(0, 8, 2): A(f"v_pk_mul_f32 {v(nb_+e,2)}, {v(nb_+e,2)}, {v(db_,2)} op_sel_hi:[1,0]")
        for e in range(0, 8, 2): A(f"v_cvt_pk_bf16_f32 {v(TM2+4*hd4+e//2)}, {v(nb_+e)}, {v(nb_+e+1)}")
        A(f"buffer_store_dwordx4 {v(TM2+4*hd4,4)}, {v(LA+4)}, {s(R_WS,4)}, {s(sOA)} offen offset:{hd4*1024} sc1")
    stamp(26); stamp(6)
    A("s_branch L_phase2")

    A.raw(".p2align 12")
    A.label("L_phase2")
    A.hist = []
    if not opt.get('nopg'): A("s_cbranch_execz L_pgret_a")
    stamp(7)
    def late_flag(lab):
        A(f"s_cmp_eq_u32 {s(sFM)}, 0")
        A(f"s_cbranch_scc1 {lab}")
        sflag(sT2)
        A(f"s_cmp_eq_u32 {s(sFM)}, 1")
        A(f"s_mov_b32 {s(sFM)}, 0")
        A(f"s_cbranch_scc1 {lab}")
        sflag(sT2, 1024)
        A.label(lab)
    scheck(4)
    A("s_cbranch_scc0 L_ph_x")
    for _ in range(opt.get('re', 1)):
        ssample(4); scheck(4)
        A("s_cbranch_scc0 L_ph_x")
    A(f"s_cmp_eq_u32 {s(sFM)}, 0")
    A("s_cbranch_scc1 L_noflag")
    A("s_waitcnt vmcnt(0)")
    late_flag("L_noflag")
    sspin("L_ph", 4)
    stamp(8)
    assert A.vm_done < A.vm
    ltok, ctok = p2_head(late_flag)
    KS1 = KCHK - opt.get('ks1', 8)
    for ks in range(KCHK):
        if ks == KS1: ssample(5)
        step2a(ks, True, ltok, ctok, ks == KCHK - 1)
    A("s_cbranch_scc1 L_slow")
    snap = A.snapshot(); ctok_s = list(ctok); ltok_s = list(ltok)
    for ks in range(KCHK, 32): step2a(ks, True, ltok, ctok)
    stamp(9); stamp(10)
    A.label("L_2b")
    gops = []
    for tl in (1, 0):
        for k in range(16): gops.append(f"v_mul_f32 {v(ACC+16*tl+k)}, {v(ACC+16*tl+k)}, {v(GG+k)}")
    for k in range(16): gops.append(f"v_sub_f32 {v(GG+k)}, 1.0, {v(GG+k)}")
    LG = opt.get('lag', 10)
    seq = [(ks, tl) for ks in range(16 - LG) for tl in (1, 0)] + [(ks, 1) for ks in range(16 - LG, 16)] + [(ks, 0) for ks in range(16 - LG, 16)]
    NB_ = 32 - LG
    XR = BUF
    tail = [["s_nop 4"], ["s_nop 4"]]
    for j in range(4):
        tail.append([f"v_fmac_f32 {v(ACC+16+4*j+i)}, {v(ACC+48+4*j+i)}, {v(GG+4*j+i)}" for i in range(4)] +
                    [f"ds_write_b128 {v(AD+4)}, {v(ACC+16+4*j,4)} offset:{j*1024}"])
    xt = []
    tail.append([lambda: A.wait_all(vm=False), "s_barrier"] + [(lambda j=j: xt.append(A(f"ds_read_b128 {v(XR+4*j,4)}, {v(AD+5)} offset:{j*1024}"))) for j in range(4)])
    tail.append([f"s_lshl_b32 {s(sT0)}, {s(sTT2)}, 16"])
    for j in range(4):
        tail.append([(lambda j=j: A.wait(lg=xt[j]))] + [f"v_add_f32 {v(ACC+4*j+i)}, {v(ACC+4*j+i)}, {v(XR+4*j+i)}" for i in range(4)])
    for n, (ks, tl) in enumerate(seq):
        if tl == 1:
            A.wait(vm=ltok[32 + ks])
            stamp(140 + ks)
        A(f"v_mfma_f32_32x32x16_bf16 {v(ACC+32+16*tl,16)}, {v(TMP+4*ks,4)}, {a(128+8*ks+4*tl,4)}, {'0' if ks == 0 else v(ACC+32+16*tl,16)}")
        if n % 2 == 0 and len(ltok) < 48: ltok.append(run(load_ops(len(ltok))))
        if n == 1: A(f"ds_write_b32 {v(AD)}, {v(vE)}")
        if n in (3, 5):
            for j in (n - 3, n - 2): tg = A(f"ds_read_b128 {v(GG+4*j,4)}, {v(AD+2)} offset:{j*32}")
        if n >= 8 and gops:
            A.wait(lg=tg)
            m = 5 if len(ltok) == 48 or n % 2 else 1
            run(gops[:m]); gops = gops[m:]
        if n >= NB_ - 1 and tail:
            if tail[0]: run(gops); gops = []
            run(tail.pop(0))
    stamp(11)
    for g_ in tail: run(g_)
    of = {0: "", 1: " nt", 2: " sc1", 3: " sc0 sc1"}[opt.get('outfl', 2)]
    for j in range(4):
        for e in (0, 2): A(f"v_pk_fma_f32 {v(ACC+4*j+e,2)}, {v(ACC+32+4*j+e,2)}, {v(GG+4*j+e,2)}, {v(ACC+4*j+e,2)}")
        A(f"s_add_u32 {s(sT1)}, {s(sT0)}, 4096")
        for i in range(4):
            A(f"buffer_store_dword {v(ACC+4*j+i)}, {v(AD+1)}, {s(R_OUT,4)}, {s(sT0 if i < 2 else sT1)} offen offset:{(i%2)*2048}{of}")
        if j < 3: A(f"s_add_u32 {s(sT0)}, {s(sT0)}, 16384")
    A(f"s_lshl2_add_u32 {s(sT0)}, {s(sNB)}, {s(sW)}"); A(f"s_lshl_b32 {s(sT0)}, {s(sT0)}, 5"); A(f"s_add_u32 {s(sT0)}, {s(sT0)}, {s(sRB)}")
    A(f"s_cmp_eq_u32 {s(sT0)}, 31")
    A("s_cbranch_scc0 L_fin")
    A("s_mov_b64 exec, 1")
    A(f"buffer_store_dword {v(vTAG)}, {v(vZ)}, {s(R_WS,4)}, 0 offen sc1")
    A("s_mov_b64 exec, -1")
    A.label("L_fin")
    if stamps:
        A("s_waitcnt vmcnt(0)")
        stamp(12)
        A("s_waitcnt lgkmcnt(0)")
        A(f"s_lshl2_add_u32 {s(sT0)}, {s(sWG)}, {s(sW)}"); A(f"s_lshl_b32 {s(sT0)}, {s(sT0)}, 6")
        A(f"s_add_u32 {s(sT0)}, {s(sT0)}, {WS_STAMP}")
        for i in range(14):
            A(f"v_mov_b32 {v(t0)}, {s(SREG[i] if i < 13 else sTY)}")
            A(f"buffer_store_dword {v(t0)}, {v(vZ)}, {s(R_WS,4)}, {s(sT0)} offen offset:{4*i}")
    A("s_endpgm")
    A.label("L_slow")
    A.restore(snap); ctok[:] = ctok_s; ltok[:] = ltok_s
    k0_ = KCHK
    for n2, K2 in enumerate(opt.get('k2', [27, 32])):
        ssample(5)
        for ks in range(k0_, K2): step2a(ks, False, ltok, ctok, ks == K2 - 1)
        if K2 == 32: break
        A(f"s_cbranch_scc1 L_slow{n2}")
        snap2 = A.snapshot(); ctok_s = list(ctok)
        n = 32
        for ks in range(K2, 32):
            for _ in range(2):
                if n < 32 + AHEAD: run(load_ops(n)); n += 1
            step2a(ks, False, ltok, ctok)
        while n < 32 + AHEAD: run(load_ops(n)); n += 1
        stamp(9); stamp(10)
        A("s_branch L_2b")
        A.label(f"L_slow{n2}")
        A.restore(snap2); ctok[:] = ctok_s
        k0_ = K2
    stamp(9)
    A("s_cbranch_scc0 L_po_x")
    sspin("L_po", 5)
    stamp(10)
    for n in range(32, 32 + AHEAD): run(load_ops(n))
    A("s_branch L_2b")
    A.label("L_kvretry")
    A.restore(snap_kv)
    kl = kv_loads()
    A(f"s_mov_b32 {s(sT0)}, 0")
    groups = [(ZL, kl[:4])]; pre = []
    for o in kl[4:]:
        if o.startswith('s_'): pre = [o]
        else: groups.append((ACC + 4 * (len(groups) - 1), pre + [o]))
    for n, (r, ops) in enumerate(groups):
        A(f"v_max3_u32 {v(t2)}, {v(r)}, {v(r+1)}, {v(r+2)}")
        A(f"v_max_u32 {v(t2)}, {v(t2)}, {v(r+3)}")
        A(f"v_cmp_eq_u32 vcc, -1, {v(t2)}")
        A("s_nop 0")
        A(f"s_cbranch_vccz L_kvh{n}")
        run(ops)
        A(f"s_mov_b32 {s(sT0)}, 1")
        A.label(f"L_kvh{n}")
    A(f"s_cmp_eq_u32 {s(sT0)}, 0")
    A("s_cbranch_scc1 L_kvok")
    A.wait_all(vm=True, lg=False, force=True)
    kv_sum(A.vm)
    A(f"s_sub_u32 {s(sCNT)}, {s(sCNT)}, 1")
    A("s_cbranch_scc1 L_kvok")
    A("s_cbranch_vccnz L_kvretry")
    A("s_branch L_kvok")
    A.label("L_end")
    if not opt.get('nopg'):
        tmp = A.out + [f"L_pg_{r}_{n}:" for r in 'sa' for n in range(3)]
        tmp, A.fixed, A.padded = align_pass(tmp)
        tmp, cnt = page_pads(tmp, 0x300, {"L_ssm": 's', "L_attn": 'a', "L_phase2": None})
        assert cnt['s'] >= 2 and cnt['a'] >= 2, cnt
        A.out = tmp[:-6]
    else:
        A.out, A.fixed, A.padded = align_pass(A.out)
    hdr = open(os.path.join(os.path.dirname(__file__), "header.txt")).read()
    src = hdr + f"; @launch grid=(256,1,1) block=(256,1,1) lds={LDS_BYTES}\n" + f""".amdgcn_target "amdgcn-amd-amdhsa--gfx950"
.text
.globl {KNAME}
.p2align 12
.type {KNAME},@function
{KNAME}:
{A.text()}
    s_endpgm
.section .rodata,"a"
.p2align 6
.amdhsa_kernel {KNAME}
  .amdhsa_next_free_vgpr 512
  .amdhsa_next_free_sgpr 102
  .amdhsa_accum_offset 256
  .amdhsa_group_segment_fixed_size 0
  .amdhsa_kernarg_size 128
  .amdhsa_user_sgpr_count 2
  .amdhsa_user_sgpr_kernarg_segment_ptr 1
  .amdhsa_system_sgpr_workgroup_id_x 1
.end_amdhsa_kernel
"""
    return src, A

if __name__ == "__main__":
    out = sys.argv[1]
    opt = {}
    for kv in sys.argv[3:]:
        k_, v_ = kv.split('='); opt[k_] = int(v_)
    src, A = gen(stamps=len(sys.argv) > 2 and sys.argv[2] == 'stamps', opt=opt)
    open(out, "w").write(src)
    print("lines", len(A.out), "nops", A.nops, "widened", getattr(A, 'fixed', 0), "padded", getattr(A, 'padded', 0))
```

```python
import sys, os
sys.path.insert(0, os.path.dirname(__file__))
from asmlib import *

KNAME = "gated_mix__ssm_conv_s5__linear_attn_block__prompt_kernel"

WS_EPOCH = 0
WS_KVF   = 0xD0000
WS_HF    = 0xE0000
WS_OF    = 0xE0200
WS_G     = 0x14000
WS_ZP    = 0x18000
WS_AGG   = 0x20000
WS_KVP   = 0x40000
WS_STAMP = 0xC0000
WS_ACT   = 0x100000
WS_SIZE  = WS_ACT + 64 * 98304
SCR = 131072
LDS_BYTES = 163840
SPIN = 1 << 17

def gen(stamps=False, opt=None):
    opt = opt or {}
    A = Asm()
    P_X, P_LRE, P_LIM, P_BRE, P_BIM, P_CRE, P_CIM, P_LDT = 4, 6, 8, 10, 12, 14, 16, 18
    P_DSK, P_BX, P_QKV, P_WO, P_GW, P_OUT, P_DBG, P_WS = 20, 22, 24, 26, 28, 30, 32, 34
    R_X, R_W, R_WS, R_C, R_WO, R_OUT = 36, 40, 44, 48, 52, 56
    sW, sC, sJ, sK0, sRB, sNB, sTAG, sTY = 60, 61, 62, 63, 64, 65, 66, 67
    sXO, sWO, sWST, sU0, sT0, sT1, sT2, sT3 = 68, 69, 70, 71, 72, 73, 74, 75
    sMX, sMW, sCNT, sTT, sKH, sM8 = 76, 77, 78, 79, 80, 81
    sL2E = 82
    sU1, sU2 = 84, 85
    sEPS = 86
    sD0, sD1 = 2, 3
    SREG = [88, 90, 92, 94, 96, 98, 6, 0, 26, 16, 18, 22, 20]
    sWG = 100
    sU3 = 101
    names = opt.get('stamps') or [0, 1, 2, 3, 4, 5, 6, 7, 8, 9, 10, 11, 12]
    def stamp(i):
        if stamps and i in names:
            A(f"{'s_memtime' if opt.get('cyc') else 's_memrealtime'} {s(SREG[names.index(i)], 2)}")
    vL = 0; vZ = 1; vE = 2; vJ = 3
    t0, t1, t2, t3, t4, t5, t6, t7 = 4, 5, 6, 7, 8, 9, 10, 11
    vTAG = 12; vL16 = 13; vL4 = 14; vF = 15
    ACC = 16; BUF = 80; TMP = 112; TM2 = 176
    VX, VW, VN, VK1 = 208, 212, 216, 220
    RX, RN, RT = 224, 228, 232
    RW = 234
    RA, RB = 236, 240
    AD = 244
    PR = TM2

    def run(ops):
        tok = None
        for o in ops:
            r = A(o) if isinstance(o, str) else o()
            if r is not None: tok = r
        return tok
    def sel_exec(lo, hi):
        A(f"s_mov_b32 exec_lo, {lo:#x}"); A(f"s_mov_b32 exec_hi, {hi:#x}")

    stamp(0)
    A("s_load_dwordx16 s[4:19], s[0:1], 0")
    A("s_load_dwordx16 s[20:35], s[0:1], 64")
    A("s_cmp_ge_u32 s2, 256")
    A("s_cbranch_scc1 L_end")
    A(f"s_getpc_b64 {s(sT2,2)}")
    A.label("L_pc")
    A(f"s_and_b32 {s(sT0)}, s2, 0xf8")
    A(f"v_lshrrev_b32 {v(t0)}, 5, v0")
    A(f"v_add_lshl_u32 {v(t0)}, {v(t0)}, {s(sT0)}, 7")
    A(f"v_min_u32 {v(t0)}, L_end-L_pc, {v(t0)}")
    if not opt.get('nocodepf'):
        A(f"global_load_dword {v(BUF)}, {v(t0)}, {s(sT2,2)}")
    A(f"v_lshrrev_b32 {v(t0)}, 6, v0")
    A(f"v_and_b32 {v(vL)}, 63, v0")
    A(f"v_readfirstlane_b32 {s(sW)}, {v(t0)}")
    A(f"v_mov_b32 {v(vZ)}, 0")
    A(f"s_and_b32 {s(sT0)}, s2, 7")
    A(f"s_bfe_u32 {s(sNB)}, s2, 0x30003")
    A(f"s_lshr_b32 {s(sT3)}, s2, 6")
    if stamps: A(f"s_mov_b32 {s(sWG)}, s2")
    A(f"s_and_b32 {s(sC)}, {s(sT0)}, 1"); A(f"s_lshl3_add_u32 {s(sC)}, {s(sC)}, {s(sNB)}")
    A(f"s_and_b32 {s(sJ)}, {s(sT0)}, 6"); A(f"s_lshr_b32 {s(sK0)}, {s(sT3)}, 1"); A(f"s_add_u32 {s(sJ)}, {s(sJ)}, {s(sK0)}")
    A(f"s_lshr_b32 {s(sT1)}, {s(sT0)}, 1"); A(f"s_and_b32 {s(sT2)}, {s(sT0)}, 1")
    A(f"s_lshl2_add_u32 {s(sRB)}, {s(sT2)}, {s(sT1)}"); A(f"s_lshl2_add_u32 {s(sRB)}, {s(sRB)}, {s(sT3)}")
    G_ = opt.get('G', 2)
    PAIR = G_ == 0
    if PAIR: A(f"s_add_u32 {s(sK0)}, {s(sK0)}, {s(sNB)}"); A(f"s_and_b32 {s(sK0)}, {s(sK0)}, 1")
    elif G_ == 1: A(f"s_mov_b32 {s(sK0)}, 0")
    elif G_ == 2: A(f"s_add_u32 {s(sK0)}, {s(sK0)}, {s(sNB)}"); A(f"s_lshl_b32 {s(sK0)}, {s(sK0)}, 2")
    elif G_ == 4: A(f"s_add_u32 {s(sK0)}, {s(sT3)}, {s(sNB)}"); A(f"s_lshl_b32 {s(sK0)}, {s(sK0)}, 1")
    else: A(f"s_lshl1_add_u32 {s(sK0)}, {s(sT3)}, {s(sNB)}")
    X_ = opt.get('xoff', 0)
    if X_ == 1: A(f"s_lshl1_add_u32 {s(sT1)}, {s(sT2)}, {s(sT1)}"); A(f"s_add_u32 {s(sK0)}, {s(sK0)}, {s(sT1)}")
    if X_ == 2: A(f"s_add_u32 {s(sT1)}, {s(sT2)}, {s(sT1)}"); A(f"s_add_u32 {s(sK0)}, {s(sK0)}, {s(sT1)}")
    if X_ == 3: A(f"s_lshl1_add_u32 {s(sT1)}, {s(sT2)}, {s(sT1)}"); A(f"s_lshl1_add_u32 {s(sK0)}, {s(sT1)}, {s(sK0)}")
    A(f"s_and_b32 {s(sK0)}, {s(sK0)}, 7")
    A(f"s_and_b32 {s(sTY)}, {s(sT3)}, 1")
    A(f"v_lshrrev_b32 {v(t0)}, 3, {v(vL)}")
    A(f"v_and_b32 {v(t1)}, 7, {v(vL)}")
    A(f"v_lshrrev_b32 {v(t2)}, 4, {v(vL)}")
    A(f"v_xor_b32 {v(t3)}, {v(t1)}, {v(t2)}")
    A(f"v_lshlrev_b32 {v(t3)}, 4, {v(t3)}")
    A(f"v_and_b32 {v(t2)}, 16, {v(vL)}")
    A(f"v_lshlrev_b32 {v(t2)}, 2, {v(t2)}")
    A(f"v_lshlrev_b32 {v(t4)}, 4, {v(t1)}")
    A(f"v_xor_b32 {v(t4)}, {v(t4)}, {v(t2)}")
    A(f"v_lshrrev_b32 {v(t5)}, 5, {v(vL)}")
    A(f"v_and_b32 {v(t6)}, 3, {v(t0)}")
    A(f"v_lshl_add_u32 {v(t5)}, {v(t5)}, 4, {v(t6)}")
    A(f"v_lshl_add_u32 {v(VX)}, {v(t5)}, 10, {v(t3)}")
    A(f"v_xor_b32 {v(t5)}, 64, {v(VX)}")
    A(f"v_add_u32 {v(VX+1)}, {3072}, {v(t5)}")
    A(f"v_add_u32 {v(VX+2)}, {2*3072}, {v(VX)}")
    A(f"v_add_u32 {v(VX+3)}, {3*3072}, {v(t5)}")
    A(f"v_lshl_add_u32 {v(VN)}, {v(t0)}, 10, {v(t3)}")
    A(f"v_xor_b32 {v(t5)}, 64, {v(VN)}")
    A(f"v_add_u32 {v(VN+1)}, {7168}, {v(t5)}")
    A(f"v_add_u32 {v(VN+2)}, {2*7168}, {v(VN)}")
    A(f"v_add_u32 {v(VN+3)}, {3*7168}, {v(t5)}")
    A(f"v_lshl_add_u32 {v(VK1)}, {v(t0)}, 10, {v(t4)}")
    A(f"v_lshl_add_u32 {v(VW)}, {v(t0)}, 11, {v(VK1)}")
    A(f"v_xor_b32 {v(t5)}, 32, {v(VW)}")
    for q in (1, 2, 3): A(f"v_add_u32 {v(VW+q)}, {q*(8*3072-1024)}, {v(t5 if q & 1 else VW)}")
    A(f"s_lshl_b32 {s(sT0)}, {s(sJ)}, 7")
    A(f"v_and_b32 {v(t7)}, 35, {v(vL)}"); A(f"v_bfe_u32 {v(t5)}, {v(vL)}, 2, 2"); A(f"v_lshl_add_u32 {v(t7)}, {v(t5)}, 3, {v(t7)}")
    A(f"v_bfe_u32 {v(t5)}, {v(vL)}, 4, 1"); A(f"v_lshl_add_u32 {v(t7)}, {v(t5)}, 2, {v(t7)}")
    A(f"v_lshl_add_u32 {v(t7)}, {v(t7)}, 1, {s(sT0)}")
    A(f"v_lshlrev_b32 {v(vL16)}, 4, {v(vL)}")
    A(f"s_lshl_b32 {s(sMX)}, {s(sW)}, 12")
    A(f"s_add_u32 {s(sMW)}, {s(sMX)}, 16384")
    A(f"s_and_b32 {s(sKH)}, {s(sW)}, 1")
    A(f"s_lshr_b32 {s(sT1)}, {s(sW)}, 1")
    A(f"s_lshl2_add_u32 {s(sTT)}, {s(sC)}, {s(sW)}")
    A(f"s_lshl_b32 {s(sXO)}, {s(sTT)}, 15")
    A(f"s_lshl_b32 {s(sT2)}, {s(sK0)}, 7")
    A(f"s_add_u32 {s(sXO)}, {s(sXO)}, {s(sT2)}")
    A(f"s_lshl1_add_u32 {s(sT2)}, {s(sJ)}, {s(sT1)}"); A(f"s_lshl_b32 {s(sT2)}, {s(sT2)}, 15")
    A(f"s_mul_i32 {s(sT3)}, {s(sKH)}, {32*3072}"); A(f"s_lshl_b32 {s(sT1)}, {s(sT1)}, 10"); A(f"s_add_u32 {s(sT3)}, {s(sT3)}, {s(sT1)}")
    A(f"s_add_u32 {s(sT3)}, {s(sT3)}, {s(sT0)}"); A(f"s_add_u32 {s(sT3)}, {s(sT3)}, 1024")
    A(f"s_cmp_eq_u32 {s(sTY)}, 0")
    A(f"s_cselect_b32 {s(sWO)}, {s(sT2)}, {s(sT3)}")
    A(f"s_cselect_b32 {s(sWST)}, 128, {64*3072}") if False else None
    A(f"s_mov_b32 {s(sT1)}, {64*3072}"); A(f"s_cselect_b32 {s(sWST)}, 0x80, {s(sT1)}")
    A(f"s_mov_b32 {s(sT1)}, 0x180000"); A(f"s_cselect_b32 {s(R_W+2)}, 0x80000, {s(sT1)}")
    A("s_cselect_b64 exec, -1, 0")
    A(f"v_and_b32 {v(t5)}, 32, {v(vL)}")
    A(f"v_lshl_add_u32 {v(VW)}, {v(t5)}, 7, {v(VN)}")
    A(f"v_xor_b32 {v(t5)}, 64, {v(VW)}")
    A(f"v_add_u32 {v(VW+1)}, {15*1024}, {v(t5)}")
    A(f"v_add_u32 {v(VW+2)}, {2*1024}, {v(VW)}")
    A(f"v_add_u32 {v(VW+3)}, {17*1024}, {v(t5)}")
    A(f"v_mov_b64 {v(VX,2)}, {v(VW,2)}"); A(f"v_mov_b64 {v(VX+2,2)}, {v(VW+2,2)}")
    A("s_mov_b64 exec, -1")
    A(f"s_mul_i32 {s(sT1)}, {s(sK0)}, {s(sWST)}"); A(f"s_add_u32 {s(sWO)}, {s(sWO)}, {s(sT1)}")
    A(f"s_mov_b32 {s(R_X+2)}, 0x200000"); A(f"s_mov_b32 {s(R_X+3)}, 0x20000")
    A(f"s_mov_b32 {s(R_W+3)}, 0x20000")
    A(f"s_mov_b32 m0, {s(sMX)}")
    A(f"s_mov_b32 {s(R_WS+2)}, {WS_SIZE}"); A(f"s_mov_b32 {s(R_WS+3)}, 0x20000")
    A(f"s_mov_b32 {s(R_C+2)}, 0x80000"); A(f"s_mov_b32 {s(R_C+3)}, 0x20000")
    A(f"s_mov_b32 {s(R_WO+2)}, 0x80000"); A(f"s_mov_b32 {s(R_WO+3)}, 0x20000")
    A(f"s_mov_b32 {s(R_OUT+2)}, 0x400000"); A(f"s_mov_b32 {s(R_OUT+3)}, 0x20000")
    A(f"s_lshl_b32 {s(sM8)}, {s(sW)}, 13")
    late = []
    Lt = late.append
    for q in (1, 2, 3): Lt(f"v_add_u32 {v(VK1+q)}, {q*7168}, {v(VK1)}")
    Lt(f"v_and_b32 {v(t0)}, 31, {v(vL)}")
    Lt(f"v_lshrrev_b32 {v(t1)}, 5, {v(vL)}")
    Lt(f"v_bfe_u32 {v(t2)}, {v(vL)}, 1, 3")
    Lt(f"v_xor_b32 {v(t2)}, {v(t2)}, {v(t1)}")
    Lt(f"v_lshlrev_b32 {v(t2)}, 4, {v(t2)}")
    Lt(f"v_lshl_add_u32 {v(RN)}, {v(t0)}, 7, {v(t2)}")
    for q in (1, 2, 3): Lt(f"v_xor_b32 {v(RN+q)}, {q*32}, {v(RN)}")
    for q in range(4): Lt(f"v_add_u32 {v(RX+q)}, {s(sMX)}, {v(RN+q)}")
    Lt(f"v_bfe_u32 {v(t2)}, {v(vL)}, 2, 2")
    Lt(f"v_bfe_u32 {v(t3)}, {v(vL)}, 3, 1")
    Lt(f"v_bfe_u32 {v(t4)}, {v(vL)}, 4, 1")
    Lt(f"v_and_b32 {v(t5)}, 3, {v(vL)}")
    Lt(f"v_lshlrev_b32 {v(t5)}, 3, {v(t5)}")
    Lt(f"v_lshl_add_u32 {v(t5)}, {v(t4)}, 5, {v(t5)}")
    Lt(f"v_lshl_add_u32 {v(t5)}, {v(t3)}, 6, {v(t5)}")
    Lt(f"v_lshl_add_u32 {v(t5)}, {v(t2)}, 7, {v(t5)}")
    Lt(f"v_lshl_add_u32 {v(RT)}, {v(t1)}, 10, {v(t5)}")
    Lt(f"v_and_b32 {v(t2)}, 32, {v(vL)}"); Lt(f"v_xor_b32 {v(RT)}, {v(t2)}, {v(RT)}")
    Lt(f"v_xor_b32 {v(RT+1)}, 64, {v(RT)}")
    Lt(f"v_lshl_add_u32 {v(RW)}, {v(t1)}, 9, {v(t5)}")
    Lt(f"s_mul_i32 {s(sT0)}, {s(sKH)}, {16384+64}")
    Lt(f"v_xor_b32 {v(RW)}, {s(sT0)}, {v(RW)}")
    Lt(f"v_xor_b32 {v(RW+1)}, 64, {v(RW)}")
    Lt(f"v_lshlrev_b32 {v(vL4)}, 2, {v(vL)}")
    sWOB, sCB = P_DBG, P_DBG + 1
    Lt(f"s_and_b32 {s(sT1)}, {s(sJ)}, 1")
    Lt(f"s_and_b32 {s(sWOB)}, {s(sW)}, 2"); Lt(f"s_add_u32 {s(sWOB)}, {s(sWOB)}, {s(sW)}"); Lt(f"s_lshl1_add_u32 {s(sWOB)}, {s(sT1)}, {s(sWOB)}")
    Lt(f"s_lshl_b32 {s(sWOB)}, {s(sWOB)}, 9"); Lt(f"s_add_u32 {s(sWOB)}, {s(sWOB)}, {s(sNB)}"); Lt(f"s_lshl_b32 {s(sWOB)}, {s(sWOB)}, 7")
    Lt(f"s_lshr_b32 {s(sCB)}, {s(sW)}, 1"); Lt(f"s_lshl2_add_u32 {s(sCB)}, {s(sT1)}, {s(sCB)}")
    Lt(f"s_lshl_b32 {s(sT0)}, {s(sNB)}, 9"); Lt(f"s_add_u32 {s(sCB)}, {s(sCB)}, {s(sT0)}"); Lt(f"s_lshl_b32 {s(sCB)}, {s(sCB)}, 7")
    if True:
        Lt(f"s_and_b32 {s(sT0)}, {s(sNB)}, 3"); Lt(f"s_lshl_b32 {s(sT0)}, {s(sT0)}, 7"); Lt(f"s_xor_b32 {s(sCB)}, {s(sCB)}, {s(sT0)}")
        Lt(f"s_lshl_b32 {s(sT0)}, {s(sT0)}, 9"); Lt(f"s_xor_b32 {s(sWOB)}, {s(sWOB)}, {s(sT0)}")
    Lt(f"s_mul_i32 {s(sT0)}, {s(sKH)}, {65536+4096}")
    Lt(f"s_lshl_b32 {s(sT1)}, {s(sT1)}, 16"); Lt(f"s_xor_b32 {s(sT0)}, {s(sT0)}, {s(sT1)}")
    Lt(f"s_xor_b32 {s(sT1)}, {s(sT0)}, 4096")
    for q in range(4):
        Lt(f"v_add_u32 {v(RA+q)}, {s(sT0)}, {v(RN+q)}")
        Lt(f"v_add_u32 {v(RB+q)}, {s(sT1)}, {v(RN+q)}")
    Lt(f"s_mov_b64 {s(R_WS,2)}, {s(P_WS,2)}")
    Lt(f"s_mov_b64 {s(R_WO,2)}, {s(P_WO,2)}")
    Lt(f"s_mov_b64 {s(R_OUT,2)}, {s(P_OUT,2)}")
    PRE = opt.get('pre', 27)
    run(late[:PRE]); late = late[PRE:]
    A(f"s_cmp_eq_u32 {s(sTY)}, 0")
    A("s_waitcnt lgkmcnt(0)")
    stamp(20)
    A(f"s_mov_b64 {s(R_X,2)}, {s(P_X,2)}")
    pLRE, pLIM, pLDT = PR, PR + 1, PR + 2
    A("s_cbranch_scc0 L_nopar")
    A(f"global_load_ushort {v(pLRE)}, {v(t7)}, {s(P_LRE,2)}")
    A(f"global_load_ushort {v(pLIM)}, {v(t7)}, {s(P_LIM,2)}")
    A(f"global_load_ushort {v(pLDT)}, {v(t7)}, {s(P_LDT,2)}")
    tokP = A(f"global_load_dword {v(vE)}, {v(vZ)}, {s(P_WS,2)} sc1")
    A.label("L_nopar")
    A(f"s_cmp_eq_u32 {s(sKH)}, 0")
    def dma(voff, srd, soff, q):
        off = f" offset:{q*1024}" if q else ""
        return f"buffer_load_dwordx4 {v(voff+q)}, {s(srd,4)}, {s(soff)} offen{off} lds"
    for q in range(4):
        A(dma(VX, R_X, sXO, q))
    A(f"s_cselect_b64 {s(R_W,2)}, {s(P_BRE,2)}, {s(P_BIM,2)}")
    A(f"s_cselect_b64 {s(R_C,2)}, {s(P_CRE,2)}, {s(P_CIM,2)}")
    A(f"s_cmp_eq_u32 {s(sTY)}, 0")
    A(f"s_cselect_b64 {s(R_W,2)}, {s(R_W,2)}, {s(P_QKV,2)}")
    A(f"s_mov_b32 m0, {s(sMW)}")
    for q in range(4):
        if q: run(late[:11]); late = late[11:]
        A(dma(VW, R_W, sWO, q))
    utok0 = [A.vm]
    stamp(21)
    def unit_ops(i):
        slot = (i % 4) * 32768
        ops = []
        if G_ == 2 and X_ == 0 and i != 4:
            ops += [f"s_add_u32 {s(sXO)}, {s(sXO)}, 128", f"s_add_u32 m0, {s(sMX)}, {slot}"]
            ops += [dma(VX, R_X, sXO, q) for q in range(4)]
            ops += [f"s_add_u32 {s(sWO)}, {s(sWO)}, {s(sWST)}", f"s_add_u32 m0, {s(sMW)}, {slot}"]
            return ops + [dma(VW, R_W, sWO, q) for q in range(4)]
        ops += [f"s_cmp_eq_u32 {s(sK0)}, {1 if PAIR else 8-i}", f"s_cselect_b32 {s(sD0)}, {(-1 if i & 1 else 3) if PAIR else -7}, 1", f"s_mul_i32 {s(sD1)}, {s(sD0)}, {s(sWST)}",
                f"s_lshl_b32 {s(sD0)}, {s(sD0)}, 7", f"s_add_u32 {s(sXO)}, {s(sXO)}, {s(sD0)}", f"s_add_u32 m0, {s(sMX)}, {slot}"]
        ops += [dma(VX, R_X, sXO, q) for q in range(4)]
        ops += [f"s_add_u32 {s(sWO)}, {s(sWO)}, {s(sD1)}", f"s_add_u32 m0, {s(sMW)}, {slot}"]
        ops += [dma(VW, R_W, sWO, q) for q in range(4)]
        return ops
    u1 = unit_ops(1)
    U1C = opt.get('u1c', 2)
    k = [n for n, o in enumerate(u1) if o.startswith('buffer')][U1C - 1] + 1 if U1C else 0
    run(late[:8]); run(u1[:k]); run(late[8:]); u1 = u1[k:]
    A(f"s_cmp_eq_u32 {s(sTY)}, 0")
    A("s_cbranch_scc0 L_attn")
    snap0 = A.snapshot()

    def unit8_ops(voff, srd, pre, base, rowstep):
        ops = list(pre)
        ops.append(f"s_add_u32 m0, {s(sM8)}, {base}")
        ops += [dma(voff, srd, sD0, q) for q in range(4)]
        ops.append(f"s_add_u32 {s(sD0)}, {s(sD0)}, {rowstep}")
        ops.append(f"s_add_u32 m0, {s(sM8)}, {base+4096}")
        ops += [dma(voff, srd, sD0, q) for q in range(4)]
        return ops
    def wq_ops(u):
        pre = [f"s_xor_b32 {s(sD0)}, {s(sK0)}, {4*u}", f"s_{'xor_b32' if PAIR else 'add_u32'} {s(sD0)}, {s(sD0)}, {s(sW)}", f"s_and_b32 {s(sD0)}, {s(sD0)}, 7",
               f"s_mul_i32 {s(sD0)}, {s(sD0)}, {64*3072}", f"s_lshl_b32 {s(sD1)}, {s(sJ)}, 7", f"s_add_u32 {s(sD0)}, {s(sD0)}, {s(sD1)}"]
        return unit8_ops(VW, R_W, pre, u * 32768, 32 * 3072)
    def wo_ops(u, base):
        pre = [f"s_xor_b32 {s(sD0)}, {s(sWOB)}, {u << 17}"]
        return unit8_ops(VK1, R_WO, pre, base, 32 * 1024)
    def c_ops(slot):
        pre = [f"s_xor_b32 {s(sD0)}, {s(sCB)}, {slot << 8}"]
        return unit8_ops(VN, R_C, pre, slot * 32768, 32 * 1024)
    def wo_reads(u, areg, off):
        L = []
        for st in range(8):
            for tl in range(2):
                d = 128 + 8 * (8 * u + st) + 4 * tl
                L.append(f"ds_read_b64_tr_b16 {a(d,2)}, {v(areg+tl)} offset:{off+st*2048}")
                L.append(f"ds_read_b64_tr_b16 {a(d+2,2)}, {v(areg+tl)} offset:{off+st*2048+1024}")
        return L
    class Stream:
        def __init__(self, ops): self.ops = list(ops)
        def dma(self, n=1):
            while n > 0 and self.ops:
                o = self.ops.pop(0); A(o)
                if o.startswith('buffer_') or o.startswith('global_'): n -= 1; self.last = A.vm
        def salu(self):
            while self.ops and not (self.ops[0].startswith('buffer_') or self.ops[0].startswith('global_')): A(self.ops.pop(0))
        def some(self, n):
            tok = None
            for _ in range(n):
                if self.ops: tok = A(self.ops.pop(0))
            return tok
        def rest(self):
            tok = None
            while self.ops:
                tok = A(self.ops.pop(0)); self.last = A.vm
            return tok
    def sprinkle(ops, stream, every):
        for n, o in enumerate(ops):
            A(o) if isinstance(o, str) else o()
            if (n + 1) % every == 0: stream.dma()

    RA16, RB16 = [RN + 1, RN + 2], [RN + 3, AD + 8]
    def main_loop(kind, tail_units, fill):
        utok = list(utok0)
        def reads(i, st):
            slot = (i % 2) * 32768
            b = BUF + 16 * ((4 * i + st) % 2)
            if kind == 'ssm':
                L = [f"ds_read_b128 {a(16*i+4*f,4)}, {v(RX+(f>>1))} offset:{slot+(f&1)*2048}" for f in {0: (0, 1), 1: (2,), 2: (3,), 3: ()}[st]]
                L += [f"ds_read_b128 {v(b+4*tl,4)}, {v(RX+2+(st>>1))} offset:{slot+16384+(st&1)*8192+tl*2048}" for tl in range(4)]
                if i % 2 == 1: L.append(f"v_xor_b32 {v(RX+(0, 2, 1, 3)[st])}, 0x10000, {v(RX+(0, 2, 1, 3)[st])}")
                return L
            s_, hv = st >> 1, st & 1
            wb = TM2 + 8 * hv
            rot = lambda r: [f"v_xor_b32 {v(r)}, 0x10000, {v(r)}"] if i % 2 == 1 else []
            tr = lambda tl: [f"ds_read_b64_tr_b16 {v(wb+4*tl+2*sec,2)}, {v(RB16[tl])} offset:{slot+16384+hv*8192+s_*4096+sec*512}" for sec in range(2)]
            if hv == 0:
                xr = [f"ds_read_b128 {v(BUF+16*s_+4*r,4)}, {v(RA16[s_])} offset:{slot+r*2048}" for r in range(4)]
                return tr(0) + xr + tr(1) + rot(RA16[s_])
            L = tr(0) + tr(1) + [f"ds_read_b128 {a(16*i+4*f,4)}, {v(RX+f)} offset:{slot}" for f in (2 * s_, 2 * s_ + 1)]
            return L + rot(RX + 2 * s_) + rot(RX + 2 * s_ + 1) + (rot(RB16[0]) + rot(RB16[1]) if s_ else [])
        def mfmas(i, st):
            b = BUF + 16 * ((4 * i + st) % 2)
            L = []
            if kind == 'ssm':
                for tl in range(4):
                    for r in range(2):
                        d = v(ACC + 16 * (2 * (st & 1) + (tl & 1)) + 8 * (tl >> 1) + 4 * r, 4)
                        L.append(f"v_mfma_f32_16x16x32_bf16 {d}, {a(16*i+8*(st>>1)+4*r,4)}, {v(b+4*tl,4)}, {'0' if i == 0 and st < 2 else d}")
                return L
            for tl in range(2):
                for r in range(4):
                    d = v(ACC + 32 * (st & 1) + 16 * tl + 4 * r, 4)
                    c = d if i or st > 1 else ("0" if st else "1.0")
                    L.append(f"v_mfma_f32_16x16x32_bf16 {d}, {v(BUF+16*(st>>1)+4*r,4)}, {v(TM2+8*(st&1)+4*tl,4)}, {c}")
            return L
        prev = None
        ET = opt.get('et', 2)
        eX, eW = TMP + 62, TMP + 63 if kind != 'ssm' else TMP + 59
        if kind == 'ssm': eX = TMP + 58
        def etouch(mask):
            A(f"s_mov_b64 exec, {mask:#x}")
            A(f"buffer_load_dword {v(eX-1)}, {v(eX)}, {s(R_X,4)}, 0 offen")
            A(f"buffer_load_dword {v(eX-1)}, {v(eW)}, {s(R_W,4)}, 0 offen")
            A("s_mov_b64 exec, -1")
        tsched = {}
        AT = opt.get('at1', 0)
        if AT and kind == 'ssm': ET = 0
        if AT and kind != 'ssm':
            eB = TMP + 53
            cl = {0: [2, 3, 4, 5, 6, 7, 0, 0], 2: [1, 5, 2, 6, 3, 7, 0, 0]}[G_]
            tab = sum(c_ << (4 * n_) for n_, c_ in enumerate(cl))
            A(f"s_mov_b32 {s(sT0)}, {tab:#x}")
            A(f"v_and_b32 {v(t1)}, 28, {v(vL)}"); A(f"v_bfe_u32 {v(t1)}, {s(sT0)}, {v(t1)}, 4")
            A(f"v_and_b32 {v(t0)}, 3, {v(vL)}"); A(f"v_lshlrev_b32 {v(t2)}, 7, {v(t1)}")
            A(f"v_lshl_add_u32 {v(eX)}, {v(t0)}, 10, {v(t2)}")
            A(f"v_and_b32 {v(t0)}, 1, {v(vL)}"); A(f"v_lshl_add_u32 {v(eB)}, {v(t0)}, 10, {v(t2)}")
            A(f"v_mul_u32_u24 {v(t0)}, 3072, {v(t0)}"); A(f"v_mul_u32_u24 {v(t1)}, {64*3072}, {v(t1)}"); A(f"v_add_u32 {v(t0)}, {v(t0)}, {v(t1)}")
            A(f"s_lshl3_add_u32 {s(sT0)}, {s(sTT)}, {s(sJ)}"); A(f"s_lshl_b32 {s(sT0)}, {s(sT0)}, 12"); A(f"v_add_u32 {v(eX)}, {s(sT0)}, {v(eX)}")
            A(f"s_mul_i32 {s(sT1)}, {s(sC)}, {2*3072}"); A(f"s_add_u32 {s(sT1)}, {s(sT1)}, {s(sWO)}")
            A(f"s_mul_i32 {s(sCNT)}, {s(sK0)}, {64*3072}"); A(f"s_sub_u32 {s(sT1)}, {s(sT1)}, {s(sCNT)}"); A(f"v_add_u32 {v(eW)}, {s(sT1)}, {v(t0)}")
            A(f"s_lshr_b32 {s(sT0)}, {s(sW)}, 1"); A(f"s_lshl1_add_u32 {s(sT0)}, {s(sJ)}, {s(sT0)}"); A(f"s_lshl4_add_u32 {s(sT0)}, {s(sT0)}, {s(sC)}")
            A(f"s_lshl_b32 {s(sT0)}, {s(sT0)}, 11"); A(f"v_add_u32 {v(eB)}, {s(sT0)}, {v(eB)}")
            A(f"s_cmp_eq_u32 {s(sKH)}, 0"); A(f"s_cselect_b64 {s(P_BRE,2)}, {s(P_BRE,2)}, {s(P_BIM,2)}")
            def etouch(sets):
                for k_ in (1, 2, 3):
                    if not sets >> k_ & 1: continue
                    A(f"s_mov_b64 exec, {0xff << (8 * (k_ - 1)):#x}")
                    A(f"buffer_load_dword {v(eX-1)}, {v(eX)}, {s(R_X,4)}, 0 offen")
                    A(f"global_load_dword {v(eX-1)}, {v(eB)}, {s(P_BRE,2)}")
                    A(f"buffer_load_dword {v(eX-1)}, {v(eW)}, {s(R_W,4)}, 0 offen")
                A("s_mov_b64 exec, -1")
            m0_, m1_, m2_ = {1: (0, 12, 0), 2: (12, 0, 0), 3: (14, 0, 0), 4: (0, 14, 0), 5: (4, 8, 0), 6: (6, 8, 0), 7: (2, 12, 0)}[AT]
            if m0_: etouch(m0_)
        elif ET and PAIR:
            rs, ws_ = (1024, 128) if kind == 'ssm' else (3072, 64 * 3072)
            A(f"v_and_b32 {v(t0)}, 1, {v(vL)}"); A(f"v_bfe_u32 {v(t1)}, {v(vL)}, 1, 3")
            A(f"v_lshlrev_b32 {v(t2)}, 7, {v(t1)}"); A(f"v_lshl_add_u32 {v(t2)}, {v(t0)}, 10, {v(t2)}")
            if kind != 'ssm':
                A(f"v_mul_u32_u24 {v(t0)}, {rs}, {v(t0)}"); A(f"v_mul_u32_u24 {v(t1)}, {ws_}, {v(t1)}"); A(f"v_add_u32 {v(t0)}, {v(t0)}, {v(t1)}")
            A(f"s_lshl1_add_u32 {s(sT0)}, {s(sJ)}, {s(sTY)}"); A(f"s_lshl4_add_u32 {s(sT0)}, {s(sTT)}, {s(sT0)}"); A(f"s_lshl_b32 {s(sT0)}, {s(sT0)}, 11")
            A(f"s_mul_i32 {s(sT1)}, {s(sC)}, {2*rs}"); A(f"s_add_u32 {s(sT1)}, {s(sT1)}, {s(sWO)}")
            A(f"s_mul_i32 {s(sCNT)}, {s(sK0)}, {ws_}"); A(f"s_sub_u32 {s(sT1)}, {s(sT1)}, {s(sCNT)}")
            A(f"v_add_u32 {v(eW)}, {s(sT1)}, {v(t2 if kind == 'ssm' else t0)}"); A(f"v_add_u32 {v(eX)}, {s(sT0)}, {v(t2)}")
            m0_, m2_ = 0, 0
            m1_, tsched = {1: (0xfff0, {}), 2: (0xf0, {1: 0xf00, 3: 0xf000}), 3: (0xf0, {1: 0xff00}), 4: (0xff0, {1: 0xf000}), 5: (0xf0, {0: 0xf00, 2: 0xf000})}[ET]
        elif ET:
            assert 0 < U1C <= 4
            rs, ws_ = (1024, 128) if kind == 'ssm' else (3072, 64 * 3072)
            A(f"v_and_b32 {v(t0)}, 3, {v(vL)}"); A(f"v_bfe_u32 {v(t1)}, {v(vL)}, 2, 2")
            A(f"v_lshlrev_b32 {v(t2)}, 7, {v(t1)}"); A(f"v_lshl_add_u32 {v(t2)}, {v(t0)}, 10, {v(t2)}")
            if kind != 'ssm':
                A(f"v_mul_u32_u24 {v(t0)}, {rs}, {v(t0)}"); A(f"v_mul_u32_u24 {v(t1)}, {ws_}, {v(t1)}"); A(f"v_add_u32 {v(t0)}, {v(t0)}, {v(t1)}")
            A(f"s_and_b32 {s(sT0)}, {s(sJ)}, 6"); A(f"s_add_u32 {s(sT0)}, {s(sT0)}, {s(sTY)}"); A(f"s_lshl_b32 {s(sT0)}, {s(sT0)}, 12")
            A(f"s_add_u32 {s(sT0)}, {s(sT0)}, {s(sXO)}")
            A(f"s_lshr_b32 {s(sT1)}, {s(sC)}, 1"); A(f"s_mul_i32 {s(sT1)}, {s(sT1)}, {4*rs}"); A(f"s_add_u32 {s(sT1)}, {s(sT1)}, {s(sWO)}")
            A(f"s_add_u32 {s(sT1)}, {s(sT1)}, {ws_}")
            A(f"v_add_u32 {v(eW)}, {s(sT1)}, {v(t2 if kind == 'ssm' else t0)}"); A(f"v_add_u32 {v(eX)}, {s(sT0)}, {v(t2)}")
            m0_, m1_, m2_ = {1: (0, 0xff0, 0), 2: (0, 0xf0, 0xf00), 3: (0xf, 0xf0, 0xf00), 4: (0xff, 0xf00, 0), 5: (0xf, 0xff0, 0), 6: (0xfff, 0, 0)}[ET]
            if m0_: etouch(m0_)
        u1s = Stream(u1); n = 0; left = 8 - U1C
        while fill and fill[0][0] < 0:
            g = fill.pop(0)[1]; run(g); n += len(g)
            if n >= opt.get('u1e', 11) and left > 0:
                n = 0; left -= 1; u1s.dma()
                if left == -opt.get('pgit', 2): page_touch(kind[0])
                if left == 0 and ET and m1_: etouch(m1_); m1_ = 0
        u1s.rest(); utok.append(u1s.last)
        if ET and m1_: etouch(m1_)
        stamp(1)
        D3 = opt.get('d3', 0)
        if D3:
            u2s = Stream(unit_ops(2)); u2s.dma(D3)
        kk = [n for n, o in enumerate(tail_units[1]) if o.startswith('buffer')][(opt.get('t1s', 3) if kind == 'ssm' else opt.get('t1', 8)) - 1] + 1
        tail_units[1], leftover = tail_units[1][:kk], tail_units[1][kk:]
        streams = [Stream(unit_ops(i + 2) if i + 2 < 8 else tail_units[i - 6]) for i in range(8)]
        for i in range(8):
            nxt = streams[i]
            if D3 and i == 0: nxt = Stream(u2s.ops + unit_ops(3)); tok2 = A.vm + 8 - D3
            if D3 and i == 1: nxt = Stream([])
            nxt.salu()
            if i and i == opt.get('pgit', 2): page_touch(kind[0])
            if opt.get('xnop') and i >= 3:
                for _ in range(opt['xnop']): A("s_nop 15")
            A.wait(vm=utok[i])
            A("s_barrier")
            if opt.get('marks'): A.label(f"M_{kind}_{i}")
            stamp(30 + i)
            burst = i < opt.get('burst', 1)
            tdone = False
            for st in range(4):
                rd = reads(i, st)
                if prev is None:
                    run(rd); prev = (i, st, A.lg); nxt.dma(4 if burst else 2); nxt.salu(); continue
                ms = mfmas(prev[0], prev[1])
                need = lambda L_: max(A.pend_lg.get(r, 0) for o in L_ for r in Ins(o).srcAB)
                wts = {0: need(ms[:4]), 4: need(ms[4:])} if opt.get('fw', 1) else {0: prev[2]}
                split = opt.get('sa', [3, 1, 1, 1, 0, 2, 0, 9]) if kind == 'attn' else opt.get('ss', [1, 1, 1, 1, 0, 1, 0, 9])
                fper = opt.get('fa', [0, 1, 1, 0, 0, 0, 0, 0]) if kind == 'attn' else opt.get('fs', [1, 1, 1, 0, 0, 1, 0, 0])
                dgap = opt.get('dga', [4, 6]) if kind == 'attn' else opt.get('dgs', [4, 6])
                for tl in range(len(ms)):
                    if tl in wts: A.wait(lg=wts[tl])
                    A(ms[tl])
                    run(rd[:split[tl]]); rd = rd[split[tl]:]
                    if tl in dgap or (burst and tl % 2 == dgap[0] % 2): nxt.dma()
                    elif not rd or split[tl] == 0:
                        nxt.salu()
                        if not nxt.ops and i < 7 and not D3: streams[i + 1].salu()
                    n = fper[tl]
                    while n > 0 and fill and fill[0][0] <= i:
                        g = fill.pop(0)[1]
                        run(g); n -= len(g)
                assert not rd
                prev = (i, st, A.lg)
                if not nxt.ops and not tdone:
                    tdone = True; utk = A.vm
                    if i == 0 and ET and m2_: etouch(m2_)
                    if i in tsched: etouch(tsched[i])
                    if i == opt.get('wta', -1): A(f"global_load_dword {v(vJ)}, {v(vJ)}, {s(P_BX,2)}")
            nxt.rest()
            if D3 and i == 0: utok += [tok2, A.vm]
            elif not (D3 and i == 1): utok.append(nxt.last)
        assert not fill, len(fill)
        A.wait(lg=prev[2])
        run(mfmas(prev[0], prev[1]))
        return utok, leftover

    def weight_touch(F, ssm):
        if not opt.get('wt', 2): return
        it = F.it
        F.it = -1
        if opt.get('wt', 2) == 2:
            if ssm == (opt.get('wtr', 0) == 0) and opt.get('wtit', 6) < 8:
                F(f"s_lshl3_add_u32 {s(sCNT)}, {s(sC)}, {s(sJ)}"); F(f"s_lshl_b32 {s(sCNT)}, {s(sCNT)}, 12")
                F(f"v_lshrrev_b32 {v(vJ)}, 1, {v(vL)}"); F(f"v_lshl_add_u32 {v(vJ)}, {v(vJ)}, 7, {s(sCNT)}")
                F(f"s_cmp_lt_u32 {s(sW)}, 2", f"s_cselect_b64 {s(P_BX,2)}, {s(R_C,2)}, {s(P_WO,2)}")
                F.it = opt.get('wtit', 6) - 0.5
                F(f"global_load_dword {v(vJ)}, {v(vJ)}, {s(P_BX,2)}")
                F.it = -1
            if ssm == (opt.get('wqr', 1) == 0):
                F(f"s_lshl2_add_u32 {s(sCNT)}, {s(sNB)}, {s(sW)}")
                F(f"s_mul_i32 {s(sCNT)}, {s(sCNT)}, {16*24}"); F(f"s_add_u32 {s(sCNT)}, {s(sCNT)}, {s(sJ)}"); F(f"s_lshl_b32 {s(sCNT)}, {s(sCNT)}, 7")
                F(f"v_lshrrev_b32 {v(vF)}, 2, {v(vL)}"); F(f"v_mul_u32_u24 {v(vF)}, 3072, {v(vF)}"); F(f"v_add_u32 {v(vF)}, {s(sCNT)}, {v(vF)}")
                F(f"s_mov_b64 {s(P_WO,2)}, {s(P_QKV,2)}")
                F.it = opt.get('wqit', 1) - 0.5
                F(f"global_load_dword {v(vF)}, {v(vF)}, {s(P_WO,2)}")
            F.sort(key=lambda e: e[0])
            F.it = it
            return
        F(f"s_lshl3_add_u32 {s(sCNT)}, {s(sRB)}, {s(sNB)}")
        F(f"v_lshrrev_b32 {v(vJ)}, 2, {v(vL)}")
        F(f"s_lshl_b32 {s(sCNT)}, {s(sCNT)}, 4")
        F(f"v_add_u32 {v(vJ)}, {s(sCNT)}, {v(vJ)}")
        F(f"v_lshrrev_b32 {v(vF)}, 3, {v(vJ)}")
        F(f"v_lshlrev_b32 {v(vJ)}, 7, {v(vJ)}")
        F(f"s_cmp_eq_u32 {s(sW)}, 3", f"s_cselect_b32 {s(sCNT)}, 0x800, 0", f"s_cselect_b64 {s(P_BX,2)}, {s(P_QKV,2)}, {s(P_WO,2)}")
        F(f"v_mad_u32_u24 {v(vJ)}, {v(vF)}, {s(sCNT)}, {v(vJ)}")
        F(f"s_cmp_lt_u32 {s(sW)}, 2", f"s_cselect_b64 {s(P_BX,2)}, {s(R_C,2)}, {s(P_BX,2)}")
        F.sort(key=lambda e: e[0])
        F.it = opt.get('wtit', 6) - 0.5
        if opt.get('wta', -1) < 0: F(f"global_load_dword {v(vJ)}, {v(vJ)}, {s(P_BX,2)}")
        F.sort(key=lambda e: e[0])
        F.it = it
    class Fill(list):
        it = -1
        def __call__(self, *ops): self.append((self.it, list(ops)))
    def epoch_load():
        A("s_mov_b64 exec, 1")
        A(f"global_load_dword {v(vE)}, {v(vZ)}, {s(P_WS,2)} sc1")
        A("s_mov_b64 exec, -1")
    def get_tag(F):
        F(f"v_readfirstlane_b32 {s(sTAG)}, {v(vE)}")
        F(f"s_mul_i32 {s(sTAG)}, {s(sTAG)}, 0x9E3779B5")
        F(f"s_add_u32 {s(sTAG)}, {s(sTAG)}, 0x7F4A7C15")
        F(f"v_mov_b32 {v(vTAG)}, {s(sTAG)}")
    def cmul4(F, d, x, y):
        if F.it < 0:
            for o in cmul_ops(d, x, y): F(o)
            return
        F(f"v_mul_f32 {v(d)}, {v(x)}, {v(y)}")
        F(f"v_mul_f32 {v(d+1)}, {v(x)}, {v(y+1)}")
        F(f"v_fma_f32 {v(d)}, -{v(x+1)}, {v(y+1)}, {v(d)}")
        F(f"v_fmac_f32 {v(d+1)}, {v(x+1)}, {v(y)}")
    def p2_early(F):
        it = F.it; F.it = -0.9
        F(f"s_lshr_b32 {s(sTT2)}, {s(sW)}, 1"); F(f"s_lshl1_add_u32 {s(sTT2)}, {s(sRB)}, {s(sTT2)}")
        F(f"s_lshl1_add_u32 {s(sHFA)}, {s(sTT2)}, {s(sKH)}"); F(f"s_lshl_b32 {s(sHFA)}, {s(sHFA)}, 10"); F(f"s_add_u32 {s(sHFA)}, {s(sHFA)}, {WS_HF}")
        F(f"s_mul_i32 {s(sHB)}, {s(sTT2)}, 3"); F(f"s_add_u32 {s(sHB)}, {s(sHB)}, {s(sKH)}")
        F(f"s_and_b32 {s(sXT)}, {s(sNB)}, 3"); F(f"s_lshl2_add_u32 {s(sHB)}, {s(sHB)}, {s(sXT)}")
        F(f"s_lshl_b32 {s(sHB)}, {s(sHB)}, 13"); F(f"s_add_u32 {s(sHB)}, {s(sHB)}, {WS_ACT}")
        F(f"s_lshl2_add_u32 {s(sXT)}, {s(sRB)}, {s(sW)}"); F(f"s_lshl_b32 {s(sXT)}, {s(sXT)}, 7"); F(f"s_add_u32 {s(sXT)}, {s(sXT)}, {s(sNB)}")
        F(f"s_lshl_b32 {s(sXT)}, {s(sXT)}, 7")
        F(f"s_lshr_b32 {s(sXM)}, {s(sMX)}, 1"); F(f"s_add_u32 {s(sXM)}, {s(sXM)}, {XS}")
        F(f"s_lshl1_add_u32 {s(sCOL)}, {s(sNB)}, {s(sKH)}"); F(f"s_lshl_b32 {s(sCOL)}, {s(sCOL)}, 6")
        F.it = opt.get('dsit', 6) - 0.4
        F(f"v_and_b32 {v(vE)}, 31, {v(vL)}")
        F(f"v_lshl_add_u32 {v(vE)}, {v(vE)}, 1, {s(sCOL)}")
        F(f"global_load_ushort {v(vE)}, {v(vE)}, {s(P_DSK,2)}")
        F.sort(key=lambda e: e[0])
        F.it = it
    def p2_setup():
        A(f"s_mov_b32 m0, {s(sXM)}")
        for q in range(2): A(dma(VN, R_X, sXT, q))
    def p2_late():
        L = []
        B = lambda *o: L.append(list(o))
        B(f"s_and_b32 {s(sT0)}, {s(sMX)}, 8192"); B(f"s_lshr_b32 {s(sT0)}, {s(sT0)}, 1"); B(f"s_add_u32 {s(sT0)}, {s(sT0)}, {XS}")
        B(f"s_lshl_b32 {s(sT1)}, {s(sKH)}, 6")
        B(f"v_xor_b32 {v(AD+10)}, {s(sT1)}, {v(RN)}")
        B(f"v_add_u32 {v(AD+10)}, {s(sT0)}, {v(AD+10)}")
        B(f"v_xor_b32 {v(AD+11)}, 32, {v(AD+10)}")
        for q in range(4): B(f"v_mov_b64 {v(DF+2*q,2)}, 0")
        B(f"v_mov_b32 {v(vE+1)}, 0")
        B(f"v_and_b32 {v(t6)}, 48, {v(vL16)}")
        B(f"v_lshlrev_b64 {v(t4,2)}, {v(t6)}, {v(vE,2)}")
        for q in range(4):
            m = 0xf << (16 * (q >> 1) + 4 * (q & 1))
            B(f"s_mov_b32 exec_lo, {m:#x}", f"s_mov_b32 exec_hi, {m << 8:#x}", f"v_mov_b64 {v(DF+2*q,2)}, {v(t4,2)}", "s_mov_b64 exec, -1")
        B(f"v_and_b32 {v(t0)}, 31, {v(vL)}")
        B(f"v_lshrrev_b32 {v(t1)}, 5, {v(vL)}")
        B(f"v_lshlrev_b32 {v(AD+7)}, 2, {v(t0)}")
        B(f"s_lshl_b32 {s(sT1)}, {s(sW)}, 7"); B(f"s_add_u32 {s(sT1)}, {s(sT1)}, {SCR+16384}")
        B(f"v_lshl_add_u32 {v(AD+2)}, {v(t1)}, 4, {s(sT1)}")
        B(f"v_add_u32 {v(AD)}, {s(sT1)}, {v(AD+7)}")
        B(f"v_lshl_add_u32 {v(t2)}, {s(sCOL)}, 1, {v(AD+7)}")
        B(f"v_lshl_add_u32 {v(AD+1)}, {v(t1)}, 13, {v(t2)}")
        B(f"s_xor_b32 {s(sT0)}, {s(sMX)}, 4096"); B(f"s_add_u32 {s(sT0)}, {s(sT0)}, {SCR}")
        B(f"v_add_u32 {v(AD+4)}, {s(sT0)}, {v(vL16)}")
        B(f"v_xor_b32 {v(AD+5)}, 4096, {v(AD+4)}")
        B(f"s_mul_i32 {s(sU1)}, {s(sTT2)}, 6"); B(f"s_add_u32 {s(sU1)}, {s(sU1)}, {s(sKH)}")
        B(f"s_and_b32 {s(sT0)}, {s(sJ)}, 1"); B(f"s_lshl_b32 {s(sT0)}, {s(sT0)}, 1"); B(f"s_xor_b32 {s(sT0)}, {s(sT0)}, {s(sNB)}"); B(f"s_and_b32 {s(sT0)}, {s(sT0)}, 3")
        B(f"s_lshl2_add_u32 {s(sU1)}, {s(sU1)}, {s(sT0)}"); B(f"s_lshl_b32 {s(sU1)}, {s(sU1)}, 12"); B(f"s_add_u32 {s(sU1)}, {s(sU1)}, {WS_ACT+65536}")
        B(f"s_lshl_b32 {s(sU2)}, {s(sTT2)}, 7"); B(f"s_add_u32 {s(sU2)}, {s(sU2)}, {WS_G}")
        return L
    sHFA, sHB, sXT, sXM, sCOL = P_X + 1, P_WS, P_WS + 1, P_QKV, P_QKV + 1
    XS = SCR + 24576
    sFM = sMW; sTT2 = P_X; XF = TM2 + 16; DF = TM2 + 24

    def cmul_ops(dst, x, y, add=None):
        if add is None: o = f"v_pk_mul_f32 {v(dst,2)}, {v(x,2)}, {v(y,2)} op_sel_hi:[0,1]"
        else: o = f"v_pk_fma_f32 {v(dst,2)}, {v(x,2)}, {v(y,2)}, {v(add,2)} op_sel_hi:[0,1,1]"
        return [o, f"v_pk_fma_f32 {v(dst,2)}, {v(x,2)}, {v(y,2)}, {v(dst,2)} op_sel:[1,1,0] op_sel_hi:[1,0,1] neg_lo:[0,1,0]"]
    def cmul(*a_): run(cmul_ops(*a_))

    def spin(name, load, check):
        A(f"s_mov_b32 {s(sCNT)}, {SPIN}")
        A.label(name)
        load()
        A.wait_all(vm=True, lg=False, force=True)
        check()
        A(f"s_sub_u32 {s(sCNT)}, {s(sCNT)}, 1")
        A(f"s_cbranch_scc1 {name}_x")
        A(f"s_cbranch_vccnz {name}")
        A.label(name + "_x")
    def flag_store(soff, mask=1, voff=vZ):
        A(f"s_mov_b64 exec, {mask}")
        A(f"buffer_store_dword {v(vTAG)}, {v(voff)}, {s(R_WS,4)}, {s(soff)} offen sc1")
        A("s_mov_b64 exec, -1")
    def flag_addr(F, dst, tmp, base):
        F(f"s_lshr_b32 {s(tmp)}, {s(sJ)}, 2"); F(f"s_lshl1_add_u32 {s(dst)}, {s(sTT)}, {s(tmp)}"); F(f"s_lshl_b32 {s(dst)}, {s(dst)}, 8")
        F(f"s_and_b32 {s(tmp)}, {s(sJ)}, 3"); F(f"s_add_u32 {s(dst)}, {s(dst)}, {s(tmp)}"); F(f"s_lshl2_add_u32 {s(dst)}, {s(dst)}, {base}")
        if opt.get('ft', 1): F(f"s_load_dword s8, {s(R_WS,2)}, {s(dst)} glc")

    def page_touch(r):
        if opt.get('nopg', 1): return
        A("s_mov_b64 exec, 0")
        for n in range(2):
            A(f"s_cmp_eq_u32 {s(sW)}, {n}")
            A(f"s_cbranch_scc1 L_pg_{r}_{n}")
        if r == 'a':
            A(f"s_cmp_eq_u32 {s(sW)}, 2")
            A("s_cbranch_scc1 L_phase2")
        A.label(f"L_pgret_{r}")
        A("s_mov_b64 exec, -1")
    sP = 8
    def sflag(soff, off=0): A(f"s_atomic_swap {s(sTAG)}, {s(R_WS,2)}, {s(soff)}" + (f" offset:{off}" if off else ""))
    def ssample(n):
        A({4: f"s_load_dwordx4 {s(sP,4)}, {s(R_WS,2)}, {s(sHFA)} glc", 5: f"s_load_dwordx8 {s(sP,8)}, {s(R_WS,2)}, {s(sHFA)} offset:{WS_OF-WS_HF} glc",
           16: f"s_load_dwordx16 {s(sP,16)}, {s(R_WS,2)}, {s(sU0)} glc"}[n])
    def scheck(n):
        A.wait_all(vm=False, lg=True, force=True)
        for q in range(n): A(f"s_xor_b32 {s(sP+q)}, {s(sP+q)}, {s(sTAG)}")
        if n == 5: A(f"s_or_b32 {s(sP)}, {s(sP)}, {s(sP+4)}")
        for q in range(2, n - 1, 2): A(f"s_or_b64 {s(sP,2)}, {s(sP,2)}, {s(sP+q,2)}")
    def sspin(name, n):
        A(f"s_mov_b32 {s(sCNT)}, {SPIN}")
        A.label(name)
        A(f"s_sub_u32 {s(sCNT)}, {s(sCNT)}, 1")
        A(f"s_cbranch_scc1 {name}_x")
        ssample(n); scheck(n)
        A(f"s_cbranch_scc1 {name}")
        A.label(name + "_x")
    def poll_issue(): ssample(4)
    AHEAD = opt.get('ahead', 10)
    GG = TM2
    def load_ops(n):
        o = []
        if n < 32:
            if n % 4 == 0 and n: o.append(f"s_xor_b32 {s(sHB)}, {s(sHB)}, {((n//4) ^ (n//4-1)) << 12}")
            o.append(f"buffer_load_dwordx4 {a(4*n,4)}, {v(vL16)}, {s(R_WS,4)}, {s(sHB)} offen offset:{(n%4)*1024} sc1")
        else:
            k = n - 32
            if k == 0: o.append(f"buffer_load_dword {v(vE)}, {v(AD+7)}, {s(R_WS,4)}, {s(sU2)} offen sc1")
            if k % 4 == 0 and k: o.append(f"s_xor_b32 {s(sU1)}, {s(sU1)}, {0x3000 if k == 8 else 0x1000}")
            o.append(f"buffer_load_dwordx4 {v(TMP+4*k,4)}, {v(vL16)}, {s(R_WS,4)}, {s(sU1)} offen offset:{(k%4)*1024} sc1")
        return o
    def creads(ks):
        jb, m, st = ks >> 3, (ks >> 1) & 3, ks & 1
        ct, cp = m >> 1, m & 1
        b = BUF + 8 * (ks % 4)
        off = jb * 16384 + cp * 8192
        return [f"ds_read_b128 {v(b,4)}, {v(RA+2*ct+st)} offset:{off}", f"ds_read_b128 {v(b+4,4)}, {v(RB+2*ct+st)} offset:{off}"]
    def p2_head(late_flag):
        ltok = []; old = A.vm
        def ld1(): ltok.append(run(load_ops(len(ltok))))
        for k in range(3): ld1()
        n = 0
        for g in p2_late():
            run(g); n += len(g)
            if n >= 10 and len(ltok) < AHEAD - 1: n = 0; ld1()
        while len(ltok) < AHEAD: ld1()
        A.wait(vm=old)
        late_flag("L_noflag2")
        A("s_barrier")
        for q in range(2): tx = A(f"ds_read_b128 {v(XF+4*q,4)}, {v(AD+10+q)}")
        ctok = [run(creads(k)) for k in range(3)]
        A.wait(lg=tx)
        for q in range(2): A(f"v_mfma_f32_32x32x16_bf16 {v(ACC,16)}, {v(XF+4*q,4)}, {v(DF+4*q,4)}, {'0' if q == 0 else v(ACC,16)}")
        while len(ltok) < AHEAD: ld1()
        return ltok, ctok
    KCHK = 32 - AHEAD
    def step2a(ks, more, ltok, ctok, chk=False):
        A.wait(vm=ltok[ks], lg=ctok[ks])
        stamp(100 + ks)
        b = BUF + 8 * (ks % 4)
        A(f"v_mfma_f32_32x32x16_bf16 {v(ACC,16)}, {a(4*ks,4)}, {v(b,4)}, {v(ACC,16)}")
        if more: ltok.append(run(load_ops(ks + AHEAD)))
        A(f"v_mfma_f32_32x32x16_bf16 {v(ACC+16,16)}, {a(4*ks,4)}, {v(b+4,4)}, {'0' if ks == 0 else v(ACC+16,16)}")
        if chk: scheck(5)
        if ks + 3 < 32: ctok.append(run(creads(ks + 3)))
    A.label("L_ssm")
    LT = PR
    L1, KK, L8, L32 = PR + 8, PR + 10, PR + 12, PR + 14
    WG_ = PR + 16
    WS_ = PR + 24
    L2T, L128, KT = TMP + 32, TMP + 2, AD + 2
    def tr4(b_):
        return [f"v_permlane32_swap_b32 {v(b_+2*q+e)}, {v(b_+2*q+4+e)}" for e in range(2) for q in range(2)] + \
               [f"v_permlane16_swap_b32 {v(b_+4*q+e)}, {v(b_+4*q+2+e)}" for e in range(2) for q in range(2)]
    GWS = SCR + 20480
    F = Fill()
    F(f"s_cmp_lt_u32 {s(sW)}, 2", f"s_cselect_b32 {s(P_GW+2)}, 0x400, 0")
    F(f"s_mov_b32 {s(P_GW+3)}, 0x20000")
    GR = TMP + 60
    sHF = sEPS
    flag_addr(F, sHF, sT0, WS_HF)
    F(f"s_lshl_b32 {s(sT0)}, {s(sW)}, 9")
    F(f"v_lshlrev_b32 {v(AD)}, 3, {v(vL)}")
    F(f"v_add_u32 {v(AD)}, {SCR}, {v(AD)}")
    F(f"v_add_u32 {v(AD+1)}, {s(sT0)}, {v(AD)}")
    F(f"s_lshl4_add_u32 {s(sT2)}, {s(sJ)}, {s(sC)}"); F(f"s_lshl_b32 {s(sT2)}, {s(sT2)}, 10")
    F(f"s_add_u32 {s(sT2)}, {s(sT2)}, {WS_AGG}")
    F(f"s_mul_i32 {s(sU3)}, {s(sTT)}, 98304"); F(f"s_lshl_b32 {s(sT0)}, {s(sJ)}, 13"); F(f"s_add_u32 {s(sU3)}, {s(sU3)}, {s(sT0)}")
    F(f"s_add_u32 {s(sU3)}, {s(sU3)}, {WS_ACT}")
    F(f"v_and_b32 {v(t0)}, 15, {v(vL)}"); F(f"v_lshrrev_b32 {v(t1)}, 4, {v(vL)}"); F(f"v_lshrrev_b32 {v(t2)}, 1, {v(t0)}")
    F(f"v_xor_b32 {v(t2)}, {v(t2)}, {v(t1)}"); F(f"v_lshlrev_b32 {v(t2)}, 4, {v(t2)}")
    F(f"v_lshl_add_u32 {v(RX+2)}, {v(t0)}, 7, {v(t2)}"); F(f"v_xor_b32 {v(RX+3)}, 64, {v(RX+2)}")
    F(f"v_add_u32 {v(RX)}, {s(sMX)}, {v(RX+2)}"); F(f"v_add_u32 {v(RX+1)}, {s(sMX)}, {v(RX+3)}")
    F(f"v_lshlrev_b32 {v(t0)}, 4, {v(t0)}"); F(f"v_lshl_add_u32 {v(RT)}, {v(t1)}, 9, {v(t0)}")
    F(f"v_cvt_f32_u32 {v(t6)}, {s(sW)}")
    F(f"v_mul_f32 {v(t6)}, 0x42000000, {v(t6)}")
    F(lambda: A.wait(vm=tokP))
    get_tag(F)
    F(f"v_lshlrev_b32 {v(pLRE)}, 16, {v(pLRE)}")
    F(f"v_lshlrev_b32 {v(pLIM)}, 16, {v(pLIM)}")
    F(f"v_lshlrev_b32 {v(pLDT)}, 16, {v(pLDT)}")
    F(f"v_xor_b32 {v(pLIM)}, 0x80000000, {v(pLIM)}")
    F(f"v_mul_f32 {v(t0)}, 0x3fb8aa3b, {v(pLDT)}")
    F(f"v_exp_f32 {v(t0)}, {v(t0)}")
    F(f"v_mul_f32 {v(t5)}, {v(pLRE)}, {v(pLRE)}")
    F(f"v_cvt_pk_bf16_f32 {v(t0)}, {v(t0)}, {v(t0)}")
    F(f"v_and_b32 {v(t0)}, 0xffff0000, {v(t0)}")
    EXA, EXB = TMP, TMP + 1
    F(f"v_mul_f32 {v(EXA)}, {v(t0)}, {v(pLRE)}")
    F(f"v_mul_f32 {v(EXB)}, {v(t0)}, {v(pLIM)}")
    F(f"v_mul_f32 {v(EXA)}, 0x3fb8aa3b, {v(EXA)}")
    F(f"v_mul_f32 {v(EXB)}, 0.15915494, {v(EXB)}")
    def cexp(d, ea, eb):
        F(f"v_exp_f32 {v(t1)}, {v(ea)}")
        F(f"v_rndne_f32 {v(t3)}, {v(eb)}")
        F(f"v_sub_f32 {v(t2)}, {v(eb)}, {v(t3)}")
        F(f"v_cos_f32 {v(t3)}, {v(t2)}")
        F(f"v_sin_f32 {v(t4)}, {v(t2)}")
        F(f"v_mul_f32 {v(d)}, {v(t1)}, {v(t3)}")
        F(f"v_mul_f32 {v(d+1)}, {v(t1)}, {v(t4)}")
    cexp(L1, EXA, EXB)
    F(f"v_fmac_f32 {v(t5)}, {v(pLIM)}, {v(pLIM)}")
    F(f"v_rcp_f32 {v(t0)}, {v(t5)}")
    F(f"v_add_f32 {v(t1)}, -1.0, {v(L1)}")
    F(f"v_add_f32 {v(t0)}, {v(t0)}, {v(t0)}")
    F(f"v_mul_f32 {v(t2)}, {v(t1)}, {v(pLRE)}")
    F(f"v_fmac_f32 {v(t2)}, {v(L1+1)}, {v(pLIM)}")
    F(f"v_mul_f32 {v(t3)}, {v(L1+1)}, {v(pLRE)}")
    F(f"v_fma_f32 {v(t3)}, -{v(t1)}, {v(pLIM)}, {v(t3)}")
    F(f"v_mul_f32 {v(KK)}, {v(t2)}, {v(t0)}")
    F(f"v_mul_f32 {v(KK+1)}, {v(t3)}, {v(t0)}")
    cmul4(F, L2T, L1, L1); cmul4(F, t2, L2T, L2T); cmul4(F, L8, t2, t2); cmul4(F, t0, L8, L8)
    cmul4(F, L32, t0, t0); cmul4(F, t0, L32, L32); cmul4(F, L128, t0, t0)
    F(f"v_mul_f32 {v(EXA)}, {v(EXA)}, {v(t6)}"); F(f"v_mul_f32 {v(EXB)}, {v(EXB)}, {v(t6)}")
    cexp(WS_, EXA, EXB)
    for q in range(1, 4): cmul4(F, WS_ + 2 * q, WS_ + 2 * q - 2, L8)
    F(f"v_mul_f32 {v(EXA)}, 0x41800000, {v(EXA)}"); F(f"v_mul_f32 {v(EXB)}, 0x41800000, {v(EXB)}")
    cexp(t6, EXA, EXB)
    cmul4(F, WG_, t6, KK)
    for q in range(1, 4): cmul4(F, WG_ + 2 * q, WG_ + 2 * q - 2, L128)
    F(f"v_mov_b32 {v(GR+1)}, {v(vTAG)}"); F(f"v_mov_b32 {v(GR+3)}, {v(vTAG)}")
    TL = []
    for (src, dst) in ((L2T, L2T), (L1, LT), (KK, KT)):
        TL += [f"v_mov_b64 {v(dst+2*q,2)}, {v(src,2)}" for q in range(4) if dst + 2 * q != src]
    TL += tr4(L2T) + tr4(LT) + tr4(KT)
    so = [sT0, sT1, sT3, sU0]; ex = [sU1, sU2, sL2E, sL2E + 1]
    for q in range(4):
        F(f"s_lshl2_add_u32 {s(so[q])}, {s(sW)}, {q+1}")
        F(f"s_lshl_b32 {s(ex[q])}, {s(so[q])}, 10")
        F(f"s_sub_u32 {s(ex[q])}, {s(sT2)}, {s(ex[q])}")
        F(f"s_cmp_le_u32 {s(so[q])}, {s(sC)}", f"s_cselect_b32 {s(so[q])}, {s(ex[q])}, {WS_SIZE}", f"s_cselect_b32 {s(ex[q])}, {s(sTAG)}, 0")
    F.it = opt.get('tlit', 0)
    for o in TL: F(o)
    weight_touch(F, True)
    p2_early(F)
    utok, lo = main_loop('ssm', [wo_ops(0, 0), c_ops(1)], F)
    stamp(2)
    tok_wo = utok[8]
    SA = [TMP, TMP + 16]
    for m in range(1, 4):
        for ct in range(4):
            are, aim = ACC + 16 * ct + 2 * m, ACC + 16 * ct + 8 + 2 * m
            if m == 1: sre, sim = ACC + 16 * ct, ACC + 16 * ct + 8
            else: sre, sim = SA[m % 2] + 4 * ct, SA[m % 2] + 4 * ct + 2
            dre, dim = SA[(m + 1) % 2] + 4 * ct, SA[(m + 1) % 2] + 4 * ct + 2
            l2 = v(L2T + 2 * ct, 2)
            A(f"v_pk_fma_f32 {v(dre,2)}, {v(sre,2)}, {l2}, {v(are,2)} op_sel_hi:[1,0,1]")
            A(f"v_pk_fma_f32 {v(dim,2)}, {v(sim,2)}, {l2}, {v(aim,2)} op_sel_hi:[1,0,1]")
            A(f"v_pk_fma_f32 {v(dre,2)}, {v(sim,2)}, {l2}, {v(dre,2)} op_sel:[0,1,0]")
            A(f"v_pk_fma_f32 {v(dim,2)}, {v(sre,2)}, {l2}, {v(dim,2)} op_sel:[0,1,0] neg_lo:[0,1,0] neg_hi:[0,1,0]")
    EA = TMP + 16
    for e in range(2):
        for ct in range(4):
            b, d, l = SA[0] + 4 * ct, EA + 2 * ct, LT + 2 * ct
            if e == 0:
                A(f"v_fma_f32 {v(d)}, {v(l)}, {v(b)}, {v(b+1)}"); A(f"v_fma_f32 {v(d)}, {v(l+1)}, {v(b+2)}, {v(d)}")
            else:
                A(f"v_fma_f32 {v(d+1)}, {v(l+1)}, {v(b)}, -{v(b+3)}"); A(f"v_fma_f32 {v(d+1)}, -{v(l)}, {v(b+2)}, {v(d+1)}")
    run(tr4(EA))
    EB = t4
    cmul(t0, EA, L8, EA + 2); cmul(t2, t0, L8, EA + 4); cmul(EB, t2, L8, EA + 6)
    A(f"ds_write_b64 {v(AD+1)}, {v(EB,2)}")
    WL = opt.get('wl', 1)
    A.wait(vm=None if WL else tok_wo, lg=A.lg)
    A("s_barrier")
    EW = BUF
    tk = [A(f"ds_read_b64 {v(EW+2*q,2)}, {v(AD)} offset:{q*512}") for q in range(4)]
    PF = BUF + 8
    A(f"s_cmp_eq_u32 {s(sW)}, 0")
    A.wait(lg=tk[1]); cmul(PF, EW, L32, EW + 2)
    A.wait(lg=tk[2]); cmul(PF + 2, PF, L32, EW + 4)
    A.wait(lg=tk[3]); cmul(PF + 4, PF + 2, L32, EW + 6)
    A("s_cbranch_scc0 L_nopub")
    A(f"v_mov_b32 {v(GR)}, {v(PF+4)}"); A(f"v_mov_b32 {v(GR+2)}, {v(PF+5)}")
    snap = A.snapshot()
    A(f"buffer_store_dwordx4 {v(GR,4)}, {v(vL16)}, {s(R_WS,4)}, {s(sT2)} offen sc1")
    A.restore(snap)
    A.label("L_nopub")
    stamp(3)
    EP = opt.get('ep', 1)
    lod = []
    if opt.get('lod', 0) and lo:
        nd = 8 - sum(o.startswith('buffer') for o in lo)
        for o in c_ops(1):
            if o.startswith('buffer') and nd: nd -= 1
            else: lod.append(o)
        lo = []
    st_ = Stream(lo + wo_ops(1, 65536) + ([] if EP else c_ops(3)))
    tok_wo1 = A.vm + 8 + sum(o.startswith('buffer') for o in lo)
    st_.dma(2)
    KP = BUF + 14
    ops = [f"v_mov_b32 {v(t0)}, 0", f"v_mov_b32 {v(t1)}, 0"]
    for q, src in ((1, EW), (2, PF), (3, PF + 2)):
        ops += [f"s_cmp_eq_u32 {s(sW)}, {q}", "s_cselect_b64 exec, -1, 0", f"v_mov_b64 {v(t0,2)}, {v(src,2)}"]
    ops += ["s_mov_b64 exec, -1"]
    run(ops)
    cmul(KP, t0, KK)
    for q in range(3):
        cmul(EA + 2 * q, t0 if q == 0 else EA + 2 * q - 2, L8, EA + 2 * q); cmul(KP + 2 * q + 2, EA + 2 * q, KK)
    IF = BUF + 24
    A(f"v_mov_b32 {v(t4)}, 0x3f80"); A(f"v_mov_b32 {v(t5)}, 0"); A(f"v_and_b32 {v(t6)}, 48, {v(vL16)}")
    for q in range(4): A(f"v_mov_b64 {v(IF+2*q,2)}, 0")
    A(f"v_lshlrev_b64 {v(t4,2)}, {v(t6)}, {v(t4,2)}")
    for q in range(4):
        m = 0x0f00000f << (4 * (q & 1))
        sel_exec(0 if q >> 1 else m, m if q >> 1 else 0)
        A(f"v_mov_b64 {v(IF+2*q,2)}, {v(t4,2)}")
    A("s_mov_b64 exec, -1")
    U = TMP
    def upair(ct, k): return U + 16 * ct + 2 * k
    ops = []
    for ct in range(4):
        for k in range(8):
            re, im = ACC + 16 * ct + (k & ~1), ACC + 16 * ct + 8 + (k & ~1)
            b = k & 1
            ops.append(f"v_pk_mul_f32 {v(upair(ct,k),2)}, {v(re,2)}, {v(KT+2*ct,2)} op_sel:[{b},0] op_sel_hi:[{b},1]")
            ops.append(f"v_pk_fma_f32 {v(upair(ct,k),2)}, {v(im,2)}, {v(KT+2*ct,2)}, {v(upair(ct,k),2)} op_sel:[{b},1,0] op_sel_hi:[{b},0,1] neg_hi:[0,1,0]")
    def rw_hi(): A(f"v_add_u32 {v(RW)}, 0x10000, {v(RW)}"); A(f"v_add_u32 {v(RW+1)}, 0x10000, {v(RW+1)}")
    if EP: sprinkle(ops, st_, 7 if lo else 10)
    else: sprinkle(wo_reads(0, RW, 0) + ops, st_, 7); rw_hi()
    st_.rest()
    A(f"s_lshr_b32 {s(sD0)}, {s(sMX)}, 2"); A(f"s_add_u32 m0, {s(sD0)}, {GWS}")
    if PAIR: A(f"s_lshl_b32 {s(sD0)}, {s(sK0)}, 7"); A(f"v_xor_b32 {v(t4)}, {s(sD0)}, {v(vL16)}")
    A(f"buffer_load_dwordx4 {v(t4 if PAIR else vL16)}, {s(P_GW,4)}, 0 offen lds")
    LB = ACC
    stamp(23)
    def ld():
        for q in range(4): A(f"buffer_load_dwordx4 {v(LB+4*q,4)}, {v(vL16)}, {s(R_WS,4)}, {s(so[q])} offen sc1")
    def ck():
        A(f"v_xor_b32 {v(t0)}, {s(ex[0])}, {v(LB+1)}")
        for r in (3, 5, 7, 9, 11, 13, 15):
            A(f"v_bitop3_b32 {v(t0)}, {v(t0)}, {v(LB+r)}, {s(ex[r//4])} bitop3:0xf6")
        A(f"v_cmp_ne_u32 vcc, 0, {v(t0)}")
    ld()
    tok_p = A.vm
    if EP:
        if WL:
            A.wait(vm=tok_wo)
            A("s_barrier")
        run(wo_reads(0, RW, 0)); rw_hi()
    else:
        A.wait(vm=tok_wo1, lg=A.lg)
        A("s_barrier")
        run(wo_reads(1, RW, 0))
    A.wait(vm=tok_p)
    ck()
    A("s_nop 0")
    DY = opt.get('dyn', 1) and EP
    if DY: A(f"s_mov_b32 {s(sWST)}, 0")
    A("s_cbranch_vccz L_pagg_x")
    snap = A.snapshot()
    if DY:
        run(c_ops(3)); A(f"s_mov_b32 {s(sWST)}, 1")
    spin("L_pagg", ld, ck)
    A.restore(snap)
    stamp(4)
    for q in range(4):
        if q == 0: A(f"v_pk_mul_f32 {v(t0,2)}, {v(LB,2)}, {v(WG_,2)} op_sel_hi:[0,1]")
        else: A(f"v_pk_fma_f32 {v(t0,2)}, {v(LB+4*q,2)}, {v(WG_+2*q,2)}, {v(t0,2)} op_sel_hi:[0,1,1]")
        A(f"v_pk_fma_f32 {v(t0,2)}, {v(LB+4*q+2,2)}, {v(WG_+2*q,2)}, {v(t0,2)} op_sel:[0,1,0] op_sel_hi:[0,0,1] neg_lo:[0,1,0]")
    A(f"ds_write_b64 {v(AD+1)}, {v(t0,2)} offset:2048")
    A.wait_all(vm=False)
    A("s_barrier")
    stamp(24)
    for q in range(4): tok = A(f"ds_read_b64 {v(EW+2*q,2)}, {v(AD)} offset:{2048+q*512}")
    mid = Stream(c_ops(0))
    if opt.get('md', 0) == 2: mid.dma(4)
    A.wait(lg=tok)
    A(f"v_pk_add_f32 {v(EW,2)}, {v(EW,2)}, {v(EW+2,2)}")
    A(f"v_pk_add_f32 {v(EW+4,2)}, {v(EW+4,2)}, {v(EW+6,2)}")
    A(f"v_pk_add_f32 {v(EW,2)}, {v(EW,2)}, {v(EW+4,2)}")
    for q in range(4): cmul(KP + 2 * q, EW, WS_ + 2 * q, KP + 2 * q)
    run(tr4(KP))
    HP = ACC
    TD = [ACC + 32, TMP]
    def cvt1(p_): return [f"v_cvt_pk_bf16_f32 {v(HP+16*p_+8*cp+4*tp+k)}, {v(upair(2*p_+tp,2*k)+cp)}, {v(upair(2*p_+tp,2*k+1)+cp)}" for cp in range(2) for tp in range(2) for k in range(4)]
    def cvt2(f): return [f"v_cvt_pk_bf16_f32 {v(HP+4*f+k)}, {v(TD[f//4]+8*(f%4)+2*k)}, {v(TD[f//4]+8*(f%4)+2*k+1)}" for k in range(4)]
    def tm(p_, cp, tp, r): A(f"v_mfma_f32_16x16x32_bf16 {v(TD[p_]+16*cp+8*r+4*tp,4)}, {v(HP+16*p_+8*cp+4*tp,4)}, {v(IF+4*r,4)}, 0")
    hs = []
    def h_store(f):
        hs.append(h_store_(f)); return hs[-1]
    def h_store_(f):
        PC = opt.get('pace', 0)
        if PC and f >= max(PC, 4): A.wait(vm=hs[f - PC])
        if f == 4: A(f"s_add_u32 {s(sU3)}, {s(sU3)}, 4096")
        return A(f"buffer_store_dwordx4 {v(HP+4*f,4)}, {v(RT)}, {s(R_WS,4)}, {s(sU3)} offen offset:{(f&2)*1024+(f&1)*256} sc1")
    for ct in range(2):
        for tp in range(2):
            c4 = 2 * ct + tp
            for k in range(8): cmul(upair(c4, k), KP + 2 * c4 if k == 0 else upair(c4, k - 1), LT + 2 * c4, upair(c4, k))
        cs_ = cvt1(ct)
        run(cs_[:6]); cs_ = cs_[6:]
        f0 = 4 * ct
        for cp in range(2):
            for tp in range(2):
                for r in range(2):
                    tm(ct, cp, tp, r); run(cs_[:2]); cs_ = cs_[2:]
                    if ct == 0 and cp == 1 and opt.get('md', 0) == 1: mid.dma()
        if ct == 0: stamp(25)
        for f in range(f0, f0 + 4):
            run(cvt2(f)); tok_h = h_store(f)
    stamp(5)
    A(f"s_mov_b32 {s(sFM)}, 0")
    A(f"s_cmp_eq_u32 {s(sJ)}, 0")
    A("s_cbranch_scc0 L_nogate")
    GD = ACC + 32
    snapg = A.snapshot()
    if PAIR: A(f"s_mov_b32 {s(sT0)}, {GWS}")
    else: A(f"s_lshl_b32 {s(sT0)}, {s(sK0)}, 7"); A(f"s_add_u32 {s(sT0)}, {s(sT0)}, {GWS}")
    A(f"v_and_b32 {v(t0)}, 48, {v(vL)}")
    A(f"v_add_u32 {v(AD+8)}, {s(sT0)}, {v(t0)}")
    toks = []
    for st in range(8): toks.append(A(f"ds_read_b128 {v(BUF+4*st,4)}, {v(AD+8)} offset:{st*64}"))
    for st in range(16):
        A.wait(lg=toks[st])
        for r in range(2): A(f"v_mfma_f32_16x16x32_bf16 {v(GD+8+4*r,4)}, {v(BUF+4*(st%8),4)}, {a(8*st+4*r,4)}, {'0' if st == 0 else v(GD+8+4*r,4)}")
        if st + 8 < 16: toks.append(A(f"ds_read_b128 {v(BUF+4*(st%8),4)}, {v(AD+8)} offset:{(st+8)*64}"))
    A(f"v_bfe_u32 {v(t0)}, {v(vL)}, 4, 1"); A(f"v_bfe_u32 {v(t1)}, {v(vL)}, 2, 2"); A(f"v_and_b32 {v(t2)}, 12, {v(vL4)}")
    A(f"v_lshl_add_u32 {v(t2)}, {v(t1)}, 5, {v(t2)}")
    A(f"v_lshl_add_u32 {v(t2)}, {v(t0)}, 4, {v(t2)}")
    A(f"s_lshl_b32 {s(sT0)}, {s(sTT)}, 7"); A(f"s_add_u32 {s(sT0)}, {s(sT0)}, {WS_G}")
    A(f"s_lshl_b32 {s(sT2)}, {s(sTT)}, 11"); A(f"s_add_u32 {s(sT2)}, {s(sT2)}, {WS_OF+16}")
    A(f"s_mov_b32 {s(sFM)}, 3")
    sel_exec(0xffff0000, 0xffff0000)
    A(f"v_mov_b32 {v(GD+8)}, {v(GD+12)}")
    A("s_mov_b64 exec, -1")
    A(f"v_mul_f32 {v(t0)}, 0xbfb8aa3b, {v(GD+8)}")
    A(f"v_exp_f32 {v(t0)}, {v(t0)}")
    A(f"v_add_f32 {v(t0)}, 1.0, {v(t0)}")
    A(f"v_rcp_f32 {v(t0)}, {v(t0)}")
    A("s_nop 0")
    A(f"buffer_store_dword {v(t0)}, {v(t2)}, {s(R_WS,4)}, {s(sT0)} offen sc1")
    A("s_branch L_gated")
    A.restore(snapg)
    A.label("L_nogate")
    A(f"buffer_load_dword {v(vF)}, {v(vZ)}, {s(R_X,4)}, {s(sXT)} offen")
    A.label("L_gated")
    rest = Stream(mid.ops + (([] if DY else c_ops(3)) if EP else c_ops(2)))
    if EP: run(wo_reads(1, RW, 0))
    p2_setup()
    if EP:
        A.wait_all(vm=False)
        A("s_barrier")
        rest.ops += lod + c_ops(2)
    rest.dma(opt.get('sdrain', 8))
    A.wait(vm=tok_h)
    if opt.get('vflag', 0): flag_store(sHF)
    else: sflag(sHF)
    stamp(6)
    rest.rest()
    if DY:
        A(f"s_cmp_eq_u32 {s(sWST)}, 1")
        A("s_cbranch_scc1 L_c3done")
        run(c_ops(3)); A.vm -= 8
        A.label("L_c3done")
    stamp(26)
    poll_issue()
    A("s_branch L_phase2")

    A.restore(snap0)
    if opt.get('apad', 0): A.raw(f".p2align 3\n.fill {opt['apad']//4}, 4, 0xbf800000")
    A.label("L_attn")
    epoch_load()
    F = Fill()

    NL = AD + 10
    ONES = TMP + 48
    LA = TMP + 56
    sOA, sOF, sKB, sZB = P_GW, P_GW + 1, P_OUT, P_OUT + 1
    flag_addr(F, sOF, sU3, WS_OF)
    F(f"s_lshl2_add_u32 {s(sT2)}, {s(sJ)}, {s(sW)}")
    F(f"s_lshl4_add_u32 {s(sT3)}, {s(sT2)}, {s(sC)}")
    F(f"s_lshl_b32 {s(sU1)}, {s(sT3)}, 9"); F(f"s_add_u32 {s(sU1)}, {s(sU1)}, {WS_KVP}")
    F(f"v_lshlrev_b32 {v(AD+9)}, 3, {v(vL)}")
    SUMS = TMP + 48
    F(f"v_mov_b32 {v(t4)}, 0x3f80"); F(f"v_mov_b32 {v(t5)}, 0"); F(f"v_and_b32 {v(t6)}, 48, {v(vL16)}")
    F(f"v_mov_b64 {v(SUMS,2)}, 0"); F(f"v_mov_b64 {v(SUMS+2,2)}, 0")
    F(f"v_lshlrev_b64 {v(t4,2)}, {v(t6)}, {v(t4,2)}")
    for q in range(2):
        m = 0x00f0000f << (8 * q)
        F(f"s_mov_b32 exec_lo, {m:#x}", f"s_mov_b32 exec_hi, {m:#x}", f"v_mov_b64 {v(SUMS+2*q,2)}, {v(t4,2)}", "s_mov_b64 exec, -1")
    F(f"s_lshl_b32 {s(sU2)}, {s(sT3)}, 6"); F(f"s_add_u32 {s(sU2)}, {s(sU2)}, {WS_ZP}")
    F(f"v_mov_b64 {v(TMP,2)}, -1")
    F(f"s_mov_b32 {s(sL2E)}, 0x3fb8aa3b"); F(f"s_mov_b32 {s(sL2E+1)}, 0x3fb8aa3b")
    F(f"s_mov_b32 {s(sEPS)}, 0x358637bd"); F(f"s_mov_b32 {s(sEPS+1)}, 0x358637bd")
    F(f"v_mov_b32 {v(NL)}, 0xbfb8aa3b"); F(f"v_mov_b32 {v(NL+1)}, 0xbfb8aa3b")
    F(f"v_and_b32 {v(t0)}, 15, {v(vL)}"); F(f"v_lshrrev_b32 {v(t1)}, 4, {v(vL)}"); F(f"v_lshrrev_b32 {v(t2)}, 1, {v(t0)}")
    F(f"v_xor_b32 {v(t2)}, {v(t2)}, {v(t1)}"); F(f"v_lshlrev_b32 {v(t2)}, 4, {v(t2)}"); F(f"v_lshl_add_u32 {v(t2)}, {v(t0)}, 7, {v(t2)}")
    F(f"s_and_b32 {s(sT0)}, {s(sMX)}, 8192"); F(f"v_add_u32 {v(RA16[0])}, {s(sT0)}, {v(t2)}"); F(f"v_xor_b32 {v(RA16[1])}, 64, {v(RA16[0])}")
    F(f"v_and_b32 {v(t2)}, 0x1ff, {v(RW)}"); F(f"v_lshl_add_u32 {v(RB16[0])}, {v(t1)}, 10, {v(t2)}"); F(f"v_xor_b32 {v(RB16[1])}, 32, {v(RB16[0])}")
    SEL = TMP + 32
    F(f"v_bfe_u32 {v(t0)}, {v(vL)}, 2, 2")
    F(f"s_lshl_b32 {s(sT0)}, {s(sKH)}, 1"); F(f"v_xor_b32 {v(t0)}, {s(sT0)}, {v(t0)}")
    F(f"v_mov_b32 {v(t1)}, 0x3f803f80")
    for hd in range(2):
        F(f"v_cmp_eq_u32 vcc, {hd}, {v(t0)}", f"v_cndmask_b32 {v(SEL+4*hd)}, 0, {v(t1)}, vcc")
        F(f"v_mov_b32 {v(SEL+4*hd+1)}, {v(SEL+4*hd)}")
        F(f"v_mov_b64 {v(SEL+4*hd+2,2)}, {v(SEL+4*hd,2)}")
    F(f"s_lshl_b32 {s(sU0)}, {s(sT2)}, 10"); F(f"s_add_u32 {s(sU0)}, {s(sU0)}, {WS_KVF}")
    F(f"s_lshl2_add_u32 {s(sT3)}, {s(sC)}, {s(sU0)}")
    F(f"s_load_dword s8, {s(R_WS,2)}, {s(sT3)} glc")
    F(f"s_lshr_b32 {s(sT0)}, {s(sW)}, 1"); F(f"s_lshl3_add_u32 {s(sT0)}, {s(sKH)}, {s(sT0)}"); F(f"s_lshl_b32 {s(sT0)}, {s(sT0)}, 10"); F(f"s_add_u32 {s(sT0)}, {s(sT0)}, {SCR}")
    F(f"v_add_u32 {v(AD)}, {s(sT0)}, {v(vL16)}")
    F(f"s_add_u32 {s(sT0)}, {s(sMX)}, {SCR}")
    F(f"v_add_u32 {v(AD+1)}, {s(sT0)}, {v(vL16)}")
    F(f"s_lshl_b32 {s(sT0)}, {s(sW)}, 8"); F(f"s_add_u32 {s(sT0)}, {s(sT0)}, {SCR+16384}")
    F(f"v_add_u32 {v(AD+2)}, {s(sT0)}, {v(vL4)}")
    F(f"s_lshl_b32 {s(sT0)}, {s(sW)}, 6"); F(f"s_add_u32 {s(sT0)}, {s(sT0)}, {SCR+16384}")
    F(f"v_and_b32 {v(AD+4)}, 60, {v(vL4)}")
    F(f"v_add_u32 {v(AD+3)}, {s(sT0)}, {v(AD+4)}")
    F(f"v_add_u32 {v(AD+6)}, {SCR}, {v(RW)}"); F(f"v_add_u32 {v(AD+7)}, {SCR}, {v(RW+1)}")
    F(f"v_add_u32 {v(AD+4)}, 0x18000, {v(RW)}"); F(f"v_add_u32 {v(AD+5)}, 0x18000, {v(RW+1)}")
    KVS, ZS = SCR + 20480, SCR + 22528
    F(f"s_lshr_b32 {s(sT0)}, {s(sW)}, 1"); F(f"s_lshl_b32 {s(sT0)}, {s(sT0)}, 10")
    F(f"s_lshl_b32 {s(sT1)}, {s(sKH)}, 8"); F(f"s_add_u32 {s(sT1)}, {s(sT1)}, {s(sT0)}"); F(f"s_add_u32 {s(sT1)}, {s(sT1)}, {KVS}")
    F(f"v_and_b32 {v(t4)}, 7, {v(vL)}"); F(f"v_lshrrev_b32 {v(t5)}, 5, {v(vL)}"); F(f"v_lshl_add_u32 {v(t4)}, {v(t4)}, 1, {v(t5)}")
    F(f"v_lshlrev_b32 {v(t4)}, 4, {v(t4)}"); F(f"v_bfe_u32 {v(t5)}, {v(vL)}, 3, 1"); F(f"v_bfe_u32 {v(t6)}, {v(vL)}, 4, 1")
    F(f"v_lshl_add_u32 {v(t4)}, {v(t5)}, 9, {v(t4)}"); F(f"v_lshl_add_u32 {v(t4)}, {v(t6)}, 3, {v(t4)}")
    F(f"v_add_u32 {v(LA)}, {s(sT1)}, {v(t4)}")
    F(f"s_lshl_b32 {s(sT1)}, {s(sKH)}, 5"); F(f"s_add_u32 {s(sT1)}, {s(sT1)}, {s(sT0)}"); F(f"s_add_u32 {s(sT1)}, {s(sT1)}, {ZS}")
    F(f"v_bfe_u32 {v(t4)}, {v(vL)}, 2, 1"); F(f"v_bfe_u32 {v(t5)}, {v(vL)}, 3, 1"); F(f"v_and_b32 {v(t6)}, 3, {v(vL)}")
    F(f"v_lshl_add_u32 {v(t6)}, {v(t6)}, 1, {s(sT1)}")
    F(f"v_lshl_add_u32 {v(t6)}, {v(t5)}, 3, {v(t6)}")
    F(f"v_lshl_add_u32 {v(LA+1)}, {v(t4)}, 4, {v(t6)}")
    F(f"v_add_u32 {v(LA+2)}, {KVS}, {v(vL16)}")
    F(f"v_mov_b32 {v(LA+3)}, {v(LA+2)}")
    F(f"v_lshrrev_b32 {v(t5)}, 5, {v(vL)}")
    F(f"v_lshlrev_b32 {v(t5)}, 4, {v(t5)}")
    F(lambda: sel_exec(0xffff0000, 0xffff0000), f"v_add_u32 {v(LA+2)}, {ZS}, {v(t5)}", "s_mov_b64 exec, -1")
    F(lambda: sel_exec(0x0000ffff, 0x0000ffff), f"v_add_u32 {v(LA+3)}, {ZS+32}, {v(t5)}", "s_mov_b64 exec, -1")
    F(f"v_bfe_u32 {v(t5)}, {v(vL)}, 3, 2"); F(f"v_and_b32 {v(t6)}, 35, {v(vL)}")
    F(f"v_lshl_add_u32 {v(t6)}, {v(t5)}, 2, {v(t6)}")
    F(f"v_lshl_add_u32 {v(t6)}, {v(t4)}, 4, {v(t6)}")
    F(f"v_lshlrev_b32 {v(LA+4)}, 4, {v(t6)}")
    F(f"s_mul_i32 {s(sOA)}, {s(sTT)}, 98304"); F(f"s_lshl_b32 {s(sT1)}, {s(sJ)}, 12"); F(f"s_add_u32 {s(sOA)}, {s(sOA)}, {s(sT1)}")
    F(f"s_add_u32 {s(sOA)}, {s(sOA)}, {WS_ACT+65536}")
    F(f"s_and_b32 {s(sKB)}, {s(sC)}, 1"); F(f"s_lshl1_add_u32 {s(sKB)}, {s(sT2)}, {s(sKB)}")
    F(f"s_lshl_b32 {s(sKB)}, {s(sKB)}, 12"); F(f"s_add_u32 {s(sKB)}, {s(sKB)}, {WS_KVP}")
    F(f"s_lshl_b32 {s(sZB)}, {s(sT2)}, 10"); F(f"s_add_u32 {s(sZB)}, {s(sZB)}, {WS_ZP}")
    F.it = opt.get('clrit', 1)
    tok_clr = []
    F(f"buffer_store_dwordx2 {v(TMP,2)}, {v(AD+9)}, {s(R_WS,4)}, {s(sU1)} offen sc1")
    F("s_mov_b64 exec, 0xffff", lambda: tok_clr.append(A(f"buffer_store_dword {v(TMP)}, {v(vL4)}, {s(R_WS,4)}, {s(sU2)} offen sc1")), "s_mov_b64 exec, -1")
    F.it = 2
    get_tag(F)
    weight_touch(F, False)
    p2_early(F)
    utok, lo = main_loop('attn', [wq_ops(0), wq_ops(1)], F)
    stamp(2)
    tok_wq = utok[9]
    A("s_barrier")
    def phi_ops(src, dst):
        L = []
        def fin(sr, pp, d):
            L.append(f"v_max_f32 {v(pp)}, {v(pp)}, {v(sr)}")
            L.append(f"v_max_f32 {v(pp+1)}, {v(pp+1)}, {v(sr+1)}")
            L.append(f"v_pk_add_f32 {v(pp,2)}, {v(pp,2)}, {s(sEPS,2)}")
            L.append(f"v_cvt_pk_bf16_f32 {v(d)}, {v(pp)}, {v(pp+1)}")
        for k in range(0, 16, 2):
            tt = t0 + 2 * ((k // 2) % 4)
            L.append(f"v_pk_fma_f32 {v(tt,2)}, {v(src+k,2)}, {s(sL2E,2)}, {v(NL,2)}")
            L.append(f"v_exp_f32 {v(tt)}, {v(tt)} clamp")
            L.append(f"v_exp_f32 {v(tt+1)}, {v(tt+1)} clamp")
            if k >= 2: fin(src + k - 2, t0 + 2 * ((k // 2 - 1) % 4), dst + k // 2 - 1)
        fin(src + 14, t0 + 2 * (7 % 4), dst + 7)
        return L
    PK, PV = TMP, TMP + 16
    ZD = TM2; KD = TM2 + 4
    st_ = Stream(wo_ops(0, 98304) + c_ops(2))
    def swaps(b): return [f"v_permlane16_swap_b32 {v(b+r)}, {v(b+4+r)}" for r in range(4)]
    e1 = phi_ops(ACC, PK) + [f"v_cvt_pk_bf16_f32 {v(PV+k)}, {v(ACC+32+2*k)}, {v(ACC+32+2*k+1)}" for k in range(16)]
    e1 += phi_ops(ACC + 16, PK + 8)
    E0 = opt.get('e1skip', 12)
    A.wait(vm=tok_clr[0])
    sflag(sT3)
    sprinkle(e1[:E0], los := Stream(lo), 7)
    los.rest()
    tokF = [A.vm]
    vm0 = A.vm
    sprinkle(e1[E0:], st_, opt.get('e1every', 9))
    tok_wo0 = vm0 + 8
    stamp(40)
    def kvm(n): A(f"v_mfma_f32_16x16x32_bf16 {v(KD+4*(n>>1),4)}, {v(PK+4*n,4)}, {v(PV+4*n,4)}, {v(KD+4*(n>>1),4) if n & 1 else '0'}")
    def zm(n): A(f"v_mfma_f32_16x16x32_bf16 {v(ZD,4)}, {v(SEL+4*(n>>1),4)}, {v(PK+4*n,4)}, {'0' if n == 0 else v(ZD,4)}")
    for n in range(4): kvm(n)
    for n in range(4): zm(n)
    stamp(41)
    for hd in range(2):
        A(f"ds_write_b128 {v(AD)}, {v(KD+4*hd,4)} offset:{hd*4096}")
    A(f"ds_write_b32 {v(AD+2)}, {v(ZD)}")
    st_.dma(opt.get('e1d', 2))
    stamp(42)
    A.wait(vm=tokF[0])
    stamp(43)
    A.wait_all(vm=False)
    A("s_barrier")
    stamp(44)
    for q in range(2): tk = A(f"ds_read_b128 {v(ACC+4*q,4)}, {v(AD+1)} offset:{q*1024}")
    for q in range(4): tz = A(f"ds_read_b32 {v(ACC+16+q)}, {v(AD+3)} offset:{q*256}")
    QA = TM2
    def qreads(ks):
        b = BUF + 8 * (ks % 4)
        L = []
        for tl in range(2):
            base = (ks // 4) * 8192 + (ks % 4) * 2048
            L.append(f"ds_read_b64_tr_b16 {v(b+4*tl,2)}, {v(RT+tl)} offset:{base}")
            L.append(f"ds_read_b64_tr_b16 {v(b+4*tl+2,2)}, {v(RT+tl)} offset:{base+512}")
        return L
    toks = [run(qreads(0))]
    st_.dma(1)
    A.wait(lg=tk)
    for e in (0, 2):
        A(f"v_pk_add_f32 {v(ACC+e,2)}, {v(ACC+e,2)}, {v(ACC+4+e,2)}")
    for e in range(2): A(f"v_cvt_pk_bf16_f32 {v(ACC+e)}, {v(ACC+2*e)}, {v(ACC+2*e+1)}")
    for e in range(2): A(f"v_min_u32 {v(ACC+e)}, -2, {v(ACC+e)}")
    A(f"buffer_store_dwordx2 {v(ACC,2)}, {v(AD+9)}, {s(R_WS,4)}, {s(sU1)} offen sc1")
    A.wait(lg=tz)
    A(f"v_pk_add_f32 {v(ACC+16,2)}, {v(ACC+16,2)}, {v(ACC+18,2)}")
    A(f"v_add_f32 {v(ACC+16)}, {v(ACC+16)}, {v(ACC+17)}")
    A(f"v_min_u32 {v(ACC+16)}, -2, {v(ACC+16)}")
    A("s_mov_b64 exec, 0xffff")
    A(f"buffer_store_dword {v(ACC+16)}, {v(vL4)}, {s(R_WS,4)}, {s(sU2)} offen sc1")
    A("s_mov_b64 exec, -1")
    stamp(3)
    st_.rest()
    tok_e1 = st_.last
    toks.append(run(qreads(1)))
    ZL = TMP + 52
    def kv_loads():
        L = [f"buffer_load_dword {v(ZL+q)}, {v(vL4)}, {s(R_WS,4)}, {s(sZB)} offen offset:{q*256} sc1" for q in range(4)]
        for q in range(8):
            if q % 4 == 0: L.append(f"s_xor_b32 {s(sD1)}, {s(sKB)}, {q*1024}")
            L.append(f"buffer_load_dwordx4 {v(ACC+4*q,4)}, {v(vL16)}, {s(R_WS,4)}, {s(sD1)} offen offset:{(q%4)*1024} sc1")
        return L
    KVAT = opt.get('kvat', 25)
    side = None; wrd = None
    for ks in range(32):
        if ks == 0:
            A.wait(vm=tok_wo0)
            A("s_barrier")
            side = Stream(wo_ops(1, SCR)); wrd = Stream(wo_reads(0, AD + 4, 0))
        if ks == 8:
            side.rest(); tok_wo1 = A.vm
            tok_wr = A.lg
        if ks == 9:
            A.wait(lg=tok_wr)
            A("s_barrier")
            side = Stream(c_ops(3))
        if ks == 17:
            side.rest()
            A.wait(vm=tok_wo1)
            A("s_barrier")
            stamp(23)
            side = Stream(c_ops(0)); wrd = Stream(wo_reads(1, AD + 6, 0))
        if ks == KVAT - 14: ssample(16)
        if ks == KVAT:
            A(f"s_or_b64 {s(sP,2)}, {s(sP,2)}, {s(sP+14,2)}")
            A("s_cbranch_scc0 L_clr_x")
            snap = A.snapshot()
            sspin("L_clr", 16)
            A.restore(snap)
            nk = A.vm + 12
            side = Stream(kv_loads() + side.ops)
            side.dma(2)
        A.wait(lg=toks[ks])
        stamp(200 + ks)
        rd = qreads(ks + 2) if ks + 2 < 32 else []
        b = BUF + 8 * (ks % 4)
        for tl in range(2):
            A(f"v_mfma_f32_32x32x16_bf16 {v(QA+16*tl,16)}, {v(b+4*tl,4)}, {a(4*ks,4)}, {'1.0' if ks == 0 else v(QA+16*tl,16)}")
            if tl == 0:
                if ks == KVAT - 6:
                    A.wait_all(vm=False, lg=True, force=True)
                    cko = [f"s_xor_b32 {s(sP+q)}, {s(sP+q)}, {s(sTAG)}" for q in range(16)] + [f"s_or_b64 {s(sP,2)}, {s(sP,2)}, {s(sP+q,2)}" for q in range(2, 14, 2)]
                run(rd); toks.append(A.lg)
                if KVAT - 6 <= ks < KVAT: run(cko[:4]); cko = cko[4:]
                if wrd and (ks < 8 or ks >= 30): wrd.some(2)
            else:
                if wrd: wrd.some(2)
                if side: side.dma()
    wrd.rest()
    stamp(24)
    PQ = TMP
    A.wait_all(vm=False)
    A("s_barrier")
    side.ops += [f"s_mov_b32 m0, {s(sXM)}", dma(VN, R_X, sXT, 0), dma(VN, R_X, sXT, 1)] + c_ops(1)
    ph = phi_ops(QA, PQ) + phi_ops(QA + 16, PQ + 8)
    PE = opt.get('phe', 60)
    sprinkle(ph[:PE], side, opt.get('kvevery', 10))
    run(ph[PE:])
    tok_kv = nk
    stamp(25)
    A(f"s_mov_b32 {s(sCNT)}, {SPIN}")
    stamp(4)
    KS = TMP + 16
    def kv_sum(last, side=None):
        zs = [f"v_add_f32 {v(t0)}, {v(ZL)}, {v(ZL+1)}", f"v_add_f32 {v(t1)}, {v(ZL+2)}, {v(ZL+3)}",
              f"v_add_f32 {v(t0)}, {v(t0)}, {v(t1)}", f"v_mov_b32 {v(t1)}, {v(t0)}", "s_nop 0", f"v_permlane32_swap_b32 {v(t0)}, {v(t1)}",
              f"v_add_f32 {v(t0)}, {v(t0)}, {v(t1)}", f"v_mov_b32 {v(t1)}, {v(t0)}", "s_nop 0", f"v_permlane16_swap_b32 {v(t0)}, {v(t1)}",
              f"v_add_f32 {v(t0)}, {v(t0)}, {v(t1)}", f"v_cvt_pk_bf16_f32 {v(t1)}, {v(t0)}, {v(t0)}"]
        for q in range(8):
            if q in (0, 4, 6, 7): A.wait(vm=last - 7 + {0: 3, 4: 5}.get(q, q))
            A(f"v_mfma_f32_16x16x32_bf16 {v(KS,4)}, {v(SUMS,4)}, {v(ACC+4*q,4)}, {'0' if q == 0 else v(KS,4)}")
            run(zs[2*q:2*q+2])
        A(f"v_cmp_u_f32 vcc, {v(t0)}, {v(KS)}")
    A(f"s_mov_b32 {s(sT2)}, {s(sOF)}"); A(f"s_mov_b32 {s(sFM)}, 1")
    cs = side
    kv_sum(tok_kv, cs)
    A("s_cbranch_vccnz L_kvretry")
    snap_kv = A.snapshot()
    A.label("L_kvok")
    stamp(5)
    A(f"ds_write_b16 {v(LA+1)}, {v(t1)}")
    A(f"v_cvt_pk_bf16_f32 {v(t2)}, {v(KS)}, {v(KS+1)}")
    A(f"v_cvt_pk_bf16_f32 {v(t3)}, {v(KS+2)}, {v(KS+3)}")
    A(f"ds_write_b64 {v(LA)}, {v(t2,2)}")
    A.wait_all(vm=False)
    A("s_barrier")
    stamp(70)
    AF = TMP + 16
    toks = []
    ES = opt.get('es', 1)
    if ES: poll_issue()
    for hd4 in range(4): toks.append(A(f"ds_read_b128 {v(AF+4*hd4,4)}, {v(LA+2+(hd4&1))} offset:{(hd4>>1)*1024}"))
    if ES:
        for q in range(2): A(f"ds_read_b32 {v(t4+q)}, {v(LA+2)}")
    cs.dma(1)
    for hd4 in range(4):
        A.wait(lg=toks[hd4])
        A(f"v_mfma_f32_32x32x16_bf16 {v(ACC+16*hd4,16)}, {v(AF+4*hd4,4)}, {v(PQ+4*hd4,4)}, 0")
        cs.dma()
    if not ES: poll_issue()
    cs.rest()
    stamp(71)
    OP = TMP + 48
    for hd4 in range(4):
        hd = hd4 & 1
        nb_, db_ = ACC + 16 * hd4 + 8 * hd, ACC + 16 * hd4 + 8 * (1 - hd)
        A(f"v_add_f32 {v(db_)}, {s(sEPS)}, {v(db_)}")
        A(f"v_rcp_f32 {v(db_)}, {v(db_)}")
        for e in range(0, 8, 2): A(f"v_pk_mul_f32 {v(nb_+e,2)}, {v(nb_+e,2)}, {v(db_,2)} op_sel_hi:[1,0]")
        for e in range(0, 8, 2): A(f"v_cvt_pk_bf16_f32 {v(TM2+4*hd4+e//2)}, {v(nb_+e)}, {v(nb_+e+1)}")
        A(f"buffer_store_dwordx4 {v(TM2+4*hd4,4)}, {v(LA+4)}, {s(R_WS,4)}, {s(sOA)} offen offset:{hd4*1024} sc1")
    stamp(26); stamp(6)
    A("s_branch L_phase2")

    A.raw(".p2align 12")
    A.label("L_phase2")
    A.hist = []
    if not opt.get('nopg', 1): A("s_cbranch_execz L_pgret_a")
    stamp(7)
    def late_flag(lab):
        A(f"s_cmp_eq_u32 {s(sFM)}, 0")
        A(f"s_cbranch_scc1 {lab}")
        sflag(sT2)
        A(f"s_cmp_eq_u32 {s(sFM)}, 1")
        A(f"s_mov_b32 {s(sFM)}, 0")
        A(f"s_cbranch_scc1 {lab}")
        sflag(sT2, 1024)
        A.label(lab)
    scheck(4)
    A("s_cbranch_scc0 L_ph_x")
    for _ in range(opt.get('re', 1)):
        ssample(4); scheck(4)
        A("s_cbranch_scc0 L_ph_x")
    A(f"s_cmp_eq_u32 {s(sFM)}, 0")
    A("s_cbranch_scc1 L_noflag")
    A("s_waitcnt vmcnt(0)")
    late_flag("L_noflag")
    sspin("L_ph", 4)
    stamp(8)
    assert A.vm_done < A.vm
    ltok, ctok = p2_head(late_flag)
    KS1 = KCHK - opt.get('ks1', 8)
    for ks in range(KCHK):
        if ks == KS1: ssample(5)
        step2a(ks, True, ltok, ctok, ks == KCHK - 1)
    A("s_cbranch_scc1 L_slow")
    snap = A.snapshot(); ctok_s = list(ctok); ltok_s = list(ltok)
    for ks in range(KCHK, 32): step2a(ks, True, ltok, ctok)
    stamp(9); stamp(10)
    A.label("L_2b")
    gops = []
    for tl in (1, 0):
        for k in range(16): gops.append(f"v_mul_f32 {v(ACC+16*tl+k)}, {v(ACC+16*tl+k)}, {v(GG+k)}")
    for k in range(16): gops.append(f"v_sub_f32 {v(GG+k)}, 1.0, {v(GG+k)}")
    LG = opt.get('lag', 10)
    seq = [(ks, tl) for ks in range(16 - LG) for tl in (1, 0)] + [(ks, 1) for ks in range(16 - LG, 16)] + [(ks, 0) for ks in range(16 - LG, 16)]
    NB_ = 32 - LG
    XR = BUF
    tail = [["s_nop 4"], ["s_nop 4"]]
    for j in range(4):
        tail.append([f"v_fmac_f32 {v(ACC+16+4*j+i)}, {v(ACC+48+4*j+i)}, {v(GG+4*j+i)}" for i in range(4)] +
                    [f"ds_write_b128 {v(AD+4)}, {v(ACC+16+4*j,4)} offset:{j*1024}"])
    xt = []
    tail.append([lambda: A.wait_all(vm=False), "s_barrier"] + [(lambda j=j: xt.append(A(f"ds_read_b128 {v(XR+4*j,4)}, {v(AD+5)} offset:{j*1024}"))) for j in range(4)])
    tail.append([f"s_lshl_b32 {s(sT0)}, {s(sTT2)}, 16"])
    for j in range(4):
        tail.append([(lambda j=j: A.wait(lg=xt[j]))] + [f"v_add_f32 {v(ACC+4*j+i)}, {v(ACC+4*j+i)}, {v(XR+4*j+i)}" for i in range(4)])
    for n, (ks, tl) in enumerate(seq):
        if tl == 1:
            A.wait(vm=ltok[32 + ks])
            stamp(140 + ks)
        A(f"v_mfma_f32_32x32x16_bf16 {v(ACC+32+16*tl,16)}, {v(TMP+4*ks,4)}, {a(128+8*ks+4*tl,4)}, {'0' if ks == 0 else v(ACC+32+16*tl,16)}")
        stamp(170 + n)
        if n % 2 == 0 and len(ltok) < 48: ltok.append(run(load_ops(len(ltok))))
        if n == 1: A(f"ds_write_b32 {v(AD)}, {v(vE)}")
        if n in (3, 5):
            for j in (n - 3, n - 2): tg = A(f"ds_read_b128 {v(GG+4*j,4)}, {v(AD+2)} offset:{j*32}")
        if n >= 8 and gops:
            A.wait(lg=tg)
            m = 5 if len(ltok) == 48 or n % 2 else 1
            run(gops[:m]); gops = gops[m:]
        if n >= NB_ - 1 and tail:
            if tail[0]: run(gops); gops = []
            run(tail.pop(0))
    stamp(11)
    for g_ in tail: run(g_)
    of = {0: "", 1: " nt", 2: " sc1", 3: " sc0 sc1"}[opt.get('outfl', 2)]
    for j in range(4):
        for e in (0, 2): A(f"v_pk_fma_f32 {v(ACC+4*j+e,2)}, {v(ACC+32+4*j+e,2)}, {v(GG+4*j+e,2)}, {v(ACC+4*j+e,2)}")
        A(f"s_add_u32 {s(sT1)}, {s(sT0)}, 4096")
        for i in range(4):
            A(f"buffer_store_dword {v(ACC+4*j+i)}, {v(AD+1)}, {s(R_OUT,4)}, {s(sT0 if i < 2 else sT1)} offen offset:{(i%2)*2048}{of if j < opt.get('outn', 4) else ''}")
        if j < 3: A(f"s_add_u32 {s(sT0)}, {s(sT0)}, 16384")
    A(f"s_lshl2_add_u32 {s(sT0)}, {s(sNB)}, {s(sW)}"); A(f"s_lshl_b32 {s(sT0)}, {s(sT0)}, 5"); A(f"s_add_u32 {s(sT0)}, {s(sT0)}, {s(sRB)}")
    A(f"s_cmp_eq_u32 {s(sT0)}, 31")
    A("s_cbranch_scc0 L_fin")
    A("s_mov_b64 exec, 1")
    A(f"buffer_store_dword {v(vTAG)}, {v(vZ)}, {s(R_WS,4)}, 0 offen sc1")
    A("s_mov_b64 exec, -1")
    A.label("L_fin")
    if stamps:
        A("s_waitcnt vmcnt(0)")
        stamp(12)
        A("s_waitcnt lgkmcnt(0)")
        A(f"s_lshl2_add_u32 {s(sT0)}, {s(sWG)}, {s(sW)}"); A(f"s_lshl_b32 {s(sT0)}, {s(sT0)}, 6")
        A(f"s_add_u32 {s(sT0)}, {s(sT0)}, {WS_STAMP}")
        for i in range(14):
            A(f"v_mov_b32 {v(t0)}, {s(SREG[i] if i < 13 else sTY)}")
            A(f"buffer_store_dword {v(t0)}, {v(vZ)}, {s(R_WS,4)}, {s(sT0)} offen offset:{4*i}")
    A("s_endpgm")
    A.label("L_slow")
    A.restore(snap); ctok[:] = ctok_s; ltok[:] = ltok_s
    k0_ = KCHK
    for n2, K2 in enumerate(opt.get('k2', [27, 32])):
        ssample(5)
        for ks in range(k0_, K2): step2a(ks, False, ltok, ctok, ks == K2 - 1)
        if K2 == 32: break
        A(f"s_cbranch_scc1 L_slow{n2}")
        snap2 = A.snapshot(); ctok_s = list(ctok)
        n = 32
        for ks in range(K2, 32):
            for _ in range(2):
                if n < 32 + AHEAD: run(load_ops(n)); n += 1
            step2a(ks, False, ltok, ctok)
        while n < 32 + AHEAD: run(load_ops(n)); n += 1
        stamp(9); stamp(10)
        A("s_branch L_2b")
        A.label(f"L_slow{n2}")
        A.restore(snap2); ctok[:] = ctok_s
        k0_ = K2
    stamp(9)
    A("s_cbranch_scc0 L_po_x")
    sspin("L_po", 5)
    stamp(10)
    for n in range(32, 32 + AHEAD): run(load_ops(n))
    A("s_branch L_2b")
    A.label("L_kvretry")
    A.restore(snap_kv)
    kl = kv_loads()
    A(f"s_mov_b32 {s(sT0)}, 0")
    groups = [(ZL, kl[:4])]; pre = []
    for o in kl[4:]:
        if o.startswith('s_'): pre = [o]
        else: groups.append((ACC + 4 * (len(groups) - 1), pre + [o]))
    for n, (r, ops) in enumerate(groups):
        A(f"v_max3_u32 {v(t2)}, {v(r)}, {v(r+1)}, {v(r+2)}")
        A(f"v_max_u32 {v(t2)}, {v(t2)}, {v(r+3)}")
        A(f"v_cmp_eq_u32 vcc, -1, {v(t2)}")
        A("s_nop 0")
        A(f"s_cbranch_vccz L_kvh{n}")
        run(ops)
        A(f"s_mov_b32 {s(sT0)}, 1")
        A.label(f"L_kvh{n}")
    A(f"s_cmp_eq_u32 {s(sT0)}, 0")
    A("s_cbranch_scc1 L_kvok")
    A.wait_all(vm=True, lg=False, force=True)
    kv_sum(A.vm)
    A(f"s_sub_u32 {s(sCNT)}, {s(sCNT)}, 1")
    A("s_cbranch_scc1 L_kvok")
    A("s_cbranch_vccnz L_kvretry")
    A("s_branch L_kvok")
    A.label("L_end")
    if not opt.get('nopg', 1):
        tmp = A.out + [f"L_pg_{r}_{n}:" for r in 'sa' for n in range(3)]
        tmp, A.fixed, A.padded = align_pass(tmp)
        tmp, cnt = page_pads(tmp, 0x300, {"L_ssm": 's', "L_attn": 'a', "L_phase2": None})
        assert cnt['s'] >= 2 and cnt['a'] >= 2, cnt
        A.out = tmp[:-6]
    else:
        A.out, A.fixed, A.padded = align_pass(A.out)
    hdr = open(os.path.join(os.path.dirname(__file__), "header.txt")).read()
    src = hdr + f"; @launch grid=(256,1,1) block=(256,1,1) lds={LDS_BYTES}\n" + f""".amdgcn_target "amdgcn-amd-amdhsa--gfx950"
.text
.globl {KNAME}
.p2align 12
.fill {opt.get('kpad', 0xd00)//4}, 4, 0xbf800000
.p2align 8
.type {KNAME},@function
{KNAME}:
{A.text()}
    s_endpgm
.section .rodata,"a"
.p2align 6
.amdhsa_kernel {KNAME}
  .amdhsa_next_free_vgpr 512
  .amdhsa_next_free_sgpr 102
  .amdhsa_accum_offset 256
  .amdhsa_group_segment_fixed_size 0
  .amdhsa_kernarg_size 128
  .amdhsa_user_sgpr_count 2
  .amdhsa_user_sgpr_kernarg_segment_ptr 1
  .amdhsa_system_sgpr_workgroup_id_x 1
.end_amdhsa_kernel
"""
    return src, A

if __name__ == "__main__":
    out = sys.argv[1]
    opt = {}
    for kv in sys.argv[3:]:
        k_, v_ = kv.split('='); opt[k_] = int(v_)
    src, A = gen(stamps=len(sys.argv) > 2 and sys.argv[2] == 'stamps', opt=opt)
    open(out, "w").write(src)
    print("lines", len(A.out), "nops", A.nops, "widened", getattr(A, 'fixed', 0), "padded", getattr(A, 'padded', 0))
```

```python
import sys, os
sys.path.insert(0, os.path.dirname(__file__))
from asmlib import *

KNAME = "gated_mix__ssm_conv_s5__linear_attn_block__prompt_kernel"

WS_EPOCH = 0
WS_KVF   = 0xD0000
WS_HF    = 0xE0000
WS_OF    = 0xE0200
WS_G     = 0x14000
WS_ZP    = 0x18000
WS_AGG   = 0x20000
WS_KVP   = 0x40000
WS_STAMP = 0xC0000
WS_ACT   = 0x100000
WS_SIZE  = WS_ACT + 64 * 98304
SCR = 131072
LDS_BYTES = 163840
SPIN = 1 << 17

DOC = r'''; ---------------------------------------------------------------------------------------------------------------
; ---------------------------------------------------------------------------------------------------------------
'''

def gen(stamps=False, opt=None):
    opt = opt or {}
    A = Asm()
    P_X, P_LRE, P_LIM, P_BRE, P_BIM, P_CRE, P_CIM, P_LDT = 4, 6, 8, 10, 12, 14, 16, 18
    P_DSK, P_BX, P_QKV, P_WO, P_GW, P_OUT, P_DBG, P_WS = 20, 22, 24, 26, 28, 30, 32, 34
    R_X, R_W, R_WS, R_C, R_WO, R_OUT = 36, 40, 44, 48, 52, 56
    sW, sC, sJ, sK0, sRB, sNB, sTAG, sTY = 60, 61, 62, 63, 64, 65, 66, 67
    sXO, sWO, sWST, sU0, sT0, sT1, sT2, sT3 = 68, 69, 70, 71, 72, 73, 74, 75
    sMX, sMW, sCNT, sTT, sKH, sM8 = 76, 77, 78, 79, 80, 81
    sL2E = 82
    sU1, sU2 = 84, 85
    sEPS = 86
    sD0, sD1 = 2, 3
    SREG = [88, 90, 92, 94, 96, 98, 6, 0, 26, 16, 18, 22, 20]
    sWG = 100
    sU3 = 101
    names = opt.get('stamps') or [0, 1, 2, 3, 4, 5, 6, 7, 8, 9, 10, 11, 12]
    def stamp(i):
        if stamps and i in names:
            A(f"{'s_memtime' if opt.get('cyc') else 's_memrealtime'} {s(SREG[names.index(i)], 2)}")
    vL = 0; vZ = 1; vE = 2; vJ = 3
    t0, t1, t2, t3, t4, t5, t6, t7 = 4, 5, 6, 7, 8, 9, 10, 11
    vTAG = 12; vL16 = 13; vL4 = 14; vF = 15
    ACC = 16; BUF = 80; TMP = 112; TM2 = 176
    VX, VW, VN, VK1 = 208, 212, 216, 220
    RX, RN, RT = 224, 228, 232
    RW = 234
    RA, RB = 236, 240
    AD = 244
    PR = TM2

    def run(ops):
        tok = None
        for o in ops:
            r = A(o) if isinstance(o, str) else o()
            if r is not None: tok = r
        return tok
    def sel_exec(lo, hi):
        A(f"s_mov_b32 exec_lo, {lo:#x}"); A(f"s_mov_b32 exec_hi, {hi:#x}")

    stamp(0)
    A("s_load_dwordx16 s[4:19], s[0:1], 0")
    A("s_load_dwordx16 s[20:35], s[0:1], 64")
    A("s_cmp_ge_u32 s2, 256")
    A("s_cbranch_scc1 L_end")
    A(f"s_getpc_b64 {s(sT2,2)}")
    A.label("L_pc")
    A(f"s_and_b32 {s(sT0)}, s2, 0xf8")
    A(f"v_lshrrev_b32 {v(t0)}, 5, v0")
    A(f"v_add_lshl_u32 {v(t0)}, {v(t0)}, {s(sT0)}, 7")
    A(f"v_min_u32 {v(t0)}, L_end-L_pc, {v(t0)}")
    if not opt.get('nocodepf'):
        A(f"global_load_dword {v(BUF)}, {v(t0)}, {s(sT2,2)}")
    A(f"v_lshrrev_b32 {v(t0)}, 6, v0")
    A(f"v_and_b32 {v(vL)}, 63, v0")
    A(f"v_readfirstlane_b32 {s(sW)}, {v(t0)}")
    A(f"v_mov_b32 {v(vZ)}, 0")
    A(f"s_and_b32 {s(sT0)}, s2, 7")
    A(f"s_bfe_u32 {s(sNB)}, s2, 0x30003")
    A(f"s_lshr_b32 {s(sT3)}, s2, 6")
    if stamps: A(f"s_mov_b32 {s(sWG)}, s2")
    A(f"s_and_b32 {s(sC)}, {s(sT0)}, 1"); A(f"s_lshl3_add_u32 {s(sC)}, {s(sC)}, {s(sNB)}")
    A(f"s_and_b32 {s(sJ)}, {s(sT0)}, 6"); A(f"s_lshr_b32 {s(sK0)}, {s(sT3)}, 1"); A(f"s_add_u32 {s(sJ)}, {s(sJ)}, {s(sK0)}")
    A(f"s_lshr_b32 {s(sT1)}, {s(sT0)}, 1"); A(f"s_and_b32 {s(sT2)}, {s(sT0)}, 1")
    A(f"s_lshl2_add_u32 {s(sRB)}, {s(sT2)}, {s(sT1)}"); A(f"s_lshl2_add_u32 {s(sRB)}, {s(sRB)}, {s(sT3)}")
    G_ = opt.get('G', 2)
    PAIR = G_ == 0
    if PAIR: A(f"s_add_u32 {s(sK0)}, {s(sK0)}, {s(sNB)}"); A(f"s_and_b32 {s(sK0)}, {s(sK0)}, 1")
    elif G_ == 1: A(f"s_mov_b32 {s(sK0)}, 0")
    elif G_ == 2: A(f"s_add_u32 {s(sK0)}, {s(sK0)}, {s(sNB)}"); A(f"s_lshl_b32 {s(sK0)}, {s(sK0)}, 2")
    elif G_ == 4: A(f"s_add_u32 {s(sK0)}, {s(sT3)}, {s(sNB)}"); A(f"s_lshl_b32 {s(sK0)}, {s(sK0)}, 1")
    else: A(f"s_lshl1_add_u32 {s(sK0)}, {s(sT3)}, {s(sNB)}")
    X_ = opt.get('xoff', 0)
    if X_ == 1: A(f"s_lshl1_add_u32 {s(sT1)}, {s(sT2)}, {s(sT1)}"); A(f"s_add_u32 {s(sK0)}, {s(sK0)}, {s(sT1)}")
    if X_ == 2: A(f"s_add_u32 {s(sT1)}, {s(sT2)}, {s(sT1)}"); A(f"s_add_u32 {s(sK0)}, {s(sK0)}, {s(sT1)}")
    if X_ == 3: A(f"s_lshl1_add_u32 {s(sT1)}, {s(sT2)}, {s(sT1)}"); A(f"s_lshl1_add_u32 {s(sK0)}, {s(sT1)}, {s(sK0)}")
    A(f"s_and_b32 {s(sK0)}, {s(sK0)}, 7")
    if opt.get('a84'):
        A(f"s_lshr_b32 {s(sT1)}, {s(sRB)}, 1"); A(f"s_xor_b32 {s(sT1)}, {s(sT1)}, {s(sNB)}"); A(f"s_and_b32 {s(sT1)}, {s(sT1)}, 4")
        A(f"s_xor_b32 {s(sNB)}, {s(sNB)}, {s(sT1)}"); A(f"s_lshl_b32 {s(sT1)}, {s(sT1)}, 1"); A(f"s_xor_b32 {s(sRB)}, {s(sRB)}, {s(sT1)}")
    RM = opt.get('rm', 3)
    A(f"s_and_b32 {s(sTY)}, {s(sT3)}, 1")
    A(f"v_lshrrev_b32 {v(t0)}, 3, {v(vL)}")
    A(f"v_and_b32 {v(t1)}, 7, {v(vL)}")
    A(f"v_lshrrev_b32 {v(t2)}, 4, {v(vL)}")
    A(f"v_xor_b32 {v(t3)}, {v(t1)}, {v(t2)}")
    A(f"v_lshlrev_b32 {v(t3)}, 4, {v(t3)}")
    A(f"v_and_b32 {v(t2)}, 16, {v(vL)}")
    A(f"v_lshlrev_b32 {v(t2)}, 2, {v(t2)}")
    A(f"v_lshlrev_b32 {v(t4)}, 4, {v(t1)}")
    A(f"v_xor_b32 {v(t4)}, {v(t4)}, {v(t2)}")
    A(f"v_lshrrev_b32 {v(t5)}, 5, {v(vL)}")
    A(f"v_and_b32 {v(t6)}, 3, {v(t0)}")
    A(f"v_lshl_add_u32 {v(t5)}, {v(t5)}, 4, {v(t6)}")
    A(f"v_lshl_add_u32 {v(VX)}, {v(t5)}, 10, {v(t3)}")
    A(f"v_xor_b32 {v(t5)}, 64, {v(VX)}")
    A(f"v_add_u32 {v(VX+1)}, {3072}, {v(t5)}")
    A(f"v_add_u32 {v(VX+2)}, {2*3072}, {v(VX)}")
    A(f"v_add_u32 {v(VX+3)}, {3*3072}, {v(t5)}")
    A(f"v_lshl_add_u32 {v(VN)}, {v(t0)}, 10, {v(t3)}")
    A(f"v_xor_b32 {v(t5)}, 64, {v(VN)}")
    A(f"v_add_u32 {v(VN+1)}, {7168}, {v(t5)}")
    A(f"v_add_u32 {v(VN+2)}, {2*7168}, {v(VN)}")
    A(f"v_add_u32 {v(VN+3)}, {3*7168}, {v(t5)}")
    A(f"v_lshl_add_u32 {v(VK1)}, {v(t0)}, 10, {v(t4)}")
    A(f"v_lshl_add_u32 {v(VW)}, {v(t0)}, 11, {v(VK1)}")
    A(f"v_xor_b32 {v(t5)}, 32, {v(VW)}")
    for q in (1, 2, 3): A(f"v_add_u32 {v(VW+q)}, {q*(8*3072-1024)}, {v(t5 if q & 1 else VW)}")
    A(f"s_lshl_b32 {s(sT0)}, {s(sJ)}, 7")
    A(f"v_and_b32 {v(t7)}, 35, {v(vL)}"); A(f"v_bfe_u32 {v(t5)}, {v(vL)}, 2, 2"); A(f"v_lshl_add_u32 {v(t7)}, {v(t5)}, 3, {v(t7)}")
    A(f"v_bfe_u32 {v(t5)}, {v(vL)}, 4, 1"); A(f"v_lshl_add_u32 {v(t7)}, {v(t5)}, 2, {v(t7)}")
    A(f"v_lshl_add_u32 {v(t7)}, {v(t7)}, 1, {s(sT0)}")
    A(f"v_lshlrev_b32 {v(vL16)}, 4, {v(vL)}")
    A(f"s_lshl_b32 {s(sMX)}, {s(sW)}, 12")
    A(f"s_add_u32 {s(sMW)}, {s(sMX)}, 16384")
    A(f"s_and_b32 {s(sKH)}, {s(sW)}, 1")
    A(f"s_lshr_b32 {s(sT1)}, {s(sW)}, 1")
    A(f"s_lshl2_add_u32 {s(sTT)}, {s(sC)}, {s(sW)}")
    A(f"s_lshl_b32 {s(sXO)}, {s(sTT)}, 15")
    A(f"s_lshl_b32 {s(sT2)}, {s(sK0)}, 7")
    A(f"s_add_u32 {s(sXO)}, {s(sXO)}, {s(sT2)}")
    A(f"s_lshl1_add_u32 {s(sT2)}, {s(sJ)}, {s(sT1)}"); A(f"s_lshl_b32 {s(sT2)}, {s(sT2)}, 15")
    A(f"s_mul_i32 {s(sT3)}, {s(sKH)}, {32*3072}"); A(f"s_lshl_b32 {s(sT1)}, {s(sT1)}, 10"); A(f"s_add_u32 {s(sT3)}, {s(sT3)}, {s(sT1)}")
    A(f"s_add_u32 {s(sT3)}, {s(sT3)}, {s(sT0)}"); A(f"s_add_u32 {s(sT3)}, {s(sT3)}, 1024")
    A(f"s_cmp_eq_u32 {s(sTY)}, 0")
    A(f"s_cselect_b32 {s(sWO)}, {s(sT2)}, {s(sT3)}")
    A(f"s_cselect_b32 {s(sWST)}, 128, {64*3072}") if False else None
    A(f"s_mov_b32 {s(sT1)}, {64*3072}"); A(f"s_cselect_b32 {s(sWST)}, 0x80, {s(sT1)}")
    A(f"s_mov_b32 {s(sT1)}, 0x180000"); A(f"s_cselect_b32 {s(R_W+2)}, 0x80000, {s(sT1)}")
    A("s_cselect_b64 exec, -1, 0")
    A(f"v_and_b32 {v(t5)}, 32, {v(vL)}")
    A(f"v_lshl_add_u32 {v(VW)}, {v(t5)}, 7, {v(VN)}")
    A(f"v_xor_b32 {v(t5)}, 64, {v(VW)}")
    A(f"v_add_u32 {v(VW+1)}, {15*1024}, {v(t5)}")
    A(f"v_add_u32 {v(VW+2)}, {2*1024}, {v(VW)}")
    A(f"v_add_u32 {v(VW+3)}, {17*1024}, {v(t5)}")
    A(f"v_mov_b64 {v(VX,2)}, {v(VW,2)}"); A(f"v_mov_b64 {v(VX+2,2)}, {v(VW+2,2)}")
    A("s_mov_b64 exec, -1")
    A(f"s_mul_i32 {s(sT1)}, {s(sK0)}, {s(sWST)}"); A(f"s_add_u32 {s(sWO)}, {s(sWO)}, {s(sT1)}")
    A(f"s_mov_b32 {s(R_X+2)}, 0x200000"); A(f"s_mov_b32 {s(R_X+3)}, 0x20000")
    A(f"s_mov_b32 {s(R_W+3)}, 0x20000")
    A(f"s_mov_b32 m0, {s(sMX)}")
    A(f"s_mov_b32 {s(R_WS+2)}, {WS_SIZE}"); A(f"s_mov_b32 {s(R_WS+3)}, 0x20000")
    A(f"s_mov_b32 {s(R_C+2)}, 0x80000"); A(f"s_mov_b32 {s(R_C+3)}, 0x20000")
    A(f"s_mov_b32 {s(R_WO+2)}, 0x80000"); A(f"s_mov_b32 {s(R_WO+3)}, 0x20000")
    A(f"s_mov_b32 {s(R_OUT+2)}, 0x400000"); A(f"s_mov_b32 {s(R_OUT+3)}, 0x20000")
    A(f"s_lshl_b32 {s(sM8)}, {s(sW)}, 13")
    late = []
    Lt = late.append
    for q in (1, 2, 3): Lt(f"v_add_u32 {v(VK1+q)}, {q*7168}, {v(VK1)}")
    Lt(f"v_and_b32 {v(t0)}, 31, {v(vL)}")
    Lt(f"v_lshrrev_b32 {v(t1)}, 5, {v(vL)}")
    Lt(f"v_bfe_u32 {v(t2)}, {v(vL)}, 1, 3")
    Lt(f"v_xor_b32 {v(t2)}, {v(t2)}, {v(t1)}")
    Lt(f"v_lshlrev_b32 {v(t2)}, 4, {v(t2)}")
    Lt(f"v_lshl_add_u32 {v(RN)}, {v(t0)}, 7, {v(t2)}")
    for q in (1, 2, 3): Lt(f"v_xor_b32 {v(RN+q)}, {q*32}, {v(RN)}")
    for q in range(4): Lt(f"v_add_u32 {v(RX+q)}, {s(sMX)}, {v(RN+q)}")
    Lt(f"v_bfe_u32 {v(t2)}, {v(vL)}, 2, 2")
    Lt(f"v_bfe_u32 {v(t3)}, {v(vL)}, 3, 1")
    Lt(f"v_bfe_u32 {v(t4)}, {v(vL)}, 4, 1")
    Lt(f"v_and_b32 {v(t5)}, 3, {v(vL)}")
    Lt(f"v_lshlrev_b32 {v(t5)}, 3, {v(t5)}")
    Lt(f"v_lshl_add_u32 {v(t5)}, {v(t4)}, 5, {v(t5)}")
    Lt(f"v_lshl_add_u32 {v(t5)}, {v(t3)}, 6, {v(t5)}")
    Lt(f"v_lshl_add_u32 {v(t5)}, {v(t2)}, 7, {v(t5)}")
    Lt(f"v_lshl_add_u32 {v(RT)}, {v(t1)}, 10, {v(t5)}")
    Lt(f"v_and_b32 {v(t2)}, 32, {v(vL)}"); Lt(f"v_xor_b32 {v(RT)}, {v(t2)}, {v(RT)}")
    Lt(f"v_xor_b32 {v(RT+1)}, 64, {v(RT)}")
    Lt(f"v_lshl_add_u32 {v(RW)}, {v(t1)}, 9, {v(t5)}")
    Lt(f"s_mul_i32 {s(sT0)}, {s(sKH)}, {16384+64}")
    Lt(f"v_xor_b32 {v(RW)}, {s(sT0)}, {v(RW)}")
    Lt(f"v_xor_b32 {v(RW+1)}, 64, {v(RW)}")
    Lt(f"v_lshlrev_b32 {v(vL4)}, 2, {v(vL)}")
    sWOB, sCB = P_DBG, P_DBG + 1
    Lt(f"s_and_b32 {s(sT1)}, {s(sJ)}, 1")
    Lt(f"s_and_b32 {s(sWOB)}, {s(sW)}, 2"); Lt(f"s_add_u32 {s(sWOB)}, {s(sWOB)}, {s(sW)}"); Lt(f"s_lshl1_add_u32 {s(sWOB)}, {s(sT1)}, {s(sWOB)}")
    Lt(f"s_lshl_b32 {s(sWOB)}, {s(sWOB)}, 9"); Lt(f"s_add_u32 {s(sWOB)}, {s(sWOB)}, {s(sNB)}"); Lt(f"s_lshl_b32 {s(sWOB)}, {s(sWOB)}, 7")
    Lt(f"s_lshr_b32 {s(sCB)}, {s(sW)}, 1"); Lt(f"s_lshl2_add_u32 {s(sCB)}, {s(sT1)}, {s(sCB)}")
    Lt(f"s_lshl_b32 {s(sT0)}, {s(sNB)}, 9"); Lt(f"s_add_u32 {s(sCB)}, {s(sCB)}, {s(sT0)}"); Lt(f"s_lshl_b32 {s(sCB)}, {s(sCB)}, 7")
    if True:
        Lt(f"s_and_b32 {s(sT0)}, {s(sNB)}, {RM}"); Lt(f"s_lshl_b32 {s(sT0)}, {s(sT0)}, 7"); Lt(f"s_xor_b32 {s(sCB)}, {s(sCB)}, {s(sT0)}")
        Lt(f"s_lshl_b32 {s(sT0)}, {s(sT0)}, 9"); Lt(f"s_xor_b32 {s(sWOB)}, {s(sWOB)}, {s(sT0)}")
    Lt(f"s_mul_i32 {s(sT0)}, {s(sKH)}, {65536+4096}")
    Lt(f"s_lshl_b32 {s(sT1)}, {s(sT1)}, 16"); Lt(f"s_xor_b32 {s(sT0)}, {s(sT0)}, {s(sT1)}")
    Lt(f"s_xor_b32 {s(sT1)}, {s(sT0)}, 4096")
    for q in range(4):
        Lt(f"v_add_u32 {v(RA+q)}, {s(sT0)}, {v(RN+q)}")
        Lt(f"v_add_u32 {v(RB+q)}, {s(sT1)}, {v(RN+q)}")
    Lt(f"s_mov_b64 {s(R_WS,2)}, {s(P_WS,2)}")
    Lt(f"s_mov_b64 {s(R_WO,2)}, {s(P_WO,2)}")
    Lt(f"s_mov_b64 {s(R_OUT,2)}, {s(P_OUT,2)}")
    PRE = opt.get('pre', 27)
    run(late[:PRE]); late = late[PRE:]
    A(f"s_cmp_eq_u32 {s(sTY)}, 0")
    A("s_waitcnt lgkmcnt(0)")
    stamp(20)
    A(f"s_mov_b64 {s(R_X,2)}, {s(P_X,2)}")
    pLRE, pLIM, pLDT = PR, PR + 1, PR + 2
    A("s_cbranch_scc0 L_nopar")
    A(f"global_load_ushort {v(pLRE)}, {v(t7)}, {s(P_LRE,2)}")
    A(f"global_load_ushort {v(pLIM)}, {v(t7)}, {s(P_LIM,2)}")
    A(f"global_load_ushort {v(pLDT)}, {v(t7)}, {s(P_LDT,2)}")
    tokP = A(f"global_load_dword {v(vE)}, {v(vZ)}, {s(P_WS,2)} sc1")
    A.label("L_nopar")
    A(f"s_cmp_eq_u32 {s(sKH)}, 0")
    def dma(voff, srd, soff, q):
        off = f" offset:{q*1024}" if q else ""
        return f"buffer_load_dwordx4 {v(voff+q)}, {s(srd,4)}, {s(soff)} offen{off} lds"
    for q in range(4):
        A(dma(VX, R_X, sXO, q))
    A(f"s_cselect_b64 {s(R_W,2)}, {s(P_BRE,2)}, {s(P_BIM,2)}")
    A(f"s_cselect_b64 {s(R_C,2)}, {s(P_CRE,2)}, {s(P_CIM,2)}")
    A(f"s_cmp_eq_u32 {s(sTY)}, 0")
    A(f"s_cselect_b64 {s(R_W,2)}, {s(R_W,2)}, {s(P_QKV,2)}")
    A(f"s_mov_b32 m0, {s(sMW)}")
    for q in range(4):
        if q: run(late[:11]); late = late[11:]
        A(dma(VW, R_W, sWO, q))
    utok0 = [A.vm]
    stamp(21)
    def unit_ops(i):
        slot = (i % 4) * 32768
        ops = []
        if G_ == 2 and X_ == 0 and i != 4:
            ops += [f"s_add_u32 {s(sXO)}, {s(sXO)}, 128", f"s_add_u32 m0, {s(sMX)}, {slot}"]
            ops += [dma(VX, R_X, sXO, q) for q in range(4)]
            ops += [f"s_add_u32 {s(sWO)}, {s(sWO)}, {s(sWST)}", f"s_add_u32 m0, {s(sMW)}, {slot}"]
            return ops + [dma(VW, R_W, sWO, q) for q in range(4)]
        ops += [f"s_cmp_eq_u32 {s(sK0)}, {1 if PAIR else 8-i}", f"s_cselect_b32 {s(sD0)}, {(-1 if i & 1 else 3) if PAIR else -7}, 1", f"s_mul_i32 {s(sD1)}, {s(sD0)}, {s(sWST)}",
                f"s_lshl_b32 {s(sD0)}, {s(sD0)}, 7", f"s_add_u32 {s(sXO)}, {s(sXO)}, {s(sD0)}", f"s_add_u32 m0, {s(sMX)}, {slot}"]
        ops += [dma(VX, R_X, sXO, q) for q in range(4)]
        ops += [f"s_add_u32 {s(sWO)}, {s(sWO)}, {s(sD1)}", f"s_add_u32 m0, {s(sMW)}, {slot}"]
        ops += [dma(VW, R_W, sWO, q) for q in range(4)]
        return ops
    u1 = unit_ops(1)
    U1C = opt.get('u1c', 2)
    k = [n for n, o in enumerate(u1) if o.startswith('buffer')][U1C - 1] + 1 if U1C else 0
    run(late[:8]); run(u1[:k]); run(late[8:]); u1 = u1[k:]
    A(f"s_cmp_eq_u32 {s(sTY)}, 0")
    A("s_cbranch_scc0 L_attn")
    snap0 = A.snapshot()

    def unit8_ops(voff, srd, pre, base, rowstep):
        ops = list(pre)
        ops.append(f"s_add_u32 m0, {s(sM8)}, {base}")
        ops += [dma(voff, srd, sD0, q) for q in range(4)]
        ops.append(f"s_add_u32 {s(sD0)}, {s(sD0)}, {rowstep}")
        ops.append(f"s_add_u32 m0, {s(sM8)}, {base+4096}")
        ops += [dma(voff, srd, sD0, q) for q in range(4)]
        return ops
    def wq_ops(u):
        pre = [f"s_xor_b32 {s(sD0)}, {s(sK0)}, {4*u}", f"s_{'xor_b32' if PAIR else 'add_u32'} {s(sD0)}, {s(sD0)}, {s(sW)}", f"s_and_b32 {s(sD0)}, {s(sD0)}, 7",
               f"s_mul_i32 {s(sD0)}, {s(sD0)}, {64*3072}", f"s_lshl_b32 {s(sD1)}, {s(sJ)}, 7", f"s_add_u32 {s(sD0)}, {s(sD0)}, {s(sD1)}"]
        return unit8_ops(VW, R_W, pre, u * 32768, 32 * 3072)
    def wo_ops(u, base):
        pre = [f"s_xor_b32 {s(sD0)}, {s(sWOB)}, {u << 17}"]
        return unit8_ops(VK1, R_WO, pre, base, 32 * 1024)
    def c_ops(slot):
        pre = [f"s_xor_b32 {s(sD0)}, {s(sCB)}, {slot << 8}"]
        return unit8_ops(VN, R_C, pre, slot * 32768, 32 * 1024)
    def wo_reads(u, areg, off):
        L = []
        for st in range(8):
            for tl in range(2):
                d = 128 + 8 * (8 * u + st) + 4 * tl
                L.append(f"ds_read_b64_tr_b16 {a(d,2)}, {v(areg+tl)} offset:{off+st*2048}")
                L.append(f"ds_read_b64_tr_b16 {a(d+2,2)}, {v(areg+tl)} offset:{off+st*2048+1024}")
        return L
    class Stream:
        def __init__(self, ops): self.ops = list(ops)
        def dma(self, n=1):
            while n > 0 and self.ops:
                o = self.ops.pop(0); A(o)
                if o.startswith('buffer_') or o.startswith('global_'): n -= 1; self.last = A.vm
        def salu(self):
            while self.ops and not (self.ops[0].startswith('buffer_') or self.ops[0].startswith('global_')): A(self.ops.pop(0))
        def some(self, n):
            tok = None
            for _ in range(n):
                if self.ops: tok = A(self.ops.pop(0))
            return tok
        def rest(self):
            tok = None
            while self.ops:
                tok = A(self.ops.pop(0)); self.last = A.vm
            return tok
    def sprinkle(ops, stream, every):
        for n, o in enumerate(ops):
            A(o) if isinstance(o, str) else o()
            if (n + 1) % every == 0: stream.dma()

    RA16, RB16 = [RN + 1, RN + 2], [RN + 3, AD + 8]
    def main_loop(kind, tail_units, fill):
        utok = list(utok0)
        def reads(i, st):
            slot = (i % 2) * 32768
            b = BUF + 16 * ((4 * i + st) % 2)
            if kind == 'ssm':
                L = [f"ds_read_b128 {a(16*i+4*f,4)}, {v(RX+(f>>1))} offset:{slot+(f&1)*2048}" for f in {0: (0, 1), 1: (2,), 2: (3,), 3: ()}[st]]
                L += [f"ds_read_b128 {v(b+4*tl,4)}, {v(RX+2+(st>>1))} offset:{slot+16384+(st&1)*8192+tl*2048}" for tl in range(4)]
                if i % 2 == 1: L.append(f"v_xor_b32 {v(RX+(0, 2, 1, 3)[st])}, 0x10000, {v(RX+(0, 2, 1, 3)[st])}")
                return L
            s_, hv = st >> 1, st & 1
            wb = TM2 + 8 * hv
            rot = lambda r: [f"v_xor_b32 {v(r)}, 0x10000, {v(r)}"] if i % 2 == 1 else []
            tr = lambda tl: [f"ds_read_b64_tr_b16 {v(wb+4*tl+2*sec,2)}, {v(RB16[tl])} offset:{slot+16384+hv*8192+s_*4096+sec*512}" for sec in range(2)]
            if hv == 0:
                xr = [f"ds_read_b128 {v(BUF+16*s_+4*r,4)}, {v(RA16[s_])} offset:{slot+r*2048}" for r in range(4)]
                return tr(0) + xr + tr(1) + rot(RA16[s_])
            L = tr(0) + tr(1) + [f"ds_read_b128 {a(16*i+4*f,4)}, {v(RX+f)} offset:{slot}" for f in (2 * s_, 2 * s_ + 1)]
            return L + rot(RX + 2 * s_) + rot(RX + 2 * s_ + 1) + (rot(RB16[0]) + rot(RB16[1]) if s_ else [])
        def mfmas(i, st):
            b = BUF + 16 * ((4 * i + st) % 2)
            L = []
            if kind == 'ssm':
                for tl in range(4):
                    for r in ((1, 0) if tl & 1 and opt.get('snake', 1) else (0, 1)):
                        d = v(ACC + 16 * (2 * (st & 1) + (tl & 1)) + 8 * (tl >> 1) + 4 * r, 4)
                        L.append(f"v_mfma_f32_16x16x32_bf16 {d}, {a(16*i+8*(st>>1)+4*r,4)}, {v(b+4*tl,4)}, {'0' if i == 0 and st < 2 else d}")
                return L
            for tl in range(2):
                for r in ((3, 2, 1, 0) if tl and opt.get('snake', 1) else (0, 1, 2, 3)):
                    d = v(ACC + 32 * (st & 1) + 16 * tl + 4 * r, 4)
                    c = d if i or st > 1 else ("0" if st else "1.0")
                    L.append(f"v_mfma_f32_16x16x32_bf16 {d}, {v(BUF+16*(st>>1)+4*r,4)}, {v(TM2+8*(st&1)+4*tl,4)}, {c}")
            return L
        prev = None
        ET = opt.get('et', 2)
        eX, eW = TMP + 62, TMP + 63 if kind != 'ssm' else TMP + 59
        if kind == 'ssm': eX = TMP + 58
        def etouch(mask):
            A(f"s_mov_b64 exec, {mask:#x}")
            A(f"buffer_load_dword {v(eX-1)}, {v(eX)}, {s(R_X,4)}, 0 offen")
            A(f"buffer_load_dword {v(eX-1)}, {v(eW)}, {s(R_W,4)}, 0 offen")
            A("s_mov_b64 exec, -1")
        tsched = {}
        AT = opt.get('at1', 0)
        if AT and kind == 'ssm': ET = 0
        if AT and kind != 'ssm':
            eB = TMP + 53
            cl = {0: [2, 3, 4, 5, 6, 7, 0, 0], 2: [1, 5, 2, 6, 3, 7, 0, 0]}[G_]
            tab = sum(c_ << (4 * n_) for n_, c_ in enumerate(cl))
            A(f"s_mov_b32 {s(sT0)}, {tab:#x}")
            A(f"v_and_b32 {v(t1)}, 28, {v(vL)}"); A(f"v_bfe_u32 {v(t1)}, {s(sT0)}, {v(t1)}, 4")
            A(f"v_and_b32 {v(t0)}, 3, {v(vL)}"); A(f"v_lshlrev_b32 {v(t2)}, 7, {v(t1)}")
            A(f"v_lshl_add_u32 {v(eX)}, {v(t0)}, 10, {v(t2)}")
            A(f"v_and_b32 {v(t0)}, 1, {v(vL)}"); A(f"v_lshl_add_u32 {v(eB)}, {v(t0)}, 10, {v(t2)}")
            A(f"v_mul_u32_u24 {v(t0)}, 3072, {v(t0)}"); A(f"v_mul_u32_u24 {v(t1)}, {64*3072}, {v(t1)}"); A(f"v_add_u32 {v(t0)}, {v(t0)}, {v(t1)}")
            A(f"s_lshl3_add_u32 {s(sT0)}, {s(sTT)}, {s(sJ)}"); A(f"s_lshl_b32 {s(sT0)}, {s(sT0)}, 12"); A(f"v_add_u32 {v(eX)}, {s(sT0)}, {v(eX)}")
            A(f"s_mul_i32 {s(sT1)}, {s(sC)}, {2*3072}"); A(f"s_add_u32 {s(sT1)}, {s(sT1)}, {s(sWO)}")
            A(f"s_mul_i32 {s(sCNT)}, {s(sK0)}, {64*3072}"); A(f"s_sub_u32 {s(sT1)}, {s(sT1)}, {s(sCNT)}"); A(f"v_add_u32 {v(eW)}, {s(sT1)}, {v(t0)}")
            A(f"s_lshr_b32 {s(sT0)}, {s(sW)}, 1"); A(f"s_lshl1_add_u32 {s(sT0)}, {s(sJ)}, {s(sT0)}"); A(f"s_lshl4_add_u32 {s(sT0)}, {s(sT0)}, {s(sC)}")
            A(f"s_lshl_b32 {s(sT0)}, {s(sT0)}, 11"); A(f"v_add_u32 {v(eB)}, {s(sT0)}, {v(eB)}")
            A(f"s_cmp_eq_u32 {s(sKH)}, 0"); A(f"s_cselect_b64 {s(P_BRE,2)}, {s(P_BRE,2)}, {s(P_BIM,2)}")
            def etouch(sets):
                for k_ in (1, 2, 3):
                    if not sets >> k_ & 1: continue
                    A(f"s_mov_b64 exec, {0xff << (8 * (k_ - 1)):#x}")
                    A(f"buffer_load_dword {v(eX-1)}, {v(eX)}, {s(R_X,4)}, 0 offen")
                    A(f"global_load_dword {v(eX-1)}, {v(eB)}, {s(P_BRE,2)}")
                    A(f"buffer_load_dword {v(eX-1)}, {v(eW)}, {s(R_W,4)}, 0 offen")
                A("s_mov_b64 exec, -1")
            m0_, m1_, m2_ = {1: (0, 12, 0), 2: (12, 0, 0), 3: (14, 0, 0), 4: (0, 14, 0), 5: (4, 8, 0), 6: (6, 8, 0), 7: (2, 12, 0)}[AT]
            if m0_: etouch(m0_)
        elif ET and PAIR:
            rs, ws_ = (1024, 128) if kind == 'ssm' else (3072, 64 * 3072)
            A(f"v_and_b32 {v(t0)}, 1, {v(vL)}"); A(f"v_bfe_u32 {v(t1)}, {v(vL)}, 1, 3")
            A(f"v_lshlrev_b32 {v(t2)}, 7, {v(t1)}"); A(f"v_lshl_add_u32 {v(t2)}, {v(t0)}, 10, {v(t2)}")
            if kind != 'ssm':
                A(f"v_mul_u32_u24 {v(t0)}, {rs}, {v(t0)}"); A(f"v_mul_u32_u24 {v(t1)}, {ws_}, {v(t1)}"); A(f"v_add_u32 {v(t0)}, {v(t0)}, {v(t1)}")
            A(f"s_lshl1_add_u32 {s(sT0)}, {s(sJ)}, {s(sTY)}"); A(f"s_lshl4_add_u32 {s(sT0)}, {s(sTT)}, {s(sT0)}"); A(f"s_lshl_b32 {s(sT0)}, {s(sT0)}, 11")
            A(f"s_mul_i32 {s(sT1)}, {s(sC)}, {2*rs}"); A(f"s_add_u32 {s(sT1)}, {s(sT1)}, {s(sWO)}")
            A(f"s_mul_i32 {s(sCNT)}, {s(sK0)}, {ws_}"); A(f"s_sub_u32 {s(sT1)}, {s(sT1)}, {s(sCNT)}")
            A(f"v_add_u32 {v(eW)}, {s(sT1)}, {v(t2 if kind == 'ssm' else t0)}"); A(f"v_add_u32 {v(eX)}, {s(sT0)}, {v(t2)}")
            m0_, m2_ = 0, 0
            m1_, tsched = {1: (0xfff0, {}), 2: (0xf0, {1: 0xf00, 3: 0xf000}), 3: (0xf0, {1: 0xff00}), 4: (0xff0, {1: 0xf000}), 5: (0xf0, {0: 0xf00, 2: 0xf000})}[ET]
        elif ET:
            assert 0 < U1C <= 4
            rs, ws_ = (1024, 128) if kind == 'ssm' else (3072, 64 * 3072)
            A(f"v_and_b32 {v(t0)}, 3, {v(vL)}"); A(f"v_bfe_u32 {v(t1)}, {v(vL)}, 2, 2")
            A(f"v_lshlrev_b32 {v(t2)}, 7, {v(t1)}"); A(f"v_lshl_add_u32 {v(t2)}, {v(t0)}, 10, {v(t2)}")
            if kind != 'ssm':
                A(f"v_mul_u32_u24 {v(t0)}, {rs}, {v(t0)}"); A(f"v_mul_u32_u24 {v(t1)}, {ws_}, {v(t1)}"); A(f"v_add_u32 {v(t0)}, {v(t0)}, {v(t1)}")
            A(f"s_and_b32 {s(sT0)}, {s(sJ)}, 6"); A(f"s_add_u32 {s(sT0)}, {s(sT0)}, {s(sTY)}"); A(f"s_lshl_b32 {s(sT0)}, {s(sT0)}, 12")
            A(f"s_add_u32 {s(sT0)}, {s(sT0)}, {s(sXO)}")
            A(f"s_lshr_b32 {s(sT1)}, {s(sC)}, 1"); A(f"s_mul_i32 {s(sT1)}, {s(sT1)}, {4*rs}"); A(f"s_add_u32 {s(sT1)}, {s(sT1)}, {s(sWO)}")
            A(f"s_add_u32 {s(sT1)}, {s(sT1)}, {ws_}")
            A(f"v_add_u32 {v(eW)}, {s(sT1)}, {v(t2 if kind == 'ssm' else t0)}"); A(f"v_add_u32 {v(eX)}, {s(sT0)}, {v(t2)}")
            m0_, m1_, m2_ = {1: (0, 0xff0, 0), 2: (0, 0xf0, 0xf00), 3: (0xf, 0xf0, 0xf00), 4: (0xff, 0xf00, 0), 5: (0xf, 0xff0, 0), 6: (0xfff, 0, 0)}[ET]
            if m0_: etouch(m0_)
        u1s = Stream(u1); n = 0; left = 8 - U1C
        DF_ = opt.get('defer', 1)
        while fill and fill[0][0] < 0 and not (DF_ and left == 0 and fill[0][0] > -2):
            g = fill.pop(0)[1]; run(g); n += len(g)
            if n >= opt.get('u1e', 11) and left > 0:
                n = 0; left -= 1; u1s.dma()
                if left == -opt.get('pgit', 2): page_touch(kind[0])
                if left == 0 and ET and m1_: etouch(m1_); m1_ = 0
        u1s.rest(); utok.append(u1s.last)
        if ET and m1_: etouch(m1_)
        stamp(1)
        D3 = opt.get('d3', 0)
        if D3:
            u2s = Stream(unit_ops(2)); u2s.dma(D3)
        kk = [n for n, o in enumerate(tail_units[1]) if o.startswith('buffer')][(opt.get('t1s', 2) if kind == 'ssm' else opt.get('t1', 8)) - 1] + 1
        tail_units[1], leftover = tail_units[1][:kk], tail_units[1][kk:]
        T0 = opt.get('t0s', 8) if kind == 'ssm' else 8
        if T0 < 8:
            kk = [n for n, o in enumerate(tail_units[0]) if o.startswith('buffer')][T0 - 1] + 1
            tail_units[0], tail_units[1] = tail_units[0][:kk], tail_units[0][kk:] + tail_units[1]
        streams = [Stream(unit_ops(i + 2) if i + 2 < 8 else tail_units[i - 6]) for i in range(8)]
        for i in range(8):
            nxt = streams[i]
            if D3 and i == 0: nxt = Stream(u2s.ops + unit_ops(3)); tok2 = A.vm + 8 - D3
            if D3 and i == 1: nxt = Stream([])
            nxt.salu()
            if i and i == opt.get('pgit', 2): page_touch(kind[0])
            if opt.get('xnop') and i >= 3:
                for _ in range(opt['xnop']): A("s_nop 15")
            A.wait(vm=utok[i])
            A("s_barrier")
            if opt.get('marks'): A.label(f"M_{kind}_{i}")
            stamp(30 + i)
            burst = i < opt.get('burst', 1)
            tdone = False
            for st in range(4):
                rd = reads(i, st)
                if prev is None:
                    run(rd); prev = (i, st, A.lg); nxt.dma(4 if burst else 2); nxt.salu(); continue
                ms = mfmas(prev[0], prev[1])
                need = lambda L_: max(A.pend_lg.get(r, 0) for o in L_ for r in Ins(o).srcAB)
                wts = {0: need(ms[:4]), 4: need(ms[4:])} if opt.get('fw', 1) else {0: prev[2]}
                split = opt.get('sa', [3, 1, 1, 1, 0, 2, 0, 9]) if kind == 'attn' else opt.get('ss', [1, 1, 1, 1, 0, 1, 0, 9])
                fper = opt.get('fa', [0, 1, 1, 0, 0, 0, 0, 0]) if kind == 'attn' else opt.get('fs', [1, 1, 1, 0, 0, 1, 0, 0])
                dgap = opt.get('dga', [4, 6]) if kind == 'attn' else opt.get('dgs', [4, 6])
                for tl in range(len(ms)):
                    if tl in wts: A.wait(lg=wts[tl])
                    A(ms[tl])
                    run(rd[:split[tl]]); rd = rd[split[tl]:]
                    if tl in dgap or (burst and tl % 2 == dgap[0] % 2): nxt.dma()
                    elif not rd or split[tl] == 0:
                        nxt.salu()
                        if not nxt.ops and i < 7 and not D3: streams[i + 1].salu()
                    n = fper[tl]
                    while n > 0 and fill and 0 <= fill[0][0] <= i:
                        g = fill.pop(0)[1]
                        run(g); n -= len(g)
                assert not rd
                prev = (i, st, A.lg)
                if not nxt.ops and not tdone:
                    tdone = True; utk = A.vm
                    if i == 0 and ET and m2_: etouch(m2_)
                    if i in tsched: etouch(tsched[i])
                    if i == opt.get('wta', -1): A(f"global_load_dword {v(vJ)}, {v(vJ)}, {s(P_BX,2)}")
            nxt.rest()
            n = opt.get('dn', 200)
            while fill and fill[0][0] <= min(i, 0) and n > 0 and (fill[0][0] < 0 or DF_):
                g = fill.pop(0)[1]; run(g); n -= len(g)
            if D3 and i == 0: utok += [tok2, A.vm]
            elif not (D3 and i == 1): utok.append(nxt.last)
        assert not fill, len(fill)
        A.wait(lg=prev[2])
        run(mfmas(prev[0], prev[1]))
        return utok, leftover

    def weight_touch(F, ssm):
        if not opt.get('wt', 2): return
        it = F.it
        F.it = -1
        if opt.get('wt', 2) == 2:
            if ssm == (opt.get('wtr', 0) == 0) and opt.get('wtit', 7) < 8:
                F(f"s_lshl3_add_u32 {s(sCNT)}, {s(sC)}, {s(sJ)}"); F(f"s_lshl_b32 {s(sCNT)}, {s(sCNT)}, 12")
                F(f"s_cmp_lt_u32 {s(sW)}, 2", f"s_cselect_b64 {s(P_BX,2)}, {s(R_C,2)}, {s(P_WO,2)}", f"s_cselect_b32 {s(sD0)}, 1, 2")
                F(f"v_lshrrev_b32 {v(vJ)}, {s(sD0)}, {v(vL)}"); F(f"v_lshl_add_u32 {v(vJ)}, {v(vJ)}, 7, {s(sCNT)}")
                F(f"s_cmp_eq_u32 {s(sW)}, 3", f"s_cselect_b32 {s(sD0)}, 0x800, 0"); F(f"v_add_u32 {v(vJ)}, {s(sD0)}, {v(vJ)}")
                F.it = opt.get('wtit', 7) - 0.5
                F(f"global_load_dword {v(vJ)}, {v(vJ)}, {s(P_BX,2)}")
                F.it = -1
            if ssm == (opt.get('wqr', 0) == 0):
                F(f"s_and_b32 {s(sCNT)}, {s(sTT)}, 31")
                F(f"s_mul_i32 {s(sCNT)}, {s(sCNT)}, {16*24}"); F(f"s_add_u32 {s(sCNT)}, {s(sCNT)}, {s(sJ)}"); F(f"s_lshl_b32 {s(sCNT)}, {s(sCNT)}, 7")
                F(f"v_lshrrev_b32 {v(vF)}, 2, {v(vL)}"); F(f"v_mul_u32_u24 {v(vF)}, 3072, {v(vF)}"); F(f"v_add_u32 {v(vF)}, {s(sCNT)}, {v(vF)}")
                F(f"s_mov_b64 {s(P_WO,2)}, {s(P_QKV,2)}")
                F.it = opt.get('wqit', 1) - 0.5
                F(f"global_load_dword {v(vF)}, {v(vF)}, {s(P_WO,2)}")
            F.sort(key=lambda e: e[0])
            F.it = it
            return
        F(f"s_lshl3_add_u32 {s(sCNT)}, {s(sRB)}, {s(sNB)}")
        F(f"v_lshrrev_b32 {v(vJ)}, 2, {v(vL)}")
        F(f"s_lshl_b32 {s(sCNT)}, {s(sCNT)}, 4")
        F(f"v_add_u32 {v(vJ)}, {s(sCNT)}, {v(vJ)}")
        F(f"v_lshrrev_b32 {v(vF)}, 3, {v(vJ)}")
        F(f"v_lshlrev_b32 {v(vJ)}, 7, {v(vJ)}")
        F(f"s_cmp_eq_u32 {s(sW)}, 3", f"s_cselect_b32 {s(sCNT)}, 0x800, 0", f"s_cselect_b64 {s(P_BX,2)}, {s(P_QKV,2)}, {s(P_WO,2)}")
        F(f"v_mad_u32_u24 {v(vJ)}, {v(vF)}, {s(sCNT)}, {v(vJ)}")
        F(f"s_cmp_lt_u32 {s(sW)}, 2", f"s_cselect_b64 {s(P_BX,2)}, {s(R_C,2)}, {s(P_BX,2)}")
        F.sort(key=lambda e: e[0])
        F.it = opt.get('wtit', 7) - 0.5
        if opt.get('wta', -1) < 0: F(f"global_load_dword {v(vJ)}, {v(vJ)}, {s(P_BX,2)}")
        F.sort(key=lambda e: e[0])
        F.it = it
    class Fill(list):
        it = -1
        def __call__(self, *ops): self.append((self.it, list(ops)))
    def epoch_load():
        A("s_mov_b64 exec, 1")
        A(f"global_load_dword {v(vE)}, {v(vZ)}, {s(P_WS,2)} sc1")
        A("s_mov_b64 exec, -1")
    def get_tag(F):
        F(f"v_readfirstlane_b32 {s(sTAG)}, {v(vE)}")
        F(f"s_mul_i32 {s(sTAG)}, {s(sTAG)}, 0x9E3779B5")
        F(f"s_add_u32 {s(sTAG)}, {s(sTAG)}, 0x7F4A7C15")
        F(f"v_mov_b32 {v(vTAG)}, {s(sTAG)}")
    def cmul4(F, d, x, y):
        if F.it < 0:
            for o in cmul_ops(d, x, y): F(o)
            return
        F(f"v_mul_f32 {v(d)}, {v(x)}, {v(y)}")
        F(f"v_mul_f32 {v(d+1)}, {v(x)}, {v(y+1)}")
        F(f"v_fma_f32 {v(d)}, -{v(x+1)}, {v(y+1)}, {v(d)}")
        F(f"v_fmac_f32 {v(d+1)}, {v(x+1)}, {v(y)}")
    def p2_early(F, junk):
        it = F.it; F.it = -0.9
        F(f"s_lshr_b32 {s(sTT2)}, {s(sW)}, 1"); F(f"s_lshl1_add_u32 {s(sTT2)}, {s(sRB)}, {s(sTT2)}")
        F(f"s_lshl1_add_u32 {s(sHFA)}, {s(sTT2)}, {s(sKH)}"); F(f"s_lshl_b32 {s(sHFA)}, {s(sHFA)}, 10"); F(f"s_add_u32 {s(sHFA)}, {s(sHFA)}, {WS_HF}")
        F(f"s_mul_i32 {s(sHB)}, {s(sTT2)}, 3"); F(f"s_add_u32 {s(sHB)}, {s(sHB)}, {s(sKH)}")
        F(f"s_and_b32 {s(sXT)}, {s(sNB)}, {RM}"); F(f"s_lshl2_add_u32 {s(sHB)}, {s(sHB)}, {s(sXT)}")
        F(f"s_lshl_b32 {s(sHB)}, {s(sHB)}, 13"); F(f"s_add_u32 {s(sHB)}, {s(sHB)}, {WS_ACT}")
        F(f"s_lshl2_add_u32 {s(sXT)}, {s(sRB)}, {s(sW)}"); F(f"s_lshl_b32 {s(sXT)}, {s(sXT)}, 7"); F(f"s_add_u32 {s(sXT)}, {s(sXT)}, {s(sNB)}")
        F(f"s_lshl_b32 {s(sXT)}, {s(sXT)}, 7")
        F(f"s_lshr_b32 {s(sXM)}, {s(sMX)}, 1"); F(f"s_add_u32 {s(sXM)}, {s(sXM)}, {XS}")
        F(f"s_lshl1_add_u32 {s(sCOL)}, {s(sNB)}, {s(sKH)}"); F(f"s_lshl_b32 {s(sCOL)}, {s(sCOL)}, 6")
        if opt.get('tlb', 0):
            F.it = opt.get('tlbit', 1) - 0.45
            for r in (R_C, R_WO, R_OUT): F(f"buffer_load_dword {v(junk)}, {v(vZ)}, {s(r,4)}, {s(sWOB)} offen")
        F.it = opt.get('dsit', 0 if junk == TMP + 57 else 1) - 0.4
        F(f"v_and_b32 {v(vE)}, 31, {v(vL)}")
        F(f"v_lshl_add_u32 {v(vE)}, {v(vE)}, 1, {s(sCOL)}")
        F(f"global_load_ushort {v(vE)}, {v(vE)}, {s(P_DSK,2)}")
        F.sort(key=lambda e: e[0])
        F.it = it
    def p2_setup():
        A(f"s_mov_b32 m0, {s(sXM)}")
        for q in range(2): A(dma(VN, R_X, sXT, q))
    def p2_late():
        L = []
        B = lambda *o: L.append(list(o))
        B(f"s_and_b32 {s(sT0)}, {s(sMX)}, 8192"); B(f"s_lshr_b32 {s(sT0)}, {s(sT0)}, 1"); B(f"s_add_u32 {s(sT0)}, {s(sT0)}, {XS}")
        B(f"s_lshl_b32 {s(sT1)}, {s(sKH)}, 6")
        B(f"v_xor_b32 {v(AD+10)}, {s(sT1)}, {v(RN)}")
        B(f"v_add_u32 {v(AD+10)}, {s(sT0)}, {v(AD+10)}")
        B(f"v_xor_b32 {v(AD+11)}, 32, {v(AD+10)}")
        for q in range(4): B(f"v_mov_b64 {v(DF+2*q,2)}, 0")
        B(f"v_mov_b32 {v(vE+1)}, 0")
        B(f"v_and_b32 {v(t6)}, 48, {v(vL16)}")
        B(f"v_lshlrev_b64 {v(t4,2)}, {v(t6)}, {v(vE,2)}")
        for q in range(4):
            m = 0xf << (16 * (q >> 1) + 4 * (q & 1))
            B(f"s_mov_b32 exec_lo, {m:#x}", f"s_mov_b32 exec_hi, {m << 8:#x}", f"v_mov_b64 {v(DF+2*q,2)}, {v(t4,2)}", "s_mov_b64 exec, -1")
        B(f"v_and_b32 {v(t0)}, 31, {v(vL)}")
        B(f"v_lshrrev_b32 {v(t1)}, 5, {v(vL)}")
        B(f"v_lshlrev_b32 {v(AD+7)}, 2, {v(t0)}")
        B(f"s_lshl_b32 {s(sT1)}, {s(sW)}, 7"); B(f"s_add_u32 {s(sT1)}, {s(sT1)}, {SCR+16384}")
        B(f"v_lshl_add_u32 {v(AD+2)}, {v(t1)}, 4, {s(sT1)}")
        B(f"v_add_u32 {v(AD)}, {s(sT1)}, {v(AD+7)}")
        B(f"v_lshl_add_u32 {v(t2)}, {s(sCOL)}, 1, {v(AD+7)}")
        B(f"v_lshl_add_u32 {v(AD+1)}, {v(t1)}, 13, {v(t2)}")
        B(f"s_xor_b32 {s(sT0)}, {s(sMX)}, 4096"); B(f"s_add_u32 {s(sT0)}, {s(sT0)}, {SCR}")
        B(f"v_add_u32 {v(AD+4)}, {s(sT0)}, {v(vL16)}")
        B(f"v_xor_b32 {v(AD+5)}, 4096, {v(AD+4)}")
        B(f"s_mul_i32 {s(sU1)}, {s(sTT2)}, 6"); B(f"s_add_u32 {s(sU1)}, {s(sU1)}, {s(sKH)}")
        B(f"s_and_b32 {s(sT0)}, {s(sJ)}, 1"); B(f"s_lshl_b32 {s(sT0)}, {s(sT0)}, 1"); B(f"s_and_b32 {s(sT1)}, {s(sNB)}, {RM}"); B(f"s_xor_b32 {s(sT0)}, {s(sT0)}, {s(sT1)}")
        B(f"s_lshl2_add_u32 {s(sU1)}, {s(sU1)}, {s(sT0)}"); B(f"s_lshl_b32 {s(sU1)}, {s(sU1)}, 12"); B(f"s_add_u32 {s(sU1)}, {s(sU1)}, {WS_ACT+65536}")
        B(f"s_lshl_b32 {s(sU2)}, {s(sTT2)}, 7"); B(f"s_add_u32 {s(sU2)}, {s(sU2)}, {WS_G}")
        return L
    sHFA, sHB, sXT, sXM, sCOL = P_X + 1, P_WS, P_WS + 1, P_QKV, P_QKV + 1
    XS = SCR + 24576
    sFM = sMW; sTT2 = P_X; XF = TM2 + 16; DF = TM2 + 24

    def cmul_ops(dst, x, y, add=None):
        if add is None: o = f"v_pk_mul_f32 {v(dst,2)}, {v(x,2)}, {v(y,2)} op_sel_hi:[0,1]"
        else: o = f"v_pk_fma_f32 {v(dst,2)}, {v(x,2)}, {v(y,2)}, {v(add,2)} op_sel_hi:[0,1,1]"
        return [o, f"v_pk_fma_f32 {v(dst,2)}, {v(x,2)}, {v(y,2)}, {v(dst,2)} op_sel:[1,1,0] op_sel_hi:[1,0,1] neg_lo:[0,1,0]"]
    def cmul(*a_): run(cmul_ops(*a_))

    def spin(name, load, check):
        A(f"s_mov_b32 {s(sCNT)}, {SPIN}")
        A.label(name)
        load()
        A.wait_all(vm=True, lg=False, force=True)
        check()
        A(f"s_sub_u32 {s(sCNT)}, {s(sCNT)}, 1")
        A(f"s_cbranch_scc1 {name}_x")
        A(f"s_cbranch_vccnz {name}")
        A.label(name + "_x")
    def flag_store(soff, mask=1, voff=vZ):
        A(f"s_mov_b64 exec, {mask}")
        A(f"buffer_store_dword {v(vTAG)}, {v(voff)}, {s(R_WS,4)}, {s(soff)} offen sc1")
        A("s_mov_b64 exec, -1")
    def flag_addr(F, dst, tmp, base):
        F(f"s_lshr_b32 {s(tmp)}, {s(sJ)}, 2"); F(f"s_lshl1_add_u32 {s(dst)}, {s(sTT)}, {s(tmp)}"); F(f"s_lshl_b32 {s(dst)}, {s(dst)}, 8")
        F(f"s_and_b32 {s(tmp)}, {s(sJ)}, 3"); F(f"s_add_u32 {s(dst)}, {s(dst)}, {s(tmp)}"); F(f"s_lshl2_add_u32 {s(dst)}, {s(dst)}, {base}")
        if opt.get('ft', 1): F(f"s_load_dword s8, {s(R_WS,2)}, {s(dst)} glc")

    def page_touch(r):
        if opt.get('nopg', 1): return
        A("s_mov_b64 exec, 0")
        for n in range(2):
            A(f"s_cmp_eq_u32 {s(sW)}, {n}")
            A(f"s_cbranch_scc1 L_pg_{r}_{n}")
        if r == 'a':
            A(f"s_cmp_eq_u32 {s(sW)}, 2")
            A("s_cbranch_scc1 L_phase2")
        A.label(f"L_pgret_{r}")
        A("s_mov_b64 exec, -1")
    sP = 8
    def sflag(soff, off=0): A(f"s_atomic_swap {s(sTAG)}, {s(R_WS,2)}, {s(soff)}" + (f" offset:{off}" if off else ""))
    def ssample(n):
        A({4: f"s_load_dwordx4 {s(sP,4)}, {s(R_WS,2)}, {s(sHFA)} glc", 5: f"s_load_dwordx8 {s(sP,8)}, {s(R_WS,2)}, {s(sHFA)} offset:{WS_OF-WS_HF} glc",
           16: f"s_load_dwordx16 {s(sP,16)}, {s(R_WS,2)}, {s(sU0)} glc"}[n])
    def scheck(n):
        A.wait_all(vm=False, lg=True, force=True)
        for q in range(n): A(f"s_xor_b32 {s(sP+q)}, {s(sP+q)}, {s(sTAG)}")
        if n == 5: A(f"s_or_b32 {s(sP)}, {s(sP)}, {s(sP+4)}")
        for q in range(2, n - 1, 2): A(f"s_or_b64 {s(sP,2)}, {s(sP,2)}, {s(sP+q,2)}")
    def sspin(name, n):
        A(f"s_mov_b32 {s(sCNT)}, {SPIN}")
        A.label(name)
        A(f"s_sub_u32 {s(sCNT)}, {s(sCNT)}, 1")
        A(f"s_cbranch_scc1 {name}_x")
        ssample(n); scheck(n)
        A(f"s_cbranch_scc1 {name}")
        A.label(name + "_x")
    def poll_issue(): ssample(4)
    AHEAD = opt.get('ahead', 10)
    GG = TM2
    def load_ops(n):
        o = []
        if n < 32:
            if n % 4 == 0 and n: o.append(f"s_xor_b32 {s(sHB)}, {s(sHB)}, {((n//4) ^ (n//4-1)) << 12}")
            o.append(f"buffer_load_dwordx4 {a(4*n,4)}, {v(vL16)}, {s(R_WS,4)}, {s(sHB)} offen offset:{(n%4)*1024} sc1")
        else:
            k = n - 32
            if k == 0: o.append(f"buffer_load_dword {v(vE)}, {v(AD+7)}, {s(R_WS,4)}, {s(sU2)} offen sc1")
            if k % 4 == 0 and k: o.append(f"s_xor_b32 {s(sU1)}, {s(sU1)}, {0x3000 if k == 8 else 0x1000}")
            o.append(f"buffer_load_dwordx4 {v(TMP+4*k,4)}, {v(vL16)}, {s(R_WS,4)}, {s(sU1)} offen offset:{(k%4)*1024} sc1")
        return o
    def creads(ks):
        jb, m, st = ks >> 3, (ks >> 1) & 3, ks & 1
        ct, cp = m >> 1, m & 1
        b = BUF + 8 * (ks % 4)
        off = jb * 16384 + cp * 8192
        return [f"ds_read_b128 {v(b,4)}, {v(RA+2*ct+st)} offset:{off}", f"ds_read_b128 {v(b+4,4)}, {v(RB+2*ct+st)} offset:{off}"]
    def p2_head(late_flag):
        ltok = []; old = A.vm
        def ld1(): ltok.append(run(load_ops(len(ltok))))
        for k in range(3): ld1()
        n = 0
        for g in p2_late():
            run(g); n += len(g)
            if n >= 10 and len(ltok) < AHEAD - 1: n = 0; ld1()
        while len(ltok) < AHEAD: ld1()
        A.wait(vm=old)
        late_flag("L_noflag2")
        A("s_barrier")
        for q in range(2): tx = A(f"ds_read_b128 {v(XF+4*q,4)}, {v(AD+10+q)}")
        ctok = [run(creads(k)) for k in range(3)]
        A.wait(lg=tx)
        for q in range(2): A(f"v_mfma_f32_32x32x16_bf16 {v(ACC,16)}, {v(XF+4*q,4)}, {v(DF+4*q,4)}, {'0' if q == 0 else v(ACC,16)}")
        while len(ltok) < AHEAD: ld1()
        return ltok, ctok
    KCHK = 32 - AHEAD
    def step2a(ks, more, ltok, ctok, chk=False):
        A.wait(vm=ltok[ks], lg=ctok[ks])
        stamp(100 + ks)
        b = BUF + 8 * (ks % 4)
        A(f"v_mfma_f32_32x32x16_bf16 {v(ACC,16)}, {a(4*ks,4)}, {v(b,4)}, {v(ACC,16)}")
        if more: ltok.append(run(load_ops(ks + AHEAD)))
        A(f"v_mfma_f32_32x32x16_bf16 {v(ACC+16,16)}, {a(4*ks,4)}, {v(b+4,4)}, {'0' if ks == 0 else v(ACC+16,16)}")
        if chk: scheck(5)
        if ks + 3 < 32: ctok.append(run(creads(ks + 3)))
    A.label("L_ssm")
    LT = PR
    L1, KK, L8, L32 = PR + 8, PR + 10, PR + 12, PR + 14
    WG_ = PR + 16
    WS_ = PR + 24
    L2T, L128, KT = TMP + 32, TMP + 2, AD + 2
    def tr4(b_):
        return [f"v_permlane32_swap_b32 {v(b_+2*q+e)}, {v(b_+2*q+4+e)}" for e in range(2) for q in range(2)] + \
               [f"v_permlane16_swap_b32 {v(b_+4*q+e)}, {v(b_+4*q+2+e)}" for e in range(2) for q in range(2)]
    GWS = SCR + 20480
    F = Fill()
    F(f"s_cmp_lt_u32 {s(sW)}, 2", f"s_cselect_b32 {s(P_GW+2)}, 0x400, 0")
    F(f"s_mov_b32 {s(P_GW+3)}, 0x20000")
    GR = TMP + 60
    sHF = sEPS
    flag_addr(F, sHF, sT0, WS_HF)
    F(f"s_lshl_b32 {s(sT0)}, {s(sW)}, 9")
    F(f"v_lshlrev_b32 {v(AD)}, 3, {v(vL)}")
    F(f"v_add_u32 {v(AD)}, {SCR}, {v(AD)}")
    F(f"v_add_u32 {v(AD+1)}, {s(sT0)}, {v(AD)}")
    F(f"s_lshl4_add_u32 {s(sT2)}, {s(sJ)}, {s(sC)}"); F(f"s_lshl_b32 {s(sT2)}, {s(sT2)}, 10")
    F(f"s_add_u32 {s(sT2)}, {s(sT2)}, {WS_AGG}")
    F(f"s_mul_i32 {s(sU3)}, {s(sTT)}, 98304"); F(f"s_lshl_b32 {s(sT0)}, {s(sJ)}, 13"); F(f"s_add_u32 {s(sU3)}, {s(sU3)}, {s(sT0)}")
    F(f"s_add_u32 {s(sU3)}, {s(sU3)}, {WS_ACT}")
    F.it = -2
    F(f"v_and_b32 {v(t0)}, 15, {v(vL)}"); F(f"v_lshrrev_b32 {v(t1)}, 4, {v(vL)}"); F(f"v_lshrrev_b32 {v(t2)}, 1, {v(t0)}")
    F(f"v_xor_b32 {v(t2)}, {v(t2)}, {v(t1)}"); F(f"v_lshlrev_b32 {v(t2)}, 4, {v(t2)}")
    F(f"v_lshl_add_u32 {v(RX+2)}, {v(t0)}, 7, {v(t2)}"); F(f"v_xor_b32 {v(RX+3)}, 64, {v(RX+2)}")
    F(f"v_add_u32 {v(RX)}, {s(sMX)}, {v(RX+2)}"); F(f"v_add_u32 {v(RX+1)}, {s(sMX)}, {v(RX+3)}")
    F(f"v_lshlrev_b32 {v(t0)}, 4, {v(t0)}"); F(f"v_lshl_add_u32 {v(RT)}, {v(t1)}, 9, {v(t0)}")
    F.it = -1
    F(f"v_cvt_f32_u32 {v(t6)}, {s(sW)}")
    F(f"v_mul_f32 {v(t6)}, 0x42000000, {v(t6)}")
    F(lambda: A.wait(vm=tokP))
    get_tag(F)
    F(f"v_lshlrev_b32 {v(pLRE)}, 16, {v(pLRE)}")
    F(f"v_lshlrev_b32 {v(pLIM)}, 16, {v(pLIM)}")
    F(f"v_lshlrev_b32 {v(pLDT)}, 16, {v(pLDT)}")
    F(f"v_xor_b32 {v(pLIM)}, 0x80000000, {v(pLIM)}")
    F(f"v_mul_f32 {v(t0)}, 0x3fb8aa3b, {v(pLDT)}")
    F(f"v_exp_f32 {v(t0)}, {v(t0)}")
    F(f"v_mul_f32 {v(t5)}, {v(pLRE)}, {v(pLRE)}")
    F(f"v_cvt_pk_bf16_f32 {v(t0)}, {v(t0)}, {v(t0)}")
    F(f"v_and_b32 {v(t0)}, 0xffff0000, {v(t0)}")
    EXA, EXB = TMP, TMP + 1
    F(f"v_mul_f32 {v(EXA)}, {v(t0)}, {v(pLRE)}")
    F(f"v_mul_f32 {v(EXB)}, {v(t0)}, {v(pLIM)}")
    F(f"v_mul_f32 {v(EXA)}, 0x3fb8aa3b, {v(EXA)}")
    F(f"v_mul_f32 {v(EXB)}, 0.15915494, {v(EXB)}")
    def cexp(d, ea, eb):
        F(f"v_exp_f32 {v(t1)}, {v(ea)}")
        F(f"v_rndne_f32 {v(t3)}, {v(eb)}")
        F(f"v_sub_f32 {v(t2)}, {v(eb)}, {v(t3)}")
        F(f"v_cos_f32 {v(t3)}, {v(t2)}")
        F(f"v_sin_f32 {v(t4)}, {v(t2)}")
        F(f"v_mul_f32 {v(d)}, {v(t1)}, {v(t3)}")
        F(f"v_mul_f32 {v(d+1)}, {v(t1)}, {v(t4)}")
    cexp(L1, EXA, EXB)
    F(f"v_fmac_f32 {v(t5)}, {v(pLIM)}, {v(pLIM)}")
    F(f"v_rcp_f32 {v(t0)}, {v(t5)}")
    F(f"v_add_f32 {v(t1)}, -1.0, {v(L1)}")
    F(f"v_add_f32 {v(t0)}, {v(t0)}, {v(t0)}")
    F(f"v_mul_f32 {v(t2)}, {v(t1)}, {v(pLRE)}")
    F(f"v_fmac_f32 {v(t2)}, {v(L1+1)}, {v(pLIM)}")
    F(f"v_mul_f32 {v(t3)}, {v(L1+1)}, {v(pLRE)}")
    F(f"v_fma_f32 {v(t3)}, -{v(t1)}, {v(pLIM)}, {v(t3)}")
    F(f"v_mul_f32 {v(KK)}, {v(t2)}, {v(t0)}")
    F(f"v_mul_f32 {v(KK+1)}, {v(t3)}, {v(t0)}")
    cmul4(F, L2T, L1, L1); cmul4(F, t2, L2T, L2T); cmul4(F, L8, t2, t2); cmul4(F, t0, L8, L8)
    cmul4(F, L32, t0, t0); cmul4(F, t0, L32, L32); cmul4(F, L128, t0, t0)
    F(f"v_mul_f32 {v(EXA)}, {v(EXA)}, {v(t6)}"); F(f"v_mul_f32 {v(EXB)}, {v(EXB)}, {v(t6)}")
    cexp(WS_, EXA, EXB)
    for q in range(1, 4): cmul4(F, WS_ + 2 * q, WS_ + 2 * q - 2, L8)
    F(f"v_mul_f32 {v(EXA)}, 0x41800000, {v(EXA)}"); F(f"v_mul_f32 {v(EXB)}, 0x41800000, {v(EXB)}")
    cexp(t6, EXA, EXB)
    cmul4(F, WG_, t6, KK)
    for q in range(1, 4): cmul4(F, WG_ + 2 * q, WG_ + 2 * q - 2, L128)
    F(f"v_mov_b32 {v(GR+1)}, {v(vTAG)}"); F(f"v_mov_b32 {v(GR+3)}, {v(vTAG)}")
    TL = []
    for (src, dst) in ((L2T, L2T), (L1, LT), (KK, KT)):
        TL += [f"v_mov_b64 {v(dst+2*q,2)}, {v(src,2)}" for q in range(4) if dst + 2 * q != src]
    TL += tr4(L2T) + tr4(LT) + tr4(KT)
    so = [sT0, sT1, sT3, sU0]; ex = [sU1, sU2, sL2E, sL2E + 1]
    for q in range(4):
        F(f"s_lshl2_add_u32 {s(so[q])}, {s(sW)}, {q+1}")
        F(f"s_lshl_b32 {s(ex[q])}, {s(so[q])}, 10")
        F(f"s_sub_u32 {s(ex[q])}, {s(sT2)}, {s(ex[q])}")
        F(f"s_cmp_le_u32 {s(so[q])}, {s(sC)}", f"s_cselect_b32 {s(so[q])}, {s(ex[q])}, {WS_SIZE}", f"s_cselect_b32 {s(ex[q])}, {s(sTAG)}, 0")
    F.it = opt.get('tlit', 1)
    for o in TL: F(o)
    weight_touch(F, True)
    p2_early(F, TMP + 57)
    utok, lo = main_loop('ssm', [wo_ops(0, 0), c_ops(1)], F)
    stamp(2)
    tok_wo = utok[9] - opt.get('t1s', 2) if opt.get('t0s', 8) < 8 else utok[8]
    SA = [TMP, TMP + 16]
    for m in range(1, 4):
        for ct in range(4):
            are, aim = ACC + 16 * ct + 2 * m, ACC + 16 * ct + 8 + 2 * m
            if m == 1: sre, sim = ACC + 16 * ct, ACC + 16 * ct + 8
            else: sre, sim = SA[m % 2] + 4 * ct, SA[m % 2] + 4 * ct + 2
            dre, dim = SA[(m + 1) % 2] + 4 * ct, SA[(m + 1) % 2] + 4 * ct + 2
            l2 = v(L2T + 2 * ct, 2)
            A(f"v_pk_fma_f32 {v(dre,2)}, {v(sre,2)}, {l2}, {v(are,2)} op_sel_hi:[1,0,1]")
            A(f"v_pk_fma_f32 {v(dim,2)}, {v(sim,2)}, {l2}, {v(aim,2)} op_sel_hi:[1,0,1]")
            A(f"v_pk_fma_f32 {v(dre,2)}, {v(sim,2)}, {l2}, {v(dre,2)} op_sel:[0,1,0]")
            A(f"v_pk_fma_f32 {v(dim,2)}, {v(sre,2)}, {l2}, {v(dim,2)} op_sel:[0,1,0] neg_lo:[0,1,0] neg_hi:[0,1,0]")
    EA = TMP + 16
    for e in range(2):
        for ct in range(4):
            b, d, l = SA[0] + 4 * ct, EA + 2 * ct, LT + 2 * ct
            if e == 0:
                A(f"v_fma_f32 {v(d)}, {v(l)}, {v(b)}, {v(b+1)}"); A(f"v_fma_f32 {v(d)}, {v(l+1)}, {v(b+2)}, {v(d)}")
            else:
                A(f"v_fma_f32 {v(d+1)}, {v(l+1)}, {v(b)}, -{v(b+3)}"); A(f"v_fma_f32 {v(d+1)}, -{v(l)}, {v(b+2)}, {v(d+1)}")
    run(tr4(EA))
    EB = t4
    cmul(t0, EA, L8, EA + 2); cmul(t2, t0, L8, EA + 4); cmul(EB, t2, L8, EA + 6)
    A(f"ds_write_b64 {v(AD+1)}, {v(EB,2)}")
    WL = opt.get('wl', 1)
    A.wait(vm=None if WL else tok_wo, lg=A.lg)
    A("s_barrier")
    EW = BUF
    tk = [A(f"ds_read_b64 {v(EW+2*q,2)}, {v(AD)} offset:{q*512}") for q in range(4)]
    PF = BUF + 8
    A(f"s_cmp_eq_u32 {s(sW)}, 0")
    A.wait(lg=tk[1]); cmul(PF, EW, L32, EW + 2)
    A.wait(lg=tk[2]); cmul(PF + 2, PF, L32, EW + 4)
    A.wait(lg=tk[3]); cmul(PF + 4, PF + 2, L32, EW + 6)
    A("s_cbranch_scc0 L_nopub")
    A(f"v_mov_b32 {v(GR)}, {v(PF+4)}"); A(f"v_mov_b32 {v(GR+2)}, {v(PF+5)}")
    snap = A.snapshot()
    A(f"buffer_store_dwordx4 {v(GR,4)}, {v(vL16)}, {s(R_WS,4)}, {s(sT2)} offen sc1")
    A.restore(snap)
    A.label("L_nopub")
    stamp(3)
    EP = opt.get('ep', 1)
    lod = []
    if opt.get('lod', 1) and lo:
        nd = 8 - sum(o.startswith('buffer') for o in lo)
        for o in c_ops(1):
            if o.startswith('buffer') and nd: nd -= 1
            else: lod.append(o)
        lo = []
    st_ = Stream(lo + wo_ops(1, 65536) + ([] if EP else c_ops(3)))
    tok_wo1 = A.vm + 8 + sum(o.startswith('buffer') for o in lo)
    st_.dma(2)
    KP = BUF + 14
    ops = [f"v_mov_b32 {v(t0)}, 0", f"v_mov_b32 {v(t1)}, 0"]
    for q, src in ((1, EW), (2, PF), (3, PF + 2)):
        ops += [f"s_cmp_eq_u32 {s(sW)}, {q}", "s_cselect_b64 exec, -1, 0", f"v_mov_b64 {v(t0,2)}, {v(src,2)}"]
    ops += ["s_mov_b64 exec, -1"]
    run(ops)
    cmul(KP, t0, KK)
    for q in range(3):
        cmul(EA + 2 * q, t0 if q == 0 else EA + 2 * q - 2, L8, EA + 2 * q); cmul(KP + 2 * q + 2, EA + 2 * q, KK)
    IF = BUF + 24
    A(f"v_mov_b32 {v(t4)}, 0x3f80"); A(f"v_mov_b32 {v(t5)}, 0"); A(f"v_and_b32 {v(t6)}, 48, {v(vL16)}")
    for q in range(4): A(f"v_mov_b64 {v(IF+2*q,2)}, 0")
    A(f"v_lshlrev_b64 {v(t4,2)}, {v(t6)}, {v(t4,2)}")
    for q in range(4):
        m = 0x0f00000f << (4 * (q & 1))
        sel_exec(0 if q >> 1 else m, m if q >> 1 else 0)
        A(f"v_mov_b64 {v(IF+2*q,2)}, {v(t4,2)}")
    A("s_mov_b64 exec, -1")
    U = TMP
    def upair(ct, k): return U + 16 * ct + 2 * k
    ops = []
    for ct in range(4):
        for k in range(8):
            re, im = ACC + 16 * ct + (k & ~1), ACC + 16 * ct + 8 + (k & ~1)
            b = k & 1
            ops.append(f"v_pk_mul_f32 {v(upair(ct,k),2)}, {v(re,2)}, {v(KT+2*ct,2)} op_sel:[{b},0] op_sel_hi:[{b},1]")
            ops.append(f"v_pk_fma_f32 {v(upair(ct,k),2)}, {v(im,2)}, {v(KT+2*ct,2)}, {v(upair(ct,k),2)} op_sel:[{b},1,0] op_sel_hi:[{b},0,1] neg_hi:[0,1,0]")
    def rw_hi(): A(f"v_add_u32 {v(RW)}, 0x10000, {v(RW)}"); A(f"v_add_u32 {v(RW+1)}, 0x10000, {v(RW+1)}")
    if EP: sprinkle(ops, st_, 7 if lo else 10)
    else: sprinkle(wo_reads(0, RW, 0) + ops, st_, 7); rw_hi()
    st_.rest()
    A(f"s_lshr_b32 {s(sD0)}, {s(sMX)}, 2"); A(f"s_add_u32 m0, {s(sD0)}, {GWS}")
    if PAIR: A(f"s_lshl_b32 {s(sD0)}, {s(sK0)}, 7"); A(f"v_xor_b32 {v(t4)}, {s(sD0)}, {v(vL16)}")
    A(f"buffer_load_dwordx4 {v(t4 if PAIR else vL16)}, {s(P_GW,4)}, 0 offen lds")
    LB = ACC
    stamp(23)
    def ld():
        for q in range(4): A(f"buffer_load_dwordx4 {v(LB+4*q,4)}, {v(vL16)}, {s(R_WS,4)}, {s(so[q])} offen sc1")
    def ck():
        A(f"v_xor_b32 {v(t0)}, {s(ex[0])}, {v(LB+1)}")
        for r in (3, 5, 7, 9, 11, 13, 15):
            A(f"v_bitop3_b32 {v(t0)}, {v(t0)}, {v(LB+r)}, {s(ex[r//4])} bitop3:0xf6")
        A(f"v_cmp_ne_u32 vcc, 0, {v(t0)}")
    ld()
    tok_p = A.vm
    if EP:
        if WL:
            A.wait(vm=tok_wo)
            A("s_barrier")
        run(wo_reads(0, RW, 0)); rw_hi()
    else:
        A.wait(vm=tok_wo1, lg=A.lg)
        A("s_barrier")
        run(wo_reads(1, RW, 0))
    A.wait(vm=tok_p)
    ck()
    A("s_nop 0")
    DY = opt.get('dyn', 0) and EP
    if DY: A(f"s_mov_b32 {s(sWST)}, 0")
    A("s_cbranch_vccz L_pagg_x")
    snap = A.snapshot()
    if DY:
        run(c_ops(3)); A(f"s_mov_b32 {s(sWST)}, 1")
    spin("L_pagg", ld, ck)
    A.restore(snap)
    stamp(4)
    for q in range(4):
        if q == 0: A(f"v_pk_mul_f32 {v(t0,2)}, {v(LB,2)}, {v(WG_,2)} op_sel_hi:[0,1]")
        else: A(f"v_pk_fma_f32 {v(t0,2)}, {v(LB+4*q,2)}, {v(WG_+2*q,2)}, {v(t0,2)} op_sel_hi:[0,1,1]")
        A(f"v_pk_fma_f32 {v(t0,2)}, {v(LB+4*q+2,2)}, {v(WG_+2*q,2)}, {v(t0,2)} op_sel:[0,1,0] op_sel_hi:[0,0,1] neg_lo:[0,1,0]")
    A(f"ds_write_b64 {v(AD+1)}, {v(t0,2)} offset:2048")
    A.wait_all(vm=False)
    A("s_barrier")
    stamp(24)
    for q in range(4): tok = A(f"ds_read_b64 {v(EW+2*q,2)}, {v(AD)} offset:{2048+q*512}")
    mid = Stream(c_ops(0))
    if opt.get('md', 2) == 2: mid.dma(4)
    A.wait(lg=tok)
    A(f"v_pk_add_f32 {v(EW,2)}, {v(EW,2)}, {v(EW+2,2)}")
    A(f"v_pk_add_f32 {v(EW+4,2)}, {v(EW+4,2)}, {v(EW+6,2)}")
    A(f"v_pk_add_f32 {v(EW,2)}, {v(EW,2)}, {v(EW+4,2)}")
    for q in range(4): cmul(KP + 2 * q, EW, WS_ + 2 * q, KP + 2 * q)
    run(tr4(KP))
    HP = ACC
    TD = [ACC + 32, TMP]
    def cvt1(p_): return [f"v_cvt_pk_bf16_f32 {v(HP+16*p_+8*cp+4*tp+k)}, {v(upair(2*p_+tp,2*k)+cp)}, {v(upair(2*p_+tp,2*k+1)+cp)}" for cp in range(2) for tp in range(2) for k in range(4)]
    def cvt2(f): return [f"v_cvt_pk_bf16_f32 {v(HP+4*f+k)}, {v(TD[f//4]+8*(f%4)+2*k)}, {v(TD[f//4]+8*(f%4)+2*k+1)}" for k in range(4)]
    def tm(p_, cp, tp, r): A(f"v_mfma_f32_16x16x32_bf16 {v(TD[p_]+16*cp+8*r+4*tp,4)}, {v(HP+16*p_+8*cp+4*tp,4)}, {v(IF+4*r,4)}, 0")
    hs = []
    def h_store(f):
        hs.append(h_store_(f)); return hs[-1]
    def h_store_(f):
        PC = opt.get('pace', 0)
        if PC and f >= max(PC, 4): A.wait(vm=hs[f - PC])
        if f == 4: A(f"s_add_u32 {s(sU3)}, {s(sU3)}, 4096")
        return A(f"buffer_store_dwordx4 {v(HP+4*f,4)}, {v(RT)}, {s(R_WS,4)}, {s(sU3)} offen offset:{(f&2)*1024+(f&1)*256} sc1")
    for ct in range(2):
        for tp in range(2):
            c4 = 2 * ct + tp
            for k in range(8): cmul(upair(c4, k), KP + 2 * c4 if k == 0 else upair(c4, k - 1), LT + 2 * c4, upair(c4, k))
        cs_ = cvt1(ct)
        run(cs_[:6]); cs_ = cs_[6:]
        f0 = 4 * ct
        for cp in range(2):
            for tp in range(2):
                for r in range(2):
                    tm(ct, cp, tp, r); run(cs_[:2]); cs_ = cs_[2:]
                    if ct == 0 and cp == 1 and opt.get('md', 2) == 1: mid.dma()
        if ct == 0: stamp(25)
        for f in range(f0, f0 + 4):
            run(cvt2(f)); tok_h = h_store(f)
    stamp(5)
    A(f"s_mov_b32 {s(sFM)}, 0")
    A(f"s_cmp_eq_u32 {s(sJ)}, 0")
    A("s_cbranch_scc0 L_nogate")
    GD = ACC + 32
    snapg = A.snapshot()
    if PAIR: A(f"s_mov_b32 {s(sT0)}, {GWS}")
    else: A(f"s_lshl_b32 {s(sT0)}, {s(sK0)}, 7"); A(f"s_add_u32 {s(sT0)}, {s(sT0)}, {GWS}")
    A(f"v_and_b32 {v(t0)}, 48, {v(vL)}")
    A(f"v_add_u32 {v(AD+8)}, {s(sT0)}, {v(t0)}")
    toks = []
    for st in range(8): toks.append(A(f"ds_read_b128 {v(BUF+4*st,4)}, {v(AD+8)} offset:{st*64}"))
    for st in range(16):
        A.wait(lg=toks[st])
        for r in range(2): A(f"v_mfma_f32_16x16x32_bf16 {v(GD+8+4*r,4)}, {v(BUF+4*(st%8),4)}, {a(8*st+4*r,4)}, {'0' if st == 0 else v(GD+8+4*r,4)}")
        if st + 8 < 16: toks.append(A(f"ds_read_b128 {v(BUF+4*(st%8),4)}, {v(AD+8)} offset:{(st+8)*64}"))
    A(f"v_bfe_u32 {v(t0)}, {v(vL)}, 4, 1"); A(f"v_bfe_u32 {v(t1)}, {v(vL)}, 2, 2"); A(f"v_and_b32 {v(t2)}, 12, {v(vL4)}")
    A(f"v_lshl_add_u32 {v(t2)}, {v(t1)}, 5, {v(t2)}")
    A(f"v_lshl_add_u32 {v(t2)}, {v(t0)}, 4, {v(t2)}")
    A(f"s_lshl_b32 {s(sT0)}, {s(sTT)}, 7"); A(f"s_add_u32 {s(sT0)}, {s(sT0)}, {WS_G}")
    A(f"s_lshl_b32 {s(sT2)}, {s(sTT)}, 11"); A(f"s_add_u32 {s(sT2)}, {s(sT2)}, {WS_OF+16}")
    A(f"s_mov_b32 {s(sFM)}, 3")
    sel_exec(0xffff0000, 0xffff0000)
    A(f"v_mov_b32 {v(GD+8)}, {v(GD+12)}")
    A("s_mov_b64 exec, -1")
    A(f"v_mul_f32 {v(t0)}, 0xbfb8aa3b, {v(GD+8)}")
    A(f"v_exp_f32 {v(t0)}, {v(t0)}")
    A(f"v_add_f32 {v(t0)}, 1.0, {v(t0)}")
    A(f"v_rcp_f32 {v(t0)}, {v(t0)}")
    A("s_nop 0")
    A(f"buffer_store_dword {v(t0)}, {v(t2)}, {s(R_WS,4)}, {s(sT0)} offen sc1")
    A("s_branch L_gated")
    A.restore(snapg)
    A.label("L_nogate")
    A(f"buffer_load_dword {v(vF)}, {v(vZ)}, {s(R_X,4)}, {s(sXT)} offen")
    A.label("L_gated")
    rest = Stream(mid.ops + (([] if DY else c_ops(3)) if EP else c_ops(2)))
    if EP: run(wo_reads(1, RW, 0))
    p2_setup()
    if EP:
        A.wait_all(vm=False)
        A("s_barrier")
        rest.ops += lod + c_ops(2)
    rest.dma(opt.get('sdrain', 8))
    A.wait(vm=tok_h)
    if opt.get('vflag', 0): flag_store(sHF)
    else: sflag(sHF)
    stamp(6)
    rest.rest()
    if DY:
        A(f"s_cmp_eq_u32 {s(sWST)}, 1")
        A("s_cbranch_scc1 L_c3done")
        run(c_ops(3)); A.vm -= 8
        A.label("L_c3done")
    stamp(26)
    poll_issue()
    A("s_branch L_phase2")

    A.restore(snap0)
    if opt.get('apad', 2152): A.raw(f".p2align 3\n.fill {opt.get('apad', 2152)//4}, 4, 0xbf800000")
    A.label("L_attn")
    epoch_load()
    F = Fill()

    NL = AD + 10
    ONES = TMP + 48
    LA = TMP + 56
    sOA, sOF, sKB, sZB = P_GW, P_GW + 1, P_OUT, P_OUT + 1
    flag_addr(F, sOF, sU3, WS_OF)
    F(f"s_lshl2_add_u32 {s(sT2)}, {s(sJ)}, {s(sW)}")
    F(f"s_lshl4_add_u32 {s(sT3)}, {s(sT2)}, {s(sC)}")
    F(f"s_lshl_b32 {s(sU1)}, {s(sT3)}, 9"); F(f"s_add_u32 {s(sU1)}, {s(sU1)}, {WS_KVP}")
    F(f"v_lshlrev_b32 {v(AD+9)}, 3, {v(vL)}")
    SUMS = TMP + 48
    F(f"v_mov_b32 {v(t4)}, 0x3f80"); F(f"v_mov_b32 {v(t5)}, 0"); F(f"v_and_b32 {v(t6)}, 48, {v(vL16)}")
    F(f"v_mov_b64 {v(SUMS,2)}, 0"); F(f"v_mov_b64 {v(SUMS+2,2)}, 0")
    F(f"v_lshlrev_b64 {v(t4,2)}, {v(t6)}, {v(t4,2)}")
    for q in range(2):
        m = 0x00f0000f << (8 * q)
        F(f"s_mov_b32 exec_lo, {m:#x}", f"s_mov_b32 exec_hi, {m:#x}", f"v_mov_b64 {v(SUMS+2*q,2)}, {v(t4,2)}", "s_mov_b64 exec, -1")
    F(f"s_lshl_b32 {s(sU2)}, {s(sT3)}, 6"); F(f"s_add_u32 {s(sU2)}, {s(sU2)}, {WS_ZP}")
    F(f"v_mov_b64 {v(TMP,2)}, -1")
    F(f"s_mov_b32 {s(sL2E)}, 0x3fb8aa3b"); F(f"s_mov_b32 {s(sL2E+1)}, 0x3fb8aa3b")
    F(f"s_mov_b32 {s(sEPS)}, 0x358637bd"); F(f"s_mov_b32 {s(sEPS+1)}, 0x358637bd")
    F(f"v_mov_b32 {v(NL)}, 0xbfb8aa3b"); F(f"v_mov_b32 {v(NL+1)}, 0xbfb8aa3b")
    F.it = -2
    F(f"v_and_b32 {v(t0)}, 15, {v(vL)}"); F(f"v_lshrrev_b32 {v(t1)}, 4, {v(vL)}"); F(f"v_lshrrev_b32 {v(t2)}, 1, {v(t0)}")
    F(f"v_xor_b32 {v(t2)}, {v(t2)}, {v(t1)}"); F(f"v_lshlrev_b32 {v(t2)}, 4, {v(t2)}"); F(f"v_lshl_add_u32 {v(t2)}, {v(t0)}, 7, {v(t2)}")
    F(f"s_and_b32 {s(sT0)}, {s(sMX)}, 8192"); F(f"v_add_u32 {v(RA16[0])}, {s(sT0)}, {v(t2)}"); F(f"v_xor_b32 {v(RA16[1])}, 64, {v(RA16[0])}")
    F(f"v_and_b32 {v(t2)}, 0x1ff, {v(RW)}"); F(f"v_lshl_add_u32 {v(RB16[0])}, {v(t1)}, 10, {v(t2)}"); F(f"v_xor_b32 {v(RB16[1])}, 32, {v(RB16[0])}")
    F.it = -1
    SEL = TMP + 32
    F(f"v_bfe_u32 {v(t0)}, {v(vL)}, 2, 2")
    F(f"s_lshl_b32 {s(sT0)}, {s(sKH)}, 1"); F(f"v_xor_b32 {v(t0)}, {s(sT0)}, {v(t0)}")
    F(f"v_mov_b32 {v(t1)}, 0x3f803f80")
    for hd in range(2):
        F(f"v_cmp_eq_u32 vcc, {hd}, {v(t0)}", f"v_cndmask_b32 {v(SEL+4*hd)}, 0, {v(t1)}, vcc")
        F(f"v_mov_b32 {v(SEL+4*hd+1)}, {v(SEL+4*hd)}")
        F(f"v_mov_b64 {v(SEL+4*hd+2,2)}, {v(SEL+4*hd,2)}")
    F(f"s_lshl_b32 {s(sU0)}, {s(sT2)}, 10"); F(f"s_add_u32 {s(sU0)}, {s(sU0)}, {WS_KVF}")
    F(f"s_lshl2_add_u32 {s(sT3)}, {s(sC)}, {s(sU0)}")
    F(f"s_load_dword s8, {s(R_WS,2)}, {s(sT3)} glc")
    F(f"s_lshr_b32 {s(sT0)}, {s(sW)}, 1"); F(f"s_lshl3_add_u32 {s(sT0)}, {s(sKH)}, {s(sT0)}"); F(f"s_lshl_b32 {s(sT0)}, {s(sT0)}, 10"); F(f"s_add_u32 {s(sT0)}, {s(sT0)}, {SCR}")
    F(f"v_add_u32 {v(AD)}, {s(sT0)}, {v(vL16)}")
    F(f"s_add_u32 {s(sT0)}, {s(sMX)}, {SCR}")
    F(f"v_add_u32 {v(AD+1)}, {s(sT0)}, {v(vL16)}")
    F(f"s_lshl_b32 {s(sT0)}, {s(sW)}, 8"); F(f"s_add_u32 {s(sT0)}, {s(sT0)}, {SCR+16384}")
    F(f"v_add_u32 {v(AD+2)}, {s(sT0)}, {v(vL4)}")
    F(f"s_lshl_b32 {s(sT0)}, {s(sW)}, 6"); F(f"s_add_u32 {s(sT0)}, {s(sT0)}, {SCR+16384}")
    F(f"v_and_b32 {v(AD+4)}, 60, {v(vL4)}")
    F(f"v_add_u32 {v(AD+3)}, {s(sT0)}, {v(AD+4)}")
    F(f"v_add_u32 {v(AD+6)}, {SCR}, {v(RW)}"); F(f"v_add_u32 {v(AD+7)}, {SCR}, {v(RW+1)}")
    F(f"v_add_u32 {v(AD+4)}, 0x18000, {v(RW)}"); F(f"v_add_u32 {v(AD+5)}, 0x18000, {v(RW+1)}")
    KVS, ZS = SCR + 20480, SCR + 22528
    F(f"s_lshr_b32 {s(sT0)}, {s(sW)}, 1"); F(f"s_lshl_b32 {s(sT0)}, {s(sT0)}, 10")
    F(f"s_lshl_b32 {s(sT1)}, {s(sKH)}, 8"); F(f"s_add_u32 {s(sT1)}, {s(sT1)}, {s(sT0)}"); F(f"s_add_u32 {s(sT1)}, {s(sT1)}, {KVS}")
    F(f"v_and_b32 {v(t4)}, 7, {v(vL)}"); F(f"v_lshrrev_b32 {v(t5)}, 5, {v(vL)}"); F(f"v_lshl_add_u32 {v(t4)}, {v(t4)}, 1, {v(t5)}")
    F(f"v_lshlrev_b32 {v(t4)}, 4, {v(t4)}"); F(f"v_bfe_u32 {v(t5)}, {v(vL)}, 3, 1"); F(f"v_bfe_u32 {v(t6)}, {v(vL)}, 4, 1")
    F(f"v_lshl_add_u32 {v(t4)}, {v(t5)}, 9, {v(t4)}"); F(f"v_lshl_add_u32 {v(t4)}, {v(t6)}, 3, {v(t4)}")
    F(f"v_add_u32 {v(LA)}, {s(sT1)}, {v(t4)}")
    F(f"s_lshl_b32 {s(sT1)}, {s(sKH)}, 5"); F(f"s_add_u32 {s(sT1)}, {s(sT1)}, {s(sT0)}"); F(f"s_add_u32 {s(sT1)}, {s(sT1)}, {ZS}")
    F(f"v_bfe_u32 {v(t4)}, {v(vL)}, 2, 1"); F(f"v_bfe_u32 {v(t5)}, {v(vL)}, 3, 1"); F(f"v_and_b32 {v(t6)}, 3, {v(vL)}")
    F(f"v_lshl_add_u32 {v(t6)}, {v(t6)}, 1, {s(sT1)}")
    F(f"v_lshl_add_u32 {v(t6)}, {v(t5)}, 3, {v(t6)}")
    F(f"v_lshl_add_u32 {v(LA+1)}, {v(t4)}, 4, {v(t6)}")
    F(f"v_add_u32 {v(LA+2)}, {KVS}, {v(vL16)}")
    F(f"v_mov_b32 {v(LA+3)}, {v(LA+2)}")
    F(f"v_lshrrev_b32 {v(t5)}, 5, {v(vL)}")
    F(f"v_lshlrev_b32 {v(t5)}, 4, {v(t5)}")
    F(lambda: sel_exec(0xffff0000, 0xffff0000), f"v_add_u32 {v(LA+2)}, {ZS}, {v(t5)}", "s_mov_b64 exec, -1")
    F(lambda: sel_exec(0x0000ffff, 0x0000ffff), f"v_add_u32 {v(LA+3)}, {ZS+32}, {v(t5)}", "s_mov_b64 exec, -1")
    F(f"v_bfe_u32 {v(t5)}, {v(vL)}, 3, 2"); F(f"v_and_b32 {v(t6)}, 35, {v(vL)}")
    F(f"v_lshl_add_u32 {v(t6)}, {v(t5)}, 2, {v(t6)}")
    F(f"v_lshl_add_u32 {v(t6)}, {v(t4)}, 4, {v(t6)}")
    F(f"v_lshlrev_b32 {v(LA+4)}, 4, {v(t6)}")
    F(f"s_mul_i32 {s(sOA)}, {s(sTT)}, 98304"); F(f"s_lshl_b32 {s(sT1)}, {s(sJ)}, 12"); F(f"s_add_u32 {s(sOA)}, {s(sOA)}, {s(sT1)}")
    F(f"s_add_u32 {s(sOA)}, {s(sOA)}, {WS_ACT+65536}")
    F(f"s_and_b32 {s(sKB)}, {s(sC)}, {opt.get('rkv', 1)}"); F(f"s_lshl1_add_u32 {s(sKB)}, {s(sT2)}, {s(sKB)}")
    F(f"s_lshl_b32 {s(sKB)}, {s(sKB)}, 12"); F(f"s_add_u32 {s(sKB)}, {s(sKB)}, {WS_KVP}")
    F(f"s_lshl_b32 {s(sZB)}, {s(sT2)}, 10"); F(f"s_add_u32 {s(sZB)}, {s(sZB)}, {WS_ZP}")
    F.it = opt.get('clrit', 0)
    tok_clr = []
    F(f"buffer_store_dwordx2 {v(TMP,2)}, {v(AD+9)}, {s(R_WS,4)}, {s(sU1)} offen sc1")
    F("s_mov_b64 exec, 0xffff", lambda: tok_clr.append(A(f"buffer_store_dword {v(TMP)}, {v(vL4)}, {s(R_WS,4)}, {s(sU2)} offen sc1")), "s_mov_b64 exec, -1")
    F.it = 0.55
    get_tag(F)
    F.sort(key=lambda e: e[0])
    weight_touch(F, False)
    p2_early(F, TMP + 61)
    utok, lo = main_loop('attn', [wq_ops(0), wq_ops(1)], F)
    stamp(2)
    tok_wq = utok[9]
    A("s_barrier")
    def phi_ops(src, dst):
        L = []
        def fin(sr, pp, d):
            L.append(f"v_max_f32 {v(pp)}, {v(pp)}, {v(sr)}")
            L.append(f"v_max_f32 {v(pp+1)}, {v(pp+1)}, {v(sr+1)}")
            L.append(f"v_pk_add_f32 {v(pp,2)}, {v(pp,2)}, {s(sEPS,2)}")
            L.append(f"v_cvt_pk_bf16_f32 {v(d)}, {v(pp)}, {v(pp+1)}")
        for k in range(0, 16, 2):
            tt = t0 + 2 * ((k // 2) % 4)
            L.append(f"v_pk_fma_f32 {v(tt,2)}, {v(src+k,2)}, {s(sL2E,2)}, {v(NL,2)}")
            L.append(f"v_exp_f32 {v(tt)}, {v(tt)} clamp")
            L.append(f"v_exp_f32 {v(tt+1)}, {v(tt+1)} clamp")
            if k >= 2: fin(src + k - 2, t0 + 2 * ((k // 2 - 1) % 4), dst + k // 2 - 1)
        fin(src + 14, t0 + 2 * (7 % 4), dst + 7)
        return L
    PK, PV = TMP, TMP + 16
    ZD = TM2; KD = TM2 + 4
    st_ = Stream(wo_ops(0, 98304) + c_ops(2))
    def swaps(b): return [f"v_permlane16_swap_b32 {v(b+r)}, {v(b+4+r)}" for r in range(4)]
    e1 = phi_ops(ACC, PK) + [f"v_cvt_pk_bf16_f32 {v(PV+k)}, {v(ACC+32+2*k)}, {v(ACC+32+2*k+1)}" for k in range(16)]
    e1 += phi_ops(ACC + 16, PK + 8)
    E0 = opt.get('e1skip', 12)
    A.wait(vm=tok_clr[0])
    sflag(sT3)
    sprinkle(e1[:E0], los := Stream(lo), 7)
    los.rest()
    tokF = [A.vm]
    vm0 = A.vm
    sprinkle(e1[E0:], st_, opt.get('e1every', 9))
    tok_wo0 = vm0 + 8
    stamp(40)
    def kvm(n): A(f"v_mfma_f32_16x16x32_bf16 {v(KD+4*(n>>1),4)}, {v(PK+4*n,4)}, {v(PV+4*n,4)}, {v(KD+4*(n>>1),4) if n & 1 else '0'}")
    def zm(n): A(f"v_mfma_f32_16x16x32_bf16 {v(ZD,4)}, {v(SEL+4*(n>>1),4)}, {v(PK+4*n,4)}, {'0' if n == 0 else v(ZD,4)}")
    for n in range(4): kvm(n)
    for n in range(4): zm(n)
    stamp(41)
    for hd in range(2):
        A(f"ds_write_b128 {v(AD)}, {v(KD+4*hd,4)} offset:{hd*4096}")
    A(f"ds_write_b32 {v(AD+2)}, {v(ZD)}")
    st_.dma(opt.get('e1d', 2))
    stamp(42)
    WE = opt.get('we', 16)
    A.wait(vm=tok_wo0 if WE else tokF[0])
    stamp(43)
    A.wait_all(vm=False)
    A("s_barrier")
    stamp(44)
    for q in range(2): tk = A(f"ds_read_b128 {v(ACC+4*q,4)}, {v(AD+1)} offset:{q*1024}")
    for q in range(4): tz = A(f"ds_read_b32 {v(ACC+16+q)}, {v(AD+3)} offset:{q*256}")
    QA = TM2
    def qreads(ks):
        b = BUF + 8 * (ks % 4)
        L = []
        for tl in range(2):
            base = (ks // 4) * 8192 + (ks % 4) * 2048
            L.append(f"ds_read_b64_tr_b16 {v(b+4*tl,2)}, {v(RT+tl)} offset:{base}")
            L.append(f"ds_read_b64_tr_b16 {v(b+4*tl+2,2)}, {v(RT+tl)} offset:{base+512}")
        return L
    toks = [run(qreads(0))]
    wrd0 = Stream(wo_reads(0, AD + 4, 0))
    if WE: wrd0.some(5)
    else: st_.dma(1)
    A.wait(lg=tk)
    for e in (0, 2):
        A(f"v_pk_add_f32 {v(ACC+e,2)}, {v(ACC+e,2)}, {v(ACC+4+e,2)}")
    for e in range(2): A(f"v_cvt_pk_bf16_f32 {v(ACC+e)}, {v(ACC+2*e)}, {v(ACC+2*e+1)}")
    for e in range(2): A(f"v_min_u32 {v(ACC+e)}, -2, {v(ACC+e)}")
    A(f"buffer_store_dwordx2 {v(ACC,2)}, {v(AD+9)}, {s(R_WS,4)}, {s(sU1)} offen sc1")
    A.wait(lg=tz)
    A(f"v_pk_add_f32 {v(ACC+16,2)}, {v(ACC+16,2)}, {v(ACC+18,2)}")
    A(f"v_add_f32 {v(ACC+16)}, {v(ACC+16)}, {v(ACC+17)}")
    A(f"v_min_u32 {v(ACC+16)}, -2, {v(ACC+16)}")
    A("s_mov_b64 exec, 0xffff")
    A(f"buffer_store_dword {v(ACC+16)}, {v(vL4)}, {s(R_WS,4)}, {s(sU2)} offen sc1")
    A("s_mov_b64 exec, -1")
    stamp(3)
    if WE: wrd0.some(WE - 5)
    st_.rest()
    tok_e1 = st_.last
    toks.append(run(qreads(1)))
    ZL = TMP + 52
    def kv_loads():
        L = [f"buffer_load_dword {v(ZL+q)}, {v(vL4)}, {s(R_WS,4)}, {s(sZB)} offen offset:{q*256} sc1" for q in range(4)]
        for q in range(8):
            if q % 4 == 0: L.append(f"s_xor_b32 {s(sD1)}, {s(sKB)}, {q*1024}")
            L.append(f"buffer_load_dwordx4 {v(ACC+4*q,4)}, {v(vL16)}, {s(R_WS,4)}, {s(sD1)} offen offset:{(q%4)*1024} sc1")
        return L
    KVAT = opt.get('kvat', 21)
    side = None; wrd = None
    for ks in range(32):
        if ks == 0:
            A.wait(vm=tok_wo0)
            A("s_barrier")
            side = Stream(wo_ops(1, SCR)); wrd = wrd0
        if ks == 8:
            side.rest(); tok_wo1 = A.vm
            tok_wr = A.lg
        if ks == 9:
            A.wait(lg=tok_wr)
            A("s_barrier")
            side = Stream(c_ops(3))
        if ks == 17:
            side.rest()
            A.wait(vm=tok_wo1)
            A("s_barrier")
            stamp(23)
            side = Stream(c_ops(0)); wrd = Stream(wo_reads(1, AD + 6, 0))
        if ks == KVAT - 14: ssample(16)
        if ks == KVAT:
            A(f"s_or_b64 {s(sP,2)}, {s(sP,2)}, {s(sP+14,2)}")
            A("s_cbranch_scc0 L_clr_x")
            snap = A.snapshot()
            sspin("L_clr", 16)
            A.restore(snap)
            nk = A.vm + 12
            side = Stream(kv_loads() + side.ops)
            side.dma(2)
        A.wait(lg=toks[ks])
        stamp(200 + ks)
        rd = qreads(ks + 2) if ks + 2 < 32 else []
        b = BUF + 8 * (ks % 4)
        for tl in range(2):
            A(f"v_mfma_f32_32x32x16_bf16 {v(QA+16*tl,16)}, {v(b+4*tl,4)}, {a(4*ks,4)}, {'1.0' if ks == 0 else v(QA+16*tl,16)}")
            if tl == 0:
                if ks == KVAT - 6:
                    A.wait_all(vm=False, lg=True, force=True)
                    cko = [f"s_xor_b32 {s(sP+q)}, {s(sP+q)}, {s(sTAG)}" for q in range(16)] + [f"s_or_b64 {s(sP,2)}, {s(sP,2)}, {s(sP+q,2)}" for q in range(2, 14, 2)]
                run(rd); toks.append(A.lg)
                if KVAT - 6 <= ks < KVAT: run(cko[:4]); cko = cko[4:]
                if wrd and ((ks < 8 and len(wrd.ops) > 2 * (8 - ks)) or ks >= 30): wrd.some(2)
            else:
                if wrd: wrd.some(2)
                if side: side.dma()
    wrd.rest()
    stamp(24)
    PQ = TMP
    A.wait_all(vm=False)
    A("s_barrier")
    side.ops += [f"s_mov_b32 m0, {s(sXM)}", dma(VN, R_X, sXT, 0), dma(VN, R_X, sXT, 1)] + c_ops(1)
    ph = phi_ops(QA, PQ) + phi_ops(QA + 16, PQ + 8)
    MID = opt.get('mid', 1)
    KE = opt.get('kvevery', 9 if MID else 10)
    if MID: sprinkle(ph[:56], side, KE)
    else:
        PE = opt.get('phe', 60)
        sprinkle(ph[:PE], side, KE)
        run(ph[PE:])
    tok_kv = nk
    stamp(25)
    A(f"s_mov_b32 {s(sCNT)}, {SPIN}")
    stamp(4)
    KS = TMP + 16
    def kv_sum(last, side=None):
        zs = [f"v_add_f32 {v(t0)}, {v(ZL)}, {v(ZL+1)}", f"v_add_f32 {v(t1)}, {v(ZL+2)}, {v(ZL+3)}",
              f"v_add_f32 {v(t0)}, {v(t0)}, {v(t1)}", f"v_mov_b32 {v(t1)}, {v(t0)}", "s_nop 0", f"v_permlane32_swap_b32 {v(t0)}, {v(t1)}",
              f"v_add_f32 {v(t0)}, {v(t0)}, {v(t1)}", f"v_mov_b32 {v(t1)}, {v(t0)}", "s_nop 0", f"v_permlane16_swap_b32 {v(t0)}, {v(t1)}",
              f"v_add_f32 {v(t0)}, {v(t0)}, {v(t1)}", f"v_cvt_pk_bf16_f32 {v(KS+6)}, {v(t0)}, {v(t0)}"]
        for q in range(8):
            if q in (0, 4, 6, 7): A.wait(vm=last - 7 + {0: 3, 4: 5}.get(q, q))
            A(f"v_mfma_f32_16x16x32_bf16 {v(KS,4)}, {v(SUMS,4)}, {v(ACC+4*q,4)}, {'0' if q == 0 else v(KS,4)}")
            run(zs[2*q:2*q+2])
        A(f"v_cmp_u_f32 vcc, {v(t0)}, {v(KS)}")
    A(f"s_mov_b32 {s(sT2)}, {s(sOF)}"); A(f"s_mov_b32 {s(sFM)}, 1")
    cs = side
    kv_sum(tok_kv, cs)
    A("s_cbranch_vccnz L_kvretry")
    snap_kv = A.snapshot()
    A.label("L_kvok")
    stamp(5)
    A(f"ds_write_b16 {v(LA+1)}, {v(KS+6)}")
    A(f"v_cvt_pk_bf16_f32 {v(KS+4)}, {v(KS)}, {v(KS+1)}")
    A(f"v_cvt_pk_bf16_f32 {v(KS+5)}, {v(KS+2)}, {v(KS+3)}")
    A(f"ds_write_b64 {v(LA)}, {v(KS+4,2)}")
    M2 = opt.get('mid2', 92)
    if MID: sprinkle(ph[56:M2], side, KE)
    A.wait_all(vm=False)
    A("s_barrier")
    stamp(70)
    AF = TMP + 16
    toks = []
    ES = opt.get('es', 0)
    if ES: poll_issue()
    for hd4 in range(4): toks.append(A(f"ds_read_b128 {v(AF+4*hd4,4)}, {v(LA+2+(hd4&1))} offset:{(hd4>>1)*1024}"))
    if ES:
        for q in range(2): A(f"ds_read_b32 {v(vF)}, {v(LA+2)}")
    if MID: sprinkle(ph[M2:], side, KE)
    else: cs.dma(1)
    for hd4 in range(4):
        A.wait(lg=toks[hd4])
        A(f"v_mfma_f32_32x32x16_bf16 {v(ACC+16*hd4,16)}, {v(AF+4*hd4,4)}, {v(PQ+4*hd4,4)}, 0")
        cs.dma()
    if not ES: poll_issue()
    cs.rest()
    stamp(71)
    OP = TMP + 48
    for hd4 in range(4):
        hd = hd4 & 1
        nb_, db_ = ACC + 16 * hd4 + 8 * hd, ACC + 16 * hd4 + 8 * (1 - hd)
        A(f"v_add_f32 {v(db_)}, {s(sEPS)}, {v(db_)}")
        A(f"v_rcp_f32 {v(db_)}, {v(db_)}")
        for e in range(0, 8, 2): A(f"v_pk_mul_f32 {v(nb_+e,2)}, {v(nb_+e,2)}, {v(db_,2)} op_sel_hi:[1,0]")
        for e in range(0, 8, 2): A(f"v_cvt_pk_bf16_f32 {v(TM2+4*hd4+e//2)}, {v(nb_+e)}, {v(nb_+e+1)}")
        A(f"buffer_store_dwordx4 {v(TM2+4*hd4,4)}, {v(LA+4)}, {s(R_WS,4)}, {s(sOA)} offen offset:{hd4*1024} sc1")
    stamp(26); stamp(6)
    A("s_branch L_phase2")

    A.raw(".p2align 12")
    A.label("L_phase2")
    A.hist = []
    if not opt.get('nopg', 1): A("s_cbranch_execz L_pgret_a")
    stamp(7)
    def late_flag(lab):
        A(f"s_cmp_eq_u32 {s(sFM)}, 0")
        A(f"s_cbranch_scc1 {lab}")
        sflag(sT2)
        A(f"s_cmp_eq_u32 {s(sFM)}, 1")
        A(f"s_mov_b32 {s(sFM)}, 0")
        A(f"s_cbranch_scc1 {lab}")
        sflag(sT2, 1024)
        A.label(lab)
    scheck(4)
    A("s_cbranch_scc0 L_ph_x")
    for _ in range(opt.get('re', 1)):
        ssample(4); scheck(4)
        A("s_cbranch_scc0 L_ph_x")
    A(f"s_cmp_eq_u32 {s(sFM)}, 0")
    A("s_cbranch_scc1 L_noflag")
    A("s_waitcnt vmcnt(0)")
    late_flag("L_noflag")
    sspin("L_ph", 4)
    stamp(8)
    assert A.vm_done < A.vm
    ltok, ctok = p2_head(late_flag)
    KS1 = KCHK - opt.get('ks1', 8)
    for ks in range(KCHK):
        if ks == KS1: ssample(5)
        step2a(ks, True, ltok, ctok, ks == KCHK - 1)
    A("s_cbranch_scc1 L_slow")
    snap = A.snapshot(); ctok_s = list(ctok); ltok_s = list(ltok)
    for ks in range(KCHK, 32): step2a(ks, True, ltok, ctok)
    stamp(9); stamp(10)
    A.label("L_2b")
    gops = []
    for tl in (1, 0):
        for k in range(16): gops.append(f"v_mul_f32 {v(ACC+16*tl+k)}, {v(ACC+16*tl+k)}, {v(GG+k)}")
    for k in range(16): gops.append(f"v_sub_f32 {v(GG+k)}, 1.0, {v(GG+k)}")
    LG = opt.get('lag', 10)
    seq = [(ks, tl) for ks in range(16 - LG) for tl in (1, 0)] + [(ks, 1) for ks in range(16 - LG, 16)] + [(ks, 0) for ks in range(16 - LG, 16)]
    NB_ = 32 - LG
    XR = BUF
    tail = [["s_nop 4"], ["s_nop 4"]]
    for j in range(4):
        tail.append([f"v_fmac_f32 {v(ACC+16+4*j+i)}, {v(ACC+48+4*j+i)}, {v(GG+4*j+i)}" for i in range(4)] +
                    [f"ds_write_b128 {v(AD+4)}, {v(ACC+16+4*j,4)} offset:{j*1024}"])
    xt = []
    tail.append([lambda: A.wait_all(vm=False), "s_barrier"] + [(lambda j=j: xt.append(A(f"ds_read_b128 {v(XR+4*j,4)}, {v(AD+5)} offset:{j*1024}"))) for j in range(4)])
    tail.append([f"s_lshl_b32 {s(sT0)}, {s(sTT2)}, 16"])
    for j in range(4):
        tail.append([(lambda j=j: A.wait(lg=xt[j]))] + [f"v_add_f32 {v(ACC+4*j+i)}, {v(ACC+4*j+i)}, {v(XR+4*j+i)}" for i in range(4)])
    for n, (ks, tl) in enumerate(seq):
        if tl == 1:
            A.wait(vm=ltok[32 + ks])
            stamp(140 + ks)
        A(f"v_mfma_f32_32x32x16_bf16 {v(ACC+32+16*tl,16)}, {v(TMP+4*ks,4)}, {a(128+8*ks+4*tl,4)}, {'0' if ks == 0 else v(ACC+32+16*tl,16)}")
        stamp(170 + n)
        if n % 2 == 0 and len(ltok) < 48: ltok.append(run(load_ops(len(ltok))))
        if n == 1: A(f"ds_write_b32 {v(AD)}, {v(vE)}")
        if n in (3, 5):
            for j in (n - 3, n - 2): tg = A(f"ds_read_b128 {v(GG+4*j,4)}, {v(AD+2)} offset:{j*32}")
        if n >= 8 and gops:
            A.wait(lg=tg)
            m = 5 if len(ltok) == 48 or n % 2 else 1
            run(gops[:m]); gops = gops[m:]
        if n >= NB_ - 1 and tail:
            if tail[0]: run(gops); gops = []
            run(tail.pop(0))
    stamp(11)
    for g_ in tail: run(g_)
    of = {0: "", 1: " nt", 2: " sc1", 3: " sc0 sc1"}[opt.get('outfl', 2)]
    for j in range(4):
        for e in (0, 2): A(f"v_pk_fma_f32 {v(ACC+4*j+e,2)}, {v(ACC+32+4*j+e,2)}, {v(GG+4*j+e,2)}, {v(ACC+4*j+e,2)}")
        A(f"s_add_u32 {s(sT1)}, {s(sT0)}, 4096")
        for i in range(4):
            A(f"buffer_store_dword {v(ACC+4*j+i)}, {v(AD+1)}, {s(R_OUT,4)}, {s(sT0 if i < 2 else sT1)} offen offset:{(i%2)*2048}{of if j < opt.get('outn', 4) else ''}")
        if j < 3: A(f"s_add_u32 {s(sT0)}, {s(sT0)}, 16384")
    A(f"s_lshl2_add_u32 {s(sT0)}, {s(sNB)}, {s(sW)}"); A(f"s_lshl_b32 {s(sT0)}, {s(sT0)}, 5"); A(f"s_add_u32 {s(sT0)}, {s(sT0)}, {s(sRB)}")
    A(f"s_cmp_eq_u32 {s(sT0)}, 31")
    A("s_cbranch_scc0 L_fin")
    A("s_mov_b64 exec, 1")
    A(f"buffer_store_dword {v(vTAG)}, {v(vZ)}, {s(R_WS,4)}, 0 offen sc1")
    A("s_mov_b64 exec, -1")
    A.label("L_fin")
    if stamps:
        A("s_waitcnt vmcnt(0)")
        stamp(12)
        A("s_waitcnt lgkmcnt(0)")
        A(f"s_lshl2_add_u32 {s(sT0)}, {s(sWG)}, {s(sW)}"); A(f"s_lshl_b32 {s(sT0)}, {s(sT0)}, 6")
        A(f"s_add_u32 {s(sT0)}, {s(sT0)}, {WS_STAMP}")
        for i in range(14):
            A(f"v_mov_b32 {v(t0)}, {s(SREG[i] if i < 13 else sTY)}")
            A(f"buffer_store_dword {v(t0)}, {v(vZ)}, {s(R_WS,4)}, {s(sT0)} offen offset:{4*i}")
    A("s_endpgm")
    A.label("L_slow")
    A.restore(snap); ctok[:] = ctok_s; ltok[:] = ltok_s
    k0_ = KCHK
    for n2, K2 in enumerate(opt.get('k2', [27, 32])):
        ssample(5)
        for ks in range(k0_, K2): step2a(ks, False, ltok, ctok, ks == K2 - 1)
        if K2 == 32: break
        A(f"s_cbranch_scc1 L_slow{n2}")
        snap2 = A.snapshot(); ctok_s = list(ctok)
        n = 32
        for ks in range(K2, 32):
            for _ in range(2):
                if n < 32 + AHEAD: run(load_ops(n)); n += 1
            step2a(ks, False, ltok, ctok)
        while n < 32 + AHEAD: run(load_ops(n)); n += 1
        stamp(9); stamp(10)
        A("s_branch L_2b")
        A.label(f"L_slow{n2}")
        A.restore(snap2); ctok[:] = ctok_s
        k0_ = K2
    stamp(9)
    A("s_cbranch_scc0 L_po_x")
    sspin("L_po", 5)
    stamp(10)
    for n in range(32, 32 + AHEAD): run(load_ops(n))
    A("s_branch L_2b")
    A.label("L_kvretry")
    A.restore(snap_kv)
    kl = kv_loads()
    A(f"s_mov_b32 {s(sT0)}, 0")
    groups = [(ZL, kl[:4])]; pre = []
    for o in kl[4:]:
        if o.startswith('s_'): pre = [o]
        else: groups.append((ACC + 4 * (len(groups) - 1), pre + [o]))
    for n, (r, ops) in enumerate(groups):
        A(f"v_max3_u32 {v(t2)}, {v(r)}, {v(r+1)}, {v(r+2)}")
        A(f"v_max_u32 {v(t2)}, {v(t2)}, {v(r+3)}")
        A(f"v_cmp_eq_u32 vcc, -1, {v(t2)}")
        A("s_nop 0")
        A(f"s_cbranch_vccz L_kvh{n}")
        run(ops)
        A(f"s_mov_b32 {s(sT0)}, 1")
        A.label(f"L_kvh{n}")
    A(f"s_cmp_eq_u32 {s(sT0)}, 0")
    A("s_cbranch_scc1 L_kvok")
    A.wait_all(vm=True, lg=False, force=True)
    kv_sum(A.vm)
    A(f"s_sub_u32 {s(sCNT)}, {s(sCNT)}, 1")
    A("s_cbranch_scc1 L_kvok")
    A("s_cbranch_vccnz L_kvretry")
    A("s_branch L_kvok")
    A.label("L_end")
    if not opt.get('nopg', 1):
        tmp = A.out + [f"L_pg_{r}_{n}:" for r in 'sa' for n in range(3)]
        tmp, A.fixed, A.padded = align_pass(tmp)
        tmp, cnt = page_pads(tmp, 0x300, {"L_ssm": 's', "L_attn": 'a', "L_phase2": None})
        assert cnt['s'] >= 2 and cnt['a'] >= 2, cnt
        A.out = tmp[:-6]
    else:
        A.out, A.fixed, A.padded = align_pass(A.out)
    hdr = open(os.path.join(os.path.dirname(__file__), "header.txt")).read()
    src = hdr + f"; @launch grid=(256,1,1) block=(256,1,1) lds={LDS_BYTES}\n" + DOC + f""".amdgcn_target "amdgcn-amd-amdhsa--gfx950"
.text
.globl {KNAME}
.p2align 12
.fill {opt.get('kpad', 0xe00)//4}, 4, 0xbf800000
.p2align 8
.type {KNAME},@function
{KNAME}:
{A.text()}
    s_endpgm
.section .rodata,"a"
.p2align 6
.amdhsa_kernel {KNAME}
  .amdhsa_next_free_vgpr 512
  .amdhsa_next_free_sgpr 102
  .amdhsa_accum_offset 256
  .amdhsa_group_segment_fixed_size 0
  .amdhsa_kernarg_size 128
  .amdhsa_user_sgpr_count 2
  .amdhsa_user_sgpr_kernarg_segment_ptr 1
  .amdhsa_system_sgpr_workgroup_id_x 1
.end_amdhsa_kernel
"""
    return src, A

if __name__ == "__main__":
    out = sys.argv[1]
    opt = {}
    for kv in sys.argv[3:]:
        k_, v_ = kv.split('='); opt[k_] = int(v_)
    src, A = gen(stamps=len(sys.argv) > 2 and sys.argv[2] == 'stamps', opt=opt)
    open(out, "w").write(src)
    print("lines", len(A.out), "nops", A.nops, "widened", getattr(A, 'fixed', 0), "padded", getattr(A, 'padded', 0))
```

```python
import sys, os
sys.path.insert(0, os.path.dirname(__file__))
from asmlib import *

KNAME = "gated_mix__ssm_conv_s5__linear_attn_block__prompt_kernel"

WS_EPOCH = 0
WS_KVF   = 0xD0000
WS_HF    = 0xE0000
WS_OF    = 0xE0200
WS_G     = 0x14000
WS_ZP    = 0x18000
WS_AGG   = 0x20000
WS_KVP   = 0x40000
WS_STAMP = 0xC0000
WS_ACT   = 0x100000
WS_SIZE  = WS_ACT + 64 * 98304
SCR = 131072
LDS_BYTES = 163840
SPIN = 1 << 17

DOC = r'''; ---------------------------------------------------------------------------------------------------------------
; ---------------------------------------------------------------------------------------------------------------
'''

def gen(stamps=False, opt=None):
    opt = opt or {}
    A = Asm()
    P_X, P_LRE, P_LIM, P_BRE, P_BIM, P_CRE, P_CIM, P_LDT = 4, 6, 8, 10, 12, 14, 16, 18
    P_DSK, P_BX, P_QKV, P_WO, P_GW, P_OUT, P_DBG, P_WS = 20, 22, 24, 26, 28, 30, 32, 34
    R_X, R_W, R_WS, R_C, R_WO, R_OUT = 36, 40, 44, 48, 52, 56
    sW, sC, sJ, sK0, sRB, sNB, sTAG, sTY = 60, 61, 62, 63, 64, 65, 66, 67
    sXO, sWO, sWST, sU0, sT0, sT1, sT2, sT3 = 68, 69, 70, 71, 72, 73, 74, 75
    sMX, sMW, sCNT, sTT, sKH, sM8 = 76, 77, 78, 79, 80, 81
    sL2E = 82
    sU1, sU2 = 84, 85
    sEPS = 86
    sD0, sD1 = 2, 3
    SREG = [88, 90, 92, 94, 96, 98, 6, 0, 26, 16, 18, 22, 20]
    sWG = 100
    sU3 = 101
    names = opt.get('stamps') or [0, 1, 2, 3, 4, 5, 6, 7, 8, 9, 10, 11, 12]
    def stamp(i):
        if stamps and i in names:
            A(f"{'s_memtime' if opt.get('cyc') else 's_memrealtime'} {s(SREG[names.index(i)], 2)}")
    vL = 0; vZ = 1; vE = 2; vJ = 3
    t0, t1, t2, t3, t4, t5, t6, t7 = 4, 5, 6, 7, 8, 9, 10, 11
    vTAG = 12; vL16 = 13; vL4 = 14; vF = 15
    ACC = 16; BUF = 80; TMP = 112; TM2 = 176
    VX, VW, VN, VK1 = 208, 212, 216, 220
    RX, RN, RT = 224, 228, 232
    RW = 234
    RA, RB = 236, 240
    AD = 244
    PR = TM2

    def run(ops):
        tok = None
        for o in ops:
            r = A(o) if isinstance(o, str) else o()
            if r is not None: tok = r
        return tok
    def sel_exec(lo, hi):
        A(f"s_mov_b32 exec_lo, {lo:#x}"); A(f"s_mov_b32 exec_hi, {hi:#x}")

    stamp(0)
    A("s_load_dwordx16 s[4:19], s[0:1], 0")
    A("s_load_dwordx16 s[20:35], s[0:1], 64")
    A("s_cmp_ge_u32 s2, 256")
    A("s_cbranch_scc1 L_end")
    A(f"s_getpc_b64 {s(sT2,2)}")
    A.label("L_pc")
    A(f"s_and_b32 {s(sT0)}, s2, 0xf8")
    A(f"v_lshrrev_b32 {v(t0)}, 5, v0")
    A(f"v_add_lshl_u32 {v(t0)}, {v(t0)}, {s(sT0)}, 7")
    A(f"v_min_u32 {v(t0)}, L_end-L_pc, {v(t0)}")
    if not opt.get('nocodepf'):
        A(f"global_load_dword {v(BUF)}, {v(t0)}, {s(sT2,2)}")
    A(f"v_lshrrev_b32 {v(t0)}, 6, v0")
    A(f"v_and_b32 {v(vL)}, 63, v0")
    A(f"v_readfirstlane_b32 {s(sW)}, {v(t0)}")
    A(f"v_mov_b32 {v(vZ)}, 0")
    A(f"s_and_b32 {s(sT0)}, s2, 7")
    A(f"s_bfe_u32 {s(sNB)}, s2, 0x30003")
    A(f"s_lshr_b32 {s(sT3)}, s2, 6")
    if stamps: A(f"s_mov_b32 {s(sWG)}, s2")
    A(f"s_and_b32 {s(sC)}, {s(sT0)}, 1"); A(f"s_lshl3_add_u32 {s(sC)}, {s(sC)}, {s(sNB)}")
    A(f"s_and_b32 {s(sJ)}, {s(sT0)}, 6"); A(f"s_lshr_b32 {s(sK0)}, {s(sT3)}, 1"); A(f"s_add_u32 {s(sJ)}, {s(sJ)}, {s(sK0)}")
    A(f"s_lshr_b32 {s(sT1)}, {s(sT0)}, 1"); A(f"s_and_b32 {s(sT2)}, {s(sT0)}, 1")
    A(f"s_lshl2_add_u32 {s(sRB)}, {s(sT2)}, {s(sT1)}"); A(f"s_lshl2_add_u32 {s(sRB)}, {s(sRB)}, {s(sT3)}")
    G_ = opt.get('G', 2)
    PAIR = G_ == 0
    if PAIR: A(f"s_add_u32 {s(sK0)}, {s(sK0)}, {s(sNB)}"); A(f"s_and_b32 {s(sK0)}, {s(sK0)}, 1")
    elif G_ == 1: A(f"s_mov_b32 {s(sK0)}, 0")
    elif G_ == 2: A(f"s_add_u32 {s(sK0)}, {s(sK0)}, {s(sNB)}"); A(f"s_lshl_b32 {s(sK0)}, {s(sK0)}, 2")
    elif G_ == 4: A(f"s_add_u32 {s(sK0)}, {s(sT3)}, {s(sNB)}"); A(f"s_lshl_b32 {s(sK0)}, {s(sK0)}, 1")
    else: A(f"s_lshl1_add_u32 {s(sK0)}, {s(sT3)}, {s(sNB)}")
    X_ = opt.get('xoff', 0)
    if X_ == 1: A(f"s_lshl1_add_u32 {s(sT1)}, {s(sT2)}, {s(sT1)}"); A(f"s_add_u32 {s(sK0)}, {s(sK0)}, {s(sT1)}")
    if X_ == 2: A(f"s_add_u32 {s(sT1)}, {s(sT2)}, {s(sT1)}"); A(f"s_add_u32 {s(sK0)}, {s(sK0)}, {s(sT1)}")
    if X_ == 3: A(f"s_lshl1_add_u32 {s(sT1)}, {s(sT2)}, {s(sT1)}"); A(f"s_lshl1_add_u32 {s(sK0)}, {s(sT1)}, {s(sK0)}")
    A(f"s_and_b32 {s(sK0)}, {s(sK0)}, 7")
    if opt.get('a84'):
        A(f"s_lshr_b32 {s(sT1)}, {s(sRB)}, 1"); A(f"s_xor_b32 {s(sT1)}, {s(sT1)}, {s(sNB)}"); A(f"s_and_b32 {s(sT1)}, {s(sT1)}, 4")
        A(f"s_xor_b32 {s(sNB)}, {s(sNB)}, {s(sT1)}"); A(f"s_lshl_b32 {s(sT1)}, {s(sT1)}, 1"); A(f"s_xor_b32 {s(sRB)}, {s(sRB)}, {s(sT1)}")
    RM = opt.get('rm', 3)
    A(f"s_and_b32 {s(sTY)}, {s(sT3)}, 1")
    A(f"v_lshrrev_b32 {v(t0)}, 3, {v(vL)}")
    A(f"v_and_b32 {v(t1)}, 7, {v(vL)}")
    A(f"v_lshrrev_b32 {v(t2)}, 4, {v(vL)}")
    A(f"v_xor_b32 {v(t3)}, {v(t1)}, {v(t2)}")
    A(f"v_lshlrev_b32 {v(t3)}, 4, {v(t3)}")
    A(f"v_and_b32 {v(t2)}, 16, {v(vL)}")
    A(f"v_lshlrev_b32 {v(t2)}, 2, {v(t2)}")
    A(f"v_lshlrev_b32 {v(t4)}, 4, {v(t1)}")
    A(f"v_xor_b32 {v(t4)}, {v(t4)}, {v(t2)}")
    A(f"v_lshrrev_b32 {v(t5)}, 5, {v(vL)}")
    A(f"v_and_b32 {v(t6)}, 3, {v(t0)}")
    A(f"v_lshl_add_u32 {v(t5)}, {v(t5)}, 4, {v(t6)}")
    A(f"v_lshl_add_u32 {v(VX)}, {v(t5)}, 10, {v(t3)}")
    A(f"v_xor_b32 {v(t5)}, 64, {v(VX)}")
    A(f"v_add_u32 {v(VX+1)}, {3072}, {v(t5)}")
    A(f"v_add_u32 {v(VX+2)}, {2*3072}, {v(VX)}")
    A(f"v_add_u32 {v(VX+3)}, {3*3072}, {v(t5)}")
    A(f"v_lshl_add_u32 {v(VN)}, {v(t0)}, 10, {v(t3)}")
    A(f"v_xor_b32 {v(t5)}, 64, {v(VN)}")
    A(f"v_add_u32 {v(VN+1)}, {7168}, {v(t5)}")
    A(f"v_add_u32 {v(VN+2)}, {2*7168}, {v(VN)}")
    A(f"v_add_u32 {v(VN+3)}, {3*7168}, {v(t5)}")
    A(f"v_lshl_add_u32 {v(VK1)}, {v(t0)}, 10, {v(t4)}")
    A(f"v_lshl_add_u32 {v(VW)}, {v(t0)}, 11, {v(VK1)}")
    A(f"v_xor_b32 {v(t5)}, 32, {v(VW)}")
    for q in (1, 2, 3): A(f"v_add_u32 {v(VW+q)}, {q*(8*3072-1024)}, {v(t5 if q & 1 else VW)}")
    A(f"s_lshl_b32 {s(sT0)}, {s(sJ)}, 7")
    A(f"v_and_b32 {v(t7)}, 35, {v(vL)}"); A(f"v_bfe_u32 {v(t5)}, {v(vL)}, 2, 2"); A(f"v_lshl_add_u32 {v(t7)}, {v(t5)}, 3, {v(t7)}")
    A(f"v_bfe_u32 {v(t5)}, {v(vL)}, 4, 1"); A(f"v_lshl_add_u32 {v(t7)}, {v(t5)}, 2, {v(t7)}")
    A(f"v_lshl_add_u32 {v(t7)}, {v(t7)}, 1, {s(sT0)}")
    A(f"v_lshlrev_b32 {v(vL16)}, 4, {v(vL)}")
    A(f"s_lshl_b32 {s(sMX)}, {s(sW)}, 12")
    A(f"s_add_u32 {s(sMW)}, {s(sMX)}, 16384")
    A(f"s_and_b32 {s(sKH)}, {s(sW)}, 1")
    A(f"s_lshr_b32 {s(sT1)}, {s(sW)}, 1")
    A(f"s_lshl2_add_u32 {s(sTT)}, {s(sC)}, {s(sW)}")
    A(f"s_lshl_b32 {s(sXO)}, {s(sTT)}, 15")
    A(f"s_lshl_b32 {s(sT2)}, {s(sK0)}, 7")
    A(f"s_add_u32 {s(sXO)}, {s(sXO)}, {s(sT2)}")
    A(f"s_lshl1_add_u32 {s(sT2)}, {s(sJ)}, {s(sT1)}"); A(f"s_lshl_b32 {s(sT2)}, {s(sT2)}, 15")
    A(f"s_mul_i32 {s(sT3)}, {s(sKH)}, {32*3072}"); A(f"s_lshl_b32 {s(sT1)}, {s(sT1)}, 10"); A(f"s_add_u32 {s(sT3)}, {s(sT3)}, {s(sT1)}")
    A(f"s_add_u32 {s(sT3)}, {s(sT3)}, {s(sT0)}"); A(f"s_add_u32 {s(sT3)}, {s(sT3)}, 1024")
    A(f"s_cmp_eq_u32 {s(sTY)}, 0")
    A(f"s_cselect_b32 {s(sWO)}, {s(sT2)}, {s(sT3)}")
    A(f"s_cselect_b32 {s(sWST)}, 128, {64*3072}") if False else None
    A(f"s_mov_b32 {s(sT1)}, {64*3072}"); A(f"s_cselect_b32 {s(sWST)}, 0x80, {s(sT1)}")
    A(f"s_mov_b32 {s(sT1)}, 0x180000"); A(f"s_cselect_b32 {s(R_W+2)}, 0x80000, {s(sT1)}")
    A("s_cselect_b64 exec, -1, 0")
    A(f"v_and_b32 {v(t5)}, 32, {v(vL)}")
    A(f"v_lshl_add_u32 {v(VW)}, {v(t5)}, 7, {v(VN)}")
    A(f"v_xor_b32 {v(t5)}, 64, {v(VW)}")
    A(f"v_add_u32 {v(VW+1)}, {15*1024}, {v(t5)}")
    A(f"v_add_u32 {v(VW+2)}, {2*1024}, {v(VW)}")
    A(f"v_add_u32 {v(VW+3)}, {17*1024}, {v(t5)}")
    A(f"v_mov_b64 {v(VX,2)}, {v(VW,2)}"); A(f"v_mov_b64 {v(VX+2,2)}, {v(VW+2,2)}")
    A("s_mov_b64 exec, -1")
    A(f"s_mul_i32 {s(sT1)}, {s(sK0)}, {s(sWST)}"); A(f"s_add_u32 {s(sWO)}, {s(sWO)}, {s(sT1)}")
    A(f"s_mov_b32 {s(R_X+2)}, 0x200000"); A(f"s_mov_b32 {s(R_X+3)}, 0x20000")
    A(f"s_mov_b32 {s(R_W+3)}, 0x20000")
    A(f"s_mov_b32 m0, {s(sMX)}")
    A(f"s_mov_b32 {s(R_WS+2)}, {WS_SIZE}"); A(f"s_mov_b32 {s(R_WS+3)}, 0x20000")
    A(f"s_mov_b32 {s(R_C+2)}, 0x80000"); A(f"s_mov_b32 {s(R_C+3)}, 0x20000")
    A(f"s_mov_b32 {s(R_WO+2)}, 0x80000"); A(f"s_mov_b32 {s(R_WO+3)}, 0x20000")
    A(f"s_mov_b32 {s(R_OUT+2)}, 0x400000"); A(f"s_mov_b32 {s(R_OUT+3)}, 0x20000")
    A(f"s_lshl_b32 {s(sM8)}, {s(sW)}, 13")
    late = []
    Lt = late.append
    for q in (1, 2, 3): Lt(f"v_add_u32 {v(VK1+q)}, {q*7168}, {v(VK1)}")
    Lt(f"v_and_b32 {v(t0)}, 31, {v(vL)}")
    Lt(f"v_lshrrev_b32 {v(t1)}, 5, {v(vL)}")
    Lt(f"v_bfe_u32 {v(t2)}, {v(vL)}, 1, 3")
    Lt(f"v_xor_b32 {v(t2)}, {v(t2)}, {v(t1)}")
    Lt(f"v_lshlrev_b32 {v(t2)}, 4, {v(t2)}")
    Lt(f"v_lshl_add_u32 {v(RN)}, {v(t0)}, 7, {v(t2)}")
    for q in (1, 2, 3): Lt(f"v_xor_b32 {v(RN+q)}, {q*32}, {v(RN)}")
    for q in range(4): Lt(f"v_add_u32 {v(RX+q)}, {s(sMX)}, {v(RN+q)}")
    Lt(f"v_bfe_u32 {v(t2)}, {v(vL)}, 2, 2")
    Lt(f"v_bfe_u32 {v(t3)}, {v(vL)}, 3, 1")
    Lt(f"v_bfe_u32 {v(t4)}, {v(vL)}, 4, 1")
    Lt(f"v_and_b32 {v(t5)}, 3, {v(vL)}")
    Lt(f"v_lshlrev_b32 {v(t5)}, 3, {v(t5)}")
    Lt(f"v_lshl_add_u32 {v(t5)}, {v(t4)}, 5, {v(t5)}")
    Lt(f"v_lshl_add_u32 {v(t5)}, {v(t3)}, 6, {v(t5)}")
    Lt(f"v_lshl_add_u32 {v(t5)}, {v(t2)}, 7, {v(t5)}")
    Lt(f"v_lshl_add_u32 {v(RT)}, {v(t1)}, 10, {v(t5)}")
    Lt(f"v_and_b32 {v(t2)}, 32, {v(vL)}"); Lt(f"v_xor_b32 {v(RT)}, {v(t2)}, {v(RT)}")
    Lt(f"v_xor_b32 {v(RT+1)}, 64, {v(RT)}")
    Lt(f"v_lshl_add_u32 {v(RW)}, {v(t1)}, 9, {v(t5)}")
    Lt(f"s_mul_i32 {s(sT0)}, {s(sKH)}, {16384+64}")
    Lt(f"v_xor_b32 {v(RW)}, {s(sT0)}, {v(RW)}")
    Lt(f"v_xor_b32 {v(RW+1)}, 64, {v(RW)}")
    Lt(f"v_lshlrev_b32 {v(vL4)}, 2, {v(vL)}")
    sWOB, sCB = P_DBG, P_DBG + 1
    Lt(f"s_and_b32 {s(sT1)}, {s(sJ)}, 1")
    Lt(f"s_and_b32 {s(sWOB)}, {s(sW)}, 2"); Lt(f"s_add_u32 {s(sWOB)}, {s(sWOB)}, {s(sW)}"); Lt(f"s_lshl1_add_u32 {s(sWOB)}, {s(sT1)}, {s(sWOB)}")
    Lt(f"s_lshl_b32 {s(sWOB)}, {s(sWOB)}, 9"); Lt(f"s_add_u32 {s(sWOB)}, {s(sWOB)}, {s(sNB)}"); Lt(f"s_lshl_b32 {s(sWOB)}, {s(sWOB)}, 7")
    Lt(f"s_lshr_b32 {s(sCB)}, {s(sW)}, 1"); Lt(f"s_lshl2_add_u32 {s(sCB)}, {s(sT1)}, {s(sCB)}")
    Lt(f"s_lshl_b32 {s(sT0)}, {s(sNB)}, 9"); Lt(f"s_add_u32 {s(sCB)}, {s(sCB)}, {s(sT0)}"); Lt(f"s_lshl_b32 {s(sCB)}, {s(sCB)}, 7")
    if True:
        Lt(f"s_and_b32 {s(sT0)}, {s(sNB)}, {RM}"); Lt(f"s_lshl_b32 {s(sT0)}, {s(sT0)}, 7"); Lt(f"s_xor_b32 {s(sCB)}, {s(sCB)}, {s(sT0)}")
        Lt(f"s_lshl_b32 {s(sT0)}, {s(sT0)}, 9"); Lt(f"s_xor_b32 {s(sWOB)}, {s(sWOB)}, {s(sT0)}")
    Lt(f"s_mul_i32 {s(sT0)}, {s(sKH)}, {65536+4096}")
    Lt(f"s_lshl_b32 {s(sT1)}, {s(sT1)}, 16"); Lt(f"s_xor_b32 {s(sT0)}, {s(sT0)}, {s(sT1)}")
    Lt(f"s_xor_b32 {s(sT1)}, {s(sT0)}, 4096")
    for q in range(4):
        Lt(f"v_add_u32 {v(RA+q)}, {s(sT0)}, {v(RN+q)}")
        Lt(f"v_add_u32 {v(RB+q)}, {s(sT1)}, {v(RN+q)}")
    Lt(f"s_mov_b64 {s(R_WS,2)}, {s(P_WS,2)}")
    Lt(f"s_mov_b64 {s(R_WO,2)}, {s(P_WO,2)}")
    Lt(f"s_mov_b64 {s(R_OUT,2)}, {s(P_OUT,2)}")
    PRE = opt.get('pre', 27)
    run(late[:PRE]); late = late[PRE:]
    A(f"s_cmp_eq_u32 {s(sTY)}, 0")
    A("s_waitcnt lgkmcnt(0)")
    stamp(20)
    A(f"s_mov_b64 {s(R_X,2)}, {s(P_X,2)}")
    pLRE, pLIM, pLDT = PR, PR + 1, PR + 2
    A("s_cbranch_scc0 L_nopar")
    A(f"global_load_ushort {v(pLRE)}, {v(t7)}, {s(P_LRE,2)}")
    A(f"global_load_ushort {v(pLIM)}, {v(t7)}, {s(P_LIM,2)}")
    A(f"global_load_ushort {v(pLDT)}, {v(t7)}, {s(P_LDT,2)}")
    tokP = A(f"global_load_dword {v(vE)}, {v(vZ)}, {s(P_WS,2)} sc1")
    A.label("L_nopar")
    A(f"s_cmp_eq_u32 {s(sKH)}, 0")
    def dma(voff, srd, soff, q):
        off = f" offset:{q*1024}" if q else ""
        return f"buffer_load_dwordx4 {v(voff+q)}, {s(srd,4)}, {s(soff)} offen{off} lds"
    for q in range(4):
        A(dma(VX, R_X, sXO, q))
    A(f"s_cselect_b64 {s(R_W,2)}, {s(P_BRE,2)}, {s(P_BIM,2)}")
    A(f"s_cselect_b64 {s(R_C,2)}, {s(P_CRE,2)}, {s(P_CIM,2)}")
    A(f"s_cmp_eq_u32 {s(sTY)}, 0")
    A(f"s_cselect_b64 {s(R_W,2)}, {s(R_W,2)}, {s(P_QKV,2)}")
    A(f"s_mov_b32 m0, {s(sMW)}")
    for q in range(4):
        if q: run(late[:11]); late = late[11:]
        A(dma(VW, R_W, sWO, q))
    utok0 = [A.vm]
    stamp(21)
    def unit_ops(i):
        slot = (i % 4) * 32768
        ops = []
        if G_ == 2 and X_ == 0 and i != 4:
            ops += [f"s_add_u32 {s(sXO)}, {s(sXO)}, 128", f"s_add_u32 m0, {s(sMX)}, {slot}"]
            ops += [dma(VX, R_X, sXO, q) for q in range(4)]
            ops += [f"s_add_u32 {s(sWO)}, {s(sWO)}, {s(sWST)}", f"s_add_u32 m0, {s(sMW)}, {slot}"]
            return ops + [dma(VW, R_W, sWO, q) for q in range(4)]
        ops += [f"s_cmp_eq_u32 {s(sK0)}, {1 if PAIR else 8-i}", f"s_cselect_b32 {s(sD0)}, {(-1 if i & 1 else 3) if PAIR else -7}, 1", f"s_mul_i32 {s(sD1)}, {s(sD0)}, {s(sWST)}",
                f"s_lshl_b32 {s(sD0)}, {s(sD0)}, 7", f"s_add_u32 {s(sXO)}, {s(sXO)}, {s(sD0)}", f"s_add_u32 m0, {s(sMX)}, {slot}"]
        ops += [dma(VX, R_X, sXO, q) for q in range(4)]
        ops += [f"s_add_u32 {s(sWO)}, {s(sWO)}, {s(sD1)}", f"s_add_u32 m0, {s(sMW)}, {slot}"]
        ops += [dma(VW, R_W, sWO, q) for q in range(4)]
        return ops
    u1 = unit_ops(1)
    U1C = opt.get('u1c', 2)
    k = [n for n, o in enumerate(u1) if o.startswith('buffer')][U1C - 1] + 1 if U1C else 0
    run(late[:8]); run(u1[:k]); run(late[8:]); u1 = u1[k:]
    A(f"s_cmp_eq_u32 {s(sTY)}, 0")
    A("s_cbranch_scc0 L_attn")
    snap0 = A.snapshot()

    def unit8_ops(voff, srd, pre, base, rowstep):
        ops = list(pre)
        ops.append(f"s_add_u32 m0, {s(sM8)}, {base}")
        ops += [dma(voff, srd, sD0, q) for q in range(4)]
        ops.append(f"s_add_u32 {s(sD0)}, {s(sD0)}, {rowstep}")
        ops.append(f"s_add_u32 m0, {s(sM8)}, {base+4096}")
        ops += [dma(voff, srd, sD0, q) for q in range(4)]
        return ops
    def wq_ops(u):
        pre = [f"s_xor_b32 {s(sD0)}, {s(sK0)}, {4*u}", f"s_{'xor_b32' if PAIR else 'add_u32'} {s(sD0)}, {s(sD0)}, {s(sW)}", f"s_and_b32 {s(sD0)}, {s(sD0)}, 7",
               f"s_mul_i32 {s(sD0)}, {s(sD0)}, {64*3072}", f"s_lshl_b32 {s(sD1)}, {s(sJ)}, 7", f"s_add_u32 {s(sD0)}, {s(sD0)}, {s(sD1)}"]
        return unit8_ops(VW, R_W, pre, u * 32768, 32 * 3072)
    def wo_ops(u, base):
        pre = [f"s_xor_b32 {s(sD0)}, {s(sWOB)}, {u << 17}"]
        return unit8_ops(VK1, R_WO, pre, base, 32 * 1024)
    def c_ops(slot):
        pre = [f"s_xor_b32 {s(sD0)}, {s(sCB)}, {slot << 8}"]
        return unit8_ops(VN, R_C, pre, slot * 32768, 32 * 1024)
    def wo_reads(u, areg, off):
        L = []
        for st in range(8):
            for tl in range(2):
                d = 128 + 8 * (8 * u + st) + 4 * tl
                L.append(f"ds_read_b64_tr_b16 {a(d,2)}, {v(areg+tl)} offset:{off+st*2048}")
                L.append(f"ds_read_b64_tr_b16 {a(d+2,2)}, {v(areg+tl)} offset:{off+st*2048+1024}")
        return L
    class Stream:
        def __init__(self, ops): self.ops = list(ops)
        def dma(self, n=1):
            while n > 0 and self.ops:
                o = self.ops.pop(0); A(o)
                if o.startswith('buffer_') or o.startswith('global_'): n -= 1; self.last = A.vm
        def salu(self):
            while self.ops and not (self.ops[0].startswith('buffer_') or self.ops[0].startswith('global_')): A(self.ops.pop(0))
        def some(self, n):
            tok = None
            for _ in range(n):
                if self.ops: tok = A(self.ops.pop(0))
            return tok
        def rest(self):
            tok = None
            while self.ops:
                tok = A(self.ops.pop(0)); self.last = A.vm
            return tok
    def sprinkle(ops, stream, every):
        for n, o in enumerate(ops):
            A(o) if isinstance(o, str) else o()
            if (n + 1) % every == 0: stream.dma()

    RA16, RB16 = [RN + 1, RN + 2], [RN + 3, AD + 8]
    EG = opt.get('eg', 0)
    BLK = opt.get('blk', 0)
    def main_loop(kind, tail_units, fill):
        blk = [e[1] for e in fill if e[0] == 100]; fill[:] = [e for e in fill if e[0] != 100]
        utok = list(utok0)
        def reads(i, st):
            slot = (i % 2) * 32768
            b = BUF + 16 * ((4 * i + st) % 2)
            if kind == 'ssm':
                L = [f"ds_read_b128 {a(16*i+4*f,4)}, {v(RX+(f>>1))} offset:{slot+(f&1)*2048}" for f in {0: (0, 1), 1: (2,), 2: (3,), 3: ()}[st]]
                L += [f"ds_read_b128 {v(b+4*tl,4)}, {v(RX+2+(st>>1))} offset:{slot+16384+(st&1)*8192+tl*2048}" for tl in range(4)]
                if i % 2 == 1: L.append(f"v_xor_b32 {v(RX+(0, 2, 1, 3)[st])}, 0x10000, {v(RX+(0, 2, 1, 3)[st])}")
                return L
            s_, hv = st >> 1, st & 1
            wb = TM2 + 8 * hv
            rot = lambda r: [f"v_xor_b32 {v(r)}, 0x10000, {v(r)}"] if i % 2 == 1 else []
            tr = lambda tl: [f"ds_read_b64_tr_b16 {v(wb+4*tl+2*sec,2)}, {v(RB16[tl])} offset:{slot+16384+hv*8192+s_*4096+sec*512}" for sec in range(2)]
            if hv == 0:
                xr = [f"ds_read_b128 {v(BUF+16*s_+4*r,4)}, {v(RA16[s_])} offset:{slot+r*2048}" for r in range(4)]
                return tr(0) + xr + tr(1) + rot(RA16[s_])
            L = tr(0) + tr(1) + [f"ds_read_b128 {a(16*i+4*f,4)}, {v(RX+f)} offset:{slot}" for f in (2 * s_, 2 * s_ + 1)]
            return L + rot(RX + 2 * s_) + rot(RX + 2 * s_ + 1) + (rot(RB16[0]) + rot(RB16[1]) if s_ else [])
        def mfmas(i, st):
            b = BUF + 16 * ((4 * i + st) % 2)
            L = []
            if kind == 'ssm':
                for tl in range(4):
                    for r in ((1, 0) if tl & 1 and opt.get('snake', 1) else (0, 1)):
                        d = v(ACC + 16 * (2 * (st & 1) + (tl & 1)) + 8 * (tl >> 1) + 4 * r, 4)
                        L.append(f"v_mfma_f32_16x16x32_bf16 {d}, {a(16*i+8*(st>>1)+4*r,4)}, {v(b+4*tl,4)}, {'0' if i == 0 and st < 2 else d}")
                return L
            for tl in range(2):
                for r in ((3, 2, 1, 0) if tl and opt.get('snake', 1) else (0, 1, 2, 3)):
                    d = v(ACC + 32 * (st & 1) + 16 * tl + 4 * r, 4)
                    c = d if i or st > 1 else ("0" if st else "1.0")
                    L.append(f"v_mfma_f32_16x16x32_bf16 {d}, {v(BUF+16*(st>>1)+4*r,4)}, {v(TM2+8*(st&1)+4*tl,4)}, {c}")
            return L
        prev = None
        ET = opt.get('et', 2)
        eX, eW = TMP + 62, TMP + 63 if kind != 'ssm' else TMP + 59
        if kind == 'ssm': eX = TMP + 58
        def etouch(mask):
            A(f"s_mov_b64 exec, {mask:#x}")
            A(f"buffer_load_dword {v(eX-1)}, {v(eX)}, {s(R_X,4)}, 0 offen")
            A(f"buffer_load_dword {v(eX-1)}, {v(eW)}, {s(R_W,4)}, 0 offen")
            A("s_mov_b64 exec, -1")
        tsched = {}
        AT = opt.get('at1', 0)
        if AT and kind == 'ssm': ET = 0
        if AT and kind != 'ssm':
            eB = TMP + 53
            cl = {0: [2, 3, 4, 5, 6, 7, 0, 0], 2: [1, 5, 2, 6, 3, 7, 0, 0]}[G_]
            tab = sum(c_ << (4 * n_) for n_, c_ in enumerate(cl))
            A(f"s_mov_b32 {s(sT0)}, {tab:#x}")
            A(f"v_and_b32 {v(t1)}, 28, {v(vL)}"); A(f"v_bfe_u32 {v(t1)}, {s(sT0)}, {v(t1)}, 4")
            A(f"v_and_b32 {v(t0)}, 3, {v(vL)}"); A(f"v_lshlrev_b32 {v(t2)}, 7, {v(t1)}")
            A(f"v_lshl_add_u32 {v(eX)}, {v(t0)}, 10, {v(t2)}")
            A(f"v_and_b32 {v(t0)}, 1, {v(vL)}"); A(f"v_lshl_add_u32 {v(eB)}, {v(t0)}, 10, {v(t2)}")
            A(f"v_mul_u32_u24 {v(t0)}, 3072, {v(t0)}"); A(f"v_mul_u32_u24 {v(t1)}, {64*3072}, {v(t1)}"); A(f"v_add_u32 {v(t0)}, {v(t0)}, {v(t1)}")
            A(f"s_lshl3_add_u32 {s(sT0)}, {s(sTT)}, {s(sJ)}"); A(f"s_lshl_b32 {s(sT0)}, {s(sT0)}, 12"); A(f"v_add_u32 {v(eX)}, {s(sT0)}, {v(eX)}")
            A(f"s_mul_i32 {s(sT1)}, {s(sC)}, {2*3072}"); A(f"s_add_u32 {s(sT1)}, {s(sT1)}, {s(sWO)}")
            A(f"s_mul_i32 {s(sCNT)}, {s(sK0)}, {64*3072}"); A(f"s_sub_u32 {s(sT1)}, {s(sT1)}, {s(sCNT)}"); A(f"v_add_u32 {v(eW)}, {s(sT1)}, {v(t0)}")
            A(f"s_lshr_b32 {s(sT0)}, {s(sW)}, 1"); A(f"s_lshl1_add_u32 {s(sT0)}, {s(sJ)}, {s(sT0)}"); A(f"s_lshl4_add_u32 {s(sT0)}, {s(sT0)}, {s(sC)}")
            A(f"s_lshl_b32 {s(sT0)}, {s(sT0)}, 11"); A(f"v_add_u32 {v(eB)}, {s(sT0)}, {v(eB)}")
            A(f"s_cmp_eq_u32 {s(sKH)}, 0"); A(f"s_cselect_b64 {s(P_BRE,2)}, {s(P_BRE,2)}, {s(P_BIM,2)}")
            def etouch(sets):
                for k_ in (1, 2, 3):
                    if not sets >> k_ & 1: continue
                    A(f"s_mov_b64 exec, {0xff << (8 * (k_ - 1)):#x}")
                    A(f"buffer_load_dword {v(eX-1)}, {v(eX)}, {s(R_X,4)}, 0 offen")
                    A(f"global_load_dword {v(eX-1)}, {v(eB)}, {s(P_BRE,2)}")
                    A(f"buffer_load_dword {v(eX-1)}, {v(eW)}, {s(R_W,4)}, 0 offen")
                A("s_mov_b64 exec, -1")
            m0_, m1_, m2_ = {1: (0, 12, 0), 2: (12, 0, 0), 3: (14, 0, 0), 4: (0, 14, 0), 5: (4, 8, 0), 6: (6, 8, 0), 7: (2, 12, 0)}[AT]
            if m0_: etouch(m0_)
        elif ET and PAIR:
            rs, ws_ = (1024, 128) if kind == 'ssm' else (3072, 64 * 3072)
            A(f"v_and_b32 {v(t0)}, 1, {v(vL)}"); A(f"v_bfe_u32 {v(t1)}, {v(vL)}, 1, 3")
            A(f"v_lshlrev_b32 {v(t2)}, 7, {v(t1)}"); A(f"v_lshl_add_u32 {v(t2)}, {v(t0)}, 10, {v(t2)}")
            if kind != 'ssm':
                A(f"v_mul_u32_u24 {v(t0)}, {rs}, {v(t0)}"); A(f"v_mul_u32_u24 {v(t1)}, {ws_}, {v(t1)}"); A(f"v_add_u32 {v(t0)}, {v(t0)}, {v(t1)}")
            A(f"s_lshl1_add_u32 {s(sT0)}, {s(sJ)}, {s(sTY)}"); A(f"s_lshl4_add_u32 {s(sT0)}, {s(sTT)}, {s(sT0)}"); A(f"s_lshl_b32 {s(sT0)}, {s(sT0)}, 11")
            A(f"s_mul_i32 {s(sT1)}, {s(sC)}, {2*rs}"); A(f"s_add_u32 {s(sT1)}, {s(sT1)}, {s(sWO)}")
            A(f"s_mul_i32 {s(sCNT)}, {s(sK0)}, {ws_}"); A(f"s_sub_u32 {s(sT1)}, {s(sT1)}, {s(sCNT)}")
            A(f"v_add_u32 {v(eW)}, {s(sT1)}, {v(t2 if kind == 'ssm' else t0)}"); A(f"v_add_u32 {v(eX)}, {s(sT0)}, {v(t2)}")
            m0_, m2_ = 0, 0
            m1_, tsched = {1: (0xfff0, {}), 2: (0xf0, {1: 0xf00, 3: 0xf000}), 3: (0xf0, {1: 0xff00}), 4: (0xff0, {1: 0xf000}), 5: (0xf0, {0: 0xf00, 2: 0xf000})}[ET]
        elif ET:
            assert 0 < U1C <= 4
            rs, ws_ = (1024, 128) if kind == 'ssm' else (3072, 64 * 3072)
            A(f"v_and_b32 {v(t0)}, 3, {v(vL)}"); A(f"v_bfe_u32 {v(t1)}, {v(vL)}, 2, 2")
            A(f"v_lshlrev_b32 {v(t2)}, 7, {v(t1)}"); A(f"v_lshl_add_u32 {v(t2)}, {v(t0)}, 10, {v(t2)}")
            if kind != 'ssm':
                A(f"v_mul_u32_u24 {v(t0)}, {rs}, {v(t0)}"); A(f"v_mul_u32_u24 {v(t1)}, {ws_}, {v(t1)}"); A(f"v_add_u32 {v(t0)}, {v(t0)}, {v(t1)}")
            A(f"s_and_b32 {s(sT0)}, {s(sJ)}, 6"); A(f"s_add_u32 {s(sT0)}, {s(sT0)}, {s(sTY)}"); A(f"s_lshl_b32 {s(sT0)}, {s(sT0)}, 12")
            A(f"s_add_u32 {s(sT0)}, {s(sT0)}, {s(sXO)}")
            A(f"s_lshr_b32 {s(sT1)}, {s(sC)}, 1"); A(f"s_mul_i32 {s(sT1)}, {s(sT1)}, {4*rs}"); A(f"s_add_u32 {s(sT1)}, {s(sT1)}, {s(sWO)}")
            A(f"s_add_u32 {s(sT1)}, {s(sT1)}, {ws_}")
            A(f"v_add_u32 {v(eW)}, {s(sT1)}, {v(t2 if kind == 'ssm' else t0)}"); A(f"v_add_u32 {v(eX)}, {s(sT0)}, {v(t2)}")
            m0_, m1_, m2_ = {1: (0, 0xff0, 0), 2: (0, 0xf0, 0xf00), 3: (0xf, 0xf0, 0xf00), 4: (0xff, 0xf00, 0), 5: (0xf, 0xff0, 0), 6: (0xfff, 0, 0)}[ET]
            if m0_: etouch(m0_)
        u1s = Stream(u1); n = 0; left = 8 - U1C
        DF_ = opt.get('defer', 1)
        while fill and fill[0][0] < 0 and not (DF_ and left == 0 and fill[0][0] > -2):
            g = fill.pop(0)[1]; run(g); n += len(g)
            if n >= opt.get('u1e', 11) and left > 0:
                n = 0; left -= 1; u1s.dma()
                if left == -opt.get('pgit', 2): page_touch(kind[0])
                if left == 0 and ET and m1_: etouch(m1_); m1_ = 0
        u1s.rest(); utok.append(u1s.last)
        if ET and m1_: etouch(m1_)
        stamp(1)
        D3 = opt.get('d3', 0)
        if D3:
            u2s = Stream(unit_ops(2)); u2s.dma(D3)
        kk = [n for n, o in enumerate(tail_units[1]) if o.startswith('buffer')][(opt.get('t1s', 2) if kind == 'ssm' else opt.get('t1', 8)) - 1] + 1
        tail_units[1], leftover = tail_units[1][:kk], tail_units[1][kk:]
        T0 = opt.get('t0s', 8) if kind == 'ssm' else 8
        if T0 < 8:
            kk = [n for n, o in enumerate(tail_units[0]) if o.startswith('buffer')][T0 - 1] + 1
            tail_units[0], tail_units[1] = tail_units[0][:kk], tail_units[0][kk:] + tail_units[1]
        streams = [Stream(unit_ops(i + 2) if i + 2 < 8 else tail_units[i - 6]) for i in range(8)]
        if kind == 'ssm' and EG:
            streams[EG & 7].ops += [f"s_lshr_b32 {s(sD0)}, {s(sMX)}, 2", f"s_add_u32 m0, {s(sD0)}, {SCR+20480}", f"buffer_load_dwordx4 {v(vL16)}, {s(P_GW,4)}, 0 offen lds"]
            if EG & 8: streams[EG & 7].ops += [f"s_mov_b32 m0, {s(sXM)}", dma(VN, R_X, sXT, 0), dma(VN, R_X, sXT, 1)]
        for i in range(8):
            nxt = streams[i]
            if D3 and i == 0: nxt = Stream(u2s.ops + unit_ops(3)); tok2 = A.vm + 8 - D3
            if D3 and i == 1: nxt = Stream([])
            nxt.salu()
            if i and i == opt.get('pgit', 2): page_touch(kind[0])
            if opt.get('xnop') and (i == opt['xat'] if 'xat' in opt else i >= 3):
                for _ in range(opt['xnop']): A("s_nop 15")
            A.wait(vm=utok[i])
            A("s_barrier")
            if opt.get('marks'): A.label(f"M_{kind}_{i}")
            stamp(30 + i)
            burst = i < opt.get('burst', 1)
            tdone = False
            for st in range(4):
                rd = reads(i, st)
                if prev is None:
                    run(rd); prev = (i, st, A.lg); nxt.dma(4 if burst else 2); nxt.salu(); continue
                ms = mfmas(prev[0], prev[1])
                need = lambda L_: max(A.pend_lg.get(r, 0) for o in L_ for r in Ins(o).srcAB)
                wts = {0: need(ms[:4]), 4: need(ms[4:])} if opt.get('fw', 1) else {0: prev[2]}
                split = opt.get('sa', [3, 1, 1, 1, 0, 2, 0, 9]) if kind == 'attn' else opt.get('ss', [1, 1, 1, 1, 0, 1, 0, 9])
                fper = opt.get('fa', [0, 1, 1, 0, 0, 0, 0, 0]) if kind == 'attn' else opt.get('fs', [1, 1, 1, 0, 0, 1, 0, 0])
                dgap = opt.get('dga', [4, 6]) if kind == 'attn' else opt.get('dgs', [4, 6])
                for tl in range(len(ms)):
                    if tl in wts: A.wait(lg=wts[tl])
                    A(ms[tl])
                    run(rd[:split[tl]]); rd = rd[split[tl]:]
                    if tl in dgap or (burst and tl % 2 == dgap[0] % 2): nxt.dma()
                    elif not rd or split[tl] == 0:
                        nxt.salu()
                        if not nxt.ops and i < 7 and not D3: streams[i + 1].salu()
                    n = fper[tl]
                    while n > 0 and fill and 0 <= fill[0][0] <= i:
                        g = fill.pop(0)[1]
                        run(g); n -= len(g)
                assert not rd
                prev = (i, st, A.lg)
                if not nxt.ops and not tdone:
                    tdone = True; utk = A.vm
                    if i == 0 and ET and m2_: etouch(m2_)
                    if i in tsched: etouch(tsched[i])
                    if i == opt.get('wta', -1): A(f"global_load_dword {v(vJ)}, {v(vJ)}, {s(P_BX,2)}")
            nxt.rest()
            n = opt.get('dn', 200)
            while fill and fill[0][0] <= min(i, 0) and n > 0 and (fill[0][0] < 0 or DF_):
                g = fill.pop(0)[1]; run(g); n -= len(g)
            if i == BLK:
                for g in blk: run(g)
            if D3 and i == 0: utok += [tok2, A.vm]
            elif not (D3 and i == 1): utok.append(nxt.last)
        assert not fill, len(fill)
        A.wait(lg=prev[2])
        run(mfmas(prev[0], prev[1]))
        return utok, leftover

    def weight_touch(F, ssm):
        if not opt.get('wt', 2): return
        it = F.it
        F.it = -1
        if opt.get('wt', 2) == 2:
            if ssm == (opt.get('wtr', 0) == 0) and opt.get('wtit', 7) < 8:
                F(f"s_lshl3_add_u32 {s(sCNT)}, {s(sC)}, {s(sJ)}"); F(f"s_lshl_b32 {s(sCNT)}, {s(sCNT)}, 12")
                F(f"s_cmp_lt_u32 {s(sW)}, 2", f"s_cselect_b64 {s(P_BX,2)}, {s(R_C,2)}, {s(P_WO,2)}", f"s_cselect_b32 {s(sD0)}, 1, 2")
                F(f"v_lshrrev_b32 {v(vJ)}, {s(sD0)}, {v(vL)}"); F(f"v_lshl_add_u32 {v(vJ)}, {v(vJ)}, 7, {s(sCNT)}")
                F(f"s_cmp_eq_u32 {s(sW)}, 3", f"s_cselect_b32 {s(sD0)}, 0x800, 0"); F(f"v_add_u32 {v(vJ)}, {s(sD0)}, {v(vJ)}")
                F.it = opt.get('wtit', 7) - 0.5
                F(f"global_load_dword {v(vJ)}, {v(vJ)}, {s(P_BX,2)}")
                F.it = -1
            if ssm == (opt.get('wqr', 0) == 0):
                F(f"s_and_b32 {s(sCNT)}, {s(sTT)}, 31")
                F(f"s_mul_i32 {s(sCNT)}, {s(sCNT)}, {16*24}"); F(f"s_add_u32 {s(sCNT)}, {s(sCNT)}, {s(sJ)}"); F(f"s_lshl_b32 {s(sCNT)}, {s(sCNT)}, 7")
                F(f"v_lshrrev_b32 {v(vF)}, 2, {v(vL)}"); F(f"v_mul_u32_u24 {v(vF)}, 3072, {v(vF)}"); F(f"v_add_u32 {v(vF)}, {s(sCNT)}, {v(vF)}")
                F(f"s_mov_b64 {s(P_WO,2)}, {s(P_QKV,2)}")
                F.it = opt.get('wqit', 1) - 0.5
                F(f"global_load_dword {v(vF)}, {v(vF)}, {s(P_WO,2)}")
            F.sort(key=lambda e: e[0])
            F.it = it
            return
        F(f"s_lshl3_add_u32 {s(sCNT)}, {s(sRB)}, {s(sNB)}")
        F(f"v_lshrrev_b32 {v(vJ)}, 2, {v(vL)}")
        F(f"s_lshl_b32 {s(sCNT)}, {s(sCNT)}, 4")
        F(f"v_add_u32 {v(vJ)}, {s(sCNT)}, {v(vJ)}")
        F(f"v_lshrrev_b32 {v(vF)}, 3, {v(vJ)}")
        F(f"v_lshlrev_b32 {v(vJ)}, 7, {v(vJ)}")
        F(f"s_cmp_eq_u32 {s(sW)}, 3", f"s_cselect_b32 {s(sCNT)}, 0x800, 0", f"s_cselect_b64 {s(P_BX,2)}, {s(P_QKV,2)}, {s(P_WO,2)}")
        F(f"v_mad_u32_u24 {v(vJ)}, {v(vF)}, {s(sCNT)}, {v(vJ)}")
        F(f"s_cmp_lt_u32 {s(sW)}, 2", f"s_cselect_b64 {s(P_BX,2)}, {s(R_C,2)}, {s(P_BX,2)}")
        F.sort(key=lambda e: e[0])
        F.it = opt.get('wtit', 7) - 0.5
        if opt.get('wta', -1) < 0: F(f"global_load_dword {v(vJ)}, {v(vJ)}, {s(P_BX,2)}")
        F.sort(key=lambda e: e[0])
        F.it = it
    class Fill(list):
        it = -1
        def __call__(self, *ops): self.append((self.it, list(ops)))
    def epoch_load():
        A("s_mov_b64 exec, 1")
        A(f"global_load_dword {v(vE)}, {v(vZ)}, {s(P_WS,2)} sc1")
        A("s_mov_b64 exec, -1")
    def get_tag(F):
        F(f"v_readfirstlane_b32 {s(sTAG)}, {v(vE)}")
        F(f"s_mul_i32 {s(sTAG)}, {s(sTAG)}, 0x9E3779B5")
        F(f"s_add_u32 {s(sTAG)}, {s(sTAG)}, 0x7F4A7C15")
        F(f"v_mov_b32 {v(vTAG)}, {s(sTAG)}")
    def cmul4(F, d, x, y):
        if F.it < 0 or F.it == 100:
            for o in cmul_ops(d, x, y): F(o)
            return
        F(f"v_mul_f32 {v(d)}, {v(x)}, {v(y)}")
        F(f"v_mul_f32 {v(d+1)}, {v(x)}, {v(y+1)}")
        F(f"v_fma_f32 {v(d)}, -{v(x+1)}, {v(y+1)}, {v(d)}")
        F(f"v_fmac_f32 {v(d+1)}, {v(x+1)}, {v(y)}")
    def p2_early(F, junk):
        it = F.it; F.it = -0.9
        F(f"s_lshr_b32 {s(sTT2)}, {s(sW)}, 1"); F(f"s_lshl1_add_u32 {s(sTT2)}, {s(sRB)}, {s(sTT2)}")
        F(f"s_lshl1_add_u32 {s(sHFA)}, {s(sTT2)}, {s(sKH)}"); F(f"s_lshl_b32 {s(sHFA)}, {s(sHFA)}, 10"); F(f"s_add_u32 {s(sHFA)}, {s(sHFA)}, {WS_HF}")
        F(f"s_mul_i32 {s(sHB)}, {s(sTT2)}, 3"); F(f"s_add_u32 {s(sHB)}, {s(sHB)}, {s(sKH)}")
        F(f"s_and_b32 {s(sXT)}, {s(sNB)}, {RM}"); F(f"s_lshl2_add_u32 {s(sHB)}, {s(sHB)}, {s(sXT)}")
        F(f"s_lshl_b32 {s(sHB)}, {s(sHB)}, 13"); F(f"s_add_u32 {s(sHB)}, {s(sHB)}, {WS_ACT}")
        F(f"s_lshl2_add_u32 {s(sXT)}, {s(sRB)}, {s(sW)}"); F(f"s_lshl_b32 {s(sXT)}, {s(sXT)}, 7"); F(f"s_add_u32 {s(sXT)}, {s(sXT)}, {s(sNB)}")
        F(f"s_lshl_b32 {s(sXT)}, {s(sXT)}, 7")
        F(f"s_lshr_b32 {s(sXM)}, {s(sMX)}, 1"); F(f"s_add_u32 {s(sXM)}, {s(sXM)}, {XS}")
        F(f"s_lshl1_add_u32 {s(sCOL)}, {s(sNB)}, {s(sKH)}"); F(f"s_lshl_b32 {s(sCOL)}, {s(sCOL)}, 6")
        if opt.get('tlb', 0):
            F.it = opt.get('tlbit', 1) - 0.45
            for r in (R_C, R_WO, R_OUT): F(f"buffer_load_dword {v(junk)}, {v(vZ)}, {s(r,4)}, {s(sWOB)} offen")
        F.it = opt.get('dsit', 0 if junk == TMP + 57 else 1) - 0.4
        F(f"v_and_b32 {v(vE)}, 31, {v(vL)}")
        F(f"v_lshl_add_u32 {v(vE)}, {v(vE)}, 1, {s(sCOL)}")
        F(f"global_load_ushort {v(vE)}, {v(vE)}, {s(P_DSK,2)}")
        F.sort(key=lambda e: e[0])
        F.it = it
    def p2_setup():
        A(f"s_mov_b32 m0, {s(sXM)}")
        for q in range(2): A(dma(VN, R_X, sXT, q))
    def p2_late():
        L = []
        B = lambda *o: L.append(list(o))
        B(f"s_and_b32 {s(sT0)}, {s(sMX)}, 8192"); B(f"s_lshr_b32 {s(sT0)}, {s(sT0)}, 1"); B(f"s_add_u32 {s(sT0)}, {s(sT0)}, {XS}")
        B(f"s_lshl_b32 {s(sT1)}, {s(sKH)}, 6")
        B(f"v_xor_b32 {v(AD+10)}, {s(sT1)}, {v(RN)}")
        B(f"v_add_u32 {v(AD+10)}, {s(sT0)}, {v(AD+10)}")
        B(f"v_xor_b32 {v(AD+11)}, 32, {v(AD+10)}")
        for q in range(4): B(f"v_mov_b64 {v(DF+2*q,2)}, 0")
        B(f"v_mov_b32 {v(vE+1)}, 0")
        B(f"v_and_b32 {v(t6)}, 48, {v(vL16)}")
        B(f"v_lshlrev_b64 {v(t4,2)}, {v(t6)}, {v(vE,2)}")
        for q in range(4):
            m = 0xf << (16 * (q >> 1) + 4 * (q & 1))
            B(f"s_mov_b32 exec_lo, {m:#x}", f"s_mov_b32 exec_hi, {m << 8:#x}", f"v_mov_b64 {v(DF+2*q,2)}, {v(t4,2)}", "s_mov_b64 exec, -1")
        B(f"v_and_b32 {v(t0)}, 31, {v(vL)}")
        B(f"v_lshrrev_b32 {v(t1)}, 5, {v(vL)}")
        B(f"v_lshlrev_b32 {v(AD+7)}, 2, {v(t0)}")
        B(f"s_lshl_b32 {s(sT1)}, {s(sW)}, 7"); B(f"s_add_u32 {s(sT1)}, {s(sT1)}, {SCR+16384}")
        B(f"v_lshl_add_u32 {v(AD+2)}, {v(t1)}, 4, {s(sT1)}")
        B(f"v_add_u32 {v(AD)}, {s(sT1)}, {v(AD+7)}")
        B(f"v_lshl_add_u32 {v(t2)}, {s(sCOL)}, 1, {v(AD+7)}")
        B(f"v_lshl_add_u32 {v(AD+1)}, {v(t1)}, 13, {v(t2)}")
        B(f"s_xor_b32 {s(sT0)}, {s(sMX)}, 4096"); B(f"s_add_u32 {s(sT0)}, {s(sT0)}, {SCR}")
        B(f"v_add_u32 {v(AD+4)}, {s(sT0)}, {v(vL16)}")
        B(f"v_xor_b32 {v(AD+5)}, 4096, {v(AD+4)}")
        B(f"s_mul_i32 {s(sU1)}, {s(sTT2)}, 6"); B(f"s_add_u32 {s(sU1)}, {s(sU1)}, {s(sKH)}")
        B(f"s_and_b32 {s(sT0)}, {s(sJ)}, 1"); B(f"s_lshl_b32 {s(sT0)}, {s(sT0)}, 1"); B(f"s_and_b32 {s(sT1)}, {s(sNB)}, {RM}"); B(f"s_xor_b32 {s(sT0)}, {s(sT0)}, {s(sT1)}")
        B(f"s_lshl2_add_u32 {s(sU1)}, {s(sU1)}, {s(sT0)}"); B(f"s_lshl_b32 {s(sU1)}, {s(sU1)}, 12"); B(f"s_add_u32 {s(sU1)}, {s(sU1)}, {WS_ACT+65536}")
        B(f"s_lshl_b32 {s(sU2)}, {s(sTT2)}, 7"); B(f"s_add_u32 {s(sU2)}, {s(sU2)}, {WS_G}")
        return L
    sHFA, sHB, sXT, sXM, sCOL = P_X + 1, P_WS, P_WS + 1, P_QKV, P_QKV + 1
    XS = SCR + 24576
    sFM = sMW; sTT2 = P_X; XF = TM2 + 16; DF = TM2 + 24

    def cmul_ops(dst, x, y, add=None):
        if add is None: o = f"v_pk_mul_f32 {v(dst,2)}, {v(x,2)}, {v(y,2)} op_sel_hi:[0,1]"
        else: o = f"v_pk_fma_f32 {v(dst,2)}, {v(x,2)}, {v(y,2)}, {v(add,2)} op_sel_hi:[0,1,1]"
        return [o, f"v_pk_fma_f32 {v(dst,2)}, {v(x,2)}, {v(y,2)}, {v(dst,2)} op_sel:[1,1,0] op_sel_hi:[1,0,1] neg_lo:[0,1,0]"]
    def cmul(*a_): run(cmul_ops(*a_))

    def spin(name, load, check):
        A(f"s_mov_b32 {s(sCNT)}, {SPIN}")
        A.label(name)
        load()
        A.wait_all(vm=True, lg=False, force=True)
        check()
        A(f"s_sub_u32 {s(sCNT)}, {s(sCNT)}, 1")
        A(f"s_cbranch_scc1 {name}_x")
        A(f"s_cbranch_vccnz {name}")
        A.label(name + "_x")
    def flag_store(soff, mask=1, voff=vZ):
        A(f"s_mov_b64 exec, {mask}")
        A(f"buffer_store_dword {v(vTAG)}, {v(voff)}, {s(R_WS,4)}, {s(soff)} offen sc1")
        A("s_mov_b64 exec, -1")
    def flag_addr(F, dst, tmp, base):
        F(f"s_lshr_b32 {s(tmp)}, {s(sJ)}, 2"); F(f"s_lshl1_add_u32 {s(dst)}, {s(sTT)}, {s(tmp)}"); F(f"s_lshl_b32 {s(dst)}, {s(dst)}, 8")
        F(f"s_and_b32 {s(tmp)}, {s(sJ)}, 3"); F(f"s_add_u32 {s(dst)}, {s(dst)}, {s(tmp)}"); F(f"s_lshl2_add_u32 {s(dst)}, {s(dst)}, {base}")
        if opt.get('ft', 1): F(f"s_load_dword s8, {s(R_WS,2)}, {s(dst)} glc")

    def page_touch(r):
        if opt.get('nopg', 1): return
        A("s_mov_b64 exec, 0")
        for n in range(2):
            A(f"s_cmp_eq_u32 {s(sW)}, {n}")
            A(f"s_cbranch_scc1 L_pg_{r}_{n}")
        if r == 'a':
            A(f"s_cmp_eq_u32 {s(sW)}, 2")
            A("s_cbranch_scc1 L_phase2")
        A.label(f"L_pgret_{r}")
        A("s_mov_b64 exec, -1")
    sP = 8
    def sflag(soff, off=0): A(f"s_atomic_swap {s(sTAG)}, {s(R_WS,2)}, {s(soff)}" + (f" offset:{off}" if off else ""))
    def ssample(n):
        A({4: f"s_load_dwordx4 {s(sP,4)}, {s(R_WS,2)}, {s(sHFA)} glc", 5: f"s_load_dwordx8 {s(sP,8)}, {s(R_WS,2)}, {s(sHFA)} offset:{WS_OF-WS_HF} glc",
           16: f"s_load_dwordx16 {s(sP,16)}, {s(R_WS,2)}, {s(sU0)} glc"}[n])
    def scheck(n):
        A.wait_all(vm=False, lg=True, force=True)
        for q in range(n): A(f"s_xor_b32 {s(sP+q)}, {s(sP+q)}, {s(sTAG)}")
        if n == 5: A(f"s_or_b32 {s(sP)}, {s(sP)}, {s(sP+4)}")
        for q in range(2, n - 1, 2): A(f"s_or_b64 {s(sP,2)}, {s(sP,2)}, {s(sP+q,2)}")
    def sspin(name, n):
        A(f"s_mov_b32 {s(sCNT)}, {SPIN}")
        A.label(name)
        A(f"s_sub_u32 {s(sCNT)}, {s(sCNT)}, 1")
        A(f"s_cbranch_scc1 {name}_x")
        ssample(n); scheck(n)
        A(f"s_cbranch_scc1 {name}")
        A.label(name + "_x")
    def poll_issue(): ssample(4)
    AHEAD = opt.get('ahead', 10)
    GG = TM2
    def load_ops(n):
        o = []
        if n < 32:
            if n % 4 == 0 and n: o.append(f"s_xor_b32 {s(sHB)}, {s(sHB)}, {((n//4) ^ (n//4-1)) << 12}")
            o.append(f"buffer_load_dwordx4 {a(4*n,4)}, {v(vL16)}, {s(R_WS,4)}, {s(sHB)} offen offset:{(n%4)*1024} sc1")
        else:
            k = n - 32
            if k == 0: o.append(f"buffer_load_dword {v(vE)}, {v(AD+7)}, {s(R_WS,4)}, {s(sU2)} offen sc1")
            if k % 4 == 0 and k: o.append(f"s_xor_b32 {s(sU1)}, {s(sU1)}, {0x3000 if k == 8 else 0x1000}")
            o.append(f"buffer_load_dwordx4 {v(TMP+4*k,4)}, {v(vL16)}, {s(R_WS,4)}, {s(sU1)} offen offset:{(k%4)*1024} sc1")
        return o
    def creads(ks):
        jb, m, st = ks >> 3, (ks >> 1) & 3, ks & 1
        ct, cp = m >> 1, m & 1
        b = BUF + 8 * (ks % 4)
        off = jb * 16384 + cp * 8192
        return [f"ds_read_b128 {v(b,4)}, {v(RA+2*ct+st)} offset:{off}", f"ds_read_b128 {v(b+4,4)}, {v(RB+2*ct+st)} offset:{off}"]
    def p2_head(late_flag):
        ltok = []; old = A.vm
        def ld1(): ltok.append(run(load_ops(len(ltok))))
        for k in range(3): ld1()
        n = 0
        for g in p2_late():
            run(g); n += len(g)
            if n >= 10 and len(ltok) < AHEAD - 1: n = 0; ld1()
        while len(ltok) < AHEAD: ld1()
        A.wait(vm=old)
        late_flag("L_noflag2")
        A("s_barrier")
        for q in range(2): tx = A(f"ds_read_b128 {v(XF+4*q,4)}, {v(AD+10+q)}")
        ctok = [run(creads(k)) for k in range(3)]
        A.wait(lg=tx)
        for q in range(2): A(f"v_mfma_f32_32x32x16_bf16 {v(ACC,16)}, {v(XF+4*q,4)}, {v(DF+4*q,4)}, {'0' if q == 0 else v(ACC,16)}")
        while len(ltok) < AHEAD: ld1()
        return ltok, ctok
    KCHK = 32 - AHEAD
    def step2a(ks, more, ltok, ctok, chk=False):
        A.wait(vm=ltok[ks], lg=ctok[ks])
        stamp(100 + ks)
        b = BUF + 8 * (ks % 4)
        A(f"v_mfma_f32_32x32x16_bf16 {v(ACC,16)}, {a(4*ks,4)}, {v(b,4)}, {v(ACC,16)}")
        if more: ltok.append(run(load_ops(ks + AHEAD)))
        A(f"v_mfma_f32_32x32x16_bf16 {v(ACC+16,16)}, {a(4*ks,4)}, {v(b+4,4)}, {'0' if ks == 0 else v(ACC+16,16)}")
        if chk: scheck(5)
        if ks + 3 < 32: ctok.append(run(creads(ks + 3)))
    A.label("L_ssm")
    LT = PR
    L1, KK, L8, L32 = PR + 8, PR + 10, PR + 12, PR + 14
    WG_ = PR + 16
    WS_ = PR + 24
    L2T, L128, KT = TMP + 32, TMP + 2, AD + 2
    def tr4(b_):
        return [f"v_permlane32_swap_b32 {v(b_+2*q+e)}, {v(b_+2*q+4+e)}" for e in range(2) for q in range(2)] + \
               [f"v_permlane16_swap_b32 {v(b_+4*q+e)}, {v(b_+4*q+2+e)}" for e in range(2) for q in range(2)]
    GWS = SCR + 20480
    F = Fill()
    F(f"s_cmp_lt_u32 {s(sW)}, 2", f"s_cselect_b32 {s(P_GW+2)}, 0x400, 0")
    F(f"s_mov_b32 {s(P_GW+3)}, 0x20000")
    GR = TMP + 60
    sHF = sEPS
    flag_addr(F, sHF, sT0, WS_HF)
    F(f"s_lshl_b32 {s(sT0)}, {s(sW)}, 9")
    F(f"v_lshlrev_b32 {v(AD)}, 3, {v(vL)}")
    F(f"v_add_u32 {v(AD)}, {SCR}, {v(AD)}")
    F(f"v_add_u32 {v(AD+1)}, {s(sT0)}, {v(AD)}")
    F(f"s_lshl4_add_u32 {s(sT2)}, {s(sJ)}, {s(sC)}"); F(f"s_lshl_b32 {s(sT2)}, {s(sT2)}, 10")
    F(f"s_add_u32 {s(sT2)}, {s(sT2)}, {WS_AGG}")
    F(f"s_mul_i32 {s(sU3)}, {s(sTT)}, 98304"); F(f"s_lshl_b32 {s(sT0)}, {s(sJ)}, 13"); F(f"s_add_u32 {s(sU3)}, {s(sU3)}, {s(sT0)}")
    F(f"s_add_u32 {s(sU3)}, {s(sU3)}, {WS_ACT}")
    F.it = -2
    F(f"v_and_b32 {v(t0)}, 15, {v(vL)}"); F(f"v_lshrrev_b32 {v(t1)}, 4, {v(vL)}"); F(f"v_lshrrev_b32 {v(t2)}, 1, {v(t0)}")
    F(f"v_xor_b32 {v(t2)}, {v(t2)}, {v(t1)}"); F(f"v_lshlrev_b32 {v(t2)}, 4, {v(t2)}")
    F(f"v_lshl_add_u32 {v(RX+2)}, {v(t0)}, 7, {v(t2)}"); F(f"v_xor_b32 {v(RX+3)}, 64, {v(RX+2)}")
    F(f"v_add_u32 {v(RX)}, {s(sMX)}, {v(RX+2)}"); F(f"v_add_u32 {v(RX+1)}, {s(sMX)}, {v(RX+3)}")
    F(f"v_lshlrev_b32 {v(t0)}, 4, {v(t0)}"); F(f"v_lshl_add_u32 {v(RT)}, {v(t1)}, 9, {v(t0)}")
    F.it = -1
    F(f"v_cvt_f32_u32 {v(t6)}, {s(sW)}")
    F(f"v_mul_f32 {v(t6)}, 0x42000000, {v(t6)}")
    F(lambda: A.wait(vm=tokP))
    get_tag(F)
    F(f"v_lshlrev_b32 {v(pLRE)}, 16, {v(pLRE)}")
    F(f"v_lshlrev_b32 {v(pLIM)}, 16, {v(pLIM)}")
    F(f"v_lshlrev_b32 {v(pLDT)}, 16, {v(pLDT)}")
    F(f"v_xor_b32 {v(pLIM)}, 0x80000000, {v(pLIM)}")
    F(f"v_mul_f32 {v(t0)}, 0x3fb8aa3b, {v(pLDT)}")
    F(f"v_exp_f32 {v(t0)}, {v(t0)}")
    F(f"v_mul_f32 {v(t5)}, {v(pLRE)}, {v(pLRE)}")
    F(f"v_cvt_pk_bf16_f32 {v(t0)}, {v(t0)}, {v(t0)}")
    F(f"v_and_b32 {v(t0)}, 0xffff0000, {v(t0)}")
    EXA, EXB = TMP, TMP + 1
    F(f"v_mul_f32 {v(EXA)}, {v(t0)}, {v(pLRE)}")
    F(f"v_mul_f32 {v(EXB)}, {v(t0)}, {v(pLIM)}")
    F(f"v_mul_f32 {v(EXA)}, 0x3fb8aa3b, {v(EXA)}")
    F(f"v_mul_f32 {v(EXB)}, 0.15915494, {v(EXB)}")
    def cexp(d, ea, eb):
        F(f"v_exp_f32 {v(t1)}, {v(ea)}")
        F(f"v_rndne_f32 {v(t3)}, {v(eb)}")
        F(f"v_sub_f32 {v(t2)}, {v(eb)}, {v(t3)}")
        F(f"v_cos_f32 {v(t3)}, {v(t2)}")
        F(f"v_sin_f32 {v(t4)}, {v(t2)}")
        F(f"v_mul_f32 {v(d)}, {v(t1)}, {v(t3)}")
        F(f"v_mul_f32 {v(d+1)}, {v(t1)}, {v(t4)}")
    cexp(L1, EXA, EXB)
    F(f"v_fmac_f32 {v(t5)}, {v(pLIM)}, {v(pLIM)}")
    F(f"v_rcp_f32 {v(t0)}, {v(t5)}")
    F(f"v_add_f32 {v(t1)}, -1.0, {v(L1)}")
    F(f"v_add_f32 {v(t0)}, {v(t0)}, {v(t0)}")
    F(f"v_mul_f32 {v(t2)}, {v(t1)}, {v(pLRE)}")
    F(f"v_fmac_f32 {v(t2)}, {v(L1+1)}, {v(pLIM)}")
    F(f"v_mul_f32 {v(t3)}, {v(L1+1)}, {v(pLRE)}")
    F(f"v_fma_f32 {v(t3)}, -{v(t1)}, {v(pLIM)}, {v(t3)}")
    F(f"v_mul_f32 {v(KK)}, {v(t2)}, {v(t0)}")
    F(f"v_mul_f32 {v(KK+1)}, {v(t3)}, {v(t0)}")
    cmul4(F, L2T, L1, L1); cmul4(F, t2, L2T, L2T); cmul4(F, L8, t2, t2); cmul4(F, t0, L8, L8)
    cmul4(F, L32, t0, t0); cmul4(F, t0, L32, L32); cmul4(F, L128, t0, t0)
    F(f"v_mul_f32 {v(EXA)}, {v(EXA)}, {v(t6)}"); F(f"v_mul_f32 {v(EXB)}, {v(EXB)}, {v(t6)}")
    cexp(WS_, EXA, EXB)
    for q in range(1, 4): cmul4(F, WS_ + 2 * q, WS_ + 2 * q - 2, L8)
    if BLK: F.it = 100
    F(f"v_mul_f32 {v(EXA)}, 0x41800000, {v(EXA)}"); F(f"v_mul_f32 {v(EXB)}, 0x41800000, {v(EXB)}")
    cexp(t6, EXA, EXB)
    cmul4(F, WG_, t6, KK)
    for q in range(1, 4): cmul4(F, WG_ + 2 * q, WG_ + 2 * q - 2, L128)
    F(f"v_mov_b32 {v(GR+1)}, {v(vTAG)}"); F(f"v_mov_b32 {v(GR+3)}, {v(vTAG)}")
    TL = []
    for (src, dst) in ((L2T, L2T), (L1, LT), (KK, KT)):
        TL += [f"v_mov_b64 {v(dst+2*q,2)}, {v(src,2)}" for q in range(4) if dst + 2 * q != src]
    TL += tr4(L2T) + tr4(LT) + tr4(KT)
    so = [sT0, sT1, sT3, sU0]; ex = [sU1, sU2, sL2E, sL2E + 1]
    for q in range(4):
        F(f"s_lshl2_add_u32 {s(so[q])}, {s(sW)}, {q+1}")
        F(f"s_lshl_b32 {s(ex[q])}, {s(so[q])}, 10")
        F(f"s_sub_u32 {s(ex[q])}, {s(sT2)}, {s(ex[q])}")
        F(f"s_cmp_le_u32 {s(so[q])}, {s(sC)}", f"s_cselect_b32 {s(so[q])}, {s(ex[q])}, {WS_SIZE}", f"s_cselect_b32 {s(ex[q])}, {s(sTAG)}, 0")
    F.it = opt.get('tlit', 1)
    for o in TL: F(o)
    weight_touch(F, True)
    p2_early(F, TMP + 57)
    utok, lo = main_loop('ssm', [wo_ops(0, 0), c_ops(1)], F)
    stamp(2)
    tok_wo = utok[9] - opt.get('t1s', 2) if opt.get('t0s', 8) < 8 else utok[8]
    SA = [TMP, TMP + 16]
    for m in range(1, 4):
        for ct in range(4):
            are, aim = ACC + 16 * ct + 2 * m, ACC + 16 * ct + 8 + 2 * m
            if m == 1: sre, sim = ACC + 16 * ct, ACC + 16 * ct + 8
            else: sre, sim = SA[m % 2] + 4 * ct, SA[m % 2] + 4 * ct + 2
            dre, dim = SA[(m + 1) % 2] + 4 * ct, SA[(m + 1) % 2] + 4 * ct + 2
            l2 = v(L2T + 2 * ct, 2)
            A(f"v_pk_fma_f32 {v(dre,2)}, {v(sre,2)}, {l2}, {v(are,2)} op_sel_hi:[1,0,1]")
            A(f"v_pk_fma_f32 {v(dim,2)}, {v(sim,2)}, {l2}, {v(aim,2)} op_sel_hi:[1,0,1]")
            A(f"v_pk_fma_f32 {v(dre,2)}, {v(sim,2)}, {l2}, {v(dre,2)} op_sel:[0,1,0]")
            A(f"v_pk_fma_f32 {v(dim,2)}, {v(sre,2)}, {l2}, {v(dim,2)} op_sel:[0,1,0] neg_lo:[0,1,0] neg_hi:[0,1,0]")
    EA = TMP + 16
    for e in range(2):
        for ct in range(4):
            b, d, l = SA[0] + 4 * ct, EA + 2 * ct, LT + 2 * ct
            if e == 0:
                A(f"v_fma_f32 {v(d)}, {v(l)}, {v(b)}, {v(b+1)}"); A(f"v_fma_f32 {v(d)}, {v(l+1)}, {v(b+2)}, {v(d)}")
            else:
                A(f"v_fma_f32 {v(d+1)}, {v(l+1)}, {v(b)}, -{v(b+3)}"); A(f"v_fma_f32 {v(d+1)}, -{v(l)}, {v(b+2)}, {v(d+1)}")
    run(tr4(EA))
    EB = t4
    cmul(t0, EA, L8, EA + 2); cmul(t2, t0, L8, EA + 4); cmul(EB, t2, L8, EA + 6)
    A(f"ds_write_b64 {v(AD+1)}, {v(EB,2)}")
    WL = opt.get('wl', 1)
    A.wait(vm=None if WL else tok_wo, lg=A.lg)
    A("s_barrier")
    EW = BUF
    tk = [A(f"ds_read_b64 {v(EW+2*q,2)}, {v(AD)} offset:{q*512}") for q in range(4)]
    PF = BUF + 8
    A(f"s_cmp_eq_u32 {s(sW)}, 0")
    A.wait(lg=tk[1]); cmul(PF, EW, L32, EW + 2)
    A.wait(lg=tk[2]); cmul(PF + 2, PF, L32, EW + 4)
    A.wait(lg=tk[3]); cmul(PF + 4, PF + 2, L32, EW + 6)
    A("s_cbranch_scc0 L_nopub")
    A(f"v_mov_b32 {v(GR)}, {v(PF+4)}"); A(f"v_mov_b32 {v(GR+2)}, {v(PF+5)}")
    snap = A.snapshot()
    A(f"buffer_store_dwordx4 {v(GR,4)}, {v(vL16)}, {s(R_WS,4)}, {s(sT2)} offen sc1")
    A.restore(snap)
    A.label("L_nopub")
    stamp(3)
    EP = opt.get('ep', 1)
    lod = []
    if opt.get('lod', 1) and lo:
        nd = 8 - sum(o.startswith('buffer') for o in lo)
        for o in c_ops(1):
            if o.startswith('buffer') and nd: nd -= 1
            else: lod.append(o)
        lo = []
    st_ = Stream(lo + wo_ops(1, 65536) + ([] if EP else c_ops(3)))
    tok_wo1 = A.vm + 8 + sum(o.startswith('buffer') for o in lo)
    st_.dma(2)
    KP = BUF + 14
    ops = [f"v_mov_b32 {v(t0)}, 0", f"v_mov_b32 {v(t1)}, 0"]
    for q, src in ((1, EW), (2, PF), (3, PF + 2)):
        ops += [f"s_cmp_eq_u32 {s(sW)}, {q}", "s_cselect_b64 exec, -1, 0", f"v_mov_b64 {v(t0,2)}, {v(src,2)}"]
    ops += ["s_mov_b64 exec, -1"]
    run(ops)
    cmul(KP, t0, KK)
    for q in range(3):
        cmul(EA + 2 * q, t0 if q == 0 else EA + 2 * q - 2, L8, EA + 2 * q); cmul(KP + 2 * q + 2, EA + 2 * q, KK)
    IF = BUF + 24
    A(f"v_mov_b32 {v(t4)}, 0x3f80"); A(f"v_mov_b32 {v(t5)}, 0"); A(f"v_and_b32 {v(t6)}, 48, {v(vL16)}")
    for q in range(4): A(f"v_mov_b64 {v(IF+2*q,2)}, 0")
    A(f"v_lshlrev_b64 {v(t4,2)}, {v(t6)}, {v(t4,2)}")
    for q in range(4):
        m = 0x0f00000f << (4 * (q & 1))
        sel_exec(0 if q >> 1 else m, m if q >> 1 else 0)
        A(f"v_mov_b64 {v(IF+2*q,2)}, {v(t4,2)}")
    A("s_mov_b64 exec, -1")
    U = TMP
    def upair(ct, k): return U + 16 * ct + 2 * k
    ops = []
    for ct in range(4):
        for k in range(8):
            re, im = ACC + 16 * ct + (k & ~1), ACC + 16 * ct + 8 + (k & ~1)
            b = k & 1
            ops.append(f"v_pk_mul_f32 {v(upair(ct,k),2)}, {v(re,2)}, {v(KT+2*ct,2)} op_sel:[{b},0] op_sel_hi:[{b},1]")
            ops.append(f"v_pk_fma_f32 {v(upair(ct,k),2)}, {v(im,2)}, {v(KT+2*ct,2)}, {v(upair(ct,k),2)} op_sel:[{b},1,0] op_sel_hi:[{b},0,1] neg_hi:[0,1,0]")
    def rw_hi(): A(f"v_add_u32 {v(RW)}, 0x10000, {v(RW)}"); A(f"v_add_u32 {v(RW+1)}, 0x10000, {v(RW+1)}")
    if EP: sprinkle(ops, st_, 7 if lo else 10)
    else: sprinkle(wo_reads(0, RW, 0) + ops, st_, 7); rw_hi()
    st_.rest()
    assert not (EG and PAIR)
    if not EG:
        A(f"s_lshr_b32 {s(sD0)}, {s(sMX)}, 2"); A(f"s_add_u32 m0, {s(sD0)}, {GWS}")
        if PAIR: A(f"s_lshl_b32 {s(sD0)}, {s(sK0)}, 7"); A(f"v_xor_b32 {v(t4)}, {s(sD0)}, {v(vL16)}")
        A(f"buffer_load_dwordx4 {v(t4 if PAIR else vL16)}, {s(P_GW,4)}, 0 offen lds")
    LB = ACC
    stamp(23)
    def ld(LB=LB):
        for q in range(4): A(f"buffer_load_dwordx4 {v(LB+4*q,4)}, {v(vL16)}, {s(R_WS,4)}, {s(so[q])} offen sc1")
    def ck(LB=LB):
        for q in range(4):
            if q == 0: A(f"v_pk_mul_f32 {v(t2,2)}, {v(LB,2)}, {v(WG_,2)} op_sel_hi:[0,1]")
            else: A(f"v_pk_fma_f32 {v(t2,2)}, {v(LB+4*q,2)}, {v(WG_+2*q,2)}, {v(t2,2)} op_sel_hi:[0,1,1]")
            A(f"v_pk_fma_f32 {v(t2,2)}, {v(LB+4*q+2,2)}, {v(WG_+2*q,2)}, {v(t2,2)} op_sel:[0,1,0] op_sel_hi:[0,0,1] neg_lo:[0,1,0]")
        A(f"ds_write_b64 {v(AD+1)}, {v(t2,2)} offset:2048")
        A(f"v_xor_b32 {v(t0)}, {s(ex[0])}, {v(LB+1)}")
        for r in (3, 5, 7, 9, 11, 13, 15):
            A(f"v_bitop3_b32 {v(t0)}, {v(t0)}, {v(LB+r)}, {s(ex[r//4])} bitop3:0xf6")
        A(f"v_cmp_ne_u32 vcc, 0, {v(t0)}")
    ld()
    tok_p = A.vm
    if EP:
        if WL:
            A.wait(vm=tok_wo)
            A("s_barrier")
        run(wo_reads(0, RW, 0)); rw_hi()
    else:
        A.wait(vm=tok_wo1, lg=A.lg)
        A("s_barrier")
        run(wo_reads(1, RW, 0))
    DB = opt.get('db', 1)
    if DB: ld(LB + 16)
    A.wait(vm=tok_p)
    ck()
    A(f"s_mov_b32 {s(sCNT)}, {SPIN}")
    DY = opt.get('dyn', 0) and EP
    if DY: A(f"s_mov_b32 {s(sWST)}, 0")
    A("s_cbranch_vccz L_pagg_x")
    snap = A.snapshot()
    if DY:
        run(c_ops(3)); A(f"s_mov_b32 {s(sWST)}, 1")
    if DB:
        A.label("L_pagg")
        for cur_, oth in ((LB + 16, LB), (LB, LB + 16)):
            ld(oth); A.wait(vm=A.vm - 4); ck(cur_)
            if cur_ != LB:
                A(f"s_sub_u32 {s(sCNT)}, {s(sCNT)}, 1"); A("s_cbranch_scc1 L_pagg_x"); A("s_cbranch_vccz L_pagg_x")
            else:
                A("s_nop 0"); A("s_cbranch_vccnz L_pagg")
        A.label("L_pagg_x")
    else: spin("L_pagg", ld, ck)
    A.restore(snap)
    tok_db = A.vm
    if DB:
        for r in range(32): A.pend_vm[('v', LB + r)] = tok_db
    stamp(4)
    A.wait_all(vm=False)
    A("s_barrier")
    stamp(24)
    for q in range(4): tok = A(f"ds_read_b64 {v(EW+2*q,2)}, {v(AD)} offset:{2048+q*512}")
    mid = Stream(c_ops(0))
    if opt.get('md', 2) == 2: mid.dma(4)
    A.wait(lg=tok)
    A(f"v_pk_add_f32 {v(EW,2)}, {v(EW,2)}, {v(EW+2,2)}")
    A(f"v_pk_add_f32 {v(EW+4,2)}, {v(EW+4,2)}, {v(EW+6,2)}")
    A(f"v_pk_add_f32 {v(EW,2)}, {v(EW,2)}, {v(EW+4,2)}")
    for q in range(4): cmul(KP + 2 * q, EW, WS_ + 2 * q, KP + 2 * q)
    run(tr4(KP))
    HP = ACC
    TD = [ACC + 32, TMP]
    def cvt1(p_): return [f"v_cvt_pk_bf16_f32 {v(HP+16*p_+8*cp+4*tp+k)}, {v(upair(2*p_+tp,2*k)+cp)}, {v(upair(2*p_+tp,2*k+1)+cp)}" for cp in range(2) for tp in range(2) for k in range(4)]
    def cvt2(f): return [f"v_cvt_pk_bf16_f32 {v(HP+4*f+k)}, {v(TD[f//4]+8*(f%4)+2*k)}, {v(TD[f//4]+8*(f%4)+2*k+1)}" for k in range(4)]
    def tm(p_, cp, tp, r): A(f"v_mfma_f32_16x16x32_bf16 {v(TD[p_]+16*cp+8*r+4*tp,4)}, {v(HP+16*p_+8*cp+4*tp,4)}, {v(IF+4*r,4)}, 0")
    hs = []
    def h_store(f):
        hs.append(h_store_(f)); return hs[-1]
    def h_store_(f):
        PC = opt.get('pace', 0)
        if PC and f >= max(PC, 4): A.wait(vm=hs[f - PC])
        if f == 4: A(f"s_add_u32 {s(sU3)}, {s(sU3)}, 4096")
        return A(f"buffer_store_dwordx4 {v(HP+4*f,4)}, {v(RT)}, {s(R_WS,4)}, {s(sU3)} offen offset:{(f&2)*1024+(f&1)*256} sc1")
    for ct in range(2):
        for tp in range(2):
            c4 = 2 * ct + tp
            for k in range(8): cmul(upair(c4, k), KP + 2 * c4 if k == 0 else upair(c4, k - 1), LT + 2 * c4, upair(c4, k))
        cs_ = cvt1(ct)
        A.wait(vm=tok_db)
        run(cs_[:6]); cs_ = cs_[6:]
        f0 = 4 * ct
        for cp in range(2):
            for tp in range(2):
                for r in range(2):
                    tm(ct, cp, tp, r); run(cs_[:2]); cs_ = cs_[2:]
                    if ct == 0 and cp == 1 and opt.get('md', 2) == 1: mid.dma()
        if ct == 0: stamp(25)
        for f in range(f0, f0 + 4):
            run(cvt2(f)); tok_h = h_store(f)
    stamp(5)
    A(f"s_mov_b32 {s(sFM)}, 0")
    A(f"s_cmp_eq_u32 {s(sJ)}, 0")
    A("s_cbranch_scc0 L_nogate")
    GD = ACC + 32
    snapg = A.snapshot()
    if PAIR: A(f"s_mov_b32 {s(sT0)}, {GWS}")
    else: A(f"s_lshl_b32 {s(sT0)}, {s(sK0)}, 7"); A(f"s_add_u32 {s(sT0)}, {s(sT0)}, {GWS}")
    A(f"v_and_b32 {v(t0)}, 48, {v(vL)}")
    A(f"v_add_u32 {v(AD+8)}, {s(sT0)}, {v(t0)}")
    toks = []
    for st in range(8): toks.append(A(f"ds_read_b128 {v(BUF+4*st,4)}, {v(AD+8)} offset:{st*64}"))
    for st in range(16):
        A.wait(lg=toks[st])
        for r in range(2): A(f"v_mfma_f32_16x16x32_bf16 {v(GD+8+4*r,4)}, {v(BUF+4*(st%8),4)}, {a(8*st+4*r,4)}, {'0' if st == 0 else v(GD+8+4*r,4)}")
        if st + 8 < 16: toks.append(A(f"ds_read_b128 {v(BUF+4*(st%8),4)}, {v(AD+8)} offset:{(st+8)*64}"))
    A(f"v_bfe_u32 {v(t0)}, {v(vL)}, 4, 1"); A(f"v_bfe_u32 {v(t1)}, {v(vL)}, 2, 2"); A(f"v_and_b32 {v(t2)}, 12, {v(vL4)}")
    A(f"v_lshl_add_u32 {v(t2)}, {v(t1)}, 5, {v(t2)}")
    A(f"v_lshl_add_u32 {v(t2)}, {v(t0)}, 4, {v(t2)}")
    A(f"s_lshl_b32 {s(sT0)}, {s(sTT)}, 7"); A(f"s_add_u32 {s(sT0)}, {s(sT0)}, {WS_G}")
    A(f"s_lshl_b32 {s(sT2)}, {s(sTT)}, 11"); A(f"s_add_u32 {s(sT2)}, {s(sT2)}, {WS_OF+16}")
    A(f"s_mov_b32 {s(sFM)}, 3")
    sel_exec(0xffff0000, 0xffff0000)
    A(f"v_mov_b32 {v(GD+8)}, {v(GD+12)}")
    A("s_mov_b64 exec, -1")
    A(f"v_mul_f32 {v(t0)}, 0xbfb8aa3b, {v(GD+8)}")
    A(f"v_exp_f32 {v(t0)}, {v(t0)}")
    A(f"v_add_f32 {v(t0)}, 1.0, {v(t0)}")
    A(f"v_rcp_f32 {v(t0)}, {v(t0)}")
    A("s_nop 0")
    A(f"buffer_store_dword {v(t0)}, {v(t2)}, {s(R_WS,4)}, {s(sT0)} offen sc1")
    A("s_branch L_gated")
    A.restore(snapg)
    A.label("L_nogate")
    A(f"buffer_load_dword {v(vF)}, {v(vZ)}, {s(R_X,4)}, {s(sXT)} offen")
    A.label("L_gated")
    rest = Stream(mid.ops + (([] if DY else c_ops(3)) if EP else c_ops(2)))
    if EP: run(wo_reads(1, RW, 0))
    if not EG & 8: p2_setup()
    if EP:
        A.wait_all(vm=False)
        A("s_barrier")
        rest.ops += lod + c_ops(2)
    rest.dma(opt.get('sdrain', 8))
    A.wait(vm=tok_h)
    if opt.get('vflag', 0): flag_store(sHF)
    else: sflag(sHF)
    stamp(6)
    rest.rest()
    if DY:
        A(f"s_cmp_eq_u32 {s(sWST)}, 1")
        A("s_cbranch_scc1 L_c3done")
        run(c_ops(3)); A.vm -= 8
        A.label("L_c3done")
    stamp(26)
    poll_issue()
    A("s_branch L_phase2")

    A.restore(snap0)
    if opt.get('apad', 2152): A.raw(f".p2align 3\n.fill {opt.get('apad', 2152)//4}, 4, 0xbf800000")
    A.label("L_attn")
    epoch_load()
    F = Fill()

    NL = AD + 10
    ONES = TMP + 48
    LA = TMP + 56
    sOA, sOF, sKB, sZB = P_GW, P_GW + 1, P_OUT, P_OUT + 1
    flag_addr(F, sOF, sU3, WS_OF)
    F(f"s_lshl2_add_u32 {s(sT2)}, {s(sJ)}, {s(sW)}")
    F(f"s_lshl4_add_u32 {s(sT3)}, {s(sT2)}, {s(sC)}")
    F(f"s_lshl_b32 {s(sU1)}, {s(sT3)}, 9"); F(f"s_add_u32 {s(sU1)}, {s(sU1)}, {WS_KVP}")
    F(f"v_lshlrev_b32 {v(AD+9)}, 3, {v(vL)}")
    SUMS = TMP + 48
    F(f"v_mov_b32 {v(t4)}, 0x3f80"); F(f"v_mov_b32 {v(t5)}, 0"); F(f"v_and_b32 {v(t6)}, 48, {v(vL16)}")
    F(f"v_mov_b64 {v(SUMS,2)}, 0"); F(f"v_mov_b64 {v(SUMS+2,2)}, 0")
    F(f"v_lshlrev_b64 {v(t4,2)}, {v(t6)}, {v(t4,2)}")
    for q in range(2):
        m = 0x00f0000f << (8 * q)
        F(f"s_mov_b32 exec_lo, {m:#x}", f"s_mov_b32 exec_hi, {m:#x}", f"v_mov_b64 {v(SUMS+2*q,2)}, {v(t4,2)}", "s_mov_b64 exec, -1")
    F(f"s_lshl_b32 {s(sU2)}, {s(sT3)}, 6"); F(f"s_add_u32 {s(sU2)}, {s(sU2)}, {WS_ZP}")
    F(f"v_mov_b64 {v(TMP,2)}, -1")
    F(f"s_mov_b32 {s(sL2E)}, 0x3fb8aa3b"); F(f"s_mov_b32 {s(sL2E+1)}, 0x3fb8aa3b")
    F(f"s_mov_b32 {s(sEPS)}, 0x358637bd"); F(f"s_mov_b32 {s(sEPS+1)}, 0x358637bd")
    F(f"v_mov_b32 {v(NL)}, 0xbfb8aa3b"); F(f"v_mov_b32 {v(NL+1)}, 0xbfb8aa3b")
    F.it = -2
    F(f"v_and_b32 {v(t0)}, 15, {v(vL)}"); F(f"v_lshrrev_b32 {v(t1)}, 4, {v(vL)}"); F(f"v_lshrrev_b32 {v(t2)}, 1, {v(t0)}")
    F(f"v_xor_b32 {v(t2)}, {v(t2)}, {v(t1)}"); F(f"v_lshlrev_b32 {v(t2)}, 4, {v(t2)}"); F(f"v_lshl_add_u32 {v(t2)}, {v(t0)}, 7, {v(t2)}")
    F(f"s_and_b32 {s(sT0)}, {s(sMX)}, 8192"); F(f"v_add_u32 {v(RA16[0])}, {s(sT0)}, {v(t2)}"); F(f"v_xor_b32 {v(RA16[1])}, 64, {v(RA16[0])}")
    F(f"v_and_b32 {v(t2)}, 0x1ff, {v(RW)}"); F(f"v_lshl_add_u32 {v(RB16[0])}, {v(t1)}, 10, {v(t2)}"); F(f"v_xor_b32 {v(RB16[1])}, 32, {v(RB16[0])}")
    F.it = -1
    SEL = TMP + 32
    F(f"v_bfe_u32 {v(t0)}, {v(vL)}, 2, 2")
    F(f"s_lshl_b32 {s(sT0)}, {s(sKH)}, 1"); F(f"v_xor_b32 {v(t0)}, {s(sT0)}, {v(t0)}")
    F(f"v_mov_b32 {v(t1)}, 0x3f803f80")
    for hd in range(2):
        F(f"v_cmp_eq_u32 vcc, {hd}, {v(t0)}", f"v_cndmask_b32 {v(SEL+4*hd)}, 0, {v(t1)}, vcc")
        F(f"v_mov_b32 {v(SEL+4*hd+1)}, {v(SEL+4*hd)}")
        F(f"v_mov_b64 {v(SEL+4*hd+2,2)}, {v(SEL+4*hd,2)}")
    F(f"s_lshl_b32 {s(sU0)}, {s(sT2)}, 10"); F(f"s_add_u32 {s(sU0)}, {s(sU0)}, {WS_KVF}")
    F(f"s_lshl2_add_u32 {s(sT3)}, {s(sC)}, {s(sU0)}")
    F(f"s_load_dword s8, {s(R_WS,2)}, {s(sT3)} glc")
    F(f"s_lshr_b32 {s(sT0)}, {s(sW)}, 1"); F(f"s_lshl3_add_u32 {s(sT0)}, {s(sKH)}, {s(sT0)}"); F(f"s_lshl_b32 {s(sT0)}, {s(sT0)}, 10"); F(f"s_add_u32 {s(sT0)}, {s(sT0)}, {SCR}")
    F(f"v_add_u32 {v(AD)}, {s(sT0)}, {v(vL16)}")
    F(f"s_add_u32 {s(sT0)}, {s(sMX)}, {SCR}")
    F(f"v_add_u32 {v(AD+1)}, {s(sT0)}, {v(vL16)}")
    F(f"s_lshl_b32 {s(sT0)}, {s(sW)}, 8"); F(f"s_add_u32 {s(sT0)}, {s(sT0)}, {SCR+16384}")
    F(f"v_add_u32 {v(AD+2)}, {s(sT0)}, {v(vL4)}")
    F(f"s_lshl_b32 {s(sT0)}, {s(sW)}, 6"); F(f"s_add_u32 {s(sT0)}, {s(sT0)}, {SCR+16384}")
    F(f"v_and_b32 {v(AD+4)}, 60, {v(vL4)}")
    F(f"v_add_u32 {v(AD+3)}, {s(sT0)}, {v(AD+4)}")
    F(f"v_add_u32 {v(AD+6)}, {SCR}, {v(RW)}"); F(f"v_add_u32 {v(AD+7)}, {SCR}, {v(RW+1)}")
    F(f"v_add_u32 {v(AD+4)}, 0x18000, {v(RW)}"); F(f"v_add_u32 {v(AD+5)}, 0x18000, {v(RW+1)}")
    KVS, ZS = SCR + 20480, SCR + 22528
    if BLK: F.it = 100
    F(f"s_lshr_b32 {s(sT0)}, {s(sW)}, 1"); F(f"s_lshl_b32 {s(sT0)}, {s(sT0)}, 10")
    F(f"s_lshl_b32 {s(sT1)}, {s(sKH)}, 8"); F(f"s_add_u32 {s(sT1)}, {s(sT1)}, {s(sT0)}"); F(f"s_add_u32 {s(sT1)}, {s(sT1)}, {KVS}")
    F(f"v_and_b32 {v(t4)}, 7, {v(vL)}"); F(f"v_lshrrev_b32 {v(t5)}, 5, {v(vL)}"); F(f"v_lshl_add_u32 {v(t4)}, {v(t4)}, 1, {v(t5)}")
    F(f"v_lshlrev_b32 {v(t4)}, 4, {v(t4)}"); F(f"v_bfe_u32 {v(t5)}, {v(vL)}, 3, 1"); F(f"v_bfe_u32 {v(t6)}, {v(vL)}, 4, 1")
    F(f"v_lshl_add_u32 {v(t4)}, {v(t5)}, 9, {v(t4)}"); F(f"v_lshl_add_u32 {v(t4)}, {v(t6)}, 3, {v(t4)}")
    F(f"v_add_u32 {v(LA)}, {s(sT1)}, {v(t4)}")
    F(f"s_lshl_b32 {s(sT1)}, {s(sKH)}, 5"); F(f"s_add_u32 {s(sT1)}, {s(sT1)}, {s(sT0)}"); F(f"s_add_u32 {s(sT1)}, {s(sT1)}, {ZS}")
    F(f"v_bfe_u32 {v(t4)}, {v(vL)}, 2, 1"); F(f"v_bfe_u32 {v(t5)}, {v(vL)}, 3, 1"); F(f"v_and_b32 {v(t6)}, 3, {v(vL)}")
    F(f"v_lshl_add_u32 {v(t6)}, {v(t6)}, 1, {s(sT1)}")
    F(f"v_lshl_add_u32 {v(t6)}, {v(t5)}, 3, {v(t6)}")
    F(f"v_lshl_add_u32 {v(LA+1)}, {v(t4)}, 4, {v(t6)}")
    F(f"v_add_u32 {v(LA+2)}, {KVS}, {v(vL16)}")
    F(f"v_mov_b32 {v(LA+3)}, {v(LA+2)}")
    F(f"v_lshrrev_b32 {v(t5)}, 5, {v(vL)}")
    F(f"v_lshlrev_b32 {v(t5)}, 4, {v(t5)}")
    F(lambda: sel_exec(0xffff0000, 0xffff0000), f"v_add_u32 {v(LA+2)}, {ZS}, {v(t5)}", "s_mov_b64 exec, -1")
    F(lambda: sel_exec(0x0000ffff, 0x0000ffff), f"v_add_u32 {v(LA+3)}, {ZS+32}, {v(t5)}", "s_mov_b64 exec, -1")
    F(f"v_bfe_u32 {v(t5)}, {v(vL)}, 3, 2"); F(f"v_and_b32 {v(t6)}, 35, {v(vL)}")
    F(f"v_lshl_add_u32 {v(t6)}, {v(t5)}, 2, {v(t6)}")
    F(f"v_lshl_add_u32 {v(t6)}, {v(t4)}, 4, {v(t6)}")
    F(f"v_lshlrev_b32 {v(LA+4)}, 4, {v(t6)}")
    F(f"s_mul_i32 {s(sOA)}, {s(sTT)}, 98304"); F(f"s_lshl_b32 {s(sT1)}, {s(sJ)}, 12"); F(f"s_add_u32 {s(sOA)}, {s(sOA)}, {s(sT1)}")
    F(f"s_add_u32 {s(sOA)}, {s(sOA)}, {WS_ACT+65536}")
    F(f"s_and_b32 {s(sKB)}, {s(sC)}, {opt.get('rkv', 1)}"); F(f"s_lshl1_add_u32 {s(sKB)}, {s(sT2)}, {s(sKB)}")
    F(f"s_lshl_b32 {s(sKB)}, {s(sKB)}, 12"); F(f"s_add_u32 {s(sKB)}, {s(sKB)}, {WS_KVP}")
    F(f"s_lshl_b32 {s(sZB)}, {s(sT2)}, 10"); F(f"s_add_u32 {s(sZB)}, {s(sZB)}, {WS_ZP}")
    F.it = opt.get('clrit', 0)
    tok_clr = []
    F(f"buffer_store_dwordx2 {v(TMP,2)}, {v(AD+9)}, {s(R_WS,4)}, {s(sU1)} offen sc1")
    F("s_mov_b64 exec, 0xffff", lambda: tok_clr.append(A(f"buffer_store_dword {v(TMP)}, {v(vL4)}, {s(R_WS,4)}, {s(sU2)} offen sc1")), "s_mov_b64 exec, -1")
    F.it = 0.55
    get_tag(F)
    F.sort(key=lambda e: e[0])
    weight_touch(F, False)
    p2_early(F, TMP + 61)
    utok, lo = main_loop('attn', [wq_ops(0), wq_ops(1)], F)
    stamp(2)
    tok_wq = utok[9]
    A("s_barrier")
    def phi_ops(src, dst):
        L = []
        def fin(sr, pp, d):
            L.append(f"v_max_f32 {v(pp)}, {v(pp)}, {v(sr)}")
            L.append(f"v_max_f32 {v(pp+1)}, {v(pp+1)}, {v(sr+1)}")
            L.append(f"v_pk_add_f32 {v(pp,2)}, {v(pp,2)}, {s(sEPS,2)}")
            L.append(f"v_cvt_pk_bf16_f32 {v(d)}, {v(pp)}, {v(pp+1)}")
        for k in range(0, 16, 2):
            tt = t0 + 2 * ((k // 2) % 4)
            L.append(f"v_pk_fma_f32 {v(tt,2)}, {v(src+k,2)}, {s(sL2E,2)}, {v(NL,2)}")
            L.append(f"v_exp_f32 {v(tt)}, {v(tt)} clamp")
            L.append(f"v_exp_f32 {v(tt+1)}, {v(tt+1)} clamp")
            if k >= 2: fin(src + k - 2, t0 + 2 * ((k // 2 - 1) % 4), dst + k // 2 - 1)
        fin(src + 14, t0 + 2 * (7 % 4), dst + 7)
        return L
    PK, PV = TMP, TMP + 16
    ZD = TM2; KD = TM2 + 4
    st_ = Stream(wo_ops(0, 98304) + c_ops(2))
    def swaps(b): return [f"v_permlane16_swap_b32 {v(b+r)}, {v(b+4+r)}" for r in range(4)]
    e1 = phi_ops(ACC, PK) + [f"v_cvt_pk_bf16_f32 {v(PV+k)}, {v(ACC+32+2*k)}, {v(ACC+32+2*k+1)}" for k in range(16)]
    e1 += phi_ops(ACC + 16, PK + 8)
    E0 = opt.get('e1skip', 12)
    A.wait(vm=tok_clr[0])
    sflag(sT3)
    sprinkle(e1[:E0], los := Stream(lo), 7)
    los.rest()
    tokF = [A.vm]
    vm0 = A.vm
    sprinkle(e1[E0:], st_, opt.get('e1every', 9))
    tok_wo0 = vm0 + 8
    stamp(40)
    def kvm(n): A(f"v_mfma_f32_16x16x32_bf16 {v(KD+4*(n>>1),4)}, {v(PK+4*n,4)}, {v(PV+4*n,4)}, {v(KD+4*(n>>1),4) if n & 1 else '0'}")
    def zm(n): A(f"v_mfma_f32_16x16x32_bf16 {v(ZD,4)}, {v(SEL+4*(n>>1),4)}, {v(PK+4*n,4)}, {'0' if n == 0 else v(ZD,4)}")
    for n in range(4): kvm(n)
    for n in range(4): zm(n)
    stamp(41)
    for hd in range(2):
        A(f"ds_write_b128 {v(AD)}, {v(KD+4*hd,4)} offset:{hd*4096}")
    A(f"ds_write_b32 {v(AD+2)}, {v(ZD)}")
    st_.dma(opt.get('e1d', 2))
    stamp(42)
    WE = opt.get('we', 16)
    A.wait(vm=tok_wo0 if WE else tokF[0])
    stamp(43)
    A.wait_all(vm=False)
    A("s_barrier")
    stamp(44)
    for q in range(2): tk = A(f"ds_read_b128 {v(ACC+4*q,4)}, {v(AD+1)} offset:{q*1024}")
    for q in range(4): tz = A(f"ds_read_b32 {v(ACC+16+q)}, {v(AD+3)} offset:{q*256}")
    QA = TM2
    def qreads(ks):
        b = BUF + 8 * (ks % 4)
        L = []
        for tl in range(2):
            base = (ks // 4) * 8192 + (ks % 4) * 2048
            L.append(f"ds_read_b64_tr_b16 {v(b+4*tl,2)}, {v(RT+tl)} offset:{base}")
            L.append(f"ds_read_b64_tr_b16 {v(b+4*tl+2,2)}, {v(RT+tl)} offset:{base+512}")
        return L
    toks = [run(qreads(0))]
    wrd0 = Stream(wo_reads(0, AD + 4, 0))
    if WE: wrd0.some(5)
    else: st_.dma(1)
    A.wait(lg=tk)
    for e in (0, 2):
        A(f"v_pk_add_f32 {v(ACC+e,2)}, {v(ACC+e,2)}, {v(ACC+4+e,2)}")
    for e in range(2): A(f"v_cvt_pk_bf16_f32 {v(ACC+e)}, {v(ACC+2*e)}, {v(ACC+2*e+1)}")
    for e in range(2): A(f"v_min_u32 {v(ACC+e)}, -2, {v(ACC+e)}")
    A(f"buffer_store_dwordx2 {v(ACC,2)}, {v(AD+9)}, {s(R_WS,4)}, {s(sU1)} offen sc1")
    A.wait(lg=tz)
    A(f"v_pk_add_f32 {v(ACC+16,2)}, {v(ACC+16,2)}, {v(ACC+18,2)}")
    A(f"v_add_f32 {v(ACC+16)}, {v(ACC+16)}, {v(ACC+17)}")
    A(f"v_min_u32 {v(ACC+16)}, -2, {v(ACC+16)}")
    A("s_mov_b64 exec, 0xffff")
    A(f"buffer_store_dword {v(ACC+16)}, {v(vL4)}, {s(R_WS,4)}, {s(sU2)} offen sc1")
    A("s_mov_b64 exec, -1")
    stamp(3)
    if WE: wrd0.some(WE - 5)
    st_.rest()
    tok_e1 = st_.last
    toks.append(run(qreads(1)))
    ZL = TMP + 52
    def kv_loads():
        L = [f"buffer_load_dword {v(ZL+q)}, {v(vL4)}, {s(R_WS,4)}, {s(sZB)} offen offset:{q*256} sc1" for q in range(4)]
        for q in range(8):
            if q % 4 == 0: L.append(f"s_xor_b32 {s(sD1)}, {s(sKB)}, {q*1024}")
            L.append(f"buffer_load_dwordx4 {v(ACC+4*q,4)}, {v(vL16)}, {s(R_WS,4)}, {s(sD1)} offen offset:{(q%4)*1024} sc1")
        return L
    KVAT = opt.get('kvat', 21)
    side = None; wrd = None
    for ks in range(32):
        if ks == 0:
            A.wait(vm=tok_wo0)
            A("s_barrier")
            side = Stream(wo_ops(1, SCR)); wrd = wrd0
        if ks == 8:
            side.rest(); tok_wo1 = A.vm
            tok_wr = A.lg
        if ks == 9:
            A.wait(lg=tok_wr)
            A("s_barrier")
            side = Stream(c_ops(3))
        if ks == 17:
            side.rest()
            A.wait(vm=tok_wo1)
            A("s_barrier")
            stamp(23)
            side = Stream(c_ops(0)); wrd = Stream(wo_reads(1, AD + 6, 0))
        if ks == KVAT - 14: ssample(16)
        if ks == KVAT:
            A(f"s_or_b64 {s(sP,2)}, {s(sP,2)}, {s(sP+14,2)}")
            A("s_cbranch_scc0 L_clr_x")
            snap = A.snapshot()
            sspin("L_clr", 16)
            A.restore(snap)
            nk = A.vm + 12
            side = Stream(kv_loads() + side.ops)
            side.dma(2)
        A.wait(lg=toks[ks])
        stamp(200 + ks)
        rd = qreads(ks + 2) if ks + 2 < 32 else []
        b = BUF + 8 * (ks % 4)
        for tl in range(2):
            A(f"v_mfma_f32_32x32x16_bf16 {v(QA+16*tl,16)}, {v(b+4*tl,4)}, {a(4*ks,4)}, {'1.0' if ks == 0 else v(QA+16*tl,16)}")
            if tl == 0:
                if ks == KVAT - 6:
                    A.wait_all(vm=False, lg=True, force=True)
                    cko = [f"s_xor_b32 {s(sP+q)}, {s(sP+q)}, {s(sTAG)}" for q in range(16)] + [f"s_or_b64 {s(sP,2)}, {s(sP,2)}, {s(sP+q,2)}" for q in range(2, 14, 2)]
                run(rd); toks.append(A.lg)
                if KVAT - 6 <= ks < KVAT: run(cko[:4]); cko = cko[4:]
                if wrd and ((ks < 8 and len(wrd.ops) > 2 * (8 - ks)) or ks >= 30): wrd.some(2)
            else:
                if wrd: wrd.some(2)
                if side: side.dma()
    wrd.rest()
    stamp(24)
    PQ = TMP
    A.wait_all(vm=False)
    A("s_barrier")
    side.ops += [f"s_mov_b32 m0, {s(sXM)}", dma(VN, R_X, sXT, 0), dma(VN, R_X, sXT, 1)] + c_ops(1)
    ph = phi_ops(QA, PQ) + phi_ops(QA + 16, PQ + 8)
    MID = opt.get('mid', 1)
    KE = opt.get('kvevery', 9 if MID else 10)
    if MID: sprinkle(ph[:56], side, KE)
    else:
        PE = opt.get('phe', 60)
        sprinkle(ph[:PE], side, KE)
        run(ph[PE:])
    tok_kv = nk
    stamp(25)
    A(f"s_mov_b32 {s(sCNT)}, {SPIN}")
    stamp(4)
    KS = TMP + 16
    def kv_sum(last, side=None):
        zs = [f"v_add_f32 {v(t0)}, {v(ZL)}, {v(ZL+1)}", f"v_add_f32 {v(t1)}, {v(ZL+2)}, {v(ZL+3)}",
              f"v_add_f32 {v(t0)}, {v(t0)}, {v(t1)}", f"v_mov_b32 {v(t1)}, {v(t0)}", "s_nop 0", f"v_permlane32_swap_b32 {v(t0)}, {v(t1)}",
              f"v_add_f32 {v(t0)}, {v(t0)}, {v(t1)}", f"v_mov_b32 {v(t1)}, {v(t0)}", "s_nop 0", f"v_permlane16_swap_b32 {v(t0)}, {v(t1)}",
              f"v_add_f32 {v(t0)}, {v(t0)}, {v(t1)}", f"v_cvt_pk_bf16_f32 {v(KS+6)}, {v(t0)}, {v(t0)}"]
        for q in range(8):
            if q in (0, 4, 6, 7): A.wait(vm=last - 7 + {0: 3, 4: 5}.get(q, q))
            A(f"v_mfma_f32_16x16x32_bf16 {v(KS,4)}, {v(SUMS,4)}, {v(ACC+4*q,4)}, {'0' if q == 0 else v(KS,4)}")
            run(zs[2*q:2*q+2])
        A(f"v_cmp_u_f32 vcc, {v(t0)}, {v(KS)}")
    A(f"s_mov_b32 {s(sT2)}, {s(sOF)}"); A(f"s_mov_b32 {s(sFM)}, 1")
    cs = side
    kv_sum(tok_kv, cs)
    A("s_cbranch_vccnz L_kvretry")
    snap_kv = A.snapshot()
    A.label("L_kvok")
    stamp(5)
    A(f"ds_write_b16 {v(LA+1)}, {v(KS+6)}")
    A(f"v_cvt_pk_bf16_f32 {v(KS+4)}, {v(KS)}, {v(KS+1)}")
    A(f"v_cvt_pk_bf16_f32 {v(KS+5)}, {v(KS+2)}, {v(KS+3)}")
    A(f"ds_write_b64 {v(LA)}, {v(KS+4,2)}")
    M2 = opt.get('mid2', 92)
    if MID: sprinkle(ph[56:M2], side, KE)
    A.wait_all(vm=False)
    A("s_barrier")
    stamp(70)
    AF = TMP + 16
    toks = []
    ES = opt.get('es', 0)
    if ES: poll_issue()
    for hd4 in range(4): toks.append(A(f"ds_read_b128 {v(AF+4*hd4,4)}, {v(LA+2+(hd4&1))} offset:{(hd4>>1)*1024}"))
    if ES:
        for q in range(2): A(f"ds_read_b32 {v(vF)}, {v(LA+2)}")
    if MID: sprinkle(ph[M2:], side, KE)
    else: cs.dma(1)
    for hd4 in range(4):
        A.wait(lg=toks[hd4])
        A(f"v_mfma_f32_32x32x16_bf16 {v(ACC+16*hd4,16)}, {v(AF+4*hd4,4)}, {v(PQ+4*hd4,4)}, 0")
        cs.dma()
    if not ES: poll_issue()
    cs.rest()
    stamp(71)
    OP = TMP + 48
    for hd4 in range(4):
        hd = hd4 & 1
        nb_, db_ = ACC + 16 * hd4 + 8 * hd, ACC + 16 * hd4 + 8 * (1 - hd)
        A(f"v_add_f32 {v(db_)}, {s(sEPS)}, {v(db_)}")
        A(f"v_rcp_f32 {v(db_)}, {v(db_)}")
        for e in range(0, 8, 2): A(f"v_pk_mul_f32 {v(nb_+e,2)}, {v(nb_+e,2)}, {v(db_,2)} op_sel_hi:[1,0]")
        for e in range(0, 8, 2): A(f"v_cvt_pk_bf16_f32 {v(TM2+4*hd4+e//2)}, {v(nb_+e)}, {v(nb_+e+1)}")
        A(f"buffer_store_dwordx4 {v(TM2+4*hd4,4)}, {v(LA+4)}, {s(R_WS,4)}, {s(sOA)} offen offset:{hd4*1024} sc1")
    stamp(26); stamp(6)
    A("s_branch L_phase2")

    A.raw(".p2align 12")
    A.label("L_phase2")
    A.hist = []
    if not opt.get('nopg', 1): A("s_cbranch_execz L_pgret_a")
    stamp(7)
    def late_flag(lab):
        A(f"s_cmp_eq_u32 {s(sFM)}, 0")
        A(f"s_cbranch_scc1 {lab}")
        sflag(sT2)
        A(f"s_cmp_eq_u32 {s(sFM)}, 1")
        A(f"s_mov_b32 {s(sFM)}, 0")
        A(f"s_cbranch_scc1 {lab}")
        sflag(sT2, 1024)
        A.label(lab)
    scheck(4)
    A("s_cbranch_scc0 L_ph_x")
    for _ in range(opt.get('re', 1)):
        ssample(4); scheck(4)
        A("s_cbranch_scc0 L_ph_x")
    A(f"s_cmp_eq_u32 {s(sFM)}, 0")
    A("s_cbranch_scc1 L_noflag")
    A("s_waitcnt vmcnt(0)")
    late_flag("L_noflag")
    sspin("L_ph", 4)
    stamp(8)
    assert A.vm_done < A.vm
    ltok, ctok = p2_head(late_flag)
    KS1 = KCHK - opt.get('ks1', 8)
    for ks in range(KCHK):
        if ks == KS1: ssample(5)
        step2a(ks, True, ltok, ctok, ks == KCHK - 1)
    A("s_cbranch_scc1 L_slow")
    snap = A.snapshot(); ctok_s = list(ctok); ltok_s = list(ltok)
    for ks in range(KCHK, 32): step2a(ks, True, ltok, ctok)
    stamp(9); stamp(10)
    A.label("L_2b")
    gops = []
    for tl in (1, 0):
        for k in range(16): gops.append(f"v_mul_f32 {v(ACC+16*tl+k)}, {v(ACC+16*tl+k)}, {v(GG+k)}")
    for k in range(16): gops.append(f"v_sub_f32 {v(GG+k)}, 1.0, {v(GG+k)}")
    LG = opt.get('lag', 10)
    seq = [(ks, tl) for ks in range(16 - LG) for tl in (1, 0)] + [(ks, 1) for ks in range(16 - LG, 16)] + [(ks, 0) for ks in range(16 - LG, 16)]
    NB_ = 32 - LG
    XR = BUF
    tail = [["s_nop 4"], ["s_nop 4"]]
    for j in range(4):
        tail.append([f"v_fmac_f32 {v(ACC+16+4*j+i)}, {v(ACC+48+4*j+i)}, {v(GG+4*j+i)}" for i in range(4)] +
                    [f"ds_write_b128 {v(AD+4)}, {v(ACC+16+4*j,4)} offset:{j*1024}"])
    xt = []
    tail.append([lambda: A.wait_all(vm=False), "s_barrier"] + [(lambda j=j: xt.append(A(f"ds_read_b128 {v(XR+4*j,4)}, {v(AD+5)} offset:{j*1024}"))) for j in range(4)])
    tail.append([f"s_lshl_b32 {s(sT0)}, {s(sTT2)}, 16"])
    for j in range(4):
        tail.append([(lambda j=j: A.wait(lg=xt[j]))] + [f"v_add_f32 {v(ACC+4*j+i)}, {v(ACC+4*j+i)}, {v(XR+4*j+i)}" for i in range(4)])
    for n, (ks, tl) in enumerate(seq):
        if tl == 1:
            A.wait(vm=ltok[32 + ks])
            stamp(140 + ks)
        A(f"v_mfma_f32_32x32x16_bf16 {v(ACC+32+16*tl,16)}, {v(TMP+4*ks,4)}, {a(128+8*ks+4*tl,4)}, {'0' if ks == 0 else v(ACC+32+16*tl,16)}")
        stamp(170 + n)
        if n % 2 == 0 and len(ltok) < 48: ltok.append(run(load_ops(len(ltok))))
        if n == 1: A(f"ds_write_b32 {v(AD)}, {v(vE)}")
        if n in (3, 5):
            for j in (n - 3, n - 2): tg = A(f"ds_read_b128 {v(GG+4*j,4)}, {v(AD+2)} offset:{j*32}")
        if n >= 8 and gops:
            A.wait(lg=tg)
            m = 5 if len(ltok) == 48 or n % 2 else 1
            run(gops[:m]); gops = gops[m:]
        if n >= NB_ - 1 and tail:
            if tail[0]: run(gops); gops = []
            run(tail.pop(0))
    stamp(11)
    for g_ in tail: run(g_)
    of = {0: "", 1: " nt", 2: " sc1", 3: " sc0 sc1"}[opt.get('outfl', 2)]
    for j in range(4):
        for e in (0, 2): A(f"v_pk_fma_f32 {v(ACC+4*j+e,2)}, {v(ACC+32+4*j+e,2)}, {v(GG+4*j+e,2)}, {v(ACC+4*j+e,2)}")
        A(f"s_add_u32 {s(sT1)}, {s(sT0)}, 4096")
        for i in range(4):
            A(f"buffer_store_dword {v(ACC+4*j+i)}, {v(AD+1)}, {s(R_OUT,4)}, {s(sT0 if i < 2 else sT1)} offen offset:{(i%2)*2048}{of if j < opt.get('outn', 4) else ''}")
        if j < 3: A(f"s_add_u32 {s(sT0)}, {s(sT0)}, 16384")
    A(f"s_lshl2_add_u32 {s(sT0)}, {s(sNB)}, {s(sW)}"); A(f"s_lshl_b32 {s(sT0)}, {s(sT0)}, 5"); A(f"s_add_u32 {s(sT0)}, {s(sT0)}, {s(sRB)}")
    A(f"s_cmp_eq_u32 {s(sT0)}, 31")
    A("s_cbranch_scc0 L_fin")
    A("s_mov_b64 exec, 1")
    A(f"buffer_store_dword {v(vTAG)}, {v(vZ)}, {s(R_WS,4)}, 0 offen sc1")
    A("s_mov_b64 exec, -1")
    A.label("L_fin")
    if stamps:
        A("s_waitcnt vmcnt(0)")
        stamp(12)
        A("s_waitcnt lgkmcnt(0)")
        A(f"s_lshl2_add_u32 {s(sT0)}, {s(sWG)}, {s(sW)}"); A(f"s_lshl_b32 {s(sT0)}, {s(sT0)}, 6")
        A(f"s_add_u32 {s(sT0)}, {s(sT0)}, {WS_STAMP}")
        for i in range(14):
            A(f"v_mov_b32 {v(t0)}, {s(SREG[i] if i < 13 else sTY)}")
            A(f"buffer_store_dword {v(t0)}, {v(vZ)}, {s(R_WS,4)}, {s(sT0)} offen offset:{4*i}")
    A("s_endpgm")
    A.label("L_slow")
    A.restore(snap); ctok[:] = ctok_s; ltok[:] = ltok_s
    k0_ = KCHK
    for n2, K2 in enumerate(opt.get('k2', [27, 32])):
        ssample(5)
        for ks in range(k0_, K2): step2a(ks, False, ltok, ctok, ks == K2 - 1)
        if K2 == 32: break
        A(f"s_cbranch_scc1 L_slow{n2}")
        snap2 = A.snapshot(); ctok_s = list(ctok)
        n = 32
        for ks in range(K2, 32):
            for _ in range(2):
                if n < 32 + AHEAD: run(load_ops(n)); n += 1
            step2a(ks, False, ltok, ctok)
        while n < 32 + AHEAD: run(load_ops(n)); n += 1
        stamp(9); stamp(10)
        A("s_branch L_2b")
        A.label(f"L_slow{n2}")
        A.restore(snap2); ctok[:] = ctok_s
        k0_ = K2
    stamp(9)
    A("s_cbranch_scc0 L_po_x")
    sspin("L_po", 5)
    stamp(10)
    for n in range(32, 32 + AHEAD): run(load_ops(n))
    A("s_branch L_2b")
    A.label("L_kvretry")
    A.restore(snap_kv)
    kl = kv_loads()
    A(f"s_mov_b32 {s(sT0)}, 0")
    groups = [(ZL, kl[:4])]; pre = []
    for o in kl[4:]:
        if o.startswith('s_'): pre = [o]
        else: groups.append((ACC + 4 * (len(groups) - 1), pre + [o]))
    for n, (r, ops) in enumerate(groups):
        A(f"v_max3_u32 {v(t2)}, {v(r)}, {v(r+1)}, {v(r+2)}")
        A(f"v_max_u32 {v(t2)}, {v(t2)}, {v(r+3)}")
        A(f"v_cmp_eq_u32 vcc, -1, {v(t2)}")
        A("s_nop 0")
        A(f"s_cbranch_vccz L_kvh{n}")
        run(ops)
        A(f"s_mov_b32 {s(sT0)}, 1")
        A.label(f"L_kvh{n}")
    A(f"s_cmp_eq_u32 {s(sT0)}, 0")
    A("s_cbranch_scc1 L_kvok")
    A.wait_all(vm=True, lg=False, force=True)
    kv_sum(A.vm)
    A(f"s_sub_u32 {s(sCNT)}, {s(sCNT)}, 1")
    A("s_cbranch_scc1 L_kvok")
    A("s_cbranch_vccnz L_kvretry")
    A("s_branch L_kvok")
    A.label("L_end")
    if not opt.get('nopg', 1):
        tmp = A.out + [f"L_pg_{r}_{n}:" for r in 'sa' for n in range(3)]
        tmp, A.fixed, A.padded = align_pass(tmp)
        tmp, cnt = page_pads(tmp, 0x300, {"L_ssm": 's', "L_attn": 'a', "L_phase2": None})
        assert cnt['s'] >= 2 and cnt['a'] >= 2, cnt
        A.out = tmp[:-6]
    else:
        A.out, A.fixed, A.padded = align_pass(A.out)
    hdr = open(os.path.join(os.path.dirname(__file__), "header.txt")).read()
    src = hdr + f"; @launch grid=(256,1,1) block=(256,1,1) lds={LDS_BYTES}\n" + DOC + f""".amdgcn_target "amdgcn-amd-amdhsa--gfx950"
.text
.globl {KNAME}
.p2align 12
.fill {opt.get('kpad', 0xe00)//4}, 4, 0xbf800000
.p2align 8
.type {KNAME},@function
{KNAME}:
{A.text()}
    s_endpgm
.section .rodata,"a"
.p2align 6
.amdhsa_kernel {KNAME}
  .amdhsa_next_free_vgpr 512
  .amdhsa_next_free_sgpr 102
  .amdhsa_accum_offset 256
  .amdhsa_group_segment_fixed_size 0
  .amdhsa_kernarg_size 128
  .amdhsa_user_sgpr_count 2
  .amdhsa_user_sgpr_kernarg_segment_ptr 1
  .amdhsa_system_sgpr_workgroup_id_x 1
.end_amdhsa_kernel
"""
    return src, A

if __name__ == "__main__":
    out = sys.argv[1]
    opt = {}
    for kv in sys.argv[3:]:
        k_, v_ = kv.split('='); opt[k_] = int(v_)
    src, A = gen(stamps=len(sys.argv) > 2 and sys.argv[2] == 'stamps', opt=opt)
    open(out, "w").write(src)
    print("lines", len(A.out), "nops", A.nops, "widened", getattr(A, 'fixed', 0), "padded", getattr(A, 'padded', 0))
```

```python
import sys, importlib
sys.path.insert(0, "tools")
import mkdiag as M, gen as G
for n, spec in enumerate(sys.argv[1:]):
    opt = {'stamps': [0] + [-1] * 11 + [12]}
    g = G; meas = (0, 12, 'span', 0)
    for kv in spec.split(','):
        if '=' in kv:
            k_, v_ = kv.split('=')
            if k_ == 'gen': g = importlib.import_module(v_)
            elif k_ == 'at':
                opt['stamps'][1] = int(v_); meas = (0, 1, 'span', 0)
            else: opt[k_] = [int(x) for x in v_.split('/')] if '/' in v_ else int(v_)
    src, _ = g.gen(stamps=True, opt=opt)
    M.make(src, f"s{n}.s", meas[0], meas[1], meas[2], meas[3], 10)
```
